```python
import torch

def _softmax(x, axis=-1):
    return torch.softmax(x, dim=axis)
def _gelu(x):
    return torch.nn.functional.gelu(x, approximate="tanh")
def _silu(x):
    return torch.nn.functional.silu(x)
def _sigmoid(x):
    return torch.sigmoid(x)
def _layernorm(x, axis=-1, eps=1e-5):
    m = x.mean(dim=axis, keepdim=True)
    v = x.var(dim=axis, keepdim=True, unbiased=False)
    return (x - m) / torch.sqrt(v + eps)
def _scatter_add(tgt, idx, src, axis=0):
    return tgt.clone().index_add_(axis, idx, src)
def _segment_sum(src, seg, n):
    out = torch.zeros((n,) + src.shape[1:], dtype=src.dtype)
    return out.index_add_(0, seg, src)
def _pad(x, pw):
    flat = tuple(v for pair in reversed(pw) for v in pair)
    return torch.nn.functional.pad(x, flat)

kernel_name = 'parallel_sum__linear_attn_block__geglu_ffn__prompt'

def setup_inputs():

    _w = (lambda a: (lambda t: t.to(torch.bfloat16) if t.is_floating_point() else t)(torch.as_tensor(a)))
    def _A_setup():
        B, S, D = 1, 2048, 576
        return {
            "x": _w((lambda *s: torch.randn(*s, dtype=torch.bfloat16) * 0.05)(B, S, D)),
            "wqkv": _w((lambda *s: torch.randn(*s, dtype=torch.bfloat16) * 0.4)(D, 3 * D)),
            "wo": _w((lambda *s: torch.randn(*s, dtype=torch.bfloat16) * 0.2)(D, D)),
        }
    _A_in = _A_setup()

    def _B_setup():
        B, S, D, F = 1, 2048, 576, 4608
        return {
            "x": _w((lambda *s: torch.randn(*s, dtype=torch.bfloat16) * 0.05)(B, S, D)),
            "w_gate": _w((lambda *s: torch.randn(*s, dtype=torch.bfloat16) * 0.05)(D, F)),
            "w_up": _w((lambda *s: torch.randn(*s, dtype=torch.bfloat16) * 0.05)(D, F)),
            "w_down": _w((lambda *s: torch.randn(*s, dtype=torch.bfloat16) * 0.05)(F, D)),
        }
    _B_in = _B_setup()

    return {
        "A_x": _A_in["x"],
        "A_wqkv": _A_in["wqkv"],
        "A_wo": _A_in["wo"],
        "B_x": _B_in["x"],
        "B_w_gate": _B_in["w_gate"],
        "B_w_up": _B_in["w_up"],
        "B_w_down": _B_in["w_down"],
    }

def reference(A_x, A_wqkv, A_wo, B_x, B_w_gate, B_w_up, B_w_down):
    def _A_ref(x, wqkv, wo):
        B, S, D = x.shape
        H = 32; Dh = D // H
        qkv = (lambda x, *d: x.permute(*d))((x @ wqkv).reshape(B, S, 3, H, Dh), 2, 0, 3, 1, 4)
        q, k, v = qkv[0], qkv[1], qkv[2]
        phi = lambda t: torch.where(t > 0, t + 1, torch.exp(t)) + 1e-6
        pq, pk = phi(q), phi(k)
        kv = torch.einsum("bhsd,bhse->bhde", pk, v)
        z = torch.einsum("bhsd->bhd", pk)
        num = torch.einsum("bhqd,bhde->bhqe", pq, kv)
        den = torch.einsum("bhqd,bhd->bhq", pq, z)[..., None] + 1e-6
        o = num / den
        return (lambda x, *d: x.permute(*d))(o, 0, 2, 1, 3).reshape(B, S, D) @ wo

    def _B_ref(x, w_gate, w_up, w_down):
        return (_gelu(x @ w_gate) * (x @ w_up)) @ w_down

    x = A_x
    xn = _layernorm(x, axis=-1)
    return x + _A_ref(xn, A_wqkv, A_wo) + _B_ref(xn, B_w_gate, B_w_up, B_w_down)
```

```python
import re

REG_RE = re.compile(r'^(-?)(abs\(|\|)?([vsa])(\d+|\[(\d+):(\d+)\])(\)|\|)?$')

def parse_regs(tok):
    tok = tok.strip()
    if tok in ('vcc',):
        return {('s', 106), ('s', 107)}
    if tok == 'vcc_lo': return {('s', 106)}
    if tok == 'vcc_hi': return {('s', 107)}
    if tok == 'exec':
        return {('s', 126), ('s', 127)}
    if tok == 'm0':
        return {('s', 124)}
    m = REG_RE.match(tok)
    if not m:
        return set()
    k = m.group(3)
    if m.group(5) is not None:
        return {(k, i) for i in range(int(m.group(5)), int(m.group(6)) + 1)}
    return {(k, int(m.group(4)))}

TRANS = ('v_exp_f32', 'v_log_f32', 'v_rcp_f32', 'v_rsq_f32', 'v_sqrt_f32', 'v_sin_f32', 'v_cos_f32')
M0 = {('s', 124)}
VCC = {('s', 106), ('s', 107)}
EXEC = {('s', 126), ('s', 127)}

class I:
    __slots__ = ('text', 'op', 'kind', 'rd', 'wr', 'tok', 'waits', 'srcc', 'passes', 'wide', 'data', 'dpp', 'cost', 'raw')
    def __init__(self, text, tok=None, waits=None):
        self.text = text.strip()
        self.tok = tok
        self.waits = waits or []
        self.rd = set(); self.wr = set(); self.srcc = set(); self.data = set()
        self.passes = 0; self.wide = False; self.dpp = False; self.raw = False
        t = self.text.split(';')[0].strip()
        if t.endswith(':') or t.startswith('.') or t == '':
            self.op = t; self.kind = 'label' if t.endswith(':') else 'dir'; self.cost = 0
            return
        parts = t.split(None, 1)
        op = parts[0]; self.op = op
        rest = parts[1] if len(parts) > 1 else ''
        ops = [x.strip() for x in rest.split(',')] if rest else []
        mods = ''
        if ops:
            last = ops[-1].split(None, 1)
            ops[-1] = last[0]
            mods = last[1] if len(last) > 1 else ''
        R = [parse_regs(x) for x in ops]
        base = re.sub(r'_(e32|e64|dpp|sdwa)$', '', op)
        self.cost = 1
        if op.startswith('v_mfma'):
            self.kind = 'mfma'; self.wr = R[0]; self.rd = R[1] | R[2] | R[3]; self.srcc = R[3]
            self.passes = 8 if '32x32' in op else 4
        elif op.startswith('v_'):
            self.kind = 'trans' if base in TRANS else 'valu'
            if self.kind == 'trans': self.cost = 2
            if 'row_' in mods or 'quad_perm' in mods or 'quad_perm' in rest or op.endswith('_dpp'):
                self.dpp = True
            if base.startswith('v_cmpx'):
                raise ValueError('avoid v_cmpx')
            if base.startswith('v_permlane') and 'swap' in base:
                self.wr = R[0] | R[1]; self.rd = R[0] | R[1]
            elif base in ('v_add_co_u32', 'v_sub_co_u32', 'v_addc_co_u32'):
                self.wr = R[0] | R[1]; self.rd = set().union(*R[2:])
            else:
                self.wr = set(R[0]); self.rd = set().union(*R[1:]) if len(R) > 1 else set()
                if base in ('v_fmac_f32', 'v_dot2c_f32_bf16', 'v_writelane_b32') or self.dpp:
                    self.rd |= R[0]
        elif op.startswith('ds_'):
            if op.startswith('ds_read') or op.startswith('ds_bpermute') or op.startswith('ds_swizzle') or op.startswith('ds_permute'):
                self.kind = 'ds_r'; self.wr = R[0]; self.rd = set().union(*R[1:])
            else:
                self.kind = 'ds_w'; self.rd = set().union(*R)
        elif op.startswith('buffer_') or op.startswith('global_'):
            islds = bool(re.search(r'\blds\b', mods)) or 'load_lds' in op
            if op.startswith('buffer_wbl2') or op.startswith('buffer_inv'):
                self.kind = 'vm_st'
            elif islds:
                self.kind = 'vm_dma'; self.rd = set().union(*R) | M0
            elif '_load' in op:
                self.kind = 'vm_ld'; self.wr = R[0]; self.rd = set().union(*R[1:])
            elif 'atomic' in op and re.search(r'\bsc0\b', mods):
                self.kind = 'vm_ld'; self.wr = R[0]; self.rd = set().union(*R)
            else:
                self.kind = 'vm_st'; self.rd = set().union(*R)
                self.data = R[0] if op.startswith('buffer_') else R[1]
                self.wide = op.endswith('x3') or op.endswith('x4')
        elif op == 's_waitcnt':
            self.kind = 'wait'
        elif op == 's_barrier':
            self.kind = 'barrier'
        elif op == 's_nop':
            self.kind = 'nop'
        elif op.startswith('s_load') or op.startswith('s_memtime') or op.startswith('s_memrealtime') or op.startswith('s_buffer_load'):
            self.kind = 'smem'; self.wr = R[0]; self.rd = set().union(*R[1:]) if len(R) > 1 else set()
        elif op.startswith('s_cbranch') or op in ('s_branch', 's_endpgm', 's_setprio', 's_sleep'):
            self.kind = 'ctl'
        elif op.startswith('s_cmp') or op.startswith('s_bitcmp'):
            self.kind = 'salu'; self.rd = set().union(*R)
        elif op.startswith('s_'):
            self.kind = 'salu'; self.wr = set(R[0]); self.rd = set().union(*R[1:]) if len(R) > 1 else set()
            if 'saveexec' in op:
                self.wr |= EXEC; self.rd |= EXEC
        else:
            raise ValueError('unknown op ' + op)
    def states(self):
        if self.kind in ('label', 'dir'): return 0
        if self.kind == 'nop': return int(self.text.split()[1]) + 1
        return 1
    def __repr__(self):
        return self.text

def raw(L):
    for x in L: x.raw = True
    return L

class Wait:
    def __init__(self, toks=(), vm0=False, lg0=False):
        self.toks = list(toks); self.vm0 = vm0; self.lg0 = lg0

def insert_waits(prog):
    out = []
    vmq = []
    lgq = []
    done_toks = set()
    def need(q, pred):
        n = None
        for idx, e in enumerate(q):
            if pred(e):
                n = len(q) - 1 - idx
        return n
    def emit_wait(vm, lg):
        nonlocal vmq, lgq
        parts = []
        if vm is not None:
            vm = min(vm, 63)
            if vm < len(vmq):
                parts.append(f'vmcnt({vm})')
                for e in vmq[:len(vmq) - vm]:
                    if e.tok: done_toks.add(e.tok)
                vmq = vmq[len(vmq) - vm:] if vm else []
        if lg is not None:
            if any(e.kind == 'smem' for e in lgq): lg = 0
            lg = min(lg, 15)
            if lg < len(lgq):
                parts.append(f'lgkmcnt({lg})')
                for e in lgq[:len(lgq) - lg]:
                    if e.tok: done_toks.add(e.tok)
                lgq = lgq[len(lgq) - lg:] if lg else []
        if parts:
            out.append(I('s_waitcnt ' + ' '.join(parts)))
    seen_toks = set()
    for x in prog:
        if isinstance(x, Wait):
            for t in x.toks:
                assert t in seen_toks, f'wait on unknown token {t}'
            ts = set(x.toks)
            vm = 0 if x.vm0 else need(vmq, lambda e: e.tok in ts)
            lg = 0 if x.lg0 else need(lgq, lambda e: e.tok in ts)
            emit_wait(vm, lg)
            continue
        if x.raw:
            out.append(x)
            continue
        if x.kind == 'wait':
            m = re.search(r'vmcnt\((\d+)\)', x.text); vm = int(m.group(1)) if m else None
            m = re.search(r'lgkmcnt\((\d+)\)', x.text); lg = int(m.group(1)) if m else None
            if vm is not None and vm < len(vmq): vmq = vmq[len(vmq) - vm:] if vm else []
            if lg is not None and lg < len(lgq): lgq = lgq[len(lgq) - lg:] if lg else []
            out.append(x)
            continue
        regs = x.rd | x.wr
        ts = set(x.waits)
        for t in ts:
            assert t in seen_toks, f'wait on unknown token {t}'
        vm = need(vmq, lambda e: (e.wr & regs) or (e.tok in ts))
        lg = need(lgq, lambda e: (e.wr & regs) or (e.tok in ts))
        emit_wait(vm, lg)
        if x.kind in ('vm_ld', 'vm_st', 'vm_dma'):
            if len(vmq) >= 63:
                emit_wait(62, None)
            vmq.append(x)
        elif x.kind in ('ds_r', 'ds_w', 'smem'):
            if len(lgq) >= 15:
                emit_wait(None, 14)
            lgq.append(x)
        if x.tok: seen_toks.add(x.tok)
        out.append(x)
    return out

def isv(regs):
    return {r for r in regs if r[0] in 'va'}
def iss(regs):
    return {r for r in regs if r[0] == 's'}

def hazard_need(p, c):
    n = 0
    pvalu = p.kind in ('valu', 'trans')
    cvalu = c.kind in ('valu', 'trans')
    cvmem = c.kind in ('vm_ld', 'vm_st', 'vm_dma')
    cds = c.kind in ('ds_r', 'ds_w')
    if pvalu:
        if c.kind == 'mfma' and (isv(p.wr) & c.rd): n = max(n, 2)
        if cvmem and (iss(p.wr) & c.rd): n = max(n, 5)
        if cvalu and (iss(p.wr) & c.rd):
            n = max(n, 4 if c.op.startswith('v_readlane') or c.op.startswith('v_writelane') else 2)
        if cvalu and c.dpp and (isv(p.wr) & c.rd): n = max(n, 2)
        if cvalu and c.op.startswith('v_permlane') and (isv(p.wr) & c.rd): n = max(n, 2)
        if cvalu and (c.op.startswith('v_readlane') or c.op.startswith('v_readfirstlane')) and (isv(p.wr) & c.rd): n = max(n, 1)
        if p.kind == 'trans' and c.kind == 'valu' and (p.wr & c.rd): n = max(n, 1)
        if p.kind == 'trans' and (c.kind == 'trans' or cvmem or cds) and (p.wr & c.rd): n = max(n, 1)
        if c.kind == 'salu' and (iss(p.wr) & c.rd): n = max(n, 2)
    if p.kind == 'mfma':
        big = {4: 8, 8: 12}[p.passes]
        if c.kind == 'mfma':
            ab = c.rd - c.srcc
            if p.wr & (c.rd - c.srcc): n = max(n, big)
            if p.wr & c.srcc:
                if c.srcc == p.wr and c.passes == p.passes: pass
                else: n = max(n, {4: 6, 8: 10}[p.passes])
            elif p.wr & c.wr:
                n = max(n, big)
        elif cvalu:
            if p.wr & (c.rd | c.wr): n = max(n, big)
            if p.srcc & c.wr: n = max(n, {4: 3, 8: 7}[p.passes])
        elif cvmem or cds:
            if p.wr & (c.rd | c.wr): n = max(n, big)
    if p.kind == 'vm_st' and p.wide and (p.data & c.wr):
        n = max(n, 2 if cvalu else 1)
    if p.kind == 'salu' and (p.wr & M0) and c.kind == 'vm_dma': n = max(n, 1)
    return n

def pad_hazards(prog):
    out = []
    nnop = 0
    for c in prog:
        if c.kind not in ('label', 'dir', 'wait', 'nop', 'barrier', 'ctl'):
            dist = 0; req = 0
            for p in reversed(out):
                if dist >= 14: break
                need = hazard_need(p, c) if p.kind not in ('label', 'dir') else 0
                if need - dist > req: req = need - dist
                dist += p.states()
            if req > 0:
                out.append(I(f's_nop {req - 1}')); nnop += 1
        out.append(c)
    return out, nnop

class Prog:
    def __init__(self):
        self.p = []
    def __call__(self, text, tok=None, waits=None):
        for line in text.split('\n'):
            line = line.strip()
            if line:
                self.p.append(I(line, tok, waits))
        return self
    def wait(self, toks=(), vm0=False, lg0=False):
        self.p.append(Wait(toks, vm0, lg0))
    def ext(self, items):
        self.p.extend(items)
    def finish(self):
        q = insert_waits(self.p)
        q, n = pad_hazards(q)
        return q, n

def render(q):
    L = []
    for x in q:
        L.append(x.text if x.kind in ('label',) else '    ' + x.text)
    return '\n'.join(L)

def kernel_text(name, q, nvgpr, nsgpr=96, accum=None):
    accum = accum or ((nvgpr + 3) // 4 * 4)
    body = f""".globl {name}
.p2align 8
.type {name},@function
{name}:
{render(q)}
"""
    kd = f""".amdhsa_kernel {name}
  .amdhsa_next_free_vgpr {nvgpr}
  .amdhsa_next_free_sgpr {nsgpr}
  .amdhsa_accum_offset {accum}
  .amdhsa_group_segment_fixed_size 0
  .amdhsa_kernarg_size 80
  .amdhsa_user_sgpr_count 2
  .amdhsa_user_sgpr_kernarg_segment_ptr 1
  .amdhsa_system_sgpr_workgroup_id_x 1
  .amdhsa_float_denorm_mode_32 3
.end_amdhsa_kernel
"""
    return body, kd

def vr(b, n=1):
    return f'v{b}' if n == 1 else f'v[{b}:{b + n - 1}]'
def sr(b, n=1):
    return f's{b}' if n == 1 else f's[{b}:{b + n - 1}]'
def f2u(x):
    import struct
    return struct.unpack('<I', struct.pack('<f', x))[0]
```

```python
from dsl import *
from layout import *

def dpp_reduce(P, v):
    for sh in (1, 2, 4, 8):
        P(f'v_add_f32_dpp v{v}, v{v}, v{v} row_shr:{sh} row_mask:0xf bank_mask:0xf bound_ctrl:0')
    P(f'v_add_f32_dpp v{v}, v{v}, v{v} row_bcast:15 row_mask:0xa bank_mask:0xf')
    P(f'v_add_f32_dpp v{v}, v{v}, v{v} row_bcast:31 row_mask:0xc bank_mask:0xf')

def gen_k0(name='k0_kernel'):
    P = Prog()
    P('s_cmp_ge_u32 s2, 256')
    P('s_cbranch_scc1 L_k0_done')
    P('s_load_dwordx4 s[4:7], s[0:1], 0')
    P('s_load_dwordx4 s[8:11], s[0:1], 32')
    P('s_load_dwordx2 s[12:13], s[0:1], 72')
    P('v_lshrrev_b32 v1, 6, v0')
    P('v_and_b32 v2, 63, v0')
    P('v_readfirstlane_b32 s3, v1')
    P(f's_mov_b32 s40, {OOB}')
    P('s_mov_b32 s62, 1990656\ns_mov_b32 s63, 3456')
    P('v_lshlrev_b32 v3, 5, v2')
    P('v_cmp_gt_u32 s[42:43], 36, v2')
    P('v_mov_b32 v4, s40')
    P('v_cndmask_b32 v3, v4, v3, s[42:43]')
    P('s_lshl_b32 s14, s2, 3')
    P('s_add_u32 s14, s14, s3')
    P('s_mul_i32 s15, s14, 1152')
    P('s_waitcnt lgkmcnt(0)')
    P('s_mov_b32 s16, s4\ns_mov_b32 s17, s5\ns_mov_b32 s18, 2359296\ns_mov_b32 s19, 0x20000')
    P(f's_mov_b32 s20, s12\ns_mov_b32 s21, s13\ns_mov_b32 s22, {WS_SIZE}\ns_mov_b32 s23, 0x20000')
    P('buffer_load_dwordx4 v[8:11], v3, s[16:19], s15 offen')
    P('buffer_load_dwordx4 v[12:15], v3, s[16:19], s15 offen offset:16')
    P('v_and_b32 v5, 15, v2')
    P('v_lshrrev_b32 v6, 4, v2')
    P('v_and_b32 v16, 3, v5')
    P('v_lshrrev_b32 v17, 2, v5')
    P('v_mov_b32 v7, 1152')
    P('v_cmp_eq_u32 vcc, 1, v17')
    P('v_cndmask_b32 v7, v7, 0, vcc')
    P('v_mov_b32 v18, 576')
    P('v_cmp_eq_u32 vcc, 2, v17')
    P('v_cndmask_b32 v7, v7, v18, vcc')
    P('v_add3_u32 v7, v7, v16, 16')
    P('v_lshlrev_b32 v7, 1, v7')
    P('v_cmp_gt_u32 vcc, 2, v16')
    P('v_cndmask_b32 v7, v4, v7, vcc')
    P('v_cmp_gt_u32 vcc, 3, v17')
    P('v_cndmask_b32 v7, v4, v7, vcc')
    P('v_lshlrev_b32 v5, 1, v5')
    P('v_lshlrev_b32 v19, 4, v2')
    for i in range(2):
        S = 24 + 4 * i
        G = 20 + 8 * i
        P(f's_add_u32 s44, s14, {2048 * i}')
        P('s_and_b32 s45, s44, 31')
        P('s_lshr_b32 s46, s44, 5')
        P('s_lshr_b32 s47, s46, 1')
        P('s_mul_i32 s47, s47, 294912')
        P('s_lshl_b32 s48, s45, 5')
        P('s_add_u32 s47, s47, s48')
        P('s_add_u32 s47, s47, 8192')
        P('s_bitcmp1_b32 s46, 0')
        P('s_cselect_b32 s50, s10, s8')
        P('s_cselect_b32 s51, s11, s9')
        P('s_sub_u32 s49, s46, 36')
        P('s_lshr_b32 s52, s49, 2')
        P('s_mul_i32 s52, s52, 110592')
        P('s_and_b32 s49, s49, 3')
        P('s_mul_i32 s53, s45, 36')
        P('s_add_u32 s52, s52, s53')
        P('s_mul_i32 s53, s49, 1152')
        P('s_cmp_eq_u32 s49, 3')
        P('s_cselect_b32 s53, 0, s53')
        P('s_cselect_b64 s[54:55], -1, 0')
        P('s_add_u32 s52, s52, s53')
        P('s_cmp_lt_u32 s46, 36')
        P(f's_cselect_b32 s{S}, s50, s6')
        P(f's_cselect_b32 s{S+1}, s51, s7')
        P(f's_cselect_b32 s{S+2}, 5308416, s62')
        P(f's_mov_b32 s{S+3}, 0x20000')
        P('s_cselect_b32 s56, s47, s52')
        P('s_cselect_b32 s57, 9216, s63')
        P('s_cselect_b64 s[54:55], 0, s[54:55]')
        P('s_cmp_lt_u32 s46, 108')
        P(f's_cselect_b32 s{S+2}, s{S+2}, 0')
        P(f's_mul_i32 s58, s45, {WX_J}')
        P('s_lshl_b32 s59, s46, 10')
        P('s_add_u32 s58, s58, s59')
        P(f's_add_u32 s58, s58, {WX_OFF}')
        P('s_cmp_lt_u32 s46, 108')
        P(f's_cselect_b32 s{60+i}, s58, s40')
        P('v_cndmask_b32 v16, v5, v7, s[54:55]')
        P('s_lshl_b32 s59, s57, 3')
        P('v_mul_lo_u32 v17, v6, s59')
        P(f'v_add_u32 v{36+i}, v16, v17')
        for e in range(8):
            P(f'buffer_load_ushort v{G+e}, v{36+i}, s[{S}:{S+3}], s56 offen')
            if e < 7: P('s_add_u32 s56, s56, s57')
    P('v_lshlrev_b32 v38, 4, v0')
    P('v_cmp_gt_u32 vcc, 96, v0')
    P('v_cndmask_b32 v38, v4, v38, vcc')
    for r in range(4): P(f'v_mov_b32 v{40+r}, -1')
    P('s_mul_i32 s44, s2, 1536')
    P(f's_add_u32 s44, s44, {KVP_OFF}')
    P('buffer_store_dwordx4 v[40:43], v38, s[20:23], s44 offen sc1')
    X = 48
    P('s_mov_b32 s45, 0xffff0000')
    for r in range(8):
        P(f'v_lshlrev_b32 v{X+2*r}, 16, v{8+r}')
        P(f'v_and_b32 v{X+2*r+1}, s45, v{8+r}')
    P(f'v_add_f32 v64, v{X}, v{X+1}')
    P(f'v_add_f32 v65, v{X+2}, v{X+3}')
    for r in range(4, 16, 2):
        P(f'v_add_f32 v64, v64, v{X+r}')
        P(f'v_add_f32 v65, v65, v{X+r+1}')
    P('v_add_f32 v64, v64, v65')
    dpp_reduce(P, 64)
    P('v_readlane_b32 s46, v64, 63')
    P(f's_mov_b32 s47, {f2u(1.0/576.0)}')
    P('v_mov_b32 v66, s46')
    P('v_mul_f32 v66, s47, v66')
    P(f'v_sub_f32 v67, v{X}, v66')
    P(f'v_sub_f32 v68, v{X+1}, v66')
    P('v_mul_f32 v64, v67, v67')
    P('v_mul_f32 v65, v68, v68')
    for r in range(2, 16, 2):
        P(f'v_sub_f32 v67, v{X+r}, v66')
        P(f'v_sub_f32 v68, v{X+r+1}, v66')
        P('v_fmac_f32 v64, v67, v67')
        P('v_fmac_f32 v65, v68, v68')
    P('v_add_f32 v64, v64, v65')
    P('v_cndmask_b32 v64, 0, v64, s[42:43]')
    dpp_reduce(P, 64)
    P('v_readlane_b32 s46, v64, 63')
    P('v_mov_b32 v67, s46')
    P('v_mul_f32 v67, s47, v67')
    P('v_cvt_pk_bf16_f32 v68, v66, v67')
    P('v_lshlrev_b32 v66, 16, v68')
    P('v_and_b32 v67, s45, v68')
    P(f'v_add_f32 v67, {f2u(1e-5):#x}, v67')
    P('v_cvt_pk_bf16_f32 v67, v67, v67')
    P('v_and_b32 v67, s45, v67')
    P('v_sqrt_f32 v67, v67')
    P('v_cvt_pk_bf16_f32 v67, v67, v67')
    P('v_and_b32 v67, s45, v67')
    P('v_rcp_f32 v67, v67')
    for r in range(16):
        P(f'v_sub_f32 v{X+r}, v{X+r}, v66')
    for r in range(8):
        P(f'v_cvt_pk_bf16_f32 v{8+r}, v{X+2*r}, v{X+2*r+1}')
    for r in range(8):
        P(f'v_lshlrev_b32 v{X+2*r}, 16, v{8+r}')
        P(f'v_and_b32 v{X+2*r+1}, s45, v{8+r}')
    for r in range(16):
        P(f'v_mul_f32 v{X+r}, v{X+r}, v67')
    for r in range(8):
        P(f'v_cvt_pk_bf16_f32 v{8+r}, v{X+2*r}, v{X+2*r+1}')
    P('v_lshlrev_b32 v69, 9, v2')
    P('v_cndmask_b32 v69, v4, v69, s[42:43]')
    P('s_lshr_b32 s46, s14, 4')
    P('s_mul_i32 s46, s46, 18432')
    P('s_and_b32 s47, s14, 15')
    P('s_lshl_b32 s47, s47, 4')
    P('s_add_u32 s46, s46, s47')
    if XN_OFF: P(f's_add_u32 s46, s46, {XN_OFF}')
    P('buffer_store_dwordx4 v[8:11], v69, s[20:23], s46 offen')
    P('buffer_store_dwordx4 v[12:15], v69, s[20:23], s46 offen offset:256')
    for i in range(2):
        G = 20 + 8 * i
        D = 72 + 4 * i
        for r in range(4):
            P(f'v_lshl_or_b32 v{D+r}, v{G+2*r+1}, 16, v{G+2*r}')
        P(f'buffer_store_dwordx4 v[{D}:{D+3}], v19, s[20:23], s{60+i} offen')
    P('L_k0_done:')
    P('s_endpgm')
    q, n = P.finish()
    return kernel_text(name, q, 80, 72)
```

```python
from dsl import *
from layout import *
import os

LDS_BYTES = 163840
NSLOT = 19
SLOT = 8192
MISC = NSLOT * SLOT
SCR = 12 * SLOT
KVS = SCR

V_TR = 0
V_L16 = 4
V_LB = 5
V_DMA = 6
V_K0 = 7
V_T = 8
V_WF = 16
V_ACC = 32
V_XF = 112
def XF(ks, mt): return V_XF + (ks * 2 + mt) * 4
def ACC(u, nt, mt): return V_ACC + 16 * u + (nt * 2 + mt) * 4

S_W = 4
S_WS = 8
S_W1K = 12
S_XN = 13
S_WX = 14
S_A2 = 15
S_K1 = 16
S_L2E = 17
S_EPS = 18
S_T = 20
S_M4 = 28
S_G2 = 30
S_KVST = 32
S_KVLD = 33
S_A2L = 34
S_EX = 35
S_EX8 = 36
S_CNT = 37
S_OOB = 38
S_WAVE = 39
S_W256 = 19
S_RED = 3
S_TS = 48

K0C = -2.0 * 0.7978845608028654 * 1.4426950408889634
K1C = K0C * 0.044715

class Ctx:
    pass

def gen_k1(name='k1_kernel', cfg=None):
    cfg = cfg or {}
    PRE = cfg.get('pre', 5)
    D = cfg.get('dist', 3)
    TS = cfg.get('ts', False)
    HST = cfg.get('hst', '')
    P = Prog()
    st = Ctx(); st.tmp = 0; st.nts = 0
    def stmp():
        st.tmp = (st.tmp + 1) % 6
        return S_T + st.tmp
    def ftmp():
        st.ft = (getattr(st, 'ft', 0) + 1) % 2
        return S_T + 6 + st.ft
    def ts(L):
        if TS:
            L.append(I(f's_memtime s[{S_TS + 2*st.nts}:{S_TS + 2*st.nts + 1}]')); st.nts += 1
            L.append(I('s_waitcnt lgkmcnt(0)'))

    if TS:
        P(f's_memrealtime s[80:81]')
        P(f's_memtime s[{S_TS}:{S_TS+1}]'); st.nts = 1
    P('s_cmp_ge_u32 s2, 256')
    P('s_cbranch_scc1 L_k1_done')
    P('s_load_dwordx4 s[40:43], s[0:1], 32')
    P('s_load_dwordx2 s[8:9], s[0:1], 72')
    P('v_lshrrev_b32 v8, 6, v0')
    P('v_and_b32 v9, 63, v0')
    P(f'v_readfirstlane_b32 s{S_WAVE}, v8')
    P('s_and_b32 s20, s2, 7')
    P('s_lshr_b32 s21, s2, 3')
    P('s_lshr_b32 s22, s20, 2')
    P('s_lshl_b32 s22, s22, 2')
    P('s_lshr_b32 s23, s21, 3')
    P('s_add_u32 s44, s22, s23')
    P('s_and_b32 s22, s20, 3')
    P('s_lshl_b32 s23, s22, 3')
    P('s_and_b32 s24, s21, 7')
    P('s_add_u32 s45, s23, s24')
    P(f's_mov_b32 s{S_OOB}, {OOB}')
    P(f's_lshl_b32 s{S_W1K}, s{S_WAVE}, 10')
    P('s_lshl_b32 s25, s44, 4')
    P(f's_lshl_b32 s26, s{S_WAVE}, 1')
    P('s_add_u32 s25, s25, s26')
    P(f's_mul_i32 s{S_XN}, s25, 18432')
    if XN_OFF: P(f's_add_u32 s{S_XN}, s{S_XN}, {XN_OFF}')
    P(f'v_lshlrev_b32 v{V_L16}, 4, v9')
    P('v_lshrrev_b32 v10, 3, v9')
    P('v_and_b32 v11, 3, v10')
    P('v_lshrrev_b32 v12, 2, v10')
    P('v_lshl_add_u32 v11, v12, 3, v11')
    P(f's_and_b32 s26, s{S_WAVE}, 1')
    P('s_lshl_b32 s26, s26, 2')
    P(f's_and_b32 s27, s{S_WAVE}, 2')
    P('s_lshl_b32 s27, s27, 3')
    P('s_add_u32 s26, s26, s27')
    P('v_add_u32 v11, s26, v11')
    P('v_mul_u32_u24 v11, 9216, v11')
    P('v_lshrrev_b32 v12, 1, v9')
    P('v_lshrrev_b32 v13, 4, v9')
    P('v_xor_b32 v12, v12, v13')
    P('v_and_b32 v12, 3, v12')
    P('v_lshl_add_u32 v11, v12, 5, v11')
    P('v_and_b32 v12, 1, v9')
    P('v_lshl_add_u32 v11, v12, 4, v11')
    P('s_lshl_b32 s26, s45, 8')
    P(f'v_add_u32 v{V_DMA}, s26, v11')
    P('s_waitcnt lgkmcnt(0)')
    P(f's_cmp_ge_u32 s{S_WAVE}, 4')
    P(f's_cselect_b32 s{S_W}, s42, s40')
    P(f's_cselect_b32 s{S_W+1}, s43, s41')
    P(f's_mov_b32 s{S_W+2}, 5308416')
    P(f's_mov_b32 s{S_W+3}, 0x20000')
    P(f's_mov_b32 s{S_WS+2}, {WS_SIZE}')
    P(f's_mov_b32 s{S_WS+3}, 0x20000')

    def dma(n):
        slot = (n % NSLOT) * SLOT
        t = stmp()
        L = [I(f's_add_u32 m0, s{S_W1K}, {slot}')]
        if n < 18 or n >= 32:
            ks = n if n < 18 else n - 32
            line = 0 if n < 18 else 1
            L.append(I(f's_mov_b32 s{t}, {(ks * 32 * 9216 + line * 128) if not cfg.get("fakew") else 0}'))
            L.append(I(f'buffer_load_dwordx4 v{V_DMA}, s[{S_W}:{S_W+3}], s{t} offen lds', tok=f'it{n}'))
        else:
            L.append(I(f's_add_u32 s{t}, s{S_WX}, {(n - 18) * 8192}'))
            L.append(I(f'buffer_load_dwordx4 v{V_L16}, s[{S_WS}:{S_WS+3}], s{t} offen lds', tok=f'it{n}'))
        return L
    def xload(ks):
        L = []
        for mt in range(2):
            t = stmp()
            if cfg.get('fakex'): ks_ = 0
            else: ks_ = ks
            L.append(I(f's_add_u32 s{t}, s{S_XN}, {mt * 18432 + (ks_ >> 2) * 4096}'))
            L.append(I(f'buffer_load_dwordx4 {vr(XF(ks, mt), 4)}, v{V_L16}, s[{S_WS}:{S_WS+3}], s{t} offen offset:{(ks_ & 3) * 1024}'))
        return L
    for ks in range(PRE):
        P.ext(dma(ks)); P.ext(xload(ks))
    P(f's_mul_i32 s{S_WX}, s45, {WX_J}')
    P(f's_add_u32 s{S_WX}, s{S_WX}, s{S_W1K}')
    P(f's_add_u32 s{S_WX}, s{S_WX}, {WX_OFF}')
    P('s_lshl_b32 s46, s44, 4')
    P(f's_lshl_b32 s47, s{S_WAVE}, 1')
    P('s_add_u32 s46, s46, s47')
    P(f's_mul_i32 s{S_A2}, s46, {A2_MT}')
    P('s_mul_i32 s47, s45, 5120')
    P(f's_add_u32 s{S_A2}, s{S_A2}, s47')
    P(f's_add_u32 s{S_A2}, s{S_A2}, {A2_OFF}')
    P(f's_lshl_b32 s{S_A2L}, s46, 11')
    P('s_lshr_b32 s47, s45, 3')
    P('s_lshl_b32 s47, s47, 9')
    P(f's_add_u32 s{S_A2L}, s{S_A2L}, s47')
    P('s_and_b32 s47, s45, 6')
    P('s_lshl_b32 s47, s47, 6')
    P(f's_add_u32 s{S_A2L}, s{S_A2L}, s47')
    P('s_and_b32 s47, s45, 1')
    P('s_lshl_b32 s47, s47, 2')
    P(f's_add_u32 s{S_A2L}, s{S_A2L}, s47')
    P(f's_add_u32 s{S_A2L}, s{S_A2L}, {A2L_OFF}')
    P('s_lshl_b32 s46, s45, 3')
    P('s_add_u32 s47, s46, s44')
    P('s_mul_i32 s47, s47, 1536')
    P(f's_lshl_b32 s{S_W256}, s{S_WAVE}, 8')
    P(f's_add_u32 s47, s47, s{S_W256}')
    P(f's_add_u32 s47, s47, {KVP_OFF}')
    P('s_mul_i32 s46, s46, 1536')
    P(f's_add_u32 s46, s46, s{S_W256}')
    P(f's_add_u32 s46, s46, {KVP_OFF}')
    P(f's_cmp_lt_u32 s{S_WAVE}, 6')
    P(f's_cselect_b32 s{S_KVST}, s47, s{S_OOB}')
    P(f's_cselect_b32 s{S_KVLD}, s46, s{S_OOB}')
    P(f's_add_u32 s46, s{S_W256}, {SCR}')
    P(f's_add_u32 s47, s{S_W256}, {MISC - 1024}')
    P(f's_cmp_lt_u32 s{S_WAVE}, 4')
    P(f's_cselect_b32 s{S_RED}, s46, s47')
    P('s_lshl_b32 s46, s2, 3')
    P(f's_add_u32 s46, s46, s{S_WAVE}')
    P('s_mul_i32 s46, s46, 3072')
    P(f's_add_u32 s{S_EX}, s46, {EX_OFF}')
    P('s_lshr_b32 s46, s2, 2')
    P('s_lshl_b32 s46, s46, 3')
    P(f's_add_u32 s46, s46, s{S_WAVE}')
    P('s_lshl_b32 s46, s46, 11')
    P(f's_add_u32 s46, s46, {EX8_OFF}')
    P(f's_xor_b32 s47, s2, s{S_WAVE}')
    P('s_and_b32 s47, s47, 3')
    P('s_cmp_eq_u32 s47, 0')
    P(f's_cselect_b32 s{S_EX8}, s46, s{S_OOB}')
    P(f's_mov_b32 s{S_K1}, {f2u(K1C):#x}')
    P(f's_mov_b32 s{S_L2E}, {f2u(1.4426950408889634):#x}')
    P(f's_mov_b32 s{S_EPS}, {f2u(1e-6):#x}')
    P(f's_mov_b32 s{S_M4}, 0x00040004\ns_mov_b32 s{S_M4+1}, 0x00040004')
    P(f's_mov_b32 s{S_G2}, 0\ns_mov_b32 s{S_G2+1}, 0x0000ffff')
    P(f'v_mov_b32 v{V_K0}, {f2u(K0C):#x}')
    P('v_lshrrev_b32 v10, 5, v9')
    P('v_lshlrev_b32 v10, 11, v10')
    P('v_bfe_u32 v11, v9, 2, 3')
    P('v_lshl_add_u32 v10, v11, 7, v10')
    P('v_bfe_u32 v11, v9, 3, 2')
    P('v_lshl_add_u32 v10, v11, 5, v10')
    P('v_and_b32 v11, 3, v9')
    P('v_lshl_add_u32 v10, v11, 3, v10')
    P(f'v_mov_b32 v{V_TR}, v10')
    for T in range(1, 4):
        P(f'v_xor_b32 v{V_TR+T}, {T*32}, v10')
    P(f'v_mov_b32 v{V_LB}, v{V_L16}')
    base = {V_TR: 0, V_TR+1: 0, V_TR+2: 0, V_TR+3: 0, V_LB: 0}
    def lds_addr(reg, addr, span):
        fx = []
        if not (0 <= addr - base[reg] and addr + span - base[reg] <= 65535):
            nb = (addr // SLOT) * SLOT
            nb = min(nb, LDS_BYTES - 65536) if nb > LDS_BYTES - 65536 else nb
            dlt = nb - base[reg]
            fx.append(I(f'v_add_u32 v{reg}, {dlt & 0xffffffff:#x}, v{reg}'))
            base[reg] = nb
        return fx, addr - base[reg]

    frags = []
    steps = []
    def add_L(phase, line, ks, tiles):
        for (T, u) in tiles:
            for mat in range(2):
                frags.append(dict(step=len(steps), item=(0 if line == 0 else 32) + ks, kind='tr', T=T, mat=mat,
                                  ks=ks, u=u, nt=mat, swap=False))
        steps.append((phase, ks))
    for ks in range(18): add_L('S1', 0, ks, [(0, 0), (1, 1), (2, 2), (3, 3)])
    for ks in range(18):
        for mat in range(2):
            blk = 2 * ks + mat
            frags.append(dict(step=len(steps), item=18 + (blk >> 3), kind='b128', blk=blk, ks=ks, u=4, nt=mat, swap=False))
        steps.append(('S2', ks))
    for ks in range(18):
        for T in range(4):
            blk = 36 + 4 * ks + T
            frags.append(dict(step=len(steps), item=18 + (blk >> 3), kind='b128', blk=blk, ks=ks, u=T >> 1, nt=T & 1, swap=(T != 0)))
        steps.append(('S3', ks))
    for (ph, T, u) in (('S4a', 0, 2), ('S4b', 1, 3), ('S4c', 2, 4), ('S4d', 3, 1)):
        for ks in range(18): add_L(ph, 1, ks, [(T, u)])
    NF = len(frags)
    step_of = {s: i for i, s in enumerate(steps)}

    def reads(i):
        f = frags[i]; w = V_WF + (i % 4) * 4
        slot = (f['item'] % NSLOT) * SLOT
        if f['kind'] == 'tr':
            a = slot + f['mat'] * 4096
            fx, off = lds_addr(V_TR + f['T'], a, 4096)
            return [fx + [I(f'ds_read_b64_tr_b16 {vr(w, 2)}, v{V_TR + f["T"]} offset:{off}')],
                    [I(f'ds_read_b64_tr_b16 {vr(w + 2, 2)}, v{V_TR + f["T"]} offset:{off + 1024}')]]
        else:
            a = slot + (f['blk'] & 7) * 1024
            fx, off = lds_addr(V_LB, a, 1024)
            return [fx + [I(f'ds_read_b128 {vr(w, 4)}, v{V_LB} offset:{off}')], []]
    def mfmas(i):
        f = frags[i]; w = V_WF + (i % 4) * 4
        L = []
        for mt in range(2):
            d = ACC(f['u'], f['nt'], mt); x = XF(f['ks'], mt)
            a, b = (x, w) if f['swap'] else (w, x)
            c = '0' if f['ks'] == 0 else vr(d, 4)
            L.append(I(f'v_mfma_f32_16x16x32_bf16 {vr(d, 4)}, {vr(a, 4)}, {vr(b, 4)}, {c}'))
        return L

    bars = set()
    s1b = cfg.get('s1bar', 1)
    for ks in range(0, 18, s1b): bars.add(step_of[('S1', ks)])
    for ks in (0, 6, 12): bars.add(step_of[('S2', ks)])
    for ks in range(0, 18, 3): bars.add(step_of[('S3', ks)])
    for ks in (0, 6, 12): bars.add(step_of[('S4a', ks)])
    bars.add(step_of[('S4b', 6)])
    bars.add(step_of[('S4c', 6)])
    bars.add(step_of[('S4d', 6)])
    bars = sorted(bars)
    first_frag = {}
    for i, f in enumerate(frags): first_frag.setdefault(f['step'], i)
    need = {}
    for bi, b in enumerate(bars):
        lo = first_frag[b] + (D if bi > 0 else 0)
        hi = (first_frag[bars[bi + 1]] + D) if bi + 1 < len(bars) else NF
        need[b] = sorted({frags[i]['item'] for i in range(lo, min(hi, NF))})
    last_use = {}
    for f in frags: last_use[f['item']] = f['step']
    def release(item):
        return min(b for b in bars if b > last_use[item])
    issue = {}
    nxt = PRE
    rate = cfg.get('rate', 2)
    for s in range(len(steps)):
        ph, ks = steps[s]
        if ph == 'S1' and nxt < 18: cap = 2 if ks in cfg.get('dbl', []) else 1
        elif ph == 'S1': cap = rate + 1
        elif ph == 'S3': cap = 1
        else: cap = 1 if ks % 2 == 0 else 0
        while cap > 0 and nxt < 50 and (nxt < NSLOT or release(nxt - NSLOT) <= s):
            issue.setdefault(s, []).append(nxt); nxt += 1; cap -= 1
    assert nxt == 50
    issued_at = {n: s for s, L in issue.items() for n in L}
    for b in bars:
        for n in need[b]:
            assert n < PRE or issued_at[n] < b, (n, b, issued_at[n])
    if cfg.get('verbose'):
        print('bars', [(steps[b], need[b]) for b in bars])
        print('issue', [(steps[s], L) for s, L in sorted(issue.items())])

    def gelu_quad(g, u, dst):
        t = [V_T + r for r in range(4)]
        L = []
        for r in range(4): L.append(I(f'v_mul_f32 v{t[r]}, v{g+r}, v{g+r}'))
        for r in range(4): L.append(I(f'v_fma_f32 v{t[r]}, v{t[r]}, s{S_K1}, v{V_K0}'))
        for r in range(4): L.append(I(f'v_mul_f32 v{t[r]}, v{g+r}, v{t[r]}'))
        for r in range(4): L.append(I(f'v_exp_f32 v{t[r]}, v{t[r]}'))
        for r in range(4): L.append(I(f'v_mul_f32 v{u+r}, v{g+r}, v{u+r}'))
        for r in range(4): L.append(I(f'v_add_f32 v{t[r]}, 1.0, v{t[r]}'))
        for r in range(4): L.append(I(f'v_rcp_f32 v{t[r]}, v{t[r]}'))
        for r in range(4): L.append(I(f'v_mul_f32 v{u+r}, v{u+r}, v{t[r]}'))
        L.append(I(f'v_cvt_pk_bf16_f32 v{dst}, v{u}, v{u+1}'))
        L.append(I(f'v_cvt_pk_bf16_f32 v{dst+1}, v{u+2}, v{u+3}'))
        return L
    def hstore(reg, n, mt, t, extra=0):
        s = ftmp()
        off = t * 1024 + extra
        L = [I(f's_add_u32 s{s}, s{S_A2}, {mt * A2_MT + (off & ~4095)}')]
        op = 'buffer_store_dwordx4' if n == 4 else 'buffer_store_dwordx2'
        L.append(I(f'{op} {vr(reg, n)}, v{V_L16}, s[{S_WS}:{S_WS+3}], s{s} offen offset:{off & 4095} {HST}'))
        return L
    def E_first(u):
        L = []
        for mt in range(2): L += gelu_quad(ACC(u, 0, mt), ACC(u, 1, mt), ACC(u, 0, mt))
        return L
    def E_second(u0, u1, t):
        L = []
        for mt in range(2):
            L += gelu_quad(ACC(u1, 0, mt), ACC(u1, 1, mt), ACC(u0, 0, mt) + 2)
            L += hstore(ACC(u0, 0, mt), 4, mt, t)
        return L
    def E_quarter(u):
        L = []
        for mt in range(2):
            L += gelu_quad(ACC(u, 0, mt), ACC(u, 1, mt), ACC(u, 0, mt))
            L += hstore(ACC(u, 0, mt), 2, mt, 4)
        return L
    def phi_quad(q):
        t = [V_T + r for r in range(4)]
        L = []
        for r in range(4): L.append(I(f'v_mul_f32 v{t[r]}, s{S_L2E}, v{q+r}'))
        for r in range(4): L.append(I(f'v_exp_f32 v{t[r]}, v{t[r]} clamp'))
        for r in range(4): L.append(I(f'v_max_f32 v{q+r}, s{S_EPS}, v{q+r}'))
        for r in range(4): L.append(I(f'v_add_f32 v{q+r}, v{q+r}, v{t[r]}'))
        return L
    def pack2(dst, q0, q1):
        return [I(f'v_cvt_pk_bf16_f32 v{dst}, v{q0}, v{q0+1}'), I(f'v_cvt_pk_bf16_f32 v{dst+1}, v{q0+2}, v{q0+3}'),
                I(f'v_cvt_pk_bf16_f32 v{dst+2}, v{q1}, v{q1+1}'), I(f'v_cvt_pk_bf16_f32 v{dst+3}, v{q1+2}, v{q1+3}')]
    T0 = [ACC(0, 0, 0), ACC(0, 0, 1)]; T1 = [ACC(0, 1, 0), ACC(0, 1, 1)]
    T2 = [ACC(1, 0, 0), ACC(1, 0, 1)]; T3 = [ACC(1, 1, 0), ACC(1, 1, 1)]
    VA = V_T + 4
    VB = V_T + 5
    def E_qkv():
        L = []
        L += pack2(T2[0], T2[0], T2[1])
        L += pack2(T2[1], T3[0], T3[1])
        L.append(I(f'v_mov_b32 v{VB}, 0x3f803f80'))
        for r in range(4): L.append(I(f'v_cndmask_b32 v{T2[1]+r}, v{T2[1]+r}, v{VB}, s[{S_M4}:{S_M4+1}]'))
        L += phi_quad(T1[0]) + phi_quad(T1[1]) + pack2(T1[0], T1[0], T1[1])
        L += phi_quad(T3[0]) + phi_quad(T3[1]) + pack2(T3[0], T3[0], T3[1])
        L.append(I(f'v_mfma_f32_16x16x32_bf16 {vr(T1[1],4)}, {vr(T1[0],4)}, {vr(T2[0],4)}, 0'))
        L.append(I(f'v_mfma_f32_16x16x32_bf16 {vr(T3[1],4)}, {vr(T1[0],4)}, {vr(T2[1],4)}, 0'))
        L.append(I(f'v_add_u32 v{VA}, s{S_W1K}, v{V_L16}'))
        L.append(I(f'v_add_u32 v{VA}, {SCR}, v{VA}'))
        L.append(I(f'ds_write_b128 v{VA}, {vr(T3[0],4)}'))
        L += phi_quad(T0[0])
        L.append(I(f'v_mfma_f32_16x16x32_bf16 {vr(T1[0],4)}, {vr(T3[0],4)}, {vr(T2[0],4)}, 0'))
        L.append(I(f'v_cvt_pk_bf16_f32 v{T0[0]}, v{T0[0]}, v{T0[0]+1}'))
        L.append(I(f'v_cvt_pk_bf16_f32 v{T0[0]+1}, v{T0[0]+2}, v{T0[0]+3}'))
        L.append(I(f'v_mfma_f32_16x16x32_bf16 {vr(T2[0],4)}, {vr(T3[0],4)}, {vr(T2[1],4)}, 0'))
        VC = V_T + 6
        L.append(I(f'v_bfe_u32 v{VC}, v{V_L16}, 6, 2'))
        L.append(I(f'v_lshlrev_b32 v{VC}, 8, v{VC}'))
        L.append(I(f'v_bfe_u32 v{VB}, v{V_L16}, 4, 2'))
        L.append(I(f'v_lshl_add_u32 v{VC}, v{VB}, 1, v{VC}'))
        L.append(I(f'v_add_u32 v{VC}, s{S_W1K}, v{VC}'))
        L.append(I(f'v_add_u32 v{VC}, {SCR}, v{VC}'))
        L += phi_quad(T0[1])
        L.append(I(f'v_cvt_pk_bf16_f32 v{T0[1]}, v{T0[1]}, v{T0[1]+1}'))
        L.append(I(f'v_cvt_pk_bf16_f32 v{T0[1]+1}, v{T0[1]+2}, v{T0[1]+3}'))
        for mt in range(2):
            L.append(I(f'ds_read_u16 v{T0[mt]+2}, v{VC} offset:{4*16 + mt*8}'))
            L.append(I(f'ds_read_u16 v{T0[mt]+3}, v{VC} offset:{5*16 + mt*8}'))
        L.append(I(f'ds_write_b128 v{VA}, {vr(T1[1],4)}', tok='kva0'))
        L.append(I(f'v_bfe_u32 v{VA}, v{V_L16}, 8, 2'))
        L.append(I(f'v_bfe_u32 v{VB}, v{V_L16}, 4, 4'))
        L.append(I(f'v_mad_u32_u24 v{VA}, v{VA}, 3, v{VB}'))
        L.append(I(f'v_lshlrev_b32 v{VA}, 4, v{VA}'))
        L.append(I(f'v_or_b32 v{VC}, 0x200, v{V_L16}'))
        L.append(I(f'v_cmp_gt_u32 vcc, 3, v{VB}'))
        L.append(I(f'v_cndmask_b32 v{VA}, v{VC}, v{VA}, vcc'))
        L.append(I(f'v_lshlrev_b32 v{VB}, 4, v{VB}'))
        L.append(I(f'v_add_u32 v{VB}, 0x100, v{VB}'))
        L.append(I(f'v_cndmask_b32 v{VB}, v{VC}, v{VB}, s[{S_G2}:{S_G2+1}]'))
        L.append(I(f's_add_u32 s{S_CNT}, s{S_W1K}, {MISC}'))
        L.append(I(f'v_add_u32 v{VA}, s{S_CNT}, v{VA}'))
        L.append(I(f'v_add_u32 v{VB}, s{S_CNT}, v{VB}'))
        L.append(I(f'ds_write_b128 v{VA}, {vr(T3[1],4)}', tok='kva1'))
        L.append(I(f'ds_write_b64 v{VB}, {vr(T1[0],2)}', tok='kva2'))
        L.append(I(f'ds_write_b64 v{VB}, {vr(T2[0],2)} offset:8', tok='kva3'))
        for mt in range(2):
            L.append(I(f'v_lshl_or_b32 v{T0[mt]+2}, v{T0[mt]+3}, 16, v{T0[mt]+2}'))
            L.append(I(f'v_mov_b32 v{T0[mt]+3}, 0'))
        return L
    G = T1[0]
    VL4 = V_T + 7
    def sum8():
        return [I(f'v_add_f32 v{G}, v{G}, v{G+1}'), I(f'v_add_f32 v{G+2}, v{G+2}, v{G+3}'), I(f'v_add_f32 v{G+4}, v{G+4}, v{G+5}'),
                I(f'v_add_f32 v{G+6}, v{G+6}, v{G+7}'), I(f'v_add_f32 v{G}, v{G}, v{G+2}'), I(f'v_add_f32 v{G+4}, v{G+4}, v{G+6}'),
                I(f'v_add_f32 v{G}, v{G}, v{G+4}')]
    def F_publish():
        L = [I(f'v_lshrrev_b32 v{VL4}, 2, v{V_L16}'), I(f'v_add_u32 v{VA}, s{S_RED}, v{VL4}')]
        for p in range(8): L.append(I(f'ds_read_b32 v{G+p}, v{VA} offset:{1024*p}'))
        L += sum8()
        L.append(I(f'v_min_u32 v{G}, -2, v{G}'))
        L.append(I(f'buffer_store_dword v{G}, v{VL4}, s[{S_WS}:{S_WS+3}], s{S_KVST} offen sc1'))
        return L
    def kv_loads():
        L = []
        for p in range(8):
            if p % 2 == 0:
                t = ftmp()
                L.append(I(f's_add_u32 s{t}, s{S_KVLD}, {1536*p}'))
            L.append(I(f'buffer_load_dword v{G+p}, v{VL4}, s[{S_WS}:{S_WS+3}], s{t} offen offset:{1536*(p%2)} sc1'))
        return L
    def kv_check():
        t = V_T
        L = [I(f'v_max3_u32 v{t}, v{G}, v{G+1}, v{G+2}'), I(f'v_max3_u32 v{t+1}, v{G+3}, v{G+4}, v{G+5}'),
             I(f'v_max3_u32 v{t}, v{t}, v{G+6}, v{G+7}'), I(f'v_max_u32 v{t}, v{t}, v{t+1}'),
             I(f'v_cmp_eq_u32 vcc, -1, v{t}')]
        return L
    def F_gather():
        grp = kv_check() + [I('s_nop 4'), I('s_cbranch_vccz L_k1_kvok'), I(f's_mov_b32 s{S_CNT}, {cfg.get("spin", 200000)}'), I('L_k1_kvretry:'), I('s_sleep 2')]
        grp += raw(kv_loads() + [I('s_waitcnt vmcnt(0)')] + kv_check())
        grp += [I(f's_sub_u32 s{S_CNT}, s{S_CNT}, 1'), I(f's_cmp_eq_u32 s{S_CNT}, 0'), I('s_cbranch_scc1 L_k1_kvok'), I('s_nop 4'),
                I('s_cbranch_vccnz L_k1_kvretry'), I('L_k1_kvok:')]
        L = [grp] + sum8()
        L.append(I(f's_add_u32 s{S_CNT}, s{S_W256}, {KVS}'))
        L.append(I(f'v_add_u32 v{VA}, s{S_CNT}, v{VL4}'))
        L.append(I(f'ds_write_b32 v{VA}, v{G}', tok='kvb0'))
        return L
    def F_o():
        E0, E1, P2 = T1[0], T1[1], V_T + 4
        t = V_T
        L = [I(f'v_add_u32 v{t}, {KVS}, v{V_L16}'),
             I(f'ds_read_b128 {vr(E0,4)}, v{t}'),
             I(f'v_bfe_u32 v{t+1}, v{V_L16}, 8, 2'),
             I(f'v_bfe_u32 v{t+2}, v{V_L16}, 4, 2'),
             I(f'v_mad_u32_u24 v{t+1}, v{t+1}, 3, v{t+2}'),
             I(f'v_lshlrev_b32 v{t+1}, 4, v{t+1}'),
             I(f'v_add_u32 v{t+1}, {KVS}, v{t+1}'),
             I(f'ds_read_b128 {vr(E1,4)}, v{t+1} offset:1024'),
             I(f'v_and_b32 v{t+1}, 0xf0, v{V_L16}'),
             I(f'v_add_u32 v{t+1}, {KVS}, v{t+1}'),
             I(f'ds_read_b64 {vr(P2,2)}, v{t+1} offset:1280'),
             I(f'v_and_b32 v{t+2}, 0x30, v{V_L16}'),
             I(f'v_add_u32 v{t+2}, {KVS}, v{t+2}'),
             I(f'ds_read_b64 {vr(P2+2,2)}, v{t+2} offset:1288')]
        for E, c in ((E0, 0), (E1, 2)):
            L.append(I(f'v_cvt_pk_bf16_f32 v{E}, v{E}, v{E+1}'))
            L.append(I(f'v_cvt_pk_bf16_f32 v{E+1}, v{E+2}, v{E+3}'))
            L.append(I(f'v_cvt_pk_bf16_f32 v{E+2}, v{P2+c}, v{P2+c+1}'))
            L.append(I(f'v_cndmask_b32 v{E+2}, 0, v{E+2}, s[{S_G2}:{S_G2+1}]'))
            L.append(I(f'v_mov_b32 v{E+3}, 0'))
        D0 = [ACC(3, 0, 0), ACC(3, 0, 1)]; D1 = [ACC(3, 1, 0), ACC(3, 1, 1)]
        for mt in range(2):
            L.append(I(f'v_mfma_f32_16x16x32_bf16 {vr(D1[mt],4)}, {vr(E1,4)}, {vr(T0[mt],4)}, 0'))
            L.append(I(f'v_mfma_f32_16x16x32_bf16 {vr(D0[mt],4)}, {vr(E0,4)}, {vr(T0[mt],4)}, 0'))
        L.append(I(f'v_lshrrev_b32 v{P2}, 1, v{V_L16}'))
        L.append(I(f'v_mov_b32 v{P2+1}, s{S_OOB}'))
        L.append(I(f'v_cmp_gt_u32 vcc, 0x80, v{P2}'))
        L.append(I(f'v_cndmask_b32 v{P2}, v{P2+1}, v{P2}, vcc'))
        for mt in range(2): L.append(I(f'v_add_f32 v{D1[mt]+2}, s{S_EPS}, v{D1[mt]+2}'))
        for mt in range(2): L.append(I(f'v_rcp_f32 v{D1[mt]+2}, v{D1[mt]+2}'))
        for mt in range(2):
            for r in range(4): L.append(I(f'v_mul_f32 v{D0[mt]+r}, v{D0[mt]+r}, v{D1[mt]+2}'))
            for r in (0, 1): L.append(I(f'v_mul_f32 v{D1[mt]+r}, v{D1[mt]+r}, v{D1[mt]+2}'))
            L.append(I(f'v_cvt_pk_bf16_f32 v{D0[mt]}, v{D0[mt]}, v{D0[mt]+1}'))
            L.append(I(f'v_cvt_pk_bf16_f32 v{D0[mt]+1}, v{D0[mt]+2}, v{D0[mt]+3}'))
            L.append(I(f'v_cvt_pk_bf16_f32 v{D1[mt]}, v{D1[mt]}, v{D1[mt]+1}'))
            L += hstore(D0[mt], 2, mt, 4, 8)
            L.append(I(f'buffer_store_dword v{D1[mt]}, v{P2}, s[{S_WS}:{S_WS+3}], s{S_A2L} offen offset:{2048*mt} {HST}'))
        return L
    def F_poison():
        q = V_T + 4
        L = [I(f'v_mov_b32 v{q+r}, -1') for r in range(4)]
        for p in range(3):
            L.append(I(f'buffer_store_dwordx4 {vr(q,4)}, v{V_L16}, s[{S_WS}:{S_WS+3}], s{S_EX} offen offset:{1024*p} sc1'))
        for p in range(2):
            L.append(I(f'buffer_store_dwordx4 {vr(q,4)}, v{V_L16}, s[{S_WS}:{S_WS+3}], s{S_EX8} offen offset:{1024*p} sc1'))
        return L

    avail = {
        step_of[('S2', 0)]: lambda: E_first(0) + E_second(0, 1, 0),
        step_of[('S3', 0)]: lambda: E_first(2) + E_second(2, 3, 1) + E_quarter(4) + (F_poison() if cfg.get('poison', 1) else []),
        step_of[('S4a', 0)]: lambda: E_qkv(),
        step_of[('S4b', 6)]: lambda: F_publish() + E_first(2),
        step_of[('S4c', 0)]: lambda: E_second(2, 3, 2),
        step_of[('S4c', 12)]: lambda: kv_loads(),
        step_of[('S4d', 0)]: lambda: F_gather(),
        step_of[('S4d', 6)]: lambda: E_first(4) + F_o(),
    }
    flush = {step_of[('S3', 0)], step_of[('S4a', 0)], step_of[('S4b', 6)], step_of[('S4d', 0)], step_of[('S4d', 6)]}
    bar_extra = {step_of[('S4b', 6)]: [f'kva{i}' for i in range(4)], step_of[('S4d', 6)]: ['kvb0']}

    fill = []
    memq = []
    MINGAP = cfg.get('mingap', 6)
    def slots(seq):
        t = 0; lastv = -10; first = True
        for x in seq:
            if isinstance(x, Wait):
                t += 1; continue
            if first:
                first = False; t = 1; continue
            if x.kind in ('valu', 'trans'):
                t = max(t, 2); t += x.cost; lastv = t - 1
            elif x.kind in ('ds_r', 'ds_w', 'vm_ld', 'vm_st', 'vm_dma'):
                t = max(t, 2, lastv + 3); t += 1
            else:
                t += x.states()
        return t
    def gap(m, shadow, rd, pad):
        seq = [m] + shadow
        budget = 2
        rdv = [x for x in rd if x.kind == 'valu']; rdm = [x for x in rd if x.kind != 'valu']
        seq += rdv; budget -= len(rdv)
        sal = []; mem = []
        while fill and not isinstance(fill[0], list) and fill[0].kind in ('valu', 'trans') and fill[0].cost <= budget:
            x = fill.pop(0); budget -= x.cost; seq.append(x)
        if budget == 1 and fill and not isinstance(fill[0], list) and fill[0].kind == 'trans':
            for k in range(1, min(8, len(fill))):
                x = fill[k]
                if isinstance(x, list) or x.kind not in ('valu', 'trans'): break
                if x.kind == 'valu' and not any((x.rd & y.wr) or (x.wr & (y.rd | y.wr)) for y in fill[:k]):
                    seq.append(fill.pop(k)); budget -= 1; break
        while fill and not isinstance(fill[0], list) and fill[0].kind == 'salu' and len(sal) < 2:
            sal.append(fill.pop(0))
        nmem = 2 - len(rdm)
        while fill and not isinstance(fill[0], list) and fill[0].kind in ('ds_r', 'ds_w', 'vm_ld', 'vm_st') and len(mem) < nmem:
            mem.append(fill.pop(0))
        st.gapno = getattr(st, 'gapno', 0) + 1
        if memq and not mem and not sal and st.gapno - getattr(st, 'lastmem', -99) >= cfg.get('memsp', 1):
            st.lastmem = st.gapno
            g = memq.pop(0)
            sal += [x for x in g if x.kind == 'salu']; mem += [x for x in g if x.kind != 'salu']
        seq += sal + rdm + mem
        if pad:
            n = slots(seq)
            seq += [I('s_nop 0') for _ in range(max(0, MINGAP - n))]
        if fill and isinstance(fill[0], list):
            seq += fill.pop(0)
        if fill and fill[0].kind == 'mfma':
            seq += gap(fill.pop(0), [], [], pad)
        return seq
    def drain():
        L = []
        while fill:
            x = fill.pop(0)
            if isinstance(x, list): L += x
            else: L.append(x)
        return L

    M = []
    def rtoks(i):
        return [f'rd{i}a', f'rd{i}b'] if frags[i]['kind'] == 'tr' else [f'rd{i}a']
    def reads_t(i):
        r0, r1 = reads(i)
        r0[-1].tok = f'rd{i}a'
        if r1: r1[-1].tok = f'rd{i}b'
        return r0, r1
    def barrier_seq(s):
        return [Wait([f'it{n}' for n in need[s]] + bar_extra.get(s, [])), I('s_barrier')]
    for i in range(NF):
        f = frags[i]; s = f['step']
        pad = steps[s][0] != 'S1'
        if i == 0:
            M += barrier_seq(0); ts(M)
            for k in range(D):
                r0, r1 = reads_t(k); M += r0 + r1
        if first_frag[s] == i:
            if s in avail: fill.extend(avail[s]())
            for n in issue.get(s, []):
                memq.append(dma(n))
                if n < 18:
                    xl = xload(n); memq.append(xl[:2]); memq.append(xl[2:])
        m0, m1 = mfmas(i)
        r0, r1 = reads_t(i + D) if i + D < NF else ([], [])
        M += gap(m0, [], r0, pad)
        nxt_first = i + 1 < NF and first_frag[frags[i + 1]['step']] == i + 1
        ns = frags[i + 1]['step'] if i + 1 < NF else None
        shadow = [Wait(rtoks(i + 1))] if i + 1 < NF else []
        if nxt_first and (ns in flush or ns in bars):
            if ns in flush: M += drain()
            if ns in bars:
                while memq: M += memq.pop(0)
                M.append(Wait([f'it{n}' for n in need[ns]] + bar_extra.get(ns, [])))
                M += gap(m1, [I('s_barrier')] + shadow, r1, pad)
            else:
                M += gap(m1, shadow, r1, pad)
        else:
            M += gap(m1, shadow, r1, pad)
        if nxt_first and steps[ns][1] == 0: ts(M)
    ts(M)
    M += drain()
    M += E_second(4, 1, 3)
    def keep(x):
        if isinstance(x, Wait): return True
        if cfg.get('nobar') and x.kind == 'barrier': return False
        if cfg.get('nomem') and x.kind in ('vm_ld', 'vm_st', 'vm_dma') and not x.raw: return False
        if cfg.get('nost') and x.kind in ('vm_st',): return False
        if cfg.get('novalu') and x.kind in ('valu', 'trans') and not (x.wr & {('v', r) for r in range(0, 6)}) and not x.op.startswith('v_cmp'): return False
        if cfg.get('nonop') and x.kind == 'nop': return False
        return True
    if cfg.get('nomem'):
        for x in M:
            if isinstance(x, Wait): x.toks = [t for t in x.toks if not t.startswith('it') or int(t[2:]) < PRE]
    M = M[:2] + [x for x in M[2:] if keep(x)]
    P.ext(M)
    if TS:
        L = []; ts(L); P.ext(L)
        P('s_waitcnt vmcnt(0)')
        L = []; ts(L); P.ext(L)
        P('s_memrealtime s[82:83]\ns_waitcnt lgkmcnt(0)')
        for k in range(st.nts): P(f'v_writelane_b32 v8, s{S_TS + 2*k}, {k}')
        P('v_writelane_b32 v8, s80, 14')
        P('v_writelane_b32 v8, s82, 15')
        P(f'v_lshrrev_b32 v9, 2, v{V_L16}')
        P(f'v_mov_b32 v10, s{S_OOB}')
        P('v_cmp_gt_u32 vcc, 64, v9')
        P('v_cndmask_b32 v9, v10, v9, vcc')
        P('s_lshl_b32 s20, s2, 3')
        P(f's_add_u32 s20, s20, s{S_WAVE}')
        P('s_lshl_b32 s20, s20, 6')
        P(f's_add_u32 s20, s20, {TS_OFF}')
        P(f'buffer_store_dword v8, v9, s[{S_WS}:{S_WS+3}], s20 offen')
    P('L_k1_done:')
    P('s_endpgm')
    q, n = P.finish()
    if cfg.get('verbose'):
        from collections import Counter
        print('k1 nops', n, Counter(x.kind for x in q))
    return kernel_text(name, q, 256, 96)
```

```python
from dsl import *
from layout import *

HALF = 73728
LDS_BYTES = 2 * HALF
NR = 18

V_TR = 0
V_L16 = 5
V_LEFT = 6
V_T = 8
V_P = 16
V_X = 26
V_WF = 32
V_ACC = 48
V_AF = 120
NA = 16
V_AL = 248
def ACC(lt, mt): return V_ACC + (lt * 2 + mt) * 4
def AF(s, mt): return V_AF + ((s % NA) * 2 + mt) * 4

S_WD = 4; S_WS = 8; S_WO = 12; S_XS = 16; S_OUT = 20
S_T = 24
S_LB = 32
S_A = 33
S_WDB = 35
S_WQB = 36
S_WOB = 37
S_OOB = 38; S_WAVE = 39
S_EXS = 40
S_EXR = 43
S_E8S = 44; S_E8R = 45
S_O = 46
S_O8 = 47
S_AL = 48
S_CNT = 49
S_Q = 50; S_KH = 51; S_R = 52
S_TS = 56

class Ctx: pass

def gen_k2(name='k2_kernel', cfg=None):
    cfg = cfg or {}
    D = cfg.get('dist', 3)
    PRE = cfg.get('pre', 2)
    LOOK = cfg.get('look', 5)
    TS = cfg.get('ts', False)
    P = Prog(); st = Ctx(); st.tmp = 0; st.nts = 0
    def stmp():
        st.tmp = (st.tmp + 1) % 8
        return S_T + st.tmp
    def ts(L):
        if TS:
            L.append(I(f's_memtime s[{S_TS + 2*st.nts}:{S_TS + 2*st.nts + 1}]')); st.nts += 1
            L.append(I('s_waitcnt lgkmcnt(0)'))
    if TS:
        P('s_memrealtime s[88:89]')
        P(f's_memtime s[{S_TS}:{S_TS+1}]'); st.nts = 1
    P('s_cmp_ge_u32 s2, 256')
    P('s_cbranch_scc1 L_k2_done')
    P(f's_load_dwordx2 s[{S_WD}:{S_WD+1}], s[0:1], 48')
    P(f's_load_dwordx2 s[{S_WS}:{S_WS+1}], s[0:1], 72')
    P(f's_load_dwordx2 s[{S_WO}:{S_WO+1}], s[0:1], 16')
    P(f's_load_dwordx2 s[{S_XS}:{S_XS+1}], s[0:1], 0')
    P(f's_load_dwordx2 s[{S_OUT}:{S_OUT+1}], s[0:1], 56')
    P('v_lshrrev_b32 v8, 6, v0')
    P('v_and_b32 v9, 63, v0')
    P(f'v_readfirstlane_b32 s{S_WAVE}, v8')
    P(f's_and_b32 s{S_Q}, s2, 3')
    P('s_lshr_b32 s24, s2, 2')
    P('s_and_b32 s24, s24, 1')
    P('s_lshr_b32 s25, s2, 3')
    P('s_lshr_b32 s26, s25, 2')
    P('s_lshl_b32 s24, s24, 3')
    P('s_add_u32 s53, s24, s26')
    P('s_and_b32 s54, s25, 3')
    P(f's_and_b32 s{S_R}, s{S_WAVE}, 3')
    P(f's_lshr_b32 s{S_KH}, s{S_WAVE}, 2')
    P(f's_mov_b32 s{S_OOB}, {OOB}')
    P(f'v_lshlrev_b32 v{V_L16}, 4, v9')
    P(f's_lshl_b32 s24, s{S_Q}, 3')
    P(f's_lshl_b32 s25, s{S_KH}, 2')
    P('s_add_u32 s55, s24, s25')
    P('s_lshl_b32 s24, s53, 3')
    P(f's_lshl_b32 s25, s{S_R}, 1')
    P('s_add_u32 s24, s24, s25')
    P(f's_add_u32 s3, s24, s{S_KH}')
    P('s_xor_b32 s26, s3, 1')
    P('s_mul_i32 s27, s55, 5120')
    P(f's_add_u32 s27, s27, {A2_OFF}')
    P(f's_mul_i32 s{S_A}, s3, {A2_MT}')
    P(f's_add_u32 s{S_A}, s{S_A}, s27')
    P(f's_mul_i32 s{S_A+1}, s26, {A2_MT}')
    P(f's_add_u32 s{S_A+1}, s{S_A+1}, s27')
    P(f's_mul_i32 s{S_LB}, s{S_KH}, {HALF}')
    P(f's_lshl_b32 s24, s{S_R}, 10')
    P(f's_add_u32 s{S_LB}, s{S_LB}, s24')
    P('s_mul_i32 s24, s54, 288')
    P(f's_mul_i32 s{S_WDB}, s55, {128*1152}')
    P(f's_add_u32 s{S_WDB}, s{S_WDB}, s24')
    P(f's_mul_i32 s{S_WQB}, s55, {16*1152}')
    P(f's_add_u32 s{S_WQB}, s{S_WQB}, s24')
    P(f's_add_u32 s{S_WQB}, s{S_WQB}, {4096*1152}')
    P(f's_mul_i32 s{S_WOB}, s55, {18*1152}')
    P(f's_add_u32 s{S_WOB}, s{S_WOB}, s24')
    P(f's_lshl_b32 s24, s{S_R}, 6')
    P('v_add_u32 v10, s24, v9')
    P('s_mov_b32 s25, 58255')
    P('s_movk_i32 s26, 864')
    def pat(n):
        return [I(f'v_add_u32 v11, {256*n}, v10'), I('v_mul_u32_u24 v12, s25, v11'), I('v_lshrrev_b32 v12, 20, v12'),
                I('v_lshlrev_b32 v11, 4, v11'), I(f'v_mad_u32_u24 v{V_P+n}, v12, s26, v11')]
    for n in range(9): P.ext(pat(n))
    P('s_waitcnt lgkmcnt(0)')
    P(f's_mov_b32 s{S_WD+2}, 5308416\ns_mov_b32 s{S_WD+3}, 0x20000')
    P(f's_mov_b32 s{S_WS+2}, {WS_SIZE}\ns_mov_b32 s{S_WS+3}, 0x20000')
    P(f's_mov_b32 s{S_WO+2}, 663552\ns_mov_b32 s{S_WO+3}, 0x20000')
    P(f's_mov_b32 s{S_XS+2}, 2359296\ns_mov_b32 s{S_XS+3}, 0x20000')
    P(f's_mov_b32 s{S_OUT+2}, 2359296\ns_mov_b32 s{S_OUT+3}, 0x20000')

    NRD = 47
    def dma(n):
        pos = (n % NR) * 4096
        L = [I(f's_add_u32 m0, s{S_LB}, {pos}')]
        if n < 36:
            t = stmp()
            L.append(I(f's_add_u32 s{t}, s{S_WDB}, {(n // 9) * 128 * 1152}'))
            L.append(I(f'buffer_load_dwordx4 v{V_P + n % 9}, s[{S_WD}:{S_WD+3}], s{t} offen lds', tok=f'rn{n}'))
        elif n < 41:
            L.append(I(f'buffer_load_dwordx4 v{V_P + n - 36}, s[{S_WD}:{S_WD+3}], s{S_WQB} offen lds', tok=f'rn{n}'))
        else:
            L.append(I(f'buffer_load_dwordx4 v{V_P + n - 41}, s[{S_WO}:{S_WO+3}], s{S_WOB} offen lds', tok=f'rn{n}'))
        return L
    def ablk(s):
        return (s // 4) * 5 + (s % 4) if s < 16 else (s - 16) * 5 + 4
    def aload(s, mt):
        t = stmp(); off = ablk(s) * 1024
        return [I(f's_add_u32 s{t}, s{S_A + mt}, {off & ~4095}'),
                I(f'buffer_load_dwordx4 {vr(AF(s, mt), 4)}, v{V_L16}, s[{S_WS}:{S_WS+3}], s{t} offen offset:{off & 4095}')]
    def step_addrs(s):
        if s < 16:
            a = ((s // 4) % 2) * 36864 + (s % 4) * 9216
            return a, a + 4608
        jj = s - 16
        return jj * 16 * 288, 5 * 4096 + jj * 18 * 288
    def step_rounds(s):
        if s < 16:
            b0 = (s % 4) * 9
            return {(s // 4) * 9 + b // 4 for b in range(b0, b0 + 9)}
        if s < 20:
            jj = s - 16
            r = {36 + b // 4096 for b in (jj * 4608, jj * 4608 + 4607)}
            r |= {41 + x for x in range(jj * 5184 // 4096, (jj * 5184 + 4607) // 4096 + 1)}
            return r
        return set(range(41, 47))
    stream = []
    seen = set()
    for s in range(21):
        for n in sorted(step_rounds(s)):
            if n not in seen:
                seen.add(n); stream.append((s, 'r', n))
        if s < 20:
            stream.append((s, 'a', (s, 0))); stream.append((s, 'a', (s, 1)))
    def memop(e):
        return dma(e[2]) if e[1] == 'r' else aload(*e[2])
    k = 0
    while stream[k][0] < PRE:
        P.ext(memop(stream[k])); k += 1
    stream = stream[k:]

    P('v_lshrrev_b32 v10, 2, v9')
    P('v_mul_u32_u24 v10, 288, v10')
    P('v_and_b32 v11, 3, v9')
    P('v_lshl_add_u32 v10, v11, 3, v10')
    P(f's_mul_i32 s24, s{S_KH}, {HALF}')
    P('v_add_u32 v10, s24, v10')
    for p in range(4):
        P(f's_add_u32 s25, s{S_Q}, {p}')
        P('s_and_b32 s25, s25, 3')
        P('s_lshl_b32 s25, s25, 6')
        P(f'v_add_u32 v{V_TR+p}, s25, v10')
    P(f'v_add_u32 v{V_TR+4}, 0x100, v10')
    P('v_lshrrev_b32 v12, 3, v9')
    P('v_and_b32 v12, 3, v12')
    P('v_mul_u32_u24 v12, 18, v12')
    P('v_bfe_u32 v13, v9, 2, 1')
    P('v_add3_u32 v12, v12, v13, 16')
    P('v_mul_u32_u24 v12, 288, v12')
    P('v_lshl_add_u32 v12, v11, 3, v12')
    P('v_lshrrev_b32 v13, 5, v9')
    P(f's_mov_b32 s25, {HALF}')
    P('v_mul_lo_u32 v13, v13, s25')
    P('v_add_u32 v12, v12, v13')
    P('v_add_u32 v12, 20480, v12')
    P(f'v_sub_u32 v{V_LEFT}, v12, v10')
    P('s_lshl_b32 s24, s53, 2')
    P('s_add_u32 s24, s24, s54')
    for p in range(4):
        P(f's_add_u32 s25, s{S_Q}, {p}')
        P('s_and_b32 s25, s25, 3')
        P('s_lshl_b32 s26, s24, 2')
        P('s_add_u32 s25, s25, s26')
        P('s_lshl_b32 s25, s25, 3')
        P(f's_add_u32 s25, s25, s{S_WAVE}')
        P('s_mul_i32 s25, s25, 3072')
        if p == 0: P(f's_add_u32 s{S_EXR}, s25, {EX_OFF}')
        else: P(f's_add_u32 s{S_EXS+p-1}, s25, {EX_OFF + (3-p)*1024}')
    P('s_lshl_b32 s25, s24, 3')
    P(f's_add_u32 s25, s25, s{S_WAVE}')
    P('s_lshl_b32 s25, s25, 11')
    P(f's_add_u32 s25, s25, {EX8_OFF}')
    P(f's_sub_u32 s26, s{S_Q}, s{S_R}')
    P('s_sub_u32 s26, s26, 1')
    P('s_and_b32 s26, s26, 3')
    P('s_lshl_b32 s26, s26, 9')
    P('s_add_u32 s26, s26, s25')
    P('s_mul_i32 s27, s3, 18432')
    P('s_mul_i32 s28, s54, 288')
    P('s_add_u32 s27, s27, s28')
    P(f's_lshl_b32 s28, s{S_Q}, 6')
    P(f's_add_u32 s{S_O}, s27, s28')
    P('s_add_u32 s27, s27, 256')
    P(f's_cmp_eq_u32 s{S_Q}, s{S_R}')
    P(f's_cselect_b32 s{S_E8S}, s{S_OOB}, s26')
    P(f's_cselect_b32 s{S_E8R}, s25, s{S_OOB}')
    P(f's_cselect_b32 s{S_O8}, s27, s{S_OOB}')
    P('s_lshl_b32 s25, s3, 2')
    P(f's_add_u32 s25, s25, s{S_Q}')
    P('s_lshl_b32 s25, s25, 9')
    P(f's_add_u32 s{S_AL}, s25, {A2L_OFF}')
    P('v_and_b32 v12, 15, v9')
    P('v_mul_u32_u24 v12, 1152, v12')
    P('v_lshrrev_b32 v13, 4, v9')
    P('v_lshl_add_u32 v7, v13, 3, v12')
    P('v_lshlrev_b32 v25, 3, v9')

    base = {V_TR + p: 0 for p in range(5)}
    def lds_addr(reg, lo, hi):
        fx = []
        if not (lo - base[reg] >= 0 and hi - base[reg] <= 65535):
            nb = 0 if hi <= 65535 else 36864
            fx.append(I(f'v_add_u32 v{reg}, {(nb - base[reg]) & 0xffffffff:#x}, v{reg}'))
            base[reg] = nb
        return fx
    frags = [(s, lt) for s in range(21) for lt in range(9)]
    NF = len(frags)
    def reads(i):
        s, lt = frags[i]; w = V_WF + (i % 4) * 4
        reg = V_TR + (lt >> 1); co = (lt & 1) * 32
        if s < 20:
            a0, a1 = step_addrs(s)
            fx = lds_addr(reg, a0, a1 + 64)
            return (fx + [I(f'ds_read_b64_tr_b16 {vr(w, 2)}, v{reg} offset:{a0 - base[reg] + co}', tok=f'rd{i}a')],
                    [I(f'ds_read_b64_tr_b16 {vr(w + 2, 2)}, v{reg} offset:{a1 - base[reg] + co}', tok=f'rd{i}b')])
        fx = []
        if lt % 2 == 0:
            assert base[reg] == 0
            fx = [I(f'v_add_u32 v{reg}, v{reg}, v{V_LEFT}')]
        return (fx + [I(f'ds_read_b64_tr_b16 {vr(w, 2)}, v{reg} offset:{co}', tok=f'rd{i}a')], [])
    def rtoks(i):
        return [f'rd{i}a', f'rd{i}b'] if frags[i][0] < 20 else [f'rd{i}a']
    def mfmas(i):
        s, lt = frags[i]; w = V_WF + (i % 4) * 4
        if s == 20:
            d = ACC(lt, 0)
            return [I(f'v_mfma_f32_16x16x16_bf16 {vr(d,4)}, {vr(w,2)}, {vr(V_AL,2)}, {vr(d,4)}')]
        L = []
        for mt in range(2):
            d = ACC(lt, mt); c = '0' if s == 0 else vr(d, 4)
            L.append(I(f'v_mfma_f32_16x16x32_bf16 {vr(d,4)}, {vr(w,4)}, {vr(AF(s,mt),4)}, {c}'))
        return L

    bars = cfg.get('bars', list(range(21)))
    last_use = {}
    for s in range(21):
        for n in step_rounds(s): last_use[n] = s
    def release(n):
        return min(b for b in bars if b > last_use[n])
    need = {}
    for bi, b in enumerate(bars):
        lo = b * 9 + (D if bi else 0)
        hi = bars[bi + 1] * 9 + D if bi + 1 < len(bars) else NF
        r = set()
        for i in range(lo, min(hi, NF)): r |= step_rounds(frags[i][0])
        need[b] = sorted(r)
    extra = [[I(f'buffer_load_dwordx2 {vr(V_AL,2)}, v25, s[{S_WS}:{S_WS+3}], s{S_AL} offen')],
             [I(f'buffer_load_dwordx2 {vr(V_X,2)}, v7, s[{S_XS}:{S_XS+3}], s{S_O} offen')],
             [I(f'buffer_load_dwordx2 {vr(V_X+2,2)}, v7, s[{S_XS}:{S_XS+3}], s{S_O} offen offset:32')],
             [I(f'buffer_load_dwordx2 {vr(V_X+4,2)}, v7, s[{S_XS}:{S_XS+3}], s{S_O8} offen')]]
    MEMSP = cfg.get('memsp', 3)
    issued = set(n for n in range(NRD) if ('r', n) not in [(e[1], e[2]) for e in stream])
    st.gap = 0; st.last = -99
    def nextmem(s):
        st.gap += 1
        if st.gap - st.last < MEMSP: return []
        if stream:
            e = stream[0]
            if e[0] > s + LOOK: return []
            if e[1] == 'r' and e[2] >= NR and release(e[2] - NR) > s: return []
            if e[1] == 'a' and e[2][0] - NA >= s: return []
            stream.pop(0); st.last = st.gap
            if e[1] == 'r': issued.add(e[2])
            return memop(e)
        if extra:
            st.last = st.gap
            return extra.pop(0)
        return []
    def gap(m, shadow, rd, s):
        g = nextmem(s)
        return ([m] + shadow + [x for x in rd if x.kind == 'valu'] + [x for x in g if x.kind == 'salu']
                + [x for x in rd if x.kind != 'valu'] + [x for x in g if x.kind != 'salu'])
    M = []
    def bwait(b):
        for n in need[b]: assert n in issued, (n, b)
        return Wait([f'rn{n}' for n in need[b]])
    for i in range(NF):
        s, lt = frags[i]
        if i == 0:
            M += [bwait(0), I('s_barrier')]; ts(M)
            for k in range(D):
                r0, r1 = reads(k); M += r0 + r1
        ms = mfmas(i)
        r0, r1 = reads(i + D) if i + D < NF else ([], [])
        shadow = [Wait(rtoks(i + 1))] if i + 1 < NF else []
        if len(ms) == 2:
            M += gap(ms[0], [], r0, s)
            if lt == 8 and (s + 1) in bars:
                M.append(bwait(s + 1))
                M += gap(ms[1], [I('s_barrier')] + shadow, r1, s)
            else:
                M += gap(ms[1], shadow, r1, s)
        else:
            M += gap(ms[0], shadow, r0 + r1, s)
        if lt == 8 and s in (4, 9, 14): ts(M)
    assert not stream and not extra
    ts(M)
    P.ext(M)
    P('s_barrier')
    P(f's_mul_i32 s24, s{S_WAVE}, 9216')
    P(f'v_add_u32 v8, s24, v{V_L16}')
    P(f's_xor_b32 s25, s{S_WAVE}, 4')
    P('s_mul_i32 s25, s25, 9216')
    P(f'v_add_u32 v9, s25, v{V_L16}')
    order = [2, 3, 4, 5, 6, 7, 8, 0, 1]
    for lt in order:
        P(f'ds_write_b128 v8, {vr(ACC(lt,1),4)} offset:{lt*1024}')
    P.wait(lg0=True)
    P('s_barrier')
    for lt in order:
        P(f'ds_read_b128 {vr(ACC(lt,1),4)}, v9 offset:{lt*1024}')
    def addt(lt):
        for r in range(4): P(f'v_add_f32 v{ACC(lt,0)+r}, v{ACC(lt,0)+r}, v{ACC(lt,1)+r}')
    for p in range(1, 4):
        a, b = ACC(2*p, 0), ACC(2*p+1, 0); q = V_AF + 4 * p
        addt(2*p); addt(2*p+1)
        P(f'v_cvt_pk_bf16_f32 v{q}, v{a}, v{a+1}'); P(f'v_cvt_pk_bf16_f32 v{q+1}, v{a+2}, v{a+3}')
        P(f'v_cvt_pk_bf16_f32 v{q+2}, v{b}, v{b+1}'); P(f'v_cvt_pk_bf16_f32 v{q+3}, v{b+2}, v{b+3}')
        for r in range(4): P(f'v_min_u32 v{q+r}, -2, v{q+r}')
        P(f'buffer_store_dwordx4 {vr(q,4)}, v{V_L16}, s[{S_WS}:{S_WS+3}], s{S_EXS+p-1} offen sc1')
    addt(8)
    a = ACC(8, 0); q = V_AF
    P(f'v_cvt_pk_bf16_f32 v{q}, v{a}, v{a+1}'); P(f'v_cvt_pk_bf16_f32 v{q+1}, v{a+2}, v{a+3}')
    for r in range(2): P(f'v_min_u32 v{q+r}, -2, v{q+r}')
    P(f'buffer_store_dwordx2 {vr(q,2)}, v25, s[{S_WS}:{S_WS+3}], s{S_E8S} offen sc1')
    addt(0); addt(1)
    P('s_mov_b32 s24, 0xffff0000')
    def addpk(dst, src):
        P(f'v_lshlrev_b32 v8, 16, v{src}'); P(f'v_and_b32 v9, s24, v{src}')
        P(f'v_lshlrev_b32 v10, 16, v{src+1}'); P(f'v_and_b32 v11, s24, v{src+1}')
        for r in range(4): P(f'v_add_f32 v{dst+r}, v{dst+r}, v{8+r}')
    addpk(ACC(0,0), V_X); addpk(ACC(1,0), V_X+2); addpk(ACC(8,0), V_X+4)
    if TS:
        L = []; ts(L); P.ext(L)
    R = V_AF + 32
    R8 = R + 12
    P(f's_mov_b32 s{S_CNT}, {cfg.get("spin", 200000)}')
    P('L_k2_retry:')
    for p in range(3):
        P(f'buffer_load_dwordx4 {vr(R+4*p,4)}, v{V_L16}, s[{S_WS}:{S_WS+3}], s{S_EXR} offen offset:{1024*p} sc1')
    for p in range(3):
        P(f'buffer_load_dwordx2 {vr(R8+2*p,2)}, v25, s[{S_WS}:{S_WS+3}], s{S_E8R} offen offset:{512*p} sc1')
    P(f'v_max3_u32 v8, v{R}, v{R+1}, v{R+2}')
    P(f'v_max3_u32 v9, v{R+3}, v{R+4}, v{R+5}')
    for k in range(6, 18, 4):
        P(f'v_max3_u32 v8, v8, v{R+k}, v{R+k+1}')
        P(f'v_max3_u32 v9, v9, v{R+k+2}, v{R+k+3}')
    P('v_max_u32 v8, v8, v9')
    P('v_cmp_eq_u32 vcc, -1, v8')
    P(f's_sub_u32 s{S_CNT}, s{S_CNT}, 1')
    P(f's_cmp_eq_u32 s{S_CNT}, 0')
    P('s_cbranch_scc1 L_k2_ok')
    P('s_nop 2')
    P('s_cbranch_vccnz L_k2_retry')
    P('L_k2_ok:')
    for p in range(3):
        addpk(ACC(0,0), R+4*p); addpk(ACC(1,0), R+4*p+2); addpk(ACC(8,0), R8+2*p)
    for lt, so, off in ((0, S_O, 0), (1, S_O, 32), (8, S_O8, 0)):
        a = ACC(lt, 0)
        P(f'v_cvt_pk_bf16_f32 v{a}, v{a}, v{a+1}'); P(f'v_cvt_pk_bf16_f32 v{a+1}, v{a+2}, v{a+3}')
        P(f'buffer_store_dwordx2 {vr(a,2)}, v7, s[{S_OUT}:{S_OUT+3}], s{so} offen offset:{off}')
    if TS:
        L = []; ts(L); P.ext(L)
        P('s_waitcnt vmcnt(0)')
        L = []; ts(L); P.ext(L)
        P('s_memrealtime s[90:91]\ns_waitcnt lgkmcnt(0)')
        for k in range(st.nts): P(f'v_writelane_b32 v8, s{S_TS + 2*k}, {k}')
        P(f'v_writelane_b32 v8, s{S_CNT}, 13')
        P('v_writelane_b32 v8, s88, 14')
        P('v_writelane_b32 v8, s90, 15')
        P(f'v_lshrrev_b32 v9, 2, v{V_L16}')
        P(f'v_mov_b32 v10, s{S_OOB}')
        P('v_cmp_gt_u32 vcc, 64, v9')
        P('v_cndmask_b32 v9, v10, v9, vcc')
        P('s_lshl_b32 s24, s2, 3')
        P(f's_add_u32 s24, s24, s{S_WAVE}')
        P('s_lshl_b32 s24, s24, 6')
        P(f's_add_u32 s24, s24, {TS_OFF + 0x20000}')
        P(f'buffer_store_dword v8, v9, s[{S_WS}:{S_WS+3}], s24 offen')
    P('L_k2_done:')
    P('s_endpgm')
    q, n = P.finish()
    if cfg.get('verbose'):
        from collections import Counter
        print('k2 nops', n, Counter(x.kind for x in q))
    return kernel_text(name, q, 256, 96)
```

```python
OOB = 0x40000000
XN_OFF = 0
WX_OFF = 0x240000
WX_J = 108 * 1024
A2_OFF = 0x600000
A2_MT = 160 * 1024
A2L_OFF = 0x1A00000
KVP_OFF = 0x1A40000
EX_OFF = 0x1B00000
EX8_OFF = 0x2300000
TS_OFF = 0x2400000
WS_SIZE = 0x2500000
```

```python
import sys
sys.path.insert(0, 'work')
from dsl import *
from layout import *
import k0

HEADER = """; Kernarg layout for this problem (80 bytes, ptrs only, base s[0:1]):
"""
def build(kernels, path):
    s = HEADER
    for (name, grid, block, lds, body, kd) in kernels:
        s += f"; @launch kernel={name} grid=({grid},1,1) block=({block},1,1) lds={lds}\n"
    s += '.amdgcn_target "amdgcn-amd-amdhsa--gfx950"\n.text\n'
    for k in kernels: s += k[4]
    s += '.section .rodata,"a"\n'
    for k in kernels: s += '.p2align 6\n' + k[5]
    open(path, 'w').write(s)

if __name__ == '__main__':
    which = sys.argv[1] if len(sys.argv) > 1 else 'all'
    out = sys.argv[2] if len(sys.argv) > 2 else 'out.s'
    import json
    CFG1 = json.loads(sys.argv[3]) if len(sys.argv) > 3 else {}
    CFG2 = json.loads(sys.argv[4]) if len(sys.argv) > 4 else {}
    ks = []
    b, kd = k0.gen_k0(); ks.append(('k0_kernel', 256, 512, 0, b, kd))
    if which in ('01', 'all'):
        import k1
        b, kd = k1.gen_k1(cfg=CFG1); ks.append(('k1_kernel', 256, 512, k1.LDS_BYTES, b, kd))
    if which in ('all',):
        import k2
        b, kd = k2.gen_k2(cfg=CFG2); ks.append(('k2_kernel', 256, 512, k2.LDS_BYTES, b, kd))
    build(ks, out)
```

```python
import sys, json
sys.path.insert(0, 'work')
from dsl import *

OOB = 0x40000000
XN_OFF = 0
WX_OFF = 0x240000; WX_J = 112 * 1024
A2_OFF = 0x600000; A2_MT = 160 * 1024
A2L_OFF = 0x1A00000
KVP_OFF = 0x1A40000
EX_OFF = 0x1B00000
EX8_OFF = 0x2200000
W2_OFF = 0x2300000; W2_S = 192 * 1024
FL_OFF = 0x2B00000
F2_OFF = 0x2900000
F3_OFF = 0x2910000
IB_OFF = 0x2920000
TS_OFF = 0x2A00000
WS_SIZE = 0x2C00000

LDS_BYTES = 163840
NSLOT = 19; SLOT = 8192
MISC = NSLOT * SLOT

IT_L0 = 0; IT_R = 18; IT_X = 21; IT_SCR = 35; IT_L1 = 36; IT_W2 = 54; NW2 = 48
NITEM = IT_W2 + NW2
SCR = (IT_SCR % NSLOT) * SLOT
KVS = SCR

V_TR = 0; V_L8 = 3; V_L16 = 4; V_LB = 5; V_DMA = 6; V_K0 = 7; V_T = 8; V_WF = 16; V_ACC = 32; V_XF = 112
def XF(ks, mt): return V_XF + (ks * 2 + mt) * 4
def ACC(u, nt, mt): return V_ACC + 16 * u + (nt * 2 + mt) * 4

S_RED = 3
S_W = 4; S_WS = 8; S_R = 12; S_XS = 16; S_OUT = 20
S_T = 24
S_W1K = 32; S_A2 = 33; S_K1 = 34; S_L2E = 35; S_EPS = 36; S_W256 = 37; S_OOB = 38; S_WAVE = 39
S_M4 = 40; S_G2 = 42; S_L0M = 44; S_KVST = 46; S_KVLD = 47; S_A2L = 48; S_EX = 49; S_E8R = 50
S_FH = 51; S_FL = 52; S_CNT = 53; S_NON = 54; S_F2S = 55; S_F2P = 56; S_F3S = 57; S_F3P = 58
S_XN = 59; S_WX = 60; S_RSRC = 61; S_RDST = 62; S_WXD = 68
S_A = 62; S_W2 = 64; S_EXS = 65; S_E8S = 68; S_O = 69; S_O8 = 59; S_AL = 60
S_WO = 70; S_G1 = 72; S_G0 = 76; S_WD = 80; S_RB = 82; S_J = 83
S_TS = 86

K0C = -2.0 * 0.7978845608028654 * 1.4426950408889634
K1C = K0C * 0.044715

class Ctx: pass
class Ev:
    def __init__(self, name, bar=False): self.name = name; self.bar = bar
class Delay:
    def __init__(self, n): self.n = n

def dpp_reduce(P, v):
    for sh in (1, 2, 4, 8):
        P(f'v_add_f32_dpp v{v}, v{v}, v{v} row_shr:{sh} row_mask:0xf bank_mask:0xf bound_ctrl:0')
    P(f'v_add_f32_dpp v{v}, v{v}, v{v} row_bcast:15 row_mask:0xa bank_mask:0xf')
    P(f'v_add_f32_dpp v{v}, v{v}, v{v} row_bcast:31 row_mask:0xc bank_mask:0xf')

def gen(name, cfg):
    D = cfg.get('dist', 3)
    TS = cfg.get('ts', False)
    SPIN = cfg.get('spin', 100000)
    MINGAP = cfg.get('mingap', 6)
    WS = f's[{S_WS}:{S_WS+3}]'
    P = Prog(); st = Ctx(); st.tmp = 0; st.ft = 0; st.nts = 0; st.lab = 0; st.tsn = []
    def stmp():
        st.tmp = (st.tmp + 1) % 6; return S_T + st.tmp
    def ftmp():
        st.ft = (st.ft + 1) % 2; return S_T + 6 + st.ft
    def ts(nm):
        if not TS: return []
        if 'tsat' in cfg and nm not in ('start', 's1start', 'end') and not nm.startswith('@'): return []
        k = st.nts; st.nts += 1; st.tsn.append(nm)
        assert k < 15
        return [I('s_memtime s[84:85]'), I('s_waitcnt lgkmcnt(0)'), I(f's_mov_b32 s{S_TS+k}, s84')]
    def retry_group(loads, check, w0only=False):
        st.lab += 1; l = st.lab
        g = check()
        if w0only: g += [I(f's_cmp_lg_u32 s{S_WAVE}, 0'), I(f's_cbranch_scc1 L_ok{l}')]
        g += [I('s_nop 4'), I(f's_cbranch_vccz L_ok{l}'), I(f's_mov_b32 s{S_CNT}, {SPIN}'), I(f'L_rt{l}:'), I('s_sleep 4')]
        g += raw(loads() + [I('s_waitcnt vmcnt(0)')] + check())
        g += [I(f's_sub_u32 s{S_CNT}, s{S_CNT}, 1'), I(f's_cmp_eq_u32 s{S_CNT}, 0'), I(f's_cbranch_scc1 L_ok{l}'), I('s_nop 4'),
              I(f's_cbranch_vccnz L_rt{l}'), I(f'L_ok{l}:')]
        return g

    if TS:
        P('s_memrealtime s[84:85]\ns_waitcnt lgkmcnt(0)\ns_mov_b32 s101, s84')
    P.ext(ts('start'))
    P('s_cmp_ge_u32 s2, 256')
    P('s_cbranch_scc1 L_done')
    P(f's_load_dwordx2 s[{S_XS}:{S_XS+1}], s[0:1], 0')
    P(f's_load_dwordx4 s[{S_G0}:{S_G0+3}], s[0:1], 32')
    P(f's_load_dwordx2 s[{S_R}:{S_R+1}], s[0:1], 64')
    P(f's_load_dwordx2 s[{S_WS}:{S_WS+1}], s[0:1], 72')
    P(f's_load_dwordx2 s[{S_G1}:{S_G1+1}], s[0:1], 8')
    P(f's_load_dwordx2 s[{S_WO}:{S_WO+1}], s[0:1], 16')
    P(f's_load_dwordx2 s[{S_WD}:{S_WD+1}], s[0:1], 48')
    P(f's_load_dwordx2 s[{S_OUT}:{S_OUT+1}], s[0:1], 56')
    P('s_memrealtime s[28:29]')
    B = V_ACC
    VL = B; VOOB = B + 1; VG = B + 2; VSW = B + 3; VSR = B + 4; VNON = B + 5; VXA = B + 12; VXR = B + 14
    P(f'v_lshrrev_b32 v8, 6, v0')
    P(f'v_and_b32 v{VL}, 63, v0')
    P(f'v_readfirstlane_b32 s{S_WAVE}, v8')
    P('s_lshr_b32 s24, s2, 3')
    P('s_and_b32 s25, s2, 4')
    P('s_lshr_b32 s26, s24, 3')
    P(f's_add_u32 s{S_RB}, s25, s26')
    P('s_and_b32 s26, s2, 3')
    P('s_lshl_b32 s26, s26, 3')
    P('s_and_b32 s27, s24, 7')
    P(f's_add_u32 s{S_J}, s26, s27')
    P(f's_mov_b32 s{S_OOB}, {OOB}')
    P(f'v_lshrrev_b32 v{VG}, 4, v{VL}')
    P(f'v_lshrrev_b32 v{VSR}, 3, v{VL}')
    P(f'v_and_b32 v9, 7, v{VL}')
    P(f'v_xor_b32 v9, v9, v{VG}')
    P('v_lshlrev_b32 v9, 4, v9')
    P(f'v_mul_u32_u24 v11, 1152, v{VSR}')
    P(f'v_add_u32 v{VXA}, v9, v11')
    P('v_xor_b32 v9, 64, v9')
    P(f'v_add_u32 v11, {8*1152}, v11')
    P(f'v_add_u32 v{VXA+1}, v9, v11')
    P(f's_lshl_b32 s24, s{S_RB}, 3')
    P(f's_add_u32 s24, s24, s{S_WAVE}')
    P(f's_mul_i32 s{S_XN}, s24, {32*1152}')
    XST = 7 * SLOT
    P(f's_mul_i32 s{S_XN+2}, s{S_WAVE}, 12288')
    P(f's_add_u32 s{S_XN+2}, s{S_XN+2}, {XST}')
    P(f's_mov_b32 s{S_XS+2}, 2359296\ns_mov_b32 s{S_XS+3}, 0x20000')
    P(f's_mov_b32 s{S_WS+2}, {WS_SIZE}\ns_mov_b32 s{S_WS+3}, 0x20000')
    P(f's_mov_b32 s{S_R+2}, 256\ns_mov_b32 s{S_R+3}, 0x20000')
    P(f's_mov_b32 s{S_OUT+2}, 2359296\ns_mov_b32 s{S_OUT+3}, 0x20000')
    P(f's_mov_b32 s{S_W+2}, 5308416\ns_mov_b32 s{S_W+3}, 0x20000')
    P(f's_mov_b32 s{S_L0M}, 1\ns_mov_b32 s{S_L0M+1}, 0')
    P(f's_lshl_b32 s{S_W1K}, s{S_WAVE}, 10')
    P(f'v_mov_b32 v{VOOB}, s{S_OOB}')
    P(f'v_lshlrev_b32 v{V_L16}, 4, v{VL}')
    VTC = B + 26
    P(f'v_cmp_gt_u32 vcc, 8, v{VL}')
    P(f'v_cndmask_b32 v{VTC}, v{VOOB}, v{V_L16}, vcc')
    P(f's_lshl_b32 s26, s{S_RB}, 5')
    P(f's_add_u32 s26, s26, s{S_J}')
    P('s_lshl_b32 s26, s26, 3')
    P(f's_add_u32 s26, s26, s{S_WAVE}')
    P('s_mul_i32 s26, s26, 1152')
    VONE = B + 9
    P(f'v_mov_b32 v{VONE}, 0x3f803f80')
    SA = B + 16
    for k in range(8): P(f'v_mov_b32 v{SA+k}, 0')
    P(f'v_and_b32 v9, 15, v{VL}')
    P('v_lshrrev_b32 v11, 1, v9')
    P(f'v_xor_b32 v11, v11, v{VG}')
    P('v_lshlrev_b32 v11, 4, v11')
    P('v_lshl_add_u32 v11, v9, 7, v11')
    P(f'v_add_u32 v{VXR}, s{S_XN+2}, v11')
    P(f'v_xor_b32 v{VXR+1}, 64, v{VXR}')
    Pmain = P
    P = Prog()
    P(f'v_lshrrev_b32 v12, 1, v{VL}')
    P(f'v_xor_b32 v12, v12, v{VG}')
    P('v_and_b32 v12, 3, v12')
    P(f'v_and_b32 v13, 1, v{VL}')
    P('v_lshlrev_b32 v13, 4, v13')
    P(f'v_lshl_add_u32 v{VSW}, v12, 5, v13')
    P(f'v_and_b32 v11, 3, v{VSR}')
    P(f'v_lshrrev_b32 v12, 2, v{VSR}')
    P('v_lshl_add_u32 v11, v12, 3, v11')
    P(f's_and_b32 s30, s{S_WAVE}, 1')
    P('s_lshl_b32 s30, s30, 2')
    P(f's_and_b32 s27, s{S_WAVE}, 2')
    P('s_lshl_b32 s27, s27, 3')
    P('s_add_u32 s30, s30, s27')
    P('v_add_u32 v11, s30, v11')
    P('v_mul_u32_u24 v11, 9216, v11')
    P(f's_lshl_b32 s30, s{S_J}, 8')
    P(f'v_add3_u32 v{V_DMA}, v11, v{VSW}, s30')
    P(f'v_cndmask_b32 v10, v{VOOB}, 0, s[{S_L0M}:{S_L0M+1}]')
    Pmain('s_waitcnt lgkmcnt(0)')
    def xdma(p):
        L_, mt = p >> 1, p & 1
        R_ = []
        for h in range(2):
            R_ += [I(f's_add_u32 m0, s{S_XN+2}, {(p % 6) * 2048 + h * 1024}')]
            if h == 0: R_ += [I(f's_add_u32 s{S_CNT}, s{S_XN}, {mt * 18432 + L_ * 128}')]
            else: R_ += [I('s_nop 0')]
            R_ += [I(f'buffer_load_dwordx4 v{VXA+h}, s[{S_XS}:{S_XS+3}], s{S_CNT} offen lds', tok=f'x{p}_{h}')]
        return R_
    if cfg.get('xtouch', 1):
        Pmain(f'buffer_load_dwordx4 {vr(B+32,4)}, v{V_L16}, s[{S_XS}:{S_XS+3}], s26 offen')
        Pmain(f'buffer_load_dwordx4 {vr(B+36,4)}, v{VTC}, s[{S_XS}:{S_XS+3}], s26 offen offset:1024')
    for p in range(6): Pmain.ext(xdma(p))
    P('s_lshl_b32 s28, s28, 3')
    P('s_or_b32 s28, s28, 0x80000000')
    P('v_mov_b32 v11, s28')
    P(f's_or_b32 s25, s2, s{S_WAVE}')
    P('s_cmp_eq_u32 s25, 0')
    P(f's_cselect_b32 s29, 0, s{S_OOB}')
    P(f'buffer_store_dword v11, v10, s[{S_R}:{S_R+3}], s29 offen sc1')
    P(f's_cmp_ge_u32 s{S_WAVE}, 4')
    P(f's_cselect_b32 s{S_W}, s{S_G0+2}, s{S_G0}')
    P(f's_cselect_b32 s{S_W+1}, s{S_G0+3}, s{S_G0+1}')

    def wtouch(line, va=None, vd=None):
        va = va or VTC; vd = vd or VTC + 1
        return [I(f's_and_b32 s{S_CNT}, s{S_RB}, 3'), I(f's_lshl_b32 s{S_CNT}, s{S_CNT}, 2'), I(f's_and_b32 s31, s{S_WAVE}, 3'),
                I(f's_add_u32 s{S_CNT}, s{S_CNT}, s31'), I(f's_mul_i32 s{S_CNT}, s{S_CNT}, {36*9216}'), I(f's_lshl_b32 s31, s{S_J}, 8'),
                I(f's_add_u32 s{S_CNT}, s{S_CNT}, s31'),
                I(f'v_min_u32 v{va}, {35*16}, v{V_L16}'), I(f'v_mul_u32_u24 v{va}, 576, v{va}'),
                I(f'buffer_load_dword v{vd}, v{va}, s[{S_W}:{S_W+3}], s{S_CNT} offen offset:{line*128}')]
    U4_ = lambda k: V_ACC + 64 + 4 * k
    def dma(n):
        slot = (n % NSLOT) * SLOT
        t = stmp()
        L = [I(f's_add_u32 m0, s{S_W1K}, {slot}')]
        if n < IT_R or IT_L1 <= n < IT_W2:
            if n < IT_R: so = n * 32 * 9216
            else: so = ((n - IT_L1) % 9) * 64 * 9216 + 128 + ((n - IT_L1) // 9) * 64
            L.append(I(f's_mov_b32 s{t}, {so}'))
            L.append(I(f'buffer_load_dwordx4 v{V_DMA}, s[{S_W}:{S_W+3}], s{t} offen lds', tok=f'it{n}'))
        elif n < IT_X:
            L.append(I(f's_add_u32 s{t}, s{S_RSRC}, {(n - IT_R) * 128}'))
            L.append(I(f'buffer_load_dwordx4 v15, s[{S_R}:{S_R+3}], s{t} offen lds', tok=f'it{n}'))
        elif n < IT_SCR:
            L.append(I(f's_add_u32 s{t}, s{S_WX}, {(n - IT_X) * 8192}'))
            L.append(I(f'buffer_load_dwordx4 v{V_L16}, {WS}, s{t} offen sc1 lds', tok=f'it{n}'))
        else:
            L.append(I(f's_add_u32 s{t}, s{S_W2}, {(n - IT_W2) * 4096}'))
            L.append(I(f'buffer_load_dwordx4 v{V_L16}, {WS}, s{t} offen sc1 lds', tok=f'it{n}'))
        return L
    VN2 = B + 7; VT3 = B + 8; VGA = B + 24; VRW = B + 10
    P(f'v_and_b32 v12, 3, v{VL}')
    P(f'v_lshlrev_b32 v{VN2}, 4, v12')
    P('v_cmp_gt_u32 vcc, 2, v12')
    P(f'v_cndmask_b32 v{VN2}, v{VOOB}, v{VN2}, vcc')
    P(f'v_mov_b32 v{VT3}, {2*(1152+16)}')
    P('v_cmp_eq_u32 vcc, 1, v12')
    P(f'v_cndmask_b32 v{VT3}, v{VT3}, 32, vcc')
    P(f'v_mov_b32 v9, {2*(576+16)}')
    P('v_cmp_eq_u32 vcc, 2, v12')
    P(f'v_cndmask_b32 v{VT3}, v{VT3}, v9, vcc')
    P('v_cmp_eq_u32 vcc, 3, v12')
    P(f'v_cndmask_b32 v{VT3}, v{VT3}, v{VOOB}, vcc')
    P(f'v_bfe_u32 v9, v{VL}, 2, 2')
    P(f'v_lshl_add_u32 v{VRW}, v{VG}, 3, v9')
    GSO = [S_RDST, S_RDST + 1]; GST = S_RDST + 2
    for i in range(2):
        P(f's_lshl_b32 s24, s{S_RB}, 3')
        P(f's_add_u32 s24, s24, s{S_WAVE}')
        if i: P('s_add_u32 s24, s24, 64')
        P('s_sub_u32 s25, s24, 36')
        P('s_lshr_b32 s26, s25, 2')
        P('s_mul_i32 s26, s26, 110592')
        P('s_and_b32 s25, s25, 3')
        P(f's_mul_i32 s27, s{S_J}, 36')
        P('s_add_u32 s26, s26, s27')
        P('s_mul_i32 s27, s25, 1152')
        P('s_cmp_eq_u32 s25, 3')
        P('s_cselect_b32 s27, 0, s27')
        P(f's_cselect_b64 s[{S_G2}:{S_G2+1}], -1, 0')
        P(f's_add_u32 s{GSO[i]}, s26, s27')
        if i == 0:
            P('s_lshr_b32 s26, s24, 1')
            P('s_mul_i32 s26, s26, 294912')
            P(f's_lshl_b32 s27, s{S_J}, 5')
            P('s_add_u32 s26, s26, s27')
            P('s_add_u32 s26, s26, 8192')
            P('s_bitcmp1_b32 s24, 0')
            P(f's_cselect_b32 s{S_G0}, s{S_G0+2}, s{S_G0}')
            P(f's_cselect_b32 s{S_G0+1}, s{S_G0+3}, s{S_G0+1}')
            P('s_mov_b32 s28, 1990656\ns_mov_b32 s29, 3456')
            P('s_cmp_lt_u32 s24, 36')
            P(f's_cselect_b32 s{S_G0}, s{S_G0}, s{S_G1}')
            P(f's_cselect_b32 s{S_G0+1}, s{S_G0+1}, s{S_G1+1}')
            P(f's_cselect_b32 s{S_G0+2}, 5308416, s28')
            P(f's_mov_b32 s{S_G0+3}, 0x20000')
            P(f's_cselect_b32 s{GSO[0]}, s26, s{GSO[0]}')
            P(f's_cselect_b32 s{GST}, 9216, s29')
            P(f's_cselect_b64 s[{S_G2}:{S_G2+1}], 0, s[{S_G2}:{S_G2+1}]')
            P(f's_mov_b32 s27, s{GST}')
            P(f's_lshl_b32 s{GST}, s{GST}, 2')
        else:
            P(f's_mov_b32 s27, 3456')
        P(f's_and_b32 s{S_RDST+3+i}, s{S_G2}, 1')
        P(f's_add_u32 s{S_RDST+3+i}, s{S_RDST+3+i}, 3')
        P(f'v_cndmask_b32 v12, v{VN2}, v{VT3}, s[{S_G2}:{S_G2+1}]')
        P(f'v_mul_lo_u32 v11, v{VRW}, s27')
        P(f'v_add_u32 v{VGA+i}, v12, v11')
        P(f's_mul_i32 s26, s{S_J}, {WX_J}')
        P('s_lshl_b32 s27, s24, 10')
        P('s_add_u32 s26, s26, s27')
        P(f's_add_u32 s26, s26, {WX_OFF}')
        P('s_cmp_lt_u32 s24, 108')
        P(f's_cselect_b32 s{S_WXD+i}, s26, s{S_OOB}')
        if i:
            P(f's_cselect_b32 s{S_G1+2}, 1990656, 0')
            P(f's_mov_b32 s{S_G1+3}, 0x20000')
    P(f'v_mul_u32_u24 v15, 1152, v{VSR}')
    P(f'v_add_u32 v15, v15, v{VSW}')
    P(f'v_lshrrev_b32 v8, 5, v{VL}')
    P('v_lshlrev_b32 v8, 11, v8')
    P(f'v_bfe_u32 v11, v{VL}, 2, 3')
    P('v_lshl_add_u32 v8, v11, 7, v8')
    P(f'v_bfe_u32 v11, v{VL}, 3, 2')
    P('v_lshl_add_u32 v8, v11, 5, v8')
    P(f'v_and_b32 v11, 3, v{VL}')
    P(f'v_lshl_add_u32 v{V_TR}, v11, 3, v8')
    for T in range(1, 4): P(f'v_xor_b32 v{V_TR+T}, {T*32}, v{V_TR}')
    P(f"""
            s_mul_i32 s{S_WX}, s{S_J}, {WX_J}
            s_add_u32 s{S_WX}, s{S_WX}, s{S_W1K}
            s_add_u32 s{S_WX}, s{S_WX}, {WX_OFF}
            s_lshl_b32 s24, s{S_J}, 10
            s_add_u32 s24, s24, {F2_OFF}
            s_lshl_b32 s25, s{S_RB}, 7
            s_add_u32 s25, s25, s24
            s_lshl_b32 s26, s2, 7
            s_add_u32 s26, s26, {F3_OFF}
            s_mov_b32 s27, {F3_OFF}
            s_cmp_eq_u32 s{S_WAVE}, 0
            s_cselect_b32 s{S_F2S}, s25, s{S_OOB}
            s_cselect_b32 s{S_F2P}, s24, s{S_OOB}
            s_cselect_b32 s{S_F3S}, s26, s{S_OOB}
            s_cselect_b32 s{S_F3P}, s27, s{S_OOB}
            s_lshl_b32 s24, s2, 3
            s_add_u32 s24, s24, s{S_WAVE}
            s_mul_i32 s24, s24, 3072
            s_add_u32 s{S_EX}, s24, {EX_OFF}
            s_lshr_b32 s24, s2, 2
            s_lshl_b32 s24, s24, 3
            s_add_u32 s24, s24, s{S_WAVE}
            s_lshl_b32 s24, s24, 11
            s_add_u32 s24, s24, {EX8_OFF}
            s_xor_b32 s25, s2, s{S_WAVE}
            s_and_b32 s25, s25, 3
            s_cmp_eq_u32 s25, 0
            s_cselect_b32 s{S_E8R}, s24, s{S_OOB}
            s_lshl_b32 s24, s{S_RB}, 4
            s_lshl_b32 s25, s{S_WAVE}, 1
            s_add_u32 s24, s24, s25
            s_mul_i32 s{S_A2}, s24, {A2_MT}
            s_mul_i32 s25, s{S_J}, 5120
            s_add_u32 s{S_A2}, s{S_A2}, s25
            s_add_u32 s{S_A2}, s{S_A2}, {A2_OFF}
            s_lshl_b32 s{S_A2L}, s24, 11
            s_lshl_b32 s25, s{S_J}, 7
            s_add_u32 s{S_A2L}, s{S_A2L}, s25
            s_add_u32 s{S_A2L}, s{S_A2L}, {A2L_OFF}
            s_lshl_b32 s{S_W256}, s{S_WAVE}, 8
            s_lshl_b32 s24, s{S_J}, 3
            s_add_u32 s25, s24, s{S_RB}
            s_mul_i32 s25, s25, 3072
            s_lshl_b32 s26, s{S_WAVE}, 9
            s_add_u32 s26, s26, {KVP_OFF}
            s_add_u32 s25, s25, s26
            s_mul_i32 s24, s24, 3072
            s_add_u32 s24, s24, s26
            s_cmp_lt_u32 s{S_WAVE}, 6
            s_cselect_b32 s{S_KVST}, s25, s{S_OOB}
            s_cselect_b32 s25, 0, 1024
            s_sub_u32 s{S_KVLD}, s24, s25
            s_add_u32 s24, s{S_W256}, {SCR}
            s_add_u32 s25, s{S_W256}, {MISC - 1024}
            s_cmp_lt_u32 s{S_WAVE}, 4
            s_cselect_b32 s{S_RED}, s24, s25
            s_lshl_b32 s24, s{S_RB}, 2
            s_and_b32 s25, s2, 3
            s_add_u32 s24, s24, s25
            s_lshl_b32 s24, s24, 13
            s_add_u32 s24, s24, {FL_OFF}
            s_add_u32 s{S_FL}, s24, s{S_W1K}
            s_and_b32 s25, s{S_J}, 7
            s_lshl_b32 s25, s25, 7
            s_add_u32 s{S_FL}, s{S_FL}, s25
            s_and_b32 s25, s2, 32
            s_lshl_b32 s25, s25, 7
            s_add_u32 s24, s24, s25
            s_and_b32 s25, s{S_WAVE}, 3
            s_lshl_b32 s25, s25, 10
            s_add_u32 s{S_FH}, s24, s25
            s_mov_b32 s{S_K1}, {f2u(K1C):#x}
            s_mov_b32 s{S_L2E}, {f2u(1.4426950408889634):#x}
            s_mov_b32 s{S_M4}, 0x00040004
            s_mov_b32 s{S_M4+1}, 0x00040004
        """)
    P('v_mov_b32 v10, 0')
    Q = P.p; P = Pmain
    chunks = []; per = (len(Q) + 9) // 10; cur = []
    for k, x in enumerate(Q):
        cur.append(x)
        tail = [y.op for y in Q[k+1:k+4]]
        if len(cur) >= per and not any(o.startswith('s_cselect') for o in tail) and not x.op.startswith('s_cmp') and not x.op.startswith('s_bitcmp'):
            chunks.append(cur); cur = []
    chunks.append(cur)
    assert len(chunks) <= 12
    P.ext(chunks.pop(0))
    P.ext(ts('setup'))
    NPRE = cfg.get('npre', 7)
    nload = lambda: [I(f'buffer_load_dword v{VNON}, v10, s[{S_R}:{S_R+3}], 0 offen sc1')]
    def dots(p):
        L_, mt = p >> 1, p & 1
        for d in range(2):
            for r in range(4):
                x = XF(2 * L_ + d, mt) + r
                P(f'v_dot2_f32_bf16 v{SA+4*mt+(r&1)}, v{x}, v{VONE}, v{SA+4*mt+(r&1)}')
                P(f'v_dot2_f32_bf16 v{SA+4*mt+2+(r&1)}, v{x}, v{x}, v{SA+4*mt+2+(r&1)}')
    nl0 = 0
    for p in range(18):
        L_, mt = p >> 1, p & 1
        for d in range(2):
            P(f'ds_read_b128 {vr(XF(2*L_+d, mt),4)}, v{VXR+d} offset:{(p % 6) * 2048}', tok=f'xr{p}_{d}', waits=[f'x{p}_0', f'x{p}_1'])
        if cfg.get('tsx') and p in (0, 3, 6, 9, 12, 15, 17): P.ext(ts(f'p{p}'))
        if p: dots(p - 1)
        if p + 6 < 18:
            P.wait([f'xr{p}_0', f'xr{p}_1']); P.ext(xdma(p + 6))
            if chunks: P.ext(chunks.pop(0))
            if p == cfg.get('l0touch', 99): P.ext(wtouch(0))
        elif p < 14 and cfg.get('nog'):
            if p == 13: P.ext(nload())
        elif p < 14:
            i = p - 12; S = S_G0 if i == 0 else S_G1
            P.wait([f'xr{p}_0', f'xr{p}_1'])
            for hh in range(2):
                P(f's_add_u32 m0, s{S_XN+2}, {i * 2048 + hh * 1024}')
                P(f's_add_u32 s{S_CNT}, s{S_RDST+i}, ' + (('0' if hh == 0 else f's{S_RDST+2}') if i == 0 else str(hh * 4 * 3456)))
                P(f'buffer_load_dwordx4 v{VGA+i}, s[{S}:{S+3}], s{S_CNT} offen lds', tok=f'g{i}_{hh}')
            if p == 13: P.ext(nload())
        else:
            for _ in range(2):
                if nl0 < NPRE: P.ext(dma(nl0)); nl0 += 1
    dots(17)
    P.ext(ts('stats'))
    P('s_nop 2')
    for k in range(4): P(f'v_add_f32 v{SA+2*k}, v{SA+2*k}, v{SA+2*k+1}')
    for op in ('v_permlane32_swap_b32', 'v_permlane16_swap_b32'):
        for k in range(4): P(f'v_mov_b32 v{SA+2*k+1}, v{SA+2*k}')
        for k in range(4): P(f'{op} v{SA+2*k}, v{SA+2*k+1}')
        for k in range(4): P(f'v_add_f32 v{SA+2*k}, v{SA+2*k}, v{SA+2*k+1}')
    P(f's_mov_b32 s30, {f2u(1.0/576.0)}')
    P(f's_mov_b32 s{S_EPS}, 0xffff0000')
    VR = [V_LB, V_K0]; VC_ = [13, 14]
    MK = S_EPS
    two = lambda f: [P(f(mt)) for mt in range(2)]
    two(lambda mt: f'v_mul_f32 v{SA+4*mt}, s30, v{SA+4*mt}')
    two(lambda mt: f'v_mul_f32 v{SA+4*mt+2}, s30, v{SA+4*mt+2}')
    two(lambda mt: f'v_fma_f32 v{SA+4*mt+2}, -v{SA+4*mt}, v{SA+4*mt}, v{SA+4*mt+2}')
    two(lambda mt: f'v_max_f32 v{SA+4*mt+2}, 0, v{SA+4*mt+2}')
    two(lambda mt: f'v_cvt_pk_bf16_f32 v{SA+4*mt+1}, v{SA+4*mt}, v{SA+4*mt+2}')
    two(lambda mt: f'v_lshlrev_b32 v{SA+4*mt}, 16, v{SA+4*mt+1}')
    two(lambda mt: f'v_and_b32 v{SA+4*mt+2}, s{MK}, v{SA+4*mt+1}')
    two(lambda mt: f'v_add_f32 v{SA+4*mt+2}, {f2u(1e-5):#x}, v{SA+4*mt+2}')
    two(lambda mt: f'v_cvt_pk_bf16_f32 v{SA+4*mt+2}, v{SA+4*mt+2}, v{SA+4*mt+2}')
    two(lambda mt: f'v_and_b32 v{SA+4*mt+2}, s{MK}, v{SA+4*mt+2}')
    two(lambda mt: f'v_sqrt_f32 v{SA+4*mt+2}, v{SA+4*mt+2}')
    two(lambda mt: f'v_cvt_pk_bf16_f32 v{SA+4*mt+2}, v{SA+4*mt+2}, v{SA+4*mt+2}')
    two(lambda mt: f'v_and_b32 v{SA+4*mt+2}, s{MK}, v{SA+4*mt+2}')
    two(lambda mt: f'v_rcp_f32 v{VR[mt]}, v{SA+4*mt+2}')
    two(lambda mt: f'v_mul_f32 v{VC_[mt]}, -v{SA+4*mt}, v{VR[mt]}')
    def norm(ks):
        L = []
        for mt in range(2):
            for r0 in (0, 2):
                x0 = XF(ks, mt) + r0; x1 = x0 + 1
                L += [I(f'v_lshlrev_b32 v8, 16, v{x0}'), I(f'v_and_b32 v9, s{MK}, v{x0}'), I(f'v_lshlrev_b32 v10, 16, v{x1}'), I(f'v_and_b32 v11, s{MK}, v{x1}')]
                L += [I(f'v_fma_f32 v{8+k}, v{8+k}, v{VR[mt]}, v{VC_[mt]}') for k in range(4)]
                L += [I(f'v_cvt_pk_bf16_f32 v{x0}, v8, v9'), I(f'v_cvt_pk_bf16_f32 v{x1}, v10, v11')]
        return L
    ncheck = lambda: [I(f'v_cmp_eq_u32 vcc, 0, v{VNON}')]
    P.ext(retry_group(nload, ncheck))
    P(f'v_readfirstlane_b32 s{S_NON}, v{VNON}')
    if cfg.get('tsx'): P.ext(ts('nonce'))
    NB = cfg.get('nb', 6)
    for ks in range(NB - 1): P.ext(norm(ks))
    if cfg.get('tsx'): P.ext(ts('norm'))
    a_ = B + 28; q_ = [U4_(0), U4_(1)]
    for i in range(2):
        P(f'v_bfe_u32 v{a_+i}, v{V_L16}, 4, 2'); P(f'v_lshlrev_b32 v{a_+i}, s{S_RDST+3+i}, v{a_+i}')
    P(f'v_and_b32 v{a_+2}, 0x3c0, v{V_L16}'); P(f'v_add_u32 v{a_+2}, s{S_XN+2}, v{a_+2}')
    for i in range(2): P(f'v_add_u32 v{a_+i}, v{a_+i}, v{a_+2}')
    for i in range(2):
        for hh in range(2):
            P(f'ds_read_b64_tr_b16 {vr(q_[i]+2*hh,2)}, v{a_+i} offset:{i * 2048 + hh * 1024}', waits=[f'g{i}_{hh}'] if not cfg.get('nog') else [])
    P.ext(norm(NB - 1))
    for i in range(2):
        P(f'buffer_store_dwordx4 {vr(q_[i],4)}, v{V_L16}, {WS}, s{S_WXD+i} offen sc1', tok=f'wx{i}')

    base = {V_TR: 0, V_TR+1: 0, V_TR+2: 0, V_TR+3: 0, V_LB: 0}
    def lds_addr(reg, addr, span):
        fx = []
        if not (0 <= addr - base[reg] and addr + span - base[reg] <= 65535):
            nb = min((addr // SLOT) * SLOT, LDS_BYTES - 65536)
            fx.append(I(f'v_add_u32 v{reg}, {(nb - base[reg]) & 0xffffffff:#x}, v{reg}'))
            base[reg] = nb
        return fx, addr - base[reg]
    U = lambda u: [V_ACC + 16 * u + 4 * k for k in range(4)]
    xq = [V_XF + 4 * k for k in range(36)]
    acc1 = U(0) + U(2) + U(3) + [xq[34], xq[35]]
    def ACC2(lt, mt):
        if lt >= 2: return acc1[(lt - 2) * 2 + mt]
        return acc1[(lt * 2 + mt) * 2 + 1]
    aq = xq[:34] + U(1) + U(4)[:2]
    def AF(sp, mt): return aq[sp * 2 + mt]
    V_AL = U(4)[2]
    VSP = U(4)[3]

    frags = []; steps = []
    def add_step(nm, fl):
        for f in fl:
            f['step'] = len(steps); frags.append(f)
        steps.append(nm)
    def Lf(line, ks, tiles):
        fl = []
        for (T, u) in tiles:
            for mat in range(2):
                mf_ = [(ACC(u, mat, mt), XF(ks, mt), False, ks == 0) for mt in range(2)]
                if line == 0: fl.append(dict(item=IT_L0 + ks, kind='tr', reg=V_TR + T, off=mat * 4096, mf=mf_))
                else: fl.append(dict(item=IT_L1 + (T >> 1) * 9 + (ks >> 1), kind='tr', reg=V_TR + (T & 1), off=mat * 4096 + (ks & 1) * 2048, h=1, mf=mf_))
        return fl
    for ks in range(18): add_step(('S1', ks), Lf(0, ks, [(0, 0), (1, 1), (2, 2), (3, 3)]))
    for ks in range(18):
        add_step(('S2', ks), [dict(item=IT_X + ((2*ks+mat) >> 3), kind='b', off=((2*ks+mat) & 7) * 1024,
                                   mf=[(ACC(4, mat, mt), XF(ks, mt), False, ks == 0) for mt in range(2)]) for mat in range(2)])
    for ks in range(18):
        add_step(('S3', ks), [dict(item=IT_X + ((36+4*ks+T) >> 3), kind='b', off=((36+4*ks+T) & 7) * 1024,
                                   mf=[(ACC(T >> 1, T & 1, mt), XF(ks, mt), T != 0, ks == 0) for mt in range(2)]) for T in range(4)])
    K3 = cfg.get('s3split', 8)
    for ks in range(K3): add_step(('S4', ks), Lf(1, ks, [(0, 2), (1, 3)]))
    for ks in range(K3, 18): add_step(('S4a', ks), Lf(1, ks, [(0, 2)]))
    for ks in range(K3, 18): add_step(('S4b', ks), Lf(1, ks, [(1, 3)]))
    K4 = cfg.get('s4split', 8)
    for ks in range(K4): add_step(('S4c', ks), Lf(1, ks, [(2, 4), (3, 1)]))
    for ks in range(K4, 18): add_step(('S4d', ks), Lf(1, ks, [(2, 4)]))
    for ks in range(K4, 18): add_step(('S4e', ks), Lf(1, ks, [(3, 1)]))
    def P2f(sp, lts, blk0):
        fl = []
        for k, lt in enumerate(lts):
            blk = blk0 + k
            mf = [(ACC2(lt, mt), AF(sp, mt), False, sp == 0) for mt in range(2)] if sp < 20 else [(ACC2(lt, 0), V_AL, False, False)]
            fl.append(dict(item=IT_W2 + (blk >> 2), kind='b2', off=(blk & 3) * 1024, mf=mf))
        return fl
    for sp in range(21): add_step(('P1', sp), P2f(sp, range(2, 9), sp * 7))
    for sp in range(21): add_step(('P2', sp), P2f(sp, range(0, 2), 148 + sp * 2))
    NF = len(frags)
    SO = {s: i for i, s in enumerate(steps)}
    first_frag = {}
    for i, f in enumerate(frags): first_frag.setdefault(f['step'], i)
    st.khadd = False; st.hinit = False
    events = {}; pending = {}
    def reads(i):
        f = frags[i]; w = V_WF + (i % 4) * 4
        slot = (f['item'] % NSLOT) * SLOT
        if f['kind'] == 'tr':
            if f.get('h') and not st.hinit:
                assert 'trh' in events, 'half-line address regs not ready'
                st.hinit = True; base[V_TR] = 0; base[V_TR + 1] = 0
            fx, off = lds_addr(f['reg'], slot + f['off'], 2048)
            return (fx + [I(f'ds_read_b64_tr_b16 {vr(w, 2)}, v{f["reg"]} offset:{off}', tok=f'rd{i}a')],
                    [I(f'ds_read_b64_tr_b16 {vr(w + 2, 2)}, v{f["reg"]} offset:{off + 1024}', tok=f'rd{i}b')])
        assert 'lbinit' in events
        pre = []
        if f['kind'] == 'b2' and not st.khadd:
            st.khadd = True
            pre = [I(f's_and_b32 s{S_RSRC}, s{S_W1K}, 0x1000'), I(f'v_add_u32 v{V_LB}, s{S_RSRC}, v{V_LB}')]
        fx, off = lds_addr(V_LB, slot + f['off'], 1024)
        return (pre + fx + [I(f'ds_read_b128 {vr(w, 4)}, v{V_LB} offset:{off}', tok=f'rd{i}a')], [])
    def rtoks(i):
        return [f'rd{i}a', f'rd{i}b'] if frags[i]['kind'] == 'tr' else [f'rd{i}a']
    def mfmas(i):
        w = V_WF + (i % 4) * 4; L = []
        for (d, x, swap, zero) in frags[i]['mf']:
            a, b = (x, w) if swap else (w, x)
            L.append(I(f'v_mfma_f32_16x16x32_bf16 {vr(d,4)}, {vr(a,4)}, {vr(b,4)}, {"0" if zero else vr(d,4)}'))
        return L

    HST = cfg.get('hst', 'sc1')
    def gelu_quad(g, u, dst):
        t = [V_T + r for r in range(4)]
        L = []
        for r in range(4): L.append(I(f'v_mul_f32 v{t[r]}, v{g+r}, v{g+r}'))
        for r in range(4): L.append(I(f'v_fma_f32 v{t[r]}, v{t[r]}, s{S_K1}, v{V_K0}'))
        for r in range(4): L.append(I(f'v_mul_f32 v{t[r]}, v{g+r}, v{t[r]}'))
        for r in range(4): L.append(I(f'v_exp_f32 v{t[r]}, v{t[r]}'))
        for r in range(4): L.append(I(f'v_mul_f32 v{u+r}, v{g+r}, v{u+r}'))
        for r in range(4): L.append(I(f'v_add_f32 v{t[r]}, 1.0, v{t[r]}'))
        for r in range(4): L.append(I(f'v_rcp_f32 v{t[r]}, v{t[r]}'))
        for r in range(4): L.append(I(f'v_mul_f32 v{u+r}, v{u+r}, v{t[r]}'))
        L.append(I(f'v_cvt_pk_bf16_f32 v{dst}, v{u}, v{u+1}'))
        L.append(I(f'v_cvt_pk_bf16_f32 v{dst+1}, v{u+2}, v{u+3}'))
        return L
    def hstore(reg, n, mt, t, extra=0):
        s = ftmp(); off = t * 1024 + extra
        op = 'buffer_store_dwordx4' if n == 4 else 'buffer_store_dwordx2'
        return [I(f's_add_u32 s{s}, s{S_A2}, {mt * A2_MT + (off & ~4095)}'),
                I(f'{op} {vr(reg, n)}, v{V_L16 if n == 4 else V_L8}, {WS}, s{s} offen offset:{off & 4095} {HST}', tok=f'h{t}_{mt}_{extra}')]
    def E_first(u):
        L = []
        for mt in range(2): L += gelu_quad(ACC(u, 0, mt), ACC(u, 1, mt), ACC(u, 0, mt))
        return L
    def E_second(u0, u1, t):
        L = []
        for mt in range(2):
            L += gelu_quad(ACC(u1, 0, mt), ACC(u1, 1, mt), ACC(u0, 0, mt) + 2)
            L += hstore(ACC(u0, 0, mt), 4, mt, t)
        return L
    def E_quarter(u):
        L = []
        for mt in range(2):
            L += gelu_quad(ACC(u, 0, mt), ACC(u, 1, mt), ACC(u, 0, mt))
            L += hstore(ACC(u, 0, mt), 2, mt, 4)
        return L
    def phi_quad(q):
        t = [V_T + r for r in range(4)]
        L = []
        for r in range(4): L.append(I(f'v_mul_f32 v{t[r]}, s{S_L2E}, v{q+r}'))
        for r in range(4): L.append(I(f'v_exp_f32 v{t[r]}, v{t[r]} clamp'))
        for r in range(4): L.append(I(f'v_max_f32 v{q+r}, s{S_EPS}, v{q+r}'))
        for r in range(4): L.append(I(f'v_add_f32 v{q+r}, v{q+r}, v{t[r]}'))
        return L
    def pack2(dst, q0, q1):
        return [I(f'v_cvt_pk_bf16_f32 v{dst}, v{q0}, v{q0+1}'), I(f'v_cvt_pk_bf16_f32 v{dst+1}, v{q0+2}, v{q0+3}'),
                I(f'v_cvt_pk_bf16_f32 v{dst+2}, v{q1}, v{q1+1}'), I(f'v_cvt_pk_bf16_f32 v{dst+3}, v{q1+2}, v{q1+3}')]
    T0 = [ACC(0, 0, 0), ACC(0, 0, 1)]; T1 = [ACC(0, 1, 0), ACC(0, 1, 1)]
    T2 = [ACC(1, 0, 0), ACC(1, 0, 1)]; T3 = [ACC(1, 1, 0), ACC(1, 1, 1)]
    VA, VB, VC, VD = V_T + 4, V_T + 5, V_T + 6, V_T + 7
    def mf(d, a, b): return I(f'v_mfma_f32_16x16x32_bf16 {vr(d,4)}, {vr(a,4)}, {vr(b,4)}, 0')
    S_PT = 72
    def sgroups(txt):
        L = []; cur = []
        lines = [l.strip() for l in txt.strip().split('\n') if l.strip()]
        k = 0
        while k < len(lines):
            if lines[k].startswith('s_cmp') or lines[k].startswith('s_bitcmp'):
                g = [I(lines[k])]; k += 1
                while k < len(lines) and lines[k].startswith('s_cselect'): g.append(I(lines[k])); k += 1
                L.append(g)
            else:
                L.append(I(lines[k])); k += 1
        return L
    def setflag(sreg, add, toks, VA=VA, VB=VB):
        t = ftmp()
        return [I(f'v_lshlrev_b32 v{VA}, 21, v{V_L16}'), I(f'v_and_b32 v{VA}, s{S_OOB}, v{VA}'),
                I(f'v_lshrrev_b32 v{VB}, 2, v{V_L16}'), I(f'v_or_b32 v{VA}, v{VA}, v{VB}'), I(f'v_mov_b32 v{VB}, s{S_NON}'),
                I(f's_add_u32 s{t}, s{sreg}, {add}'),
                I(f'buffer_store_dword v{VB}, v{VA}, {WS}, s{t} offen sc1', waits=toks)]
    def poll(sreg, add, quad, ev, w0, between, VA=VA, VB=VB):
        if not quad:
            addr = [I(f'v_bfe_u32 v{VA}, v{V_L16}, 4, 3'), I(f'v_lshlrev_b32 v{VA}, 7, v{VA}')]
            loads = lambda: [I(f'buffer_load_dword v{VB}, v{VA}, {WS}, s{S_PT} offen sc1')]
            check = lambda: [I(f'v_cmp_ne_u32 vcc, s{S_NON}, v{VB}')]
        else:
            ad = V_TR + 2
            addr = [I(f'v_lshlrev_b32 v{ad}, 5, v{V_L16}')]
            loads = lambda: [I(f'buffer_load_dword v{VA+r}, v{ad}, {WS}, s{S_PT} offen offset:{128*r} sc1') for r in range(4)]
            check = lambda: ([I(f'v_xor_b32 v{VA+r}, s{S_NON}, v{VA+r}') for r in range(4)] +
                             [I(f'v_or3_b32 v{VA}, v{VA}, v{VA+1}, v{VA+2}'), I(f'v_or_b32 v{VA}, v{VA}, v{VA+3}'), I(f'v_cmp_ne_u32 vcc, 0, v{VA}')])
        return addr + [I(f's_add_u32 s{S_PT}, s{sreg}, {add}')] + loads() + between + [retry_group(loads, check, w0), Ev(ev, w0)]
    def F_rsetup():
        C = S_XN; TA = S_G2; TB_ = S_G2 + 1
        L = sgroups(f"""
            s_lshl_b32 s73, s{S_RB}, 3
            s_and_b32 s74, s{S_J}, 7
            s_add_u32 s73, s73, s74
            s_lshl_b32 s73, s73, 1
            s_lshr_b32 s74, s{S_WAVE}, 2
            s_add_u32 s73, s73, s74
            s_mul_i32 s74, s73, 21846
            s_lshr_b32 s74, s74, 16
            s_mul_i32 s75, s74, 3
            s_sub_u32 s75, s73, s75
            s_mul_i32 s76, s74, 13108
            s_lshr_b32 s76, s76, 16
            s_mul_i32 s77, s76, 5
            s_sub_u32 s77, s74, s77
            s_and_b32 s78, s{S_J}, 0x18
            s_add_u32 s78, s78, s76
            s_and_b32 s79, s{S_WAVE}, 3
            s_lshl_b32 s73, s78, 7
            s_lshl_b32 s{TA}, s77, 5
            s_add_u32 s73, s73, s{TA}
            s_lshl_b32 s{TA}, s79, 3
            s_add_u32 s73, s73, s{TA}
            s_lshl_b32 s{TB_}, s78, 4
            s_add_u32 s{TB_}, s{TB_}, 4096
            s_add_u32 s{TB_}, s{TB_}, s{TA}
            s_mul_i32 s{C}, s78, 18
            s_add_u32 s{C}, s{C}, s{TA}
            s_sub_u32 s{C}, s{C}, 16
            s_cmp_lt_u32 s79, 2
            s_cselect_b32 s{TB_}, s{TB_}, s{C}
            s_cselect_b32 s{C}, 0, 1
            s_cmp_eq_u32 s77, 4
            s_cselect_b32 s73, s{TB_}, s73
            s_cselect_b32 s{C}, s{C}, 0
            s_and_b32 s{TB_}, s2, 3
            s_lshl_b32 s{TB_}, s{TB_}, 1
            s_add_u32 s{TB_}, s{TB_}, s79
            s_mul_i32 s{TB_}, s{TB_}, 72
            s_add_u32 s{TB_}, s{TB_}, 16
            s_cmp_ge_u32 s74, 40
            s_cselect_b32 s73, s{TB_}, s73
            s_cselect_b32 s{C}, 1, s{C}
            s_cselect_b32 s{TA}, 18432, 0
            s_cselect_b32 s{TB_}, s79, 0
            s_mul_i32 s73, s73, 1152
            s_mul_i32 s78, s75, 384
            s_add_u32 s{S_RSRC}, s73, s78
            s_mov_b32 s73, 663552
            s_cmp_eq_u32 s{C}, 1
            s_cselect_b32 s{S_R}, s{S_WO}, s{S_WD}
            s_cselect_b32 s{S_R+1}, s{S_WO+1}, s{S_WD+1}
            s_cselect_b32 s{S_R+2}, s73, 5308416
            s_cmp_ge_u32 s{TB_}, 2
            s_cselect_b32 s{S_R+2}, 0, s{S_R+2}
        """)
        L += [[I(f'v_lshrrev_b32 v{VA}, 8, v{V_L16}'), I(f'v_mad_u32_u24 v15, v{VA}, s{TA}, v15')], Ev('rsetup')]
        L += sgroups(f"""
            s_sub_u32 s73, 7, s77
            s_cmp_lt_u32 s77, 3
            s_cselect_b32 s73, s77, s73
            s_lshl_b32 s73, s73, 2
            s_and_b32 s77, s76, 3
            s_add_u32 s73, s73, s77
            s_lshr_b32 s76, s76, 2
            s_cmp_ge_u32 s74, 40
            s_cselect_b32 s73, 20, s73
            s_cselect_b32 s76, 0, s76
            s_mul_i32 s75, s75, 12
            s_add_u32 s75, s75, s79
        """)
        for i in range(3):
            L += sgroups(f"""
            s_add_u32 s77, s75, {4*i}
            s_mul_i32 s78, s77, 7282
            s_lshr_b32 s78, s78, 16
            s_mul_i32 s79, s78, 9
            s_sub_u32 s79, s77, s79
            s_lshr_b32 s77, s79, 1
            s_sub_u32 s77, s77, s2
            s_and_b32 s77, s77, 3
            s_lshl_b32 s77, s77, 1
            s_and_b32 s{TA}, s79, 1
            s_add_u32 s77, s77, s{TA}
            s_cmp_eq_u32 s79, 8
            s_cselect_b32 s77, 8, s77
            s_mul_i32 s79, s73, 7
            s_add_u32 s79, s79, s77
            s_sub_u32 s79, s79, 2
            s_lshl_b32 s{TA}, s73, 1
            s_add_u32 s{TA}, s{TA}, s77
            s_add_u32 s{TA}, s{TA}, 148
            s_cmp_ge_u32 s77, 2
            s_cselect_b32 s79, s79, s{TA}
            s_and_b32 s{TA}, s2, 3
            s_lshl_b32 s{TA}, s{TA}, 2
            s_add_u32 s{TA}, s{TA}, s78
            s_lshl_b32 s{TA}, s{TA}, 1
            s_add_u32 s{TA}, s{TA}, s76
            s_mul_i32 s{TA}, s{TA}, 192
            s_add_u32 s{TA}, s{TA}, s79
            s_lshl_b32 s{TA}, s{TA}, 10
            s_add_u32 s{TA}, s{TA}, {W2_OFF}
            s_add_u32 s{TB_}, s{TA}, {W2_S}
            s_cmp_lt_u32 s74, 41
            s_cselect_b32 s{S_RDST+i}, s{TA}, s{S_OOB}
            s_cmp_eq_u32 s74, 40
            s_cselect_b32 s{S_RDST+3+i}, s{TB_}, s{S_OOB}
            """)
        L += sgroups(f"s_mov_b32 s{S_G2}, 0\ns_mov_b32 s{S_G2+1}, 0x0000ffff")
        return L
    def F_setup2():
        C = S_WO
        L = sgroups(f"""
            s_lshr_b32 s74, s2, 3
            s_and_b32 s73, s74, 3
            s_lshr_b32 s74, s74, 2
            s_and_b32 s75, s2, 4
            s_lshl_b32 s75, s75, 1
            s_add_u32 s74, s74, s75
            s_and_b32 s75, s{S_WAVE}, 3
            s_lshr_b32 s76, s{S_WAVE}, 2
            s_and_b32 s78, s2, 3
            s_lshl_b32 s77, s74, 3
            s_lshl_b32 s79, s75, 1
            s_add_u32 s77, s77, s79
            s_add_u32 s77, s77, s76
            s_lshl_b32 s79, s78, 3
            s_lshl_b32 s{C}, s76, 2
            s_add_u32 s79, s79, s{C}
            s_mul_i32 s79, s79, 5120
            s_add_u32 s79, s79, {A2_OFF}
            s_mul_i32 s{S_A}, s77, {A2_MT}
            s_add_u32 s{S_A}, s{S_A}, s79
            s_xor_b32 s{C}, s77, 1
            s_mul_i32 s{S_A+1}, s{C}, {A2_MT}
            s_add_u32 s{S_A+1}, s{S_A+1}, s79
            s_lshl_b32 s79, s78, 2
            s_add_u32 s79, s79, s73
            s_lshl_b32 s79, s79, 1
            s_add_u32 s79, s79, s76
            s_mul_i32 s79, s79, {W2_S}
            s_lshl_b32 s{C}, s75, 10
            s_add_u32 s79, s79, s{C}
            s_add_u32 s{S_W2}, s79, {W2_OFF}
            s_lshr_b32 s79, s77, 1
            s_lshl_b32 s79, s79, 2
            s_add_u32 s79, s79, s78
            s_lshl_b32 s79, s79, 10
            s_lshl_b32 s{C}, s76, 6
            s_add_u32 s79, s79, s{C}
            s_add_u32 s{S_AL}, s79, {A2L_OFF}
            s_mul_i32 s79, s77, 18432
            s_mul_i32 s{C}, s73, 288
            s_add_u32 s79, s79, s{C}
            s_lshl_b32 s{C}, s78, 6
            s_add_u32 s{S_O}, s79, s{C}
            s_add_u32 s{S_O8}, s79, 256
        """)
        for p in range(1, 4):
            L += sgroups(f"""
            s_add_u32 s79, s78, {p}
            s_and_b32 s79, s79, 3
            s_sub_u32 s79, s79, s78
            s_mul_i32 s79, s79, 24576
            s_add_u32 s79, s79, s{S_EX}
            s_add_u32 s{S_EXS+p-1}, s79, {(3-p)*1024}
            """)
        L += sgroups(f"""
            s_lshr_b32 s79, s2, 2
            s_lshl_b32 s79, s79, 3
            s_add_u32 s79, s79, s{S_WAVE}
            s_lshl_b32 s79, s79, 11
            s_add_u32 s79, s79, {EX8_OFF}
            s_sub_u32 s{C}, s78, s75
            s_sub_u32 s{C}, s{C}, 1
            s_and_b32 s{C}, s{C}, 3
            s_lshl_b32 s{C}, s{C}, 9
            s_add_u32 s79, s79, s{C}
            s_cmp_eq_u32 s78, s75
            s_cselect_b32 s{S_E8S}, s{S_OOB}, s79
            s_cselect_b32 s{S_O8}, s{S_O8}, s{S_OOB}
        """)
        return L + [Ev('setup2')]
    def F_post1():
        return [I(f'v_mov_b32 v{V_K0}, {f2u(K0C):#x}'), I(f'v_mov_b32 v{V_LB}, v{V_L16}'), I(f's_mov_b32 s{S_EPS}, {f2u(1e-6):#x}'), Ev('lbinit')]
    def F_dmah():
        return [I(f'v_bfe_u32 v{VA}, v{V_L16}, 6, 2'), I(f'v_lshrrev_b32 v{VB}, 8, v{V_L16}'), I(f'v_lshl_add_u32 v{VA}, v{VB}, 3, v{VA}'),
                [I(f's_and_b32 s{S_CNT}, s{S_WAVE}, 1'), I(f's_lshl_b32 s{S_CNT}, s{S_CNT}, 2'), I(f's_and_b32 s30, s{S_WAVE}, 2'),
                 I('s_lshl_b32 s30, s30, 4'), I(f's_add_u32 s{S_CNT}, s{S_CNT}, s30')],
                I(f'v_add_u32 v{VA}, s{S_CNT}, v{VA}'), I(f'v_mul_u32_u24 v{VA}, 9216, v{VA}'),
                I(f'v_lshlrev_b32 v{VB}, 5, v{VB}'), I(f'v_xor_b32 v{VB}, v{VB}, v{V_L16}'), I(f'v_and_b32 v{VB}, 0x30, v{VB}'),
                I(f's_lshl_b32 s{S_CNT}, s{S_J}, 8'), I(f'v_add3_u32 v{V_DMA}, v{VA}, v{VB}, s{S_CNT}'), Ev('dmah')]
    def F_trh():
        return [I(f'v_and_b32 v{V_TR}, 0x3c0, v{V_L16}'), I(f'v_bfe_u32 v{V_TR+1}, v{V_L16}, 8, 1'), I(f'v_lshl_add_u32 v{V_TR}, v{V_TR+1}, 5, v{V_TR}'),
                I(f'v_bfe_u32 v{V_TR+1}, v{V_L16}, 4, 2'), I(f'v_lshl_add_u32 v{V_TR}, v{V_TR+1}, 3, v{V_TR}'), I(f'v_xor_b32 v{V_TR+1}, 32, v{V_TR}'),
                I(f'v_lshrrev_b32 v{V_L8}, 1, v{V_L16}'), Ev('trh')]
    def F_relayout():
        q0 = U(4); VA = q0[3]; VB = q0[3] + 1
        L = [I(f'v_and_b32 v{VA}, 0x3ff, v{V_TR}'), I(f'v_bfe_u32 v{VB}, v{V_L16}, 9, 1'), I(f'v_lshl_add_u32 v{VA}, v{VB}, 10, v{VA}'),
             I(f's_and_b32 s{S_CNT}, s{S_WAVE}, 3'), I(f's_lshl_b32 s{S_CNT}, s{S_CNT}, 5'), I(f'v_xor_b32 v{VA}, s{S_CNT}, v{VA}'),
             I(f's_and_b32 s{S_CNT}, s{S_W1K}, 0x1000'), I(f'v_add_u32 v{VA}, s{S_CNT}, v{VA}'),
             I(f'v_add_u32 v{VB}, {18*SLOT}, v{VA}')]
        for i in range(3):
            slot = ((IT_R + i) % NSLOT) * SLOT
            reg, off = (VB, 0) if slot > 60000 else (VA, slot)
            L.append(I(f'ds_read_b64_tr_b16 {vr(q0[i],2)}, v{reg} offset:{off}'))
            L.append(I(f'ds_read_b64_tr_b16 {vr(q0[i]+2,2)}, v{reg} offset:{off+2048}'))
        L.append(Delay(6))
        for i in range(3):
            L.append(I(f'buffer_store_dwordx4 {vr(q0[i],4)}, v{V_L16}, {WS}, s{S_RDST+i} offen sc1', tok=f'w2a{i}'))
            L.append(Delay(3))
            L.append(I(f'buffer_store_dwordx4 {vr(q0[i],4)}, v{V_L16}, {WS}, s{S_RDST+3+i} offen sc1', tok=f'w2b{i}'))
            L.append(Delay(3))
        L.append(Ev('rdone'))
        return L
    def F_poison():
        q = U(4)[2]
        L = [I(f'v_mov_b32 v{q+r}, -1') for r in range(4)]
        for p in range(3):
            L.append(I(f'buffer_store_dwordx4 {vr(q,4)}, v{V_L16}, {WS}, s{S_EX} offen offset:{1024*p} sc1', tok=f'po{p}')); L.append(Delay(4))
        for p in range(2):
            L.append(I(f'buffer_store_dwordx4 {vr(q,4)}, v{V_L16}, {WS}, s{S_E8R} offen offset:{1024*p} sc1', tok=f'po{3+p}')); L.append(Delay(4))
        return L
    def E_qkv():
        L = []
        L += pack2(T2[0], T2[0], T2[1])
        L += pack2(T2[1], T3[0], T3[1])
        L.append(I(f'v_mov_b32 v{VB}, 0x3f803f80'))
        L.append(I(f'v_add_u32 v{VA}, s{S_W1K}, v{V_L16}'))
        for r in range(4): L.append(I(f'v_cndmask_b32 v{T2[1]+r}, v{T2[1]+r}, v{VB}, s[{S_M4}:{S_M4+1}]'))
        L += phi_quad(T1[0]) + phi_quad(T1[1]) + pack2(T1[0], T1[0], T1[1])
        L += phi_quad(T3[0]) + phi_quad(T3[1]) + pack2(T3[0], T3[0], T3[1])
        L.append(I(f'v_add_u32 v{VA}, {SCR}, v{VA}'))
        L.append(I(f'v_bfe_u32 v{VC}, v{V_L16}, 6, 2'))
        L.append(mf(T1[1], T1[0], T2[0]))
        L.append(mf(T3[1], T1[0], T2[1]))
        L.append(I(f'ds_write_b128 v{VA}, {vr(T3[0],4)}'))
        L += phi_quad(T0[0])
        L.append(mf(T1[0], T3[0], T2[0]))
        L.append(I(f'v_cvt_pk_bf16_f32 v{T0[0]}, v{T0[0]}, v{T0[0]+1}'))
        L.append(I(f'v_cvt_pk_bf16_f32 v{T0[0]+1}, v{T0[0]+2}, v{T0[0]+3}'))
        L.append(mf(T2[0], T3[0], T2[1]))
        L.append(I(f'v_lshlrev_b32 v{VC}, 8, v{VC}'))
        L.append(I(f'v_bfe_u32 v{VB}, v{V_L16}, 4, 2'))
        L.append(I(f'v_lshl_add_u32 v{VC}, v{VB}, 1, v{VC}'))
        L.append(I(f'v_add_u32 v{VC}, s{S_W1K}, v{VC}'))
        L += phi_quad(T0[1])
        L.append(I(f'v_cvt_pk_bf16_f32 v{T0[1]}, v{T0[1]}, v{T0[1]+1}'))
        L.append(I(f'v_cvt_pk_bf16_f32 v{T0[1]+1}, v{T0[1]+2}, v{T0[1]+3}'))
        L.append(I(f'v_add_u32 v{VC}, {SCR}, v{VC}'))
        L.append(I(f'v_bfe_u32 v{VD}, v{V_L16}, 8, 2'))
        for mt in range(2):
            L.append(I(f'ds_read_u16 v{T0[mt]+2}, v{VC} offset:{4*16 + mt*8}'))
            L.append(I(f'ds_read_u16 v{T0[mt]+3}, v{VC} offset:{5*16 + mt*8}'))
        L.append(I(f'ds_write_b128 v{VA}, {vr(T1[1],4)}', tok='kva0'))
        L.append(I(f'v_bfe_u32 v{VB}, v{V_L16}, 4, 4'))
        L.append(I(f'v_mad_u32_u24 v{VA}, v{VD}, 3, v{VB}'))
        L.append(I(f'v_lshlrev_b32 v{VA}, 4, v{VA}'))
        L.append(I(f'v_or_b32 v{VC}, 0x200, v{V_L16}'))
        L.append(I(f'v_cmp_gt_u32 vcc, 3, v{VB}'))
        L.append(I(f'v_lshlrev_b32 v{VB}, 4, v{VB}'))
        L.append(I(f'v_cndmask_b32 v{VA}, v{VC}, v{VA}, vcc'))
        L.append(I(f'v_add_u32 v{VB}, 0x100, v{VB}'))
        L.append(I(f's_add_u32 s{S_CNT}, s{S_W1K}, {MISC}'))
        L.append(I(f'v_cndmask_b32 v{VB}, v{VC}, v{VB}, s[{S_G2}:{S_G2+1}]'))
        L.append(I(f'v_add_u32 v{VA}, s{S_CNT}, v{VA}'))
        L.append(I(f'v_add_u32 v{VB}, s{S_CNT}, v{VB}'))
        L.append(I(f'v_lshl_or_b32 v{T0[0]+2}, v{T0[0]+3}, 16, v{T0[0]+2}'))
        L.append(I(f'ds_write_b128 v{VA}, {vr(T3[1],4)}', tok='kva1'))
        L.append(I(f'ds_write_b64 v{VB}, {vr(T1[0],2)}', tok='kva2'))
        L.append(I(f'ds_write_b64 v{VB}, {vr(T2[0],2)} offset:8', tok='kva3'))
        L.append(I(f'v_lshl_or_b32 v{T0[1]+2}, v{T0[1]+3}, 16, v{T0[1]+2}'))
        for mt in range(2): L.append(I(f'v_mov_b32 v{T0[mt]+3}, 0'))
        L.append(Ev('qkvdone'))
        return L
    G = T1[0]
    def sum8(g, s):
        return [I(f'v_add_f32 v{g}, v{g}, v{g+s}'), I(f'v_add_f32 v{g+2*s}, v{g+2*s}, v{g+3*s}'), I(f'v_add_f32 v{g+4*s}, v{g+4*s}, v{g+5*s}'),
                I(f'v_add_f32 v{g+6*s}, v{g+6*s}, v{g+7*s}'), I(f'v_add_f32 v{g}, v{g}, v{g+2*s}'), I(f'v_add_f32 v{g+4*s}, v{g+4*s}, v{g+6*s}'),
                I(f'v_add_f32 v{g}, v{g}, v{g+4*s}')]
    def F_publish():
        L = [I(f'v_lshrrev_b32 v{VA}, 2, v{V_L16}'), I(f'v_add_u32 v{VA}, s{S_RED}, v{VA}')]
        for p in range(8): L.append(I(f'ds_read_b32 v{G+p}, v{VA} offset:{1024*p}'))
        L.append(Delay(5))
        L += sum8(G, 1)
        L.append(I(f'v_mov_b32 v{G+1}, s{S_NON}'))
        L.append(I(f'v_lshrrev_b32 v{VA}, 1, v{V_L16}'))
        L.append(I(f'buffer_store_dwordx2 {vr(G,2)}, v{VA}, {WS}, s{S_KVST} offen sc1'))
        L.append(Ev('published'))
        return L
    G2 = XF(0, 0)
    def kv_loads():
        L = []
        for p in range(8):
            t = ftmp()
            L.append(I(f's_add_u32 s{t}, s{S_KVLD}, {3072*p}'))
            L.append(I(f'buffer_load_dwordx2 {vr(G2+2*p,2)}, v{VD}, {WS}, s{t} offen sc1'))
        return L
    def kv_check():
        L = [I(f'v_xor_b32 v{G2+2*p+1}, s{S_NON}, v{G2+2*p+1}') for p in range(8)]
        L += [I(f'v_or3_b32 v{G2+1}, v{G2+1}, v{G2+3}, v{G2+5}'), I(f'v_or3_b32 v{G2+7}, v{G2+7}, v{G2+9}, v{G2+11}'),
              I(f'v_or3_b32 v{G2+1}, v{G2+1}, v{G2+13}, v{G2+15}'), I(f'v_or_b32 v{G2+1}, v{G2+1}, v{G2+7}'),
              I(f'v_cmp_ne_u32 vcc, 0, v{G2+1}')]
        return L
    def F_kvload():
        return [I(f'v_lshrrev_b32 v{VD}, 1, v{V_L16}')] + kv_loads()
    def F_gather():
        L = [retry_group(kv_loads, kv_check)] + sum8(G2, 2)
        L.append(I(f'v_lshrrev_b32 v{VA}, 2, v{V_L16}'))
        L.append(I(f's_add_u32 s{S_CNT}, s{S_W256}, {KVS}'))
        L.append(I(f'v_add_u32 v{VA}, s{S_CNT}, v{VA}'))
        L.append(I(f'ds_write_b32 v{VA}, v{G2}', tok='kvb0'))
        L.append(Ev('gathered'))
        return L
    def F_o():
        E0, E1, P2 = T1[0], T1[1], V_T + 4
        t = V_T
        L = [I(f'v_add_u32 v{t}, {KVS}, v{V_L16}'), I(f'v_bfe_u32 v{t+1}, v{V_L16}, 8, 2'),
             I(f'ds_read_b128 {vr(E0,4)}, v{t}'),
             I(f'v_bfe_u32 v{t+2}, v{V_L16}, 4, 2'), I(f'v_mad_u32_u24 v{t+1}, v{t+1}, 3, v{t+2}'),
             I(f'v_lshlrev_b32 v{t+1}, 4, v{t+1}'), I(f'v_add_u32 v{t+1}, {KVS}, v{t+1}'),
             I(f'ds_read_b128 {vr(E1,4)}, v{t+1} offset:1024'),
             I(f'v_and_b32 v{t+3}, 0xf0, v{V_L16}'), I(f'v_add_u32 v{t+3}, {KVS}, v{t+3}'),
             I(f'ds_read_b64 {vr(P2,2)}, v{t+3} offset:1280'),
             I(f'v_and_b32 v{t+2}, 0x30, v{V_L16}'), I(f'v_add_u32 v{t+2}, {KVS}, v{t+2}'),
             I(f'ds_read_b64 {vr(P2+2,2)}, v{t+2} offset:1288'), Delay(4)]
        for E, c in ((E0, 0), (E1, 2)):
            L.append(I(f'v_cvt_pk_bf16_f32 v{E}, v{E}, v{E+1}'))
            L.append(I(f'v_cvt_pk_bf16_f32 v{E+1}, v{E+2}, v{E+3}'))
            L.append(I(f'v_cvt_pk_bf16_f32 v{E+2}, v{P2+c}, v{P2+c+1}'))
            L.append(I(f'v_mov_b32 v{E+3}, 0'))
        for E in (E0, E1): L.append(I(f'v_cndmask_b32 v{E+2}, 0, v{E+2}, s[{S_G2}:{S_G2+1}]'))
        L.append(Ev('scrfree'))
        D0 = [ACC(3, 0, 0), ACC(3, 0, 1)]; D1 = [ACC(3, 1, 0), ACC(3, 1, 1)]
        L.append(I(f'v_lshrrev_b32 v{P2}, 2, v{V_L16}'))
        L.append(I(f'v_mov_b32 v{P2+1}, s{S_OOB}'))
        for mt in range(2):
            L.append(mf(D1[mt], E1, T0[mt])); L.append(mf(D0[mt], E0, T0[mt]))
        L.append(I(f'v_cmp_gt_u32 vcc, 0x80, v{P2}'))
        L.append(Delay(1))
        L.append(I(f'v_cndmask_b32 v{P2}, v{P2+1}, v{P2}, vcc'))
        L.append(Delay(1))
        for mt in range(2): L.append(I(f'v_add_f32 v{D1[mt]+2}, s{S_EPS}, v{D1[mt]+2}'))
        for mt in range(2): L.append(I(f'v_rcp_f32 v{D1[mt]+2}, v{D1[mt]+2}'))
        for mt in range(2):
            for r in range(4): L.append(I(f'v_mul_f32 v{D0[mt]+r}, v{D0[mt]+r}, v{D1[mt]+2}'))
            for r in (0, 1): L.append(I(f'v_mul_f32 v{D1[mt]+r}, v{D1[mt]+r}, v{D1[mt]+2}'))
            L.append(I(f'v_cvt_pk_bf16_f32 v{D0[mt]}, v{D0[mt]}, v{D0[mt]+1}'))
            L.append(I(f'v_cvt_pk_bf16_f32 v{D0[mt]+1}, v{D0[mt]+2}, v{D0[mt]+3}'))
            L += hstore(D0[mt], 2, mt, 4, 512)
            L.append(I(f'v_cvt_pk_bf16_f32 v{D1[mt]}, v{D1[mt]}, v{D1[mt]+1}'))
        L.append(I(f'v_cmp_gt_u32 vcc, 0x40, v{P2}'))
        L.append(Delay(1))
        L.append(I(f'v_cndmask_b32 v{D1[0]}, v{D1[1]}, v{D1[0]}, vcc'))
        L.append(I(f'buffer_store_dword v{D1[0]}, v{P2}, {WS}, s{S_A2L} offen {HST}', tok='ol'))
        L.append(Ev('odone'))
        return L
    def F_p2setup():
        return [I(f'v_bfe_u32 v{VSP}, v{V_L16}, 4, 4'), I(f'v_mul_u32_u24 v{VSP}, 1152, v{VSP}'), I(f'v_lshrrev_b32 v{VSP+1}, 8, v{V_L16}'),
                I(f'v_lshl_add_u32 v{VSP}, v{VSP+1}, 3, v{VSP}'), I(f'v_lshrrev_b32 v{VSP+1}, 1, v{V_L16}'),
                I(f'v_and_b32 v{VSP+2}, 0x300, v{V_L16}'), I(f'v_bfe_u32 v{VSP+3}, v{V_L16}, 4, 4'), I(f'v_lshl_add_u32 v{VSP+2}, v{VSP+3}, 2, v{VSP+2}'),
                I(f'v_mov_b32 v{V_AL+2}, 0'), I(f'v_mov_b32 v{V_AL+3}, 0'), Ev('p2setup')]
    p2slots = {(IT_W2 + k) % NSLOT for k in range(37, 48)}
    free = [s for s in range(NSLOT) if s not in p2slots]
    assert len(free) >= 7 and free[:7] == list(range(free[0], free[0] + 7)), free
    CMB = free[0] * SLOT
    def F_cwrite():
        L = [I(f'v_add_u32 v{VA}, s{S_W1K}, v{V_L16}'), I(f'v_add_u32 v{VA}, {CMB}, v{VA}'), I(f'v_xor_b32 v{VB}, 0x1000, v{VA}')]
        for lt in range(2, 9): L.append(I(f'ds_write_b128 v{VA}, {vr(ACC2(lt,1),4)} offset:{(lt-2)*SLOT}', tok=f'cw{lt}'))
        return L
    RB_ = [acc1[9], acc1[11], acc1[13]]
    def F_send():
        L = []
        def rd(lt, q): return I(f'ds_read_b128 {vr(q,4)}, v{VB} offset:{(lt-2)*SLOT}')
        def ad(lt, q): return [I(f'v_add_f32 v{ACC2(lt,0)+r}, v{ACC2(lt,0)+r}, v{q+r}') for r in range(4)]
        L += [rd(2, RB_[0]), rd(3, RB_[1]), rd(4, RB_[2]), Delay(3)]
        nxt = 5
        for p in range(1, 4):
            for lt in (2*p, 2*p+1):
                q = RB_[(lt - 2) % 3]
                L += ad(lt, q)
                if nxt <= 8: L.append(rd(nxt, q)); nxt += 1
            a, b = ACC2(2*p, 0), ACC2(2*p+1, 0)
            L += pack2(a, a, b)
            L += [I(f'v_min_u32 v{a+r}, -2, v{a+r}') for r in range(4)]
            L.append(I(f'buffer_store_dwordx4 {vr(a,4)}, v{V_L16}, {WS}, s{S_EXS+p-1} offen sc1'))
        L += ad(8, RB_[0])
        a = ACC2(8, 0); q = RB_[1]
        L += [I(f'v_cvt_pk_bf16_f32 v{q}, v{a}, v{a+1}'), I(f'v_cvt_pk_bf16_f32 v{q+1}, v{a+2}, v{a+3}'),
              I(f'v_min_u32 v{q}, -2, v{q}'), I(f'v_min_u32 v{q+1}, -2, v{q+1}'),
              I(f'buffer_store_dwordx2 {vr(q,2)}, v{VSP+1}, {WS}, s{S_E8S} offen sc1'), Ev('sent')]
        return L

    memq = []
    def mq(step, evs, mk, item=None, by=None): memq.append(dict(step=step, ev=evs, mk=mk, item=item, by=by))
    for n in range(NPRE, IT_R): mq(0, [], (lambda n=n: dma(n)), n)
    for n in range(IT_R, IT_X): mq(0, ['rsetup'], (lambda n=n: dma(n)), n)
    for n in range(IT_X, IT_SCR): mq(0, ['wxok'], (lambda n=n: dma(n)), n)
    for n in range(IT_L1, IT_W2): mq(0, ['dmah'], (lambda n=n: dma(n)), n)
    TORD = [0, 1, 2, 4, 3]
    def aload(sp, mt, half=None):
        t = stmp(); off = ((sp & 3) * 5 + TORD[sp >> 2]) * 1024
        if half is not None:
            off += half * 512
            return [I(f's_add_u32 s{t}, s{S_A + mt}, {off & ~4095}'),
                    I(f'buffer_load_dwordx2 {vr(AF(sp, mt) + 2 * half, 2)}, v{V_L8}, {WS}, s{t} offen offset:{off & 4095} sc1')]
        return [I(f's_add_u32 s{t}, s{S_A + mt}, {off & ~4095}'),
                I(f'buffer_load_dwordx4 {vr(AF(sp, mt), 4)}, v{V_L16}, {WS}, s{t} offen offset:{off & 4095} sc1')]
    def xfree_step(ks):
        last = SO[('S4c', ks)] if ks < K4 else SO[('S4e', ks)]
        return last + 1
    w2n = IT_W2
    for sp in range(21):
        while w2n <= IT_W2 + ((sp * 7 + 6) >> 2):
            mq(0, ['w2ok', 'setup2'], (lambda n=w2n: dma(n)), w2n); w2n += 1
        if sp < 20:
            ev = [['h4ok'], ['h4ok'], ['h5ok'], ['h6ok'], ['h7ok']][sp >> 2]
            if sp < 2: ev = ev + ['gathered']
            if sp >= 17: ev = ev + ['e3done']
            for mt in range(2):
                for half in ([None] if TORD[sp >> 2] != 4 else [0, 1]):
                    mq(xfree_step(sp) if sp < 17 else 0, ev + ['setup2'], (lambda sp=sp, mt=mt, half=half: aload(sp, mt, half)), by=SO[('P1', sp)])
        if sp == 15:
            for k in range(2):
                mq(0, ['h6ok', 'p2setup'], (lambda k=k: [I(f'buffer_load_dword v{V_AL+k}, v{VSP+2}, {WS}, s{S_AL} offen offset:{128*k} sc1')]), by=SO[('P1', 20)])
    for n in range(w2n, NITEM): mq(0, [], (lambda n=n: dma(n)), n)
    barspec = cfg.get('bars', None) or (
        [('S1', 0), ('S1', 2), ('S1', 5), ('S1', 8), ('S1', 11), ('S1', 14), ('S1', 17), ('S2', 9), ('S3', 0), ('S3', 6), ('S3', 12),
         ('S4', 0), ('S4a', K3 + 4), ('S4c', 0), ('S4c', 4), ('S4d', K4 + 2), ('S4d', K4 + 8), ('S4e', K4 + 5)]
        + [('P1', k) for k in range(0, 21, 3)] + [('P2', 0), ('P2', 2), ('P2', 10)])
    bars = sorted(SO[tuple(b)] for b in barspec)
    need = {}
    for bi, b in enumerate(bars):
        lo = first_frag[b] + (D if bi else 0)
        hi = first_frag[bars[bi + 1]] + D if bi + 1 < len(bars) else NF
        need[b] = sorted({frags[i]['item'] for i in range(lo, min(hi, NF))})
    last_use = {}
    for f in frags: last_use[f['item']] = f['step']
    RSTEP = SO[('S1', 11)]
    need[RSTEP] = sorted(set(need[RSTEP]) | {IT_R, IT_R + 1, IT_R + 2})
    rel_ev = {IT_R: 'rdone', IT_R + 1: 'rdone', IT_R + 2: 'rdone', IT_SCR: 'scrfree'}
    released = set()
    issued = {n: -1 for n in range(NPRE)}
    HS = 262144
    q3 = U(4)[3]
    def weave(main, other):
        L = []
        for k, x in enumerate(main):
            if k in other: L += other[k]
            L.append(x)
        return L
    def nrm(a, b):
        L = []
        for ks in range(a, b): L += norm(ks) + [Ev(f'n{ks}')]
        return L
    def nod(L): return [x for x in L if not isinstance(x, Delay)]
    def spread(main, items, start, step):
        o = {}
        for k, x in enumerate(items): o.setdefault(start + k * step, []).append(x)
        return weave(main, o)
    KP = ('S4a', K3 + 4)
    avail = {
        ('S1', 0): lambda: nrm(NB, 10),
        ('S1', 5): lambda: setflag(S_F2S, 0, [], q3, q3 + 1) + weave(spread(nrm(10, 12), nod(F_poison())[4:], 10, 12), {0: F_poison()[:4]}),
        ('S1', 8): lambda: poll(S_F2P, 0, False, 'wxok', True, nrm(12, 13), q3, q3 + 1) + nrm(13, 14),
        ('S1', 11): lambda: nod(F_relayout())[:15] + spread(nrm(14, 18), nod(F_relayout())[15:], 20, 12) + F_post1() + F_dmah(),
        ('S2', 0): lambda: E_first(0) + E_second(0, 1, 0) + [Ev('u01free')],
        ('S3', 0): lambda: setflag(S_F3S, 0, []) + F_trh() + E_first(2) + E_second(2, 3, 1) + [Ev('u23free')]
                           + poll(S_F3P, 0, True, 'w2ok', True, E_quarter(4) + [Ev('u4free')]),
        ('S4', 0): lambda: E_qkv(),
        KP: lambda: F_publish() + setflag(S_FL, 0, ['h0_0_0', 'h0_1_0', 'h1_0_0', 'h1_1_0']),
        ('S4b', K3): lambda: E_first(2)[:34] + poll(S_FH, 0, False, 'h4ok', False, E_first(2)[34:]),
        ('S4c', 0): lambda: E_second(2, 3, 2)[:36],
        ('S4c', 2): lambda: F_kvload() + E_second(2, 3, 2)[36:] + [Ev('e2done')] + F_gather(),
        ('S4d', K4 + 2): lambda: F_o(),
        ('S4e', K4): lambda: setflag(S_FL, HS, ['h2_0_0', 'h2_1_0']) + E_first(4),
        ('P1', 0): lambda: E_second(4, 1, 3)[:36] + setflag(S_FL, 2*HS, ['h4_0_0', 'h4_1_0', 'h4_0_512', 'h4_1_512', 'ol'])
                           + poll(S_FH, HS, False, 'h5ok', False, E_second(4, 1, 3)[36:] + [Ev('e3done')]) + F_p2setup(),
        ('P1', cfg.get('p6', 6)): lambda: poll(S_FH, 2*HS, False, 'h6ok', False, [Delay(16)]),
        ('P1', cfg.get('f7', 8)): lambda: setflag(S_FL, 3*HS, ['h3_0_0', 'h3_1_0']),
        ('P1', cfg.get('p7', 11)): lambda: poll(S_FH, 3*HS, False, 'h7ok', False, [Delay(16)]),
        ('P2', 2): lambda: F_send(),
    }
    avail = {SO[k]: v for k, v in avail.items()}
    must = {('S2', 0): ['rdone'], ('S3', 0): ['u01free'], ('S4', 0): ['u23free'], KP: ['qkvdone'], ('S4c', 0): ['u4free', 'published'],
            ('S4d', K4 + 2): ['gathered'], ('P1', 0): ['odone', 'e2done']}
    for ks in range(NB, 18): must[('S1', ks)] = [f'n{ks}']
    must[('S1', 17)] += ['lbinit']
    must = {SO[k]: v for k, v in must.items()}
    savail = {SO[('S1', 0)]: lambda: F_rsetup() + [Ev('rsetup2')], SO[('S3', 3)]: F_setup2}
    bar_extra = {SO[('S1', 5)]: ['wx0', 'wx1'],
                 SO[('S3', 0)]: ['w2a0', 'w2a1', 'w2a2', 'w2b0', 'w2b1', 'w2b2'] + [f'po{p}' for p in range(5)],
                 SO[KP]: [f'kva{i}' for i in range(4)], SO[('S4d', K4 + 2)]: ['kvb0'], SO[('P2', 2)]: [f'cw{lt}' for lt in range(2, 9)]}
    for k in bar_extra: assert k in bars, steps[k]

    fill = []; sfill = []
    st.gap = 0; st.lastmem = -99; st.delay_until = 0; st.cur = -99
    MEMSP = cfg.get('memsp', {})
    def memsp(s):
        ph = steps[s][0]
        return MEMSP.get(ph[:2], 4.5)
    def isI(x, kinds): return isinstance(x, I) and x.kind in kinds
    def housekeeping(force=False):
        while fill:
            x = fill[0]
            if isinstance(x, Ev):
                (pending if x.bar else events)[x.name] = st.gap; fill.pop(0)
            elif isinstance(x, Delay):
                if x.n >= 0:
                    st.delay_until = st.gap + x.n; x.n = -1
                if force or st.gap >= st.delay_until: fill.pop(0)
                else: return False
            else: return True
        return False
    def slots(seq):
        t = 0; lastv = -10; first = True
        for x in seq:
            if isinstance(x, Wait): t += 1; continue
            if first: first = False; t = 1; continue
            if x.kind in ('valu', 'trans'):
                t = max(t, 2); t += x.cost; lastv = t - 1
            elif x.kind in ('ds_r', 'ds_w', 'vm_ld', 'vm_st', 'vm_dma'):
                t = max(t, 2, lastv + 3); t += 1
            else: t += x.states()
        return t
    def mem_ready(e, s):
        if e['step'] > s or any(v not in events for v in e['ev']): return False
        n = e['item']
        if n is not None and n >= NSLOT and (n - NSLOT) not in released: return False
        return True
    leads = {}
    def pop_mem(s, win=None):
        for k in range(min(win or cfg.get('ooo', 12), len(memq))):
            if mem_ready(memq[k], s):
                e = memq.pop(k)
                if e['item'] is not None: issued[e['item']] = st.gap
                if e['by'] is not None: leads.setdefault(e['by'], []).append(st.gap)
                return e['mk']()
        return None
    st.ta = 0.0
    def vcost(x, s):
        c = memsp(s)
        if x.op.endswith('x4'): return c
        if x.op.endswith('x2'): return c / 2
        return c / 4
    def gap(m, shadow, rd, s, quiet=False):
        st.gap += 1
        seq = [m] + shadow
        budget = 2
        rds = [x for x in rd if x.kind == 'salu']; rdv = [x for x in rd if x.kind == 'valu']; rdm = [x for x in rd if x.kind == 'ds_r']
        seq += rds + rdv; budget -= len(rdv)
        sal = []; mem = []
        hadv = False
        if not quiet:
            if not shadow and housekeeping() and isI(fill[0], ('salu',)): seq.append(fill.pop(0))
            while housekeeping() and isI(fill[0], ('valu', 'trans')) and fill[0].cost <= budget:
                x = fill.pop(0); budget -= x.cost; seq.append(x); hadv = True
            if budget == 1 and housekeeping() and isI(fill[0], ('trans',)):
                for k in range(1, min(8, len(fill))):
                    x = fill[k]
                    if not isI(x, ('valu', 'trans')): break
                    if x.kind == 'valu' and not any((x.rd & y.wr) or (x.wr & (y.rd | y.wr)) for y in fill[:k]):
                        seq.append(fill.pop(k)); budget -= 1; break
            fillvm = housekeeping() and any(isI(x, ('vm_ld', 'vm_st')) for x in fill[:2])
            g = pop_mem(s) if (st.gap >= st.ta and not fillvm) else None
            if g:
                sal += [x for x in g if x.kind == 'salu']; mem += [x for x in g if x.kind != 'salu']
            else:
                while housekeeping() and isI(fill[0], ('salu',)) and len(sal) < 2: sal.append(fill.pop(0))
                nmem = 2 - len(rdm)
                while housekeeping() and isI(fill[0], ('ds_r', 'ds_w', 'vm_ld', 'vm_st')) and len(mem) < nmem:
                    if fill[0].kind.startswith('vm') and (any(y.kind.startswith('vm') for y in mem) or (st.gap < st.ta - 2 and fill[0].op.endswith('x4'))): break
                    mem.append(fill.pop(0))
            for x in mem:
                if x.kind.startswith('vm'): st.ta = max(st.ta, st.gap - 1) + vcost(x, s)
        if not quiet:
            room = (0 if shadow else 1) + 2 - len(sal)
            pre = []
            while sfill and room > 0:
                x = sfill[0]
                if isinstance(x, Ev): events[x.name] = st.gap; sfill.pop(0); continue
                n = len(x) if isinstance(x, list) else 1
                if n > room and (room < 2 or pre): break
                sfill.pop(0); room -= n
                pre += x if isinstance(x, list) else [x]
            sal = pre + sal
        seq += sal + rdm + mem
        if not quiet and not mem and housekeeping() and isinstance(fill[0], list): seq += fill.pop(0)
        if hadv: st.cur = st.gap
        if st.gap - st.cur < 6 and not quiet:
            seq += [I('s_nop 0') for _ in range(max(0, MINGAP - slots(seq)))]
        if not quiet:
            if housekeeping() and isI(fill[0], ('mfma',)): seq += gap(fill.pop(0), [], [], s)
        return seq
    def drain_until(evs):
        L = []
        while any(e not in events for e in evs):
            assert fill, evs
            if housekeeping(force=True):
                x = fill.pop(0)
                if isinstance(x, list): L += x
                else: L.append(x)
        if L and cfg.get('verbose'): print('  drained', len(L), 'instrs for', evs)
        return L

    M = []
    def barrier_pre(b):
        L = []
        for n in need[b]:
            while n not in issued:
                g = pop_mem(b - 1, 40)
                assert g, ('item not issuable', n, steps[b], [(e['item'], e['ev'], e['step']) for e in memq[:6]])
                if cfg.get('verbose'): print('  forced issue before', steps[b], 'for item', n)
                L += g
        if cfg.get('verbose'):
            print('bar', steps[b], 'gap', st.gap, 'need', need[b], 'lead', [st.gap - issued[n] for n in need[b]])
        L.append(Wait([f'it{n}' for n in need[b]] + bar_extra.get(b, [])))
        return L
    def barrier_post(b):
        events.update(pending); pending.clear()
        for n in list(last_use) + list(rel_ev):
            if n in rel_ev:
                if rel_ev[n] in events: released.add(n)
            elif last_use[n] < b: released.add(n)
    tsph = cfg.get('tsph', ['S2', 'S3', 'S4', 'S4c', 'P1', 'P2'])
    for i in range(NF):
        s = frags[i]['step']
        if i == 0:
            M += barrier_pre(0) + [I('s_barrier')] + ts('s1start')
            for k in range(D):
                r0, r1 = reads(k); M += r0 + r1
        if first_frag[s] == i:
            if steps[s] == ('P2', 0): M += F_cwrite()
            if steps[s] == ('S3', 3): assert all(n in issued for n in range(IT_SCR)) and 'rdone' in events
            if steps[s] == ('S1', 11): assert 'rsetup2' in events and all(n in issued for n in range(IT_X))
            if s in savail: sfill.extend(savail[s]())
            if s in avail: fill.extend(avail[s]())
        ms = mfmas(i)
        r0, r1 = reads(i + D) if i + D < NF else ([], [])
        ns = frags[i + 1]['step'] if i + 1 < NF else None
        nxt_first = ns is not None and first_frag[ns] == i + 1
        shadow = [Wait(rtoks(i + 1))] if i + 1 < NF else []
        if len(ms) == 2:
            M += gap(ms[0], [], r0, s); lastrd = r1
        else: lastrd = r0 + r1
        if nxt_first and ns in must: M += drain_until(must[ns])
        if nxt_first:
            while any(e['by'] is not None and e['by'] <= ns for e in memq):
                g = pop_mem(s, 40)
                assert g, ('load not issuable', steps[ns], [(e['item'], e['ev'], e['step']) for e in memq[:8]])
                if cfg.get('verbose'): print('  forced load before', steps[ns])
                M += g
            if cfg.get('verbose') and ns in leads: print('   step', steps[ns], 'gap', st.gap, 'reg-load lead', [st.gap - x for x in leads[ns]])
        if nxt_first and ns in bars:
            M += barrier_pre(ns)
            M += gap(ms[-1], [I('s_barrier')] + shadow, lastrd, s, quiet=True)
            barrier_post(ns)
        else:
            M += gap(ms[-1], shadow, lastrd, s)
        if nxt_first and steps[ns][0] != steps[s][0] and steps[ns][0] in tsph: M += ts(steps[ns][0])
        if nxt_first and steps[ns] == ('P1', 10) and not cfg.get('tsx'): M += ts('P1mid')
        if nxt_first and list(steps[ns]) in cfg.get('tsat', []): M += ts(f'@{steps[ns][0]}.{steps[ns][1]}')
    assert not memq, [(e['item'], e['ev']) for e in memq]
    M += drain_until(['sent'])
    assert not fill, fill
    if not cfg.get('tsx'): M += ts('mainend')
    P.ext(M)
    R = AF(0, 0); R8 = R + 12; VX = AF(3, 0)
    rloads = lambda: ([I(f'buffer_load_dwordx4 {vr(R+4*p,4)}, v{V_L16}, {WS}, s{S_EX} offen offset:{1024*p} sc1') for p in range(3)]
                      + [I(f'buffer_load_dwordx2 {vr(R8+2*p,2)}, v{VSP+1}, {WS}, s{S_E8R} offen offset:{512*p} sc1') for p in range(3)])
    P(f'buffer_load_dwordx2 {vr(VX,2)}, v{VSP}, s[{S_XS}:{S_XS+3}], s{S_O} offen')
    P(f'buffer_load_dwordx2 {vr(VX+2,2)}, v{VSP}, s[{S_XS}:{S_XS+3}], s{S_O} offen offset:32')
    P(f'buffer_load_dwordx2 {vr(VX+4,2)}, v{VSP}, s[{S_XS}:{S_XS+3}], s{S_O8} offen')
    P.ext(rloads())
    P(f'v_add_u32 v{VA}, s{S_W1K}, v{V_L16}')
    P(f'v_add_u32 v{VA}, {MISC}, v{VA}')
    P(f'v_xor_b32 v{VB}, 0x1000, v{VA}')
    P(f'v_add_u32 v{VC}, {(free[7] * SLOT - MISC) & 0xffffffff:#x}, v{VA}')
    P(f'v_xor_b32 v{VD}, 0x1000, v{VC}')
    P(f'ds_write_b128 v{VA}, {vr(ACC2(0,1),4)}')
    P(f'ds_write_b128 v{VC}, {vr(ACC2(1,1),4)}')
    P.wait(lg0=True)
    P('s_barrier')
    P(f'ds_read_b128 {vr(ACC2(0,1),4)}, v{VB}')
    P(f'ds_read_b128 {vr(ACC2(1,1),4)}, v{VD}')
    P('s_mov_b32 s24, 0xffff0000')
    def addpk(dst, src):
        P(f'v_lshlrev_b32 v8, 16, v{src}'); P(f'v_and_b32 v9, s24, v{src}')
        P(f'v_lshlrev_b32 v10, 16, v{src+1}'); P(f'v_and_b32 v11, s24, v{src+1}')
        for r in range(4): P(f'v_add_f32 v{dst+r}, v{dst+r}, v{8+r}')
    for lt in range(2):
        for r in range(4): P(f'v_add_f32 v{ACC2(lt,0)+r}, v{ACC2(lt,0)+r}, v{ACC2(lt,1)+r}')
    addpk(ACC2(0,0), VX); addpk(ACC2(1,0), VX+2); addpk(ACC2(8,0), VX+4)
    def rcheck():
        L = [I(f'v_max3_u32 v8, v{R}, v{R+1}, v{R+2}'), I(f'v_max3_u32 v9, v{R+3}, v{R+4}, v{R+5}')]
        for k in range(6, 18, 4):
            L += [I(f'v_max3_u32 v8, v8, v{R+k}, v{R+k+1}'), I(f'v_max3_u32 v9, v9, v{R+k+2}, v{R+k+3}')]
        return L + [I('v_max_u32 v8, v8, v9'), I('v_cmp_eq_u32 vcc, -1, v8')]
    P.ext(retry_group(rloads, rcheck))
    if not cfg.get('tsx'): P.ext(ts('recv'))
    for p in range(3):
        addpk(ACC2(0,0), R+4*p); addpk(ACC2(1,0), R+4*p+2); addpk(ACC2(8,0), R8+2*p)
    for lt, so, off in ((0, S_O, 0), (1, S_O, 32), (8, S_O8, 0)):
        a = ACC2(lt, 0)
        P(f'v_cvt_pk_bf16_f32 v{a}, v{a}, v{a+1}'); P(f'v_cvt_pk_bf16_f32 v{a+1}, v{a+2}, v{a+3}')
        P(f'buffer_store_dwordx2 {vr(a,2)}, v{VSP}, s[{S_OUT}:{S_OUT+3}], s{so} offen offset:{off}')
    if TS:
        P('s_waitcnt vmcnt(0)')
        P.ext(ts('end'))
        P('s_memrealtime s[84:85]\ns_waitcnt lgkmcnt(0)')
        for k in range(st.nts): P(f'v_writelane_b32 v8, s{S_TS + k}, {k}')
        P('v_writelane_b32 v8, s101, 30')
        P('v_writelane_b32 v8, s84, 31')
        P(f'v_lshrrev_b32 v9, 2, v{V_L16}')
        P(f'v_mov_b32 v10, s{S_OOB}')
        P('v_cmp_gt_u32 vcc, 0x80, v9')
        P('v_cndmask_b32 v9, v10, v9, vcc')
        P('s_lshl_b32 s24, s2, 3')
        P(f's_add_u32 s24, s24, s{S_WAVE}')
        P('s_lshl_b32 s24, s24, 7')
        P(f's_add_u32 s24, s24, {TS_OFF}')
        P(f'buffer_store_dword v8, v9, {WS}, s24 offen')
    P('L_done:')
    P('s_endpgm')
    q, n = P.finish()
    if cfg.get('verbose'):
        from collections import Counter
        print('nops', n, Counter(x.kind for x in q))
        print('events', events)
    return kernel_text(name, q, 256, 102), st.tsn

HEADER = """; Fused kernel: LayerNorm -> [QKV | gate/up] GEMM -> linear attention + GEGLU -> down/out GEMM (split-K 4) + residual
; Kernarg (80 bytes): 0 A_x, 8 A_wqkv, 16 A_wo, 24 B_x (unused), 32 w_gate, 40 w_up, 48 w_down, 56 out, 64 debug, 72 ws
; @launch grid=(256,1,1) block=(512,1,1) lds=163840
"""
if __name__ == '__main__':
    out = sys.argv[1]
    cfg = json.loads(sys.argv[2]) if len(sys.argv) > 2 else {}
    name = 'parallel_sum__linear_attn_block__geglu_ffn__prompt_kernel'
    (body, kd), tsn = gen(name, cfg)
    s = HEADER + (f'; ts: {" ".join(tsn)}\n' if tsn else '')
    s += '.amdgcn_target "amdgcn-amd-amdhsa--gfx950"\n.text\n' + body + '.section .rodata,"a"\n.p2align 6\n' + kd
    open(out, 'w').write(s)
```

```python
import sys, json
sys.path.insert(0, 'work')
from dsl import *

OOB = 0x40000000
ST_OFF = 0
CSP_OFF = 0x80000
WX_OFF = 0x240000; WX_J = 112 * 1024
A2_OFF = 0x600000; A2_MT = 160 * 1024
A2L_OFF = 0x1A00000
KVP_OFF = 0x1A40000
EX_OFF = 0x1B00000
EX8_OFF = 0x2200000
W2_OFF = 0x2300000; W2_S = 192 * 1024
F2_OFF = 0x2900000
F3_OFF = 0x2910000
TS_OFF = 0x2A00000
FL_OFF = 0x2B00000
WS_SIZE = 0x2C00000
HS = 262144

LDS_BYTES = 163840
NSLOT = 19; SLOT = 8192
MISC = NSLOT * SLOT
IT_L0 = 0; IT_Q = 18; IT_X = 23; IT_R = 32; IT_SCR = 35; IT_L1 = 36; IT_W2 = 54; NW2 = 48
NITEM = IT_W2 + NW2

V_TR = 0; V_TH = 2; V_L16 = 4; V_LB = 5; V_DMA = 6; V_A = 1; V_T = 8; V_WF = 16; V_ACC = 32; V_XF = 112
V_XD = 12; V_XR = 14
BN = [12, 14]; C0 = [13, 15]; C1 = [0, 7]
def XF(ks, mt): return V_XF + (ks * 2 + mt) * 4
def ACC(u, nt, mt): return V_ACC + 16 * u + (nt * 2 + mt) * 4
def U(u): return [V_ACC + 16 * u + 4 * k for k in range(4)]

S_RED = 3
S_W = 4; S_WS = 8; S_R = 12; S_XS = 16; S_OUT = 20
S_T = 24
S_W1K = 32; S_A2 = 33; S_MW = 34; S_L2E = 35; S_EPS = 36; S_W256 = 37; S_OOB = 38; S_WAVE = 39
S_M4 = 40; S_G2 = 42; S_NMS = 44; S_RS = 45; S_KVST = 46; S_KVLD = 47; S_A2L = 48; S_EX = 49; S_E8R = 50
S_FH = 51; S_FL = 52; S_CNT = 53; S_NON = 54; S_F2S = 55; S_F2P = 56; S_F3S = 57; S_PT = 58
S_XN = 59; S_WX = 60; S_XST = 61; S_GP = 62; S_RSRC = 67; S_WXD = 68; S_OP = 70
S_A = 62; S_W2 = 64; S_W2K = 65; S_EXS = 66; S_E8S = 69; S_O = 59; S_O8 = 60; S_AL = 61; S_STK = 70
S_WO = 44; S_WD = 46; S_G1 = 72; S_G0 = 76
S_RDST = 80; S_LEFT = 83; S_RB = 84; S_J = 85; S_RX = 86; S_RW = 87
S_TS = 90

K0C = -2.0 * 0.7978845608028654 * 1.4426950408889634
K1C = K0C * 0.044715

class Ctx: pass
class Ev:
    def __init__(self, name, bar=False): self.name = name; self.bar = bar
class Delay:
    def __init__(self, n): self.n = n
class Need:
    def __init__(self, name): self.name = name

def gen(name, cfg):
    D = cfg.get('dist', 3)
    TS = cfg.get('ts', False)
    SPIN = cfg.get('spin', 100000)
    MINGAP = cfg.get('mingap', 6)
    ROT = cfg.get('rot', 1)
    NR = cfg.get('nr', 5)
    NL0 = NSLOT - 2 * NR
    XST = NL0 * SLOT
    WS = f's[{S_WS}:{S_WS+3}]'
    XS = f's[{S_XS}:{S_XS+3}]'
    P = Prog(); st = Ctx(); st.tmp = 0; st.ft = 0; st.nts = 0; st.lab = 0; st.tsn = []
    def stmp():
        st.tmp = (st.tmp + 1) % 6; return S_T + st.tmp
    def ftmp():
        st.ft = (st.ft + 1) % 2; return S_T + 6 + st.ft
    def ts(nm):
        if not TS: return []
        if 'tsat' in cfg and nm not in ('start', 's1start', 'end') and not nm.startswith('@'): return []
        k = st.nts; st.nts += 1; st.tsn.append(nm)
        assert k < 11
        return [I('s_memtime s[88:89]'), I('s_waitcnt lgkmcnt(0)'), I(f's_mov_b32 s{S_TS+k}, s88')]
    def retry_group(loads, check, w0only=False):
        st.lab += 1; l = st.lab
        g = check()
        if w0only: g += [I(f's_cmp_lg_u32 s{S_WAVE}, 0'), I(f's_cbranch_scc1 L_ok{l}')]
        g += [I('s_nop 4'), I(f's_cbranch_vccz L_ok{l}'), I(f's_mov_b32 s{S_CNT}, {SPIN}'), I(f'L_rt{l}:'), I('s_sleep 4')]
        g += raw(loads() + [I('s_waitcnt vmcnt(0)')] + check())
        g += [I(f's_sub_u32 s{S_CNT}, s{S_CNT}, 1'), I(f's_cmp_eq_u32 s{S_CNT}, 0'), I(f's_cbranch_scc1 L_ok{l}'), I('s_nop 4'),
              I(f's_cbranch_vccnz L_rt{l}'), I(f'L_ok{l}:')]
        return g
    def IL(txt): return [I(l) for l in txt.strip().split('\n') if l.strip()]
    NLR = 6
    def slot_of(n):
        return n % NLR if n < IT_Q else (NLR + n - IT_Q) % NSLOT
    def prev_of(n):
        if n < NLR: return None
        if n < IT_Q: return n - NLR
        if n - IT_Q >= NSLOT: return n - NSLOT
        s = slot_of(n)
        if s >= NL0: return 'stage'
        if s >= NLR: return 'gst'
        return 12 + s
    SCR = slot_of(IT_SCR) * SLOT; KVS = SCR

    if TS: P('s_memrealtime s[88:89]\ns_waitcnt lgkmcnt(0)\ns_mov_b32 s101, s88')
    P.ext(ts('start'))
    P('s_cmp_ge_u32 s2, 256')
    P('s_cbranch_scc1 L_done')
    P(f's_load_dwordx2 s[{S_XS}:{S_XS+1}], s[0:1], 0')
    P(f's_load_dwordx4 s[{S_G0}:{S_G0+3}], s[0:1], 32')
    P(f's_load_dwordx2 s[{S_OUT}:{S_OUT+1}], s[0:1], 64')
    P(f's_load_dwordx2 s[{S_WS}:{S_WS+1}], s[0:1], 72')
    P(f's_load_dwordx2 s[{S_G1}:{S_G1+1}], s[0:1], 8')
    P(f's_load_dwordx2 s[{S_WO}:{S_WO+1}], s[0:1], 16')
    P(f's_load_dwordx2 s[{S_WD}:{S_WD+1}], s[0:1], 48')
    P(f's_load_dwordx2 s[{S_OP}:{S_OP+1}], s[0:1], 56')
    if cfg.get('probe'):
        P('s_load_dwordx2 s[24:25], s[0:1], 24\ns_mov_b32 s26, 2359296\ns_mov_b32 s27, 0x20000\ns_waitcnt lgkmcnt(0)')
        P('v_lshrrev_b32 v8, 6, v0\ns_lshl_b32 s30, s2, 3\nv_add_u32 v8, s30, v8\nv_mul_u32_u24 v8, 1152, v8')
        for k in range(9):
            P(f'buffer_load_dword v9, v8, s[24:27], 0 offen offset:{128*k}')
            P('s_waitcnt vmcnt(0)')
    P('s_memrealtime s[28:29]')
    B = V_ACC
    VL = B; VOOB = B + 1; VG = B + 2; VSW = B + 3; VSR = B + 4; VTC = B + 5
    XR = B + 8
    P(f"""
    v_lshrrev_b32 v8, 6, v0
    v_and_b32 v{VL}, 63, v0
    v_readfirstlane_b32 s{S_WAVE}, v8
    s_lshr_b32 s24, s2, 3
    s_and_b32 s25, s2, 4
    s_lshr_b32 s26, s24, 3
    s_add_u32 s{S_RB}, s25, s26
    s_and_b32 s26, s2, 3
    s_lshl_b32 s26, s26, 3
    s_and_b32 s27, s24, 7
    s_add_u32 s{S_J}, s26, s27
    s_mov_b32 s{S_OOB}, {OOB}
    v_lshrrev_b32 v{VG}, 4, v{VL}
    v_lshrrev_b32 v{VSR}, 3, v{VL}
    v_mov_b32 v{VOOB}, s{S_OOB}
    v_lshlrev_b32 v{V_L16}, 4, v{VL}
    v_cmp_gt_u32 vcc, 8, v{VL}
    v_and_b32 v9, 7, v{VL}
    v_xor_b32 v9, v9, v{VG}
    v_lshlrev_b32 v9, 4, v9
    v_cndmask_b32 v{VTC}, v{VOOB}, v{V_L16}, vcc
    v_mul_u32_u24 v11, 1152, v{VSR}
    v_add_u32 v{V_XD}, v9, v11
    v_xor_b32 v9, 64, v9
    v_add_u32 v11, {8*1152}, v11
    v_add_u32 v{V_XD+1}, v9, v11
    s_lshl_b32 s26, s{S_RB}, 5
    s_add_u32 s26, s26, s{S_J}
    s_lshl_b32 s26, s26, 3
    s_add_u32 s31, s26, s{S_WAVE}
    s_mul_i32 s26, s31, 1152
    s_lshl_b32 s24, s{S_RB}, 3
    s_add_u32 s24, s24, s{S_WAVE}
    s_mul_i32 s{S_XN}, s24, {32*1152}
    s_mul_i32 s{S_XST}, s{S_WAVE}, {NR*2048}
    s_add_u32 s{S_XST}, s{S_XST}, {XST}
    s_mul_i32 s{S_RX}, s{S_RB}, {128 if ROT else 0}
    s_mul_i32 s{S_RW}, s{S_RB}, {64*9216 if ROT else 0}
    s_mov_b32 s{S_XS+2}, 2359296
    s_mov_b32 s{S_XS+3}, 0x20000
    s_mov_b32 s{S_W+2}, 5308416
    s_mov_b32 s{S_W+3}, 0x20000
    s_lshl_b32 s{S_W1K}, s{S_WAVE}, 10
    v_lshrrev_b32 v8, 1, v{VL}
    v_xor_b32 v8, v8, v{VG}
    v_and_b32 v8, 3, v8
    v_and_b32 v9, 1, v{VL}
    v_lshlrev_b32 v9, 4, v9
    v_lshl_add_u32 v{VSW}, v8, 5, v9
    v_and_b32 v11, 3, v{VSR}
    v_lshrrev_b32 v8, 2, v{VSR}
    v_lshl_add_u32 v11, v8, 3, v11
    s_and_b32 s30, s{S_WAVE}, 1
    s_lshl_b32 s30, s30, 2
    s_and_b32 s27, s{S_WAVE}, 2
    s_lshl_b32 s27, s27, 3
    s_add_u32 s30, s30, s27
    v_add_u32 v11, s30, v11
    v_mul_u32_u24 v11, 9216, v11
    s_lshl_b32 s30, s{S_J}, 8
    v_add3_u32 v{V_DMA}, v11, v{VSW}, s30
    s_mov_b32 s{S_OUT+2}, 256
    s_mov_b32 s{S_OUT+3}, 0x20000
    v_cmp_eq_u32 vcc, 0, v0
    v_cndmask_b32 v10, v{VOOB}, 0, vcc
    s_waitcnt lgkmcnt(0)
    buffer_load_dwordx4 {vr(XR,4)}, v{V_L16}, {XS}, s26 offen
    buffer_load_dwordx4 {vr(XR+4,4)}, v{VTC}, {XS}, s26 offen offset:1024
    s_lshl_b32 s28, s28, 3
    s_or_b32 s28, s28, 0x80000000
    v_mov_b32 v11, s28
    s_cmp_eq_u32 s2, 0
    s_cselect_b32 s29, 0, s{S_OOB}
    buffer_store_dword v11, v10, s[{S_OUT}:{S_OUT+3}], s29 offen sc1
    s_cmp_ge_u32 s{S_WAVE}, 4
    s_cselect_b32 s{S_W}, s{S_G0+2}, s{S_G0}
    s_cselect_b32 s{S_W+1}, s{S_G0+3}, s{S_G0+1}
    """)
    def adv(reg, step, wrap):
        return [I(f's_add_u32 s{reg}, s{reg}, {step}'), I(f's_cmp_eq_u32 s{reg}, {wrap}'), I(f's_cselect_b32 s{reg}, 0, s{reg}')]
    def dma(n):
        L = [I(f's_add_u32 m0, s{S_W1K}, {slot_of(n) * SLOT}')]
        if n < IT_Q:
            L += [I('s_nop 0'), I(f'buffer_load_dwordx4 v{V_DMA}, s[{S_W}:{S_W+3}], s{S_RW} offen lds', tok=f'it{n}')] + adv(S_RW, 32*9216, 576*9216)
        elif IT_R <= n < IT_SCR:
            t = stmp()
            L += [I(f's_add_u32 s{t}, s{S_RSRC}, {(n - IT_R) * 128}'),
                  I(f'buffer_load_dwordx4 v{V_TH}, s[{S_R}:{S_R+3}], s{t} offen lds', tok=f'it{n}')]
        elif n < IT_R:
            t = stmp(); isq = n < IT_X
            L += [I(f's_add_u32 s{t}, s{S_WX}, s{S_RX}'),
                  I(f'buffer_load_dwordx4 v{V_L16}, {WS}, s{t} offen sc1 lds', tok=f'it{n}')]
            if n == IT_X - 1:
                L += [I(f's_add_u32 s{S_WX}, s{S_WX}, {40*1024}'), I(f's_mul_i32 s{S_RX}, s{S_RB}, {8192 if ROT else 0}'), I(f's_add_u32 s{S_RX}, s{S_RX}, s{S_W1K}')]
            else:
                wrap = (36 if isq else 72) * 1024
                L += [I(f's_add_u32 s{S_RX}, s{S_RX}, 8192'), I(f's_sub_u32 s{t}, s{S_RX}, {wrap}'), I(f's_cselect_b32 s{S_RX}, s{S_RX}, s{t}')]
        elif n < IT_W2:
            t = stmp()
            L += [I(f's_add_u32 s{t}, s{S_RW}, {128 + ((n - IT_L1) // 9) * 64}'),
                  I(f'buffer_load_dwordx4 v{V_DMA}, s[{S_W}:{S_W+3}], s{t} offen lds', tok=f'it{n}')] + adv(S_RW, 64*9216, 576*9216)
        else:
            t = stmp()
            L += [I(f's_add_u32 s{t}, s{S_W2K if n - IT_W2 in (35, 36, 47) else S_W2}, {(n - IT_W2) * 4096}'),
                  I(f'buffer_load_dwordx4 v{V_L16}, {WS}, s{t} offen sc1 lds', tok=f'it{n}')]
        return L
    GPOS = cfg.get('gpos', 5)
    stg = [('x', p) for p in range(18)]
    spos = {e: k for k, e in enumerate(stg)}
    VGA = U(4)[2]
    def sdma(k, h):
        kind, p = stg[k]
        w = [f'sr{k-NR}_0', f'sr{k-NR}_1'] if k >= NR else []
        t = stmp()
        L = [I(f's_add_u32 m0, s{S_XST}, {(k % NR) * 2048 + h * 1024}')]
        if kind == 'x':
            L += [I(f's_add_u32 s{t}, s{S_XN}, s{S_RX}')]
            if p & 1: L += [I(f's_add_u32 s{t}, s{t}, 18432')]
            L += [I(f'buffer_load_dwordx4 v{V_XD+h}, {XS}, s{t} offen lds', tok=f's{k}_{h}', waits=w)]
            if (p & 1) and h: L += adv(S_RX, 128, 1152)
        return L
    GL = [[6 * SLOT, 7 * SLOT], [8 * SLOT, MISC]]
    def gdma(p, h):
        t = stmp(); S = S_G0 if p == 0 else S_G1
        return [I(f's_add_u32 m0, s{S_W1K}, {GL[p][h]}'),
                I(f's_add_u32 s{t}, s{S_GP+p}, ' + (('0' if h == 0 else f's{S_GP+2}') if p == 0 else str(h * 4 * 3456))),
                I(f'buffer_load_dwordx4 v{VGA+p}, s[{S}:{S+3}], s{t} offen lds', tok=f'sg{p}_{h}')]
    def xread(p, d):
        k = spos[('x', p)]
        return I(f'ds_read_b128 {vr(XF(2*(p>>1)+d, p&1),4)}, v{V_XR+d} offset:{(k % NR) * 2048}', tok=f'sr{k}_{d}', waits=[f's{k}_0', f's{k}_1'])
    P.ext(dma(0))
    for k in range(2):
        P.ext(sdma(k, 0)); P.ext(sdma(k, 1))
    P.ext(dma(1))
    PS = cfg.get('ps', 5)
    NPRE = cfg.get('npre', 5)
    for k in range(2, PS):
        P.ext(sdma(k, 0)); P.ext(sdma(k, 1))
        if k < NPRE: P.ext(dma(k))
    if cfg.get('cpre', 1):
        P(f"""
        s_getpc_b64 s[24:25]
        s_mov_b32 s26, L_done - L_cp
        L_cp:
        s_mov_b32 s27, 0x20000
        s_and_b32 s30, s2, 0xf8
        s_add_u32 s30, s30, s{S_WAVE}
        s_lshl_b32 s30, s30, 8
        v_lshrrev_b32 v{B+6}, 2, v{V_L16}
        buffer_load_dword v{B+7}, v{B+6}, s[24:27], s30 offen
        """)
    VN2 = B + 16; VT3 = B + 17; VRW = B + 18
    P(f"""
    v_and_b32 v8, 3, v{VL}
    v_lshlrev_b32 v{VN2}, 4, v8
    v_cmp_gt_u32 vcc, 2, v8
    v_cndmask_b32 v{VN2}, v{VOOB}, v{VN2}, vcc
    v_mov_b32 v{VT3}, {2*(1152+16)}
    v_cmp_eq_u32 vcc, 1, v8
    v_cndmask_b32 v{VT3}, v{VT3}, 32, vcc
    v_mov_b32 v9, {2*(576+16)}
    v_cmp_eq_u32 vcc, 2, v8
    v_cndmask_b32 v{VT3}, v{VT3}, v9, vcc
    v_cmp_eq_u32 vcc, 3, v8
    v_cndmask_b32 v{VT3}, v{VT3}, v{VOOB}, vcc
    v_bfe_u32 v9, v{VL}, 2, 2
    v_lshl_add_u32 v{VRW}, v{VG}, 3, v9
    """)
    GSO = [S_GP, S_GP + 1]; GST = S_GP + 2
    P(f's_and_b32 s{S_NON}, s{S_J}, 0x18\ns_add_u32 s{S_NON}, s{S_NON}, s{S_WAVE}')
    for i in range(2):
        P(f"""
        s_lshl_b32 s24, s{S_RB}, 3
        s_and_b32 s25, s{S_J}, 7
        s_add_u32 s24, s24, s25
        s_add_u32 s24, s24, {64*i}
        s_sub_u32 s25, s24, 36
        s_lshr_b32 s26, s25, 2
        s_mul_i32 s26, s26, 110592
        s_and_b32 s25, s25, 3
        s_mul_i32 s27, s{S_NON}, 36
        s_add_u32 s26, s26, s27
        s_mul_i32 s27, s25, 1152
        s_cmp_eq_u32 s25, 3
        s_cselect_b32 s27, 0, s27
        s_cselect_b64 s[{S_G2}:{S_G2+1}], -1, 0
        s_add_u32 s{GSO[i]}, s26, s27
        """)
        if i == 0:
            P(f"""
            s_lshr_b32 s26, s24, 1
            s_mul_i32 s26, s26, 294912
            s_lshl_b32 s27, s{S_NON}, 5
            s_add_u32 s26, s26, s27
            s_add_u32 s26, s26, 8192
            s_bitcmp1_b32 s24, 0
            s_cselect_b32 s{S_G0}, s{S_G0+2}, s{S_G0}
            s_cselect_b32 s{S_G0+1}, s{S_G0+3}, s{S_G0+1}
            s_mov_b32 s28, 1990656
            s_mov_b32 s29, 3456
            s_cmp_lt_u32 s24, 36
            s_cselect_b32 s{S_G0}, s{S_G0}, s{S_G1}
            s_cselect_b32 s{S_G0+1}, s{S_G0+1}, s{S_G1+1}
            s_cselect_b32 s{S_G0+2}, 5308416, s28
            s_mov_b32 s{S_G0+3}, 0x20000
            s_cselect_b32 s{GSO[0]}, s26, s{GSO[0]}
            s_cselect_b32 s{GST}, 9216, s29
            s_cselect_b64 s[{S_G2}:{S_G2+1}], 0, s[{S_G2}:{S_G2+1}]
            s_cselect_b32 s30, 0, 4
            s_mov_b32 s27, s{GST}
            s_lshl_b32 s{GST}, s{GST}, 2
            """)
        else:
            P('s_mov_b32 s27, 3456\ns_mov_b32 s30, 4')
        P(f"""
        s_and_b32 s{S_GP+3+i}, s{S_G2}, 1
        s_add_u32 s{S_GP+3+i}, s{S_GP+3+i}, 3
        v_cndmask_b32 v8, v{VN2}, v{VT3}, s[{S_G2}:{S_G2+1}]
        v_mul_lo_u32 v11, v{VRW}, s27
        v_add_u32 v{VGA+i}, v8, v11
        s_mul_i32 s26, s{S_NON}, 112
        s_add_u32 s26, s26, s24
        s_add_u32 s26, s26, s30
        s_lshl_b32 s26, s26, 10
        s_add_u32 s26, s26, {WX_OFF}
        s_cmp_lt_u32 s24, 108
        s_cselect_b32 s{S_WXD+i}, s26, s{S_OOB}
        """)
        if i: P(f's_cselect_b32 s{S_G1+2}, 1990656, 0\ns_mov_b32 s{S_G1+3}, 0x20000')
    for n in range(max(2, PS), NPRE): P.ext(dma(n))
    ONES = U(4)[0]; CSA = U(4)[1]
    P(f"""
    s_mov_b32 s{S_WS+2}, {WS_SIZE}
    s_mov_b32 s{S_WS+3}, 0x20000
    s_lshl_b32 s{S_PT}, s31, 7
    v_lshrrev_b32 v8, 5, v{VL}
    v_lshlrev_b32 v8, 11, v8
    v_bfe_u32 v11, v{VL}, 2, 3
    v_lshl_add_u32 v8, v11, 7, v8
    v_bfe_u32 v11, v{VL}, 3, 2
    v_lshl_add_u32 v8, v11, 5, v8
    v_and_b32 v11, 3, v{VL}
    v_lshl_add_u32 v{V_TR}, v11, 3, v8
    v_xor_b32 v{V_TR+1}, 32, v{V_TR}
    v_xor_b32 v{V_TR+2}, 64, v{V_TR}
    v_xor_b32 v{V_TR+3}, 96, v{V_TR}
    s_and_b32 s24, s{S_WAVE}, 3
    s_lshl_b32 s24, s24, 5
    s_and_b32 s25, s{S_W1K}, 0x1000
    s_or_b32 s24, s24, s25
    v_xor_b32 v{V_LB}, s24, v{V_TR}
    v_and_b32 v9, 15, v{VL}
    v_lshrrev_b32 v11, 1, v9
    v_xor_b32 v11, v11, v{VG}
    v_lshlrev_b32 v11, 4, v11
    v_lshl_add_u32 v11, v9, 7, v11
    v_add_u32 v{V_XR}, s{S_XST}, v11
    v_xor_b32 v{V_XR+1}, 64, v{V_XR}
    """)
    for r in range(4): P(f'v_mov_b32 v{ONES+r}, 0x3f803f80')
    C = S_CNT; TA = S_G2; TB_ = S_G2 + 1; S_E8P = S_W256
    P(f"""
            s_lshl_b32 s24, s{S_RB}, 3
            s_and_b32 s25, s{S_J}, 7
            s_add_u32 s24, s24, s25
            s_lshl_b32 s24, s24, 1
            s_lshr_b32 s25, s{S_WAVE}, 2
            s_add_u32 s24, s24, s25
            s_mul_i32 s25, s24, 21846
            s_lshr_b32 s25, s25, 16
            s_mul_i32 s26, s25, 3
            s_sub_u32 s26, s24, s26
            s_mul_i32 s27, s25, 13108
            s_lshr_b32 s27, s27, 16
            s_mul_i32 s28, s27, 5
            s_sub_u32 s28, s25, s28
            s_and_b32 s29, s{S_J}, 0x18
            s_add_u32 s29, s29, s27
            s_and_b32 s30, s{S_WAVE}, 3
            s_lshl_b32 s24, s29, 7
            s_lshl_b32 s{TA}, s28, 5
            s_add_u32 s24, s24, s{TA}
            s_lshl_b32 s{TA}, s30, 3
            s_add_u32 s24, s24, s{TA}
            s_lshl_b32 s{TB_}, s29, 4
            s_add_u32 s{TB_}, s{TB_}, 4096
            s_add_u32 s{TB_}, s{TB_}, s{TA}
            s_mul_i32 s{C}, s29, 18
            s_add_u32 s{C}, s{C}, s{TA}
            s_sub_u32 s{C}, s{C}, 16
            s_cmp_lt_u32 s30, 2
            s_cselect_b32 s{TB_}, s{TB_}, s{C}
            s_cselect_b32 s{C}, 0, 1
            s_cmp_eq_u32 s28, 4
            s_cselect_b32 s24, s{TB_}, s24
            s_cselect_b32 s{C}, s{C}, 0
            s_and_b32 s{TB_}, s2, 3
            s_lshl_b32 s{TB_}, s{TB_}, 1
            s_add_u32 s{TB_}, s{TB_}, s30
            s_mul_i32 s{TB_}, s{TB_}, 72
            s_add_u32 s{TB_}, s{TB_}, 16
            s_cmp_ge_u32 s25, 40
            s_cselect_b32 s24, s{TB_}, s24
            s_cselect_b32 s{C}, 1, s{C}
            s_cselect_b32 s{S_LEFT}, 18432, 0
            s_cselect_b32 s{TB_}, s30, 0
            s_mul_i32 s24, s24, 1152
            s_mul_i32 s29, s26, 384
            s_add_u32 s{S_RSRC}, s24, s29
            s_mov_b32 s24, 663552
            s_cmp_eq_u32 s{C}, 1
            s_cselect_b32 s{S_R}, s{S_WO}, s{S_WD}
            s_cselect_b32 s{S_R+1}, s{S_WO+1}, s{S_WD+1}
            s_cselect_b32 s{S_R+2}, s24, 5308416
            s_cmp_ge_u32 s{TB_}, 2
            s_cselect_b32 s{S_R+2}, 0, s{S_R+2}
        s_mov_b32 s{S_R+3}, 0x20000

            s_sub_u32 s24, 7, s28
            s_cmp_lt_u32 s28, 3
            s_cselect_b32 s24, s28, s24
            s_lshl_b32 s24, s24, 2
            s_and_b32 s28, s27, 3
            s_add_u32 s24, s24, s28
            s_lshr_b32 s27, s27, 2
            s_cmp_ge_u32 s25, 40
            s_cselect_b32 s24, 20, s24
            s_cselect_b32 s27, 0, s27
            s_mul_i32 s26, s26, 12
            s_add_u32 s26, s26, s30
        """)
    for i in range(3):
        P(f"""
            s_add_u32 s28, s26, {4*i}
            s_mul_i32 s29, s28, 7282
            s_lshr_b32 s29, s29, 16
            s_mul_i32 s30, s29, 9
            s_sub_u32 s30, s28, s30
            s_lshr_b32 s28, s30, 1
            s_sub_u32 s28, s28, s2
            s_and_b32 s28, s28, 3
            s_lshl_b32 s28, s28, 1
            s_and_b32 s{TA}, s30, 1
            s_add_u32 s28, s28, s{TA}
            s_cmp_eq_u32 s30, 8
            s_cselect_b32 s28, 8, s28
            s_mul_i32 s30, s24, 7
            s_add_u32 s30, s30, s28
            s_sub_u32 s30, s30, 2
            s_lshl_b32 s{TA}, s24, 1
            s_add_u32 s{TA}, s{TA}, s28
            s_add_u32 s{TA}, s{TA}, 148
            s_cmp_ge_u32 s28, 2
            s_cselect_b32 s30, s30, s{TA}
            s_and_b32 s{TA}, s2, 3
            s_lshl_b32 s{TA}, s{TA}, 2
            s_add_u32 s{TA}, s{TA}, s29
            s_lshl_b32 s{TA}, s{TA}, 1
            s_add_u32 s{TA}, s{TA}, s27
            s_mul_i32 s{TA}, s{TA}, 192
            s_add_u32 s{TA}, s{TA}, s30
            s_lshl_b32 s{TA}, s{TA}, 10
            s_add_u32 s{TA}, s{TA}, {W2_OFF}
            s_cmp_lt_u32 s25, 41
            s_cselect_b32 s{S_RDST+i}, s{TA}, s{S_OOB}
            """)
    P(f's_mov_b32 s{S_G2}, 0\ns_mov_b32 s{S_G2+1}, 0x0000ffff')
    P(f"""
            s_mul_i32 s{S_WX}, s{S_J}, {WX_J}
            s_add_u32 s{S_WX}, s{S_WX}, {WX_OFF}
            s_and_b32 s24, s2, 3
            s_lshl_b32 s24, s24, 13
            s_add_u32 s24, s24, {F2_OFF}
            s_add_u32 s{S_F2P}, s24, s{S_W1K}
            s_lshl_b32 s25, s{S_RB}, 3
            s_and_b32 s26, s{S_J}, 7
            s_add_u32 s25, s25, s26
            s_lshl_b32 s25, s25, 7
            s_add_u32 s25, s25, s24
            s_lshl_b32 s26, s2, 7
            s_add_u32 s26, s26, {F3_OFF}
            s_cmp_eq_u32 s{S_WAVE}, 0
            s_cselect_b32 s{S_F2S}, s25, s{S_OOB}
            s_cselect_b32 s{S_F3S}, s26, s{S_OOB}
            s_lshl_b32 s24, s2, 3
            s_add_u32 s24, s24, s{S_WAVE}
            s_mul_i32 s24, s24, 3072
            s_add_u32 s{S_EX}, s24, {EX_OFF}
            s_lshr_b32 s24, s2, 2
            s_lshl_b32 s24, s24, 3
            s_add_u32 s24, s24, s{S_WAVE}
            s_lshl_b32 s24, s24, 11
            s_add_u32 s24, s24, {EX8_OFF}
            s_xor_b32 s25, s2, s{S_WAVE}
            s_and_b32 s25, s25, 3
            s_cmp_eq_u32 s25, 0
            s_cselect_b32 s{S_E8R}, s24, s{S_OOB}
            s_lshl_b32 s24, s{S_RB}, 4
            s_lshl_b32 s25, s{S_WAVE}, 1
            s_add_u32 s24, s24, s25
            s_mul_i32 s{S_A2}, s24, {A2_MT}
            s_mul_i32 s25, s{S_J}, 5120
            s_add_u32 s{S_A2}, s{S_A2}, s25
            s_add_u32 s{S_A2}, s{S_A2}, {A2_OFF}
            s_lshl_b32 s{S_A2L}, s24, 11
            s_lshl_b32 s25, s{S_J}, 7
            s_add_u32 s{S_A2L}, s{S_A2L}, s25
            s_add_u32 s{S_A2L}, s{S_A2L}, {A2L_OFF}
            s_lshl_b32 s{S_W256}, s{S_WAVE}, 8
            s_lshl_b32 s24, s{S_J}, 3
            s_add_u32 s25, s24, s{S_RB}
            s_mul_i32 s25, s25, 3072
            s_lshl_b32 s26, s{S_WAVE}, 9
            s_add_u32 s26, s26, {KVP_OFF}
            s_add_u32 s25, s25, s26
            s_mul_i32 s24, s24, 3072
            s_add_u32 s24, s24, s26
            s_cmp_lt_u32 s{S_WAVE}, 6
            s_cselect_b32 s{S_KVST}, s25, s{S_OOB}
            s_cselect_b32 s25, 0, 1024
            s_sub_u32 s{S_KVLD}, s24, s25
            s_add_u32 s24, s{S_W256}, {SCR}
            s_add_u32 s25, s{S_W256}, {MISC - 1024}
            s_cmp_lt_u32 s{S_WAVE}, 4
            s_cselect_b32 s{S_RED}, s24, s25
            s_lshl_b32 s24, s{S_RB}, 2
            s_and_b32 s25, s2, 3
            s_add_u32 s24, s24, s25
            s_lshl_b32 s24, s24, 13
            s_add_u32 s24, s24, {FL_OFF}
            s_add_u32 s{S_FL}, s24, s{S_W1K}
            s_and_b32 s25, s{S_J}, 7
            s_lshl_b32 s25, s25, 7
            s_add_u32 s{S_FL}, s{S_FL}, s25
            s_and_b32 s25, s2, 32
            s_lshl_b32 s25, s25, 7
            s_add_u32 s24, s24, s25
            s_and_b32 s25, s{S_WAVE}, 3
            s_lshl_b32 s25, s25, 10
            s_add_u32 s{S_FH}, s24, s25
            s_and_b32 s24, s{S_WAVE}, 1
            s_lshl_b32 s24, s24, 5
            s_and_b32 s25, s{S_WAVE}, 2
            s_lshl_b32 s25, s25, 11
            s_or_b32 s24, s24, s25
            s_and_b32 s25, s{S_WAVE}, 4
            s_lshl_b32 s25, s25, 9
            s_or_b32 s{S_MW}, s24, s25
            s_mul_i32 s24, s{S_WAVE}, 86
            s_lshr_b32 s24, s24, 8
            s_mul_i32 s25, s24, 3
            s_sub_u32 s25, s{S_WAVE}, s25
            s_lshl_b32 s25, s25, 9
            s_lshl_b32 s24, s24, 2
            s_and_b32 s26, s2, 3
            s_add_u32 s24, s24, s26
            s_lshr_b32 s26, s2, 2
            s_lshl_b32 s26, s26, 3
            s_add_u32 s24, s24, s26
            s_lshl_b32 s24, s24, 11
            s_add_u32 s24, s24, s25
            s_add_u32 s24, s24, {EX8_OFF}
            s_cmp_lt_u32 s{S_WAVE}, 6
            s_cselect_b32 s{S_E8P}, s24, s{S_OOB}
            s_mov_b32 s{S_L2E}, {f2u(1.4426950408889634):#x}
            s_mov_b32 s{S_EPS}, {f2u(1e-6):#x}
            s_mov_b32 s{S_M4}, 0x00040004
            s_mov_b32 s{S_M4+1}, 0x00040004
        """)
    P.ext(ts('issued'))
    SA = B + 20
    P(f'v_dot2_f32_bf16 v{SA}, v{XR}, v{ONES}, 0')
    P(f'v_dot2_f32_bf16 v{SA+1}, v{XR}, v{XR}, 0')
    for r in range(1, 8):
        P(f'v_dot2_f32_bf16 v{SA}, v{XR+r}, v{ONES}, v{SA}')
        P(f'v_dot2_f32_bf16 v{SA+1}, v{XR+r}, v{XR+r}, v{SA+1}')
    P('s_nop 2')
    for m_ in ['row_shr:1 row_mask:0xf bank_mask:0xf bound_ctrl:0', 'row_shr:2 row_mask:0xf bank_mask:0xf bound_ctrl:0',
               'row_shr:4 row_mask:0xf bank_mask:0xf bound_ctrl:0', 'row_shr:8 row_mask:0xf bank_mask:0xf bound_ctrl:0',
               'row_bcast:15 row_mask:0xa bank_mask:0xf', 'row_bcast:31 row_mask:0xc bank_mask:0xf']:
        for k in range(2): P(f'v_add_f32_dpp v{SA+k}, v{SA+k}, v{SA+k} {m_}')
    P(f"""
    s_mov_b32 s24, {f2u(1.0/576.0)}
    s_mov_b32 s25, 0xffff0000
    v_mul_f32 v{SA}, s24, v{SA}
    v_mul_f32 v{SA+1}, s24, v{SA+1}
    v_fma_f32 v{SA+1}, -v{SA}, v{SA}, v{SA+1}
    v_max_f32 v{SA+1}, 0, v{SA+1}
    v_cvt_pk_bf16_f32 v{SA+2}, -v{SA}, v{SA+1}
    v_lshlrev_b32 v{SA}, 16, v{SA+2}
    v_and_b32 v{SA+1}, s25, v{SA+2}
    v_add_f32 v{SA+1}, {f2u(1e-5):#x}, v{SA+1}
    v_cvt_pk_bf16_f32 v{SA+1}, v{SA+1}, v{SA+1}
    v_and_b32 v{SA+1}, s25, v{SA+1}
    v_sqrt_f32 v{SA+1}, v{SA+1}
    v_cvt_pk_bf16_f32 v{SA+1}, v{SA+1}, v{SA+1}
    v_and_b32 v{SA+1}, s25, v{SA+1}
    v_rcp_f32 v{SA+1}, v{SA+1}
    v_readlane_b32 s{S_NMS}, v{SA}, 63
    v_readlane_b32 s{S_RS}, v{SA+1}, 63
    """)
    P.ext(ts('stat'))
    for p in range(2):
        P.ext([xread(p, 0), xread(p, 1)])

    base = {r: 0 for r in (V_TR, V_TR+1, V_TR+2, V_TR+3, V_LB)}
    def lds_addr(reg, addr, span):
        fx = []
        if not (0 <= addr - base[reg] and addr + span - base[reg] <= 65535):
            nb = min((addr // SLOT) * SLOT, LDS_BYTES - 65536)
            fx.append(I(f'v_add_u32 v{reg}, {(nb - base[reg]) & 0xffffffff:#x}, v{reg}'))
            base[reg] = nb
        return fx, addr - base[reg]
    xq = [V_XF + 4 * k for k in range(36)]
    acc1 = U(0) + U(2) + U(3) + [xq[34], xq[35]]
    def ACC2(lt, mt):
        if lt >= 2: return acc1[(lt - 2) * 2 + mt]
        return acc1[(lt * 2 + mt) * 2 + 1]
    aq = xq[:34] + U(1) + U(4)[:2]
    def AF(sp, mt): return aq[sp * 2 + mt]
    V_AL = U(4)[2]; VSP = U(4)[3]
    V_L8 = V_TH
    T0 = [ACC(0, 0, 0), ACC(0, 0, 1)]; T1 = [ACC(0, 1, 0), ACC(0, 1, 1)]
    T2 = [ACC(1, 0, 0), ACC(1, 0, 1)]; T3 = [ACC(1, 1, 0), ACC(1, 1, 1)]

    frags = []; steps = []
    def add_step(nm, fl):
        for f in fl:
            f['step'] = len(steps); frags.append(f)
        steps.append(nm)
    def Lf(line, ks, tiles):
        fl = []
        for (T, u) in tiles:
            for mat in range(2):
                mf_ = [(ACC(u, mat, mt), XF(ks, mt), False, ks == 0) for mt in range(2)]
                if line == 0: fl.append(dict(item=IT_L0 + ks, kind='tr', reg=V_TR + T, off=mat * 4096, mf=mf_))
                else: fl.append(dict(item=IT_L1 + (T >> 1) * 9 + (ks >> 1), kind='tr', reg=V_TH + (T & 1), off=mat * 4096 + (ks & 1) * 2048, mode='h', mf=mf_))
        return fl
    def Cf(item, acc, ones, first, mode):
        return [dict(item=item, kind='tr', reg=V_LB, off=0, mode=mode, mf=[(acc, ones, True, first)])]
    def Kf(u, nt, off, swap=False, zero=False):
        return [dict(item=None, kind='k', mode='k', off=off, mf=[(ACC(u, nt, mt), BN[mt], swap, zero) for mt in range(2)])]
    def Ku(u, kb0, kb1, o, zero=False): return Kf(u, 0, kb0 * 1024 + o, False, zero) + Kf(u, 1, kb1 * 1024 + o, False, zero)
    K1 = cfg.get('k1', 15); K3 = cfg.get('k3', 8); K4 = cfg.get('k4', 8)
    for ks in range(K1): add_step(('S1', ks), Cf(ks, CSA, ONES, ks == 0, 'c0') + Lf(0, ks, [(0, 0), (1, 1), (2, 2), (3, 3)]))
    for u in range(4):
        for ks in range(K1, 18):
            fl = (Cf(ks, CSA, ONES, False, 'c0') if u == 0 else []) + Lf(0, ks, [(u, u)])
            if u == 1 and ks == K1 + 1: fl += Ku(0, 0, 4, 768)
            if u >= 1 and ks == 17: fl += Ku(u, u, 4 + u, 768)
            add_step((f'S1{"abcd"[u]}', ks), fl)
    for ks in range(18):
        add_step(('S2', ks), (Ku(4, 0, 1, 0, True) if ks == 0 else []) + [dict(item=IT_Q + ((2*ks+mat) >> 3), kind='b', mode='b', off=((2*ks+mat) & 7) * 1024,
                                   mf=[(ACC(4, mat, mt), XF(ks, mt), False, False) for mt in range(2)]) for mat in range(2)])
    for ks in range(18):
        add_step(('S3', ks), [dict(item=IT_X + ((4*ks+T) >> 3), kind='b', mode='b', off=((4*ks+T) & 7) * 1024,
                                   mf=[(ACC(T >> 1, T & 1, mt), XF(ks, mt), T != 0, ks == 0) for mt in range(2)]) for T in range(4)]
                 + ([f for T in range(4) for f in Kf(T >> 1, T & 1, (2 + T) * 1024, T != 0)] if ks == 17 else []))
    ca = lambda ks: Cf(IT_L1 + (ks >> 1), CSA, ONES, ks == 1, 'ch') if ks & 1 else []
    cb = lambda ks: Cf(IT_L1 + 9 + (ks >> 1), T1[1], T1[0], ks == 1, 'ch') if ks & 1 else []
    for ks in range(K3): add_step(('S4', ks), Lf(1, ks, [(0, 2), (1, 3)]) + ca(ks))
    for ks in range(K3, 18): add_step(('S4a', ks), ca(ks) + Lf(1, ks, [(0, 2)]))
    for ks in range(K3, 18): add_step(('S4b', ks), Lf(1, ks, [(1, 3)]) + (Ku(2, 0, 2, 768) + Ku(3, 1, 3, 768) if ks == K3 + 1 else []))
    for ks in range(K4): add_step(('S4c', ks), cb(ks) + Lf(1, ks, [(2, 4), (3, 1)]))
    for ks in range(K4, 18): add_step(('S4d', ks), cb(ks) + Lf(1, ks, [(2, 4)]))
    for ks in range(K4, 18): add_step(('S4e', ks), Lf(1, ks, [(3, 1)]) + (Ku(4, 4, 6, 768) + Ku(1, 5, 7, 768) if ks == K4 + 1 else []))
    def P2f(sp, lts, blk0):
        fl = []
        for k, lt in enumerate(lts):
            blk = blk0 + k
            mf_ = [(ACC2(lt, mt), AF(sp, mt), False, sp == 0) for mt in range(2)] if sp < 20 else [(ACC2(lt, 0), V_AL, False, False)]
            fl.append(dict(item=IT_W2 + (blk >> 2), kind='b', mode='b2', off=(blk & 3) * 1024, mf=mf_))
        return fl
    for sp in range(21): add_step(('P1', sp), P2f(sp, range(2, 9), sp * 7))
    for sp in range(21): add_step(('P2', sp), P2f(sp, range(0, 2), 148 + sp * 2))
    NF = len(frags)
    SO = {s: i for i, s in enumerate(steps)}
    first_frag = {}
    for i, f in enumerate(frags): first_frag.setdefault(f['step'], i)
    events = {}; pending = {}
    st.lbmode = 'c0'; st.hinit = False
    def reads(i):
        f = frags[i]; w = V_WF + (i % 4) * 4
        slot = slot_of(f['item']) * SLOT if f['item'] is not None else MISC
        pre = []
        mode = f.get('mode')
        if mode == 'h' and not st.hinit:
            assert 'trh' in events
            st.hinit = True; base[V_TH] = 0; base[V_TH + 1] = 0
        if mode in ('b', 'b2', 'ch', 'k') and st.lbmode != mode:
            st.lbmode = mode
            if mode == 'b':
                pre = [I(f'v_mov_b32 v{V_LB}, v{V_L16}')]; base[V_LB] = 0
            elif mode == 'k':
                pre = [I(f'v_bfe_u32 v{V_LB}, v{V_L16}, 1, 8')]; base[V_LB] = 0
            elif mode == 'b2':
                pre = [I(f's_and_b32 s{S_RX}, s{S_W1K}, 0x1000'), I(f'v_or_b32 v{V_LB}, s{S_RX}, v{V_L16}')]; base[V_LB] = 0
            else:
                pre = [I(f'v_xor_b32 v{V_LB}, s{S_MW}, v{V_TH}')]; base[V_LB] = base[V_TH]
        if f['kind'] == 'tr':
            fx, off = lds_addr(f['reg'], slot + f['off'], 2048)
            return (pre + fx + [I(f'ds_read_b64_tr_b16 {vr(w, 2)}, v{f["reg"]} offset:{off}', tok=f'rd{i}a')],
                    [I(f'ds_read_b64_tr_b16 {vr(w + 2, 2)}, v{f["reg"]} offset:{off + 1024}', tok=f'rd{i}b')])
        fx, off = lds_addr(V_LB, slot + f['off'], 1024)
        if f['kind'] == 'k':
            return (pre + fx + [I(f'ds_read_b64 {vr(w, 2)}, v{V_LB} offset:{off}', tok=f'rd{i}a')], [])
        return (pre + fx + [I(f'ds_read_b128 {vr(w, 4)}, v{V_LB} offset:{off}', tok=f'rd{i}a')], [])
    def rtoks(i):
        return [f'rd{i}a', f'rd{i}b'] if frags[i]['kind'] == 'tr' else [f'rd{i}a']
    def mfmas(i):
        w = V_WF + (i % 4) * 4; L = []
        for (d, x, swap, zero) in frags[i]['mf']:
            a, b = (x, w) if swap else (w, x)
            if frags[i]['kind'] == 'k': L.append(I(f'v_mfma_f32_16x16x16_bf16 {vr(d,4)}, {vr(a,2)}, {vr(b,2)}, {"0" if zero else vr(d,4)}'))
            else: L.append(I(f'v_mfma_f32_16x16x32_bf16 {vr(d,4)}, {vr(a,4)}, {vr(b,4)}, {"0" if zero else vr(d,4)}'))
        return L
    def mf(d, a, b): return I(f'v_mfma_f32_16x16x32_bf16 {vr(d,4)}, {vr(a,4)}, {vr(b,4)}, 0')

    HST = cfg.get('hst', 'sc1')
    t4 = [V_T + r for r in range(4)]
    def gelu_quad(g, u, dst, mt):
        t = t4; L = []
        for r in range(4): L.append(I(f'v_mul_f32 v{t[r]}, v{g+r}, v{g+r}'))
        for r in range(4): L.append(I(f'v_fma_f32 v{t[r]}, v{t[r]}, v{C1[mt]}, v{C0[mt]}'))
        for r in range(4): L.append(I(f'v_mul_f32 v{t[r]}, v{g+r}, v{t[r]}'))
        for r in range(4): L.append(I(f'v_exp_f32 v{t[r]}, v{t[r]}'))
        for r in range(4): L.append(I(f'v_mul_f32 v{u+r}, v{g+r}, v{u+r}'))
        for r in range(4): L.append(I(f'v_add_f32 v{t[r]}, 1.0, v{t[r]}'))
        for r in range(4): L.append(I(f'v_rcp_f32 v{t[r]}, v{t[r]}'))
        for r in range(4): L.append(I(f'v_mul_f32 v{u+r}, v{u+r}, v{t[r]}'))
        L.append(I(f'v_cvt_pk_bf16_f32 v{dst}, v{u}, v{u+1}'))
        L.append(I(f'v_cvt_pk_bf16_f32 v{dst+1}, v{u+2}, v{u+3}'))
        return L
    def hstore(reg, n, mt, t, extra=0, va=None):
        s = ftmp(); off = t * 1024 + extra
        op = 'buffer_store_dwordx4' if n == 4 else 'buffer_store_dwordx2'
        return [I(f's_add_u32 s{s}, s{S_A2}, {mt * A2_MT + (off & ~4095)}'),
                I(f'{op} {vr(reg, n)}, v{V_L16 if n == 4 else va}, {WS}, s{s} offen offset:{off & 4095} {HST}', tok=f'h{t}_{mt}_{extra}')]
    def E_first(u):
        L = []
        for mt in range(2): L += gelu_quad(ACC(u, 0, mt), ACC(u, 1, mt), ACC(u, 0, mt), mt)
        return L
    def E_second(u0, u1, t):
        L = []
        for mt in range(2):
            L += gelu_quad(ACC(u1, 0, mt), ACC(u1, 1, mt), ACC(u0, 0, mt) + 2, mt)
            L += hstore(ACC(u0, 0, mt), 4, mt, t)
        return L
    def E_quarter(u):
        L = []
        for mt in range(2):
            L += gelu_quad(ACC(u, 0, mt), ACC(u, 1, mt), ACC(u, 0, mt), mt)
            a = ACC(u, 0, mt) + 2
            L += [I(f'v_lshrrev_b32 v{a}, 1, v{V_L16}')] + hstore(ACC(u, 0, mt), 2, mt, 4, 0, a)
        return L
    def cswrite(c, e, t):
        L = [I(f'v_cvt_pk_bf16_f32 v{t}, v{c}, v{c}'), I(f'v_and_b32 v{t}, 0xffff0000, v{t}'), I(f'v_sub_f32 v{t}, v{c}, v{t}'),
             I(f'v_cvt_pk_bf16_f32 v{t}, v{c}, v{t}'), I(f'v_mov_b32 v{t+1}, 0')]
        if e < 2:
            L += [I(f'v_bfe_u32 v{t+2}, v{V_L16}, 1, 8'), I(f's_add_u32 s72, s{S_W1K}, {MISC + (768 if e == 0 else 0)}')]
            if e == 0: L += [I(f'v_cmp_gt_u32 vcc, 0x80, v{t+2}'), I('s_nop 1'), I(f'v_cndmask_b32 v{t}, 0, v{t}, vcc')]
        else:
            L += [I(f'v_bfe_u32 v{t+2}, v{V_L16}, 1, 7'), I(f's_and_b32 s72, s{S_W1K}, 0xc00'), I(f's_lshr_b32 s83, s{S_W1K}, 12'),
                  I('s_lshl_b32 s83, s83, 7'), I(f's_add_u32 s72, s72, s83'), I(f's_add_u32 s72, s72, {MISC + 768 + (e - 2) * 4096}')]
        L += [I(f'v_add_u32 v{t+2}, s72, v{t+2}'), I(f'ds_write_b64 v{t+2}, {vr(t,2)}', tok=f'cs{e}')]
        return L
    def phi_quad(q):
        t = t4; L = []
        for r in range(4): L.append(I(f'v_mul_f32 v{t[r]}, s{S_L2E}, v{q+r}'))
        for r in range(4): L.append(I(f'v_exp_f32 v{t[r]}, v{t[r]} clamp'))
        for r in range(4): L.append(I(f'v_max_f32 v{q+r}, s{S_EPS}, v{q+r}'))
        for r in range(4): L.append(I(f'v_add_f32 v{q+r}, v{q+r}, v{t[r]}'))
        return L
    def pack2(dst, q0, q1):
        return [I(f'v_cvt_pk_bf16_f32 v{dst}, v{q0}, v{q0+1}'), I(f'v_cvt_pk_bf16_f32 v{dst+1}, v{q0+2}, v{q0+3}'),
                I(f'v_cvt_pk_bf16_f32 v{dst+2}, v{q1}, v{q1+1}'), I(f'v_cvt_pk_bf16_f32 v{dst+3}, v{q1+2}, v{q1+3}')]
    def sgroups(txt):
        L = []
        lines = [l.strip() for l in txt.strip().split('\n') if l.strip()]
        k = 0
        while k < len(lines):
            if lines[k].startswith('s_cmp') or lines[k].startswith('s_bitcmp'):
                g = [I(lines[k])]; k += 1
                while k < len(lines) and lines[k].startswith('s_cselect'): g.append(I(lines[k])); k += 1
                L.append(g)
            else:
                L.append(I(lines[k])); k += 1
        return L
    def setflag(sreg, add, toks, VA, VB):
        t = ftmp()
        return [I(f'v_lshlrev_b32 v{VA}, 21, v{V_L16}'), I(f'v_and_b32 v{VA}, s{S_OOB}, v{VA}'),
                I(f'v_lshrrev_b32 v{VB}, 2, v{V_L16}'), I(f'v_or_b32 v{VA}, v{VA}, v{VB}'), I(f'v_mov_b32 v{VB}, s{S_NON}'),
                I(f's_add_u32 s{t}, s{sreg}, {add}'),
                I(f'buffer_store_dword v{VB}, v{VA}, {WS}, s{t} offen sc1', waits=toks)]
    def poll(spt, bits, ev, w0, bar, between, VA, VB, S_PT=S_PT):
        addr = [I(f'v_bfe_u32 v{VA}, v{V_L16}, 4, {bits}'), I(f'v_lshlrev_b32 v{VA}, 7, v{VA}')]
        loads = lambda: [I(f'buffer_load_dword v{VB}, v{VA}, {WS}, s{S_PT} offen sc1')]
        check = lambda: [I(f'v_cmp_ne_u32 vcc, s{S_NON}, v{VB}')]
        return addr + spt + loads() + between + [retry_group(loads, check, w0), Ev(ev, bar)]
    def pollh(k, ev, between, VA, VB):
        return poll([I(f's_add_u32 s{S_PT}, s{S_FH}, {k*HS}')], 3, ev, False, False, between, VA, VB)
    def F_nonce():
        q = U(4)[3]
        loads = lambda: [I(f'buffer_load_dword v{q+1}, v{q}, s[{S_OUT}:{S_OUT+3}], 0 offen sc1')]
        check = lambda: [I(f'v_cmp_eq_u32 vcc, 0, v{q+1}')]
        return ([I(f'v_mov_b32 v{q}, 0')] + loads() + [Delay(cfg.get('ndelay', 30)), retry_group(loads, check), I(f'v_readfirstlane_b32 s{S_NON}, v{q+1}'),
                I(f'v_mov_b32 v{q}, s{S_NMS}'), I(f'v_mov_b32 v{q+2}, s{S_RS}'), I(f'v_mov_b32 v{q+3}, v{q+1}'),
                I(f'v_cmp_gt_u32 vcc, 0x80, v{V_L16}'), I(f'v_mov_b32 v8, s{S_OOB}'), Delay(1), I(f'v_cndmask_b32 v8, v8, v{V_L16}, vcc'),
                I(f'buffer_store_dwordx4 {vr(q,4)}, v8, {WS}, s{S_PT} offen sc1'),
                I(f's_mov_b32 s{S_OUT}, s{S_OP}'), I(f's_mov_b32 s{S_OUT+1}, s{S_OP+1}'), I(f's_mov_b32 s{S_OUT+2}, 2359296'), Ev('nonce')])
    def F_setup2():
        C = 71
        L = sgroups(f"""
            s_lshr_b32 s74, s2, 3
            s_and_b32 s73, s74, 3
            s_lshr_b32 s74, s74, 2
            s_and_b32 s75, s2, 4
            s_lshl_b32 s75, s75, 1
            s_add_u32 s74, s74, s75
            s_and_b32 s75, s{S_WAVE}, 3
            s_lshr_b32 s76, s{S_WAVE}, 2
            s_and_b32 s78, s2, 3
            s_lshl_b32 s77, s74, 3
            s_lshl_b32 s79, s75, 1
            s_add_u32 s77, s77, s79
            s_add_u32 s77, s77, s76
            s_lshl_b32 s{S_STK}, s77, 11
            s_lshl_b32 s79, s78, 3
            s_lshl_b32 s{C}, s76, 2
            s_add_u32 s79, s79, s{C}
            s_mul_i32 s79, s79, 5120
            s_add_u32 s79, s79, {A2_OFF}
            s_mul_i32 s{S_A}, s77, {A2_MT}
            s_add_u32 s{S_A}, s{S_A}, s79
            s_xor_b32 s{C}, s77, 1
            s_mul_i32 s{S_A+1}, s{C}, {A2_MT}
            s_add_u32 s{S_A+1}, s{S_A+1}, s79
            s_lshl_b32 s79, s78, 2
            s_add_u32 s79, s79, s73
            s_lshl_b32 s79, s79, 1
            s_add_u32 s79, s79, s76
            s_mul_i32 s79, s79, {W2_S}
            s_lshl_b32 s{C}, s75, 10
            s_add_u32 s79, s79, s{C}
            s_add_u32 s{S_W2}, s79, {W2_OFF}
            s_mul_i32 s79, s76, {W2_S}
            s_sub_u32 s{S_W2K}, s{S_W2}, s79
            s_lshr_b32 s79, s77, 1
            s_lshl_b32 s79, s79, 2
            s_add_u32 s79, s79, s78
            s_lshl_b32 s79, s79, 10
            s_lshl_b32 s{C}, s76, 6
            s_add_u32 s79, s79, s{C}
            s_add_u32 s{S_AL}, s79, {A2L_OFF}
            s_mul_i32 s79, s77, 18432
            s_mul_i32 s{C}, s73, 288
            s_add_u32 s79, s79, s{C}
            s_lshl_b32 s{C}, s78, 6
            s_add_u32 s{S_O}, s79, s{C}
            s_add_u32 s{S_O8}, s79, 256
        """)
        for p in range(1, 4):
            L += sgroups(f"""
            s_add_u32 s79, s78, {p}
            s_and_b32 s79, s79, 3
            s_sub_u32 s79, s79, s78
            s_mul_i32 s79, s79, 24576
            s_add_u32 s79, s79, s{S_EX}
            s_add_u32 s{S_EXS+p-1}, s79, {(3-p)*1024}
            """)
        L += sgroups(f"""
            s_lshr_b32 s79, s2, 2
            s_lshl_b32 s79, s79, 3
            s_add_u32 s79, s79, s{S_WAVE}
            s_lshl_b32 s79, s79, 11
            s_add_u32 s79, s79, {EX8_OFF}
            s_sub_u32 s{C}, s78, s75
            s_sub_u32 s{C}, s{C}, 1
            s_and_b32 s{C}, s{C}, 3
            s_lshl_b32 s{C}, s{C}, 9
            s_add_u32 s79, s79, s{C}
            s_cmp_eq_u32 s78, s75
            s_cselect_b32 s{S_E8S}, s{S_OOB}, s79
            s_cselect_b32 s{S_O8}, s{S_O8}, s{S_OOB}
        """)
        return L + [Ev('setup2')]
    def F_wx(i):
        q = U(4)[3]; a = U(4)[2] + 2
        L = [I(f'v_bfe_u32 v{a}, v{V_L16}, 4, 2'), I(f'v_lshlrev_b32 v{a}, s{S_GP+3+i}, v{a}'),
             I(f'v_and_b32 v{a+1}, 0x3c0, v{V_L16}'), I(f'v_add3_u32 v{a}, v{a}, v{a+1}, s{S_W1K}'),
             I(f'v_add_u32 v{a+1}, {GL[i][1]}, v{a}'), I(f'v_add_u32 v{a}, {GL[i][0]}, v{a}')]
        for hh in range(2):
            L.append(I(f'ds_read_b64_tr_b16 {vr(q+2*hh,2)}, v{a+hh}', waits=[f'sg{i}_0', f'sg{i}_1']))
        L += [Delay(3),
              I(f'v_lshlrev_b32 v{a}, 21, v{V_L16}'), I(f'v_and_b32 v{a}, s{S_OOB}, v{a}'),
              I(f'v_lshrrev_b32 v{a+1}, 2, v{V_L16}'), I(f'v_or_b32 v{a}, v{a}, v{a+1}'),
              mf(V_T, ONES, q),
              I(f'buffer_store_dwordx4 {vr(q,4)}, v{V_L16}, {WS}, s{S_WXD+i} offen sc1', tok=f'wx{i}'),
              I(f's_lshr_b32 s{S_CNT}, s{S_WXD+i}, 3'), I(f's_add_u32 s{S_CNT}, s{S_CNT}, {CSP_OFF - WX_OFF // 8}'),
              I(f'buffer_store_dword v{V_T}, v{a}, {WS}, s{S_CNT} offen sc1', tok=f'wc{i}'), Ev(f'wxst{i}')]
        return L
    def F_csx():
        q = U(4)[2]; d = U(4)[3]
        L = sgroups(f"""
            s_add_u32 s30, s{S_WAVE}, 38
            s_cmp_lt_u32 s{S_WAVE}, 2
            s_cselect_b32 s30, s{S_WAVE}, s30
            s_cselect_b32 s31, 8, 9
            s_mul_i32 s{S_CNT}, s{S_J}, 112
            s_add_u32 s30, s30, s{S_CNT}
            s_lshl_b32 s30, s30, 7
            s_add_u32 s{S_CNT}, s30, {CSP_OFF}
        """)
        L += [I(f'v_lshrrev_b32 v{q}, 8, v{V_L16}'), I(f'v_cmp_gt_u32 vcc, 2, v{q}'), I(f'v_lshlrev_b32 v{q}, s31, v{q}'),
              I(f'v_bfe_u32 v{q+1}, v{V_L16}, 4, 4'), I(f'v_lshl_add_u32 v{q}, v{q+1}, 2, v{q}'), I(f'v_mov_b32 v{q+1}, s{S_OOB}'),
              I(f'v_cndmask_b32 v{q+1}, v{q+1}, v{q}, vcc'), I('s_lshl_b32 s31, 4, s31')]
        for i in range(5):
            L.append(I(f'buffer_load_dword v{d+i if i < 4 else q+2}, v{q if i < 4 else q+1}, {WS}, s{S_CNT} offen sc1'))
            if i < 4: L.append(I(f's_add_u32 s{S_CNT}, s{S_CNT}, s31'))
        return L
    def F_csx2():
        q = U(4)[2]; d = U(4)[3]
        L = [I(f'v_add_f32 v{d}, v{d}, v{d+1}'), I(f'v_add_f32 v{d+2}, v{d+2}, v{d+3}'), I(f'v_add_f32 v{d}, v{d}, v{q+2}'), I(f'v_add_f32 v{d}, v{d}, v{d+2}')]
        L += [I(f'v_mov_b32 v{d+1}, v{d}'), Delay(1), I(f'v_permlane32_swap_b32 v{d}, v{d+1}'), I(f'v_add_f32 v{d}, v{d}, v{d+1}')]
        return L + cswrite(d, 1, q)
    def F_stats(between):
        q = [U(4)[2], U(4)[3]]; a = V_T
        loads = lambda: [I(f'buffer_load_dwordx4 {vr(q[mt],4)}, v{a}, {WS}, s{S_PT} offen offset:{2048*mt} sc1') for mt in range(2)]
        def check():
            return [I(f'v_xor_b32 v{q[mt]+k}, s{S_NON}, v{q[mt]+k}') for mt in range(2) for k in (1, 3)] + \
                   [I(f'v_or3_b32 v{q[0]+1}, v{q[0]+1}, v{q[0]+3}, v{q[1]+1}'), I(f'v_or_b32 v{q[0]+1}, v{q[0]+1}, v{q[1]+3}'), I(f'v_cmp_ne_u32 vcc, 0, v{q[0]+1}')]
        L = [I(f'v_bfe_u32 v{a}, v{V_L16}, 4, 4'), I(f'v_lshlrev_b32 v{a}, 7, v{a}'),
             I(f's_lshl_b32 s{S_PT}, s{S_RB}, 3'), I(f's_add_u32 s{S_PT}, s{S_PT}, s{S_WAVE}'), I(f's_lshl_b32 s{S_PT}, s{S_PT}, 12')]
        return L + loads() + between + [retry_group(loads, check)]
    def F_stats2():
        q = [U(4)[2], U(4)[3]]; a = V_T
        L = [Need('xdone')]
        L += [I(f'v_lshrrev_b32 v{a}, 5, v{a}'), I(f's_add_u32 s{S_CNT}, s{S_W1K}, {MISC}'), I(f'v_add_u32 v{a}, s{S_CNT}, v{a}'),
              I(f'v_cmp_gt_u32 vcc, 0x200, v{V_L16}')]
        for mt in range(2): L += [I(f'ds_write_b32 v{a}, v{q[mt]+2} offset:{512 + 64*mt}')]
        for mt in range(2):
            L += [I(f'v_cvt_pk_bf16_f32 v{q[mt]}, v{q[mt]}, v{q[mt]}'), I(f'v_mul_f32 v{q[mt]+2}, {f2u(K0C):#x}, v{q[mt]+2}'),
                  I(f'v_cndmask_b32 v{BN[mt]}, 0, v{q[mt]}, vcc'), I(f'v_and_b32 v{C0[mt]}, 0xffffff7f, v{q[mt]+2}')]
        return L + [Ev('stats')]
    def F_c1():
        L = [I(f'v_mul_f32 v{C1[mt]}, v{C0[mt]}, v{C0[mt]}') for mt in range(2)]
        L += [I(f'v_mul_f32 v{C1[mt]}, {f2u(0.044715 / (K0C * K0C)):#x}, v{C1[mt]}') for mt in range(2)]
        L += [I(f'v_mul_f32 v{C1[mt]}, v{C1[mt]}, v{C0[mt]}') for mt in range(2)]
        return L
    def F_rpat():
        a, b = V_TH, V_TH + 1
        return [I(f'v_lshrrev_b32 v{a}, 3, v{V_L16}'), I(f'v_xor_b32 v{a}, v{a}, v{V_L16}'), I(f'v_and_b32 v{a}, 0x60, v{a}'),
                I(f'v_and_or_b32 v{a}, v{V_L16}, 16, v{a}'), I(f'v_lshrrev_b32 v{b}, 8, v{V_L16}'), I(f'v_mad_u32_u24 v{a}, v{b}, s{S_LEFT}, v{a}'),
                I(f'v_lshrrev_b32 v{b}, 7, v{V_L16}'), I(f'v_mul_u32_u24 v{b}, 1152, v{b}'), I(f'v_add_u32 v{a}, v{a}, v{b}'), Ev('rpat')]
    def F_dmah(VA, VB):
        return [I(f'v_bfe_u32 v{VA}, v{V_L16}, 6, 2'), I(f'v_lshrrev_b32 v{VB}, 8, v{V_L16}'), I(f'v_lshl_add_u32 v{VA}, v{VB}, 3, v{VA}'),
                [I(f's_and_b32 s{S_CNT}, s{S_WAVE}, 1'), I(f's_lshl_b32 s{S_CNT}, s{S_CNT}, 2'), I(f's_and_b32 s30, s{S_WAVE}, 2'),
                 I('s_lshl_b32 s30, s30, 4'), I(f's_add_u32 s{S_CNT}, s{S_CNT}, s30')],
                I(f'v_add_u32 v{VA}, s{S_CNT}, v{VA}'), I(f'v_mul_u32_u24 v{VA}, 9216, v{VA}'),
                I(f'v_lshlrev_b32 v{VB}, 5, v{VB}'), I(f'v_xor_b32 v{VB}, v{VB}, v{V_L16}'), I(f'v_and_b32 v{VB}, 0x30, v{VB}'),
                I(f's_lshl_b32 s{S_CNT}, s{S_J}, 8'), I(f'v_add3_u32 v{V_DMA}, v{VA}, v{VB}, s{S_CNT}'), Ev('dmah')]
    def F_trh():
        return [Need('rissued'), I(f'v_and_b32 v{V_TH}, 0x3c0, v{V_L16}'), I(f'v_bfe_u32 v{V_TH+1}, v{V_L16}, 8, 1'), I(f'v_lshl_add_u32 v{V_TH}, v{V_TH+1}, 5, v{V_TH}'),
                I(f'v_bfe_u32 v{V_TH+1}, v{V_L16}, 4, 2'), I(f'v_lshl_add_u32 v{V_TH}, v{V_TH+1}, 3, v{V_TH}'), I(f'v_xor_b32 v{V_TH+1}, 32, v{V_TH}'), Ev('trh')]
    def F_relayout(qd, VA, VB):
        L = [I(f'v_bfe_u32 v{VA}, v{V_L16}, 6, 4'), I(f'v_lshlrev_b32 v{VA}, 7, v{VA}'), I(f'v_bfe_u32 v{VB}, v{V_L16}, 7, 2'),
             I(f'v_lshl_add_u32 v{VA}, v{VB}, 5, v{VA}'), I(f'v_bfe_u32 v{VB}, v{V_L16}, 4, 2'), I(f'v_lshl_add_u32 v{VA}, v{VB}, 3, v{VA}'),
             [I(f's_and_b32 s{S_CNT}, s{S_WAVE}, 3'), I(f's_lshl_b32 s{S_CNT}, s{S_CNT}, 5'), I(f's_and_b32 s30, s{S_W1K}, 0x1000'),
              I(f's_or_b32 s{S_CNT}, s{S_CNT}, s30')],
             I(f'v_xor_b32 v{VA}, s{S_CNT}, v{VA}')]
        def rd(i):
            o = slot_of(IT_R + i) * SLOT; q = qd[i % 2]
            assert o + 2048 < 65536
            return [I(f'ds_read_b64_tr_b16 {vr(q,2)}, v{VA} offset:{o}'), I(f'ds_read_b64_tr_b16 {vr(q+2,2)}, v{VA} offset:{o+2048}')]
        def sto(i): return I(f'buffer_store_dwordx4 {vr(qd[i % 2],4)}, v{V_L16}, {WS}, s{S_RDST+i} offen sc1', tok=f'w2a{i}')
        return L + [Need('rland')] + rd(0) + rd(1), [[sto(0)] + rd(2), [sto(1)], [sto(2), Ev('rdone')]]
    def F_poison(q):
        L = [I(f'v_mov_b32 v{q+r}, -1') for r in range(4)]
        S_ = [I(f'buffer_store_dwordx4 {vr(q,4)}, v{V_L16}, {WS}, s{S_EX} offen offset:{1024*p} sc1', tok=f'po{p}') for p in range(3)]
        L += [I(f'v_lshrrev_b32 v{q+4}, 1, v{V_L16}')]
        S_ += [I(f'buffer_store_dwordx2 {vr(q,2)}, v{q+4}, {WS}, s{S_E8P} offen sc1', tok='po3')]
        return L, S_ + [Ev('podone')]
    def E_qkv():
        qa, qb = U(4)[2], U(4)[3]
        VA, VB, VC, VD = qb, qb + 1, qb + 2, qb + 3
        L = []
        L += [I(f'v_lshrrev_b32 v{V_A}, 4, v{V_L16}'), I(f'v_and_b32 v{V_A}, 0x30, v{V_A}'), I(f's_add_u32 s{S_CNT}, s{S_W1K}, {MISC}'),
              I(f'v_add_u32 v{V_A}, s{S_CNT}, v{V_A}'),
              I(f'ds_read_b128 {vr(qa,4)}, v{V_A} offset:512'), I(f'ds_read_b128 {vr(qb,4)}, v{V_A} offset:576')]
        for mt in range(2): L.append(I(f'v_mul_f32 v{V_T+mt}, {f2u(1.0/K0C):#x}, v{C0[mt]}'))
        for mt in range(2): L += [I(f'v_mul_f32 v{T0[mt]+r}, v{T0[mt]+r}, v{V_T+mt}') for r in range(4)]
        for mt in range(2):
            for T in (T1, T2, T3):
                L += [I(f'v_mul_f32 v{T[mt]+r}, v{T[mt]+r}, v{(qa, qb)[mt]+r}') for r in range(4)]
        L += pack2(T2[0], T2[0], T2[1])
        L += pack2(T2[1], T3[0], T3[1])
        L.append(I(f'v_mov_b32 v{VB}, 0x3f803f80'))
        L.append(I(f'v_add_u32 v{VA}, s{S_W1K}, v{V_L16}'))
        for r in range(4): L.append(I(f'v_cndmask_b32 v{T2[1]+r}, v{T2[1]+r}, v{VB}, s[{S_M4}:{S_M4+1}]'))
        L += phi_quad(T1[0]) + phi_quad(T1[1]) + pack2(T1[0], T1[0], T1[1])
        L += phi_quad(T3[0]) + phi_quad(T3[1]) + pack2(T3[0], T3[0], T3[1])
        L.append(I(f'v_add_u32 v{VA}, {SCR}, v{VA}'))
        L.append(I(f'v_bfe_u32 v{VC}, v{V_L16}, 6, 2'))
        L.append(mf(T1[1], T1[0], T2[0]))
        L.append(mf(T3[1], T1[0], T2[1]))
        L.append(I(f'ds_write_b128 v{VA}, {vr(T3[0],4)}'))
        L.append(I(f'v_lshlrev_b32 v{VC}, 8, v{VC}'))
        L.append(I(f'v_bfe_u32 v{VB}, v{V_L16}, 4, 2'))
        L.append(mf(T1[0], T3[0], T2[0]))
        L.append(I(f'v_lshl_add_u32 v{VC}, v{VB}, 1, v{VC}'))
        L.append(I(f'v_add_u32 v{VC}, s{S_W1K}, v{VC}'))
        L.append(mf(T2[0], T3[0], T2[1]))
        L.append(I(f'v_add_u32 v{VC}, {SCR}, v{VC}'))
        L.append(I(f'v_bfe_u32 v{VD}, v{V_L16}, 8, 2'))
        for mt in range(2):
            L.append(I(f'ds_read_u16 v{qa+2*mt}, v{VC} offset:{4*16 + mt*8}'))
            L.append(I(f'ds_read_u16 v{qa+2*mt+1}, v{VC} offset:{5*16 + mt*8}'))
        L.append(I(f'ds_write_b128 v{VA}, {vr(T1[1],4)}', tok='kva0'))
        L.append(I(f'v_bfe_u32 v{VB}, v{V_L16}, 4, 4'))
        L.append(I(f'v_mad_u32_u24 v{VA}, v{VD}, 3, v{VB}'))
        L.append(I(f'v_lshlrev_b32 v{VA}, 4, v{VA}'))
        L.append(I(f'v_mov_b32 v{VC}, 0xc0'))
        L.append(I(f'v_cmp_gt_u32 vcc, 3, v{VB}'))
        L.append(I(f'v_lshlrev_b32 v{VB}, 4, v{VB}'))
        L.append(I(f'v_cndmask_b32 v{VA}, v{VC}, v{VA}, vcc'))
        L.append(I(f'v_add_u32 v{VB}, 0x100, v{VB}'))
        L.append(I(f's_add_u32 s{S_CNT}, s{S_W1K}, {MISC}'))
        L.append(I(f'v_cndmask_b32 v{VB}, v{VC}, v{VB}, s[{S_G2}:{S_G2+1}]'))
        L.append(I(f'v_add_u32 v{VA}, s{S_CNT}, v{VA}'))
        L.append(I(f'v_add_u32 v{VB}, s{S_CNT}, v{VB}'))
        L.append(I(f'ds_write_b128 v{VA}, {vr(T3[1],4)}', tok='kva1'))
        L.append(I(f'ds_write_b64 v{VB}, {vr(T1[0],2)}', tok='kva2'))
        L.append(I(f'ds_write_b64 v{VB}, {vr(T2[0],2)} offset:8', tok='kva3'))
        L.append(Ev('qkvdone'))
        return L
    def E_q():
        qa = U(4)[2]; L = []
        for mt in range(2):
            L += phi_quad(T0[mt])
            L += [I(f'v_cvt_pk_bf16_f32 v{T0[mt]}, v{T0[mt]}, v{T0[mt]+1}'), I(f'v_cvt_pk_bf16_f32 v{T0[mt]+1}, v{T0[mt]+2}, v{T0[mt]+3}'),
                  I(f'v_lshl_or_b32 v{T0[mt]+2}, v{qa+2*mt+1}, 16, v{qa+2*mt}'), I(f'v_mov_b32 v{T0[mt]+3}, 0')]
        return L + [Ev('qdone')]
    G = T1[0]
    def sum8(g, s):
        return [I(f'v_add_f32 v{g}, v{g}, v{g+s}'), I(f'v_add_f32 v{g+2*s}, v{g+2*s}, v{g+3*s}'), I(f'v_add_f32 v{g+4*s}, v{g+4*s}, v{g+5*s}'),
                I(f'v_add_f32 v{g+6*s}, v{g+6*s}, v{g+7*s}'), I(f'v_add_f32 v{g}, v{g}, v{g+2*s}'), I(f'v_add_f32 v{g+4*s}, v{g+4*s}, v{g+6*s}'),
                I(f'v_add_f32 v{g}, v{g}, v{g+4*s}')]
    def F_publish(between):
        VA = V_A
        L = [I(f'v_lshrrev_b32 v{VA}, 2, v{V_L16}'), I(f'v_add_u32 v{VA}, s{S_RED}, v{VA}')]
        for p in range(8): L.append(I(f'ds_read_b32 v{G+p}, v{VA} offset:{1024*p}'))
        L += between + sum8(G, 1)
        L += [I(f'v_mov_b32 v{G+1}, s{S_NON}'), I(f'v_lshrrev_b32 v{VA}, 1, v{V_L16}'),
              I(f'buffer_store_dwordx2 {vr(G,2)}, v{VA}, {WS}, s{S_KVST} offen sc1'), Ev('published')]
        L += [I(f'v_mov_b32 v{T1[0]+r}, 0x3f803f80') for r in range(4)] + [Ev('ones2')]
        return L
    G2 = XF(0, 0); VK = XF(2, 0)
    def kv_loads():
        L = []
        for p in range(8):
            t = ftmp()
            L.append(I(f's_add_u32 s{t}, s{S_KVLD}, {3072*p}'))
            L.append(I(f'buffer_load_dwordx2 {vr(G2+2*p,2)}, v{VK}, {WS}, s{t} offen sc1'))
        return L
    def kv_check():
        L = [I(f'v_xor_b32 v{G2+2*p+1}, s{S_NON}, v{G2+2*p+1}') for p in range(8)]
        L += [I(f'v_or3_b32 v{G2+1}, v{G2+1}, v{G2+3}, v{G2+5}'), I(f'v_or3_b32 v{G2+7}, v{G2+7}, v{G2+9}, v{G2+11}'),
              I(f'v_or3_b32 v{G2+1}, v{G2+1}, v{G2+13}, v{G2+15}'), I(f'v_or_b32 v{G2+1}, v{G2+1}, v{G2+7}'),
              I(f'v_cmp_ne_u32 vcc, 0, v{G2+1}')]
        return L
    def F_kvload(): return [I(f'v_lshrrev_b32 v{VK}, 1, v{V_L16}')] + kv_loads()
    def F_gather():
        g = retry_group(kv_loads, kv_check)
        L = g[:12] + [g[12:]] + sum8(G2, 2)
        L += [I(f'v_lshrrev_b32 v{VK+1}, 2, v{V_L16}'), I(f's_lshr_b32 s{S_CNT}, s{S_W1K}, 2'), I(f's_add_u32 s{S_CNT}, s{S_CNT}, {KVS}'), I(f'v_add_u32 v{VK+1}, s{S_CNT}, v{VK+1}'),
              I(f'ds_write_b32 v{VK+1}, v{G2}', tok='kvb0'), Ev('gathered')]
        return L
    def F_o():
        E0, E1, P2, X_ = U(2)
        t = V_T
        L = [I(f'v_add_u32 v{t}, {KVS}, v{V_L16}'), I(f'v_bfe_u32 v{t+1}, v{V_L16}, 8, 2'),
             I(f'ds_read_b128 {vr(E0,4)}, v{t}'),
             I(f'v_bfe_u32 v{t+2}, v{V_L16}, 4, 2'), I(f'v_mad_u32_u24 v{t+1}, v{t+1}, 3, v{t+2}'),
             I(f'v_lshlrev_b32 v{t+1}, 4, v{t+1}'), I(f'v_add_u32 v{t+1}, {KVS}, v{t+1}'),
             I(f'ds_read_b128 {vr(E1,4)}, v{t+1} offset:1024'),
             I(f'v_and_b32 v{t+3}, 0xf0, v{V_L16}'), I(f'v_add_u32 v{t+3}, {KVS}, v{t+3}'),
             I(f'ds_read_b64 {vr(P2,2)}, v{t+3} offset:1280'),
             I(f'v_and_b32 v{t+2}, 0x30, v{V_L16}'), I(f'v_add_u32 v{t+2}, {KVS}, v{t+2}'),
             I(f'ds_read_b64 {vr(P2+2,2)}, v{t+2} offset:1288')]
        for mt in range(2): L.append(I(f'v_mul_f32 v{X_+mt}, {f2u(1.0/K0C):#x}, v{C0[mt]}'))
        for mt in range(2): L.append(I(f'v_mul_f32 v{X_+mt}, v{X_+mt}, v{X_+mt}'))
        L += [I(f'v_lshrrev_b32 v{X_+2}, 1, v{V_L16}'), I(f'v_lshrrev_b32 v{X_+3}, 2, v{V_L16}'), Delay(1)]
        for E, c in ((E0, 0), (E1, 2)):
            L.append(I(f'v_cvt_pk_bf16_f32 v{E}, v{E}, v{E+1}'))
            L.append(I(f'v_cvt_pk_bf16_f32 v{E+1}, v{E+2}, v{E+3}'))
            L.append(I(f'v_cvt_pk_bf16_f32 v{E+2}, v{P2+c}, v{P2+c+1}'))
            L.append(I(f'v_mov_b32 v{E+3}, 0'))
        for E in (E0, E1): L.append(I(f'v_cndmask_b32 v{E+2}, 0, v{E+2}, s[{S_G2}:{S_G2+1}]'))
        L.append(Ev('scrfree'))
        D0 = [ACC(3, 0, 0), ACC(3, 0, 1)]; D1 = [ACC(3, 1, 0), ACC(3, 1, 1)]
        L += [I(f'v_mov_b32 v{P2}, s{S_OOB}'), I(f'v_cmp_gt_u32 vcc, 0x80, v{X_+3}')]
        for mt in range(2):
            L.append(mf(D1[mt], E1, T0[mt])); L.append(mf(D0[mt], E0, T0[mt]))
        L += [I(f'v_cndmask_b32 v{X_+3}, v{P2}, v{X_+3}, vcc'), I(f'v_cmp_gt_u32 vcc, 0x100, v{V_L16}')]
        for mt in range(2): L.append(I(f'v_add_f32 v{D1[mt]+2}, s{S_EPS}, v{D1[mt]+2}'))
        for mt in range(2): L.append(I(f'v_mul_f32 v{D1[mt]+2}, v{D1[mt]+2}, v{X_+mt}'))
        for mt in range(2): L.append(I(f'v_rcp_f32 v{D1[mt]+2}, v{D1[mt]+2}'))
        for mt in range(2):
            for r in range(4): L.append(I(f'v_mul_f32 v{D0[mt]+r}, v{D0[mt]+r}, v{D1[mt]+2}'))
            for r in (0, 1): L.append(I(f'v_mul_f32 v{D1[mt]+r}, v{D1[mt]+r}, v{D1[mt]+2}'))
            L.append(I(f'v_cvt_pk_bf16_f32 v{D0[mt]}, v{D0[mt]}, v{D0[mt]+1}'))
            L.append(I(f'v_cvt_pk_bf16_f32 v{D0[mt]+1}, v{D0[mt]+2}, v{D0[mt]+3}'))
            L += hstore(D0[mt], 2, mt, 4, 512, X_ + 2)
            L.append(I(f'v_cvt_pk_bf16_f32 v{D1[mt]}, v{D1[mt]}, v{D1[mt]+1}'))
        L.append(I(f'v_cndmask_b32 v{D1[0]}, v{D1[1]}, v{D1[0]}, vcc'))
        L.append(I(f'buffer_store_dword v{D1[0]}, v{X_+3}, {WS}, s{S_A2L} offen {HST}', tok='ol'))
        L.append(Ev('odone'))
        return L
    def F_p2setup():
        return [I(f'v_bfe_u32 v{VSP+3}, v{V_L16}, 4, 4'), I(f'v_mul_u32_u24 v{VSP}, 1152, v{VSP+3}'), I(f'v_lshrrev_b32 v{VSP+1}, 8, v{V_L16}'),
                I(f'v_lshl_add_u32 v{VSP}, v{VSP+1}, 3, v{VSP}'),
                I(f'v_and_b32 v{VSP+2}, 0x300, v{V_L16}'), I(f'v_lshl_add_u32 v{VSP+2}, v{VSP+3}, 2, v{VSP+2}'), I(f'v_lshlrev_b32 v{VSP+3}, 7, v{VSP+3}'),
                I(f'v_mov_b32 v{V_AL+2}, 0'), I(f'v_mov_b32 v{V_AL+3}, 0'), Ev('p2setup')]
    p2slots = {slot_of(IT_W2 + k) for k in range(37, 48)}
    free = [s for s in range(NSLOT) if s not in p2slots]
    assert len(free) == 8
    def F_cwrite():
        L = [I(f'v_add_u32 v12, s{S_W1K}, v{V_L16}'), I(f'v_add_u32 v13, {12*SLOT}, v12'), I(f'v_add_u32 v14, {6*SLOT}, v12')]
        return L
    def cmb(k):
        s_ = free[k]
        return (12, s_ * SLOT) if s_ < 6 else ((14, (s_ - 6) * SLOT) if s_ < 12 else (13, (s_ - 12) * SLOT))
    def F_cw2():
        L = []
        for lt in range(2, 9):
            r_, o_ = cmb(lt - 2)
            L.append(I(f'ds_write_b128 v{r_}, {vr(ACC2(lt,1),4)} offset:{o_}', tok=f'cw{lt}'))
        return L + [I(f'v_xor_b32 v{r_}, 0x1000, v{r_}') for r_ in (12, 13, 14)]
    RB_ = [acc1[9], acc1[11], acc1[13]]
    def F_send():
        L = []
        def rd(lt, q):
            r_, o_ = cmb(lt - 2)
            return I(f'ds_read_b128 {vr(q,4)}, v{r_} offset:{o_}')
        def ad(lt, q): return [I(f'v_add_f32 v{ACC2(lt,0)+r}, v{ACC2(lt,0)+r}, v{q+r}') for r in range(4)]
        L += [rd(2, RB_[0]), rd(3, RB_[1]), rd(4, RB_[2]), Delay(2)]
        nxt = 5
        for p in range(1, 4):
            for lt in (2*p, 2*p+1):
                q = RB_[(lt - 2) % 3]
                L += ad(lt, q)
                if nxt <= 8: L.append(rd(nxt, q)); nxt += 1
            a, b = ACC2(2*p, 0), ACC2(2*p+1, 0)
            L += pack2(a, a, b)
            L += [I(f'v_min_u32 v{a+r}, -2, v{a+r}') for r in range(4)]
            L.append(I(f'buffer_store_dwordx4 {vr(a,4)}, v{V_L16}, {WS}, s{S_EXS+p-1} offen sc1'))
        L += ad(8, RB_[0])
        a = ACC2(8, 0); q = RB_[1]
        L += [I(f'v_cvt_pk_bf16_f32 v{q}, v{a}, v{a+1}'), I(f'v_cvt_pk_bf16_f32 v{q+1}, v{a+2}, v{a+3}'),
              I(f'v_min_u32 v{q}, -2, v{q}'), I(f'v_min_u32 v{q+1}, -2, v{q+1}'),
              I(f'buffer_store_dwordx2 {vr(q,2)}, v{V_L8}, {WS}, s{S_E8S} offen sc1'), Ev('sent')]
        return L

    memq = []
    def mq(step, evs, mk, item=None, by=None, ordr=None): memq.append(dict(step=step, ev=evs, mk=mk, item=item, by=by, ordr=ordr))
    def xstep(ks): return SO[('S1', ks) if ks < K1 else ('S1a', ks)]
    n0 = NPRE
    for k in range(PS, len(stg)):
        for h in range(2): mq(0, [f'srd{k-NR}'] if k >= NR else [], (lambda k=k, h=h: sdma(k, h)), ordr='s')
        if n0 < IT_Q:
            mq(0, [], (lambda n=n0: dma(n)), n0, ordr='w'); n0 += 1
        if GPOS <= k < GPOS + 4: mq(0, [], (lambda g=k-GPOS: gdma(g >> 1, g & 1)), ordr='g')
    for n in range(n0, IT_Q): mq(0, [], (lambda n=n: dma(n)), n, ordr='w')
    for n in range(IT_Q, IT_X + 3): mq(0, ['wxok', 'rxinit'], (lambda n=n: dma(n)), n, ordr='s')
    for n in range(IT_R, IT_SCR): mq(0, ['rpat'], (lambda n=n: dma(n)), n)
    for n in range(IT_X + 3, IT_R): mq(0, ['wxok', 'rxinit'], (lambda n=n: dma(n)), n, ordr='s')
    for n in range(IT_L1, IT_W2): mq(0, ['dmah'], (lambda n=n: dma(n)), n, ordr='w')
    TORD = [0, 1, 2, 4, 3]
    def aload(sp, mt, half=None):
        t = stmp(); off = ((sp & 3) * 5 + TORD[sp >> 2]) * 1024
        if half is not None:
            off += half * 512
            return [I(f's_add_u32 s{t}, s{S_A + mt}, {off & ~4095}'),
                    I(f'buffer_load_dwordx2 {vr(AF(sp, mt) + 2 * half, 2)}, v{V_L8}, {WS}, s{t} offen offset:{off & 4095} sc1')]
        return [I(f's_add_u32 s{t}, s{S_A + mt}, {off & ~4095}'),
                I(f'buffer_load_dwordx4 {vr(AF(sp, mt), 4)}, v{V_L16}, {WS}, s{t} offen offset:{off & 4095} sc1')]
    def xfree_step(ks):
        return (SO[('S4c', ks)] if ks < K4 else SO[('S4e', ks)]) + 1
    w2n = IT_W2
    VX = 8
    for sp in range(21):
        while w2n <= IT_W2 + ((sp * 7 + 6) >> 2):
            mq(0, ['w2ok', 'setup2'], (lambda n=w2n: dma(n)), w2n); w2n += 1
        if sp < 20:
            ev = [['h4ok'], ['h4ok'], ['h5ok'], ['h6ok', 'l8'], ['h7ok']][sp >> 2]
            if sp < 3: ev = ev + ['gathered']
            if sp >= 17: ev = ev + ['e3done']
            for mt in range(2):
                for half in ([None] if TORD[sp >> 2] != 4 else [0, 1]):
                    mq(xfree_step(sp) if sp < 17 else 0, ev + ['setup2'], (lambda sp=sp, mt=mt, half=half: aload(sp, mt, half)), by=SO[('P1', sp)])
        if sp == 15:
            for k in range(2):
                mq(0, ['h6ok', 'p2setup'], (lambda k=k: [I(f'buffer_load_dword v{V_AL+k}, v{VSP+2}, {WS}, s{S_AL} offen offset:{128*k} sc1')]), by=SO[('P1', 20)])
    for n in range(w2n, NITEM): mq(0, [], (lambda n=n: dma(n)), n)
    for mk in (lambda: [I(f'buffer_load_dwordx2 {vr(8,2)}, v{VSP}, {XS}, s{S_O} offen')],
               lambda: [I(f'buffer_load_dwordx2 {vr(10,2)}, v{VSP}, {XS}, s{S_O} offen offset:32')],
               lambda: [I(f'buffer_load_dwordx2 {vr(0,2)}, v{VSP}, {XS}, s{S_O8} offen')],
               lambda: [I(f'buffer_load_dword v15, v{VSP+3}, {WS}, s{S_STK} offen offset:8 sc1')]):
        mq(0, ['h7ok', 'p2setup'], mk, by=SO[('P2', 10)])

    KP = tuple(cfg.get('kp', ('S4a', K3 + 5))); KO = tuple(cfg.get('ko', ('S4d', K4 + 3)))
    WXF = ('S1', cfg.get('wxf', 10)); RS = ('S3', cfg.get('rs', 5)); F3F = KP
    barspec = cfg.get('bars', None) or (
        [('S1', 1), WXF] + [('S1', k) for k in range(0, K1, cfg.get('s1b', 1))] + [('S1a', K1), ('S1b', K1), ('S1d', K1 + 1), ('S2', 0), ('S2', 9), ('S3', 0), RS, ('S3', 11), ('S4b', K3 + 4),
         ('S4', 0), ('S4', 5), KP, ('S4b', K3), ('S4c', 0), ('S4c', 4), KO, ('S4e', K4), ('S4e', K4 + 5)]
        + [('P1', k) for k in range(0, 21, 3)] + [('P2', 0), ('P2', 2), ('P2', 10)])
    bars = sorted(set(SO[tuple(b)] for b in barspec))
    need = {}
    for bi, b in enumerate(bars):
        lo = first_frag[b] + (D if bi else 0)
        hi = first_frag[bars[bi + 1]] + D if bi + 1 < len(bars) else NF
        need[b] = sorted({frags[i]['item'] for i in range(lo, min(hi, NF))} - {None})
    last_use = {}
    for f in frags:
        if f['item'] is not None: last_use[f['item']] = f['step']
    need[SO[RS]] = sorted(set(need[SO[RS]]) | {IT_R, IT_R + 1, IT_R + 2})
    rel_ev = {IT_R: 'rdone', IT_R + 1: 'rdone', IT_R + 2: 'rdone', IT_SCR: 'scrfree', 'stage': 'xdone', 'gst': 'wxst1'}
    released = set()
    issued = {n: -1 for n in range(NPRE)}
    events['srd0'] = events['srd1'] = -9
    q2, q3 = U(4)[2], U(4)[3]
    def spread(main, items, start, step):
        o = {}
        for k, x in enumerate(items): o.setdefault(min(start + k * step, len(main) - 1), []).extend(x if isinstance(x, list) else [x])
        L = []
        for k, x in enumerate(main):
            if k in o: L += o[k]
            L.append(x)
        return L
    avail = {}
    def at(step, f): avail.setdefault(SO[step], []).append(f)
    xrd = {}
    for L_ in range(1, 9):
        xrd.setdefault(min(xstep(2 * L_) - 1, SO[('S1', K1 - 1)]), []).append(L_)
    DL = cfg.get('dl', 36); S_RSRC2 = S_RDST
    at(('S1', 0), lambda: F_nonce())
    at(('S1', 1), lambda: [Need('gl0')] + F_wx(0) + [Need('gl1')] + F_wx(1))
    at(WXF, lambda: setflag(S_F2S, 0, [], q3, q3 + 1))
    at(('S1', cfg.get('stat', 11)), lambda: F_stats([Delay(DL)]))
    at(('S1', cfg.get('wxp', 13)), lambda: poll([I(f's_mov_b32 s{S_PT}, s{S_F2P}')], 3, 'wxok', False, True, [Delay(cfg.get('dlw', 28))], V_T + 1, V_T + 2) + F_stats2())
    at(('S1b', K1), lambda: [Need('wxok')] + F_csx() + F_c1())
    at(('S1b', K1 + 2), lambda: E_first(0)[:50] + F_csx2() + [Ev('csx')] + E_first(0)[50:])
    po = F_poison(ACC(0, 1, 0))
    at(('S1c', K1), lambda: po[0] + spread(E_second(0, 1, 0) + [Ev('u01free')], po[1], 4, 14))
    rl = F_relayout([ACC(2, 1, 0), ACC(2, 1, 1)], V_A, V_TH + 1)
    at(('S2', 0), lambda: E_first(2) + rl[0] + spread(E_second(2, 3, 1) + [Ev('u23free')], rl[1], 10, 16))
    at(('S3', 0), lambda: F_trh() + E_quarter(4) + [Ev('u4free')] + [I(f'v_mov_b32 v{ONES+r}, 0x3f803f80') for r in range(4)] + [Ev('ones1')])
    at(('S4', 0), lambda: setflag(S_FL, 0, ['h0_0_0', 'h0_1_0', 'h1_0_0', 'h1_1_0'], q3, q3 + 1) + setflag(S_F3S, 0, [], q3, q3 + 1)[5:] + E_qkv())
    at(KP, lambda: pollh(0, 'h4ok',
        poll([I(f's_lshl_b32 s{S_RSRC2}, s{S_W1K}, 2'), I(f's_add_u32 s{S_RSRC2}, s{S_RSRC2}, {F3_OFF}')], 5, 'w2ok', False, True,
             F_publish([Delay(3)]) + E_q()[:16], q3 + 2, q3 + 3, S_RSRC2), q3, q3 + 1) + E_q()[16:] + [Ev('u4free2')])
    at(('S4b', K3 + 2), lambda: E_first(2) + [Ev('e2b')])
    at(('S4c', 0), lambda: E_second(2, 3, 2)[:36])
    at(('S4c', 3), lambda: F_kvload() + E_second(2, 3, 2)[36:] + [Ev('e2done')] + F_gather())
    at(KO, lambda: F_o())
    at(('S4e', K4 + 2), lambda: setflag(S_FL, HS, ['h2_0_0', 'h2_1_0'], V_A, V_DMA) + E_first(4) + [Ev('e4a')])
    at(('P1', 0), lambda: [I(f'v_lshrrev_b32 v{V_L8}, 1, v{V_L16}'), Ev('l8')] + E_second(4, 1, 3)[:36]
       + setflag(S_FL, 2*HS, ['h4_0_0', 'h4_1_0', 'h4_0_512', 'h4_1_512', 'ol'], 3, 6)
       + pollh(1, 'h5ok', E_second(4, 1, 3)[36:] + [Ev('e3done')], 3, 6) + F_p2setup())
    at(('P1', cfg.get('p6', 5)), lambda: pollh(2, 'h6ok', [Delay(28)], 3, 6))
    at(('P1', cfg.get('f7', 8)), lambda: setflag(S_FL, 3*HS, ['h3_0_0', 'h3_1_0'], 3, 6))
    at(('P1', cfg.get('p7', 11)), lambda: pollh(3, 'h7ok', [Delay(28)], 3, 6) + F_cwrite() + [Ev('cwa')])
    at(('P2', 2), lambda: F_send())
    front = {SO[('S2', 0)]: lambda: F_rpat() + [Need('l0issued')] + F_dmah(V_DMA, V_TH + 1)}
    inline = {SO[('S1b', K1)]: lambda: cswrite(CSA, 0, ONES), SO[('S4b', K3)]: lambda: cswrite(CSA, 2, ONES), SO[('S4e', K4)]: lambda: cswrite(T1[1], 3, T1[0])}
    must = {('S1b', K1): ['stats'], ('S1d', K1 + 1): ['csx'], WXF: ['wxst1'], ('S3', 0): ['u01free'], ('S3', 17): ['trh'],
            ('S4', 0): ['rdone', 'podone', 'ones1'], KP: ['qkvdone'],
            ('S4c', 0): ['u4free2', 'published', 'ones2', 'e2b'], KO: ['gathered'], ('P1', 0): ['odone', 'e2done', 'e4a'], ('P2', 0): ['cwa']}
    must = {SO[k]: v for k, v in must.items()}
    savail = {SO[('S4', 0)]: lambda: [Need('xissued'), Need('rdone')] + F_setup2()}
    bar_extra = {SO[WXF]: ['wx0', 'wx1', 'wc0', 'wc1'], SO[('S1b', K1)]: ['cs0'], SO[('S1d', K1 + 1)]: ['cs1'],
                 SO[KP]: [f'kva{i}' for i in range(4)], SO[('S4', 0)]: ['w2a0', 'w2a1', 'w2a2'] + [f'po{p}' for p in range(4)],
                 SO[('S4b', K3)]: ['cs2'], SO[KO]: ['kvb0'], SO[('S4e', K4)]: ['cs3'],
                 SO[('P2', 2)]: [f'cw{lt}' for lt in range(2, 9)]}
    for k in bar_extra: assert k in bars, steps[k]

    fill = []; sfill = []; xfill = []
    st.gap = 0; st.delay_until = 0; st.cur = -99; st.ta = 0.0; st.adv = None
    MEMSP = cfg.get('memsp', {})
    def memsp(s): return MEMSP.get(steps[s][0][:2], 4.5)
    def isI(x, kinds): return isinstance(x, I) and x.kind in kinds
    def housekeeping(force=False):
        while fill:
            x = fill[0]
            if isinstance(x, Ev): (pending if x.bar else events)[x.name] = st.gap; fill.pop(0)
            elif isinstance(x, Need):
                if x.name in events: fill.pop(0)
                else:
                    assert not force, ('blocked on', x.name)
                    return False
            elif isinstance(x, Delay):
                if x.n >= 0:
                    st.delay_until = st.gap + x.n; x.n = -1
                if force or st.gap >= st.delay_until: fill.pop(0)
                else: return False
            else: return True
        return False
    def slots(seq):
        t = 0; lastv = -10; first = True
        for x in seq:
            if isinstance(x, Wait): t += 1; continue
            if first: first = False; t = 1; continue
            if x.kind in ('valu', 'trans'):
                t = max(t, 2); t += x.cost; lastv = t - 1
            elif x.kind in ('ds_r', 'ds_w', 'vm_ld', 'vm_st', 'vm_dma'):
                t = max(t, 2, lastv + 3); t += 1
            else: t += x.states()
        return t
    def mem_ready(e, s):
        if e['step'] > s or any(v not in events or events[v] > st.gap - (4 if v.startswith('srd') else 0) for v in e['ev']): return False
        n = e['item']
        if n is not None and prev_of(n) is not None and prev_of(n) not in released: return False
        return True
    leads = {}; sissue = {f's{k}_1': -30 for k in range(PS)}; st.nx = 2
    def pop_mem(s, win=None):
        if sfill and sfill[0] is st.adv:
            if win is None: return None
            return sfill.pop(0)
        blocked = set()
        for k in range(min(win or cfg.get('ooo', 12), len(memq))):
            e = memq[k]
            if e['ordr'] not in blocked and mem_ready(e, s):
                memq.pop(k)
                if e['item'] is not None: issued[e['item']] = st.gap
                if e['by'] is not None: leads.setdefault(e['by'], []).append(st.gap)
                g = e['mk']()
                for x in g:
                    if x.tok and x.tok[0] == 's': sissue[x.tok] = st.gap
                if all(n in issued for n in range(IT_R, IT_SCR)): events.setdefault('rissued', st.gap)
                if all(n in issued for n in range(IT_Q, IT_R)): events.setdefault('xissued', st.gap)
                if all(n in issued for n in range(IT_Q)): events.setdefault('l0issued', st.gap)
                if f's{len(stg)-1}_1' in sissue and 'rxinit' not in events:
                    g = g + [I(f's_mul_i32 s{S_RX}, s{S_RB}, {4096 if ROT else 0}'), I(f's_add_u32 s{S_RX}, s{S_RX}, s{S_W1K}')]
                    events['rxinit'] = st.gap
                if 'sg1_1' in sissue: events.setdefault('gissued', st.gap)
                return g
            if e['ordr']: blocked.add(e['ordr'])
        return None
    def vcost(x, s):
        c = memsp(s)
        if x.op.endswith('x4'): return c
        if x.op.endswith('x2'): return c / 2
        return c / 4
    VM = ('vm_ld', 'vm_st')
    def gap(m, shadow, rd, s, quiet=False):
        st.gap += 1
        budget = 2
        rds = [x for x in rd if x.kind == 'salu']; rdv = [x for x in rd if x.kind == 'valu']; rdm = [x for x in rd if x.kind == 'ds_r']
        head = shadow + rds; val = list(rdv); budget -= len(rdv)
        sal = []; mem = []; fre = []; post = []; later = None
        if not quiet:
            hk = housekeeping()
            fvm = hk and (isI(fill[0], VM) or (isI(fill[0], ('salu',)) and len(fill) > 1 and isI(fill[1], VM)))
            if fvm:
                x = fill[0] if isI(fill[0], VM) else fill[1]
                if st.gap >= st.ta - 2 or not x.op.endswith('x4'):
                    if fill[0] is not x: fre.append(fill.pop(0))
                    mem.append(fill.pop(0))
            while st.nx < 18 and not xfill:
                k = spos[('x', st.nx)]
                if f's{k}_1' in sissue and st.gap - sissue[f's{k}_1'] >= cfg.get('lag', 45):
                    if cfg.get('verbose'): print('   x pair', st.nx, 'early read at gap', st.gap)
                    xfill.extend([xread(st.nx, 0), xread(st.nx, 1), Ev(f'srd{k}')]); st.nx += 1
                else: break
            for i_ in range(2):
                if f'sg{i_}_1' in sissue and st.gap - sissue[f'sg{i_}_1'] >= cfg.get('glag', 60): events.setdefault(f'gl{i_}', st.gap)
            if not mem and xfill and len(rdm) < 2:
                x = xfill.pop(0); mem.append(x)
                while xfill and isinstance(xfill[0], Ev): events[xfill.pop(0).name] = st.gap
            if not mem and st.gap >= st.ta and not (hk and steps[s][0] != 'S1' and any(isI(x, VM) for x in fill[:3])):
                g = pop_mem(s)
                if g:
                    k = [q for q, x in enumerate(g) if x.kind.startswith('vm')][0]
                    fre += [x for x in g[:k] if x.kind != 'nop']; mem.append(g[k])
                    if g[k+1:]: later = g[k+1:]
            big = any(x.kind.startswith('vm') and (x.op.endswith('x4') or x.op.endswith('x2')) for x in mem)
            if not (big and cfg.get('vmq', 1)) and not (fvm and mem):
                if not head and housekeeping() and isI(fill[0], ('salu',)): head.append(fill.pop(0))
                while housekeeping() and isI(fill[0], ('valu', 'trans')) and fill[0].cost <= budget:
                    x = fill.pop(0); budget -= x.cost; val.append(x)
                if budget == 1 and housekeeping() and isI(fill[0], ('trans',)):
                    for k in range(1, min(8, len(fill))):
                        x = fill[k]
                        if not isI(x, ('valu', 'trans')): break
                        if x.kind == 'valu' and not any((x.rd & y.wr) or (x.wr & (y.rd | y.wr)) for y in fill[:k]):
                            val.append(fill.pop(k)); budget -= 1; break
                if not mem:
                    while housekeeping() and isI(fill[0], ('salu',)) and len(sal) < 2 and not (len(fill) > 1 and isI(fill[1], VM)):
                        sal.append(fill.pop(0))
                    while housekeeping() and isI(fill[0], ('ds_r', 'ds_w')) and len(mem) < 2 - len(rdm): mem.append(fill.pop(0))
            for x in mem:
                if x.kind.startswith('vm'): st.ta = max(st.ta, st.gap - 1) + vcost(x, s)
            room = (0 if head else 1) + 2 - len(sal) - len(fre) - len(post)
            pre = []
            while sfill and room > 0:
                x = sfill[0]
                if isinstance(x, Ev): events[x.name] = st.gap; sfill.pop(0); continue
                if isinstance(x, Need):
                    if x.name in events and events[x.name] < st.gap: sfill.pop(0); continue
                    break
                n = len(x) if isinstance(x, list) else 1
                if n > room and (room < 2 or pre): break
                sfill.pop(0); room -= n
                pre.append(x)
            if not head and pre and not isinstance(pre[0], list): head.append(pre.pop(0))
            if not head and fre: head.append(fre.pop(0))
            for x in pre: sal += x if isinstance(x, list) else [x]
        seq = [m] + head + val + sal + fre + rdm + mem + post
        if later: sfill.insert(0, later); st.adv = later
        if not quiet and not mem and housekeeping() and isinstance(fill[0], list): seq += fill.pop(0)
        if len(val) > len(rdv): st.cur = st.gap
        if not quiet:
            mg = MINGAP if st.gap - st.cur < 6 else cfg.get('padq', 5)
            seq += [I('s_nop 0') for _ in range(max(0, mg - slots(seq)))]
        if not quiet:
            if housekeeping() and isI(fill[0], ('mfma',)): seq += gap(fill.pop(0), [], [], s)
        return seq
    def drain_until(evs):
        L = []
        while any(e not in events for e in evs):
            assert fill, evs
            if housekeeping(force=True):
                x = fill.pop(0)
                if isinstance(x, list): L += x
                else: L.append(x)
        if L and cfg.get('verbose'): print('  drained', len(L), 'instrs for', evs)
        return L
    M = []
    def barrier_pre(b):
        L = []
        for n in need[b]:
            while n not in issued:
                g = pop_mem(b - 1, 40)
                assert g, ('item not issuable', n, steps[b], [(e['item'], e['ev'], e['step']) for e in memq[:6]])
                if cfg.get('verbose'): print('  forced issue before', steps[b], 'for item', n)
                L += g
        if cfg.get('verbose'):
            print('bar', steps[b], 'gap', st.gap, 'need', need[b], 'lead', [st.gap - issued[n] for n in need[b]])
        L.append(Wait([f'it{n}' for n in need[b]] + bar_extra.get(b, [])))
        return L
    def barrier_post(b):
        events.update(pending); pending.clear()
        if b == SO[RS]: events['rland'] = st.gap
        for n in list(last_use) + list(rel_ev):
            if n in rel_ev:
                if rel_ev[n] in events: released.add(n)
            elif last_use[n] < b: released.add(n)
    tsph = cfg.get('tsph', ['S2', 'S4', 'S4c', 'P1'])
    for i in range(NF):
        s = frags[i]['step']
        if i == 0:
            M += barrier_pre(0) + [I('s_barrier')] + ts('s1start')
            for k in range(D):
                r0, r1 = reads(k); M += r0 + r1
        if first_frag[s] == i:
            if steps[s] == ('P2', 0): M += F_cw2()
            if s in front:
                k = 0
                while k < len(fill) and (isI(fill[k], ('vm_st', 'vm_ld')) or isinstance(fill[k], Delay)): k += 1
                fill[k:k] = front[s]()
            if s in savail: sfill.extend(savail[s]())
            for f in avail.get(s, []): fill.extend(f())
            for L_ in xrd.get(s, []):
                for p in (2 * L_, 2 * L_ + 1):
                    if p < st.nx: continue
                    st.nx = p + 1
                    k = spos[('x', p)]
                    while f's{k}_1' not in sissue:
                        while xfill:
                            x = xfill.pop(0)
                            if isinstance(x, Ev): events[x.name] = st.gap - 4
                            else: M.append(x)
                        g = pop_mem(s, 40)
                        assert g, ('staging not issuable', k, steps[s])
                        if cfg.get('verbose'): print('  forced staging issue', k, steps[s])
                        M += g
                    if cfg.get('verbose'): print('   x pair', p, 'read at', steps[s], 'lead', st.gap - sissue.get(f's{k}_1', -1))
                    xfill.extend([xread(p, 0), xread(p, 1), Ev(f'srd{k}')])
        if steps[s] == ('S1d', 17) and first_frag[s] == i - 0 and False: pass
        ms = mfmas(i)
        r0, r1 = reads(i + D) if i + D < NF else ([], [])
        ns = frags[i + 1]['step'] if i + 1 < NF else None
        nxt_first = ns is not None and first_frag[ns] == i + 1
        shadow = [Wait(rtoks(i + 1))] if i + 1 < NF else []
        if len(ms) == 2:
            M += gap(ms[0], [], r0, s); lastrd = r1
        else: lastrd = r0 + r1
        if nxt_first:
            if steps[ns][0] in ('S1', 'S1a'):
                while xfill:
                    x = xfill.pop(0)
                    if isinstance(x, Ev): events[x.name] = st.gap
                    else: M.append(x)
            if steps[ns] == ('S1a', K1):
                M.append(Wait([f'sr{len(stg)-1}_1'])); events['xdone'] = st.gap
            if ns in must: M += drain_until(must[ns])
            if ns in inline: M += [x for x in inline[ns]() if isinstance(x, I)]
            while any(e['by'] is not None and e['by'] <= ns for e in memq):
                g = pop_mem(s, 60)
                assert g, ('load not issuable', steps[ns], [(e['item'], e['ev'], e['step']) for e in memq[:8]])
                if cfg.get('verbose'): print('  forced load before', steps[ns])
                M += g
            if cfg.get('verbose') and ns in leads: print('   step', steps[ns], 'gap', st.gap, 'reg-load lead', [st.gap - x for x in leads[ns]])
        if nxt_first and ns in bars:
            M += barrier_pre(ns)
            M += gap(ms[-1], [I('s_barrier')] + shadow, lastrd, s, quiet=True)
            barrier_post(ns)
        else:
            M += gap(ms[-1], shadow, lastrd, s)
        if nxt_first and steps[ns][0] != steps[s][0] and steps[ns][0] in tsph: M += ts(steps[ns][0])
        if nxt_first and list(steps[ns]) in cfg.get('tsat', []): M += ts(f'@{steps[ns][0]}.{steps[ns][1]}')
    assert not memq, [(e['item'], e['ev']) for e in memq]
    M += drain_until(['sent'])
    assert not fill and not sfill, (fill, sfill)
    M += ts('mainend')
    drop = cfg.get('drop', [])
    if drop:
        gone = set(); M2 = []
        for k, x in enumerate(M):
            if isinstance(x, I) and not x.raw and k > 3 and x.kind in drop:
                if x.tok: gone.add(x.tok)
                continue
            M2.append(x)
        for x in M2:
            if isinstance(x, Wait): x.toks = [t for t in x.toks if t not in gone]
            else: x.waits = [t for t in x.waits if t not in gone]
        M = M2
    P.ext(M)
    R = AF(0, 0); R8 = R + 12; TT = AF(3, 0)
    rloads = lambda: ([I(f'buffer_load_dwordx4 {vr(R+4*p,4)}, v{V_L16}, {WS}, s{S_EX} offen offset:{1024*p} sc1') for p in range(3)]
                      + [I(f'buffer_load_dwordx2 {vr(R8+2*p,2)}, v{V_L8}, {WS}, s{S_E8R} offen offset:{512*p} sc1') for p in range(3)])
    P.ext(rloads())
    r7, o7 = cmb(7)
    P(f'v_xor_b32 v{TT+4}, 0x1000, v13')
    P(f'v_xor_b32 v{TT+5}, 0x1000, v{r7}')
    P(f'ds_write_b128 v{TT+4}, {vr(ACC2(0,1),4)} offset:{MISC - 12*SLOT}')
    P(f'ds_write_b128 v{TT+5}, {vr(ACC2(1,1),4)} offset:{o7}')
    P.wait(lg0=True)
    P('s_barrier')
    P(f'ds_read_b128 {vr(ACC2(0,1),4)}, v13 offset:{MISC - 12*SLOT}')
    P(f'ds_read_b128 {vr(ACC2(1,1),4)}, v{r7} offset:{o7}')
    P('s_mov_b32 s24, 0xffff0000')
    P('v_mul_f32 v15, v15, v15')
    def unpk(src):
        P(f'v_lshlrev_b32 v{TT}, 16, v{src}'); P(f'v_and_b32 v{TT+1}, s24, v{src}')
        P(f'v_lshlrev_b32 v{TT+2}, 16, v{src+1}'); P(f'v_and_b32 v{TT+3}, s24, v{src+1}')
    def addpk(dst, src):
        unpk(src)
        for r in range(4): P(f'v_add_f32 v{dst+r}, v{dst+r}, v{TT+r}')
    for lt in range(2):
        for r in range(4): P(f'v_add_f32 v{ACC2(lt,0)+r}, v{ACC2(lt,0)+r}, v{ACC2(lt,1)+r}')
    def rcheck():
        a, b = TT + 6, TT + 7
        L = [I(f'v_max3_u32 v{a}, v{R}, v{R+1}, v{R+2}'), I(f'v_max3_u32 v{b}, v{R+3}, v{R+4}, v{R+5}')]
        for k in range(6, 18, 4):
            L += [I(f'v_max3_u32 v{a}, v{a}, v{R+k}, v{R+k+1}'), I(f'v_max3_u32 v{b}, v{b}, v{R+k+2}, v{R+k+3}')]
        return L + [I(f'v_max_u32 v{a}, v{a}, v{b}'), I(f'v_cmp_eq_u32 vcc, -1, v{a}')]
    P.ext(retry_group(rloads, rcheck))
    P.ext(ts('recv'))
    for lt, so, off, xr, rr in ((0, S_O, 0, 8, lambda p: R+4*p), (1, S_O, 32, 10, lambda p: R+4*p+2), (8, S_O8, 0, 0, lambda p: R8+2*p)):
        a = ACC2(lt, 0)
        for p in range(3): addpk(a, rr(p))
        unpk(xr)
        for r in range(4): P(f'v_fma_f32 v{a+r}, v{a+r}, v15, v{TT+r}')
        P(f'v_cvt_pk_bf16_f32 v{a}, v{a}, v{a+1}'); P(f'v_cvt_pk_bf16_f32 v{a+1}, v{a+2}, v{a+3}')
        P(f'buffer_store_dwordx2 {vr(a,2)}, v{VSP}, s[{S_OUT}:{S_OUT+3}], s{so} offen offset:{off}')
    if TS:
        P('s_waitcnt vmcnt(0)')
        P.ext(ts('end'))
        P('s_memrealtime s[88:89]\ns_waitcnt lgkmcnt(0)')
        for k in range(st.nts): P(f'v_writelane_b32 v8, s{S_TS + k}, {k}')
        P(f"""
        v_writelane_b32 v8, s101, 30
        v_writelane_b32 v8, s88, 31
        v_lshrrev_b32 v9, 2, v{V_L16}
        v_mov_b32 v10, s{S_OOB}
        v_cmp_gt_u32 vcc, 0x80, v9
        v_cndmask_b32 v9, v10, v9, vcc
        s_lshl_b32 s24, s2, 3
        s_add_u32 s24, s24, s{S_WAVE}
        s_lshl_b32 s24, s24, 7
        s_add_u32 s24, s24, {TS_OFF}
        buffer_store_dword v8, v9, {WS}, s24 offen
        """)
    P('L_done:')
    P('s_endpgm')
    q, n = P.finish()
    if cfg.get('verbose'):
        from collections import Counter
        print('nops', n, Counter(x.kind for x in q))
        print('events', events)
    return kernel_text(name, q, 256, 102), st.tsn

HEADER = """; Fused kernel: [QKV | gate/up] GEMM on raw x with LayerNorm applied as a rank-1 correction, linear attention + GEGLU,
; down/out GEMM (split-K 4, exchanged between workgroups) + residual.
; Kernarg (80 bytes): 0 A_x, 8 A_wqkv, 16 A_wo, 24 B_x (unused), 32 w_gate, 40 w_up, 48 w_down, 56 out, 64 debug, 72 ws
; @launch grid=(256,1,1) block=(512,1,1) lds=163840
"""
if __name__ == '__main__':
    out = sys.argv[1]
    cfg = json.loads(sys.argv[2]) if len(sys.argv) > 2 else {}
    name = 'parallel_sum__linear_attn_block__geglu_ffn__prompt_kernel'
    (body, kd), tsn = gen(name, cfg)
    s = HEADER + (f'; ts: {" ".join(tsn)}\n' if tsn else '')
    s += '.amdgcn_target "amdgcn-amd-amdhsa--gfx950"\n.text\n' + body + '.section .rodata,"a"\n.p2align 6\n' + kd
    open(out, 'w').write(s)
```

```python
import sys, json
sys.path.insert(0, 'work')
from dsl import *

OOB = 0x40000000
ST_OFF = 0
CSP_OFF = 0x80000
WX_OFF = 0x240000; WX_J = 112 * 1024
A2_OFF = 0x600000; A2_MT = 160 * 1024
A2L_OFF = 0x1A00000
KVP_OFF = 0x1A40000
EX_OFF = 0x1B00000
EX8_OFF = 0x2200000
W2_OFF = 0x2300000; W2_S = 192 * 1024
F2_OFF = 0x2900000
F3_OFF = 0x2910000
F4_OFF = 0x2920000
TS_OFF = 0x2A00000
FL_OFF = 0x2B00000
WS_SIZE = 0x2C00000
HS = 262144

LDS_BYTES = 163840
NSLOT = 19; SLOT = 8192
MISC = NSLOT * SLOT
IT_L0 = 0; IT_R = 18; IT_Q = 21; IT_X = 26; IT_SCR = 35; IT_L1 = 36; IT_W2 = 54; NW2 = 48
NITEM = IT_W2 + NW2

V_TR = 0; V_TH = 2; V_L16 = 4; V_LB = 5; V_DMA = 6; V_A = 1; V_T = 8; V_WF = 16; V_ACC = 32; V_XF = 112
V_XD = 12; V_XR = 14
BN = [12, 14]; C0 = [13, 15]; C1 = [0, 7]
def XF(ks, mt): return V_XF + (ks * 2 + mt) * 4
def ACC(u, nt, mt): return V_ACC + 16 * u + (nt * 2 + mt) * 4
def U(u): return [V_ACC + 16 * u + 4 * k for k in range(4)]

S_RED = 3
S_W = 4; S_WS = 8; S_R = 12; S_XS = 16; S_OUT = 20
S_T = 24
S_W1K = 32; S_A2 = 33; S_MW = 34; S_L2E = 35; S_EPS = 36; S_W256 = 37; S_OOB = 38; S_WAVE = 39
S_M4 = 40; S_G2 = 42; S_NMS = 44; S_RS = 45; S_KVST = 46; S_KVLD = 47; S_A2L = 48; S_EX = 49; S_E8R = 50
S_FH = 51; S_FL = 52; S_CNT = 53; S_NON = 54; S_F2S = 55; S_F2P = 56; S_F3S = 57; S_PT = 58
S_XN = 59; S_WX = 60; S_XST = 61; S_GP = 62; S_RSRC = 67; S_WXD = 68; S_OP = 70
S_A = 62; S_W2 = 64; S_W2K = 65; S_EXS = 66; S_E8S = 69; S_O = 59; S_O8 = 60; S_AL = 61; S_STK = 70
S_WO = 48; S_WD = 46; S_G1 = 72; S_G0 = 76
S_RDST = 80; S_LEFT = 83; S_RB = 84; S_J = 85; S_RX = 86; S_RW = 87
S_TS = 90

K0C = -2.0 * 0.7978845608028654 * 1.4426950408889634
K1C = K0C * 0.044715

class Ctx: pass
class Ev:
    def __init__(self, name, bar=False): self.name = name; self.bar = bar
class Delay:
    def __init__(self, n): self.n = n
class Need:
    def __init__(self, name): self.name = name

def gen(name, cfg):
    D = cfg.get('dist', 3)
    TS = cfg.get('ts', False)
    SPIN = cfg.get('spin', 100000)
    MINGAP = cfg.get('mingap', 6)
    ROT = cfg.get('rot', [0, 3, 6])
    RT = sum(ROT[k % len(ROT)] << (4 * k) for k in range(16))
    S_ROT = S_NMS
    NR = cfg.get('nr', 5)
    NL0 = NSLOT - 2 * NR
    XST = NL0 * SLOT
    WS = f's[{S_WS}:{S_WS+3}]'
    XS = f's[{S_XS}:{S_XS+3}]'
    P = Prog(); st = Ctx(); st.tmp = 0; st.ft = 0; st.nts = 0; st.lab = 0; st.tsn = []
    def stmp():
        st.tmp = (st.tmp + 1) % 6; return S_T + st.tmp
    def ftmp():
        st.ft = (st.ft + 1) % 2; return S_T + 6 + st.ft
    def ts(nm):
        if not TS or cfg.get('cnt'): return []
        if 'tsat' in cfg and nm not in ('start', 's1start', 'end') and not nm.startswith('@'): return []
        k = st.nts; st.nts += 1; st.tsn.append(nm)
        assert k < 11
        return [I(('s_memrealtime' if cfg.get('rt') else 's_memtime') + ' s[88:89]'), I('s_waitcnt lgkmcnt(0)'), I(f's_mov_b32 s{S_TS+k}, s88')]
    def retry_group(loads, check, w0only=False, sleep=1):
        st.lab += 1; l = st.lab
        g = check()
        if w0only: g += [I(f's_cmp_lg_u32 s{S_WAVE}, 0'), I(f's_cbranch_scc1 L_ok{l}')]
        g += [I('s_nop 4'), I(f's_cbranch_vccz L_ok{l}'), I(f's_mov_b32 s{S_CNT}, {SPIN}'), I(f'L_rt{l}:'), I(f's_sleep {sleep}')]
        if cfg.get('cnt'):
            c_ = S_TS + (l - 1) % 11; g += [I(f's_add_u32 s{c_}, s{c_}, {1 if l <= 11 else 1000}')]
        g += raw(loads() + [I('s_waitcnt vmcnt(0)')] + check())
        g += [I(f's_sub_u32 s{S_CNT}, s{S_CNT}, 1'), I(f's_cmp_eq_u32 s{S_CNT}, 0'), I(f's_cbranch_scc1 L_ok{l}'), I('s_nop 4'),
              I(f's_cbranch_vccnz L_rt{l}'), I(f'L_ok{l}:')]
        return g
    def IL(txt): return [I(l) for l in txt.strip().split('\n') if l.strip()]
    NLR = 6
    cyc = list(range(9, 19)) + [6, 7, 8] + list(range(6))
    stab = [n % NLR for n in range(18)] + [(NLR + k) % NSLOT for k in range(NSLOT)] + [cyc[k % NSLOT] for k in range(NITEM)]
    def slot_of(n): return stab[n]
    def prev_of(n):
        for m in range(n - 1, -1, -1):
            if stab[m] == stab[n]: return m
        s = stab[n]
        return 'stage' if s >= NL0 else ('gst' if s >= NLR else None)
    SCR = slot_of(IT_SCR) * SLOT; KVS = SCR

    if TS: P('s_memrealtime s[88:89]\ns_waitcnt lgkmcnt(0)\ns_mov_b32 s101, s88')
    P.ext(ts('start'))
    if cfg.get('cnt'):
        for k in range(11): P(f's_mov_b32 s{S_TS+k}, 0')
    P('s_cmp_ge_u32 s2, 256')
    P('s_cbranch_scc1 L_done')
    P(f's_load_dwordx2 s[{S_XS}:{S_XS+1}], s[0:1], 0')
    P(f's_load_dwordx4 s[{S_G0}:{S_G0+3}], s[0:1], 32')
    P(f's_load_dwordx2 s[{S_OUT}:{S_OUT+1}], s[0:1], 64')
    P(f's_load_dwordx2 s[{S_WS}:{S_WS+1}], s[0:1], 72')
    P(f's_load_dwordx2 s[{S_G1}:{S_G1+1}], s[0:1], 8')
    P(f's_load_dwordx2 s[{S_WO}:{S_WO+1}], s[0:1], 16')
    P(f's_load_dwordx2 s[{S_WD}:{S_WD+1}], s[0:1], 48')
    P(f's_load_dwordx2 s[{S_OP}:{S_OP+1}], s[0:1], 56')
    if cfg.get('probe'):
        P('s_load_dwordx2 s[24:25], s[0:1], 24\ns_mov_b32 s26, 2359296\ns_mov_b32 s27, 0x20000\ns_waitcnt lgkmcnt(0)')
        P('v_lshrrev_b32 v8, 6, v0\ns_lshl_b32 s30, s2, 3\nv_add_u32 v8, s30, v8\nv_mul_u32_u24 v8, 1152, v8')
        for k in range(9):
            P(f'buffer_load_dword v9, v8, s[24:27], 0 offen offset:{128*k}')
            P('s_waitcnt vmcnt(0)')
    P('s_memrealtime s[28:29]')
    if cfg.get('cpre', 1):
        P(f"""
        s_getpc_b64 s[24:25]
        s_mov_b32 s26, L_done - L_cp
        L_cp:
        s_mov_b32 s27, 0x20000
        s_and_b32 s30, s2, 0xf8
        s_lshl_b32 s30, s30, 8
        v_lshlrev_b32 v{V_ACC+6}, 2, v0
        buffer_load_dword v{V_ACC+7}, v{V_ACC+6}, s[24:27], s30 offen
        """)
    B = V_ACC
    VL = B; VOOB = B + 1; VG = B + 2; VSW = B + 3; VSR = B + 4; VTC = B + 5
    if cfg.get('map', 0):
        ROLE = f"s_lshr_b32 s{S_RB}, s2, 5\ns_and_b32 s25, s2, 7\ns_lshl_b32 s25, s25, 2\ns_bfe_u32 s26, s2, 0x20003\ns_add_u32 s{S_J}, s25, s26"
    else:
        ROLE = f"s_lshr_b32 s24, s2, 3\ns_and_b32 s25, s2, 4\ns_lshr_b32 s26, s24, 3\ns_add_u32 s{S_RB}, s25, s26\ns_and_b32 s26, s2, 3\ns_lshl_b32 s26, s26, 3\ns_and_b32 s27, s24, 7\ns_add_u32 s{S_J}, s26, s27"
    P(f"""
    v_lshrrev_b32 v8, 6, v0
    v_and_b32 v{VL}, 63, v0
    v_readfirstlane_b32 s{S_WAVE}, v8
    {ROLE}
    s_and_b32 s27, s{S_J}, 7
    s_mov_b32 s{S_OOB}, {OOB}
    v_lshrrev_b32 v{VG}, 4, v{VL}
    v_lshrrev_b32 v{VSR}, 3, v{VL}
    v_mov_b32 v{VOOB}, s{S_OOB}
    v_lshlrev_b32 v{V_L16}, 4, v{VL}
    v_cmp_gt_u32 vcc, 8, v{VL}
    v_and_b32 v9, 7, v{VL}
    v_xor_b32 v9, v9, v{VG}
    v_lshlrev_b32 v9, 4, v9
    v_cndmask_b32 v{VTC}, v{VOOB}, v{V_L16}, vcc
    v_mul_u32_u24 v11, 1152, v{VSR}
    v_add_u32 v{V_XD}, v9, v11
    v_xor_b32 v9, 64, v9
    v_add_u32 v11, {8*1152}, v11
    v_add_u32 v{V_XD+1}, v9, v11
    s_lshl_b32 s26, s{S_RB}, 5
    s_add_u32 s26, s26, s{S_J}
    s_lshl_b32 s26, s26, 3
    s_add_u32 s31, s26, s{S_WAVE}
    s_mul_i32 s{S_RS}, s31, 1152
    s_lshl_b32 s24, s{S_RB}, 3
    s_add_u32 s24, s24, s{S_WAVE}
    s_mul_i32 s{S_XN}, s24, {32*1152}
    s_mul_i32 s{S_XST}, s{S_WAVE}, {NR*2048}
    s_add_u32 s{S_XST}, s{S_XST}, {XST}
    s_add_u32 s25, s27, s{S_RB}
    s_lshl_b32 s25, s25, 2
    s_mov_b32 s{S_RX}, {RT & 0xffffffff:#x}
    s_mov_b32 s{S_RW}, {RT >> 32:#x}
    s_lshr_b64 s[{S_RX}:{S_RW}], s[{S_RX}:{S_RW}], s25
    s_and_b32 s{S_ROT}, s{S_RX}, 15
    s_mul_i32 s{S_RX}, s{S_ROT}, 128
    s_mul_i32 s{S_RW}, s{S_ROT}, {64*9216}
    s_mov_b32 s{S_XS+2}, 2359296
    s_mov_b32 s{S_XS+3}, 0x20000
    s_mov_b32 s{S_W+2}, 5308416
    s_mov_b32 s{S_W+3}, 0x20000
    s_lshl_b32 s{S_W1K}, s{S_WAVE}, 10
    v_lshrrev_b32 v8, 1, v{VL}
    v_xor_b32 v8, v8, v{VG}
    v_and_b32 v8, 3, v8
    v_and_b32 v9, 1, v{VL}
    v_lshlrev_b32 v9, 4, v9
    v_lshl_add_u32 v{VSW}, v8, 5, v9
    v_and_b32 v11, 3, v{VSR}
    v_lshrrev_b32 v8, 2, v{VSR}
    v_lshl_add_u32 v11, v8, 3, v11
    s_and_b32 s30, s{S_WAVE}, 1
    s_lshl_b32 s30, s30, 2
    s_and_b32 s27, s{S_WAVE}, 2
    s_lshl_b32 s27, s27, 3
    s_add_u32 s30, s30, s27
    v_add_u32 v11, s30, v11
    v_mul_u32_u24 v11, 9216, v11
    s_lshl_b32 s30, s{S_J}, 8
    v_add3_u32 v{V_DMA}, v11, v{VSW}, s30
    s_mov_b32 s{S_OUT+2}, 256
    s_mov_b32 s{S_OUT+3}, 0x20000
    v_cmp_eq_u32 vcc, 0, v0
    v_cndmask_b32 v10, v{VOOB}, 0, vcc
    s_waitcnt lgkmcnt(0)
    s_lshl_b32 s28, s28, 3
    s_or_b32 s28, s28, 0x80000000
    v_mov_b32 v11, s28
    s_cmp_ge_u32 s{S_WAVE}, 4
    s_cselect_b32 s{S_W}, s{S_G0+2}, s{S_G0}
    s_cselect_b32 s{S_W+1}, s{S_G0+3}, s{S_G0+1}
    """)
    def adv(reg, step, wrap):
        return [I(f's_add_u32 s{reg}, s{reg}, {step}'), I(f's_cmp_eq_u32 s{reg}, {wrap}'), I(f's_cselect_b32 s{reg}, 0, s{reg}')]
    def dma(n):
        L = [I(f's_add_u32 m0, s{S_W1K}, {slot_of(n) * SLOT}')]
        if n < 18:
            L += [I('s_nop 0'), I(f'buffer_load_dwordx4 v{V_DMA}, s[{S_W}:{S_W+3}], s{S_RW} offen {cfg.get("wnt", "")} lds', tok=f'it{n}')] + adv(S_RW, 32*9216, 576*9216)
        elif n < IT_Q:
            t = stmp()
            L += [I(f's_add_u32 s{t}, s{S_RSRC if not cfg.get("fakeR") else S_OOB}, {(n - IT_R) * 128}'),
                  I(f'buffer_load_dwordx4 v{U(4)[2]+1}, s[{S_R}:{S_R+3}], s{t} offen nt lds', tok=f'it{n}')]
        elif n < IT_SCR:
            t = stmp(); isq = n < IT_X
            L += [I(f's_add_u32 s{t}, s{S_WX}, s{S_RX}'),
                  I(f'buffer_load_dwordx4 v{V_L16}, {WS}, s{t} offen sc1 lds', tok=f'it{n}')]
            if n == IT_X - 1:
                L += [I(f's_add_u32 s{S_WX}, s{S_WX}, {40*1024}'), I(f's_lshl_b32 s{S_RX}, s{S_ROT}, 13'), I(f's_add_u32 s{S_RX}, s{S_RX}, s{S_W1K}')]
            else:
                wrap = (36 if isq else 72) * 1024
                L += [I(f's_add_u32 s{S_RX}, s{S_RX}, 8192'), I(f's_sub_u32 s{t}, s{S_RX}, {wrap}'), I(f's_cselect_b32 s{S_RX}, s{S_RX}, s{t}')]
        elif n < IT_W2:
            t = stmp()
            L += [I(f's_add_u32 s{t}, s{S_RW}, {(128 if not cfg.get("fakeL") else 0) + ((n - IT_L1) // 9) * 64}'),
                  I(f'buffer_load_dwordx4 v{V_DMA}, s[{S_W}:{S_W+3}], s{t} offen {cfg.get("wnt", "")} lds', tok=f'it{n}')] + adv(S_RW, 64*9216, 576*9216)
        else:
            t = stmp()
            L += [I(f's_add_u32 s{t}, s{S_W2K if n - IT_W2 in (35, 36, 47) else S_W2}, {(n - IT_W2) * 4096}'),
                  I(f'buffer_load_dwordx4 v{V_L16}, {WS}, s{t} offen sc1 lds', tok=f'it{n}')]
        return L
    GPOS = cfg.get('gpos', 8)
    stg = [('x', p) for p in range(18)]
    spos = {e: k for k, e in enumerate(stg)}
    VGA = U(4)[2]
    def sdma(k, h):
        kind, p = stg[k]
        w = [f'sr{k-NR}_0', f'sr{k-NR}_1'] if k >= NR else []
        t = stmp()
        L = [I(f's_add_u32 m0, s{S_XST}, {(k % NR) * 2048 + h * 1024}')]
        if kind == 'x':
            L += [I(f's_add_u32 s{t}, s{S_XN}, s{S_RX}')]
            if p & 1: L += [I(f's_add_u32 s{t}, s{t}, 18432')]
            L += [I(f'buffer_load_dwordx4 v{V_XD+h}, {XS}, s{t} offen lds', tok=f's{k}_{h}', waits=w)]
            if (p & 1) and h: L += adv(S_RX, 128, 1152)
        return L
    GL = [[6 * SLOT, 7 * SLOT], [8 * SLOT, MISC]]
    def gdma(p, h):
        t = stmp(); S = S_G0 if p == 0 else S_G1
        return [I(f's_add_u32 m0, s{S_W1K}, {GL[p][h]}'),
                I(f's_add_u32 s{t}, s{S_GP+p}, ' + (('0' if h == 0 else f's{S_GP+2}') if p == 0 else str(h * 4 * 3456))),
                I(f'buffer_load_dwordx4 v{VGA+p}, s[{S}:{S+3}], s{t} offen {cfg.get("gnt", "")} lds', tok=f'sg{p}_{h}')]
    def xread(p, d):
        k = spos[('x', p)]
        return I(f'ds_read_b128 {vr(XF(2*(p>>1)+d, p&1),4)}, v{V_XR+d} offset:{(k % NR) * 2048}', tok=f'sr{k}_{d}', waits=[f's{k}_0', f's{k}_1'])
    P.ext(dma(0))
    for k in range(2):
        P.ext(sdma(k, 0)); P.ext(sdma(k, 1))
    P.ext(dma(1))
    PS = cfg.get('ps', 4)
    NPRE = cfg.get('npre', 4)
    PS0 = cfg.get('ps0', 2)
    for k in range(2, PS0):
        P.ext(sdma(k, 0)); P.ext(sdma(k, 1))
    P(f's_cmp_eq_u32 s2, 0\ns_cselect_b32 s29, 0, s{S_OOB}\nbuffer_store_dword v11, v10, s[{S_OUT}:{S_OUT+3}], s29 offen sc1')
    VN2 = B + 16; VT3 = B + 17; VRW = B + 18
    P(f"""
    v_and_b32 v8, 3, v{VL}
    v_lshlrev_b32 v{VN2}, 4, v8
    v_cmp_gt_u32 vcc, 2, v8
    v_cndmask_b32 v{VN2}, v{VOOB}, v{VN2}, vcc
    v_mov_b32 v{VT3}, {2*(1152+16)}
    v_cmp_eq_u32 vcc, 1, v8
    v_cndmask_b32 v{VT3}, v{VT3}, 32, vcc
    v_mov_b32 v9, {2*(576+16)}
    v_cmp_eq_u32 vcc, 2, v8
    v_cndmask_b32 v{VT3}, v{VT3}, v9, vcc
    v_cmp_eq_u32 vcc, 3, v8
    v_cndmask_b32 v{VT3}, v{VT3}, v{VOOB}, vcc
    v_bfe_u32 v9, v{VL}, 2, 2
    v_lshl_add_u32 v{VRW}, v{VG}, 3, v9
    """)
    GSO = [S_GP, S_GP + 1]; GST = S_GP + 2
    P(f's_and_b32 s{S_NON}, s2, 3\ns_lshl_b32 s{S_NON}, s{S_NON}, 3\ns_add_u32 s{S_NON}, s{S_NON}, s{S_WAVE}')
    for i in range(2):
        P(f"""
        s_lshr_b32 s24, s2, 2
        s_add_u32 s24, s24, {64*i}
        s_sub_u32 s25, s24, 36
        s_lshr_b32 s26, s25, 2
        s_mul_i32 s26, s26, 110592
        s_and_b32 s25, s25, 3
        s_mul_i32 s27, s{S_NON}, 36
        s_add_u32 s26, s26, s27
        s_mul_i32 s27, s25, 1152
        s_cmp_eq_u32 s25, 3
        s_cselect_b32 s27, 0, s27
        s_cselect_b64 s[{S_G2}:{S_G2+1}], -1, 0
        s_add_u32 s{GSO[i]}, s26, s27
        """)
        if i == 0:
            P(f"""
            s_lshr_b32 s26, s24, 1
            s_mul_i32 s26, s26, 294912
            s_lshl_b32 s27, s{S_NON}, 5
            s_add_u32 s26, s26, s27
            s_add_u32 s26, s26, 8192
            s_bitcmp1_b32 s24, 0
            s_cselect_b32 s{S_G0}, s{S_G0+2}, s{S_G0}
            s_cselect_b32 s{S_G0+1}, s{S_G0+3}, s{S_G0+1}
            s_mov_b32 s28, 1990656
            s_mov_b32 s29, 3456
            s_cmp_lt_u32 s24, 36
            s_cselect_b32 s{S_G0}, s{S_G0}, s{S_G1}
            s_cselect_b32 s{S_G0+1}, s{S_G0+1}, s{S_G1+1}
            s_cselect_b32 s{S_G0+2}, 5308416, s28
            s_mov_b32 s{S_G0+3}, 0x20000
            s_cselect_b32 s{GSO[0]}, s26, s{GSO[0]}
            s_cselect_b32 s{GST}, 9216, s29
            s_cselect_b64 s[{S_G2}:{S_G2+1}], 0, s[{S_G2}:{S_G2+1}]
            s_cselect_b32 s30, 0, 4
            s_mov_b32 s27, s{GST}
            s_lshl_b32 s{GST}, s{GST}, 2
            """)
        else:
            P('s_mov_b32 s27, 3456\ns_mov_b32 s30, 4')
        P(f"""
        s_and_b32 s{S_GP+3+i}, s{S_G2}, 1
        s_add_u32 s{S_GP+3+i}, s{S_GP+3+i}, 3
        v_cndmask_b32 v8, v{VN2}, v{VT3}, s[{S_G2}:{S_G2+1}]
        v_mul_lo_u32 v11, v{VRW}, s27
        v_add_u32 v{VGA+i}, v8, v11
        s_mul_i32 s26, s{S_NON}, 112
        s_add_u32 s26, s26, s24
        s_add_u32 s26, s26, s30
        s_lshl_b32 s26, s26, 10
        s_add_u32 s26, s26, {WX_OFF}
        s_cmp_lt_u32 s24, 108
        s_cselect_b32 s{S_WXD+i}, s26, s{S_OOB}
        """)
        if i: P(f's_cselect_b32 s{S_G1+2}, 1990656, 0\ns_mov_b32 s{S_G1+3}, 0x20000')
    ONES = U(4)[0]; CSA = U(4)[1]
    P(f"""
    s_mov_b32 s{S_WS+2}, {WS_SIZE}
    s_mov_b32 s{S_WS+3}, 0x20000
    s_lshl_b32 s{S_PT}, s31, 7
    v_lshrrev_b32 v8, 5, v{VL}
    v_lshlrev_b32 v8, 11, v8
    v_bfe_u32 v11, v{VL}, 2, 3
    v_lshl_add_u32 v8, v11, 7, v8
    v_bfe_u32 v11, v{VL}, 3, 2
    v_lshl_add_u32 v8, v11, 5, v8
    v_and_b32 v11, 3, v{VL}
    v_lshl_add_u32 v{V_TR}, v11, 3, v8
    v_xor_b32 v{V_TR+1}, 32, v{V_TR}
    v_xor_b32 v{V_TR+2}, 64, v{V_TR}
    v_xor_b32 v{V_TR+3}, 96, v{V_TR}
    s_and_b32 s24, s{S_WAVE}, 3
    s_lshl_b32 s24, s24, 5
    s_and_b32 s25, s{S_W1K}, 0x1000
    s_or_b32 s24, s24, s25
    v_xor_b32 v{V_LB}, s24, v{V_TR}
    v_and_b32 v9, 15, v{VL}
    v_lshrrev_b32 v11, 1, v9
    v_xor_b32 v11, v11, v{VG}
    v_lshlrev_b32 v11, 4, v11
    v_lshl_add_u32 v11, v9, 7, v11
    v_add_u32 v{V_XR}, s{S_XST}, v11
    v_xor_b32 v{V_XR+1}, 64, v{V_XR}
    """)
    for r in range(4): P(f'v_mov_b32 v{ONES+r}, 0x3f803f80')
    sq_txt = []
    SQ = sq_txt.append
    C = 72; TA = S_G2; TB_ = S_G2 + 1; S_E8P = S_W256
    SQ(f"""
            s_lshr_b32 s73, s2, 2
            s_lshl_b32 s73, s73, 1
            s_lshr_b32 s74, s{S_WAVE}, 2
            s_add_u32 s73, s73, s74
            s_mul_i32 s74, s73, 21846
            s_lshr_b32 s74, s74, 16
            s_mul_i32 s75, s74, 3
            s_sub_u32 s75, s73, s75
            s_mul_i32 s76, s74, 13108
            s_lshr_b32 s76, s76, 16
            s_mul_i32 s77, s76, 5
            s_sub_u32 s77, s74, s77
            s_and_b32 s78, s2, 3
            s_lshl_b32 s78, s78, 3
            s_add_u32 s78, s78, s76
            s_and_b32 s79, s{S_WAVE}, 3
            s_lshl_b32 s73, s78, 7
            s_lshl_b32 s{TA}, s77, 5
            s_add_u32 s73, s73, s{TA}
            s_lshl_b32 s{TA}, s79, 3
            s_add_u32 s73, s73, s{TA}
            s_lshl_b32 s{TB_}, s78, 4
            s_add_u32 s{TB_}, s{TB_}, 4096
            s_add_u32 s{TB_}, s{TB_}, s{TA}
            s_mul_i32 s{C}, s78, 18
            s_add_u32 s{C}, s{C}, s{TA}
            s_sub_u32 s{C}, s{C}, 16
            s_cmp_lt_u32 s79, 2
            s_cselect_b32 s{TB_}, s{TB_}, s{C}
            s_cselect_b32 s{C}, 0, 1
            s_cmp_eq_u32 s77, 4
            s_cselect_b32 s73, s{TB_}, s73
            s_cselect_b32 s{C}, s{C}, 0
            s_and_b32 s{TB_}, s2, 3
            s_lshl_b32 s{TB_}, s{TB_}, 1
            s_add_u32 s{TB_}, s{TB_}, s79
            s_mul_i32 s{TB_}, s{TB_}, 72
            s_add_u32 s{TB_}, s{TB_}, 16
            s_cmp_ge_u32 s74, 40
            s_cselect_b32 s73, s{TB_}, s73
            s_cselect_b32 s{C}, 1, s{C}
            s_cselect_b32 s{S_LEFT}, 18432, 0
            s_cselect_b32 s{TB_}, s79, 0
            s_mul_i32 s73, s73, 1152
            s_mul_i32 s78, s75, 384
            s_add_u32 s{S_RSRC}, s73, s78
            s_mov_b32 s73, 663552
            s_cmp_eq_u32 s{C}, 1
            s_cselect_b32 s{S_R}, s{S_WO}, s{S_WD}
            s_cselect_b32 s{S_R+1}, s{S_WO+1}, s{S_WD+1}
            s_cselect_b32 s{S_R+2}, s73, 5308416
            s_cmp_ge_u32 s{TB_}, 2
            s_cselect_b32 s{S_R+2}, 0, s{S_R+2}
        s_mov_b32 s{S_R+3}, 0x20000

            s_sub_u32 s73, 7, s77
            s_cmp_lt_u32 s77, 3
            s_cselect_b32 s73, s77, s73
            s_lshl_b32 s73, s73, 2
            s_and_b32 s77, s76, 3
            s_add_u32 s73, s73, s77
            s_lshr_b32 s76, s76, 2
            s_cmp_ge_u32 s74, 40
            s_cselect_b32 s73, 20, s73
            s_cselect_b32 s76, 0, s76
            s_mul_i32 s75, s75, 12
            s_add_u32 s75, s75, s79
        """)
    for i in range(3):
        SQ(f"""
            s_add_u32 s77, s75, {4*i}
            s_mul_i32 s78, s77, 7282
            s_lshr_b32 s78, s78, 16
            s_mul_i32 s79, s78, 9
            s_sub_u32 s79, s77, s79
            s_lshr_b32 s77, s79, 1
            s_sub_u32 s77, s77, s2
            s_and_b32 s77, s77, 3
            s_lshl_b32 s77, s77, 1
            s_and_b32 s{TA}, s79, 1
            s_add_u32 s77, s77, s{TA}
            s_cmp_eq_u32 s79, 8
            s_cselect_b32 s77, 8, s77
            s_mul_i32 s79, s73, 7
            s_add_u32 s79, s79, s77
            s_sub_u32 s79, s79, 2
            s_cmp_eq_u32 s73, 20
            s_cselect_b32 s{TA}, 1, 20
            s_cselect_b32 s{TB_}, 20, 0
            s_mul_i32 s{TA}, s{TA}, s77
            s_add_u32 s{TA}, s{TA}, s73
            s_add_u32 s{TA}, s{TA}, s{TB_}
            s_add_u32 s{TA}, s{TA}, 148
            s_cmp_ge_u32 s77, 2
            s_cselect_b32 s79, s79, s{TA}
            s_and_b32 s{TA}, s2, 3
            s_lshl_b32 s{TA}, s{TA}, 2
            s_add_u32 s{TA}, s{TA}, s78
            s_lshl_b32 s{TA}, s{TA}, 1
            s_add_u32 s{TA}, s{TA}, s76
            s_mul_i32 s{TA}, s{TA}, 192
            s_add_u32 s{TA}, s{TA}, s79
            s_lshl_b32 s{TA}, s{TA}, 10
            s_add_u32 s{TA}, s{TA}, {W2_OFF}
            s_cmp_lt_u32 s74, 41
            s_cselect_b32 s{S_RDST+i}, s{TA}, s{S_OOB}
            """)
    SQ(f's_mov_b32 s{S_G2}, 0\ns_mov_b32 s{S_G2+1}, 0x0000ffff')
    SQ(f"""
            s_mul_i32 s{S_WX}, s{S_J}, {WX_J}
            s_add_u32 s{S_WX}, s{S_WX}, {WX_OFF}
            s_lshr_b32 s73, s{S_J}, 3
            s_lshl_b32 s73, s73, 13
            s_add_u32 s73, s73, {F2_OFF}
            s_add_u32 s{S_F2P}, s73, s{S_W1K}
            s_and_b32 s73, s2, 3
            s_lshl_b32 s73, s73, 6
            s_lshr_b32 s74, s2, 2
            s_add_u32 s74, s74, s73
            s_lshl_b32 s74, s74, 7
            s_add_u32 s74, s74, {F2_OFF}
            s_lshl_b32 s75, s2, 7
            s_add_u32 s75, s75, {F3_OFF}
            s_cmp_eq_u32 s{S_WAVE}, 0
            s_cselect_b32 s{S_F2S}, s74, s{S_OOB}
            s_cselect_b32 s{S_F3S}, s75, s{S_OOB}
            s_lshl_b32 s73, s2, 3
            s_add_u32 s73, s73, s{S_WAVE}
            s_mul_i32 s73, s73, 3072
            s_add_u32 s{S_EX}, s73, {EX_OFF}
            s_lshr_b32 s73, s2, 2
            s_lshl_b32 s73, s73, 3
            s_add_u32 s73, s73, s{S_WAVE}
            s_lshl_b32 s73, s73, 11
            s_add_u32 s73, s73, {EX8_OFF}
            s_xor_b32 s74, s2, s{S_WAVE}
            s_and_b32 s74, s74, 3
            s_cmp_eq_u32 s74, 0
            s_cselect_b32 s{S_E8R}, s73, s{S_OOB}
            s_lshl_b32 s73, s{S_RB}, 4
            s_lshl_b32 s74, s{S_WAVE}, 1
            s_add_u32 s73, s73, s74
            s_mul_i32 s{S_A2}, s73, {A2_MT}
            s_mul_i32 s74, s{S_J}, 5120
            s_add_u32 s{S_A2}, s{S_A2}, s74
            s_add_u32 s{S_A2}, s{S_A2}, {A2_OFF}
            s_lshl_b32 s{S_A2L}, s73, 11
            s_lshl_b32 s74, s{S_J}, 7
            s_add_u32 s{S_A2L}, s{S_A2L}, s74
            s_add_u32 s{S_A2L}, s{S_A2L}, {A2L_OFF}
            s_lshl_b32 s{S_W256}, s{S_WAVE}, 8
            s_lshl_b32 s73, s{S_J}, 3
            s_add_u32 s74, s73, s{S_RB}
            s_mul_i32 s74, s74, 3072
            s_lshl_b32 s75, s{S_WAVE}, 9
            s_add_u32 s75, s75, {KVP_OFF}
            s_add_u32 s74, s74, s75
            s_mul_i32 s73, s73, 3072
            s_add_u32 s73, s73, s75
            s_cmp_lt_u32 s{S_WAVE}, 6
            s_cselect_b32 s{S_KVST}, s74, s{S_OOB}
            s_cselect_b32 s74, 0, 1024
            s_sub_u32 s{S_KVLD}, s73, s74
            s_add_u32 s73, s{S_W256}, {SCR}
            s_add_u32 s74, s{S_W256}, {MISC - 1024}
            s_cmp_lt_u32 s{S_WAVE}, 4
            s_cselect_b32 s{S_RED}, s73, s74
            s_lshl_b32 s73, s{S_RB}, 2
            s_lshr_b32 s74, s{S_J}, 3
            s_add_u32 s73, s73, s74
            s_lshl_b32 s73, s73, 13
            s_add_u32 s73, s73, {FL_OFF}
            s_add_u32 s{S_FL}, s73, s{S_W1K}
            s_and_b32 s74, s{S_J}, 7
            s_lshl_b32 s74, s74, 7
            s_add_u32 s{S_FL}, s{S_FL}, s74
            s_and_b32 s73, s2, 4
            s_lshr_b32 s74, s2, 6
            s_add_u32 s73, s73, s74
            s_lshl_b32 s73, s73, 2
            s_and_b32 s74, s2, 3
            s_add_u32 s73, s73, s74
            s_lshl_b32 s73, s73, 13
            s_add_u32 s73, s73, {FL_OFF}
            s_and_b32 s74, s2, 32
            s_lshl_b32 s74, s74, 7
            s_add_u32 s73, s73, s74
            s_and_b32 s74, s{S_WAVE}, 3
            s_lshl_b32 s74, s74, 10
            s_add_u32 s{S_FH}, s73, s74
            s_and_b32 s73, s{S_WAVE}, 1
            s_lshl_b32 s73, s73, 5
            s_and_b32 s74, s{S_WAVE}, 2
            s_lshl_b32 s74, s74, 11
            s_or_b32 s73, s73, s74
            s_and_b32 s74, s{S_WAVE}, 4
            s_lshl_b32 s74, s74, 9
            s_or_b32 s{S_MW}, s73, s74
            s_mul_i32 s73, s{S_WAVE}, 86
            s_lshr_b32 s73, s73, 8
            s_mul_i32 s74, s73, 3
            s_sub_u32 s74, s{S_WAVE}, s74
            s_lshl_b32 s74, s74, 9
            s_lshl_b32 s73, s73, 2
            s_and_b32 s75, s2, 3
            s_add_u32 s73, s73, s75
            s_lshr_b32 s75, s2, 2
            s_lshl_b32 s75, s75, 3
            s_add_u32 s73, s73, s75
            s_lshl_b32 s73, s73, 11
            s_add_u32 s73, s73, s74
            s_add_u32 s73, s73, {EX8_OFF}
            s_cmp_lt_u32 s{S_WAVE}, 6
            s_cselect_b32 s{S_E8P}, s73, s{S_OOB}
            s_mov_b32 s{S_L2E}, {f2u(1.4426950408889634):#x}
            s_mov_b32 s{S_EPS}, {f2u(1e-6):#x}
            s_mov_b32 s{S_M4}, 0x00040004
            s_mov_b32 s{S_M4+1}, 0x00040004
        """)
    P.ext(ts('setup'))
    for k in range(1, max(PS, NPRE)):
        if 2 <= k < NPRE: P.ext(dma(k))
        if PS0 <= k + 1 < PS:
            P.ext(sdma(k + 1, 0)); P.ext(sdma(k + 1, 1))
    P.ext(ts('issued'))
    for p in range(2):
        P.ext([xread(p, 0), xread(p, 1)])

    base = {r: 0 for r in (V_TR, V_TR+1, V_TR+2, V_TR+3, V_LB)}
    def lds_addr(reg, addr, span):
        fx = []
        if not (0 <= addr - base[reg] and addr + span - base[reg] <= 65535):
            nb = min((addr // SLOT) * SLOT, LDS_BYTES - 65536)
            fx.append(I(f'v_add_u32 v{reg}, {(nb - base[reg]) & 0xffffffff:#x}, v{reg}'))
            base[reg] = nb
        return fx, addr - base[reg]
    xq = [V_XF + 4 * k for k in range(36)]
    acc1 = U(0) + U(2) + U(3) + [xq[34], xq[35]]
    def ACC2(lt, mt):
        if lt >= 2: return acc1[(lt - 2) * 2 + mt]
        return acc1[(lt * 2 + mt) * 2 + 1]
    aq = xq[:34] + U(1) + U(4)[:2]
    def AF(sp, mt): return aq[sp * 2 + mt]
    V_AL = U(4)[2]; VSP = U(4)[3]
    V_L8 = V_TH
    T0 = [ACC(0, 0, 0), ACC(0, 0, 1)]; T1 = [ACC(0, 1, 0), ACC(0, 1, 1)]
    T2 = [ACC(1, 0, 0), ACC(1, 0, 1)]; T3 = [ACC(1, 1, 0), ACC(1, 1, 1)]

    frags = []; steps = []
    def add_step(nm, fl):
        for f in fl:
            f['step'] = len(steps); frags.append(f)
        steps.append(nm)
    def Lf(line, ks, tiles):
        fl = []
        for (T, u) in tiles:
            for mat in range(2):
                mf_ = [(ACC(u, mat, mt), XF(ks, mt), False, ks == 0) for mt in range(2)]
                if line == 0: fl.append(dict(item=IT_L0 + ks, kind='tr', reg=V_TR + T, off=mat * 4096, mf=mf_))
                else: fl.append(dict(item=IT_L1 + (T >> 1) * 9 + (ks >> 1), kind='tr', reg=V_TH + (T & 1), off=mat * 4096 + (ks & 1) * 2048, mode='h', mf=mf_))
        return fl
    def Cf(item, acc, ones, first, mode):
        return [dict(item=item, kind='tr', reg=V_LB, off=0, mode=mode, mf=[(acc, ones, True, first)])]
    def Kf(u, nt, off, swap=False, zero=False):
        return [dict(item=None, kind='k', mode='k', off=off, mf=[(ACC(u, nt, mt), BN[mt], swap, zero) for mt in range(2)])]
    def Ku(u, kb0, kb1, o, zero=False): return Kf(u, 0, kb0 * 1024 + o, False, zero) + Kf(u, 1, kb1 * 1024 + o, False, zero)
    K1 = cfg.get('k1', 15); K3 = cfg.get('k3', 8); K4 = cfg.get('k4', 8)
    for ks in range(K1): add_step(('S1', ks), Cf(ks, CSA, ONES, ks == 0, 'c0') + Lf(0, ks, [(0, 0), (1, 1), (2, 2), (3, 3)]))
    for u in range(4):
        for ks in range(K1, 18):
            fl = (Cf(ks, CSA, ONES, False, 'c0') if u == 0 else []) + Lf(0, ks, [(u, u)])
            if u == 1 and ks == K1 + 1: fl += Ku(0, 0, 4, 768)
            if u >= 1 and ks == 17: fl += Ku(u, u, 4 + u, 768)
            add_step((f'S1{"abcd"[u]}', ks), fl)
    for ks in range(18):
        add_step(('S2', ks), [dict(item=IT_Q + ((2*ks+mat) >> 3), kind='b', mode='b', off=((2*ks+mat) & 7) * 1024,
                                   mf=[(ACC(4, mat, mt), XF(ks, mt), False, ks == 0) for mt in range(2)]) for mat in range(2)])
    for ks in range(18):
        add_step(('S3', ks), [dict(item=IT_X + ((4*ks+T) >> 3), kind='b', mode='b', off=((4*ks+T) & 7) * 1024,
                                   mf=[(ACC(T >> 1, T & 1, mt), XF(ks, mt), T != 0, ks == 0) for mt in range(2)]) for T in range(4)]
                 + (Ku(4, 0, 1, 0) if ks == 0 else [])
                 + ([f for T in range(4) for f in Kf(T >> 1, T & 1, (2 + T) * 1024, T != 0)] if ks == 17 else []))
    ca = lambda ks: Cf(IT_L1 + (ks >> 1), CSA, ONES, ks == 1, 'ch') if ks & 1 else []
    cb = lambda ks: Cf(IT_L1 + 9 + (ks >> 1), T1[1], T1[0], ks == 1, 'ch') if ks & 1 else []
    for ks in range(K3): add_step(('S4', ks), Lf(1, ks, [(0, 2), (1, 3)]) + ca(ks))
    for ks in range(K3, 18): add_step(('S4a', ks), ca(ks) + Lf(1, ks, [(0, 2)]))
    for ks in range(K3, 18): add_step(('S4b', ks), Lf(1, ks, [(1, 3)]) + (Ku(2, 0, 2, 768) + Ku(3, 1, 3, 768) if ks == K3 + 1 else []))
    for ks in range(K4): add_step(('S4c', ks), cb(ks) + Lf(1, ks, [(2, 4), (3, 1)]))
    for ks in range(K4, 18): add_step(('S4d', ks), cb(ks) + Lf(1, ks, [(2, 4)]))
    for ks in range(K4, 18): add_step(('S4e', ks), Lf(1, ks, [(3, 1)]) + (Ku(4, 4, 6, 768) + Ku(1, 5, 7, 768) if ks == K4 + 1 else []))
    def P2f(sp, lts, blk0):
        fl = []
        for k, lt in enumerate(lts):
            blk = blk0 + k
            mf_ = [(ACC2(lt, mt), AF(sp, mt), False, sp == 0) for mt in range(2)] if sp < 20 else [(ACC2(lt, 0), V_AL, False, False)]
            fl.append(dict(item=IT_W2 + (blk >> 2), kind='b', mode='b2', off=(blk & 3) * 1024, mf=mf_))
        return fl
    for sp in range(21): add_step(('P1', sp), P2f(sp, range(2, 9), sp * 7))
    for lt in range(2):
        for sp in range(21): add_step(('P2' + 'ab'[lt], sp), P2f(sp, [lt], 148 + lt * 20 + sp if sp < 20 else 188 + lt))
    NF = len(frags)
    SO = {s: i for i, s in enumerate(steps)}
    first_frag = {}
    for i, f in enumerate(frags): first_frag.setdefault(f['step'], i)
    events = {}; pending = {}
    st.lbmode = 'c0'; st.hinit = False
    def reads(i):
        f = frags[i]; w = V_WF + (i % 4) * 4
        slot = slot_of(f['item']) * SLOT if f['item'] is not None else MISC
        pre = []
        mode = f.get('mode')
        if mode == 'h' and not st.hinit:
            assert 'trh' in events
            st.hinit = True; base[V_TH] = 0; base[V_TH + 1] = 0
        if mode in ('b', 'b2', 'ch', 'k') and st.lbmode != mode:
            st.lbmode = mode
            if mode == 'b':
                pre = [I(f'v_mov_b32 v{V_LB}, v{V_L16}')]; base[V_LB] = 0
            elif mode == 'k':
                pre = [I(f'v_bfe_u32 v{V_LB}, v{V_L16}, 1, 8')]; base[V_LB] = 0
            elif mode == 'b2':
                pre = [I(f's_and_b32 s{S_RX}, s{S_W1K}, 0x1000'), I(f'v_or_b32 v{V_LB}, s{S_RX}, v{V_L16}')]; base[V_LB] = 0
            else:
                pre = [I(f'v_xor_b32 v{V_LB}, s{S_MW}, v{V_TH}')]; base[V_LB] = base[V_TH]
        if f['kind'] == 'tr':
            fx, off = lds_addr(f['reg'], slot + f['off'], 2048)
            return (pre + fx + [I(f'ds_read_b64_tr_b16 {vr(w, 2)}, v{f["reg"]} offset:{off}', tok=f'rd{i}a')],
                    [I(f'ds_read_b64_tr_b16 {vr(w + 2, 2)}, v{f["reg"]} offset:{off + 1024}', tok=f'rd{i}b')])
        fx, off = lds_addr(V_LB, slot + f['off'], 1024)
        if f['kind'] == 'k':
            return (pre + fx + [I(f'ds_read_b64 {vr(w, 2)}, v{V_LB} offset:{off}', tok=f'rd{i}a')], [])
        return (pre + fx + [I(f'ds_read_b128 {vr(w, 4)}, v{V_LB} offset:{off}', tok=f'rd{i}a')], [])
    def rtoks(i):
        return [f'rd{i}a', f'rd{i}b'] if frags[i]['kind'] == 'tr' else [f'rd{i}a']
    def mfmas(i):
        w = V_WF + (i % 4) * 4; L = []
        for (d, x, swap, zero) in frags[i]['mf']:
            a, b = (x, w) if swap else (w, x)
            if frags[i]['kind'] == 'k': L.append(I(f'v_mfma_f32_16x16x16_bf16 {vr(d,4)}, {vr(a,2)}, {vr(b,2)}, {"0" if zero else vr(d,4)}'))
            else: L.append(I(f'v_mfma_f32_16x16x32_bf16 {vr(d,4)}, {vr(a,4)}, {vr(b,4)}, {"0" if zero else vr(d,4)}'))
        return L
    def mf(d, a, b): return I(f'v_mfma_f32_16x16x32_bf16 {vr(d,4)}, {vr(a,4)}, {vr(b,4)}, 0')

    HST = cfg.get('hst', 'sc1')
    t4 = [V_T + r for r in range(4)]
    q2, q3 = U(4)[2], U(4)[3]
    def gelu_quad(g, u, dst, mt):
        t = t4; L = []
        for r in range(4): L.append(I(f'v_mul_f32 v{t[r]}, v{g+r}, v{g+r}'))
        for r in range(4): L.append(I(f'v_fma_f32 v{t[r]}, v{t[r]}, v{C1[mt]}, v{C0[mt]}'))
        for r in range(4): L.append(I(f'v_mul_f32 v{t[r]}, v{g+r}, v{t[r]}'))
        for r in range(4): L.append(I(f'v_exp_f32 v{t[r]}, v{t[r]}'))
        for r in range(4): L.append(I(f'v_mul_f32 v{u+r}, v{g+r}, v{u+r}'))
        for r in range(4): L.append(I(f'v_add_f32 v{t[r]}, 1.0, v{t[r]}'))
        for r in range(4): L.append(I(f'v_rcp_f32 v{t[r]}, v{t[r]}'))
        for r in range(4): L.append(I(f'v_mul_f32 v{u+r}, v{u+r}, v{t[r]}'))
        L.append(I(f'v_cvt_pk_bf16_f32 v{dst}, v{u}, v{u+1}'))
        L.append(I(f'v_cvt_pk_bf16_f32 v{dst+1}, v{u+2}, v{u+3}'))
        return L
    def hstore(reg, n, mt, t, extra=0, va=None):
        s = ftmp(); off = t * 1024 + extra
        op = 'buffer_store_dwordx4' if n == 4 else 'buffer_store_dwordx2'
        return [I(f's_add_u32 s{s}, s{S_A2 if not cfg.get("fakeH") else S_OOB}, {mt * A2_MT + (off & ~4095)}'),
                I(f'{op} {vr(reg, n)}, v{V_L16 if n == 4 else va}, {WS}, s{s} offen offset:{off & 4095} {HST}', tok=f'h{t}_{mt}_{extra}')]
    def E_first(u):
        L = []
        for mt in range(2): L += gelu_quad(ACC(u, 0, mt), ACC(u, 1, mt), ACC(u, 0, mt), mt)
        return L
    def E_second(u0, u1, t):
        L = []
        for mt in range(2):
            L += gelu_quad(ACC(u1, 0, mt), ACC(u1, 1, mt), ACC(u0, 0, mt) + 2, mt)
            if t == 3: L += [I(f'v_min_u32 v{ACC(u0, 0, mt) + r}, -2, v{ACC(u0, 0, mt) + r}') for r in range(4)]
            L += hstore(ACC(u0, 0, mt), 4, mt, t)
        return L
    def E_quarter(u):
        L = []
        for mt in range(2):
            L += gelu_quad(ACC(u, 0, mt), ACC(u, 1, mt), ACC(u, 0, mt), mt)
            a = ACC(u, 0, mt) + 2
            L += [I(f'v_lshrrev_b32 v{a}, 1, v{V_L16}')] + hstore(ACC(u, 0, mt), 2, mt, 4, 0, a)
        return L
    def cswrite(c, e, t):
        L = [I(f'v_cvt_pk_bf16_f32 v{t}, v{c}, v{c}'), I(f'v_and_b32 v{t}, 0xffff0000, v{t}'), I(f'v_sub_f32 v{t}, v{c}, v{t}'),
             I(f'v_cvt_pk_bf16_f32 v{t}, v{c}, v{t}'), I(f'v_mov_b32 v{t+1}, 0')]
        if e < 2:
            L += [I(f'v_bfe_u32 v{t+2}, v{V_L16}, 1, 8'), I(f's_add_u32 s72, s{S_W1K}, {MISC + (768 if e == 0 else 0)}')]
            if e == 0: L += [I(f'v_cmp_gt_u32 vcc, 0x80, v{t+2}'), I('s_nop 1'), I(f'v_cndmask_b32 v{t}, 0, v{t}, vcc')]
        else:
            L += [I(f'v_bfe_u32 v{t+2}, v{V_L16}, 1, 7'), I(f's_and_b32 s72, s{S_W1K}, 0xc00'), I(f's_lshr_b32 s83, s{S_W1K}, 12'),
                  I('s_lshl_b32 s83, s83, 7'), I(f's_add_u32 s72, s72, s83'), I(f's_add_u32 s72, s72, {MISC + 768 + (e - 2) * 4096}')]
        L += [I(f'v_add_u32 v{t+2}, s72, v{t+2}'), I(f'ds_write_b64 v{t+2}, {vr(t,2)}', tok=f'cs{e}')]
        return L
    def phi_quad(q):
        t = t4; L = []
        for r in range(4): L.append(I(f'v_mul_f32 v{t[r]}, s{S_L2E}, v{q+r}'))
        for r in range(4): L.append(I(f'v_exp_f32 v{t[r]}, v{t[r]} clamp'))
        for r in range(4): L.append(I(f'v_max_f32 v{q+r}, s{S_EPS}, v{q+r}'))
        for r in range(4): L.append(I(f'v_add_f32 v{q+r}, v{q+r}, v{t[r]}'))
        return L
    def pack2(dst, q0, q1):
        return [I(f'v_cvt_pk_bf16_f32 v{dst}, v{q0}, v{q0+1}'), I(f'v_cvt_pk_bf16_f32 v{dst+1}, v{q0+2}, v{q0+3}'),
                I(f'v_cvt_pk_bf16_f32 v{dst+2}, v{q1}, v{q1+1}'), I(f'v_cvt_pk_bf16_f32 v{dst+3}, v{q1+2}, v{q1+3}')]
    def sgroups(txt):
        L = []
        lines = [l.strip() for l in txt.strip().split('\n') if l.strip()]
        k = 0
        while k < len(lines):
            if lines[k].startswith('s_cmp') or lines[k].startswith('s_bitcmp'):
                g = [I(lines[k])]; k += 1
                while k < len(lines) and lines[k].startswith('s_cselect'): g.append(I(lines[k])); k += 1
                L.append(g)
            else:
                L.append(I(lines[k])); k += 1
        return L
    def setflag(sreg, add, toks, VA, VB):
        t = ftmp()
        return [I(f'v_lshlrev_b32 v{VA}, 21, v{V_L16}'), I(f'v_and_b32 v{VA}, s{S_OOB}, v{VA}'),
                I(f'v_lshrrev_b32 v{VB}, 2, v{V_L16}'), I(f'v_or_b32 v{VA}, v{VA}, v{VB}'), I(f'v_mov_b32 v{VB}, s{S_NON}'),
                I(f's_add_u32 s{t}, s{sreg}, {add}'),
                I(f'buffer_store_dword v{VB}, v{VA}, {WS}, s{t} offen sc1', waits=toks)]
    def poll(spt, bits, ev, w0, bar, between, VA, VB, S_PT=S_PT):
        addr = [I(f'v_bfe_u32 v{VA}, v{V_L16}, 4, {bits}'), I(f'v_lshlrev_b32 v{VA}, 7, v{VA}')]
        loads = lambda: [I(f'buffer_load_dword v{VB}, v{VA}, {WS}, s{S_PT} offen sc1')]
        check = lambda: [I(f'v_cmp_ne_u32 vcc, s{S_NON}, v{VB}')]
        return addr + spt + loads() + between + [retry_group(loads, check, w0), Ev(ev, bar)]
    def pollh(k, ev, between, VA, VB):
        return poll([I(f's_add_u32 s{S_PT}, s{S_FH}, {k*HS}')], 3, ev, False, False, between, VA, VB)
    def F_nonce():
        X0 = XF(17, 0); a = V_T; n_ = 7
        loads = lambda: [I(f'buffer_load_dword v{n_}, v{a+1}, s[{S_OUT}:{S_OUT+3}], 0 offen sc1')]
        check = lambda: [I(f'v_cmp_eq_u32 vcc, 0, v{n_}')]
        L = [I(f'v_cmp_gt_u32 vcc, 0x80, v{V_L16}'), I(f'v_mov_b32 v{a}, s{S_OOB}'), I(f'v_mov_b32 v{a+1}, 0'), Delay(1), I(f'v_cndmask_b32 v{a}, v{a}, v{V_L16}, vcc'),
             I(f'buffer_load_dwordx4 {vr(X0,4)}, v{V_L16}, {XS}, s{S_RS} offen'),
             I(f'buffer_load_dwordx4 {vr(X0+4,4)}, v{a}, {XS}, s{S_RS} offen offset:1024')] + loads()
        L += [Delay(cfg.get('ndelay', 40)), retry_group(loads, check), I(f'v_readfirstlane_b32 s{S_NON}, v{n_}'),
              I(f's_mov_b32 s{S_OUT}, s{S_OP}'), I(f's_mov_b32 s{S_OUT+1}, s{S_OP+1}'), I(f's_mov_b32 s{S_OUT+2}, 2359296')]
        S_, Q_, t0, t1 = q3, q3 + 2, a + 2, a + 3
        for r in range(8):
            L += [I(f'v_lshlrev_b32 v{t0}, 16, v{X0+r}'), I(f'v_and_b32 v{t1}, 0xffff0000, v{X0+r}')]
            if r == 0: L += [I(f'v_add_f32 v{S_}, v{t0}, v{t1}'), I(f'v_mul_f32 v{Q_}, v{t0}, v{t0}'), I(f'v_fmac_f32 v{Q_}, v{t1}, v{t1}')]
            else: L += [I(f'v_add_f32 v{S_}, v{S_}, v{t0}'), I(f'v_fmac_f32 v{Q_}, v{t0}, v{t0}'), I(f'v_add_f32 v{S_}, v{S_}, v{t1}'), I(f'v_fmac_f32 v{Q_}, v{t1}, v{t1}')]
        L += [Ev('rowdone'), Delay(1)]
        for m_ in ['row_shr:1 row_mask:0xf bank_mask:0xf bound_ctrl:0', 'row_shr:2 row_mask:0xf bank_mask:0xf bound_ctrl:0',
                   'row_shr:4 row_mask:0xf bank_mask:0xf bound_ctrl:0', 'row_shr:8 row_mask:0xf bank_mask:0xf bound_ctrl:0',
                   'row_bcast:15 row_mask:0xa bank_mask:0xf', 'row_bcast:31 row_mask:0xc bank_mask:0xf']:
            L += [I(f'v_add_f32_dpp v{k}, v{k}, v{k} {m_}') for k in (S_, Q_)]
        L += IL(f"""
        v_readlane_b32 s30, v{S_}, 63
        v_readlane_b32 s31, v{Q_}, 63
        v_mov_b32 v{t0}, {f2u(1.0/576.0):#x}
        v_mov_b32 v{q3+1}, v{n_}
        v_mul_f32 v{S_}, s30, v{t0}
        v_mul_f32 v{Q_}, s31, v{t0}
        v_fma_f32 v{Q_}, -v{S_}, v{S_}, v{Q_}
        v_max_f32 v{Q_}, 0, v{Q_}
        v_cvt_pk_bf16_f32 v{t0}, -v{S_}, v{Q_}
        v_lshlrev_b32 v{S_}, 16, v{t0}
        v_and_b32 v{Q_}, 0xffff0000, v{t0}
        v_add_f32 v{Q_}, {f2u(1e-5):#x}, v{Q_}
        v_cvt_pk_bf16_f32 v{Q_}, v{Q_}, v{Q_}
        v_and_b32 v{Q_}, 0xffff0000, v{Q_}
        v_sqrt_f32 v{Q_}, v{Q_}
        v_cvt_pk_bf16_f32 v{Q_}, v{Q_}, v{Q_}
        v_and_b32 v{Q_}, 0xffff0000, v{Q_}
        v_rcp_f32 v{Q_}, v{Q_}
        v_mov_b32 v{q3+3}, v{n_}
        buffer_store_dwordx4 {vr(q3,4)}, v{a}, {WS}, s{S_PT} offen sc1
        """)
        return L + [Ev('nonce')]
    def F_setup2():
        C = 71
        L = sgroups(f"""
            s_lshr_b32 s74, s2, 3
            s_and_b32 s73, s74, 3
            s_lshr_b32 s74, s74, 2
            s_and_b32 s75, s2, 4
            s_lshl_b32 s75, s75, 1
            s_add_u32 s74, s74, s75
            s_and_b32 s75, s{S_WAVE}, 3
            s_lshr_b32 s76, s{S_WAVE}, 2
            s_and_b32 s78, s2, 3
            s_lshl_b32 s77, s74, 3
            s_lshl_b32 s79, s75, 1
            s_add_u32 s77, s77, s79
            s_add_u32 s77, s77, s76
            s_lshl_b32 s{S_STK}, s77, 11
            s_lshl_b32 s79, s78, 3
            s_lshl_b32 s{C}, s76, 2
            s_add_u32 s79, s79, s{C}
            s_mul_i32 s79, s79, 5120
            s_add_u32 s79, s79, {A2_OFF}
            s_mul_i32 s{S_A}, s77, {A2_MT}
            s_add_u32 s{S_A}, s{S_A}, s79
            s_xor_b32 s{C}, s77, 1
            s_mul_i32 s{S_A+1}, s{C}, {A2_MT}
            s_add_u32 s{S_A+1}, s{S_A+1}, s79
            s_lshl_b32 s79, s78, 2
            s_add_u32 s79, s79, s73
            s_lshl_b32 s79, s79, 1
            s_add_u32 s79, s79, s76
            s_mul_i32 s79, s79, {W2_S}
            s_lshl_b32 s{C}, s75, 10
            s_add_u32 s79, s79, s{C}
            s_add_u32 s{S_W2}, s79, {W2_OFF}
            s_mul_i32 s79, s76, {W2_S}
            s_sub_u32 s{S_W2K}, s{S_W2}, s79
            s_lshr_b32 s79, s77, 1
            s_lshl_b32 s79, s79, 2
            s_add_u32 s79, s79, s78
            s_lshl_b32 s79, s79, 10
            s_lshl_b32 s{C}, s76, 6
            s_add_u32 s79, s79, s{C}
            s_add_u32 s{S_AL}, s79, {A2L_OFF}
            s_mul_i32 s79, s77, 18432
            s_mul_i32 s{C}, s73, 288
            s_add_u32 s79, s79, s{C}
            s_lshl_b32 s{C}, s78, 6
            s_add_u32 s{S_O}, s79, s{C}
            s_add_u32 s{S_O8}, s79, 256
        """)
        for p in range(1, 4):
            L += sgroups(f"""
            s_add_u32 s79, s78, {p}
            s_and_b32 s79, s79, 3
            s_sub_u32 s79, s79, s78
            s_mul_i32 s79, s79, 24576
            s_add_u32 s79, s79, s{S_EX}
            s_add_u32 s{S_EXS+p-1}, s79, {(3-p)*1024}
            """)
        L += sgroups(f"""
            s_lshr_b32 s79, s2, 2
            s_lshl_b32 s79, s79, 3
            s_add_u32 s79, s79, s{S_WAVE}
            s_lshl_b32 s79, s79, 11
            s_add_u32 s79, s79, {EX8_OFF}
            s_sub_u32 s{C}, s78, s75
            s_sub_u32 s{C}, s{C}, 1
            s_and_b32 s{C}, s{C}, 3
            s_lshl_b32 s{C}, s{C}, 9
            s_add_u32 s79, s79, s{C}
            s_cmp_eq_u32 s78, s75
            s_cselect_b32 s{S_E8S}, s{S_OOB}, s79
            s_cselect_b32 s{S_O8}, s{S_O8}, s{S_OOB}
        """)
        return L + [Ev('setup2')]
    def F_wx(i):
        q = U(4)[3]; a = U(4)[2] + 2
        L = [I(f'v_bfe_u32 v{a}, v{V_L16}, 4, 2'), I(f'v_lshlrev_b32 v{a}, s{S_GP+3+i}, v{a}'),
             I(f'v_and_b32 v{a+1}, 0x3c0, v{V_L16}'), I(f'v_add3_u32 v{a}, v{a}, v{a+1}, s{S_W1K}'),
             I(f'v_add_u32 v{a+1}, {GL[i][1]}, v{a}'), I(f'v_add_u32 v{a}, {GL[i][0]}, v{a}')]
        for hh in range(2):
            L.append(I(f'ds_read_b64_tr_b16 {vr(q+2*hh,2)}, v{a+hh}', waits=[f'sg{i}_0', f'sg{i}_1']))
        L += [Delay(3),
              I(f'v_lshlrev_b32 v{a}, 21, v{V_L16}'), I(f'v_and_b32 v{a}, s{S_OOB}, v{a}'),
              I(f'v_lshrrev_b32 v{a+1}, 2, v{V_L16}'), I(f'v_or_b32 v{a}, v{a}, v{a+1}'),
              mf(V_T, ONES, q),
              I(f'buffer_store_dwordx4 {vr(q,4)}, v{V_L16}, {WS}, s{S_WXD+i} offen sc1', tok=f'wx{i}'),
              I(f's_lshr_b32 s{S_CNT}, s{S_WXD+i}, 3'), I(f's_add_u32 s{S_CNT}, s{S_CNT}, {CSP_OFF - WX_OFF // 8}'),
              I(f'buffer_store_dword v{V_T}, v{a}, {WS}, s{S_CNT} offen sc1', tok=f'wc{i}'), Ev(f'wxst{i}')]
        return L
    def F_csx():
        q = U(4)[0]; d = U(4)[1]
        L = sgroups(f"""
            s_add_u32 s30, s{S_WAVE}, 38
            s_cmp_lt_u32 s{S_WAVE}, 2
            s_cselect_b32 s30, s{S_WAVE}, s30
            s_cselect_b32 s31, 8, 9
            s_mul_i32 s{S_CNT}, s{S_J}, 112
            s_add_u32 s30, s30, s{S_CNT}
            s_lshl_b32 s30, s30, 7
            s_add_u32 s{S_CNT}, s30, {CSP_OFF}
        """)
        L += [I(f'v_lshrrev_b32 v{q}, 8, v{V_L16}'), I(f'v_cmp_gt_u32 vcc, 2, v{q}'), I(f'v_lshlrev_b32 v{q}, s31, v{q}'),
              I(f'v_bfe_u32 v{q+1}, v{V_L16}, 4, 4'), I(f'v_lshl_add_u32 v{q}, v{q+1}, 2, v{q}'), I(f'v_mov_b32 v{q+1}, s{S_OOB}'),
              I(f'v_cndmask_b32 v{q+1}, v{q+1}, v{q}, vcc'), I('s_lshl_b32 s31, 4, s31')]
        for i in range(5):
            L.append(I(f'buffer_load_dword v{d+i if i < 4 else q+2}, v{q if i < 4 else q+1}, {WS}, s{S_CNT} offen sc1'))
            if i < 4: L.append(I(f's_add_u32 s{S_CNT}, s{S_CNT}, s31'))
        return L
    def F_csx2():
        q = U(4)[0]; d = U(4)[1]
        L = [I(f'v_add_f32 v{d}, v{d}, v{d+1}'), I(f'v_add_f32 v{d+2}, v{d+2}, v{d+3}'), I(f'v_add_f32 v{d}, v{d}, v{q+2}'), I(f'v_add_f32 v{d}, v{d}, v{d+2}')]
        L += [I(f'v_mov_b32 v{d+1}, v{d}'), Delay(1), I(f'v_permlane32_swap_b32 v{d}, v{d+1}'), I(f'v_add_f32 v{d}, v{d}, v{d+1}')]
        return L + cswrite(d, 1, q)
    def F_stats(between):
        q = [U(4)[2], U(4)[3]]; a = V_T
        loads = lambda: [I(f'buffer_load_dwordx4 {vr(q[mt],4)}, v{a}, {WS}, s{S_PT} offen offset:{2048*mt} sc1') for mt in range(2)]
        def check():
            return [I(f'v_xor_b32 v{q[mt]+k}, s{S_NON}, v{q[mt]+k}') for mt in range(2) for k in (1, 3)] + \
                   [I(f'v_or3_b32 v{q[0]+1}, v{q[0]+1}, v{q[0]+3}, v{q[1]+1}'), I(f'v_or_b32 v{q[0]+1}, v{q[0]+1}, v{q[1]+3}'), I(f'v_cmp_ne_u32 vcc, 0, v{q[0]+1}')]
        L = [I(f'v_bfe_u32 v{a}, v{V_L16}, 4, 4'), I(f'v_lshlrev_b32 v{a}, 7, v{a}'),
             I(f's_lshl_b32 s{S_PT}, s{S_RB}, 3'), I(f's_add_u32 s{S_PT}, s{S_PT}, s{S_WAVE}'), I(f's_lshl_b32 s{S_PT}, s{S_PT}, 12')]
        return L + loads() + between + [retry_group(loads, check)]
    def F_stats2():
        q = [U(4)[2], U(4)[3]]; a = V_T
        L = [Need('xdone')]
        L += [I(f'v_lshrrev_b32 v{a}, 5, v{a}'), I(f's_add_u32 s{S_CNT}, s{S_W1K}, {MISC}'), I(f'v_add_u32 v{a}, s{S_CNT}, v{a}'),
              I(f'v_cmp_gt_u32 vcc, 0x200, v{V_L16}')]
        for mt in range(2): L += [I(f'ds_write_b32 v{a}, v{q[mt]+2} offset:{512 + 64*mt}')]
        for mt in range(2):
            L += [I(f'v_cvt_pk_bf16_f32 v{q[mt]}, v{q[mt]}, v{q[mt]}'), I(f'v_mul_f32 v{q[mt]+2}, {f2u(K0C):#x}, v{q[mt]+2}'),
                  I(f'v_cndmask_b32 v{BN[mt]}, 0, v{q[mt]}, vcc'), I(f'v_and_b32 v{C0[mt]}, 0xffffff7f, v{q[mt]+2}')]
        return L + [Ev('stats')]
    def F_c1():
        L = [I(f'v_mul_f32 v{C1[mt]}, v{C0[mt]}, v{C0[mt]}') for mt in range(2)]
        L += [I(f'v_mul_f32 v{C1[mt]}, {f2u(0.044715 / (K0C * K0C)):#x}, v{C1[mt]}') for mt in range(2)]
        L += [I(f'v_mul_f32 v{C1[mt]}, v{C1[mt]}, v{C0[mt]}') for mt in range(2)]
        return L
    def F_rpat():
        a, b = q2 + 1, q2 + 2
        return [I(f'v_lshrrev_b32 v{a}, 3, v{V_L16}'), I(f'v_xor_b32 v{a}, v{a}, v{V_L16}'), I(f'v_and_b32 v{a}, 0x60, v{a}'),
                I(f'v_and_or_b32 v{a}, v{V_L16}, 16, v{a}'), I(f'v_lshrrev_b32 v{b}, 8, v{V_L16}'), I(f'v_mad_u32_u24 v{a}, v{b}, s{S_LEFT}, v{a}'),
                I(f'v_lshrrev_b32 v{b}, 7, v{V_L16}'), I(f'v_mul_u32_u24 v{b}, 1152, v{b}'), I(f'v_add_u32 v{a}, v{a}, v{b}'), Ev('rpat')]
    def F_tpat():
        return [I(f'v_min_u32 v{q2}, {17*16}, v{V_L16}'), I(f'v_mul_u32_u24 v{q2}, 576, v{q2}'),
                [I(f's_lshl_b32 s{S_RS}, s{S_RB}, 2'), I(f's_and_b32 s73, s{S_WAVE}, 3'), I(f's_add_u32 s{S_RS}, s{S_RS}, s73')],
                [I(f's_mul_i32 s{S_RS}, s{S_RS}, {18*9216}'), I(f's_lshl_b32 s73, s{S_J}, 8'), I(f's_add_u32 s{S_RS}, s{S_RS}, s73')], Ev('tpat')]
    def touch():
        events['tissued'] = st.gap
        return [I(f'buffer_load_dword v{V_A}, v{q2}, s[{S_W}:{S_W+3}], s{S_RS} offen offset:128')]
    def F_dmah(VA, VB):
        return [I(f'v_bfe_u32 v{VA}, v{V_L16}, 6, 2'), I(f'v_lshrrev_b32 v{VB}, 8, v{V_L16}'), I(f'v_lshl_add_u32 v{VA}, v{VB}, 3, v{VA}'),
                [I(f's_and_b32 s73, s{S_WAVE}, 1'), I(f's_lshl_b32 s73, s73, 2'), I(f's_and_b32 s74, s{S_WAVE}, 2'),
                 I('s_lshl_b32 s74, s74, 4'), I(f's_add_u32 s73, s73, s74')],
                I(f'v_add_u32 v{VA}, s73, v{VA}'), I(f'v_mul_u32_u24 v{VA}, 9216, v{VA}'),
                I(f'v_lshlrev_b32 v{VB}, 5, v{VB}'), I(f'v_xor_b32 v{VB}, v{VB}, v{V_L16}'), I(f'v_and_b32 v{VB}, 0x30, v{VB}'),
                I(f's_lshl_b32 s73, s{S_J}, 8'), I(f'v_add3_u32 v{V_DMA}, v{VA}, v{VB}, s73'), Ev('dmah')]
    def F_trh():
        return [I(f'v_and_b32 v{V_TH}, 0x3c0, v{V_L16}'), I(f'v_bfe_u32 v{V_TH+1}, v{V_L16}, 8, 1'), I(f'v_lshl_add_u32 v{V_TH}, v{V_TH+1}, 5, v{V_TH}'),
                I(f'v_bfe_u32 v{V_TH+1}, v{V_L16}, 4, 2'), I(f'v_lshl_add_u32 v{V_TH}, v{V_TH+1}, 3, v{V_TH}'), I(f'v_xor_b32 v{V_TH+1}, 32, v{V_TH}'), Ev('trh')]
    def F_relayout(qd, VA, VB):
        L = [I(f'v_bfe_u32 v{VA}, v{V_L16}, 6, 4'), I(f'v_lshlrev_b32 v{VA}, 7, v{VA}'), I(f'v_bfe_u32 v{VB}, v{V_L16}, 7, 2'),
             I(f'v_lshl_add_u32 v{VA}, v{VB}, 5, v{VA}'), I(f'v_bfe_u32 v{VB}, v{V_L16}, 4, 2'), I(f'v_lshl_add_u32 v{VA}, v{VB}, 3, v{VA}'),
             [I(f's_and_b32 s{S_CNT}, s{S_WAVE}, 3'), I(f's_lshl_b32 s{S_CNT}, s{S_CNT}, 5'), I(f's_and_b32 s30, s{S_W1K}, 0x1000'),
              I(f's_or_b32 s{S_CNT}, s{S_CNT}, s30')],
             I(f'v_xor_b32 v{VA}, s{S_CNT}, v{VA}'), I(f'v_add_u32 v{VA}, {6*SLOT}, v{VA}')]
        def rd(i):
            o = i * SLOT; q = qd[i % 2]
            assert slot_of(IT_R + i) == 6 + i
            return [I(f'ds_read_b64_tr_b16 {vr(q,2)}, v{VA} offset:{o}'), I(f'ds_read_b64_tr_b16 {vr(q+2,2)}, v{VA} offset:{o+2048}')]
        def sto(i): return I(f'buffer_store_dwordx4 {vr(qd[i % 2],4)}, v{V_L16}, {WS}, s{S_RDST+i if not cfg.get("fakeW") else S_OOB} offen sc1', tok=f'w2a{i}')
        return L + [Need('rland')] + rd(0) + rd(1), [[sto(0)] + rd(2), [sto(1)], [sto(2), Ev('rdone')]]
    def F_poison(q):
        L = [I(f'v_mov_b32 v{q+r}, -1') for r in range(4)]
        S_ = [I(f'buffer_store_dwordx4 {vr(q,4)}, v{V_L16}, {WS}, s{S_EX} offen offset:{1024*p} sc1', tok=f'po{p}') for p in range(3)]
        L += [I(f'v_lshrrev_b32 v{q+4}, 1, v{V_L16}')]
        S_ += [I(f'buffer_store_dwordx2 {vr(q,2)}, v{q+4}, {WS}, s{S_E8P} offen sc1', tok='po3')]
        for mt in range(2):
            x = hstore(q, 4, mt, 3); x[1].tok = f'p3_{mt}'; S_.append(x)
        return L, S_ + [Ev('podone')]
    def E_qkv():
        qa, qb = U(4)[2], U(4)[3]
        VA, VB, VC, VD = qb, qb + 1, qb + 2, qb + 3
        L = []
        L += [I(f'v_lshrrev_b32 v{V_A}, 4, v{V_L16}'), I(f'v_and_b32 v{V_A}, 0x30, v{V_A}'), I(f's_add_u32 s{S_CNT}, s{S_W1K}, {MISC}'),
              I(f'v_add_u32 v{V_A}, s{S_CNT}, v{V_A}'),
              I(f'ds_read_b128 {vr(qa,4)}, v{V_A} offset:512'), I(f'ds_read_b128 {vr(qb,4)}, v{V_A} offset:576')]
        for mt in range(2): L.append(I(f'v_mul_f32 v{V_T+mt}, {f2u(1.0/K0C):#x}, v{C0[mt]}'))
        for mt in range(2): L += [I(f'v_mul_f32 v{T0[mt]+r}, v{T0[mt]+r}, v{V_T+mt}') for r in range(4)]
        for mt in range(2):
            for T in (T1, T2, T3):
                L += [I(f'v_mul_f32 v{T[mt]+r}, v{T[mt]+r}, v{(qa, qb)[mt]+r}') for r in range(4)]
        L += pack2(T2[0], T2[0], T2[1])
        L += pack2(T2[1], T3[0], T3[1])
        L.append(I(f'v_mov_b32 v{VB}, 0x3f803f80'))
        L.append(I(f'v_add_u32 v{VA}, s{S_W1K}, v{V_L16}'))
        for r in range(4): L.append(I(f'v_cndmask_b32 v{T2[1]+r}, v{T2[1]+r}, v{VB}, s[{S_M4}:{S_M4+1}]'))
        L += phi_quad(T1[0]) + phi_quad(T1[1]) + pack2(T1[0], T1[0], T1[1])
        L += phi_quad(T3[0]) + phi_quad(T3[1]) + pack2(T3[0], T3[0], T3[1])
        L.append(I(f'v_add_u32 v{VA}, {SCR}, v{VA}'))
        L.append(I(f'v_bfe_u32 v{VC}, v{V_L16}, 6, 2'))
        L.append(mf(T1[1], T1[0], T2[0]))
        L.append(mf(T3[1], T1[0], T2[1]))
        L.append(I(f'ds_write_b128 v{VA}, {vr(T3[0],4)}'))
        L.append(I(f'v_lshlrev_b32 v{VC}, 8, v{VC}'))
        L.append(I(f'v_bfe_u32 v{VB}, v{V_L16}, 4, 2'))
        L.append(mf(T1[0], T3[0], T2[0]))
        L.append(I(f'v_lshl_add_u32 v{VC}, v{VB}, 1, v{VC}'))
        L.append(I(f'v_add_u32 v{VC}, s{S_W1K}, v{VC}'))
        L.append(mf(T2[0], T3[0], T2[1]))
        L.append(I(f'v_add_u32 v{VC}, {SCR}, v{VC}'))
        L.append(I(f'v_bfe_u32 v{VD}, v{V_L16}, 8, 2'))
        for mt in range(2):
            L.append(I(f'ds_read_u16 v{qa+2*mt}, v{VC} offset:{4*16 + mt*8}'))
            L.append(I(f'ds_read_u16 v{qa+2*mt+1}, v{VC} offset:{5*16 + mt*8}'))
        L.append(I(f'ds_write_b128 v{VA}, {vr(T1[1],4)}', tok='kva0'))
        L.append(I(f'v_bfe_u32 v{VB}, v{V_L16}, 4, 4'))
        L.append(I(f'v_mad_u32_u24 v{VA}, v{VD}, 3, v{VB}'))
        L.append(I(f'v_lshlrev_b32 v{VA}, 4, v{VA}'))
        L.append(I(f'v_mov_b32 v{VC}, 0xc0'))
        L.append(I(f'v_cmp_gt_u32 vcc, 3, v{VB}'))
        L.append(I(f'v_lshlrev_b32 v{VB}, 4, v{VB}'))
        L.append(I(f'v_cndmask_b32 v{VA}, v{VC}, v{VA}, vcc'))
        L.append(I(f'v_add_u32 v{VB}, 0x100, v{VB}'))
        L.append(I(f's_add_u32 s{S_CNT}, s{S_W1K}, {MISC}'))
        L.append(I(f'v_cndmask_b32 v{VB}, v{VC}, v{VB}, s[{S_G2}:{S_G2+1}]'))
        L.append(I(f'v_add_u32 v{VA}, s{S_CNT}, v{VA}'))
        L.append(I(f'v_add_u32 v{VB}, s{S_CNT}, v{VB}'))
        L.append(I(f'ds_write_b128 v{VA}, {vr(T3[1],4)}', tok='kva1'))
        L.append(I(f'ds_write_b64 v{VB}, {vr(T1[0],2)}', tok='kva2'))
        L.append(I(f'ds_write_b64 v{VB}, {vr(T2[0],2)} offset:8', tok='kva3'))
        L.append(Ev('qkvdone'))
        return L
    def E_q():
        qa = U(4)[2]; L = []
        for mt in range(2):
            L += phi_quad(T0[mt])
            L += [I(f'v_cvt_pk_bf16_f32 v{T0[mt]}, v{T0[mt]}, v{T0[mt]+1}'), I(f'v_cvt_pk_bf16_f32 v{T0[mt]+1}, v{T0[mt]+2}, v{T0[mt]+3}'),
                  I(f'v_lshl_or_b32 v{T0[mt]+2}, v{qa+2*mt+1}, 16, v{qa+2*mt}'), I(f'v_mov_b32 v{T0[mt]+3}, 0')]
        return L + [Ev('qdone')]
    G = T1[0]
    def sum8(g, s):
        return [I(f'v_add_f32 v{g}, v{g}, v{g+s}'), I(f'v_add_f32 v{g+2*s}, v{g+2*s}, v{g+3*s}'), I(f'v_add_f32 v{g+4*s}, v{g+4*s}, v{g+5*s}'),
                I(f'v_add_f32 v{g+6*s}, v{g+6*s}, v{g+7*s}'), I(f'v_add_f32 v{g}, v{g}, v{g+2*s}'), I(f'v_add_f32 v{g+4*s}, v{g+4*s}, v{g+6*s}'),
                I(f'v_add_f32 v{g}, v{g}, v{g+4*s}')]
    def F_publish(between):
        VA = V_A
        L = [I(f'v_lshrrev_b32 v{VA}, 2, v{V_L16}'), I(f'v_add_u32 v{VA}, s{S_RED}, v{VA}')]
        for p in range(8): L.append(I(f'ds_read_b32 v{G+p}, v{VA} offset:{1024*p}'))
        L += between + sum8(G, 1)
        L += [I(f'v_mov_b32 v{G+1}, s{S_NON}'), I(f'v_lshrrev_b32 v{VA}, 1, v{V_L16}'),
              I(f'buffer_store_dwordx2 {vr(G,2)}, v{VA}, {WS}, s{S_KVST} offen sc1'), Ev('published')]
        L += [I(f'v_mov_b32 v{T1[0]+r}, 0x3f803f80') for r in range(4)] + [Ev('ones2')]
        return L
    G2 = XF(0, 0); VK = XF(2, 0)
    def kv_loads():
        L = []
        for p in range(8):
            t = ftmp()
            L.append(I(f's_add_u32 s{t}, s{S_KVLD}, {3072*p}'))
            L.append(I(f'buffer_load_dwordx2 {vr(G2+2*p,2)}, v{VK}, {WS}, s{t} offen sc1'))
        return L
    def kv_check():
        L = [I(f'v_xor_b32 v{G2+2*p+1}, s{S_NON}, v{G2+2*p+1}') for p in range(8)]
        L += [I(f'v_or3_b32 v{G2+1}, v{G2+1}, v{G2+3}, v{G2+5}'), I(f'v_or3_b32 v{G2+7}, v{G2+7}, v{G2+9}, v{G2+11}'),
              I(f'v_or3_b32 v{G2+1}, v{G2+1}, v{G2+13}, v{G2+15}'), I(f'v_or_b32 v{G2+1}, v{G2+1}, v{G2+7}'),
              I(f'v_cmp_ne_u32 vcc, 0, v{G2+1}')]
        return L
    def F_kvload(): return [I(f'v_lshrrev_b32 v{VK}, 1, v{V_L16}')] + kv_loads()
    def F_gather():
        g = retry_group(kv_loads, kv_check)
        L = g[:12] + [g[12:]] + sum8(G2, 2)
        L += [I(f'v_lshrrev_b32 v{VK+1}, 2, v{V_L16}'), I(f's_lshr_b32 s{S_CNT}, s{S_W1K}, 2'), I(f's_add_u32 s{S_CNT}, s{S_CNT}, {KVS}'), I(f'v_add_u32 v{VK+1}, s{S_CNT}, v{VK+1}'),
              I(f'ds_write_b32 v{VK+1}, v{G2}', tok='kvb0'), Ev('gathered')]
        return L
    def F_o():
        E0, E1, P2, X_ = U(2)
        t = V_T
        L = [I(f'v_add_u32 v{t}, {KVS}, v{V_L16}'), I(f'v_bfe_u32 v{t+1}, v{V_L16}, 8, 2'),
             I(f'ds_read_b128 {vr(E0,4)}, v{t}'),
             I(f'v_bfe_u32 v{t+2}, v{V_L16}, 4, 2'), I(f'v_mad_u32_u24 v{t+1}, v{t+1}, 3, v{t+2}'),
             I(f'v_lshlrev_b32 v{t+1}, 4, v{t+1}'), I(f'v_add_u32 v{t+1}, {KVS}, v{t+1}'),
             I(f'ds_read_b128 {vr(E1,4)}, v{t+1} offset:1024'),
             I(f'v_and_b32 v{t+3}, 0xf0, v{V_L16}'), I(f'v_add_u32 v{t+3}, {KVS}, v{t+3}'),
             I(f'ds_read_b64 {vr(P2,2)}, v{t+3} offset:1280'),
             I(f'v_and_b32 v{t+2}, 0x30, v{V_L16}'), I(f'v_add_u32 v{t+2}, {KVS}, v{t+2}'),
             I(f'ds_read_b64 {vr(P2+2,2)}, v{t+2} offset:1288')]
        for mt in range(2): L.append(I(f'v_mul_f32 v{X_+mt}, {f2u(1.0/K0C):#x}, v{C0[mt]}'))
        for mt in range(2): L.append(I(f'v_mul_f32 v{X_+mt}, v{X_+mt}, v{X_+mt}'))
        L += [I(f'v_lshrrev_b32 v{X_+2}, 1, v{V_L16}'), I(f'v_lshrrev_b32 v{X_+3}, 2, v{V_L16}'), Delay(1)]
        for E, c in ((E0, 0), (E1, 2)):
            L.append(I(f'v_cvt_pk_bf16_f32 v{E}, v{E}, v{E+1}'))
            L.append(I(f'v_cvt_pk_bf16_f32 v{E+1}, v{E+2}, v{E+3}'))
            L.append(I(f'v_cvt_pk_bf16_f32 v{E+2}, v{P2+c}, v{P2+c+1}'))
            L.append(I(f'v_mov_b32 v{E+3}, 0'))
        for E in (E0, E1): L.append(I(f'v_cndmask_b32 v{E+2}, 0, v{E+2}, s[{S_G2}:{S_G2+1}]'))
        L.append(Ev('scrfree'))
        D0 = [ACC(3, 0, 0), ACC(3, 0, 1)]; D1 = [ACC(3, 1, 0), ACC(3, 1, 1)]
        L += [I(f'v_mov_b32 v{P2}, s{S_OOB}'), I(f'v_cmp_gt_u32 vcc, 0x80, v{X_+3}')]
        for mt in range(2):
            L.append(mf(D1[mt], E1, T0[mt])); L.append(mf(D0[mt], E0, T0[mt]))
        L += [I(f'v_cndmask_b32 v{X_+3}, v{P2}, v{X_+3}, vcc'), I(f'v_cmp_gt_u32 vcc, 0x100, v{V_L16}')]
        for mt in range(2): L.append(I(f'v_add_f32 v{D1[mt]+2}, s{S_EPS}, v{D1[mt]+2}'))
        for mt in range(2): L.append(I(f'v_mul_f32 v{D1[mt]+2}, v{D1[mt]+2}, v{X_+mt}'))
        for mt in range(2): L.append(I(f'v_rcp_f32 v{D1[mt]+2}, v{D1[mt]+2}'))
        for mt in range(2):
            for r in range(4): L.append(I(f'v_mul_f32 v{D0[mt]+r}, v{D0[mt]+r}, v{D1[mt]+2}'))
            for r in (0, 1): L.append(I(f'v_mul_f32 v{D1[mt]+r}, v{D1[mt]+r}, v{D1[mt]+2}'))
            L.append(I(f'v_cvt_pk_bf16_f32 v{D0[mt]}, v{D0[mt]}, v{D0[mt]+1}'))
            L.append(I(f'v_cvt_pk_bf16_f32 v{D0[mt]+1}, v{D0[mt]+2}, v{D0[mt]+3}'))
            L += hstore(D0[mt], 2, mt, 4, 512, X_ + 2)
            L.append(I(f'v_cvt_pk_bf16_f32 v{D1[mt]}, v{D1[mt]}, v{D1[mt]+1}'))
        L.append(I(f'v_cndmask_b32 v{D1[0]}, v{D1[1]}, v{D1[0]}, vcc'))
        L.append(I(f'buffer_store_dword v{D1[0]}, v{X_+3}, {WS}, s{S_A2L} offen {HST}', tok='ol'))
        L.append(Ev('odone'))
        return L
    def F_p2setup():
        return [I(f'v_bfe_u32 v{VSP+3}, v{V_L16}, 4, 4'), I(f'v_mul_u32_u24 v{VSP}, 1152, v{VSP+3}'), I(f'v_lshrrev_b32 v{VSP+1}, 8, v{V_L16}'),
                I(f'v_lshl_add_u32 v{VSP}, v{VSP+1}, 3, v{VSP}'),
                I(f'v_and_b32 v{VSP+2}, 0x300, v{V_L16}'), I(f'v_lshl_add_u32 v{VSP+2}, v{VSP+3}, 2, v{VSP+2}'), I(f'v_lshlrev_b32 v{VSP+3}, 7, v{VSP+3}'),
                I(f'v_mov_b32 v{V_AL+2}, 0'), I(f'v_mov_b32 v{V_AL+3}, 0'), Ev('p2setup')]
    p2slots = {slot_of(IT_W2 + k) for k in range(37, 48)}
    free = [s for s in range(NSLOT) if s not in p2slots]
    assert len(free) == 8
    def F_cwrite():
        L = [I(f'v_add_u32 v12, s{S_W1K}, v{V_L16}'), I(f'v_add_u32 v13, {12*SLOT}, v12'), I(f'v_add_u32 v14, {6*SLOT}, v12')]
        return L
    def cmb(k):
        s_ = free[k]
        return (12, s_ * SLOT) if s_ < 6 else ((14, (s_ - 6) * SLOT) if s_ < 12 else (13, (s_ - 12) * SLOT))
    def F_cw2(lts):
        L = []
        for lt in lts:
            r_, o_ = cmb(lt - 2)
            L.append(I(f'ds_write_b128 v{r_}, {vr(ACC2(lt,1),4)} offset:{o_}', tok=f'cw{lt}'))
        return L
    RB_ = [acc1[9], acc1[11], acc1[13]]
    def F_send():
        L = []
        def rd(lt, q):
            r_, o_ = cmb(lt - 2)
            return I(f'ds_read_b128 {vr(q,4)}, v{r_} offset:{o_}')
        def ad(lt, q): return [I(f'v_add_f32 v{ACC2(lt,0)+r}, v{ACC2(lt,0)+r}, v{q+r}') for r in range(4)]
        L += [rd(2, RB_[0]), rd(3, RB_[1]), rd(4, RB_[2]), Delay(2)]
        nxt = 5
        for p in range(1, 4):
            for lt in (2*p, 2*p+1):
                q = RB_[(lt - 2) % 3]
                L += ad(lt, q)
                if nxt <= 8: L.append(rd(nxt, q)); nxt += 1
            a, b = ACC2(2*p, 0), ACC2(2*p+1, 0)
            L += pack2(a, a, b)
            L += [I(f'v_min_u32 v{a+r}, -2, v{a+r}') for r in range(4)]
            L.append(I(f'buffer_store_dwordx4 {vr(a,4)}, v{V_L16}, {WS}, s{S_EXS+p-1} offen sc1'))
        L += ad(8, RB_[0])
        a = ACC2(8, 0); q = RB_[1]
        L += [I(f'v_cvt_pk_bf16_f32 v{q}, v{a}, v{a+1}'), I(f'v_cvt_pk_bf16_f32 v{q+1}, v{a+2}, v{a+3}'),
              I(f'v_min_u32 v{q}, -2, v{q}'), I(f'v_min_u32 v{q+1}, -2, v{q+1}'),
              I(f'buffer_store_dwordx2 {vr(q,2)}, v{V_L8}, {WS}, s{S_E8S} offen sc1'), Ev('sent')]
        return L

    memq = []
    def mq(step, evs, mk, item=None, by=None, ordr=None): memq.append(dict(step=step, ev=evs, mk=mk, item=item, by=by, ordr=ordr))
    def xstep(ks): return SO[('S1', ks) if ks < K1 else ('S1a', ks)]
    n0 = NPRE
    for k in range(PS, len(stg)):
        for h in range(2): mq(0, [f'srd{k-NR}'] if k >= NR else [], (lambda k=k, h=h: sdma(k, h)), ordr='s')
        if n0 < 18:
            mq(0, [], (lambda n=n0: dma(n)), n0, ordr='w'); n0 += 1
        if GPOS <= k < GPOS + 2:
            for h in range(2): mq(cfg.get('gstep', 3), [], (lambda g=k-GPOS, h=h: gdma(g, h)), ordr='g')
    for n in range(n0, 18): mq(0, [], (lambda n=n: dma(n)), n, ordr='w')
    NXB = cfg.get('nxb', 8)
    for n in range(IT_Q, IT_Q + NXB): mq(0, ['wxok', 'rxinit'], (lambda n=n: dma(n)), n, ordr='s')
    mq(0, ['tpat'], touch, ordr='s')
    for n in range(IT_R, IT_Q): mq(0, ['rpat'], (lambda n=n: dma(n)), n, ordr='s')
    for n in range(IT_Q + NXB, IT_SCR): mq(SO[tuple(cfg.get('xr', ('S2', 9)))], ['wxok', 'rxinit'], (lambda n=n: dma(n)), n, ordr='s')
    for n in range(IT_L1, IT_W2): mq(SO[('S3', cfg.get('lst', 3))], ['dmah'], (lambda n=n: dma(n)), n, ordr='w')
    TORD = [0, 1, 2, 4, 3]
    def aload(sp, mt, half=None):
        t = stmp(); off = ((sp & 3) * 5 + TORD[sp >> 2]) * 1024
        if half is not None:
            off += half * 512
            return [I(f's_add_u32 s{t}, s{S_A + mt}, {off & ~4095}'),
                    I(f'buffer_load_dwordx2 {vr(AF(sp, mt) + 2 * half, 2)}, v{V_L8}, {WS}, s{t} offen offset:{off & 4095} sc1')]
        return [I(f's_add_u32 s{t}, s{S_A + mt}, {off & ~4095}'),
                I(f'buffer_load_dwordx4 {vr(AF(sp, mt), 4)}, v{V_L16}, {WS}, s{t} offen offset:{off & 4095} sc1')]
    def xfree_step(ks):
        return (SO[('S4c', ks)] if ks < K4 else SO[('S4e', ks)]) + 1
    w2n = IT_W2
    VX = 8
    for sp in range(21):
        while w2n <= IT_W2 + ((sp * 7 + 6) >> 2):
            mq(0, ['w2ok', 'setup2'], (lambda n=w2n: dma(n)), w2n); w2n += 1
        if sp < 20:
            ev = [['h4ok'], ['h4ok'], ['h5ok'], ['h6ok', 'l8'], ['h5ok']][sp >> 2]
            if sp < 3: ev = ev + ['gathered']
            if sp >= 17: ev = ev + ['e3done']
            for mt in range(2):
                for half in ([None] if TORD[sp >> 2] != 4 else [0, 1]):
                    mq(xfree_step(sp) if sp < 16 else SO[('P1', sp - cfg.get('t3lead', 3))], ev + ['setup2'], (lambda sp=sp, mt=mt, half=half: aload(sp, mt, half)), by=SO[('P1', sp if sp < 16 else sp - 1)])
        if sp == 15:
            for k in range(2):
                mq(0, ['h6ok', 'p2setup'], (lambda k=k: [I(f'buffer_load_dword v{V_AL+k}, v{VSP+2}, {WS}, s{S_AL} offen offset:{128*k} sc1')]), by=SO[('P1', 20)])
    for n in list(range(w2n, w2n + 5)) + [NITEM - 1] + list(range(w2n + 5, NITEM - 1)): mq(0, [], (lambda n=n: dma(n)), n)
    R = AF(0, 0); R8 = R + 12
    rloads = lambda: ([I(f'buffer_load_dwordx4 {vr(R+4*p,4)}, v{V_L16}, {WS}, s{S_EX} offen offset:{1024*p} sc1') for p in range(3)]
                      + [I(f'buffer_load_dwordx2 {vr(R8+2*p,2)}, v{V_L8}, {WS}, s{S_E8R} offen offset:{512*p} sc1') for p in range(3)])
    for mk in (lambda: [I(f'buffer_load_dwordx2 {vr(8,2)}, v{VSP}, {XS}, s{S_O} offen')],
               lambda: [I(f'buffer_load_dwordx2 {vr(10,2)}, v{VSP}, {XS}, s{S_O} offen offset:32')],
               lambda: [I(f'buffer_load_dwordx2 {vr(0,2)}, v{VSP}, {XS}, s{S_O8} offen')],
               lambda: [I(f'buffer_load_dword v15, v{VSP+3}, {WS}, s{S_STK} offen offset:8 sc1')]):
        mq(0, ['e3done', 'p2setup', 'pook'], mk, by=SO[('P2a', cfg.get('pb', 4))])

    KP = tuple(cfg.get('kp', ('S4a', K3 + 5))); KO = tuple(cfg.get('ko', ('S4d', K4 + 3)))
    PB = ('P2a', cfg.get('pb', 4))
    WXF = ('S1', cfg.get('wxf', 11)); RS = ('S3', 5); F3F = KP
    barspec = cfg.get('bars', None) or (
        [('S1', 1), WXF] + [('S1', k) for k in range(0, K1, cfg.get('s1b', 1))] + [('S1a', K1), ('S1b', K1), ('S1d', K1 + 2), ('S2', 0), ('S2', 9), ('S3', 0), ('S3', 5), ('S3', 10), ('S3', 17),
         ('S4', 0), ('S4', 5), KP, ('S4b', K3), ('S4c', 0), ('S4c', 4), KO, ('S4e', K4), ('S4e', K4 + 5)]
        + [('P1', k) for k in range(0, 21, 3)] + [('P2a', 0), PB, ('P2a', 14), ('P2b', 6)])
    bars = sorted(set(SO[tuple(b)] for b in barspec))
    if 'getbars' in cfg: cfg['getbars'] += [list(steps[b]) for b in bars]
    need = {}
    for bi, b in enumerate(bars):
        lo = first_frag[b] + (D if bi else 0)
        hi = first_frag[bars[bi + 1]] + D if bi + 1 < len(bars) else NF
        need[b] = sorted({frags[i]['item'] for i in range(lo, min(hi, NF))} - {None})
    last_use = {}
    for f in frags:
        if f['item'] is not None: last_use[f['item']] = f['step']
    need[SO[RS]] = sorted(set(need[SO[RS]]) | {IT_R, IT_R + 1, IT_R + 2})
    rel_ev = {IT_R: 'rdone', IT_R + 1: 'rdone', IT_R + 2: 'rdone', IT_SCR: 'scrfree', 'stage': 'xdone', 'gst': 'wxst1'}
    released = set()
    issued = {n: -1 for n in range(NPRE)}
    events['srd0'] = events['srd1'] = -9
    def spread(main, items, start, step):
        o = {}
        for k, x in enumerate(items): o.setdefault(min(start + k * step, len(main) - 1), []).extend(x if isinstance(x, list) else [x])
        L = []
        for k, x in enumerate(main):
            if k in o: L += o[k]
            L.append(x)
        return L
    avail = {}
    def at(step, f): avail.setdefault(SO[step], []).append(f)
    xrd = {}
    for L_ in range(1, 9):
        xrd.setdefault(min(xstep(2 * L_) - 1, SO[('S1', K1 - 1)]), []).append(L_)
    DL = cfg.get('dl', 36); S_RSRC2 = S_RDST
    at(('S1', cfg.get('rowat', 1)), lambda: F_nonce())
    at(('S1', cfg.get('rowat', 1)), lambda: [Need('gl0')] + F_wx(0) + [Need('gl1')] + F_wx(1))
    at(WXF, lambda: [Need('setup0')] + setflag(S_F2S, 0, [], q3, q3 + 1))
    at(('S1', cfg.get('stat', 11)), lambda: F_stats([Delay(DL)]))
    at(('S1', cfg.get('wxp', 13)), lambda: poll([I(f's_mov_b32 s{S_PT}, s{S_F2P}')], 3, 'wxok', False, True, [Delay(cfg.get('dlw', 26))], V_T + 1, V_T + 2) + F_stats2())
    at(('S1b', K1), lambda: [Need('setup1'), Need('wxok')] + F_csx() + F_c1() + F_rpat() + F_tpat())
    at(('S1b', K1 + 2), lambda: E_first(0))
    po = F_poison(T2[0])
    at(('S1c', K1), lambda: E_second(0, 1, 0) + [Ev('u01free')])
    rl = F_relayout([ACC(2, 1, 0), ACC(2, 1, 1)], V_TH, V_T)
    at(('S2', 0), lambda: E_first(2) + rl[0] + spread(E_second(2, 3, 1) + [Ev('u23free')], rl[1], 6, 14))
    at(('S3', 2), lambda: [Need('tissued')] + F_trh() + E_quarter(4) + [Ev('u4free')] + [I(f'v_mov_b32 v{ONES+r}, 0x3f803f80') for r in range(4)] + [Ev('ones1')])
    at(('S4', 0), lambda: setflag(S_FL, 0, ['h0_0_0', 'h0_1_0', 'h1_0_0', 'h1_1_0'], q3, q3 + 1) + setflag(S_F2S, 0x8000, [], q3, q3 + 1)[5:] + E_qkv())
    w2p = [I(f's_and_b32 s{S_RSRC2}, s2, 3'), I(f's_lshl_b32 s{S_RSRC2}, s{S_RSRC2}, 13'), I(f's_add_u32 s{S_RSRC2}, s{S_RSRC2}, s{S_W1K}'),
           I(f's_add_u32 s{S_RSRC2}, s{S_RSRC2}, {F2_OFF + 0x8000}')]
    at(KP, lambda: F_publish([Delay(3)]) + po[0] + spread(E_q(), po[1], 1, 7))
    at(('S4b', K3 + 2), lambda: pollh(0, 'h4ok', poll(w2p, 3, 'w2ok', False, True, E_first(2), q3 + 2, q3 + 3, S_RSRC2), q3, q3 + 1) + [Ev('u4free2'), Ev('e2b')])
    at(('S4c', 0), lambda: E_second(2, 3, 2)[:36])
    at(('S4c', 3), lambda: F_kvload() + E_second(2, 3, 2)[36:] + [Ev('e2done')] + F_gather())
    at(KO, lambda: F_o())
    at(('S4e', K4 + 2), lambda: E_first(4) + [Ev('e4a')])
    e3 = E_second(4, 1, 3)
    at(('P1', 0), lambda: [I(f'v_lshrrev_b32 v{V_L8}, 1, v{V_L16}'), Ev('l8')] + e3 + [Ev('e3done')] + F_p2setup())
    def t3check(sp):
        a0, a1 = AF(sp, 0), AF(sp, 1)
        def ld():
            L = []
            for mt in range(2):
                off = ((sp & 3) * 5 + 3) * 1024
                L += [I(f's_add_u32 s{S_PT}, s{S_A + mt}, {off & ~4095}'),
                      I(f'buffer_load_dwordx4 {vr(AF(sp, mt), 4)}, v{V_L16}, {WS}, s{S_PT} offen offset:{off & 4095} sc1')]
            return L
        ck = lambda: [I(f'v_max3_u32 v3, v{a0}, v{a0+1}, v{a0+2}'), I(f'v_max3_u32 v6, v{a0+3}, v{a1}, v{a1+1}'),
                      I(f'v_max3_u32 v3, v3, v{a1+2}, v{a1+3}'), I('v_max_u32 v3, v3, v6'), I('v_cmp_eq_u32 vcc, -1, v3')]
        g = retry_group(ld, ck)
        return [Delay(cfg.get('t3d', 8))] + g[:4] + [g[4:], Ev(f't3ok{sp}')]
    for sp in range(16, 20): at(('P1', sp - 1), lambda sp=sp: t3check(sp))
    at(('P1', cfg.get('pp', 10)), lambda: poll([I(f's_and_b32 s{S_PT}, s2, 0xfc'), I(f's_lshl_b32 s{S_PT}, s{S_PT}, 7'), I(f's_add_u32 s{S_PT}, s{S_PT}, {F4_OFF}')],
                                               2, 'pook', False, False, [Delay(28)], 3, 6) + [Need('e3done')] + F_cwrite() + [Ev('cwa')])
    at(('P2a', 0), lambda: F_cw2(range(4, 9)) + [I(f'v_xor_b32 v{r_}, 0x1000, v{r_}') for r_ in (12, 13, 14)] + [Ev('cwb')])
    if not cfg.get('fastsend', 1): at(PB, lambda: F_send())
    TT = acc1[0]
    at(('P2b', 2), lambda: [Need('sent'), I(f'v_xor_b32 v{TT}, 0x1000, v13'), I(f'ds_write_b128 v{TT}, {vr(ACC2(0,1),4)} offset:{MISC - 12*SLOT}', tok='c0w'), Ev('c0w')])
    at(('P2b', 6), lambda: [I(f'ds_read_b128 {vr(ACC2(0,1),4)}, v13 offset:{MISC - 12*SLOT}'), I('v_mul_f32 v15, v15, v15'), Delay(3)]
       + [I(f'v_add_f32 v{ACC2(0,0)+r}, v{ACC2(0,0)+r}, v{ACC2(0,1)+r}') for r in range(4)] + [Ev('c0done')])
    at(('P2b', cfg.get('rcv', 9)), lambda: rloads() + [Ev('rcv')])
    p5 = pollh(1, 'h5ok', [], 3, 6); p6 = pollh(2, 'h6ok', [], 3, 6)
    P5 = cfg.get('p5', 3); P6 = cfg.get('p6', 7); F6 = cfg.get('f6', 1)
    front2 = {SO[('S4e', K4)]: lambda: setflag(S_FL, HS, ['h2_0_0', 'h2_1_0', 'p3_0', 'p3_1'], V_A, V_DMA) + setflag(S_F3S, F4_OFF - F3_OFF, [], V_A, V_DMA)[5:] + [Ev('f5')],
              SO[('P1', F6)]: lambda: setflag(S_FL, 2*HS, ['h4_0_0', 'h4_1_0', 'h4_0_512', 'h4_1_512', 'ol'], 3, 6),
              SO[('P1', P5)]: lambda: p5[:-2], SO[('P1', P5 + 2)]: lambda: p5[-2:], SO[('P1', P6)]: lambda: p6[:-2], SO[('P1', P6 + 2)]: lambda: p6[-2:]}
    assert F6 < P5 and P5 + 2 < P6 and P6 + 2 <= cfg.get('pp', 10)
    front = {SO[('S1d', K1)]: lambda: F_csx2() + [Ev('csx')], SO[('S2', 0)]: lambda: [Need('l0issued')] + F_dmah(V_DMA, V_TH + 1)}
    front.update(front2)
    inline = {SO[('S1b', K1)]: lambda: cswrite(CSA, 0, ONES), SO[('S4b', K3)]: lambda: cswrite(CSA, 2, ONES), SO[('S4e', K4)]: lambda: cswrite(T1[1], 3, T1[0])}
    must = {('S1b', K1): ['stats'], ('S2', 0): ['csx'], WXF: ['wxst1'], ('S3', 0): ['u01free'], ('S3', 17): ['trh'],
            ('S4', 0): ['rdone', 'ones1'], KP: ['qkvdone'],
            ('S4c', 0): ['u4free2', 'published', 'ones2', 'e2b'], KO: ['gathered'], ('P1', 0): ['odone', 'e2done', 'f5'] + (['e4a'] if cfg.get('e4a', 0) else []), ('P2a', 0): ['cwa'], PB: ['cwb'], ('P2b', 6): ['c0w']}
    for sp in range(16, 20): must[('P1', sp)] = [f't3ok{sp}']
    must = {SO[k]: v for k, v in must.items()}
    b1 = sq_txt[-1].split('\n'); cut = [k for k, l in enumerate(b1) if f's_cselect_b32 s{S_F3S},' in l][0] + 1
    savail = {SO[('S1', 0)]: lambda: [Need('gissued')] + sgroups('\n'.join(b1[:cut])) + [Ev('setup0')] + sgroups('\n'.join(sq_txt[:-1])) + [Ev('rsetup')]
                                     + sgroups('\n'.join(b1[cut:])) + [Ev('setup1')],
              SO[('S4', 0)]: lambda: [Need('xissued'), Need('rdone')] + F_setup2()}
    bar_extra = {SO[WXF]: ['wx0', 'wx1', 'wc0', 'wc1'], SO[('S1b', K1)]: ['cs0'], SO[('S3', 0)]: ['cs1'],
                 SO[KP]: [f'kva{i}' for i in range(4)], SO[('S4', 0)]: ['w2a0', 'w2a1', 'w2a2'],
                 SO[('S4b', K3)]: ['cs2'], SO[KO]: ['kvb0'], SO[('S4e', K4)]: ['cs3'] + [f'po{p}' for p in range(4)],
                 SO[PB]: [f'cw{lt}' for lt in range(2, 9)], SO[('P2b', 6)]: ['c0w']}
    for k in bar_extra: assert k in bars, steps[k]

    fill = []; sfill = []; xfill = []
    st.gap = 0; st.delay_until = 0; st.cur = -99; st.ta = 0.0; st.adv = None; st.armed = None; st.force = False
    MEMSP = cfg.get('memsp', {})
    def memsp(s):
        if s < cfg.get('fasts', 0): return cfg.get('fastsp', 2.0)
        return MEMSP.get(steps[s][0][:2], {'S1': 3.8, 'P1': 4.0, 'S4': 4.0}.get(steps[s][0][:2], 4.5))
    def isI(x, kinds): return isinstance(x, I) and x.kind in kinds
    def housekeeping(force=False):
        while fill:
            x = fill[0]
            if isinstance(x, Ev): (pending if x.bar else events)[x.name] = st.gap; fill.pop(0)
            elif isinstance(x, Need):
                if x.name in events and not (x.name.endswith('issued') and events[x.name] > st.gap - 4): fill.pop(0)
                else:
                    assert not force, ('blocked on', x.name)
                    return False
            elif isinstance(x, Delay):
                if x.n >= 0:
                    st.delay_until = st.gap + x.n; x.n = -1
                if force or st.gap >= st.delay_until: fill.pop(0)
                else: return False
            else: return True
        return False
    def slots(seq):
        t = 0; lastv = -10; first = True
        for x in seq:
            if isinstance(x, Wait): t += 1; continue
            if first: first = False; t = 1; continue
            if x.kind in ('valu', 'trans'):
                t = max(t, 2); t += x.cost; lastv = t - 1
            elif x.kind in ('ds_r', 'ds_w', 'vm_ld', 'vm_st', 'vm_dma'):
                t = max(t, 2, lastv + 3); t += 1
            else: t += x.states()
        return t
    def mem_ready(e, s):
        if e['step'] > s or any(v not in events or events[v] > st.gap - (4 if v.startswith('srd') else 0) for v in e['ev']): return False
        n = e['item']
        if n is not None and prev_of(n) is not None and prev_of(n) not in released: return False
        return True
    leads = {}; sissue = {f's{k}_1': -30 for k in range(PS)}; st.nx = 2
    def flush_armed():
        g = st.armed or []; st.armed = None
        return g
    def pop_mem(s, win=None):
        if st.armed: return flush_armed()
        if sfill and sfill[0] is st.adv:
            if win is None: return None
            return sfill.pop(0)
        blocked = set()
        for k in range(min(win or cfg.get('ooo', 18), len(memq))):
            e = memq[k]
            if e['ordr'] not in blocked and mem_ready(e, s):
                memq.pop(k)
                if e['item'] is not None: issued[e['item']] = st.gap
                if e['by'] is not None: leads.setdefault(e['by'], []).append(st.gap)
                g = e['mk']()
                for x in g:
                    if x.tok and x.tok[0] == 's': sissue[x.tok] = st.gap
                if all(n in issued for n in range(IT_R, IT_Q)): events.setdefault('rissued', st.gap)
                if all(n in issued for n in range(IT_Q, IT_SCR)): events.setdefault('xissued', st.gap)
                if all(n in issued for n in range(18)): events.setdefault('l0issued', st.gap)
                if f's{len(stg)-1}_1' in sissue and 'rxinit' not in events:
                    g = g + [I(f's_lshl_b32 s{S_RX}, s{S_ROT}, 12'), I(f's_add_u32 s{S_RX}, s{S_RX}, s{S_W1K}')]
                    events['rxinit'] = st.gap
                if 'sg1_1' in sissue: events.setdefault('gissued', st.gap)
                return g
            if e['ordr']: blocked.add(e['ordr'])
        return None
    def vcost(x, s):
        c = memsp(s)
        if x.op.endswith('x4'): return c
        if x.op.endswith('x2'): return c / 2
        return c / 4
    VM = ('vm_ld', 'vm_st')
    def gap(m, shadow, rd, s, quiet=False):
        st.gap += 1
        budget = 2
        rds = [x for x in rd if x.kind == 'salu']; rdv = [x for x in rd if x.kind == 'valu']; rdm = [x for x in rd if x.kind == 'ds_r']
        head = shadow + rds; val = list(rdv); budget -= len(rdv)
        sal = []; mem = []; fre = []; post = []; later = None; first_mem = False
        if not quiet:
            hk = housekeeping()
            fvm = hk and (isI(fill[0], VM) or (isI(fill[0], ('salu',)) and len(fill) > 1 and isI(fill[1], VM)))
            if fvm and st.armed: fvm = False
            if fvm:
                x = fill[0] if isI(fill[0], VM) else fill[1]
                if st.gap >= st.ta - 2 or not x.op.endswith('x4'):
                    if fill[0] is not x: fre.append(fill.pop(0))
                    mem.append(fill.pop(0))
            while st.nx < 18 and not xfill:
                k = spos[('x', st.nx)]
                if f's{k}_1' in sissue and st.gap - sissue[f's{k}_1'] >= cfg.get('lag', 45) and (st.nx < 16 or 'rowdone' in events):
                    if cfg.get('verbose'): print('   x pair', st.nx, 'early read at gap', st.gap)
                    xfill.extend([xread(st.nx, 0), xread(st.nx, 1), Ev(f'srd{k}')]); st.nx += 1
                else: break
            for i_ in range(2):
                if f'sg{i_}_1' in sissue and st.gap - sissue[f'sg{i_}_1'] >= cfg.get('glag', 50): events.setdefault(f'gl{i_}', st.gap)
            if not mem and xfill and len(rdm) < 2 and not st.armed:
                x = xfill.pop(0); mem.append(x)
                while xfill and isinstance(xfill[0], Ev): events[xfill.pop(0).name] = st.gap
            if st.armed and not mem and (st.force or (len(rdm) < 2 and not (cfg.get('rr', 1) and rdm))):
                mem.append(st.armed[0]); first_mem = True
                if st.armed[1:]: later = st.armed[1:]
                st.armed = None
            elif not st.armed and not mem and st.gap + 1 >= st.ta and not (hk and steps[s][0] != 'S1' and any(isI(x, VM) for x in fill[:3])):
                g = pop_mem(s)
                if g:
                    k = [q for q, x in enumerate(g) if x.kind.startswith('vm')][0]
                    fre += [x for x in g[:k] if x.kind != 'nop']; st.armed = g[k:]
            big = any(x.kind.startswith('vm') and (x.op.endswith('x4') or x.op.endswith('x2')) for x in mem)
            if not (big and cfg.get('vmq', 1)) and not (fvm and mem):
                if not head and housekeeping() and isI(fill[0], ('salu',)): head.append(fill.pop(0))
                while housekeeping() and isI(fill[0], ('valu', 'trans')) and fill[0].cost <= budget:
                    x = fill.pop(0); budget -= x.cost; val.append(x)
                if budget == 1 and housekeeping() and isI(fill[0], ('trans',)):
                    for k in range(1, min(8, len(fill))):
                        x = fill[k]
                        if not isI(x, ('valu', 'trans')): break
                        if x.kind == 'valu' and not any((x.rd & y.wr) or (x.wr & (y.rd | y.wr)) for y in fill[:k]):
                            val.append(fill.pop(k)); budget -= 1; break
                if not mem:
                    while housekeeping() and isI(fill[0], ('salu',)) and len(sal) < 2 and not (len(fill) > 1 and isI(fill[1], VM)):
                        sal.append(fill.pop(0))
                    while housekeeping() and isI(fill[0], ('ds_r', 'ds_w')) and len(mem) < 2 - len(rdm): mem.append(fill.pop(0))
            for x in mem:
                if x.kind.startswith('vm'): st.ta = max(st.ta, st.gap - 1) + vcost(x, s)
            room = (0 if head else 1) + 2 - len(sal) - len(fre) - len(post)
            pre = []
            while sfill and room > 0:
                x = sfill[0]
                if isinstance(x, Ev): events[x.name] = st.gap; sfill.pop(0); continue
                if isinstance(x, Need):
                    if x.name in events and events[x.name] < st.gap - 4 and not st.armed and not first_mem: sfill.pop(0); continue
                    break
                n = len(x) if isinstance(x, list) else 1
                if n > room and (room < 2 or pre): break
                sfill.pop(0); room -= n
                pre.append(x)
            if not head and pre and not isinstance(pre[0], list): head.append(pre.pop(0))
            if not head and fre: head.append(fre.pop(0))
            for x in pre: sal += x if isinstance(x, list) else [x]
        seq = [m] + head + (val + sal + fre + rdm + mem) + post
        if later: sfill.insert(0, later); st.adv = later
        if not quiet and not mem and housekeeping() and isinstance(fill[0], list): seq += fill.pop(0)
        if len(val) > len(rdv): st.cur = st.gap
        if not quiet:
            mg = MINGAP if st.gap - st.cur < 6 else cfg.get('padq', 5)
            if mg > slots(seq): seq.append(I(f's_nop {mg - slots(seq) - 1}'))
        if not quiet:
            if housekeeping() and isI(fill[0], ('mfma',)): seq += gap(fill.pop(0), [], [], s)
        return seq
    def drain_until(evs):
        L = []
        while any(e not in events for e in evs):
            assert fill, evs
            if housekeeping(force=True):
                x = fill.pop(0)
                if isinstance(x, list): L += x
                else: L.append(x)
        if L and cfg.get('verbose'): print('  drained', len(L), 'instrs for', evs)
        return L
    M = []
    def barrier_pre(b):
        L = []
        for n in need[b]:
            while n not in issued:
                g = pop_mem(b - 1, 40)
                assert g, ('item not issuable', n, steps[b], [(e['item'], e['ev'], e['step']) for e in memq[:6]])
                if cfg.get('verbose'): print('  forced issue before', steps[b], 'for item', n)
                L += g
        if cfg.get('verbose'):
            print('bar', steps[b], 'gap', st.gap, 'need', need[b], 'lead', [st.gap - issued[n] for n in need[b]])
        L.append(Wait([f'it{n}' for n in need[b]] + bar_extra.get(b, [])))
        return L
    def barrier_post(b):
        events.update(pending); pending.clear()
        if b == SO[RS]: events['rland'] = st.gap
        for n in list(last_use) + list(rel_ev):
            if n in rel_ev:
                if rel_ev[n] in events: released.add(n)
            elif last_use[n] < b: released.add(n)
    tsph = cfg.get('tsph', ['S2', 'S4', 'S4c', 'P1'])
    for i in range(NF):
        s = frags[i]['step']
        if i == 0:
            M += barrier_pre(0) + [I('s_barrier')] + ts('s1start')
            for k in range(D):
                r0, r1 = reads(k); M += r0 + r1
        if first_frag[s] == i:
            if steps[s] == ('S2', 0): assert 'rissued' in events and events['tissued'] > tr1_last
            if steps[s] == ('S1c', K1): tr1_last = st.gap
            if steps[s] == ('P2a', 0): M += F_cw2([2, 3])
            if steps[s] == PB and cfg.get('fastsend', 1):
                fill.extend(F_send()); M += drain_until(['sent'])
            if s in front:
                k = 0
                while k < len(fill) and (isI(fill[k], ('vm_st', 'vm_ld')) or isinstance(fill[k], Delay)): k += 1
                fill[k:k] = front[s]()
            if s in savail: sfill.extend(savail[s]())
            for f in avail.get(s, []): fill.extend(f())
            for L_ in xrd.get(s, []):
                for p in (2 * L_, 2 * L_ + 1):
                    if p < st.nx: continue
                    assert p < 16 or 'rowdone' in events
                    st.nx = p + 1
                    k = spos[('x', p)]
                    while f's{k}_1' not in sissue:
                        while xfill:
                            x = xfill.pop(0)
                            if isinstance(x, Ev): events[x.name] = st.gap - 4
                            else: M.append(x)
                        g = pop_mem(s, 40)
                        assert g, ('staging not issuable', k, steps[s])
                        if cfg.get('verbose'): print('  forced staging issue', k, steps[s])
                        M += g
                    if cfg.get('verbose'): print('   x pair', p, 'read at', steps[s], 'lead', st.gap - sissue.get(f's{k}_1', -1))
                    xfill.extend([xread(p, 0), xread(p, 1), Ev(f'srd{k}')])
        if steps[s] == ('S1d', 17) and first_frag[s] == i - 0 and False: pass
        ms = mfmas(i)
        r0, r1 = reads(i + D) if i + D < NF else ([], [])
        ns = frags[i + 1]['step'] if i + 1 < NF else None
        nxt_first = ns is not None and first_frag[ns] == i + 1
        shadow = [Wait(rtoks(i + 1))] if i + 1 < NF else []
        if len(ms) == 2:
            if cfg.get('rr', 1) and st.armed and r1:
                st.force = True; M += gap(ms[0], [], r0 + r1, s); lastrd = []; st.force = False
            else:
                M += gap(ms[0], [], r0, s); lastrd = r1
        else: lastrd = r0 + r1
        if nxt_first and (ns in bars or ns in must or ns in leads or ns in inline or ns in front or ns in savail): M += flush_armed()
        if nxt_first:
            if steps[ns][0] in ('S1', 'S1a'):
                while xfill:
                    x = xfill.pop(0)
                    if isinstance(x, Ev): events[x.name] = st.gap
                    else: M.append(x)
            if steps[ns] == ('S1a', K1):
                M.append(Wait([f'sr{len(stg)-1}_1'])); events['xdone'] = st.gap
            if ns in must: M += drain_until(must[ns])
            if ns in inline: assert 'setup1' in events
            if ns in inline: M += [x for x in inline[ns]() if isinstance(x, I)]
            while any(e['by'] is not None and e['by'] <= ns for e in memq):
                g = pop_mem(s, 60)
                assert g, ('load not issuable', steps[ns], [(e['item'], e['ev'], e['step']) for e in memq[:8]])
                if cfg.get('verbose'): print('  forced load before', steps[ns])
                M += g
            if cfg.get('verbose') and ns in leads: print('   step', steps[ns], 'gap', st.gap, 'reg-load lead', [st.gap - x for x in leads[ns]])
        if nxt_first and ns in bars:
            M += barrier_pre(ns)
            M += gap(ms[-1], [I('s_barrier')] + shadow, lastrd, s, quiet=True)
            barrier_post(ns)
        else:
            M += gap(ms[-1], shadow, lastrd, s)
        if nxt_first and steps[ns][0] != steps[s][0] and steps[ns][0] in tsph: M += ts(steps[ns][0])
        if nxt_first and list(steps[ns]) in cfg.get('tsat', []): M += ts(f'@{steps[ns][0]}.{steps[ns][1]}')
    M += flush_armed()
    assert not memq, [(e['item'], e['ev']) for e in memq]
    M += drain_until(['rcv'])
    assert not fill and not sfill, (fill, sfill)
    M += ts('mainend')
    drop = cfg.get('drop', [])
    if drop:
        gone = set(); M2 = []
        for k, x in enumerate(M):
            if isinstance(x, I) and not x.raw and k > 3 and x.kind in drop:
                if x.tok: gone.add(x.tok)
                continue
            M2.append(x)
        for x in M2:
            if isinstance(x, Wait): x.toks = [t for t in x.toks if t not in gone]
            else: x.waits = [t for t in x.waits if t not in gone]
        M = M2
    P.ext(M)
    TT = AF(3, 0)
    r7, o7 = cmb(7)
    P(f'v_xor_b32 v{TT+5}, 0x1000, v{r7}')
    P('s_mov_b32 s24, 0xffff0000')
    P(f'ds_write_b128 v{TT+5}, {vr(ACC2(1,1),4)} offset:{o7}', tok='c1w')
    def unpk(src):
        P(f'v_lshlrev_b32 v{TT}, 16, v{src}'); P(f'v_and_b32 v{TT+1}, s24, v{src}')
        P(f'v_lshlrev_b32 v{TT+2}, 16, v{src+1}'); P(f'v_and_b32 v{TT+3}, s24, v{src+1}')
    def addpk(dst, src):
        unpk(src)
        for r in range(4): P(f'v_add_f32 v{dst+r}, v{dst+r}, v{TT+r}')
    def rcheck():
        a, b = TT + 6, TT + 7
        L = [I(f'v_max3_u32 v{a}, v{R}, v{R+1}, v{R+2}'), I(f'v_max3_u32 v{b}, v{R+3}, v{R+4}, v{R+5}')]
        for k in range(6, 18, 4):
            L += [I(f'v_max3_u32 v{a}, v{a}, v{R+k}, v{R+k+1}'), I(f'v_max3_u32 v{b}, v{b}, v{R+k+2}, v{R+k+3}')]
        return L + [I(f'v_max_u32 v{a}, v{a}, v{b}'), I(f'v_cmp_eq_u32 vcc, -1, v{a}')]
    P.wait(['c1w'])
    P('s_barrier')
    P(f'ds_read_b128 {vr(ACC2(1,1),4)}, v{r7} offset:{o7}')
    P.ext(retry_group(rloads, rcheck, sleep=1))
    P.ext(ts('recv'))
    for lt, so, off, xr, rr in ((0, S_O, 0, 8, lambda p: R+4*p), (1, S_O, 32, 10, lambda p: R+4*p+2), (8, S_O8, 0, 0, lambda p: R8+2*p)):
        a = ACC2(lt, 0)
        if lt == 1:
            for r in range(4): P(f'v_add_f32 v{a+r}, v{a+r}, v{ACC2(1,1)+r}')
        for p in range(3): addpk(a, rr(p))
        unpk(xr)
        for r in range(4): P(f'v_fma_f32 v{a+r}, v{a+r}, v15, v{TT+r}')
        P(f'v_cvt_pk_bf16_f32 v{a}, v{a}, v{a+1}'); P(f'v_cvt_pk_bf16_f32 v{a+1}, v{a+2}, v{a+3}')
        P(f'buffer_store_dwordx2 {vr(a,2)}, v{VSP}, s[{S_OUT}:{S_OUT+3}], s{so} offen offset:{off} {cfg.get("ost", "")}')
    if TS:
        P('s_waitcnt vmcnt(0)')
        P.ext(ts('end'))
        P('s_memrealtime s[88:89]\ns_waitcnt lgkmcnt(0)')
        for k in range(st.nts if not cfg.get('cnt') else 11): P(f'v_writelane_b32 v8, s{S_TS + k}, {k}')
        P(f"""
        v_writelane_b32 v8, s101, 30
        v_writelane_b32 v8, s88, 31
        v_lshrrev_b32 v9, 2, v{V_L16}
        v_mov_b32 v10, s{S_OOB}
        v_cmp_gt_u32 vcc, 0x80, v9
        v_cndmask_b32 v9, v10, v9, vcc
        s_lshl_b32 s24, s2, 3
        s_add_u32 s24, s24, s{S_WAVE}
        s_lshl_b32 s24, s24, 7
        s_add_u32 s24, s24, {TS_OFF}
        buffer_store_dword v8, v9, {WS}, s24 offen
        """)
    P('L_done:')
    P('s_endpgm')
    q, n = P.finish()
    if cfg.get('verbose'):
        from collections import Counter
        print('nops', n, Counter(x.kind for x in q))
        print('events', events)
    return kernel_text(name, q, 256, 102), st.tsn

HEADER = """; Fused kernel: [QKV | gate/up] GEMM on raw x with LayerNorm applied as a rank-1 correction, linear attention + GEGLU,
; down/out GEMM (split-K 4, exchanged between workgroups) + residual.
; Kernarg (80 bytes): 0 A_x, 8 A_wqkv, 16 A_wo, 24 B_x (unused), 32 w_gate, 40 w_up, 48 w_down, 56 out, 64 debug, 72 ws
; @launch grid=(256,1,1) block=(512,1,1) lds=163840
"""
if __name__ == '__main__':
    out = sys.argv[1]
    cfg = json.loads(sys.argv[2]) if len(sys.argv) > 2 else {}
    name = 'parallel_sum__linear_attn_block__geglu_ffn__prompt_kernel'
    (body, kd), tsn = gen(name, cfg)
    s = HEADER + (f'; ts: {" ".join(tsn)}\n' if tsn else '')
    s += '.amdgcn_target "amdgcn-amd-amdhsa--gfx950"\n.text\n' + body + '.section .rodata,"a"\n.p2align 6\n' + kd
    open(out, 'w').write(s)
```

```python
import re

REG_RE = re.compile(r'^(-?)(abs\(|\|)?([vsa])(\d+|\[(\d+):(\d+)\])(\)|\|)?$')

def parse_regs(tok):
    tok = tok.strip()
    if tok in ('vcc',):
        return {('s', 106), ('s', 107)}
    if tok == 'vcc_lo': return {('s', 106)}
    if tok == 'vcc_hi': return {('s', 107)}
    if tok == 'exec':
        return {('s', 126), ('s', 127)}
    if tok == 'm0':
        return {('s', 124)}
    m = REG_RE.match(tok)
    if not m:
        return set()
    k = m.group(3)
    if m.group(5) is not None:
        return {(k, i) for i in range(int(m.group(5)), int(m.group(6)) + 1)}
    return {(k, int(m.group(4)))}

TRANS = ('v_exp_f32', 'v_log_f32', 'v_rcp_f32', 'v_rsq_f32', 'v_sqrt_f32', 'v_sin_f32', 'v_cos_f32')
M0 = {('s', 124)}
VCC = {('s', 106), ('s', 107)}
EXEC = {('s', 126), ('s', 127)}

class I:
    __slots__ = ('text', 'op', 'kind', 'rd', 'wr', 'tok', 'waits', 'srcc', 'passes', 'wide', 'data', 'dpp', 'cost', 'raw')
    def __init__(self, text, tok=None, waits=None):
        self.text = text.strip()
        self.tok = tok
        self.waits = waits or []
        self.rd = set(); self.wr = set(); self.srcc = set(); self.data = set()
        self.passes = 0; self.wide = False; self.dpp = False; self.raw = False
        t = self.text.split(';')[0].strip()
        if t.endswith(':') or t.startswith('.') or t == '':
            self.op = t; self.kind = 'label' if t.endswith(':') else 'dir'; self.cost = 0
            return
        parts = t.split(None, 1)
        op = parts[0]; self.op = op
        rest = parts[1] if len(parts) > 1 else ''
        ops = [x.strip() for x in rest.split(',')] if rest else []
        mods = ''
        if ops:
            last = ops[-1].split(None, 1)
            ops[-1] = last[0]
            mods = last[1] if len(last) > 1 else ''
        R = [parse_regs(x) for x in ops]
        base = re.sub(r'_(e32|e64|dpp|sdwa)$', '', op)
        self.cost = 1
        if op.startswith('v_mfma'):
            self.kind = 'mfma'; self.wr = R[0]; self.rd = R[1] | R[2] | R[3]; self.srcc = R[3]
            self.passes = 8 if '32x32' in op else 4
        elif op.startswith('v_'):
            self.kind = 'trans' if base in TRANS else 'valu'
            if self.kind == 'trans': self.cost = 2
            if 'row_' in mods or 'quad_perm' in mods or 'quad_perm' in rest or op.endswith('_dpp'):
                self.dpp = True
            if base.startswith('v_cmpx'):
                raise ValueError('avoid v_cmpx')
            if base.startswith('v_permlane') and 'swap' in base:
                self.wr = R[0] | R[1]; self.rd = R[0] | R[1]
            elif base in ('v_add_co_u32', 'v_sub_co_u32', 'v_addc_co_u32'):
                self.wr = R[0] | R[1]; self.rd = set().union(*R[2:])
            else:
                self.wr = set(R[0]); self.rd = set().union(*R[1:]) if len(R) > 1 else set()
                if base in ('v_fmac_f32', 'v_dot2c_f32_bf16', 'v_writelane_b32') or self.dpp:
                    self.rd |= R[0]
        elif op.startswith('ds_'):
            if op.startswith('ds_read') or op.startswith('ds_bpermute') or op.startswith('ds_swizzle') or op.startswith('ds_permute'):
                self.kind = 'ds_r'; self.wr = R[0]; self.rd = set().union(*R[1:])
            else:
                self.kind = 'ds_w'; self.rd = set().union(*R)
        elif op.startswith('buffer_') or op.startswith('global_'):
            islds = bool(re.search(r'\blds\b', mods)) or 'load_lds' in op
            if op.startswith('buffer_wbl2') or op.startswith('buffer_inv'):
                self.kind = 'vm_st'
            elif islds:
                self.kind = 'vm_dma'; self.rd = set().union(*R) | M0
            elif '_load' in op:
                self.kind = 'vm_ld'; self.wr = R[0]; self.rd = set().union(*R[1:])
            elif 'atomic' in op and re.search(r'\bsc0\b', mods):
                self.kind = 'vm_ld'; self.wr = R[0]; self.rd = set().union(*R)
            else:
                self.kind = 'vm_st'; self.rd = set().union(*R)
                self.data = R[0] if op.startswith('buffer_') else R[1]
                self.wide = op.endswith('x3') or op.endswith('x4')
        elif op == 's_waitcnt':
            self.kind = 'wait'
        elif op == 's_barrier':
            self.kind = 'barrier'
        elif op == 's_nop':
            self.kind = 'nop'
        elif op.startswith('s_load') or op.startswith('s_memtime') or op.startswith('s_memrealtime') or op.startswith('s_buffer_load'):
            self.kind = 'smem'; self.wr = R[0]; self.rd = set().union(*R[1:]) if len(R) > 1 else set()
        elif op.startswith('s_cbranch') or op in ('s_branch', 's_endpgm', 's_setprio', 's_sleep'):
            self.kind = 'ctl'
        elif op.startswith('s_cmp') or op.startswith('s_bitcmp'):
            self.kind = 'salu'; self.rd = set().union(*R)
        elif op.startswith('s_'):
            self.kind = 'salu'; self.wr = set(R[0]); self.rd = set().union(*R[1:]) if len(R) > 1 else set()
            if 'saveexec' in op:
                self.wr |= EXEC; self.rd |= EXEC
        else:
            raise ValueError('unknown op ' + op)
    def states(self):
        if self.kind in ('label', 'dir'): return 0
        if self.kind == 'nop': return int(self.text.split()[1]) + 1
        return 1
    def __repr__(self):
        return self.text

def raw(L):
    for x in L: x.raw = True
    return L

class Wait:
    def __init__(self, toks=(), vm0=False, lg0=False):
        self.toks = list(toks); self.vm0 = vm0; self.lg0 = lg0

def insert_waits(prog):
    out = []
    vmq = []
    lgq = []
    done_toks = set()
    def need(q, pred):
        n = None
        for idx, e in enumerate(q):
            if pred(e):
                n = len(q) - 1 - idx
        return n
    def emit_wait(vm, lg):
        nonlocal vmq, lgq
        parts = []
        if vm is not None:
            vm = min(vm, 63)
            if vm < len(vmq):
                parts.append(f'vmcnt({vm})')
                for e in vmq[:len(vmq) - vm]:
                    if e.tok: done_toks.add(e.tok)
                vmq = vmq[len(vmq) - vm:] if vm else []
        if lg is not None:
            if any(e.kind == 'smem' for e in lgq): lg = 0
            lg = min(lg, 15)
            if lg < len(lgq):
                parts.append(f'lgkmcnt({lg})')
                for e in lgq[:len(lgq) - lg]:
                    if e.tok: done_toks.add(e.tok)
                lgq = lgq[len(lgq) - lg:] if lg else []
        if parts:
            out.append(I('s_waitcnt ' + ' '.join(parts)))
    seen_toks = set()
    for x in prog:
        if isinstance(x, Wait):
            for t in x.toks:
                assert t in seen_toks, f'wait on unknown token {t}'
            ts = set(x.toks)
            vm = 0 if x.vm0 else need(vmq, lambda e: e.tok in ts)
            lg = 0 if x.lg0 else need(lgq, lambda e: e.tok in ts)
            emit_wait(vm, lg)
            continue
        if x.raw:
            out.append(x)
            continue
        if x.kind == 'wait':
            m = re.search(r'vmcnt\((\d+)\)', x.text); vm = int(m.group(1)) if m else None
            m = re.search(r'lgkmcnt\((\d+)\)', x.text); lg = int(m.group(1)) if m else None
            if vm is not None and vm < len(vmq): vmq = vmq[len(vmq) - vm:] if vm else []
            if lg is not None and lg < len(lgq): lgq = lgq[len(lgq) - lg:] if lg else []
            out.append(x)
            continue
        regs = x.rd | x.wr
        ts = set(x.waits)
        for t in ts:
            assert t in seen_toks, f'wait on unknown token {t}'
        vm = need(vmq, lambda e: (e.wr & regs) or (e.tok in ts))
        lg = need(lgq, lambda e: (e.wr & regs) or (e.tok in ts))
        emit_wait(vm, lg)
        if x.kind in ('vm_ld', 'vm_st', 'vm_dma'):
            if len(vmq) >= 63:
                emit_wait(62, None)
            vmq.append(x)
        elif x.kind in ('ds_r', 'ds_w', 'smem'):
            if len(lgq) >= 15:
                emit_wait(None, 14)
            lgq.append(x)
        if x.tok: seen_toks.add(x.tok)
        out.append(x)
    return out

def isv(regs):
    return {r for r in regs if r[0] in 'va'}
def iss(regs):
    return {r for r in regs if r[0] == 's'}

def hazard_need(p, c):
    n = 0
    pvalu = p.kind in ('valu', 'trans')
    cvalu = c.kind in ('valu', 'trans')
    cvmem = c.kind in ('vm_ld', 'vm_st', 'vm_dma')
    cds = c.kind in ('ds_r', 'ds_w')
    if pvalu:
        if c.op.startswith('s_cbranch_vcc') and (p.wr & VCC): n = max(n, 5)
        if c.kind == 'mfma' and (isv(p.wr) & c.rd): n = max(n, 2)
        if cvmem and (iss(p.wr) & c.rd): n = max(n, 5)
        if cvalu and (iss(p.wr) & c.rd):
            n = max(n, 4 if c.op.startswith('v_readlane') or c.op.startswith('v_writelane') else 2)
        if cvalu and c.dpp and (isv(p.wr) & c.rd): n = max(n, 2)
        if cvalu and c.op.startswith('v_permlane') and (isv(p.wr) & c.rd): n = max(n, 2)
        if cvalu and (c.op.startswith('v_readlane') or c.op.startswith('v_readfirstlane')) and (isv(p.wr) & c.rd): n = max(n, 1)
        if p.kind == 'trans' and c.kind == 'valu' and (p.wr & c.rd): n = max(n, 1)
        if p.kind == 'trans' and (c.kind == 'trans' or cvmem or cds) and (p.wr & c.rd): n = max(n, 1)
        if c.kind == 'salu' and (iss(p.wr) & c.rd): n = max(n, 2)
    if p.kind == 'mfma':
        big = {4: 8, 8: 12}[p.passes]
        if c.kind == 'mfma':
            ab = c.rd - c.srcc
            if p.wr & (c.rd - c.srcc): n = max(n, big)
            if p.wr & c.srcc:
                if c.srcc == p.wr and c.passes == p.passes: pass
                else: n = max(n, {4: 6, 8: 10}[p.passes])
            elif p.wr & c.wr:
                n = max(n, big)
        elif cvalu:
            if p.wr & (c.rd | c.wr): n = max(n, big)
            if p.srcc & c.wr: n = max(n, {4: 3, 8: 7}[p.passes])
        elif cvmem or cds:
            if p.wr & (c.rd | c.wr): n = max(n, big)
    if p.kind == 'vm_st' and p.wide and (p.data & c.wr):
        n = max(n, 2 if cvalu else 1)
    if p.kind == 'salu' and (p.wr & M0) and c.kind == 'vm_dma': n = max(n, 1)
    return n

def pad_hazards(prog):
    out = []; region = []
    nnop = 0; cur = None
    for c in prog:
        if c.kind == 'label' and cur and c.op == cur + ':': cur = None
        if c.kind not in ('label', 'dir', 'wait', 'nop', 'barrier', 'ctl') or c.op.startswith('s_cbranch_vcc'):
            req = 0
            for skipmode in (False, True):
                dist = 0
                for k in range(len(out) - 1, -1, -1):
                    p = out[k]
                    if skipmode and region[k] and region[k] != cur: continue
                    if dist >= 14: break
                    need = hazard_need(p, c) if p.kind not in ('label', 'dir') else 0
                    if need - dist > req: req = need - dist
                    dist += p.states()
            if req > 0:
                out.append(I(f's_nop {req - 1}')); region.append(cur); nnop += 1
        out.append(c); region.append(cur)
        if c.kind == 'ctl' and c.op.startswith('s_cbranch') and cur is None and 'L_ok' in c.text: cur = c.text.split()[1]
    return out, nnop

class Prog:
    def __init__(self):
        self.p = []
    def __call__(self, text, tok=None, waits=None):
        for line in text.split('\n'):
            line = line.strip()
            if line:
                self.p.append(I(line, tok, waits))
        return self
    def wait(self, toks=(), vm0=False, lg0=False):
        self.p.append(Wait(toks, vm0, lg0))
    def ext(self, items):
        self.p.extend(items)
    def finish(self):
        q = insert_waits(self.p)
        q, n = pad_hazards(q)
        return q, n

def render(q):
    L = []
    for x in q:
        L.append(x.text if x.kind in ('label',) else '    ' + x.text)
    return '\n'.join(L)

def kernel_text(name, q, nvgpr, nsgpr=96, accum=None):
    accum = accum or ((nvgpr + 3) // 4 * 4)
    body = f""".globl {name}
.p2align 8
.type {name},@function
{name}:
{render(q)}
"""
    kd = f""".amdhsa_kernel {name}
  .amdhsa_next_free_vgpr {nvgpr}
  .amdhsa_next_free_sgpr {nsgpr}
  .amdhsa_accum_offset {accum}
  .amdhsa_group_segment_fixed_size 0
  .amdhsa_kernarg_size 80
  .amdhsa_user_sgpr_count 2
  .amdhsa_user_sgpr_kernarg_segment_ptr 1
  .amdhsa_system_sgpr_workgroup_id_x 1
  .amdhsa_float_denorm_mode_32 3
.end_amdhsa_kernel
"""
    return body, kd

def vr(b, n=1):
    return f'v{b}' if n == 1 else f'v[{b}:{b + n - 1}]'
def sr(b, n=1):
    return f's{b}' if n == 1 else f's[{b}:{b + n - 1}]'
def f2u(x):
    import struct
    return struct.unpack('<I', struct.pack('<f', x))[0]
```

```python
import sys, json
sys.path.insert(0, 'work')
from dsl import *

OOB = 0x40000000
ST_OFF = 0
CSP_OFF = 0x80000
WX_OFF = 0x240000; WX_J = 112 * 1024
A2_OFF = 0x600000; A2_MT = 160 * 1024
A2L_OFF = 0x1A00000
KVP_OFF = 0x1A40000
EX_OFF = 0x1B00000
EX8_OFF = 0x2200000
W2_OFF = 0x2300000; W2_S = 192 * 1024
F2_OFF = 0x2900000
F3_OFF = 0x2910000
F4_OFF = 0x2920000
TS_OFF = 0x2A00000
FL_OFF = 0x2B00000
WS_SIZE = 0x2C00000
HS = 262144

LDS_BYTES = 163840
NSLOT = 19; SLOT = 8192
MISC = NSLOT * SLOT
IT_L0 = 0; IT_R = 18; IT_Q = 21; IT_X = 26; IT_SCR = 35; IT_PK = 36; IT_L1 = 37; IT_W2 = 55; NW2 = 48
NITEM = IT_W2 + NW2

V_TR = 0; V_TH = 2; V_L16 = 4; V_LB = 5; V_DMA = 6; V_A = 1; V_T = 8; V_WF = 16; V_ACC = 32; V_XF = 112
V_XD = 12; V_XR = 14
BN = [12, 14]; C0 = [13, 15]; C1 = [0, 7]
def XF(ks, mt): return V_XF + (ks * 2 + mt) * 4
def ACC(u, nt, mt): return V_ACC + 16 * u + (nt * 2 + mt) * 4
def U(u): return [V_ACC + 16 * u + 4 * k for k in range(4)]

S_RED = 3
S_W = 4; S_WS = 8; S_R = 12; S_XS = 16; S_OUT = 20
S_T = 24
S_W1K = 32; S_A2 = 33; S_MW = 34; S_L2E = 35; S_EPS = 36; S_W256 = 37; S_OOB = 38; S_WAVE = 39
S_M4 = 40; S_G2 = 42; S_NMS = 44; S_RS = 45; S_KVST = 46; S_KVLD = 47; S_A2L = 48; S_EX = 49; S_E8R = 50
S_FH = 51; S_FL = 52; S_CNT = 53; S_NON = 54; S_F2S = 55; S_F2P = 56; S_F3S = 57; S_PT = 58
S_XN = 59; S_WX = 60; S_XST = 61; S_GP = 62; S_RSRC = 67; S_WXD = 68; S_OP = 70
S_A = 62; S_W2 = 64; S_W2K = 65; S_EXS = 66; S_E8S = 69; S_O = 59; S_O8 = 60; S_AL = 61; S_STK = 70
S_WO = 48; S_WD = 46; S_G1 = 72; S_G0 = 76
S_RDST = 80; S_LEFT = 83; S_RB = 84; S_J = 85; S_RX = 86; S_RW = 87
S_TS = 90

K0C = -2.0 * 0.7978845608028654 * 1.4426950408889634
K1C = K0C * 0.044715

class Ctx: pass
class Ev:
    def __init__(self, name, bar=False): self.name = name; self.bar = bar
class Delay:
    def __init__(self, n): self.n = n
class Need:
    def __init__(self, name): self.name = name

def gen(name, cfg):
    D = cfg.get('dist', 3)
    TS = cfg.get('ts', False)
    SPIN = cfg.get('spin', 100000)
    MINGAP = cfg.get('mingap', 6)
    ROT = cfg.get('rot', [0, 3, 6])
    RT = sum(ROT[k % len(ROT)] << (4 * k) for k in range(16))
    S_ROT = S_NMS
    NR = cfg.get('nr', 5)
    NL0 = NSLOT - 2 * NR
    XST = NL0 * SLOT
    WS = f's[{S_WS}:{S_WS+3}]'
    XS = f's[{S_XS}:{S_XS+3}]'
    P = Prog(); st = Ctx(); st.tmp = 0; st.ft = 0; st.nts = 0; st.lab = 0; st.tsn = []
    def stmp():
        st.tmp = (st.tmp + 1) % 6; return S_T + st.tmp
    def ftmp():
        st.ft = (st.ft + 1) % 2; return S_T + 6 + st.ft
    def ts(nm):
        if not TS or cfg.get('cnt'): return []
        if 'tsat' in cfg and nm not in ('start', 's1start', 'end') and not nm.startswith('@'): return []
        k = st.nts; st.nts += 1; st.tsn.append(nm)
        assert k < 11
        return [I(('s_memrealtime' if cfg.get('rt') else 's_memtime') + ' s[88:89]'), I('s_waitcnt lgkmcnt(0)'), I(f's_mov_b32 s{S_TS+k}, s88')]
    def retry_group(loads, check, w0only=False, sleep=1):
        st.lab += 1; l = st.lab
        g = check()
        if w0only: g += [I(f's_cmp_lg_u32 s{S_WAVE}, 0'), I(f's_cbranch_scc1 L_ok{l}')]
        g += [I('s_nop 4'), I(f's_cbranch_vccz L_ok{l}'), I(f's_mov_b32 s{S_CNT}, {SPIN}'), I(f'L_rt{l}:'), I(f's_sleep {sleep}')]
        if cfg.get('cnt'):
            c_ = S_TS + (l - 1) % 11; g += [I(f's_add_u32 s{c_}, s{c_}, {1 if l <= 11 else 1000}')]
        g += raw(loads() + [I('s_waitcnt vmcnt(0)')] + check())
        g += [I(f's_sub_u32 s{S_CNT}, s{S_CNT}, 1'), I(f's_cmp_eq_u32 s{S_CNT}, 0'), I(f's_cbranch_scc1 L_ok{l}'), I('s_nop 4'),
              I(f's_cbranch_vccnz L_rt{l}'), I(f'L_ok{l}:')]
        return g
    def IL(txt): return [I(l) for l in txt.strip().split('\n') if l.strip()]
    NLR = 6
    cyc = list(range(9, 19)) + [6, 7, 8] + list(range(4))
    stab = [n % NLR for n in range(18)] + [(NLR + k) % NSLOT for k in range(NSLOT)] + cyc + cyc[:13] + [4, 5]
    while len(stab) < NITEM: stab.append(stab[-NSLOT])
    def slot_of(n): return stab[n]
    def prev_of(n):
        for m in range(n - 1, -1, -1):
            if stab[m] == stab[n]: return m
        s = stab[n]
        return 'stage' if s >= NL0 else ('gst' if s >= NLR else None)
    SCR = slot_of(IT_SCR) * SLOT; KVS = SCR

    if TS: P('s_memrealtime s[88:89]\ns_waitcnt lgkmcnt(0)\ns_mov_b32 s101, s88')
    P.ext(ts('start'))
    if cfg.get('cnt'):
        for k in range(11): P(f's_mov_b32 s{S_TS+k}, 0')
    P('s_cmp_ge_u32 s2, 256')
    P('s_cbranch_scc1 L_done')
    P(f's_load_dwordx2 s[{S_XS}:{S_XS+1}], s[0:1], 0')
    P(f's_load_dwordx4 s[{S_G0}:{S_G0+3}], s[0:1], 32')
    P(f's_load_dwordx2 s[{S_OUT}:{S_OUT+1}], s[0:1], 64')
    P(f's_load_dwordx2 s[{S_WS}:{S_WS+1}], s[0:1], 72')
    P(f's_load_dwordx2 s[{S_G1}:{S_G1+1}], s[0:1], 8')
    P(f's_load_dwordx2 s[{S_WO}:{S_WO+1}], s[0:1], 16')
    P(f's_load_dwordx2 s[{S_WD}:{S_WD+1}], s[0:1], 48')
    P(f's_load_dwordx2 s[{S_OP}:{S_OP+1}], s[0:1], 56')
    if cfg.get('probe'):
        P('s_load_dwordx2 s[24:25], s[0:1], 24\ns_mov_b32 s26, 2359296\ns_mov_b32 s27, 0x20000\ns_waitcnt lgkmcnt(0)')
        P('v_lshrrev_b32 v8, 6, v0\ns_lshl_b32 s30, s2, 3\nv_add_u32 v8, s30, v8\nv_mul_u32_u24 v8, 1152, v8')
        for k in range(9):
            P(f'buffer_load_dword v9, v8, s[24:27], 0 offen offset:{128*k}')
            P('s_waitcnt vmcnt(0)')
    P('s_memrealtime s[28:29]')
    if cfg.get('cpre', 1):
        P(f"""
        s_getpc_b64 s[24:25]
        s_mov_b32 s26, L_done - L_cp
        L_cp:
        s_mov_b32 s27, 0x20000
        s_and_b32 s30, s2, 0xf8
        s_lshl_b32 s30, s30, 8
        v_lshlrev_b32 v{V_ACC+6}, 2, v0
        buffer_load_dword v{V_ACC+7}, v{V_ACC+6}, s[24:27], s30 offen
        """)
    B = V_ACC
    VL = B; VOOB = B + 1; VG = B + 2; VSW = B + 3; VSR = B + 4; VTC = B + 5
    if cfg.get('map', 0):
        ROLE = f"s_lshr_b32 s{S_RB}, s2, 5\ns_and_b32 s25, s2, 7\ns_lshl_b32 s25, s25, 2\ns_bfe_u32 s26, s2, 0x20003\ns_add_u32 s{S_J}, s25, s26"
    else:
        ROLE = f"s_lshr_b32 s24, s2, 3\ns_and_b32 s25, s2, 4\ns_lshr_b32 s26, s24, 3\ns_add_u32 s{S_RB}, s25, s26\ns_and_b32 s26, s2, 3\ns_lshl_b32 s26, s26, 3\ns_and_b32 s27, s24, 7\ns_add_u32 s{S_J}, s26, s27"
    P(f"""
    v_lshrrev_b32 v8, 6, v0
    v_and_b32 v{VL}, 63, v0
    v_readfirstlane_b32 s{S_WAVE}, v8
    {ROLE}
    s_xor_b32 s{S_J}, s{S_J}, {cfg.get('jx', 0)}
    s_and_b32 s27, s{S_J}, 7
    s_mov_b32 s{S_OOB}, {OOB}
    v_lshrrev_b32 v{VG}, 4, v{VL}
    v_lshrrev_b32 v{VSR}, 3, v{VL}
    v_mov_b32 v{VOOB}, s{S_OOB}
    v_lshlrev_b32 v{V_L16}, 4, v{VL}
    v_cmp_gt_u32 vcc, 8, v{VL}
    v_and_b32 v9, 7, v{VL}
    v_xor_b32 v9, v9, v{VG}
    v_lshlrev_b32 v9, 4, v9
    v_cndmask_b32 v{VTC}, v{VOOB}, v{V_L16}, vcc
    v_mul_u32_u24 v11, 1152, v{VSR}
    v_add_u32 v{V_XD}, v9, v11
    v_xor_b32 v9, 64, v9
    v_add_u32 v11, {8*1152}, v11
    v_add_u32 v{V_XD+1}, v9, v11
    s_lshl_b32 s26, s{S_RB}, 5
    s_add_u32 s26, s26, s{S_J}
    s_lshl_b32 s26, s26, 3
    s_add_u32 s31, s26, s{S_WAVE}
    s_mul_i32 s{S_RS}, s31, 1152
    s_lshl_b32 s24, s{S_RB}, 3
    s_add_u32 s24, s24, s{S_WAVE}
    s_mul_i32 s{S_XN}, s24, {32*1152}
    s_mul_i32 s{S_XST}, s{S_WAVE}, {NR*2048}
    s_add_u32 s{S_XST}, s{S_XST}, {XST}
    s_add_u32 s25, s27, s{S_RB}
    s_lshl_b32 s25, s25, 2
    s_mov_b32 s{S_RX}, {RT & 0xffffffff:#x}
    s_mov_b32 s{S_RW}, {RT >> 32:#x}
    s_lshr_b64 s[{S_RX}:{S_RW}], s[{S_RX}:{S_RW}], s25
    s_and_b32 s{S_ROT}, s{S_RX}, 15
    s_mul_i32 s{S_RX}, s{S_ROT}, 128
    s_mul_i32 s{S_RW}, s{S_ROT}, {64*9216}
    s_mov_b32 s{S_XS+2}, 2359296
    s_mov_b32 s{S_XS+3}, 0x20000
    s_mov_b32 s{S_W+2}, 5308416
    s_mov_b32 s{S_W+3}, 0x20000
    s_lshl_b32 s{S_W1K}, s{S_WAVE}, 10
    v_lshrrev_b32 v8, 1, v{VL}
    v_xor_b32 v8, v8, v{VG}
    v_and_b32 v8, 3, v8
    v_and_b32 v9, 1, v{VL}
    v_lshlrev_b32 v9, 4, v9
    v_lshl_add_u32 v{VSW}, v8, 5, v9
    v_and_b32 v11, 3, v{VSR}
    v_lshrrev_b32 v8, 2, v{VSR}
    v_lshl_add_u32 v11, v8, 3, v11
    s_and_b32 s30, s{S_WAVE}, 1
    s_lshl_b32 s30, s30, 2
    s_and_b32 s27, s{S_WAVE}, 2
    s_lshl_b32 s27, s27, 3
    s_add_u32 s30, s30, s27
    v_add_u32 v11, s30, v11
    v_mul_u32_u24 v11, 9216, v11
    s_and_b32 s27, s{S_J}, 7
    s_cmp_eq_u32 s27, 3
    s_cselect_b32 s30, 31, 0
    s_add_u32 s30, s30, s{S_J}
    s_lshl_b32 s30, s30, 7
    v_add3_u32 v{V_DMA}, v11, v{VSW}, s30
    s_mov_b32 s{S_OUT+2}, 256
    s_mov_b32 s{S_OUT+3}, 0x20000
    v_cmp_eq_u32 vcc, 0, v0
    v_cndmask_b32 v10, v{VOOB}, 0, vcc
    s_waitcnt lgkmcnt(0)
    s_lshl_b32 s28, s28, 3
    s_or_b32 s28, s28, 0x80000000
    v_mov_b32 v11, s28
    s_cmp_ge_u32 s{S_WAVE}, 4
    s_cselect_b32 s{S_W}, s{S_G0+2}, s{S_G0}
    s_cselect_b32 s{S_W+1}, s{S_G0+3}, s{S_G0+1}
    """)
    def adv(reg, step, wrap):
        return [I(f's_add_u32 s{reg}, s{reg}, {step}'), I(f's_cmp_eq_u32 s{reg}, {wrap}'), I(f's_cselect_b32 s{reg}, 0, s{reg}')]
    def dma(n):
        L = [I(f's_add_u32 m0, s{S_W1K}, {slot_of(n) * SLOT}')]
        if n < 18:
            L += [I('s_nop 0'), I(f'buffer_load_dwordx4 v{V_DMA}, s[{S_W}:{S_W+3}], s{S_RW} offen {cfg.get("wnt", "")} lds', tok=f'it{n}')] + adv(S_RW, 32*9216, 576*9216)
        elif n < IT_Q:
            t = stmp()
            L += [I(f's_add_u32 s{t}, s{S_RSRC if not cfg.get("fakeR") else S_OOB}, {(n - IT_R) * 128}'),
                  I(f'buffer_load_dwordx4 v{U(4)[2]+1}, s[{S_R}:{S_R+3}], s{t} offen nt lds', tok=f'it{n}')]
        elif n < IT_SCR:
            t = stmp(); isq = n < IT_X
            L += [I(f's_add_u32 s{t}, s{S_WX}, s{S_RX}'),
                  I(f'buffer_load_dwordx4 v{V_L16}, {WS}, s{t} offen sc1 lds', tok=f'it{n}')]
            if n == IT_X - 1:
                L += [I(f's_add_u32 s{S_WX}, s{S_WX}, {40*1024}'), I(f's_lshl_b32 s{S_RX}, s{S_ROT}, 13'), I(f's_add_u32 s{S_RX}, s{S_RX}, s{S_W1K}')]
            else:
                wrap = (36 if isq else 72) * 1024
                L += [I(f's_add_u32 s{S_RX}, s{S_RX}, 8192'), I(f's_sub_u32 s{t}, s{S_RX}, {wrap}'), I(f's_cselect_b32 s{S_RX}, s{S_RX}, s{t}')]
        elif n < IT_W2:
            t = stmp()
            L += [I(f's_add_u32 s{t}, s{S_RW}, {((n - IT_L1) // 9) * 64}'),
                  I(f'buffer_load_dwordx4 v{V_DMA}, s[{S_W}:{S_W+3}], s{t} offen {cfg.get("wnt", "")} lds', tok=f'it{n}')] + adv(S_RW, 64*9216, 576*9216)
        else:
            t = stmp()
            L += [I(f's_add_u32 s{t}, s{S_W2K if n - IT_W2 in (35, 36, 47) else S_W2}, {(n - IT_W2) * 4096}'),
                  I(f'buffer_load_dwordx4 v{V_L16}, {WS}, s{t} offen sc1 lds', tok=f'it{n}')]
        return L
    GPOS = cfg.get('gpos', 8)
    stg = [('x', p) for p in range(18)]
    spos = {e: k for k, e in enumerate(stg)}
    VGA = U(4)[2]
    def sdma(k, h):
        kind, p = stg[k]
        w = [f'sr{k-NR}_0', f'sr{k-NR}_1'] if k >= NR else []
        t = stmp()
        L = [I(f's_add_u32 m0, s{S_XST}, {(k % NR) * 2048 + h * 1024}')]
        if kind == 'x':
            L += [I(f's_add_u32 s{t}, s{S_XN}, s{S_RX}')]
            if p & 1: L += [I(f's_add_u32 s{t}, s{t}, 18432')]
            L += [I(f'buffer_load_dwordx4 v{V_XD+h}, {XS}, s{t} offen lds', tok=f's{k}_{h}', waits=w)]
            if (p & 1) and h: L += adv(S_RX, 128, 1152)
        return L
    GL = [[6 * SLOT, 7 * SLOT], [8 * SLOT, MISC]]
    def gdma(p, h):
        t = stmp(); S = S_G0 if p == 0 else S_G1
        return [I(f's_add_u32 m0, s{S_W1K}, {GL[p][h]}'),
                I(f's_add_u32 s{t}, s{S_GP+p}, ' + (('0' if h == 0 else f's{S_GP+2}') if p == 0 else str(h * 4 * 3456))),
                I(f'buffer_load_dwordx4 v{VGA+p}, s[{S}:{S+3}], s{t} offen {cfg.get("gnt", "")} lds', tok=f'sg{p}_{h}')]
    def xread(p, d):
        k = spos[('x', p)]
        return I(f'ds_read_b128 {vr(XF(2*(p>>1)+d, p&1),4)}, v{V_XR+d} offset:{(k % NR) * 2048}', tok=f'sr{k}_{d}', waits=[f's{k}_0', f's{k}_1'])
    if cfg.get('tsp'): P.ext(ts('@karg'))
    P.ext(dma(0))
    for k in range(2):
        P.ext(sdma(k, 0)); P.ext(sdma(k, 1))
    P.ext(dma(1))
    if cfg.get('tsp'): P.ext(ts('@b1'))
    PS = cfg.get('ps', 4)
    NPRE = cfg.get('npre', 4)
    PS0 = cfg.get('ps0', 2)
    for k in range(2, PS0):
        P.ext(sdma(k, 0)); P.ext(sdma(k, 1))
    P(f's_cmp_eq_u32 s2, 0\ns_cselect_b32 s29, 0, s{S_OOB}\nbuffer_store_dword v11, v10, s[{S_OUT}:{S_OUT+3}], s29 offen sc1')
    VN2 = B + 16; VT3 = B + 17; VRW = B + 18
    P(f"""
    v_and_b32 v8, 3, v{VL}
    v_lshlrev_b32 v{VN2}, 4, v8
    v_cmp_gt_u32 vcc, 2, v8
    v_cndmask_b32 v{VN2}, v{VOOB}, v{VN2}, vcc
    v_mov_b32 v{VT3}, {2*(1152+16)}
    v_cmp_eq_u32 vcc, 1, v8
    v_cndmask_b32 v{VT3}, v{VT3}, 32, vcc
    v_mov_b32 v9, {2*(576+16)}
    v_cmp_eq_u32 vcc, 2, v8
    v_cndmask_b32 v{VT3}, v{VT3}, v9, vcc
    v_cmp_eq_u32 vcc, 3, v8
    v_cndmask_b32 v{VT3}, v{VT3}, v{VOOB}, vcc
    v_bfe_u32 v9, v{VL}, 2, 2
    v_lshl_add_u32 v{VRW}, v{VG}, 3, v9
    """)
    GSO = [S_GP, S_GP + 1]; GST = S_GP + 2
    P(f's_and_b32 s{S_NON}, s2, 3\ns_lshl_b32 s{S_NON}, s{S_NON}, 3\ns_add_u32 s{S_NON}, s{S_NON}, s{S_WAVE}')
    for i in range(2):
        P(f"""
        s_lshr_b32 s24, s2, 2
        s_add_u32 s24, s24, {64*i}
        s_sub_u32 s25, s24, 36
        s_lshr_b32 s26, s25, 2
        s_mul_i32 s26, s26, 110592
        s_and_b32 s25, s25, 3
        s_mul_i32 s27, s{S_NON}, 36
        s_add_u32 s26, s26, s27
        s_mul_i32 s27, s25, 1152
        s_cmp_eq_u32 s25, 3
        s_cselect_b32 s27, 0, s27
        s_cselect_b64 s[{S_G2}:{S_G2+1}], -1, 0
        s_add_u32 s{GSO[i]}, s26, s27
        """)
        if i == 0:
            P(f"""
            s_lshr_b32 s26, s24, 1
            s_mul_i32 s26, s26, 294912
            s_lshl_b32 s27, s{S_NON}, 5
            s_add_u32 s26, s26, s27
            s_add_u32 s26, s26, 8192
            s_bitcmp1_b32 s24, 0
            s_cselect_b32 s{S_G0}, s{S_G0+2}, s{S_G0}
            s_cselect_b32 s{S_G0+1}, s{S_G0+3}, s{S_G0+1}
            s_mov_b32 s28, 1990656
            s_mov_b32 s29, 3456
            s_cmp_lt_u32 s24, 36
            s_cselect_b32 s{S_G0}, s{S_G0}, s{S_G1}
            s_cselect_b32 s{S_G0+1}, s{S_G0+1}, s{S_G1+1}
            s_cselect_b32 s{S_G0+2}, 5308416, s28
            s_mov_b32 s{S_G0+3}, 0x20000
            s_cselect_b32 s{GSO[0]}, s26, s{GSO[0]}
            s_cselect_b32 s{GST}, 9216, s29
            s_cselect_b64 s[{S_G2}:{S_G2+1}], 0, s[{S_G2}:{S_G2+1}]
            s_cselect_b32 s30, 0, 4
            s_mov_b32 s27, s{GST}
            s_lshl_b32 s{GST}, s{GST}, 2
            """)
        else:
            P('s_mov_b32 s27, 3456\ns_mov_b32 s30, 4')
        P(f"""
        s_and_b32 s{S_GP+3+i}, s{S_G2}, 1
        s_add_u32 s{S_GP+3+i}, s{S_GP+3+i}, 3
        v_cndmask_b32 v8, v{VN2}, v{VT3}, s[{S_G2}:{S_G2+1}]
        v_mul_lo_u32 v11, v{VRW}, s27
        v_add_u32 v{VGA+i}, v8, v11
        s_mul_i32 s26, s{S_NON}, 112
        s_add_u32 s26, s26, s24
        s_add_u32 s26, s26, s30
        s_lshl_b32 s26, s26, 10
        s_add_u32 s26, s26, {WX_OFF}
        s_cmp_lt_u32 s24, 108
        s_cselect_b32 s{S_WXD+i}, s26, s{S_OOB}
        """)
        if i: P(f's_cselect_b32 s{S_G1+2}, 1990656, 0\ns_mov_b32 s{S_G1+3}, 0x20000')
    ONES = U(4)[0]; CSA = U(4)[1]
    P(f"""
    s_mov_b32 s{S_WS+2}, {WS_SIZE}
    s_mov_b32 s{S_WS+3}, 0x20000
    s_lshl_b32 s{S_PT}, s31, 7
    v_lshrrev_b32 v8, 5, v{VL}
    v_lshlrev_b32 v8, 11, v8
    v_bfe_u32 v11, v{VL}, 2, 3
    v_lshl_add_u32 v8, v11, 7, v8
    v_bfe_u32 v11, v{VL}, 3, 2
    v_lshl_add_u32 v8, v11, 5, v8
    v_and_b32 v11, 3, v{VL}
    v_lshl_add_u32 v{V_TR}, v11, 3, v8
    v_xor_b32 v{V_TR+1}, 32, v{V_TR}
    v_xor_b32 v{V_TR+2}, 64, v{V_TR}
    v_xor_b32 v{V_TR+3}, 96, v{V_TR}
    s_and_b32 s24, s{S_WAVE}, 3
    s_lshl_b32 s24, s24, 5
    s_and_b32 s25, s{S_W1K}, 0x1000
    s_or_b32 s24, s24, s25
    v_xor_b32 v{V_LB}, s24, v{V_TR}
    v_and_b32 v9, 15, v{VL}
    v_lshrrev_b32 v11, 1, v9
    v_xor_b32 v11, v11, v{VG}
    v_lshlrev_b32 v11, 4, v11
    v_lshl_add_u32 v11, v9, 7, v11
    v_add_u32 v{V_XR}, s{S_XST}, v11
    v_xor_b32 v{V_XR+1}, 64, v{V_XR}
    """)
    for r in range(4): P(f'v_mov_b32 v{ONES+r}, 0x3f803f80')
    sq_txt = []
    SQ = sq_txt.append
    C = 72; TA = S_G2; TB_ = S_G2 + 1; S_E8P = S_W256
    SQ(f"""
            s_lshr_b32 s73, s2, 2
            s_lshl_b32 s73, s73, 1
            s_lshr_b32 s74, s{S_WAVE}, 2
            s_add_u32 s73, s73, s74
            s_mul_i32 s74, s73, 21846
            s_lshr_b32 s74, s74, 16
            s_mul_i32 s75, s74, 3
            s_sub_u32 s75, s73, s75
            s_mul_i32 s76, s74, 13108
            s_lshr_b32 s76, s76, 16
            s_mul_i32 s77, s76, 5
            s_sub_u32 s77, s74, s77
            s_and_b32 s78, s2, 3
            s_lshl_b32 s78, s78, 3
            s_add_u32 s78, s78, s76
            s_and_b32 s79, s{S_WAVE}, 3
            s_cmp_eq_u32 s76, 3
            s_cselect_b32 s73, 31, 0
            s_cmp_eq_u32 s76, 2
            s_cselect_b32 s{TA}, 1, 32
            s_cmp_lt_u32 s77, 2
            s_cselect_b32 s73, s73, s{TA}
            s_add_u32 s73, s73, s78
            s_lshl_b32 s73, s73, 6
            s_and_b32 s{TA}, s77, 1
            s_lshl_b32 s{TA}, s{TA}, 5
            s_add_u32 s73, s73, s{TA}
            s_lshl_b32 s{TA}, s79, 3
            s_add_u32 s73, s73, s{TA}
            s_lshl_b32 s{TB_}, s78, 4
            s_add_u32 s{TB_}, s{TB_}, 4096
            s_add_u32 s{TB_}, s{TB_}, s{TA}
            s_mul_i32 s{C}, s78, 18
            s_add_u32 s{C}, s{C}, s{TA}
            s_sub_u32 s{C}, s{C}, 16
            s_cmp_lt_u32 s79, 2
            s_cselect_b32 s{TB_}, s{TB_}, s{C}
            s_cselect_b32 s{C}, 0, 1
            s_cmp_eq_u32 s77, 4
            s_cselect_b32 s73, s{TB_}, s73
            s_cselect_b32 s{C}, s{C}, 0
            s_and_b32 s{TB_}, s2, 3
            s_lshl_b32 s{TB_}, s{TB_}, 1
            s_add_u32 s{TB_}, s{TB_}, s79
            s_mul_i32 s{TB_}, s{TB_}, 72
            s_add_u32 s{TB_}, s{TB_}, 16
            s_cmp_ge_u32 s74, 40
            s_cselect_b32 s73, s{TB_}, s73
            s_cselect_b32 s{C}, 1, s{C}
            s_cselect_b32 s{S_LEFT}, 18432, 0
            s_cselect_b32 s{TB_}, s79, 0
            s_mul_i32 s73, s73, 1152
            s_mul_i32 s78, s75, 384
            s_add_u32 s{S_RSRC}, s73, s78
            s_mov_b32 s73, 663552
            s_cmp_eq_u32 s{C}, 1
            s_cselect_b32 s{S_R}, s{S_WO}, s{S_WD}
            s_cselect_b32 s{S_R+1}, s{S_WO+1}, s{S_WD+1}
            s_cselect_b32 s{S_R+2}, s73, 5308416
            s_cmp_ge_u32 s{TB_}, 2
            s_cselect_b32 s{S_R+2}, 0, s{S_R+2}
        s_mov_b32 s{S_R+3}, 0x20000

            s_sub_u32 s73, 7, s77
            s_cmp_lt_u32 s77, 3
            s_cselect_b32 s73, s77, s73
            s_lshl_b32 s73, s73, 2
            s_and_b32 s77, s76, 3
            s_add_u32 s73, s73, s77
            s_lshr_b32 s76, s76, 2
            s_cmp_ge_u32 s74, 40
            s_cselect_b32 s73, 20, s73
            s_cselect_b32 s76, 0, s76
            s_mul_i32 s75, s75, 12
            s_add_u32 s75, s75, s79
        """)
    for i in range(3):
        SQ(f"""
            s_add_u32 s77, s75, {4*i}
            s_mul_i32 s78, s77, 7282
            s_lshr_b32 s78, s78, 16
            s_mul_i32 s79, s78, 9
            s_sub_u32 s79, s77, s79
            s_lshr_b32 s77, s79, 1
            s_sub_u32 s77, s77, s2
            s_and_b32 s77, s77, 3
            s_lshl_b32 s77, s77, 1
            s_and_b32 s{TA}, s79, 1
            s_add_u32 s77, s77, s{TA}
            s_cmp_eq_u32 s79, 8
            s_cselect_b32 s77, 8, s77
            s_mul_i32 s79, s73, 7
            s_add_u32 s79, s79, s77
            s_sub_u32 s79, s79, 2
            s_cmp_eq_u32 s73, 20
            s_cselect_b32 s{TA}, 1, 20
            s_cselect_b32 s{TB_}, 20, 0
            s_mul_i32 s{TA}, s{TA}, s77
            s_add_u32 s{TA}, s{TA}, s73
            s_add_u32 s{TA}, s{TA}, s{TB_}
            s_add_u32 s{TA}, s{TA}, 148
            s_cmp_ge_u32 s77, 2
            s_cselect_b32 s79, s79, s{TA}
            s_and_b32 s{TA}, s2, 3
            s_lshl_b32 s{TA}, s{TA}, 2
            s_add_u32 s{TA}, s{TA}, s78
            s_lshl_b32 s{TA}, s{TA}, 1
            s_add_u32 s{TA}, s{TA}, s76
            s_mul_i32 s{TA}, s{TA}, 192
            s_add_u32 s{TA}, s{TA}, s79
            s_lshl_b32 s{TA}, s{TA}, 10
            s_add_u32 s{TA}, s{TA}, {W2_OFF}
            s_cmp_lt_u32 s74, 41
            s_cselect_b32 s{S_RDST+i}, s{TA}, s{S_OOB}
            """)
    SQ(f's_mov_b32 s{S_G2}, 0\ns_mov_b32 s{S_G2+1}, 0x0000ffff')
    SQ(f"""
            s_mul_i32 s{S_WX}, s{S_J}, {WX_J}
            s_add_u32 s{S_WX}, s{S_WX}, {WX_OFF}
            s_lshr_b32 s73, s{S_J}, 3
            s_lshl_b32 s73, s73, 13
            s_add_u32 s73, s73, {F2_OFF}
            s_add_u32 s{S_F2P}, s73, s{S_W1K}
            s_and_b32 s73, s2, 3
            s_lshl_b32 s73, s73, 6
            s_lshr_b32 s74, s2, 2
            s_add_u32 s74, s74, s73
            s_lshl_b32 s74, s74, 7
            s_add_u32 s74, s74, {F2_OFF}
            s_lshl_b32 s75, s2, 7
            s_add_u32 s75, s75, {F3_OFF}
            s_cmp_eq_u32 s{S_WAVE}, 0
            s_cselect_b32 s{S_F2S}, s74, s{S_OOB}
            s_cselect_b32 s{S_F3S}, s75, s{S_OOB}
            s_lshl_b32 s73, s2, 3
            s_add_u32 s73, s73, s{S_WAVE}
            s_mul_i32 s73, s73, 3072
            s_add_u32 s{S_EX}, s73, {EX_OFF}
            s_lshr_b32 s73, s2, 2
            s_lshl_b32 s73, s73, 3
            s_add_u32 s73, s73, s{S_WAVE}
            s_lshl_b32 s73, s73, 11
            s_add_u32 s73, s73, {EX8_OFF}
            s_xor_b32 s74, s2, s{S_WAVE}
            s_and_b32 s74, s74, 3
            s_cmp_eq_u32 s74, 0
            s_cselect_b32 s{S_E8R}, s73, s{S_OOB}
            s_lshl_b32 s73, s{S_RB}, 4
            s_lshl_b32 s74, s{S_WAVE}, 1
            s_add_u32 s73, s73, s74
            s_mul_i32 s{S_A2}, s73, {A2_MT}
            s_mul_i32 s74, s{S_J}, 5120
            s_add_u32 s{S_A2}, s{S_A2}, s74
            s_add_u32 s{S_A2}, s{S_A2}, {A2_OFF}
            s_lshl_b32 s{S_A2L}, s73, 11
            s_lshl_b32 s74, s{S_J}, 7
            s_add_u32 s{S_A2L}, s{S_A2L}, s74
            s_add_u32 s{S_A2L}, s{S_A2L}, {A2L_OFF}
            s_lshl_b32 s{S_W256}, s{S_WAVE}, 8
            s_lshl_b32 s73, s{S_J}, 3
            s_add_u32 s74, s73, s{S_RB}
            s_mul_i32 s74, s74, 1536
            s_lshl_b32 s75, s{S_WAVE}, 8
            s_add_u32 s75, s75, {KVP_OFF}
            s_add_u32 s74, s74, s75
            s_mul_i32 s73, s73, 1536
            s_add_u32 s73, s73, s75
            s_cmp_lt_u32 s{S_WAVE}, 6
            s_cselect_b32 s{S_KVST}, s74, s{S_OOB}
            s_cselect_b32 s{S_KVLD}, s73, s{S_OOB}
            s_add_u32 s73, s{S_W256}, {SCR}
            s_add_u32 s74, s{S_W256}, {MISC - 1024}
            s_cmp_lt_u32 s{S_WAVE}, 4
            s_cselect_b32 s{S_RED}, s73, s74
            s_lshl_b32 s73, s{S_RB}, 2
            s_lshr_b32 s74, s{S_J}, 3
            s_add_u32 s73, s73, s74
            s_lshl_b32 s73, s73, 13
            s_add_u32 s73, s73, {FL_OFF}
            s_add_u32 s{S_FL}, s73, s{S_W1K}
            s_and_b32 s74, s{S_J}, 7
            s_lshl_b32 s74, s74, 7
            s_add_u32 s{S_FL}, s{S_FL}, s74
            s_and_b32 s73, s2, 4
            s_lshr_b32 s74, s2, 6
            s_add_u32 s73, s73, s74
            s_lshl_b32 s73, s73, 2
            s_and_b32 s74, s2, 3
            s_add_u32 s73, s73, s74
            s_lshl_b32 s73, s73, 13
            s_add_u32 s73, s73, {FL_OFF}
            s_and_b32 s74, s2, 32
            s_lshl_b32 s74, s74, 7
            s_add_u32 s73, s73, s74
            s_and_b32 s74, s{S_WAVE}, 3
            s_lshl_b32 s74, s74, 10
            s_add_u32 s{S_FH}, s73, s74
            s_and_b32 s73, s{S_WAVE}, 1
            s_lshl_b32 s73, s73, 5
            s_and_b32 s74, s{S_WAVE}, 2
            s_lshl_b32 s74, s74, 11
            s_or_b32 s73, s73, s74
            s_and_b32 s74, s{S_WAVE}, 4
            s_lshl_b32 s74, s74, 9
            s_or_b32 s{S_MW}, s73, s74
            s_mul_i32 s73, s{S_WAVE}, 86
            s_lshr_b32 s73, s73, 8
            s_mul_i32 s74, s73, 3
            s_sub_u32 s74, s{S_WAVE}, s74
            s_lshl_b32 s74, s74, 9
            s_lshl_b32 s73, s73, 2
            s_and_b32 s75, s2, 3
            s_add_u32 s73, s73, s75
            s_lshr_b32 s75, s2, 2
            s_lshl_b32 s75, s75, 3
            s_add_u32 s73, s73, s75
            s_lshl_b32 s73, s73, 11
            s_add_u32 s73, s73, s74
            s_add_u32 s73, s73, {EX8_OFF}
            s_cmp_lt_u32 s{S_WAVE}, 6
            s_cselect_b32 s{S_E8P}, s73, s{S_OOB}
            s_mov_b32 s{S_L2E}, {f2u(1.4426950408889634):#x}
            s_mov_b32 s{S_EPS}, {f2u(1e-6):#x}
            s_mov_b32 s{S_M4}, 0x00040004
            s_mov_b32 s{S_M4+1}, 0x00040004
        """)
    P.ext(ts('setup' if not cfg.get('tsp') else '@setup'))
    GP = cfg.get('gpro', -1)
    for k in range(1, max(PS, NPRE) + 1):
        if k == GP:
            for g_ in range(4): P.ext(gdma(g_ >> 1, g_ & 1))
        if 2 <= k < NPRE: P.ext(dma(k))
        if PS0 <= k + 1 < PS:
            P.ext(sdma(k + 1, 0)); P.ext(sdma(k + 1, 1))
    P.ext(ts('issued' if not cfg.get('tsp') else '@issued'))
    for p in range(2):
        P.ext([xread(p, 0), xread(p, 1)])
    if cfg.get('tsp'): P.ext(ts('@x01'))

    base = {r: 0 for r in (V_TR, V_TR+1, V_TR+2, V_TR+3, V_LB)}
    def lds_addr(reg, addr, span):
        fx = []
        if not (0 <= addr - base[reg] and addr + span - base[reg] <= 65535):
            nb = min((addr // SLOT) * SLOT, LDS_BYTES - 65536)
            fx.append(I(f'v_add_u32 v{reg}, {(nb - base[reg]) & 0xffffffff:#x}, v{reg}'))
            base[reg] = nb
        return fx, addr - base[reg]
    xq = [V_XF + 4 * k for k in range(36)]
    acc1 = U(0) + U(2) + U(3) + [xq[34], xq[35]]
    def ACC2(lt, mt):
        if lt >= 2: return acc1[(lt - 2) * 2 + mt]
        return acc1[(lt * 2 + mt) * 2 + 1]
    aq = xq[:34] + U(1) + U(4)[:2]
    def AF(sp, mt): return aq[sp * 2 + mt]
    V_AL = U(4)[2]; VSP = U(4)[3]
    V_L8 = V_TH
    T0 = [ACC(0, 0, 0), ACC(0, 0, 1)]; T1 = [ACC(0, 1, 0), ACC(0, 1, 1)]
    T2 = [ACC(1, 0, 0), ACC(1, 0, 1)]; T3 = [ACC(1, 1, 0), ACC(1, 1, 1)]

    frags = []; steps = []
    def add_step(nm, fl):
        for f in fl:
            f['step'] = len(steps); frags.append(f)
        steps.append(nm)
    def Lf(line, ks, tiles):
        fl = []
        for (T, u) in tiles:
            for mat in range(2):
                mf_ = [(ACC(u, mat, mt), XF(ks, mt), False, ks == 0) for mt in range(2)]
                if line == 0: fl.append(dict(item=IT_L0 + ks, kind='tr', reg=V_TR + T, off=mat * 4096, mf=mf_))
                else: fl.append(dict(item=IT_L1 + (T >> 1) * 9 + (ks >> 1), kind='tr', reg=V_TH + (T & 1), off=mat * 4096 + (ks & 1) * 2048, mode='h', mf=mf_))
        return fl
    def Cf(item, acc, ones, first, mode):
        return [dict(item=item, kind='tr', reg=V_LB, off=0, mode=mode, mf=[(acc, ones, True, first)])]
    def Kf(u, nt, off, swap=False, zero=False):
        return [dict(item=None, kind='k', mode='k', off=off, mf=[(ACC(u, nt, mt), BN[mt], swap, zero) for mt in range(2)])]
    def Ku(u, kb0, kb1, o, zero=False): return Kf(u, 0, kb0 * 1024 + o, False, zero) + Kf(u, 1, kb1 * 1024 + o, False, zero)
    K1 = cfg.get('k1', 15); K3 = cfg.get('k3', 8); K4 = cfg.get('k4', 8)
    for ks in range(K1): add_step(('S1', ks), Cf(ks, CSA, ONES, ks == 0, 'c0') + Lf(0, ks, [(0, 0), (1, 1), (2, 2), (3, 3)]))
    for u in range(4):
        for ks in range(K1, 18):
            fl = (Cf(ks, CSA, ONES, False, 'c0') if u == 0 else []) + Lf(0, ks, [(u, u)])
            if u == 1 and ks == K1 + 1: fl += Ku(0, 0, 4, 768)
            if u >= 1 and ks == 17: fl += Ku(u, u, 4 + u, 768)
            add_step((f'S1{"abcd"[u]}', ks), fl)
    for ks in range(18):
        add_step(('S2', ks), [dict(item=IT_Q + ((2*ks+mat) >> 3), kind='b', mode='b', off=((2*ks+mat) & 7) * 1024,
                                   mf=[(ACC(4, mat, mt), XF(ks, mt), False, ks == 0) for mt in range(2)]) for mat in range(2)])
    for ks in range(18):
        add_step(('S3', ks), [dict(item=IT_X + ((4*ks+T) >> 3), kind='b', mode='b', off=((4*ks+T) & 7) * 1024,
                                   mf=[(ACC(T >> 1, T & 1, mt), XF(ks, mt), T != 0, ks == 0) for mt in range(2)]) for T in range(4)]
                 + (Ku(4, 0, 1, 0) if ks == 0 else [])
                 + ([f for T in range(4) for f in Kf(T >> 1, T & 1, (2 + T) * 1024, T != 0)] if ks == 17 else []))
    ca = lambda ks: Cf(IT_L1 + (ks >> 1), CSA, ONES, ks == 1, 'ch') if ks & 1 else []
    cb = lambda ks: Cf(IT_L1 + 9 + (ks >> 1), T1[1], T1[0], ks == 1, 'ch') if ks & 1 else []
    for ks in range(K3): add_step(('S4', ks), Lf(1, ks, [(0, 2), (1, 3)]) + ca(ks))
    for ks in range(K3, 18): add_step(('S4a', ks), ca(ks) + Lf(1, ks, [(0, 2)]))
    for ks in range(K3, 18): add_step(('S4b', ks), Lf(1, ks, [(1, 3)]) + (Ku(2, 0, 2, 768) + Ku(3, 1, 3, 768) if ks == K3 + 1 else []))
    for ks in range(K4): add_step(('S4c', ks), cb(ks) + Lf(1, ks, [(2, 4), (3, 1)]))
    for ks in range(K4, 18): add_step(('S4d', ks), cb(ks) + Lf(1, ks, [(2, 4)]))
    for ks in range(K4, 18): add_step(('S4e', ks), Lf(1, ks, [(3, 1)]) + (Ku(4, 4, 6, 768) + Ku(1, 5, 7, 768) if ks == K4 + 1 else []))
    def P2f(sp, lts, blk0):
        fl = []
        for k, lt in enumerate(lts):
            blk = blk0 + k
            mf_ = [(ACC2(lt, mt), AF(sp, mt), False, sp == 0) for mt in range(2)] if sp < 20 else [(ACC2(lt, 0), V_AL, False, False)]
            fl.append(dict(item=IT_W2 + (blk >> 2), kind='b', mode='b2', off=(blk & 3) * 1024, mf=mf_))
        return fl
    for sp in range(21): add_step(('P1', sp), P2f(sp, range(2, 9), sp * 7))
    for lt in range(2):
        for sp in range(21): add_step(('P2' + 'ab'[lt], sp), P2f(sp, [lt], 148 + lt * 20 + sp if sp < 20 else 188 + lt))
    NF = len(frags)
    SO = {s: i for i, s in enumerate(steps)}
    first_frag = {}
    for i, f in enumerate(frags): first_frag.setdefault(f['step'], i)
    events = {}; pending = {}
    st.lbmode = 'c0'; st.hinit = False
    def reads(i):
        f = frags[i]; w = V_WF + (i % 4) * 4
        slot = slot_of(f['item']) * SLOT if f['item'] is not None else MISC
        pre = []
        mode = f.get('mode')
        if mode == 'h' and not st.hinit:
            assert 'trh' in events
            st.hinit = True; base[V_TH] = 0; base[V_TH + 1] = 0
        if mode in ('b', 'b2', 'ch', 'k') and st.lbmode != mode:
            st.lbmode = mode
            if mode == 'b':
                pre = [I(f'v_mov_b32 v{V_LB}, v{V_L16}')]; base[V_LB] = 0
            elif mode == 'k':
                pre = [I(f'v_bfe_u32 v{V_LB}, v{V_L16}, 1, 8')]; base[V_LB] = 0
            elif mode == 'b2':
                pre = [I(f's_and_b32 s{S_RX}, s{S_W1K}, 0x1000'), I(f'v_or_b32 v{V_LB}, s{S_RX}, v{V_L16}')]; base[V_LB] = 0
            else:
                pre = [I(f'v_xor_b32 v{V_LB}, s{S_MW}, v{V_TH}')]; base[V_LB] = base[V_TH]
        if f['kind'] == 'tr':
            fx, off = lds_addr(f['reg'], slot + f['off'], 2048)
            return (pre + fx + [I(f'ds_read_b64_tr_b16 {vr(w, 2)}, v{f["reg"]} offset:{off}', tok=f'rd{i}a')],
                    [I(f'ds_read_b64_tr_b16 {vr(w + 2, 2)}, v{f["reg"]} offset:{off + 1024}', tok=f'rd{i}b')])
        fx, off = lds_addr(V_LB, slot + f['off'], 1024)
        if f['kind'] == 'k':
            return (pre + fx + [I(f'ds_read_b64 {vr(w, 2)}, v{V_LB} offset:{off}', tok=f'rd{i}a')], [])
        return (pre + fx + [I(f'ds_read_b128 {vr(w, 4)}, v{V_LB} offset:{off}', tok=f'rd{i}a')], [])
    def rtoks(i):
        return [f'rd{i}a', f'rd{i}b'] if frags[i]['kind'] == 'tr' else [f'rd{i}a']
    def mfmas(i):
        w = V_WF + (i % 4) * 4; L = []
        for (d, x, swap, zero) in frags[i]['mf']:
            a, b = (x, w) if swap else (w, x)
            if frags[i]['kind'] == 'k': L.append(I(f'v_mfma_f32_16x16x16_bf16 {vr(d,4)}, {vr(a,2)}, {vr(b,2)}, {"0" if zero else vr(d,4)}'))
            else: L.append(I(f'v_mfma_f32_16x16x32_bf16 {vr(d,4)}, {vr(a,4)}, {vr(b,4)}, {"0" if zero else vr(d,4)}'))
        return L
    def mf(d, a, b): return I(f'v_mfma_f32_16x16x32_bf16 {vr(d,4)}, {vr(a,4)}, {vr(b,4)}, 0')

    HST = cfg.get('hst', 'sc1')
    t4 = [V_T + r for r in range(4)]
    q2, q3 = U(4)[2], U(4)[3]
    def gelu_quad(g, u, dst, mt):
        t = t4; L = []
        for r in range(4): L.append(I(f'v_mul_f32 v{t[r]}, v{g+r}, v{g+r}'))
        for r in range(4): L.append(I(f'v_fma_f32 v{t[r]}, v{t[r]}, v{C1[mt]}, v{C0[mt]}'))
        for r in range(4): L.append(I(f'v_mul_f32 v{t[r]}, v{g+r}, v{t[r]}'))
        for r in range(4): L.append(I(f'v_exp_f32 v{t[r]}, v{t[r]}'))
        for r in range(4): L.append(I(f'v_mul_f32 v{u+r}, v{g+r}, v{u+r}'))
        for r in range(4): L.append(I(f'v_add_f32 v{t[r]}, 1.0, v{t[r]}'))
        for r in range(4): L.append(I(f'v_rcp_f32 v{t[r]}, v{t[r]}'))
        for r in range(4): L.append(I(f'v_mul_f32 v{u+r}, v{u+r}, v{t[r]}'))
        L.append(I(f'v_cvt_pk_bf16_f32 v{dst}, v{u}, v{u+1}'))
        L.append(I(f'v_cvt_pk_bf16_f32 v{dst+1}, v{u+2}, v{u+3}'))
        return L
    def hstore(reg, n, mt, t, extra=0, va=None):
        s = ftmp(); off = t * 1024 + extra
        op = 'buffer_store_dwordx4' if n == 4 else 'buffer_store_dwordx2'
        return [I(f's_add_u32 s{s}, s{S_A2 if not cfg.get("fakeH") else S_OOB}, {mt * A2_MT + (off & ~4095)}'),
                I(f'{op} {vr(reg, n)}, v{V_L16 if n == 4 else va}, {WS}, s{s} offen offset:{off & 4095} {HST}', tok=f'h{t}_{mt}_{extra}')]
    def E_first(u):
        L = []
        for mt in range(2): L += gelu_quad(ACC(u, 0, mt), ACC(u, 1, mt), ACC(u, 0, mt), mt)
        return L
    def E_second(u0, u1, t):
        L = []
        for mt in range(2):
            L += gelu_quad(ACC(u1, 0, mt), ACC(u1, 1, mt), ACC(u0, 0, mt) + 2, mt)
            if t == 3: L += [I(f'v_min_u32 v{ACC(u0, 0, mt) + r}, -2, v{ACC(u0, 0, mt) + r}') for r in range(4)]
            L += hstore(ACC(u0, 0, mt), 4, mt, t)
        return L
    def E_quarter(u):
        L = []
        for mt in range(2):
            L += gelu_quad(ACC(u, 0, mt), ACC(u, 1, mt), ACC(u, 0, 0) + 2 * mt, mt)
        a = ACC(u, 1, 0)
        L += [I(f's_add_u32 s{S_CNT}, s{S_W1K}, {slot_of(IT_PK) * SLOT}'), I(f'v_add_u32 v{a}, s{S_CNT}, v{V_L16}'),
              I(f'ds_write_b128 v{a}, {vr(ACC(u, 0, 0), 4)}')]
        return L
    def cswrite(c, e, t):
        L = [I(f'v_cvt_pk_bf16_f32 v{t}, v{c}, v{c}'), I(f'v_and_b32 v{t}, 0xffff0000, v{t}'), I(f'v_sub_f32 v{t}, v{c}, v{t}'),
             I(f'v_cvt_pk_bf16_f32 v{t}, v{c}, v{t}'), I(f'v_mov_b32 v{t+1}, 0')]
        if e < 2:
            L += [I(f'v_bfe_u32 v{t+2}, v{V_L16}, 1, 8'), I(f's_add_u32 s72, s{S_W1K}, {MISC + (768 if e == 0 else 0)}')]
            if e == 0: L += [I(f'v_cmp_gt_u32 vcc, 0x80, v{t+2}'), I('s_nop 1'), I(f'v_cndmask_b32 v{t}, 0, v{t}, vcc')]
        else:
            L += [I(f'v_bfe_u32 v{t+2}, v{V_L16}, 1, 7'), I(f's_and_b32 s72, s{S_W1K}, 0xc00'), I(f's_lshr_b32 s83, s{S_W1K}, 12'),
                  I('s_lshl_b32 s83, s83, 7'), I(f's_add_u32 s72, s72, s83'), I(f's_add_u32 s72, s72, {MISC + 768 + (e - 2) * 4096}')]
        L += [I(f'v_add_u32 v{t+2}, s72, v{t+2}'), I(f'ds_write_b64 v{t+2}, {vr(t,2)}', tok=f'cs{e}')]
        return L
    def phi_quad(q):
        t = t4; L = []
        for r in range(4): L.append(I(f'v_mul_f32 v{t[r]}, s{S_L2E}, v{q+r}'))
        for r in range(4): L.append(I(f'v_exp_f32 v{t[r]}, v{t[r]} clamp'))
        for r in range(4): L.append(I(f'v_max_f32 v{q+r}, s{S_EPS}, v{q+r}'))
        for r in range(4): L.append(I(f'v_add_f32 v{q+r}, v{q+r}, v{t[r]}'))
        return L
    def pack2(dst, q0, q1):
        return [I(f'v_cvt_pk_bf16_f32 v{dst}, v{q0}, v{q0+1}'), I(f'v_cvt_pk_bf16_f32 v{dst+1}, v{q0+2}, v{q0+3}'),
                I(f'v_cvt_pk_bf16_f32 v{dst+2}, v{q1}, v{q1+1}'), I(f'v_cvt_pk_bf16_f32 v{dst+3}, v{q1+2}, v{q1+3}')]
    def sgroups(txt):
        L = []
        lines = [l.strip() for l in txt.strip().split('\n') if l.strip()]
        k = 0
        while k < len(lines):
            if lines[k].startswith('s_cmp') or lines[k].startswith('s_bitcmp'):
                g = [I(lines[k])]; k += 1
                while k < len(lines) and lines[k].startswith('s_cselect'): g.append(I(lines[k])); k += 1
                L.append(g)
            else:
                L.append(I(lines[k])); k += 1
        return L
    def setflag(sreg, add, toks, VA, VB):
        t = ftmp()
        return [I(f'v_lshlrev_b32 v{VA}, 21, v{V_L16}'), I(f'v_and_b32 v{VA}, s{S_OOB}, v{VA}'),
                I(f'v_lshrrev_b32 v{VB}, 2, v{V_L16}'), I(f'v_or_b32 v{VA}, v{VA}, v{VB}'), I(f'v_mov_b32 v{VB}, s{S_NON}'),
                I(f's_add_u32 s{t}, s{sreg}, {add}'),
                I(f'buffer_store_dword v{VB}, v{VA}, {WS}, s{t} offen sc1', waits=toks)]
    def poll(spt, bits, ev, w0, bar, between, VA, VB, S_PT=S_PT):
        addr = [I(f'v_lshrrev_b32 v{VA}, {10 - bits}, v{V_L16}'), I(f'v_lshlrev_b32 v{VA}, 7, v{VA}')]
        loads = lambda: [I(f'buffer_load_dword v{VB}, v{VA}, {WS}, s{S_PT} offen sc1')]
        check = lambda: [I(f'v_cmp_ne_u32 vcc, s{S_NON}, v{VB}')]
        return addr + spt + loads() + between + [retry_group(loads, check, w0), Ev(ev, bar)]
    def pollh(k, ev, between, VA, VB):
        return poll([I(f's_add_u32 s{S_PT}, s{S_FH}, {k*HS}')], 3, ev, False, False, between, VA, VB)
    def F_nonce(between):
        X0 = XF(17, 0); a = V_T; n_ = 7
        loads = lambda: [I(f'buffer_load_dword v{n_}, off, s[{S_OUT}:{S_OUT+3}], 0 sc1')]
        check = lambda: [I(f'v_cmp_eq_u32 vcc, 0, v{n_}')]
        adr = lambda: [I(f'v_cmp_gt_u32 vcc, 0x80, v{V_L16}'), I(f'v_mov_b32 v{a}, s{S_OOB}'), Delay(1), I(f'v_cndmask_b32 v{a}, v{a}, v{V_L16}, vcc')]
        L = adr() + [
             I(f'buffer_load_dwordx4 {vr(X0,4)}, v{V_L16}, {XS}, s{S_RS} offen'),
             I(f'buffer_load_dwordx4 {vr(X0+4,4)}, v{a}, {XS}, s{S_RS} offen offset:1024')] + loads()
        L += between + [retry_group(loads, check), I(f'v_readfirstlane_b32 s{S_NON}, v{n_}'), Ev('non')] + adr() + [
              I(f's_mov_b32 s{S_OUT}, s{S_OP}'), I(f's_mov_b32 s{S_OUT+1}, s{S_OP+1}'), I(f's_mov_b32 s{S_OUT+2}, 2359296')]
        S_, Q_, t0, t1 = q3, q3 + 2, a + 2, a + 3
        for r in range(8):
            L += [I(f'v_lshlrev_b32 v{t0}, 16, v{X0+r}'), I(f'v_and_b32 v{t1}, 0xffff0000, v{X0+r}')]
            if r == 0: L += [I(f'v_add_f32 v{S_}, v{t0}, v{t1}'), I(f'v_mul_f32 v{Q_}, v{t0}, v{t0}'), I(f'v_fmac_f32 v{Q_}, v{t1}, v{t1}')]
            else: L += [I(f'v_add_f32 v{S_}, v{S_}, v{t0}'), I(f'v_fmac_f32 v{Q_}, v{t0}, v{t0}'), I(f'v_add_f32 v{S_}, v{S_}, v{t1}'), I(f'v_fmac_f32 v{Q_}, v{t1}, v{t1}')]
        L += [Ev('rowdone'), Delay(1)]
        for m_ in ['row_shr:1 row_mask:0xf bank_mask:0xf bound_ctrl:0', 'row_shr:2 row_mask:0xf bank_mask:0xf bound_ctrl:0',
                   'row_shr:4 row_mask:0xf bank_mask:0xf bound_ctrl:0', 'row_shr:8 row_mask:0xf bank_mask:0xf bound_ctrl:0',
                   'row_bcast:15 row_mask:0xa bank_mask:0xf', 'row_bcast:31 row_mask:0xc bank_mask:0xf']:
            L += [I(f'v_add_f32_dpp v{k}, v{k}, v{k} {m_}') for k in (S_, Q_)]
        L += IL(f"""
        v_readlane_b32 s30, v{S_}, 63
        v_readlane_b32 s31, v{Q_}, 63
        v_mov_b32 v{t0}, {f2u(1.0/576.0):#x}
        v_mov_b32 v{q3+1}, v{n_}
        v_mul_f32 v{S_}, s30, v{t0}
        v_mul_f32 v{Q_}, s31, v{t0}
        v_fma_f32 v{Q_}, -v{S_}, v{S_}, v{Q_}
        v_max_f32 v{Q_}, 0, v{Q_}
        v_cvt_pk_bf16_f32 v{t0}, -v{S_}, v{Q_}
        v_lshlrev_b32 v{S_}, 16, v{t0}
        v_and_b32 v{Q_}, 0xffff0000, v{t0}
        v_add_f32 v{Q_}, {f2u(1e-5):#x}, v{Q_}
        v_cvt_pk_bf16_f32 v{Q_}, v{Q_}, v{Q_}
        v_and_b32 v{Q_}, 0xffff0000, v{Q_}
        v_sqrt_f32 v{Q_}, v{Q_}
        v_cvt_pk_bf16_f32 v{Q_}, v{Q_}, v{Q_}
        v_and_b32 v{Q_}, 0xffff0000, v{Q_}
        v_rcp_f32 v{Q_}, v{Q_}
        v_mov_b32 v{q3+3}, v{n_}
        buffer_store_dwordx4 {vr(q3,4)}, v{a}, {WS}, s{S_PT} offen sc1
        """)
        return L + [Ev('nonce')]
    def F_setup2():
        C = 71
        L = sgroups(f"""
            s_lshr_b32 s74, s2, 3
            s_and_b32 s73, s74, 3
            s_lshr_b32 s74, s74, 2
            s_and_b32 s75, s2, 4
            s_lshl_b32 s75, s75, 1
            s_add_u32 s74, s74, s75
            s_and_b32 s75, s{S_WAVE}, 3
            s_lshr_b32 s76, s{S_WAVE}, 2
            s_and_b32 s78, s2, 3
            s_lshl_b32 s77, s74, 3
            s_lshl_b32 s79, s75, 1
            s_add_u32 s77, s77, s79
            s_add_u32 s77, s77, s76
            s_lshl_b32 s{S_STK}, s77, 11
            s_lshl_b32 s79, s78, 3
            s_lshl_b32 s{C}, s76, 2
            s_add_u32 s79, s79, s{C}
            s_mul_i32 s79, s79, 5120
            s_add_u32 s79, s79, {A2_OFF}
            s_mul_i32 s{S_A}, s77, {A2_MT}
            s_add_u32 s{S_A}, s{S_A}, s79
            s_xor_b32 s{C}, s77, 1
            s_mul_i32 s{S_A+1}, s{C}, {A2_MT}
            s_add_u32 s{S_A+1}, s{S_A+1}, s79
            s_lshl_b32 s79, s78, 2
            s_add_u32 s79, s79, s73
            s_lshl_b32 s79, s79, 1
            s_add_u32 s79, s79, s76
            s_mul_i32 s79, s79, {W2_S}
            s_lshl_b32 s{C}, s75, 10
            s_add_u32 s79, s79, s{C}
            s_add_u32 s{S_W2}, s79, {W2_OFF}
            s_mul_i32 s79, s76, {W2_S}
            s_sub_u32 s{S_W2K}, s{S_W2}, s79
            s_lshr_b32 s79, s77, 1
            s_lshl_b32 s79, s79, 2
            s_add_u32 s79, s79, s78
            s_lshl_b32 s79, s79, 10
            s_lshl_b32 s{C}, s76, 6
            s_add_u32 s79, s79, s{C}
            s_add_u32 s{S_AL}, s79, {A2L_OFF}
            s_mul_i32 s79, s77, 18432
            s_mul_i32 s{C}, s73, 288
            s_add_u32 s79, s79, s{C}
            s_lshl_b32 s{C}, s78, 6
            s_add_u32 s{S_O}, s79, s{C}
            s_add_u32 s{S_O8}, s79, 256
        """)
        for p in range(1, 4):
            L += sgroups(f"""
            s_add_u32 s79, s78, {p}
            s_and_b32 s79, s79, 3
            s_sub_u32 s79, s79, s78
            s_mul_i32 s79, s79, 24576
            s_add_u32 s79, s79, s{S_EX}
            s_add_u32 s{S_EXS+p-1}, s79, {(3-p)*1024}
            """)
        L += sgroups(f"""
            s_lshr_b32 s79, s2, 2
            s_lshl_b32 s79, s79, 3
            s_add_u32 s79, s79, s{S_WAVE}
            s_lshl_b32 s79, s79, 11
            s_add_u32 s79, s79, {EX8_OFF}
            s_sub_u32 s{C}, s78, s75
            s_sub_u32 s{C}, s{C}, 1
            s_and_b32 s{C}, s{C}, 3
            s_lshl_b32 s{C}, s{C}, 9
            s_add_u32 s79, s79, s{C}
            s_cmp_eq_u32 s78, s75
            s_cselect_b32 s{S_E8S}, s{S_OOB}, s79
            s_cselect_b32 s{S_O8}, s{S_O8}, s{S_OOB}
        """)
        return L + [Ev('setup2')]
    def F_wx(i):
        q = U(4)[3]; a = U(4)[2] + 2
        L = [I(f'v_bfe_u32 v{a}, v{V_L16}, 4, 2'), I(f'v_lshlrev_b32 v{a}, s{S_GP+3+i}, v{a}'),
             I(f'v_and_b32 v{a+1}, 0x3c0, v{V_L16}'), I(f'v_add3_u32 v{a}, v{a}, v{a+1}, s{S_W1K}'),
             I(f'v_add_u32 v{a+1}, {GL[i][1]}, v{a}'), I(f'v_add_u32 v{a}, {GL[i][0]}, v{a}')]
        for hh in range(2):
            L.append(I(f'ds_read_b64_tr_b16 {vr(q+2*hh,2)}, v{a+hh}', waits=[f'sg{i}_0', f'sg{i}_1']))
        L += [Delay(3),
              I(f'v_lshlrev_b32 v{a}, 21, v{V_L16}'), I(f'v_and_b32 v{a}, s{S_OOB}, v{a}'),
              I(f'v_lshrrev_b32 v{a+1}, 2, v{V_L16}'), I(f'v_or_b32 v{a}, v{a}, v{a+1}'),
              mf(V_T, ONES, q),
              I(f'buffer_store_dwordx4 {vr(q,4)}, v{V_L16}, {WS}, s{S_WXD+i} offen sc1', tok=f'wx{i}'),
              I(f's_lshr_b32 s{S_CNT}, s{S_WXD+i}, 3'), I(f's_add_u32 s{S_CNT}, s{S_CNT}, {CSP_OFF - WX_OFF // 8}'),
              I(f'buffer_store_dword v{V_T}, v{a}, {WS}, s{S_CNT} offen sc1', tok=f'wc{i}'), Ev(f'wxst{i}')]
        return L
    def F_csx():
        q = U(4)[0]; d = U(4)[1]
        L = sgroups(f"""
            s_add_u32 s30, s{S_WAVE}, 38
            s_cmp_lt_u32 s{S_WAVE}, 2
            s_cselect_b32 s30, s{S_WAVE}, s30
            s_cselect_b32 s31, 8, 9
            s_mul_i32 s{S_CNT}, s{S_J}, 112
            s_add_u32 s30, s30, s{S_CNT}
            s_lshl_b32 s30, s30, 7
            s_add_u32 s{S_CNT}, s30, {CSP_OFF}
        """)
        L += [I(f'v_lshrrev_b32 v{q}, 8, v{V_L16}'), I(f'v_cmp_gt_u32 vcc, 2, v{q}'), I(f'v_lshlrev_b32 v{q}, s31, v{q}'),
              I(f'v_bfe_u32 v{q+1}, v{V_L16}, 4, 4'), I(f'v_lshl_add_u32 v{q}, v{q+1}, 2, v{q}'), I(f'v_mov_b32 v{q+1}, s{S_OOB}'),
              I(f'v_cndmask_b32 v{q+1}, v{q+1}, v{q}, vcc'), I('s_lshl_b32 s31, 4, s31')]
        for i in range(5):
            L.append(I(f'buffer_load_dword v{d+i if i < 4 else q+2}, v{q if i < 4 else q+1}, {WS}, s{S_CNT} offen sc1'))
            if i < 4: L.append(I(f's_add_u32 s{S_CNT}, s{S_CNT}, s31'))
        return L
    def F_csx2():
        q = U(4)[0]; d = U(4)[1]
        L = [I(f'v_add_f32 v{d}, v{d}, v{d+1}'), I(f'v_add_f32 v{d+2}, v{d+2}, v{d+3}'), I(f'v_add_f32 v{d}, v{d}, v{q+2}'), I(f'v_add_f32 v{d}, v{d}, v{d+2}')]
        L += [I(f'v_mov_b32 v{d+1}, v{d}'), Delay(1), I(f'v_permlane32_swap_b32 v{d}, v{d+1}'), I(f'v_add_f32 v{d}, v{d}, v{d+1}')]
        return L + cswrite(d, 1, q)
    def F_stats(between):
        q = q2; a = V_T
        loads = lambda: [I(f'buffer_load_dwordx4 {vr(q,4)}, v{a}, {WS}, s{S_PT} offen sc1')]
        check = lambda: [I(f'v_xor_b32 v{q+1}, s{S_NON}, v{q+1}'), I(f'v_xor_b32 v{q+3}, s{S_NON}, v{q+3}'),
                         I(f'v_or_b32 v{q+1}, v{q+1}, v{q+3}'), I(f'v_cmp_ne_u32 vcc, 0, v{q+1}')]
        L = [I(f'v_lshrrev_b32 v{a}, 5, v{V_L16}'), I(f'v_lshlrev_b32 v{a}, 7, v{a}'),
             I(f's_lshl_b32 s{S_PT}, s{S_RB}, 3'), I(f's_add_u32 s{S_PT}, s{S_PT}, s{S_WAVE}'), I(f's_lshl_b32 s{S_PT}, s{S_PT}, 12')]
        L += loads() + between + [retry_group(loads, check)]
        L += [I(f'v_lshrrev_b32 v{a}, 5, v{a}'), I(f's_add_u32 s{S_CNT}, s{S_W1K}, {MISC}'), I(f'v_add_u32 v{a}, s{S_CNT}, v{a}'),
              I(f'v_bfe_u32 v{q+1}, v{V_L16}, 4, 4'), I(f'v_lshl_add_u32 v{q+1}, v{q+1}, 2, s{S_CNT}'),
              I(f'ds_write_b32 v{a}, v{q+2} offset:512'), I(f'ds_write_b32 v{a}, v{q} offset:640')]
        for mt in range(2):
            L += [I(f'ds_read_b32 v{q3+2*mt}, v{q+1} offset:{640 + 64*mt}'), I(f'ds_read_b32 v{q3+2*mt+1}, v{q+1} offset:{512 + 64*mt}')]
        return L
    def F_stats2():
        L = [Need('xdone'), I(f'v_cmp_gt_u32 vcc, 0x200, v{V_L16}')]
        for mt in range(2):
            L += [I(f'v_cvt_pk_bf16_f32 v{q3+2*mt}, v{q3+2*mt}, v{q3+2*mt}'), I(f'v_mul_f32 v{q3+2*mt+1}, {f2u(K0C):#x}, v{q3+2*mt+1}')]
        for mt in range(2):
            L += [I(f'v_cndmask_b32 v{BN[mt]}, 0, v{q3+2*mt}, vcc'), I(f'v_and_b32 v{C0[mt]}, 0xffffff7f, v{q3+2*mt+1}')]
        return L + [Ev('stats')]
    def F_c1():
        L = [I(f'v_mul_f32 v{C1[mt]}, v{C0[mt]}, v{C0[mt]}') for mt in range(2)]
        L += [I(f'v_mul_f32 v{C1[mt]}, {f2u(0.044715 / (K0C * K0C)):#x}, v{C1[mt]}') for mt in range(2)]
        L += [I(f'v_mul_f32 v{C1[mt]}, v{C1[mt]}, v{C0[mt]}') for mt in range(2)]
        return L
    def F_rpat():
        a, b = q2 + 1, q2 + 2
        return [I(f'v_lshrrev_b32 v{a}, 3, v{V_L16}'), I(f'v_xor_b32 v{a}, v{a}, v{V_L16}'), I(f'v_and_b32 v{a}, 0x60, v{a}'),
                I(f'v_and_or_b32 v{a}, v{V_L16}, 16, v{a}'), I(f'v_lshrrev_b32 v{b}, 8, v{V_L16}'), I(f'v_mad_u32_u24 v{a}, v{b}, s{S_LEFT}, v{a}'),
                I(f'v_lshrrev_b32 v{b}, 7, v{V_L16}'), I(f'v_mul_u32_u24 v{b}, 1152, v{b}'), I(f'v_add_u32 v{a}, v{a}, v{b}'), Ev('rpat')]
    NT = cfg.get('nt', 9)
    def F_tpat():
        a, b, c = 7, V_T, V_T + 1; n = 18 // NT
        return [[I('s_lshl_b32 s30, s2, 2'), I(f's_and_b32 s31, s{S_WAVE}, 3'), I('s_add_u32 s30, s30, s31'), I(f's_mul_i32 s30, s30, {n}')],
                I(f'v_lshrrev_b32 v{a}, 4, v{V_L16}'), I(f'v_min_u32 v{a}, {n - 1}, v{a}'), I(f'v_add_u32 v{a}, s30, v{a}'),
                I(f'v_and_b32 v{c}, 7, v{a}'), I(f'v_cmp_eq_u32 vcc, 2, v{c}'),
                I(f'v_lshrrev_b32 v{b}, 5, v{a}'), I(f'v_mul_u32_u24 v{b}, {9216 - 4096}, v{b}'), I(f'v_cndmask_b32 v{c}, 32, 1, vcc'),
                I(f'v_add_u32 v{a}, v{a}, v{c}'), I(f'v_lshl_add_u32 v{a}, v{a}, 7, v{b}'), Ev('tpat')]
    def touch(k):
        t = stmp()
        x = I(f'buffer_load_dword v7, s[{S_W}:{S_W+3}], s{t} offen lds')
        if k == NT - 1: events['tissued'] = st.gap
        st.tnext = st.gap + cfg.get('tsp_', 8)
        return [I(f's_add_u32 m0, s{S_W1K}, {6*SLOT}'), I(f's_mov_b32 s{t}, {k * (576 // NT) * 9216}'), x]
    def F_dmah(VA, VB):
        return [I(f'v_bfe_u32 v{VA}, v{V_L16}, 6, 2'), I(f'v_lshrrev_b32 v{VB}, 8, v{V_L16}'), I(f'v_lshl_add_u32 v{VA}, v{VB}, 3, v{VA}'),
                [I(f's_and_b32 s73, s{S_WAVE}, 1'), I(f's_lshl_b32 s73, s73, 2'), I(f's_and_b32 s74, s{S_WAVE}, 2'),
                 I('s_lshl_b32 s74, s74, 4'), I(f's_add_u32 s73, s73, s74')],
                I(f'v_add_u32 v{VA}, s73, v{VA}'), I(f'v_mul_u32_u24 v{VA}, 9216, v{VA}'),
                I(f'v_lshlrev_b32 v{VB}, 5, v{VB}'), I(f'v_xor_b32 v{VB}, v{VB}, v{V_L16}'), I(f'v_and_b32 v{VB}, 0x30, v{VB}'),
                [I(f's_and_b32 s73, s{S_J}, 7'), I('s_cmp_eq_u32 s73, 2'), I('s_cselect_b32 s73, 1, 32'), I(f's_add_u32 s73, s73, s{S_J}'), I('s_lshl_b32 s73, s73, 7')],
                I(f'v_add3_u32 v{V_DMA}, v{VA}, v{VB}, s73'), Ev('dmah')]
    def F_trh():
        return [I(f'v_and_b32 v{V_TH}, 0x3c0, v{V_L16}'), I(f'v_bfe_u32 v{V_TH+1}, v{V_L16}, 8, 1'), I(f'v_lshl_add_u32 v{V_TH}, v{V_TH+1}, 5, v{V_TH}'),
                I(f'v_bfe_u32 v{V_TH+1}, v{V_L16}, 4, 2'), I(f'v_lshl_add_u32 v{V_TH}, v{V_TH+1}, 3, v{V_TH}'), I(f'v_xor_b32 v{V_TH+1}, 32, v{V_TH}'), Ev('trh')]
    def F_relayout(qd, VA, VB):
        L = [I(f'v_bfe_u32 v{VA}, v{V_L16}, 6, 4'), I(f'v_lshlrev_b32 v{VA}, 7, v{VA}'), I(f'v_bfe_u32 v{VB}, v{V_L16}, 7, 2'),
             I(f'v_lshl_add_u32 v{VA}, v{VB}, 5, v{VA}'), I(f'v_bfe_u32 v{VB}, v{V_L16}, 4, 2'), I(f'v_lshl_add_u32 v{VA}, v{VB}, 3, v{VA}'),
             [I(f's_and_b32 s{S_CNT}, s{S_WAVE}, 3'), I(f's_lshl_b32 s{S_CNT}, s{S_CNT}, 5'), I(f's_and_b32 s30, s{S_W1K}, 0x1000'),
              I(f's_or_b32 s{S_CNT}, s{S_CNT}, s30')],
             I(f'v_xor_b32 v{VA}, s{S_CNT}, v{VA}'), I(f'v_add_u32 v{VA}, {6*SLOT}, v{VA}')]
        def rd(i):
            o = i * SLOT; q = qd[i % 2]
            assert slot_of(IT_R + i) == 6 + i
            return [I(f'ds_read_b64_tr_b16 {vr(q,2)}, v{VA} offset:{o}'), I(f'ds_read_b64_tr_b16 {vr(q+2,2)}, v{VA} offset:{o+2048}')]
        def sto(i): return I(f'buffer_store_dwordx4 {vr(qd[i % 2],4)}, v{V_L16}, {WS}, s{S_RDST+i if not cfg.get("fakeW") else S_OOB} offen sc1', tok=f'w2a{i}')
        return L + [Need('rland')] + rd(0) + rd(1), [[sto(0)] + rd(2), [sto(1)], [sto(2), Ev('rdone')]]
    def F_poison(q):
        L = [I(f'v_mov_b32 v{q+r}, -1') for r in range(4)]
        S_ = [I(f'buffer_store_dwordx4 {vr(q,4)}, v{V_L16}, {WS}, s{S_EX} offen offset:{1024*p} sc1', tok=f'po{p}') for p in range(3)]
        L += [I(f'v_lshrrev_b32 v{q+4}, 1, v{V_L16}')]
        S_ += [I(f'buffer_store_dwordx2 {vr(q,2)}, v{q+4}, {WS}, s{S_E8P} offen sc1', tok='po3')]
        for mt in range(2):
            x = hstore(q, 4, mt, 3); x[1].tok = f'p3_{mt}'; S_.append(x)
        return L, S_ + [Ev('podone')]
    def E_qkv():
        qa, qb = U(4)[2], U(4)[3]
        VA, VB, VC, VD = qb, qb + 1, qb + 2, qb + 3
        L = []
        L += [I(f'v_lshrrev_b32 v{V_A}, 4, v{V_L16}'), I(f'v_and_b32 v{V_A}, 0x30, v{V_A}'), I(f's_add_u32 s{S_CNT}, s{S_W1K}, {MISC}'),
              I(f'v_add_u32 v{V_A}, s{S_CNT}, v{V_A}'),
              I(f'ds_read_b128 {vr(qa,4)}, v{V_A} offset:512'), I(f'ds_read_b128 {vr(qb,4)}, v{V_A} offset:576')]
        for mt in range(2): L.append(I(f'v_mul_f32 v{V_T+mt}, {f2u(1.0/K0C):#x}, v{C0[mt]}'))
        for mt in range(2): L += [I(f'v_mul_f32 v{T0[mt]+r}, v{T0[mt]+r}, v{V_T+mt}') for r in range(4)]
        for mt in range(2):
            for T in (T1, T2, T3):
                L += [I(f'v_mul_f32 v{T[mt]+r}, v{T[mt]+r}, v{(qa, qb)[mt]+r}') for r in range(4)]
        L += pack2(T2[0], T2[0], T2[1])
        L += pack2(T2[1], T3[0], T3[1])
        L.append(I(f'v_mov_b32 v{VB}, 0x3f803f80'))
        L.append(I(f'v_add_u32 v{VA}, s{S_W1K}, v{V_L16}'))
        for r in range(4): L.append(I(f'v_cndmask_b32 v{T2[1]+r}, v{T2[1]+r}, v{VB}, s[{S_M4}:{S_M4+1}]'))
        L += phi_quad(T1[0]) + phi_quad(T1[1]) + pack2(T1[0], T1[0], T1[1])
        L += phi_quad(T3[0]) + phi_quad(T3[1]) + pack2(T3[0], T3[0], T3[1])
        L.append(I(f'v_add_u32 v{VA}, {SCR}, v{VA}'))
        L.append(I(f'v_bfe_u32 v{VC}, v{V_L16}, 6, 2'))
        L.append(mf(T1[1], T1[0], T2[0]))
        L.append(mf(T3[1], T1[0], T2[1]))
        L.append(I(f'ds_write_b128 v{VA}, {vr(T3[0],4)}'))
        L.append(I(f'v_lshlrev_b32 v{VC}, 8, v{VC}'))
        L.append(I(f'v_bfe_u32 v{VB}, v{V_L16}, 4, 2'))
        L.append(mf(T1[0], T3[0], T2[0]))
        L.append(I(f'v_lshl_add_u32 v{VC}, v{VB}, 1, v{VC}'))
        L.append(I(f'v_add_u32 v{VC}, s{S_W1K}, v{VC}'))
        L.append(mf(T2[0], T3[0], T2[1]))
        L.append(I(f'v_add_u32 v{VC}, {SCR}, v{VC}'))
        L.append(I(f'v_bfe_u32 v{VD}, v{V_L16}, 8, 2'))
        for mt in range(2):
            L.append(I(f'ds_read_u16 v{qa+2*mt}, v{VC} offset:{4*16 + mt*8}'))
            L.append(I(f'ds_read_u16 v{qa+2*mt+1}, v{VC} offset:{5*16 + mt*8}'))
        L.append(I(f'ds_write_b128 v{VA}, {vr(T1[1],4)}', tok='kva0'))
        L.append(I(f'v_bfe_u32 v{VB}, v{V_L16}, 4, 4'))
        L.append(I(f'v_mad_u32_u24 v{VA}, v{VD}, 3, v{VB}'))
        L.append(I(f'v_lshlrev_b32 v{VA}, 4, v{VA}'))
        L.append(I(f'v_mov_b32 v{VC}, 0xc0'))
        L.append(I(f'v_cmp_gt_u32 vcc, 3, v{VB}'))
        L.append(I(f'v_lshlrev_b32 v{VB}, 4, v{VB}'))
        L.append(I(f'v_cndmask_b32 v{VA}, v{VC}, v{VA}, vcc'))
        L.append(I(f'v_add_u32 v{VB}, 0x100, v{VB}'))
        L.append(I(f's_add_u32 s{S_CNT}, s{S_W1K}, {MISC}'))
        L.append(I(f'v_cndmask_b32 v{VB}, v{VC}, v{VB}, s[{S_G2}:{S_G2+1}]'))
        L.append(I(f'v_add_u32 v{VA}, s{S_CNT}, v{VA}'))
        L.append(I(f'v_add_u32 v{VB}, s{S_CNT}, v{VB}'))
        L.append(I(f'ds_write_b128 v{VA}, {vr(T3[1],4)}', tok='kva1'))
        L.append(I(f'ds_write_b64 v{VB}, {vr(T1[0],2)}', tok='kva2'))
        L.append(I(f'ds_write_b64 v{VB}, {vr(T2[0],2)} offset:8', tok='kva3'))
        L.append(Ev('qkvdone'))
        return L
    def E_q():
        qa = U(4)[2]; L = []
        for mt in range(2):
            L += phi_quad(T0[mt])
            L += [I(f'v_cvt_pk_bf16_f32 v{T0[mt]}, v{T0[mt]}, v{T0[mt]+1}'), I(f'v_cvt_pk_bf16_f32 v{T0[mt]+1}, v{T0[mt]+2}, v{T0[mt]+3}'),
                  I(f'v_lshl_or_b32 v{T0[mt]+2}, v{qa+2*mt+1}, 16, v{qa+2*mt}'), I(f'v_mov_b32 v{T0[mt]+3}, 0')]
        return L + [Ev('qdone')]
    G = T1[0]
    def sum8(g, s):
        return [I(f'v_add_f32 v{g}, v{g}, v{g+s}'), I(f'v_add_f32 v{g+2*s}, v{g+2*s}, v{g+3*s}'), I(f'v_add_f32 v{g+4*s}, v{g+4*s}, v{g+5*s}'),
                I(f'v_add_f32 v{g+6*s}, v{g+6*s}, v{g+7*s}'), I(f'v_add_f32 v{g}, v{g}, v{g+2*s}'), I(f'v_add_f32 v{g+4*s}, v{g+4*s}, v{g+6*s}'),
                I(f'v_add_f32 v{g}, v{g}, v{g+4*s}')]
    def F_publish(between):
        VA = V_A
        L = [I(f'v_lshrrev_b32 v{VA}, 2, v{V_L16}'), I(f'v_add_u32 v{VA}, s{S_RED}, v{VA}')]
        for p in range(8): L.append(I(f'ds_read_b32 v{G+p}, v{VA} offset:{1024*p}'))
        L += between + sum8(G, 1)
        L += [I(f'v_min_u32 v{G}, -2, v{G}'), I(f'v_lshrrev_b32 v{VA}, 2, v{V_L16}'),
              I(f'buffer_store_dword v{G}, v{VA}, {WS}, s{S_KVST} offen sc1'), Ev('published')]
        L += [I(f'v_mov_b32 v{T1[0]+r}, 0x3f803f80') for r in range(4)] + [Ev('ones2')]
        return L
    G2 = XF(0, 0); VK = XF(1, 0)
    def kv_loads():
        L = []
        for p in range(8):
            if p % 3 == 0:
                t = ftmp(); L.append(I(f's_add_u32 s{t}, s{S_KVLD}, {1536*p}'))
            L.append(I(f'buffer_load_dword v{G2+p}, v{VK}, {WS}, s{t} offen offset:{1536*(p%3)} sc1'))
        return L
    def kv_check():
        return [I(f'v_max3_u32 v{VK+1}, v{G2}, v{G2+1}, v{G2+2}'), I(f'v_max3_u32 v{VK+2}, v{G2+3}, v{G2+4}, v{G2+5}'),
                I(f'v_max3_u32 v{VK+1}, v{VK+1}, v{G2+6}, v{G2+7}'), I(f'v_max_u32 v{VK+1}, v{VK+1}, v{VK+2}'), I(f'v_cmp_eq_u32 vcc, -1, v{VK+1}')]
    def F_kvload(): return [Need('w2ok'), I(f'v_lshrrev_b32 v{VK}, 2, v{V_L16}')] + kv_loads()
    def F_gather():
        g = retry_group(kv_loads, kv_check)
        L = g[:4] + [g[4:]] + sum8(G2, 1)
        L += [I(f's_lshr_b32 s{S_CNT}, s{S_W1K}, 2'), I(f's_add_u32 s{S_CNT}, s{S_CNT}, {KVS}'), I(f'v_add_u32 v{VK+1}, s{S_CNT}, v{VK}'),
              I(f'ds_write_b32 v{VK+1}, v{G2}', tok='kvb0'), Ev('gathered')]
        return L
    def F_o():
        E0, E1, P2, X_ = U(2)
        t = V_T
        L = [I(f'v_add_u32 v{t}, {KVS}, v{V_L16}'), I(f'v_bfe_u32 v{t+1}, v{V_L16}, 8, 2'),
             I(f'ds_read_b128 {vr(E0,4)}, v{t}'),
             I(f'v_bfe_u32 v{t+2}, v{V_L16}, 4, 2'), I(f'v_mad_u32_u24 v{t+1}, v{t+1}, 3, v{t+2}'),
             I(f'v_lshlrev_b32 v{t+1}, 4, v{t+1}'), I(f'v_add_u32 v{t+1}, {KVS}, v{t+1}'),
             I(f'ds_read_b128 {vr(E1,4)}, v{t+1} offset:1024'),
             I(f'v_and_b32 v{t+3}, 0xf0, v{V_L16}'), I(f'v_add_u32 v{t+3}, {KVS}, v{t+3}'),
             I(f'ds_read_b64 {vr(P2,2)}, v{t+3} offset:1280'),
             I(f'v_and_b32 v{t+2}, 0x30, v{V_L16}'), I(f'v_add_u32 v{t+2}, {KVS}, v{t+2}'),
             I(f'ds_read_b64 {vr(P2+2,2)}, v{t+2} offset:1288')]
        for mt in range(2): L.append(I(f'v_mul_f32 v{X_+mt}, {f2u(1.0/K0C):#x}, v{C0[mt]}'))
        for mt in range(2): L.append(I(f'v_mul_f32 v{X_+mt}, v{X_+mt}, v{X_+mt}'))
        L += [I(f's_add_u32 s{S_CNT}, s{S_W1K}, {slot_of(IT_PK) * SLOT}'), I(f'v_add_u32 v{X_+2}, s{S_CNT}, v{V_L16}'), I(f'v_lshrrev_b32 v{X_+3}, 2, v{V_L16}'), Delay(1)]
        for E, c in ((E0, 0), (E1, 2)):
            L.append(I(f'v_cvt_pk_bf16_f32 v{E}, v{E}, v{E+1}'))
            L.append(I(f'v_cvt_pk_bf16_f32 v{E+1}, v{E+2}, v{E+3}'))
            L.append(I(f'v_cvt_pk_bf16_f32 v{E+2}, v{P2+c}, v{P2+c+1}'))
            L.append(I(f'v_mov_b32 v{E+3}, 0'))
        for E in (E0, E1): L.append(I(f'v_cndmask_b32 v{E+2}, 0, v{E+2}, s[{S_G2}:{S_G2+1}]'))
        L.append(Ev('scrfree'))
        D0 = [ACC(3, 0, 0), ACC(3, 0, 1)]; D1 = [ACC(3, 1, 0), ACC(3, 1, 1)]
        L += [I(f'v_mov_b32 v{P2}, s{S_OOB}'), I(f'v_cmp_gt_u32 vcc, 0x80, v{X_+3}')]
        for mt in range(2):
            L.append(mf(D1[mt], E1, T0[mt])); L.append(mf(D0[mt], E0, T0[mt]))
        L += [I(f'v_cndmask_b32 v{X_+3}, v{P2}, v{X_+3}, vcc'), I(f'v_cmp_gt_u32 vcc, 0x100, v{V_L16}')]
        HQ = [E0, E1]
        L += [I(f'ds_read_b64 {vr(HQ[mt],2)}, v{X_+2} offset:{8*mt}') for mt in range(2)]
        for mt in range(2): L.append(I(f'v_add_f32 v{D1[mt]+2}, s{S_EPS}, v{D1[mt]+2}'))
        for mt in range(2): L.append(I(f'v_mul_f32 v{D1[mt]+2}, v{D1[mt]+2}, v{X_+mt}'))
        for mt in range(2): L.append(I(f'v_rcp_f32 v{D1[mt]+2}, v{D1[mt]+2}'))
        for mt in range(2):
            for r in range(4): L.append(I(f'v_mul_f32 v{D0[mt]+r}, v{D0[mt]+r}, v{D1[mt]+2}'))
            for r in (0, 1): L.append(I(f'v_mul_f32 v{D1[mt]+r}, v{D1[mt]+r}, v{D1[mt]+2}'))
            L.append(I(f'v_cvt_pk_bf16_f32 v{HQ[mt]+2}, v{D0[mt]}, v{D0[mt]+1}'))
            L.append(I(f'v_cvt_pk_bf16_f32 v{HQ[mt]+3}, v{D0[mt]+2}, v{D0[mt]+3}'))
            L += hstore(HQ[mt], 4, mt, 4)
            L.append(I(f'v_cvt_pk_bf16_f32 v{D1[mt]}, v{D1[mt]}, v{D1[mt]+1}'))
        L.append(I(f'v_cndmask_b32 v{D1[0]}, v{D1[1]}, v{D1[0]}, vcc'))
        L.append(I(f'buffer_store_dword v{D1[0]}, v{X_+3}, {WS}, s{S_A2L} offen {HST}', tok='ol'))
        L.append(Ev('odone'))
        return L
    def F_p2setup():
        return [I(f'v_lshrrev_b32 v{VSP+3}, 6, v{V_L16}'), I(f'v_mul_u32_u24 v{VSP+1}, 1152, v{VSP+3}'), I(f'v_bfe_u32 v{VSP+2}, v{V_L16}, 4, 2'),
                I(f'v_lshl_add_u32 v{VSP}, v{VSP+2}, 4, v{VSP+1}'), I(f'v_lshl_add_u32 v{VSP+1}, v{VSP+2}, 3, v{VSP+1}'),
                I(f'v_lshlrev_b32 v{VSP+3}, 7, v{VSP+3}'),
                I(f'v_bfe_u32 v{V_AL+2}, v{V_L16}, 4, 4'), I(f'v_and_b32 v{VSP+2}, 0x300, v{V_L16}'), I(f'v_lshl_add_u32 v{VSP+2}, v{V_AL+2}, 2, v{VSP+2}'),
                I(f'v_mov_b32 v{V_AL+2}, 0'), I(f'v_mov_b32 v{V_AL+3}, 0'), Ev('p2setup')]
    p2slots = {slot_of(IT_W2 + k) for k in range(37, 48)}
    free = [slot_of(IT_W2 + k) for k in range(29, 33)] + [19] + [slot_of(IT_W2 + k) for k in range(33, 37)]
    assert not (set(free) & p2slots) and len(set(free)) == 9
    def F_cwrite():
        L = [I(f'v_add_u32 v12, s{S_W1K}, v{V_L16}'), I(f'v_add_u32 v13, {12*SLOT}, v12'), I(f'v_add_u32 v14, {6*SLOT}, v12')]
        return L
    def cmb(k):
        s_ = free[k]
        return (12, s_ * SLOT) if s_ < 6 else ((14, (s_ - 6) * SLOT) if s_ < 12 else (13, (s_ - 12) * SLOT))
    def F_cw2(lts):
        L = []
        for lt in lts:
            r_, o_ = cmb(lt - 2)
            L.append(I(f'ds_write_b128 v{r_}, {vr(ACC2(lt,1),4)} offset:{o_}', tok=f'cw{lt}'))
        return L
    RB_ = [acc1[9], acc1[11], acc1[13]]
    def F_send():
        L = []
        def rd(lt, q):
            r_, o_ = cmb(lt - 2)
            return I(f'ds_read_b128 {vr(q,4)}, v{r_} offset:{o_}')
        def ad(lt, q): return [I(f'v_add_f32 v{ACC2(lt,0)+r}, v{ACC2(lt,0)+r}, v{q+r}') for r in range(4)]
        L += [rd(2, RB_[0]), rd(3, RB_[1]), rd(4, RB_[2]), Delay(2)]
        nxt = 5
        for p in range(1, 4):
            for lt in (2*p, 2*p+1):
                q = RB_[(lt - 2) % 3]
                L += ad(lt, q)
                if nxt <= 8: L.append(rd(nxt, q)); nxt += 1
            a, b = ACC2(2*p, 0), ACC2(2*p+1, 0)
            L += pack2(a, a, b)
            L += [I(f'v_min_u32 v{a+r}, -2, v{a+r}') for r in range(4)]
            L.append(I(f'buffer_store_dwordx4 {vr(a,4)}, v{V_L16}, {WS}, s{S_EXS+p-1} offen sc1'))
        L += ad(8, RB_[0])
        a = ACC2(8, 0); q = RB_[1]
        L += [I(f'v_cvt_pk_bf16_f32 v{q}, v{a}, v{a+1}'), I(f'v_cvt_pk_bf16_f32 v{q+1}, v{a+2}, v{a+3}'),
              I(f'v_min_u32 v{q}, -2, v{q}'), I(f'v_min_u32 v{q+1}, -2, v{q+1}'),
              I(f'buffer_store_dwordx2 {vr(q,2)}, v{V_L8}, {WS}, s{S_E8S} offen sc1'), Ev('sent')]
        return L

    memq = []
    def mq(step, evs, mk, item=None, by=None, ordr=None): memq.append(dict(step=step, ev=evs, mk=mk, item=item, by=by, ordr=ordr))
    def xstep(ks): return SO[('S1', ks) if ks < K1 else ('S1a', ks)]
    n0 = NPRE
    for k in range(PS, len(stg)):
        for h in range(2): mq(0, [f'srd{k-NR}'] if k >= NR else [], (lambda k=k, h=h: sdma(k, h)), ordr='s')
        if n0 < 18:
            mq(0, [], (lambda n=n0: dma(n)), n0, ordr='w'); n0 += 1
        if GPOS <= k < GPOS + 2 and GP < 0:
            for h in range(2): mq(cfg.get('gstep', 3), [], (lambda g=k-GPOS, h=h: gdma(g, h)), ordr='g')
    for n in range(n0, 18): mq(0, [], (lambda n=n: dma(n)), n, ordr='w')
    NXB = cfg.get('nxb', 8)
    for n in range(IT_Q, IT_Q + NXB): mq(0, ['wxok', 'rxinit'], (lambda n=n: dma(n)), n, ordr='s')
    for k in range(NT): memq.insert(k, dict(step=cfg.get('tstep', 11), ev=['tpat', 'wxst0'], mk=(lambda k=k: touch(k)), item=None, by=None, ordr='t'))
    for n in range(IT_R, IT_Q): mq(0, ['rpat', 'tissued'], (lambda n=n: dma(n)), n, ordr='s')
    for n in range(IT_Q + NXB, IT_SCR): mq(SO[tuple(cfg.get('xr', ('S2', 9)))], ['wxok', 'rxinit'], (lambda n=n: dma(n)), n, ordr='s')
    LST = cfg.get('lst', [3])
    for n in range(IT_L1, IT_W2): mq(SO[tuple(cfg.get('l1at', ('S3', 0)))], ['dmah'], (lambda n=n: dma(n)), n, ordr='w')
    TORD = [0, 1, 2, 4, 3]
    def aload(sp, mt, half=None):
        t = stmp(); off = ((sp & 3) * 5 + TORD[sp >> 2]) * 1024
        if half is not None:
            off += half * 512
            return [I(f's_add_u32 s{t}, s{S_A + mt}, {off & ~4095}'),
                    I(f'buffer_load_dwordx2 {vr(AF(sp, mt) + 2 * half, 2)}, v{V_L8}, {WS}, s{t} offen offset:{off & 4095} sc1')]
        return [I(f's_add_u32 s{t}, s{S_A + mt}, {off & ~4095}'),
                I(f'buffer_load_dwordx4 {vr(AF(sp, mt), 4)}, v{V_L16}, {WS}, s{t} offen offset:{off & 4095} sc1')]
    def xfree_step(ks):
        return (SO[('S4c', ks)] if ks < K4 else SO[('S4e', ks)]) + 1
    w2n = IT_W2
    VX = 8
    for sp in range(21):
        while w2n <= IT_W2 + ((sp * 7 + 6) >> 2):
            mq(0, ['w2ok', 'setup2'], (lambda n=w2n: dma(n)), w2n); w2n += 1
        if sp < 20:
            ev = [['h4ok'], ['h4ok'], ['h5ok'], ['h6ok'], ['h5ok']][sp >> 2]
            if sp < 2: ev = ev + ['gathered']
            if sp >= 17: ev = ev + ['e3done']
            for mt in range(2):
                for half in [None]:
                    mq(xfree_step(sp) if sp < 16 else SO[('P1', sp - cfg.get('t3lead', 3))], ev + ['setup2'], (lambda sp=sp, mt=mt, half=half: aload(sp, mt, half)), by=SO[('P1', sp if sp < 16 else sp - 1)])
        if sp == 15:
            for k in range(2):
                mq(0, ['h6ok', 'p2setup'], (lambda k=k: [I(f'buffer_load_dword v{V_AL+k}, v{VSP+2}, {WS}, s{S_AL} offen offset:{128*k} sc1')]), by=SO[('P1', 20)])
    for n in list(range(w2n, w2n + 5)) + [NITEM - 1] + list(range(w2n + 5, NITEM - 1)): mq(0, [], (lambda n=n: dma(n)), n)
    R = AF(0, 0); R8 = R + 12
    rloads = lambda: ([I(f'buffer_load_dwordx4 {vr(R+4*p,4)}, v{V_L16}, {WS}, s{S_EX} offen offset:{1024*p} sc1') for p in range(3)]
                      + [I(f'buffer_load_dwordx2 {vr(R8+2*p,2)}, v{V_L8}, {WS}, s{S_E8R} offen offset:{512*p} sc1') for p in range(3)])
    for mk in (lambda: [I(f'buffer_load_dwordx4 {vr(8,4)}, v{VSP}, {XS}, s{S_O} offen')],
               lambda: [I(f'buffer_load_dwordx2 {vr(0,2)}, v{VSP+1}, {XS}, s{S_O8} offen')],
               lambda: [I(f'buffer_load_dword v15, v{VSP+3}, {WS}, s{S_STK} offen offset:8 sc1')]):
        mq(0, ['e3done', 'p2setup', 'pook'], mk, by=SO[('P2a', cfg.get('pb', 2))])

    KP = tuple(cfg.get('kp', ('S4a', K3 + 5))); KO = tuple(cfg.get('ko', ('S4d', K4 + 3)))
    PB = ('P2a', cfg.get('pb', 2))
    WXF = ('S1', cfg.get('wxf', 11)); RS = ('S3', 5); F3F = KP
    barspec = cfg.get('bars', None) or (
        [('S1', 1), WXF] + [('S1', k) for k in range(0, K1, cfg.get('s1b', 1))] + [('S1a', K1), ('S1b', K1), ('S1d', K1 + 2), ('S2', 0), ('S2', 9), ('S3', 0), ('S3', 5), ('S3', 10), ('S3', 17),
         ('S4', 0), ('S4', 5), KP, ('S4b', K3), ('S4c', 0), ('S4c', 4), KO, ('S4e', K4), ('S4e', K4 + 5)]
        + [('P1', k) for k in cfg.get('p1b', [0, 3, 6, 9, 12, 15, 17, 19])] + [('P2a', 0), PB, ('P2a', 14), ('P2b', 6)])
    bars = sorted(set(SO[tuple(b)] for b in barspec))
    if 'getbars' in cfg: cfg['getbars'] += [list(steps[b]) for b in bars]
    need = {}
    for bi, b in enumerate(bars):
        lo = first_frag[b] + (D if bi else 0)
        hi = first_frag[bars[bi + 1]] + D if bi + 1 < len(bars) else NF
        need[b] = sorted({frags[i]['item'] for i in range(lo, min(hi, NF))} - {None})
    last_use = {}
    for f in frags:
        if f['item'] is not None: last_use[f['item']] = f['step']
    need[SO[RS]] = sorted(set(need[SO[RS]]) | {IT_R, IT_R + 1, IT_R + 2})
    rel_ev = {IT_R: 'rdone', IT_R + 1: 'rdone', IT_R + 2: 'rdone', IT_SCR: 'scrfree', IT_PK: 'odone', 'stage': 'xdone', 'gst': 'wxst1'}
    released = set()
    issued = {n: -1 for n in range(NPRE)}
    events['srd0'] = events['srd1'] = -9
    def spread(main, items, start, step):
        o = {}
        for k, x in enumerate(items): o.setdefault(min(start + k * step, len(main) - 1), []).extend(x if isinstance(x, list) else [x])
        L = []
        for k, x in enumerate(main):
            if k in o: L += o[k]
            L.append(x)
        return L
    avail = {}
    def at(step, f): avail.setdefault(SO[step], []).append(f)
    xrd = {}
    for L_ in range(1, 9):
        xrd.setdefault(min(xstep(2 * L_) - 1, SO[('S1', K1 - 1)]), []).append(L_)
    DL = cfg.get('dl', 36); S_RSRC2 = S_RDST
    if GP >= 0: at(('S1', cfg.get('rowat', 1)), lambda: F_nonce([Need('gl0')] + F_wx(0) + [Need('gl1')] + F_wx(1)))
    else: at(('S1', cfg.get('rowat', 1)), lambda: F_nonce([Delay(cfg.get('ndelay', 40))]))
    if GP < 0: at(('S1', cfg.get('rowat', 1)), lambda: F_tpat() + [Need('gl0')] + F_wx(0) + [Need('gl1')] + F_wx(1))
    at(WXF, lambda: [Need('setup0')] + setflag(S_F2S, 0, [], q3, q3 + 1))
    at(('S1', cfg.get('stat', 11)), lambda: F_stats([Delay(DL)]))
    at(('S1', cfg.get('wxp', 13)), lambda: poll([I(f's_mov_b32 s{S_PT}, s{S_F2P}')], 3, 'wxok', False, True, [Delay(cfg.get('dlw', 26))], V_T + 1, V_T + 2) + F_stats2())
    at(('S1b', K1), lambda: [Need('setup1'), Need('wxok')] + F_csx() + F_rpat() + [Need('tissued')] + F_c1())
    at(('S1b', K1 + 2), lambda: E_first(0))
    po = F_poison(T2[0])
    at(('S1c', K1), lambda: E_second(0, 1, 0) + [Ev('u01free')])
    rl = F_relayout([ACC(2, 1, 0), ACC(2, 1, 1)], V_TH, V_T)
    at(('S2', 0), lambda: E_first(2) + rl[0] + spread(E_second(2, 3, 1) + [Ev('u23free')], rl[1], 6, 14))
    assert not cfg.get('map', 0)
    kvpo = [I(f'v_mov_b32 v{U(3)[0]}, -1'), I(f'v_lshrrev_b32 v{U(3)[0]+1}, 2, v{V_L16}'),
            I(f'buffer_store_dword v{U(3)[0]}, v{U(3)[0]+1}, {WS}, s{S_KVST} offen sc1', tok='kvpo')]
    at(('S3', 2), lambda: kvpo + F_trh() + E_quarter(4) + [Ev('u4free')] + [I(f'v_mov_b32 v{ONES+r}, 0x3f803f80') for r in range(4)] + [Ev('ones1')])
    at(('S4', 0), lambda: setflag(S_FL, 0, ['h0_0_0', 'h0_1_0', 'h1_0_0', 'h1_1_0'], q3, q3 + 1) + setflag(S_F2S, 0x8000, [], q3, q3 + 1)[5:] + E_qkv())
    w2p = [I(f's_and_b32 s{S_RSRC2}, s2, 3'), I(f's_lshl_b32 s{S_RSRC2}, s{S_RSRC2}, 13'), I(f's_add_u32 s{S_RSRC2}, s{S_RSRC2}, s{S_W1K}'),
           I(f's_add_u32 s{S_RSRC2}, s{S_RSRC2}, {F2_OFF + 0x8000}')]
    at(KP, lambda: F_publish([Delay(3)]) + po[0] + spread(E_q(), po[1], 1, 7))
    at(('S4b', K3 + 2), lambda: pollh(0, 'h4ok', poll(w2p, 3, 'w2ok', False, True, E_first(2), q3 + 2, q3 + 3, S_RSRC2), q3, q3 + 1) + [Ev('u4free2'), Ev('e2b')])
    at(('S4c', 0), lambda: E_second(2, 3, 2)[:36])
    at(('S4c', cfg.get('kvl', 3)), lambda: F_kvload() + E_second(2, 3, 2)[36:] + [Ev('e2done')] + F_gather())
    at(KO, lambda: F_o())
    at(('S4e', K4 + 2), lambda: E_first(4) + [Ev('e4a')])
    e3 = E_second(4, 1, 3)
    at(('P1', 0), lambda: [I(f'v_lshrrev_b32 v{V_L8}, 1, v{V_L16}'), Ev('l8')] + e3 + [Ev('e3done')] + F_p2setup())
    def t3check(sp):
        a0, a1 = AF(sp, 0), AF(sp, 1)
        def ld():
            L = []
            for mt in range(2):
                off = ((sp & 3) * 5 + 3) * 1024
                L += [I(f's_add_u32 s{S_PT}, s{S_A + mt}, {off & ~4095}'),
                      I(f'buffer_load_dwordx4 {vr(AF(sp, mt), 4)}, v{V_L16}, {WS}, s{S_PT} offen offset:{off & 4095} sc1')]
            return L
        ck = lambda: [I(f'v_max3_u32 v3, v{a0}, v{a0+1}, v{a0+2}'), I(f'v_max3_u32 v6, v{a0+3}, v{a1}, v{a1+1}'),
                      I(f'v_max3_u32 v3, v3, v{a1+2}, v{a1+3}'), I('v_max_u32 v3, v3, v6'), I('v_cmp_eq_u32 vcc, -1, v3')]
        g = retry_group(ld, ck)
        return [Delay(cfg.get('t3d', 8))] + g[:4] + [g[4:], Ev(f't3ok{sp}')]
    for sp in range(16, 20): at(('P1', sp - 1), lambda sp=sp: t3check(sp))
    at(('P1', cfg.get('pp', 10)), lambda: poll([I(f's_and_b32 s{S_PT}, s2, 0xfc'), I(f's_lshl_b32 s{S_PT}, s{S_PT}, 7'), I(f's_add_u32 s{S_PT}, s{S_PT}, {F4_OFF}')],
                                               2, 'pook', False, False, [Delay(28)], 3, 6) + [Need('e3done')] + F_cwrite() + [Ev('cwa')])
    at(('P1', 19), lambda: [Delay(5)] + [y for lt in range(2, 7) for y in F_cw2([lt]) + [Delay(3)]] + [Ev('cw6')])
    at(('P2a', 0), lambda: F_cw2(range(7, 9)) + [I(f'v_xor_b32 v{r_}, 0x1000, v{r_}') for r_ in (12, 13, 14)] + [Ev('cwb')])
    if not cfg.get('fastsend', 1): at(PB, lambda: F_send())
    TT = acc1[0]
    at(('P2b', 2), lambda: [Need('sent'), I(f'v_xor_b32 v{TT}, 0x1000, v{cmb(8)[0]}'), I(f'ds_write_b128 v{TT}, {vr(ACC2(0,1),4)} offset:{cmb(8)[1]}', tok='c0w'), Ev('c0w')])
    at(('P2b', 6), lambda: [I(f'ds_read_b128 {vr(ACC2(0,1),4)}, v{cmb(8)[0]} offset:{cmb(8)[1]}'), I('v_mul_f32 v15, v15, v15'), Delay(3)]
       + [I(f'v_add_f32 v{ACC2(0,0)+r}, v{ACC2(0,0)+r}, v{ACC2(0,1)+r}') for r in range(4)] + [Ev('c0done')])
    TW = acc1[2]
    TB0 = (0 if free[7] >= 4 else 4) * SLOT
    tadr = [I(f's_lshl_b32 s{S_CNT}, s{S_W1K}, 2'), I(f's_add_u32 s{S_CNT}, s{S_CNT}, {TB0}'),
            I(f'v_bfe_u32 v{TW}, v{V_L16}, 4, 4'), I(f'v_mul_u32_u24 v{TW}, 208, v{TW}'), I(f'v_bfe_u32 v{TW+3}, v{V_L16}, 8, 2'),
            I(f'v_lshl_add_u32 v{TW}, v{TW+3}, 4, v{TW}'), I(f'v_add_u32 v{TW}, s{S_CNT}, v{TW}'),
            I(f'v_lshrrev_b32 v{TW+2}, 6, v{V_L16}'), I(f'v_mul_u32_u24 v{TW+2}, 208, v{TW+2}'), I(f'v_add_u32 v{TW+2}, s{S_CNT}, v{TW+2}'),
            I(f'v_bfe_u32 v{TW+3}, v{V_L16}, 4, 2'), I(f'v_lshl_add_u32 v{TW+1}, v{TW+3}, 5, v{TW+2}'), I(f'v_lshl_add_u32 v{TW+2}, v{TW+3}, 4, v{TW+2}')]
    at(('P2b', cfg.get('rcv', 9)), lambda: rloads() + tadr + [Ev('rcv')])
    p5 = pollh(1, 'h5ok', [], 3, 6); p6 = pollh(2, 'h6ok', [], 3, 6)
    P5 = cfg.get('p5', 3); P6 = cfg.get('p6', 7); F6 = cfg.get('f6', 1)
    front2 = {SO[('S4e', K4)]: lambda: setflag(S_FL, HS, ['h2_0_0', 'h2_1_0', 'p3_0', 'p3_1'], V_A, V_DMA) + setflag(S_F3S, F4_OFF - F3_OFF, [], V_A, V_DMA)[5:] + [Ev('f5')],
              SO[('P1', F6)]: lambda: setflag(S_FL, 2*HS, ['h4_0_0', 'h4_1_0', 'ol'], 3, 6),
              SO[('P1', P5)]: lambda: p5[:-2], SO[('P1', P5 + 2)]: lambda: p5[-2:], SO[('P1', P6)]: lambda: p6[:-2], SO[('P1', P6 + 2)]: lambda: p6[-2:]}
    assert F6 < P5 and P5 + 2 < P6 and P6 + 2 <= cfg.get('pp', 10)
    front = {SO[('S1d', K1)]: lambda: F_csx2() + [Ev('csx')], SO[('S2', 0)]: lambda: [Need('l0issued')] + F_dmah(V_DMA, V_TH + 1)}
    front.update(front2)
    inline = {SO[('S1b', K1)]: lambda: cswrite(CSA, 0, ONES), SO[('S4b', K3)]: lambda: cswrite(CSA, 2, ONES), SO[('S4e', K4)]: lambda: cswrite(T1[1], 3, T1[0])}
    must = {('S1b', K1): ['stats'], ('S2', 0): ['csx'], WXF: ['wxst1'], ('S3', 0): ['u01free'], ('S3', 17): ['trh'],
            ('S4', 0): ['rdone', 'ones1'], KP: ['qkvdone'],
            ('S4c', 0): ['u4free2', 'published', 'ones2', 'e2b'], KO: ['gathered'], ('P1', 0): ['odone', 'e2done', 'f5'] + (['e4a'] if cfg.get('e4a', 0) else []), ('P2a', 0): ['cw6'], PB: ['cwb'], ('P2b', 6): ['c0w']}
    for sp in range(16, 20): must[('P1', sp)] = [f't3ok{sp}', 'cwa']
    must = {SO[k]: v for k, v in must.items()}
    b1 = sq_txt[-1].split('\n'); cut = [k for k, l in enumerate(b1) if f's_cselect_b32 s{S_F3S},' in l][0] + 1
    savail = {SO[('S1', 0)]: lambda: [Need('gissued')] + sgroups('\n'.join(b1[:cut])) + [Ev('setup0')] + sgroups('\n'.join(sq_txt[:-1])) + [Ev('rsetup')]
                                     + sgroups('\n'.join(b1[cut:])) + [Ev('setup1')],
              SO[('S4', 0)]: lambda: [Need('xissued'), Need('rdone')] + F_setup2()}
    bar_extra = {SO[WXF]: ['wx0', 'wx1', 'wc0', 'wc1'], SO[('S1b', K1)]: ['cs0'], SO[('S3', 0)]: ['cs1'],
                 SO[KP]: [f'kva{i}' for i in range(4)], SO[('S4', 0)]: ['w2a0', 'w2a1', 'w2a2', 'kvpo'],
                 SO[('S4b', K3)]: ['cs2'], SO[KO]: ['kvb0'], SO[('S4e', K4)]: ['cs3'] + [f'po{p}' for p in range(4)],
                 SO[PB]: [f'cw{lt}' for lt in range(2, 9)], SO[('P2b', 6)]: ['c0w']}
    for k in bar_extra: assert k in bars, steps[k]

    fill = []; sfill = []; xfill = []
    st.gap = 0; st.delay_until = 0; st.cur = -99; st.ta = 0.0; st.adv = None; st.armed = None; st.force = False
    MEMSP = cfg.get('memsp', {})
    def memsp(s):
        if s < cfg.get('fasts', 0): return cfg.get('fastsp', 2.0)
        return MEMSP.get(steps[s][0][:2], {'S1': 3.8, 'P1': 4.0, 'S4': 4.0}.get(steps[s][0][:2], 4.5))
    def isI(x, kinds): return isinstance(x, I) and x.kind in kinds
    def housekeeping(force=False):
        while fill:
            x = fill[0]
            if isinstance(x, Ev): (pending if x.bar else events)[x.name] = st.gap; fill.pop(0)
            elif isinstance(x, Need):
                if x.name in events and not (x.name.endswith('issued') and events[x.name] > st.gap - 4): fill.pop(0)
                else:
                    assert not force, ('blocked on', x.name)
                    return False
            elif isinstance(x, Delay):
                if x.n >= 0:
                    st.delay_until = st.gap + x.n; x.n = -1
                if force or st.gap >= st.delay_until: fill.pop(0)
                else: return False
            else: return True
        return False
    def slots(seq):
        t = 0; lastv = -10; first = True
        for x in seq:
            if isinstance(x, Wait): t += 1; continue
            if first: first = False; t = 1; continue
            if x.kind in ('valu', 'trans'):
                t = max(t, 2); t += x.cost; lastv = t - 1
            elif x.kind in ('ds_r', 'ds_w', 'vm_ld', 'vm_st', 'vm_dma'):
                t = max(t, 2, lastv + 3); t += 1
            else: t += x.states()
        return t
    st.tnext = 0
    def mem_ready(e, s):
        if e['ordr'] == 't' and st.gap < st.tnext: return False
        if e['step'] > s or any(v not in events or events[v] > st.gap - (4 if v.startswith('srd') else 0) for v in e['ev']): return False
        n = e['item']
        if n is not None and prev_of(n) is not None and prev_of(n) not in released: return False
        return True
    leads = {}; sissue = {f's{k}_1': -30 for k in range(PS)}; st.nx = 2
    if GP >= 0:
        sissue.update({'sg0_1': -20, 'sg1_1': -20}); events['gissued'] = -9
    def flush_armed():
        g = st.armed or []; st.armed = None
        return g
    def pop_mem(s, win=None):
        if st.armed: return flush_armed()
        if sfill and sfill[0] is st.adv:
            if win is None: return None
            return sfill.pop(0)
        blocked = set()
        for k in range(min(win or cfg.get('ooo', 24), len(memq))):
            e = memq[k]
            if e['ordr'] not in blocked and mem_ready(e, s):
                memq.pop(k)
                if e['item'] is not None: issued[e['item']] = st.gap
                if e['by'] is not None: leads.setdefault(e['by'], []).append(st.gap)
                g = e['mk']()
                for x in g:
                    if x.tok and x.tok[0] == 's': sissue[x.tok] = st.gap
                if all(n in issued for n in range(IT_R, IT_Q)): events.setdefault('rissued', st.gap)
                if all(n in issued for n in range(IT_Q, IT_SCR)): events.setdefault('xissued', st.gap)
                if all(n in issued for n in range(18)): events.setdefault('l0issued', st.gap)
                if f's{len(stg)-1}_1' in sissue and 'rxinit' not in events:
                    g = g + [I(f's_lshl_b32 s{S_RX}, s{S_ROT}, 12'), I(f's_add_u32 s{S_RX}, s{S_RX}, s{S_W1K}')]
                    events['rxinit'] = st.gap
                if 'sg1_1' in sissue: events.setdefault('gissued', st.gap)
                return g
            if e['ordr']: blocked.add(e['ordr'])
        return None
    def vcost(x, s):
        c = memsp(s)
        if x.tok and x.tok.startswith('it') and IT_L1 <= int(x.tok[2:]) < IT_W2: return c * cfg.get('l1c', 2.0)
        if x.op.endswith('x4'): return c
        if x.op.endswith('x2'): return c
        return c / 2
    VM = ('vm_ld', 'vm_st')
    def gap(m, shadow, rd, s, quiet=False):
        st.gap += 1
        budget = 2
        rds = [x for x in rd if x.kind == 'salu']; rdv = [x for x in rd if x.kind == 'valu']; rdm = [x for x in rd if x.kind == 'ds_r']
        head = shadow + rds; val = list(rdv); budget -= len(rdv)
        sal = []; mem = []; fre = []; post = []; later = None; first_mem = False
        if not quiet:
            hk = housekeeping()
            fvm = hk and (isI(fill[0], VM) or (isI(fill[0], ('salu',)) and len(fill) > 1 and isI(fill[1], VM)))
            if fvm and st.armed: fvm = False
            if fvm:
                x = fill[0] if isI(fill[0], VM) else fill[1]
                if st.gap >= st.ta - 2 or not x.op.endswith('x4'):
                    if fill[0] is not x: fre.append(fill.pop(0))
                    mem.append(fill.pop(0))
            while st.nx < 18 and not xfill:
                k = spos[('x', st.nx)]
                if f's{k}_1' in sissue and st.gap - sissue[f's{k}_1'] >= cfg.get('lag', 45) and (st.nx < 16 or 'rowdone' in events):
                    if cfg.get('verbose'): print('   x pair', st.nx, 'early read at gap', st.gap)
                    xfill.extend([xread(st.nx, 0), xread(st.nx, 1), Ev(f'srd{k}')]); st.nx += 1
                else: break
            for i_ in range(2):
                if f'sg{i_}_1' in sissue and st.gap - sissue[f'sg{i_}_1'] >= cfg.get('glag', 50): events.setdefault(f'gl{i_}', st.gap)
            if not mem and xfill and len(rdm) < 2 and not st.armed:
                x = xfill.pop(0); mem.append(x)
                while xfill and isinstance(xfill[0], Ev): events[xfill.pop(0).name] = st.gap
            if st.armed and not mem and (st.force or (len(rdm) < 2 and not (cfg.get('rr', 1) and rdm))):
                mem.append(st.armed[0]); first_mem = True
                if st.armed[1:]: later = st.armed[1:]
                st.armed = None
            elif not st.armed and not mem and st.gap + 1 >= st.ta and not (hk and steps[s][0] != 'S1' and any(isI(x, VM) for x in fill[:3])):
                g = pop_mem(s)
                if g:
                    k = [q for q, x in enumerate(g) if x.kind.startswith('vm')][0]
                    fre += [x for x in g[:k] if x.kind != 'nop']; st.armed = g[k:]
            big = any(x.kind.startswith('vm') and (x.op.endswith('x4') or x.op.endswith('x2')) for x in mem)
            if not (big and cfg.get('vmq', 1)) and not (fvm and mem):
                if not head and housekeeping() and isI(fill[0], ('salu',)): head.append(fill.pop(0))
                while housekeeping() and isI(fill[0], ('valu', 'trans')) and fill[0].cost <= budget:
                    x = fill.pop(0); budget -= x.cost; val.append(x)
                if budget == 1 and housekeeping() and isI(fill[0], ('trans',)):
                    for k in range(1, min(8, len(fill))):
                        x = fill[k]
                        if not isI(x, ('valu', 'trans')): break
                        if x.kind == 'valu' and not any((x.rd & y.wr) or (x.wr & (y.rd | y.wr)) for y in fill[:k]):
                            val.append(fill.pop(k)); budget -= 1; break
                if not mem:
                    while housekeeping() and isI(fill[0], ('salu',)) and len(sal) < 2 and not (len(fill) > 1 and isI(fill[1], VM)):
                        sal.append(fill.pop(0))
                    while housekeeping() and isI(fill[0], ('ds_r', 'ds_w')) and len(mem) < 2 - len(rdm): mem.append(fill.pop(0))
            for x in mem:
                if x.kind.startswith('vm'): st.ta = max(st.ta, st.gap - 1) + vcost(x, s)
            room = (0 if head else 1) + 2 - len(sal) - len(fre) - len(post)
            pre = []
            while sfill and room > 0:
                x = sfill[0]
                if isinstance(x, Ev): events[x.name] = st.gap; sfill.pop(0); continue
                if isinstance(x, Need):
                    if x.name in events and events[x.name] < st.gap - 4 and not st.armed and not first_mem: sfill.pop(0); continue
                    break
                n = len(x) if isinstance(x, list) else 1
                if n > room and (room < 2 or pre): break
                sfill.pop(0); room -= n
                pre.append(x)
            if not head and pre and not isinstance(pre[0], list): head.append(pre.pop(0))
            if not head and fre: head.append(fre.pop(0))
            for x in pre: sal += x if isinstance(x, list) else [x]
        seq = [m] + head + (val + sal + fre + rdm + mem) + post
        if later: sfill.insert(0, later); st.adv = later
        if not quiet and not mem and housekeeping() and isinstance(fill[0], list): seq += fill.pop(0)
        if len(val) > len(rdv): st.cur = st.gap
        if not quiet:
            mg = MINGAP if st.gap - st.cur < 6 else cfg.get('padq', 5)
            if mg > slots(seq): seq.append(I(f's_nop {mg - slots(seq) - 1}'))
        if not quiet:
            if housekeeping() and isI(fill[0], ('mfma',)): seq += gap(fill.pop(0), [], [], s)
        return seq
    def drain_until(evs):
        L = []
        while any(e not in events for e in evs):
            assert fill, evs
            if housekeeping(force=True):
                x = fill.pop(0)
                if isinstance(x, list): L += x
                else: L.append(x)
        if L and cfg.get('verbose'): print('  drained', len(L), 'instrs for', evs)
        return L
    M = []
    def barrier_pre(b):
        L = []
        for n in need[b]:
            while n not in issued:
                g = pop_mem(b - 1, 40)
                assert g, ('item not issuable', n, steps[b], [(e['item'], e['ev'], e['step']) for e in memq[:6]])
                if cfg.get('verbose'): print('  forced issue before', steps[b], 'for item', n)
                L += g
        if cfg.get('verbose'):
            print('bar', steps[b], 'gap', st.gap, 'need', need[b], 'lead', [st.gap - issued[n] for n in need[b]])
        L.append(Wait([f'it{n}' for n in need[b]] + bar_extra.get(b, [])))
        return L
    def barrier_post(b):
        events.update(pending); pending.clear()
        if b == SO[RS]: events['rland'] = st.gap
        for n in list(last_use) + list(rel_ev):
            if n in rel_ev:
                if rel_ev[n] in events: released.add(n)
            elif last_use[n] < b: released.add(n)
    tsph = cfg.get('tsph', ['S2', 'S4', 'S4c', 'P1'])
    for i in range(NF):
        s = frags[i]['step']
        if i == 0:
            M += barrier_pre(0) + [I('s_barrier')] + ts('s1start')
            for k in range(D):
                r0, r1 = reads(k); M += r0 + r1
        if first_frag[s] == i:
            if steps[s] == ('S2', 0): assert 'rissued' in events
            if steps[s] == ('S1c', K1): tr1_last = st.gap
            if steps[s] == PB and cfg.get('fastsend', 1):
                fill.extend(F_send()); M += drain_until(['sent'])
            if s in front:
                k = 0
                while k < len(fill) and (isI(fill[k], ('vm_st', 'vm_ld')) or isinstance(fill[k], Delay)): k += 1
                fill[k:k] = front[s]()
            if s in savail: sfill.extend(savail[s]())
            for f in avail.get(s, []): fill.extend(f())
            for L_ in xrd.get(s, []):
                for p in (2 * L_, 2 * L_ + 1):
                    if p < st.nx: continue
                    assert p < 16 or 'rowdone' in events
                    st.nx = p + 1
                    k = spos[('x', p)]
                    while f's{k}_1' not in sissue:
                        while xfill:
                            x = xfill.pop(0)
                            if isinstance(x, Ev): events[x.name] = st.gap - 4
                            else: M.append(x)
                        g = pop_mem(s, 40)
                        assert g, ('staging not issuable', k, steps[s])
                        if cfg.get('verbose'): print('  forced staging issue', k, steps[s])
                        M += g
                    if cfg.get('verbose'): print('   x pair', p, 'read at', steps[s], 'lead', st.gap - sissue.get(f's{k}_1', -1))
                    xfill.extend([xread(p, 0), xread(p, 1), Ev(f'srd{k}')])
        if steps[s] == ('S1d', 17) and first_frag[s] == i - 0 and False: pass
        ms = mfmas(i)
        r0, r1 = reads(i + D) if i + D < NF else ([], [])
        ns = frags[i + 1]['step'] if i + 1 < NF else None
        nxt_first = ns is not None and first_frag[ns] == i + 1
        shadow = [Wait(rtoks(i + 1))] if i + 1 < NF else []
        if len(ms) == 2:
            if cfg.get('rr', 1) and st.armed and r1:
                st.force = True; M += gap(ms[0], [], r0 + r1, s); lastrd = []; st.force = False
            else:
                M += gap(ms[0], [], r0, s); lastrd = r1
        else: lastrd = r0 + r1
        if nxt_first and (ns in bars or ns in must or ns in leads or ns in inline or ns in front or ns in savail): M += flush_armed()
        if nxt_first:
            if steps[ns][0] in ('S1', 'S1a'):
                while xfill:
                    x = xfill.pop(0)
                    if isinstance(x, Ev): events[x.name] = st.gap
                    else: M.append(x)
            if 'xdone' not in events and ns in bars and f'srd{len(stg)-1}' in events:
                M.append(Wait([f'sr{len(stg)-1}_1'])); events['xdone'] = st.gap
            if ns in must: M += drain_until(must[ns])
            if ns in inline: assert 'setup1' in events
            if ns in inline: M += [x for x in inline[ns]() if isinstance(x, I)]
            while any(e['by'] is not None and e['by'] <= ns for e in memq):
                g = pop_mem(s, 60)
                assert g, ('load not issuable', steps[ns], [(e['item'], e['ev'], e['step']) for e in memq[:8]])
                if cfg.get('verbose'): print('  forced load before', steps[ns])
                M += g
            if cfg.get('verbose') and ns in leads: print('   step', steps[ns], 'gap', st.gap, 'reg-load lead', [st.gap - x for x in leads[ns]])
        if nxt_first and ns in bars:
            M += barrier_pre(ns)
            M += gap(ms[-1], [I('s_barrier')] + shadow, lastrd, s, quiet=True)
            barrier_post(ns)
        else:
            M += gap(ms[-1], shadow, lastrd, s)
        if nxt_first and steps[ns][0] != steps[s][0] and steps[ns][0] in tsph: M += ts(steps[ns][0])
        if nxt_first and list(steps[ns]) in cfg.get('tsat', []): M += ts(f'@{steps[ns][0]}.{steps[ns][1]}')
    M += flush_armed()
    assert not memq, [(e['item'], e['ev']) for e in memq]
    M += drain_until(['rcv'])
    assert not fill and not sfill, (fill, sfill)
    M += ts('mainend')
    drop = cfg.get('drop', [])
    if drop:
        gone = set(); M2 = []
        for k, x in enumerate(M):
            if isinstance(x, I) and not x.raw and k > 3 and x.kind in drop:
                if x.tok: gone.add(x.tok)
                continue
            M2.append(x)
        for x in M2:
            if isinstance(x, Wait): x.toks = [t for t in x.toks if t not in gone]
            else: x.waits = [t for t in x.waits if t not in gone]
        M = M2
    P.ext(M)
    TT = AF(3, 0)
    r7, o7 = cmb(7)
    P(f'v_xor_b32 v{TT+5}, 0x1000, v{r7}')
    P('s_mov_b32 s24, 0xffff0000')
    P(f'ds_write_b128 v{TT+5}, {vr(ACC2(1,1),4)} offset:{o7}', tok='c1w')
    def unpk(src):
        P(f'v_lshlrev_b32 v{TT}, 16, v{src}'); P(f'v_and_b32 v{TT+1}, s24, v{src}')
        P(f'v_lshlrev_b32 v{TT+2}, 16, v{src+1}'); P(f'v_and_b32 v{TT+3}, s24, v{src+1}')
    def addpk(dst, src):
        unpk(src)
        for r in range(4): P(f'v_add_f32 v{dst+r}, v{dst+r}, v{TT+r}')
    def rcheck():
        a, b = TT + 6, TT + 7
        L = [I(f'v_max3_u32 v{a}, v{R}, v{R+1}, v{R+2}'), I(f'v_max3_u32 v{b}, v{R+3}, v{R+4}, v{R+5}')]
        for k in range(6, 18, 4):
            L += [I(f'v_max3_u32 v{a}, v{a}, v{R+k}, v{R+k+1}'), I(f'v_max3_u32 v{b}, v{b}, v{R+k+2}, v{R+k+3}')]
        return L + [I(f'v_max_u32 v{a}, v{a}, v{b}'), I(f'v_cmp_eq_u32 vcc, -1, v{a}')]
    P.wait(['c1w'])
    P('s_barrier')
    P(f'ds_read_b128 {vr(ACC2(1,1),4)}, v{r7} offset:{o7}')
    P.ext(retry_group(rloads, rcheck, sleep=1))
    P.ext(ts('recv'))
    for k, (lt, rr) in enumerate(((0, lambda p: R+4*p), (8, lambda p: R8+2*p), (1, lambda p: R+4*p+2))):
        a = ACC2(lt, 0)
        if lt == 1:
            for r in range(4): P(f'v_add_f32 v{a+r}, v{a+r}, v{ACC2(1,1)+r}')
        for p in range(3): addpk(a, rr(p))
        P(f'ds_write_b128 v{TW}, {vr(a,4)} offset:{ {0: 0, 1: 64, 8: 128}[lt] }')
    Y = AF(5, 0)
    P(f'ds_read_b128 {vr(Y+8,4)}, v{TW+2} offset:128')
    P(f'ds_read_b128 {vr(Y,4)}, v{TW+1}')
    P(f'ds_read_b128 {vr(Y+4,4)}, v{TW+1} offset:16')
    for y, xr in ((Y + 8, 0), (Y, 8), (Y + 4, 10)):
        unpk(xr)
        for r in range(4): P(f'v_fma_f32 v{y+r}, v{y+r}, v15, v{TT+r}')
        d = {Y + 8: Y + 8, Y: Y, Y + 4: Y + 2}[y]
        P(f'v_cvt_pk_bf16_f32 v{d}, v{y}, v{y+1}'); P(f'v_cvt_pk_bf16_f32 v{d+1}, v{y+2}, v{y+3}')
        if y == Y + 8: P(f'buffer_store_dwordx2 {vr(Y+8,2)}, v{VSP+1}, s[{S_OUT}:{S_OUT+3}], s{S_O8} offen {cfg.get("ost", "")}')
    P(f'buffer_store_dwordx4 {vr(Y,4)}, v{VSP}, s[{S_OUT}:{S_OUT+3}], s{S_O} offen {cfg.get("ost", "")}')
    if TS:
        P('s_waitcnt vmcnt(0)')
        P.ext(ts('end'))
        P('s_memrealtime s[88:89]\ns_waitcnt lgkmcnt(0)')
        for k in range(st.nts if not cfg.get('cnt') else 11): P(f'v_writelane_b32 v8, s{S_TS + k}, {k}')
        P(f"""
        v_writelane_b32 v8, s101, 30
        v_writelane_b32 v8, s88, 31
        v_lshrrev_b32 v9, 2, v{V_L16}
        v_mov_b32 v10, s{S_OOB}
        v_cmp_gt_u32 vcc, 0x80, v9
        v_cndmask_b32 v9, v10, v9, vcc
        s_lshl_b32 s24, s2, 3
        s_add_u32 s24, s24, s{S_WAVE}
        s_lshl_b32 s24, s24, 7
        s_add_u32 s24, s24, {TS_OFF}
        buffer_store_dword v8, v9, {WS}, s24 offen
        """)
    P('L_done:')
    P('s_endpgm')
    q, n = P.finish()
    if cfg.get('verbose'):
        from collections import Counter
        print('nops', n, Counter(x.kind for x in q))
        print('events', events)
    return kernel_text(name, q, 256, 102), st.tsn

HEADER = """; Fused kernel: [QKV | gate/up] GEMM on raw x with LayerNorm applied as a rank-1 correction, linear attention + GEGLU,
; down/out GEMM (split-K 4, exchanged between workgroups) + residual.
; Kernarg (80 bytes): 0 A_x, 8 A_wqkv, 16 A_wo, 24 B_x (unused), 32 w_gate, 40 w_up, 48 w_down, 56 out, 64 debug, 72 ws
; @launch grid=(256,1,1) block=(512,1,1) lds=163840
"""
if __name__ == '__main__':
    out = sys.argv[1]
    cfg = json.loads(sys.argv[2]) if len(sys.argv) > 2 else {}
    name = 'parallel_sum__linear_attn_block__geglu_ffn__prompt_kernel'
    (body, kd), tsn = gen(name, cfg)
    s = HEADER + (f'; ts: {" ".join(tsn)}\n' if tsn else '')
    s += '.amdgcn_target "amdgcn-amd-amdhsa--gfx950"\n.text\n' + body + '.section .rodata,"a"\n.p2align 6\n' + kd
    open(out, 'w').write(s)
```

```python
import sys, json
sys.path.insert(0, 'work')
from dsl import *

OOB = 0x40000000
ST_OFF = 0
CSP_OFF = 0x80000
WX_OFF = 0x240000; WX_J = 112 * 1024
A2_OFF = 0x600000; A2_MT = 160 * 1024
A2L_OFF = 0x1A00000
KVP_OFF = 0x1A40000
EX_OFF = 0x1B00000
EX8_OFF = 0x2200000
W2_OFF = 0x2300000; W2_S = 192 * 1024
F2_OFF = 0x2900000
F3_OFF = 0x2910000
F4_OFF = 0x2920000
TS_OFF = 0x2A00000
FL_OFF = 0x2B00000
WS_SIZE = 0x2C00000
HS = 262144

LDS_BYTES = 163840
NSLOT = 19; SLOT = 8192
MISC = NSLOT * SLOT
IT_L0 = 0; IT_R = 18; IT_Q = 21; IT_X = 26; IT_SCR = 35; IT_PK = 36; IT_L1 = 37; IT_W2 = 55; NW2 = 48
NITEM = IT_W2 + NW2

V_TR = 0; V_TH = 2; V_L16 = 4; V_LB = 5; V_DMA = 6; V_A = 1; V_T = 8; V_WF = 16; V_ACC = 32; V_XF = 112
V_XD = 12; V_XR = 14
BN = [12, 14]; C0 = [13, 15]; C1 = [0, 7]
def XF(ks, mt): return V_XF + (ks * 2 + mt) * 4
def ACC(u, nt, mt): return V_ACC + 16 * u + (nt * 2 + mt) * 4
def U(u): return [V_ACC + 16 * u + 4 * k for k in range(4)]

S_RED = 3
S_W = 4; S_WS = 8; S_R = 12; S_XS = 16; S_OUT = 20
S_T = 24
S_W1K = 32; S_A2 = 33; S_MW = 34; S_L2E = 35; S_EPS = 36; S_W256 = 37; S_OOB = 38; S_WAVE = 39
S_M4 = 40; S_G2 = 42; S_NMS = 44; S_RS = 45; S_KVST = 46; S_KVLD = 47; S_A2L = 48; S_EX = 49; S_E8R = 50
S_FH = 51; S_FL = 52; S_CNT = 53; S_NON = 54; S_F2S = 55; S_F2P = 56; S_F3S = 57; S_PT = 58
S_XN = 59; S_WX = 60; S_XST = 61; S_GP = 62; S_RSRC = 67; S_WXD = 68; S_OP = 70
S_A = 62; S_W2 = 64; S_W2K = 65; S_EXS = 66; S_E8S = 69; S_O = 59; S_O8 = 60; S_AL = 61; S_STK = 70
S_WO = 48; S_WD = 46; S_G1 = 72; S_G0 = 76
S_RDST = 80; S_LEFT = 83; S_RB = 84; S_J = 85; S_RX = 86; S_RW = 87
S_TS = 90

K0C = -2.0 * 0.7978845608028654 * 1.4426950408889634
K1C = K0C * 0.044715

class Ctx: pass
class Ev:
    def __init__(self, name, bar=False): self.name = name; self.bar = bar
class Delay:
    def __init__(self, n): self.n = n
class Need:
    def __init__(self, name): self.name = name

def gen(name, cfg):
    D = cfg.get('dist', 3)
    TS = cfg.get('ts', False)
    SPIN = cfg.get('spin', 100000)
    MINGAP = cfg.get('mingap', 6)
    ROT = cfg.get('rot', [0, 3, 6])
    RT = sum(ROT[k % len(ROT)] << (4 * k) for k in range(16))
    S_ROT = S_NMS
    NR = cfg.get('nr', 5)
    NL0 = NSLOT - 2 * NR
    XST = NL0 * SLOT
    WS = f's[{S_WS}:{S_WS+3}]'
    XS = f's[{S_XS}:{S_XS+3}]'
    P = Prog(); st = Ctx(); st.tmp = 0; st.ft = 0; st.nts = 0; st.lab = 0; st.tsn = []; st.slowmap = {}
    S_SPN = 1
    def stmp():
        st.tmp = (st.tmp + 1) % 6; return S_T + st.tmp
    def ftmp():
        st.ft = (st.ft + 1) % 2; return S_T + 6 + st.ft
    def ts(nm):
        if not TS or cfg.get('cnt'): return []
        if 'tsat' in cfg and nm not in ('start', 's1start', 'end') and not nm.startswith('@'): return []
        k = st.nts; st.nts += 1; st.tsn.append(nm)
        assert k < 11
        if cfg.get('both'):
            return [I('s_memrealtime s[88:89]'), I('s_waitcnt lgkmcnt(0)'), I(f's_and_b32 s{S_TS+k}, s88, 0xffff'), I('s_memtime s[88:89]'), I('s_waitcnt lgkmcnt(0)'),
                    I('s_lshl_b32 s88, s88, 14'), I('s_and_b32 s88, s88, 0xffff0000'), I(f's_or_b32 s{S_TS+k}, s{S_TS+k}, s88')]
        return [I(('s_memrealtime' if cfg.get('rt') else 's_memtime') + ' s[88:89]'), I('s_waitcnt lgkmcnt(0)'), I(f's_mov_b32 s{S_TS+k}, s88')]
    slow = []
    def retry_group(loads, check, w0only=False, sleep=1):
        st.lab += 1; l = st.lab
        g = [I(f'L_sl{l}:'), I('s_nop 7'), I(f's_mov_b32 s{S_SPN}, {SPIN}'), I(f'L_rt{l}:'), I(f's_sleep {sleep}')]
        if cfg.get('cnt'):
            c_ = S_TS + (l - 1) % 11; g += [I(f's_add_u32 s{c_}, s{c_}, {1 if l <= 11 else 1000}')]
        g += loads() + [I('s_waitcnt vmcnt(0)')] + check()
        g += [I(f's_sub_u32 s{S_SPN}, s{S_SPN}, 1'), I(f's_cmp_eq_u32 s{S_SPN}, 0'), I(f's_cbranch_scc1 L_bk{l}'), I('s_nop 4'),
              I(f's_cbranch_vccnz L_rt{l}'), I(f's_branch L_bk{l}')]
        st.slowmap[l] = raw(g)
        return check() + [Delay(1), [I(f's_cbranch_vccnz L_sl{l}'), I(f'L_bk{l}:')]]
    def IL(txt): return [I(l) for l in txt.strip().split('\n') if l.strip()]
    NLR = 6
    cyc = list(range(9, 19)) + [6, 7, 8] + list(range(4))
    stab = [n % NLR for n in range(18)] + [(NLR + k) % NSLOT for k in range(NSLOT)] + cyc + cyc[:13] + [4, 5]
    while len(stab) < NITEM: stab.append(stab[-NSLOT])
    def slot_of(n): return stab[n]
    def prev_of(n):
        for m in range(n - 1, -1, -1):
            if stab[m] == stab[n]: return m
        s = stab[n]
        return 'stage' if s >= NL0 else ('gst' if s >= NLR else None)
    SCR = slot_of(IT_SCR) * SLOT; KVS = SCR

    if TS: P('s_memrealtime s[88:89]\ns_waitcnt lgkmcnt(0)\ns_mov_b32 s101, s88')
    P.ext(ts('start'))
    if cfg.get('cnt'):
        for k in range(11): P(f's_mov_b32 s{S_TS+k}, 0')
    P('s_cmp_ge_u32 s2, 256')
    P('s_cbranch_scc1 L_done')
    P(f's_load_dwordx2 s[{S_XS}:{S_XS+1}], s[0:1], 0')
    P(f's_load_dwordx4 s[{S_G0}:{S_G0+3}], s[0:1], 32')
    P(f's_load_dwordx2 s[{S_OUT}:{S_OUT+1}], s[0:1], 64')
    P(f's_load_dwordx2 s[{S_WS}:{S_WS+1}], s[0:1], 72')
    P(f's_load_dwordx2 s[{S_G1}:{S_G1+1}], s[0:1], 8')
    P(f's_load_dwordx2 s[{S_WO}:{S_WO+1}], s[0:1], 16')
    P(f's_load_dwordx2 s[{S_WD}:{S_WD+1}], s[0:1], 48')
    P(f's_load_dwordx2 s[{S_OP}:{S_OP+1}], s[0:1], 56')
    if cfg.get('probe'):
        P('s_load_dwordx2 s[24:25], s[0:1], 24\ns_mov_b32 s26, 2359296\ns_mov_b32 s27, 0x20000\ns_waitcnt lgkmcnt(0)')
        P('v_lshrrev_b32 v8, 6, v0\ns_lshl_b32 s30, s2, 3\nv_add_u32 v8, s30, v8\nv_mul_u32_u24 v8, 1152, v8')
        for k in range(9):
            P(f'buffer_load_dword v9, v8, s[24:27], 0 offen offset:{128*k}')
            P('s_waitcnt vmcnt(0)')
    P('s_memrealtime s[28:29]')
    if cfg.get('cpre', 1):
        P(f"""
        s_getpc_b64 s[24:25]
        s_mov_b32 s26, L_done - L_cp
        L_cp:
        s_mov_b32 s27, 0x20000
        s_and_b32 s30, s2, 0xf8
        s_lshl_b32 s30, s30, 8
        v_lshlrev_b32 v{V_ACC+6}, 2, v0
        buffer_load_dword v{V_ACC+7}, v{V_ACC+6}, s[24:27], s30 offen
        """)
    B = V_ACC
    VL = B; VOOB = B + 1; VG = B + 2; VSW = B + 3; VSR = B + 4; VTC = B + 5
    if cfg.get('map', 0):
        ROLE = f"s_lshr_b32 s{S_RB}, s2, 5\ns_and_b32 s25, s2, 7\ns_lshl_b32 s25, s25, 2\ns_bfe_u32 s26, s2, 0x20003\ns_add_u32 s{S_J}, s25, s26"
    else:
        ROLE = f"s_lshr_b32 s24, s2, 3\ns_and_b32 s25, s2, 4\ns_lshr_b32 s26, s24, 3\ns_add_u32 s{S_RB}, s25, s26\ns_and_b32 s26, s2, 3\ns_lshl_b32 s26, s26, 3\ns_and_b32 s27, s24, 7\ns_add_u32 s{S_J}, s26, s27"
    P(f"""
    v_lshrrev_b32 v8, 6, v0
    v_and_b32 v{VL}, 63, v0
    v_readfirstlane_b32 s{S_WAVE}, v8
    {ROLE}
    s_xor_b32 s{S_J}, s{S_J}, {cfg.get('jx', 0)}
    s_and_b32 s27, s{S_J}, 7
    s_mov_b32 s{S_OOB}, {OOB}
    v_lshrrev_b32 v{VG}, 4, v{VL}
    v_lshrrev_b32 v{VSR}, 3, v{VL}
    v_mov_b32 v{VOOB}, s{S_OOB}
    v_lshlrev_b32 v{V_L16}, 4, v{VL}
    v_cmp_gt_u32 vcc, 8, v{VL}
    v_and_b32 v9, 7, v{VL}
    v_xor_b32 v9, v9, v{VG}
    v_lshlrev_b32 v9, 4, v9
    v_cndmask_b32 v{VTC}, v{VOOB}, v{V_L16}, vcc
    v_mul_u32_u24 v11, 1152, v{VSR}
    v_add_u32 v{V_XD}, v9, v11
    v_xor_b32 v9, 64, v9
    v_add_u32 v11, {8*1152}, v11
    v_add_u32 v{V_XD+1}, v9, v11
    s_lshl_b32 s26, s{S_RB}, 5
    s_add_u32 s26, s26, s{S_J}
    s_lshl_b32 s26, s26, 3
    s_add_u32 s31, s26, s{S_WAVE}
    s_mul_i32 s{S_RS}, s31, 1152
    s_lshl_b32 s24, s{S_RB}, 3
    s_add_u32 s24, s24, s{S_WAVE}
    s_mul_i32 s{S_XN}, s24, {32*1152}
    s_mul_i32 s{S_XST}, s{S_WAVE}, {NR*2048}
    s_add_u32 s{S_XST}, s{S_XST}, {XST}
    s_add_u32 s25, s27, s{S_RB}
    s_lshl_b32 s25, s25, 2
    s_mov_b32 s{S_RX}, {RT & 0xffffffff:#x}
    s_mov_b32 s{S_RW}, {RT >> 32:#x}
    s_lshr_b64 s[{S_RX}:{S_RW}], s[{S_RX}:{S_RW}], s25
    s_and_b32 s{S_ROT}, s{S_RX}, 15
    s_lshl_b32 s{S_RX}, s{S_ROT}, 7
    s_add_u32 s{S_XN}, s{S_XN}, s{S_RX}
    s_lshl_b32 s{S_RX}, s{S_ROT}, 12
    s_mul_i32 s{S_RW}, s{S_ROT}, {64*9216}
    s_mov_b32 s{S_XS+2}, 2359296
    s_mov_b32 s{S_XS+3}, 0x20000
    s_mov_b32 s{S_W+2}, 5308416
    s_mov_b32 s{S_W+3}, 0x20000
    s_lshl_b32 s{S_W1K}, s{S_WAVE}, 10
    s_add_u32 s{S_RX}, s{S_RX}, s{S_W1K}
    v_lshrrev_b32 v8, 1, v{VL}
    v_xor_b32 v8, v8, v{VG}
    v_and_b32 v8, 3, v8
    v_and_b32 v9, 1, v{VL}
    v_lshlrev_b32 v9, 4, v9
    v_lshl_add_u32 v{VSW}, v8, 5, v9
    v_and_b32 v11, 3, v{VSR}
    v_lshrrev_b32 v8, 2, v{VSR}
    v_lshl_add_u32 v11, v8, 3, v11
    s_and_b32 s30, s{S_WAVE}, 1
    s_lshl_b32 s30, s30, 2
    s_and_b32 s27, s{S_WAVE}, 2
    s_lshl_b32 s27, s27, 3
    s_add_u32 s30, s30, s27
    v_add_u32 v11, s30, v11
    v_mul_u32_u24 v11, 9216, v11
    s_and_b32 s27, s{S_J}, 7
    s_cmp_eq_u32 s27, 3
    s_cselect_b32 s30, 31, 0
    s_add_u32 s30, s30, s{S_J}
    s_lshl_b32 s30, s30, 7
    v_add3_u32 v{V_DMA}, v11, v{VSW}, s30
    s_mov_b32 s{S_OUT+2}, 256
    s_mov_b32 s{S_OUT+3}, 0x20000
    v_cmp_eq_u32 vcc, 0, v0
    v_cndmask_b32 v10, v{VOOB}, 0, vcc
    s_waitcnt lgkmcnt(0)
    s_lshl_b32 s28, s28, 3
    s_or_b32 s28, s28, 0x80000000
    v_mov_b32 v11, s28
    s_cmp_ge_u32 s{S_WAVE}, 4
    s_cselect_b32 s{S_W}, s{S_G0+2}, s{S_G0}
    s_cselect_b32 s{S_W+1}, s{S_G0+3}, s{S_G0+1}
    """)
    def adv(reg, nextpair, total, unit):
        if nextpair == 9: return [I(f's_mul_i32 s{reg}, s{S_ROT}, {unit}')]
        if (9 - nextpair) in ROT:
            t = stmp()
            return [I(f's_cmp_eq_u32 s{S_ROT}, {9 - nextpair}'), I(f's_cselect_b32 s{t}, {total}, 0'), I(f's_sub_u32 s{reg}, s{reg}, s{t}')]
        return []
    def dma(n):
        L = [I(f's_add_u32 m0, s{S_W1K}, {slot_of(n) * SLOT}')]
        if n < 18:
            t = stmp()
            L += [I(f's_add_u32 s{t}, s{S_RW}, {n * 32 * 9216}'), I(f'buffer_load_dwordx4 v{V_DMA}, s[{S_W}:{S_W+3}], s{t} offen {cfg.get("wnt", "")} lds', tok=f'it{n}')]
            if n & 1: L += adv(S_RW, (n + 1) // 2, 576*9216, 64*9216)
        elif n < IT_Q:
            t = stmp()
            L += [I(f's_add_u32 s{t}, s{S_RSRC if not cfg.get("fakeR") else S_OOB}, {(n - IT_R) * 128}'),
                  I(f'buffer_load_dwordx4 v{U(4)[2]+1}, s[{S_R}:{S_R+3}], s{t} offen nt lds', tok=f'it{n}')]
        elif n < IT_SCR:
            t = stmp(); isq = n < IT_X
            L += [I(f's_add_u32 s{t}, s{S_WX}, s{S_RX}'),
                  I(f'buffer_load_dwordx4 v{V_L16}, {WS}, s{t} offen sc1 lds', tok=f'it{n}')]
            if n == IT_X - 1:
                L += [I(f's_add_u32 s{S_WX}, s{S_WX}, {40*1024}'), I(f's_lshl_b32 s{S_RX}, s{S_ROT}, 13'), I(f's_add_u32 s{S_RX}, s{S_RX}, s{S_W1K}')]
            else:
                wrap = (36 if isq else 72) * 1024
                L += [I(f's_add_u32 s{S_RX}, s{S_RX}, 8192'), I(f's_sub_u32 s{t}, s{S_RX}, {wrap}'), I(f's_cselect_b32 s{S_RX}, s{S_RX}, s{t}')]
        elif n < IT_W2:
            t = stmp()
            L += [I(f's_add_u32 s{t}, s{S_RW}, {((n - IT_L1) // 9) * 64 + ((n - IT_L1) % 9) * 64 * 9216}'),
                  I(f'buffer_load_dwordx4 v{V_DMA}, s[{S_W}:{S_W+3}], s{t} offen {cfg.get("wnt", "")} lds', tok=f'it{n}')] + adv(S_RW, (n - IT_L1) % 9 + 1, 576*9216, 64*9216)
        else:
            t = stmp()
            L += [I(f's_add_u32 s{t}, s{S_W2K if n - IT_W2 in (35, 36, 47) else S_W2}, {(n - IT_W2) * 4096}'),
                  I(f'buffer_load_dwordx4 v{V_L16}, {WS}, s{t} offen sc1 lds', tok=f'it{n}')]
        return L
    GPOS = cfg.get('gpos', 8)
    stg = [('x', p) for p in range(18)]
    spos = {e: k for k, e in enumerate(stg)}
    VGA = U(4)[2]
    def sdma(k, h):
        kind, p = stg[k]
        w = [f'sr{k-NR}_0', f'sr{k-NR}_1'] if k >= NR else []
        t = stmp()
        L = [I(f's_add_u32 m0, s{S_XST}, {(k % NR) * 2048 + h * 1024}')]
        if kind == 'x':
            L += [I(f's_add_u32 s{t}, s{S_XN}, {(p >> 1) * 128 + (p & 1) * 18432}')]
            L += [I(f'buffer_load_dwordx4 v{V_XD+h}, {XS}, s{t} offen lds', tok=f's{k}_{h}', waits=w)]
            if (p & 1) and h and p < 17: L += adv(S_XN, (p + 1) // 2, 1152, 0)
        return L
    GL = [[6 * SLOT, 7 * SLOT], [8 * SLOT, MISC]]
    def gdma(p, h):
        t = stmp(); S = S_G0 if p == 0 else S_G1
        return [I(f's_add_u32 m0, s{S_W1K}, {GL[p][h]}'),
                I(f's_add_u32 s{t}, s{S_GP+p}, ' + (('0' if h == 0 else f's{S_GP+2}') if p == 0 else str(h * 4 * 3456))),
                I(f'buffer_load_dwordx4 v{VGA+p}, s[{S}:{S+3}], s{t} offen {cfg.get("gnt", "")} lds', tok=f'sg{p}_{h}')]
    def xread(p, d):
        k = spos[('x', p)]
        return I(f'ds_read_b128 {vr(XF(2*(p>>1)+d, p&1),4)}, v{V_XR+d} offset:{(k % NR) * 2048}', tok=f'sr{k}_{d}', waits=[f's{k}_0', f's{k}_1'])
    if cfg.get('tsp'): P.ext(ts('@karg'))
    P.ext(dma(0))
    for k in range(2):
        P.ext(sdma(k, 0)); P.ext(sdma(k, 1))
    P.ext(dma(1))
    if cfg.get('tsp'): P.ext(ts('@b1'))
    PS = cfg.get('ps', 4)
    NPRE = cfg.get('npre', 4)
    PS0 = cfg.get('ps0', 2)
    for k in range(2, PS0):
        P.ext(sdma(k, 0)); P.ext(sdma(k, 1))
    P(f's_cmp_eq_u32 s2, 0\ns_cselect_b32 s29, 0, s{S_OOB}\nbuffer_store_dword v11, v10, s[{S_OUT}:{S_OUT+3}], s29 offen sc1')
    if cfg.get('dbgstart'):
        P(f's_lshl_b32 s29, s2, 2\ns_add_u32 s29, s29, 4\ns_cmp_lt_u32 s2, 15\ns_cselect_b32 s29, s29, s{S_OOB}\nbuffer_store_dword v11, v10, s[{S_OUT}:{S_OUT+3}], s29 offen sc1')
    VN2 = B + 16; VT3 = B + 17; VRW = B + 18
    P(f"""
    v_and_b32 v8, 3, v{VL}
    v_lshlrev_b32 v{VN2}, 4, v8
    v_cmp_gt_u32 vcc, 2, v8
    v_cndmask_b32 v{VN2}, v{VOOB}, v{VN2}, vcc
    v_mov_b32 v{VT3}, {2*(1152+16)}
    v_cmp_eq_u32 vcc, 1, v8
    v_cndmask_b32 v{VT3}, v{VT3}, 32, vcc
    v_mov_b32 v9, {2*(576+16)}
    v_cmp_eq_u32 vcc, 2, v8
    v_cndmask_b32 v{VT3}, v{VT3}, v9, vcc
    v_cmp_eq_u32 vcc, 3, v8
    v_cndmask_b32 v{VT3}, v{VT3}, v{VOOB}, vcc
    v_bfe_u32 v9, v{VL}, 2, 2
    v_lshl_add_u32 v{VRW}, v{VG}, 3, v9
    """)
    GSO = [S_GP, S_GP + 1]; GST = S_GP + 2
    P(f's_and_b32 s{S_NON}, s2, 3\ns_lshl_b32 s{S_NON}, s{S_NON}, 3\ns_add_u32 s{S_NON}, s{S_NON}, s{S_WAVE}')
    for i in range(2):
        P(f"""
        s_lshr_b32 s24, s2, 2
        s_add_u32 s24, s24, {64*i}
        s_sub_u32 s25, s24, 36
        s_lshr_b32 s26, s25, 2
        s_mul_i32 s26, s26, 110592
        s_and_b32 s25, s25, 3
        s_mul_i32 s27, s{S_NON}, 36
        s_add_u32 s26, s26, s27
        s_mul_i32 s27, s25, 1152
        s_cmp_eq_u32 s25, 3
        s_cselect_b32 s27, 0, s27
        s_cselect_b64 s[{S_G2}:{S_G2+1}], -1, 0
        s_add_u32 s{GSO[i]}, s26, s27
        """)
        if i == 0:
            P(f"""
            s_lshr_b32 s26, s24, 1
            s_mul_i32 s26, s26, 294912
            s_lshl_b32 s27, s{S_NON}, 5
            s_add_u32 s26, s26, s27
            s_add_u32 s26, s26, 8192
            s_bitcmp1_b32 s24, 0
            s_cselect_b32 s{S_G0}, s{S_G0+2}, s{S_G0}
            s_cselect_b32 s{S_G0+1}, s{S_G0+3}, s{S_G0+1}
            s_mov_b32 s28, 1990656
            s_mov_b32 s29, 3456
            s_cmp_lt_u32 s24, 36
            s_cselect_b32 s{S_G0}, s{S_G0}, s{S_G1}
            s_cselect_b32 s{S_G0+1}, s{S_G0+1}, s{S_G1+1}
            s_cselect_b32 s{S_G0+2}, 5308416, s28
            s_mov_b32 s{S_G0+3}, 0x20000
            s_cselect_b32 s{GSO[0]}, s26, s{GSO[0]}
            s_cselect_b32 s{GST}, 9216, s29
            s_cselect_b64 s[{S_G2}:{S_G2+1}], 0, s[{S_G2}:{S_G2+1}]
            s_cselect_b32 s30, 0, 4
            s_mov_b32 s27, s{GST}
            s_lshl_b32 s{GST}, s{GST}, 2
            """)
        else:
            P('s_mov_b32 s27, 3456\ns_mov_b32 s30, 4')
        P(f"""
        s_and_b32 s{S_GP+3+i}, s{S_G2}, 1
        s_add_u32 s{S_GP+3+i}, s{S_GP+3+i}, 3
        v_cndmask_b32 v8, v{VN2}, v{VT3}, s[{S_G2}:{S_G2+1}]
        v_mul_lo_u32 v11, v{VRW}, s27
        v_add_u32 v{VGA+i}, v8, v11
        s_mul_i32 s26, s{S_NON}, 112
        s_add_u32 s26, s26, s24
        s_add_u32 s26, s26, s30
        s_lshl_b32 s26, s26, 10
        s_add_u32 s26, s26, {WX_OFF}
        s_cmp_lt_u32 s24, 108
        s_cselect_b32 s{S_WXD+i}, s26, s{S_OOB}
        """)
        if i: P(f's_cselect_b32 s{S_G1+2}, 1990656, 0\ns_mov_b32 s{S_G1+3}, 0x20000')
    ONES = U(4)[0]; CSA = U(4)[1]
    P(f"""
    s_mov_b32 s{S_WS+2}, {WS_SIZE}
    s_mov_b32 s{S_WS+3}, 0x20000
    s_lshl_b32 s{S_PT}, s31, 7
    v_lshrrev_b32 v8, 5, v{VL}
    v_lshlrev_b32 v8, 11, v8
    v_bfe_u32 v11, v{VL}, 2, 3
    v_lshl_add_u32 v8, v11, 7, v8
    v_bfe_u32 v11, v{VL}, 3, 2
    v_lshl_add_u32 v8, v11, 5, v8
    v_and_b32 v11, 3, v{VL}
    v_lshl_add_u32 v{V_TR}, v11, 3, v8
    v_xor_b32 v{V_TR+1}, 32, v{V_TR}
    v_xor_b32 v{V_TR+2}, 64, v{V_TR}
    v_xor_b32 v{V_TR+3}, 96, v{V_TR}
    s_and_b32 s24, s{S_WAVE}, 3
    s_lshl_b32 s24, s24, 5
    s_and_b32 s25, s{S_W1K}, 0x1000
    s_or_b32 s24, s24, s25
    v_xor_b32 v{V_LB}, s24, v{V_TR}
    v_and_b32 v9, 15, v{VL}
    v_lshrrev_b32 v11, 1, v9
    v_xor_b32 v11, v11, v{VG}
    v_lshlrev_b32 v11, 4, v11
    v_lshl_add_u32 v11, v9, 7, v11
    v_add_u32 v{V_XR}, s{S_XST}, v11
    v_xor_b32 v{V_XR+1}, 64, v{V_XR}
    """)
    for r in range(4): P(f'v_mov_b32 v{ONES+r}, 0x3f803f80')
    sqa = [f's_lshl_b32 s73, s{S_RB}, 4', f's_lshl_b32 s74, s{S_WAVE}, 1', 's_add_u32 s73, s73, s74', f's_mul_i32 s{S_A2}, s73, {A2_MT}',
           f's_mul_i32 s74, s{S_J}, 5120', f's_add_u32 s{S_A2}, s{S_A2}, s74', f's_add_u32 s{S_A2}, s{S_A2}, {A2_OFF}']
    sq_txt = []
    SQ = sq_txt.append
    C = 72; TA = S_G2; TB_ = S_G2 + 1; S_E8P = S_W256
    SQ(f"""
            s_lshr_b32 s73, s2, 2
            s_lshl_b32 s73, s73, 1
            s_lshr_b32 s74, s{S_WAVE}, 2
            s_add_u32 s73, s73, s74
            s_mul_i32 s74, s73, 21846
            s_lshr_b32 s74, s74, 16
            s_mul_i32 s75, s74, 3
            s_sub_u32 s75, s73, s75
            s_mul_i32 s76, s74, 13108
            s_lshr_b32 s76, s76, 16
            s_mul_i32 s77, s76, 5
            s_sub_u32 s77, s74, s77
            s_and_b32 s78, s2, 3
            s_lshl_b32 s78, s78, 3
            s_add_u32 s78, s78, s76
            s_and_b32 s79, s{S_WAVE}, 3
            s_cmp_eq_u32 s76, 3
            s_cselect_b32 s73, 31, 0
            s_cmp_eq_u32 s76, 2
            s_cselect_b32 s{TA}, 1, 32
            s_cmp_lt_u32 s77, 2
            s_cselect_b32 s73, s73, s{TA}
            s_add_u32 s73, s73, s78
            s_lshl_b32 s73, s73, 6
            s_and_b32 s{TA}, s77, 1
            s_lshl_b32 s{TA}, s{TA}, 5
            s_add_u32 s73, s73, s{TA}
            s_lshl_b32 s{TA}, s79, 3
            s_add_u32 s73, s73, s{TA}
            s_lshl_b32 s{TB_}, s78, 4
            s_add_u32 s{TB_}, s{TB_}, 4096
            s_add_u32 s{TB_}, s{TB_}, s{TA}
            s_mul_i32 s{C}, s78, 18
            s_add_u32 s{C}, s{C}, s{TA}
            s_sub_u32 s{C}, s{C}, 16
            s_cmp_lt_u32 s79, 2
            s_cselect_b32 s{TB_}, s{TB_}, s{C}
            s_cselect_b32 s{C}, 0, 1
            s_cmp_eq_u32 s77, 4
            s_cselect_b32 s73, s{TB_}, s73
            s_cselect_b32 s{C}, s{C}, 0
            s_and_b32 s{TB_}, s2, 3
            s_lshl_b32 s{TB_}, s{TB_}, 1
            s_add_u32 s{TB_}, s{TB_}, s79
            s_mul_i32 s{TB_}, s{TB_}, 72
            s_add_u32 s{TB_}, s{TB_}, 16
            s_cmp_ge_u32 s74, 40
            s_cselect_b32 s73, s{TB_}, s73
            s_cselect_b32 s{C}, 1, s{C}
            s_cselect_b32 s{S_LEFT}, 18432, 0
            s_cselect_b32 s{TB_}, s79, 0
            s_mul_i32 s73, s73, 1152
            s_mul_i32 s78, s75, 384
            s_add_u32 s{S_RSRC}, s73, s78
            s_mov_b32 s73, 663552
            s_cmp_eq_u32 s{C}, 1
            s_cselect_b32 s{S_R}, s{S_WO}, s{S_WD}
            s_cselect_b32 s{S_R+1}, s{S_WO+1}, s{S_WD+1}
            s_cselect_b32 s{S_R+2}, s73, 5308416
            s_cmp_ge_u32 s{TB_}, 2
            s_cselect_b32 s{S_R+2}, 0, s{S_R+2}
        s_mov_b32 s{S_R+3}, 0x20000

            s_sub_u32 s73, 7, s77
            s_cmp_lt_u32 s77, 3
            s_cselect_b32 s73, s77, s73
            s_lshl_b32 s73, s73, 2
            s_and_b32 s77, s76, 3
            s_add_u32 s73, s73, s77
            s_lshr_b32 s76, s76, 2
            s_cmp_ge_u32 s74, 40
            s_cselect_b32 s73, 20, s73
            s_cselect_b32 s76, 0, s76
            s_mul_i32 s75, s75, 12
            s_add_u32 s75, s75, s79
        """)
    for i in range(3):
        SQ(f"""
            s_add_u32 s77, s75, {4*i}
            s_mul_i32 s78, s77, 7282
            s_lshr_b32 s78, s78, 16
            s_mul_i32 s79, s78, 9
            s_sub_u32 s79, s77, s79
            s_lshr_b32 s77, s79, 1
            s_sub_u32 s77, s77, s2
            s_and_b32 s77, s77, 3
            s_lshl_b32 s77, s77, 1
            s_and_b32 s{TA}, s79, 1
            s_add_u32 s77, s77, s{TA}
            s_cmp_eq_u32 s79, 8
            s_cselect_b32 s77, 8, s77
            s_mul_i32 s79, s73, 7
            s_add_u32 s79, s79, s77
            s_sub_u32 s79, s79, 2
            s_cmp_eq_u32 s73, 20
            s_cselect_b32 s{TA}, 1, 20
            s_cselect_b32 s{TB_}, 20, 0
            s_mul_i32 s{TA}, s{TA}, s77
            s_add_u32 s{TA}, s{TA}, s73
            s_add_u32 s{TA}, s{TA}, s{TB_}
            s_add_u32 s{TA}, s{TA}, 148
            s_cmp_ge_u32 s77, 2
            s_cselect_b32 s79, s79, s{TA}
            s_and_b32 s{TA}, s2, 3
            s_lshl_b32 s{TA}, s{TA}, 2
            s_add_u32 s{TA}, s{TA}, s78
            s_lshl_b32 s{TA}, s{TA}, 1
            s_add_u32 s{TA}, s{TA}, s76
            s_mul_i32 s{TA}, s{TA}, 192
            s_add_u32 s{TA}, s{TA}, s79
            s_lshl_b32 s{TA}, s{TA}, 10
            s_add_u32 s{TA}, s{TA}, {W2_OFF}
            s_cmp_lt_u32 s74, 41
            s_cselect_b32 s{S_RDST+i}, s{TA}, s{S_OOB}
            """)
    SQ(f's_mov_b32 s{S_G2}, 0\ns_mov_b32 s{S_G2+1}, 0x0000ffff')
    SQ(f"""
            s_mul_i32 s{S_WX}, s{S_J}, {WX_J}
            s_add_u32 s{S_WX}, s{S_WX}, {WX_OFF}
            s_lshr_b32 s73, s{S_J}, 3
            s_lshl_b32 s73, s73, 13
            s_add_u32 s73, s73, {F2_OFF}
            s_add_u32 s{S_F2P}, s73, s{S_W1K}
            s_and_b32 s73, s2, 3
            s_lshl_b32 s73, s73, 6
            s_lshr_b32 s74, s2, 2
            s_add_u32 s74, s74, s73
            s_lshl_b32 s74, s74, 7
            s_add_u32 s74, s74, {F2_OFF}
            s_lshl_b32 s75, s2, 7
            s_add_u32 s75, s75, {F3_OFF}
            s_cmp_eq_u32 s{S_WAVE}, 0
            s_cselect_b32 s{S_F2S}, s74, s{S_OOB}
            s_cselect_b32 s{S_F3S}, s75, s{S_OOB}
            s_lshl_b32 s73, s2, 3
            s_add_u32 s73, s73, s{S_WAVE}
            s_mul_i32 s73, s73, 3072
            s_add_u32 s{S_EX}, s73, {EX_OFF}
            s_lshr_b32 s73, s2, 2
            s_lshl_b32 s73, s73, 3
            s_add_u32 s73, s73, s{S_WAVE}
            s_lshl_b32 s73, s73, 11
            s_add_u32 s73, s73, {EX8_OFF}
            s_xor_b32 s74, s2, s{S_WAVE}
            s_and_b32 s74, s74, 3
            s_cmp_eq_u32 s74, 0
            s_cselect_b32 s{S_E8R}, s73, s{S_OOB}
            s_lshl_b32 s73, s{S_RB}, 4
            s_lshl_b32 s74, s{S_WAVE}, 1
            s_add_u32 s73, s73, s74
            s_lshl_b32 s{S_A2L}, s73, 11
            s_lshl_b32 s74, s{S_J}, 7
            s_add_u32 s{S_A2L}, s{S_A2L}, s74
            s_add_u32 s{S_A2L}, s{S_A2L}, {A2L_OFF}
            s_lshl_b32 s{S_W256}, s{S_WAVE}, 8
            s_lshl_b32 s73, s{S_J}, 3
            s_add_u32 s74, s73, s{S_RB}
            s_mul_i32 s74, s74, 1536
            s_lshl_b32 s75, s{S_WAVE}, 8
            s_add_u32 s75, s75, {KVP_OFF}
            s_add_u32 s74, s74, s75
            s_mul_i32 s73, s73, 1536
            s_add_u32 s73, s73, s75
            s_cmp_lt_u32 s{S_WAVE}, 6
            s_cselect_b32 s{S_KVST}, s74, s{S_OOB}
            s_cselect_b32 s{S_KVLD}, s73, s{S_OOB}
            s_add_u32 s73, s{S_W256}, {SCR}
            s_add_u32 s74, s{S_W256}, {MISC - 1024}
            s_cmp_lt_u32 s{S_WAVE}, 4
            s_cselect_b32 s{S_RED}, s73, s74
            s_lshl_b32 s73, s{S_RB}, 2
            s_lshr_b32 s74, s{S_J}, 3
            s_add_u32 s73, s73, s74
            s_lshl_b32 s73, s73, 13
            s_add_u32 s73, s73, {FL_OFF}
            s_add_u32 s{S_FL}, s73, s{S_W1K}
            s_and_b32 s74, s{S_J}, 7
            s_lshl_b32 s74, s74, 7
            s_add_u32 s{S_FL}, s{S_FL}, s74
            s_and_b32 s73, s2, 4
            s_lshr_b32 s74, s2, 6
            s_add_u32 s73, s73, s74
            s_lshl_b32 s73, s73, 2
            s_and_b32 s74, s2, 3
            s_add_u32 s73, s73, s74
            s_lshl_b32 s73, s73, 13
            s_add_u32 s73, s73, {FL_OFF}
            s_and_b32 s74, s2, 32
            s_lshl_b32 s74, s74, 7
            s_add_u32 s73, s73, s74
            s_and_b32 s74, s{S_WAVE}, 3
            s_lshl_b32 s74, s74, 10
            s_add_u32 s{S_FH}, s73, s74
            s_and_b32 s73, s{S_WAVE}, 1
            s_lshl_b32 s73, s73, 5
            s_and_b32 s74, s{S_WAVE}, 2
            s_lshl_b32 s74, s74, 11
            s_or_b32 s73, s73, s74
            s_and_b32 s74, s{S_WAVE}, 4
            s_lshl_b32 s74, s74, 9
            s_or_b32 s{S_MW}, s73, s74
            s_mul_i32 s73, s{S_WAVE}, 86
            s_lshr_b32 s73, s73, 8
            s_mul_i32 s74, s73, 3
            s_sub_u32 s74, s{S_WAVE}, s74
            s_lshl_b32 s74, s74, 9
            s_lshl_b32 s73, s73, 2
            s_and_b32 s75, s2, 3
            s_add_u32 s73, s73, s75
            s_lshr_b32 s75, s2, 2
            s_lshl_b32 s75, s75, 3
            s_add_u32 s73, s73, s75
            s_lshl_b32 s73, s73, 11
            s_add_u32 s73, s73, s74
            s_add_u32 s73, s73, {EX8_OFF}
            s_cmp_lt_u32 s{S_WAVE}, 6
            s_cselect_b32 s{S_E8P}, s73, s{S_OOB}
            s_mov_b32 s{S_L2E}, {f2u(1.4426950408889634):#x}
            s_mov_b32 s{S_EPS}, {f2u(1e-6):#x}
            s_mov_b32 s{S_M4}, 0x00040004
            s_mov_b32 s{S_M4+1}, 0x00040004
        """)
    P.ext(ts('setup' if not cfg.get('tsp') else '@setup'))
    GP = cfg.get('gpro', -1)
    for k in range(1, max(PS, NPRE) + 1):
        if k == GP:
            for g_ in range(4): P.ext(gdma(g_ >> 1, g_ & 1))
        if 2 <= k < NPRE: P.ext(dma(k))
        if PS0 <= k + 1 < PS:
            P.ext(sdma(k + 1, 0)); P.ext(sdma(k + 1, 1))
    P.ext(ts('issued' if not cfg.get('tsp') else '@issued'))
    for p in range(2):
        P.ext([xread(p, 0), xread(p, 1)])
    if cfg.get('tsp'): P.ext(ts('@x01'))

    base = {r: 0 for r in (V_TR, V_TR+1, V_TR+2, V_TR+3, V_LB)}
    def lds_addr(reg, addr, span):
        fx = []
        if not (0 <= addr - base[reg] and addr + span - base[reg] <= 65535):
            nb = min((addr // SLOT) * SLOT, LDS_BYTES - 65536)
            fx.append(I(f'v_add_u32 v{reg}, {(nb - base[reg]) & 0xffffffff:#x}, v{reg}'))
            base[reg] = nb
        return fx, addr - base[reg]
    xq = [V_XF + 4 * k for k in range(36)]
    acc1 = U(0) + U(2) + U(3) + [xq[34], xq[35]]
    def ACC2(lt, mt):
        if lt >= 2: return acc1[(lt - 2) * 2 + mt]
        return acc1[(lt * 2 + mt) * 2 + 1]
    aq = xq[:34] + U(1) + U(4)[:2]
    def AF(sp, mt): return aq[sp * 2 + mt]
    V_AL = U(4)[2]; VSP = U(4)[3]
    V_L8 = V_TH
    T0 = [ACC(0, 0, 0), ACC(0, 0, 1)]; T1 = [ACC(0, 1, 0), ACC(0, 1, 1)]
    T2 = [ACC(1, 0, 0), ACC(1, 0, 1)]; T3 = [ACC(1, 1, 0), ACC(1, 1, 1)]

    frags = []; steps = []
    def add_step(nm, fl):
        for f in fl:
            f['step'] = len(steps); frags.append(f)
        steps.append(nm)
    def Lf(line, ks, tiles):
        fl = []
        for (T, u) in tiles:
            for mat in range(2):
                mf_ = [(ACC(u, mat, mt), XF(ks, mt), False, ks == 0) for mt in range(2)]
                if line == 0: fl.append(dict(item=IT_L0 + ks, kind='tr', reg=V_TR + T, off=mat * 4096, mf=mf_))
                else: fl.append(dict(item=IT_L1 + (T >> 1) * 9 + (ks >> 1), kind='tr', reg=V_TH + (T & 1), off=mat * 4096 + (ks & 1) * 2048, mode='h', mf=mf_))
        return fl
    def Cf(item, acc, ones, first, mode):
        return [dict(item=item, kind='tr', reg=V_LB, off=0, mode=mode, mf=[(acc, ones, True, first)])]
    def Kf(u, nt, off, swap=False, zero=False):
        return [dict(item=None, kind='k', mode='k', off=off, mf=[(ACC(u, nt, mt), BN[mt], swap, zero) for mt in range(2)])]
    def Ku(u, kb0, kb1, o, zero=False): return Kf(u, 0, kb0 * 1024 + o, False, zero) + Kf(u, 1, kb1 * 1024 + o, False, zero)
    K1 = cfg.get('k1', 15); K3 = cfg.get('k3', 8); K4 = cfg.get('k4', 8)
    for ks in range(K1): add_step(('S1', ks), Cf(ks, CSA, ONES, ks == 0, 'c0') + Lf(0, ks, [(0, 0), (1, 1), (2, 2), (3, 3)]))
    for u in range(4):
        for ks in range(K1, 18):
            fl = Lf(0, ks, [(u, u)])
            if u == 0 and ks == K1:
                cl = [f for k2 in range(K1, 18) for f in Cf(k2, CSA, ONES, False, 'c0')]
                fl = cl[:1] + fl[:1] + cl[1:2] + fl[1:] + cl[2:]
            if u == 1 and ks == K1 + 1: fl += Ku(0, 0, 4, 768)
            if u >= 1 and ks == 17: fl += Ku(u, u, 4 + u, 768)
            add_step((f'S1{"abcd"[u]}', ks), fl)
    for ks in range(18):
        add_step(('S2', ks), [dict(item=IT_Q + ((2*ks+mat) >> 3), kind='b', mode='b', off=((2*ks+mat) & 7) * 1024,
                                   mf=[(ACC(4, mat, mt), XF(ks, mt), False, ks == 0) for mt in range(2)]) for mat in range(2)])
    for ks in range(18):
        add_step(('S3', ks), [dict(item=IT_X + ((4*ks+T) >> 3), kind='b', mode='b', off=((4*ks+T) & 7) * 1024,
                                   mf=[(ACC(T >> 1, T & 1, mt), XF(ks, mt), T != 0, ks == 0) for mt in range(2)]) for T in range(4)]
                 + (Ku(4, 0, 1, 0) if ks == 0 else [])
                 + ([f for T in range(4) for f in Kf(T >> 1, T & 1, (2 + T) * 1024, T != 0)] if ks == 17 else []))
    def csched(K):
        m = {ks: ks >> 1 for ks in range(1, K, 2)}; n = len(m); ks = K
        while n < 9: m[ks] = n; n += 1; ks += 1
        return m, ks
    cma, CA_END = csched(K3); cmb_, CB_END = csched(K4)
    ca = lambda ks: Cf(IT_L1 + cma[ks], CSA, ONES, ks == 1, 'ch') if ks in cma else []
    cb = lambda ks: Cf(IT_L1 + 9 + cmb_[ks], T1[1], T1[0], ks == 1, 'ch') if ks in cmb_ else []
    for ks in range(K3): add_step(('S4', ks), Lf(1, ks, [(0, 2), (1, 3)]) + ca(ks))
    for ks in range(K3, 18): add_step(('S4a', ks), ca(ks) + Lf(1, ks, [(0, 2)]))
    for ks in range(K3, 18): add_step(('S4b', ks), Lf(1, ks, [(1, 3)]) + (Ku(2, 0, 2, 768) + Ku(3, 1, 3, 768) if ks == K3 + 1 else []))
    for ks in range(K4): add_step(('S4c', ks), cb(ks) + Lf(1, ks, [(2, 4), (3, 1)]))
    for ks in range(K4, 18): add_step(('S4d', ks), cb(ks) + Lf(1, ks, [(2, 4)]))
    for ks in range(K4, 18): add_step(('S4e', ks), Lf(1, ks, [(3, 1)]) + (Ku(4, 4, 6, 768) + Ku(1, 5, 7, 768) if ks == K4 + 1 else []))
    def P2f(sp, lts, blk0):
        fl = []
        for k, lt in enumerate(lts):
            blk = blk0 + k
            mf_ = [(ACC2(lt, mt), AF(sp, mt), False, sp == 0) for mt in range(2)] if sp < 20 else [(ACC2(lt, 0), V_AL, False, False)]
            fl.append(dict(item=IT_W2 + (blk >> 2), kind='b', mode='b2', off=(blk & 3) * 1024, mf=mf_))
        return fl
    for sp in range(21): add_step(('P1', sp), P2f(sp, range(2, 9), sp * 7))
    for lt in range(2):
        for sp in range(21): add_step(('P2' + 'ab'[lt], sp), P2f(sp, [lt], 148 + lt * 20 + sp if sp < 20 else 188 + lt))
    NF = len(frags)
    SO = {s: i for i, s in enumerate(steps)}
    first_frag = {}
    for i, f in enumerate(frags): first_frag.setdefault(f['step'], i)
    events = {}; pending = {}
    st.lbmode = 'c0'; st.hinit = False
    def reads(i):
        f = frags[i]; w = V_WF + (i % 4) * 4
        slot = slot_of(f['item']) * SLOT if f['item'] is not None else MISC
        pre = []
        mode = f.get('mode')
        if mode == 'h' and not st.hinit:
            assert 'trh' in events
            st.hinit = True; base[V_TH] = 0; base[V_TH + 1] = 0
        if mode in ('b', 'b2', 'ch', 'k') and st.lbmode != mode:
            st.lbmode = mode
            if mode == 'b':
                pre = [I(f'v_mov_b32 v{V_LB}, v{V_L16}')]; base[V_LB] = 0
            elif mode == 'k':
                pre = [I(f'v_bfe_u32 v{V_LB}, v{V_L16}, 1, 8')]; base[V_LB] = 0
            elif mode == 'b2':
                pre = [I(f's_and_b32 s{S_RX}, s{S_W1K}, 0x1000'), I(f'v_or_b32 v{V_LB}, s{S_RX}, v{V_L16}')]; base[V_LB] = 0
            else:
                pre = [I(f'v_xor_b32 v{V_LB}, s{S_MW}, v{V_TH}')]; base[V_LB] = base[V_TH]
        if f['kind'] == 'tr':
            fx, off = lds_addr(f['reg'], slot + f['off'], 2048)
            return (pre + fx + [I(f'ds_read_b64_tr_b16 {vr(w, 2)}, v{f["reg"]} offset:{off}', tok=f'rd{i}a')],
                    [I(f'ds_read_b64_tr_b16 {vr(w + 2, 2)}, v{f["reg"]} offset:{off + 1024}', tok=f'rd{i}b')])
        fx, off = lds_addr(V_LB, slot + f['off'], 1024)
        if f['kind'] == 'k':
            return (pre + fx + [I(f'ds_read_b64 {vr(w, 2)}, v{V_LB} offset:{off}', tok=f'rd{i}a')], [])
        return (pre + fx + [I(f'ds_read_b128 {vr(w, 4)}, v{V_LB} offset:{off}', tok=f'rd{i}a')], [])
    def rtoks(i):
        return [f'rd{i}a', f'rd{i}b'] if frags[i]['kind'] == 'tr' else [f'rd{i}a']
    def mfmas(i):
        w = V_WF + (i % 4) * 4; L = []
        for (d, x, swap, zero) in frags[i]['mf']:
            a, b = (x, w) if swap else (w, x)
            if frags[i]['kind'] == 'k': L.append(I(f'v_mfma_f32_16x16x16_bf16 {vr(d,4)}, {vr(a,2)}, {vr(b,2)}, {"0" if zero else vr(d,4)}'))
            else: L.append(I(f'v_mfma_f32_16x16x32_bf16 {vr(d,4)}, {vr(a,4)}, {vr(b,4)}, {"0" if zero else vr(d,4)}'))
        return L
    def mf(d, a, b): return I(f'v_mfma_f32_16x16x32_bf16 {vr(d,4)}, {vr(a,4)}, {vr(b,4)}, 0')

    HST = cfg.get('hst', 'sc1')
    t4 = [V_T + r for r in range(4)]
    q2, q3 = U(4)[2], U(4)[3]
    def gelu_quad(g, u, dst, mt):
        t = t4; L = []
        for r in range(4): L.append(I(f'v_mul_f32 v{t[r]}, v{g+r}, v{g+r}'))
        for r in range(4): L.append(I(f'v_fma_f32 v{t[r]}, v{t[r]}, v{C1[mt]}, v{C0[mt]}'))
        for r in range(4): L.append(I(f'v_mul_f32 v{t[r]}, v{g+r}, v{t[r]}'))
        for r in range(4): L.append(I(f'v_exp_f32 v{t[r]}, v{t[r]}'))
        for r in range(4): L.append(I(f'v_mul_f32 v{u+r}, v{g+r}, v{u+r}'))
        for r in range(4): L.append(I(f'v_add_f32 v{t[r]}, 1.0, v{t[r]}'))
        for r in range(4): L.append(I(f'v_rcp_f32 v{t[r]}, v{t[r]}'))
        for r in range(4): L.append(I(f'v_mul_f32 v{u+r}, v{u+r}, v{t[r]}'))
        L.append(I(f'v_cvt_pk_bf16_f32 v{dst}, v{u}, v{u+1}'))
        L.append(I(f'v_cvt_pk_bf16_f32 v{dst+1}, v{u+2}, v{u+3}'))
        return L
    def hstore(reg, n, mt, t, extra=0, va=None):
        s = ftmp(); off = t * 1024 + extra
        op = 'buffer_store_dwordx4' if n == 4 else 'buffer_store_dwordx2'
        return [I(f's_add_u32 s{s}, s{S_A2 if not cfg.get("fakeH") else S_OOB}, {mt * A2_MT + (off & ~4095)}'),
                I(f'{op} {vr(reg, n)}, v{V_L16 if n == 4 else va}, {WS}, s{s} offen offset:{off & 4095} {HST}', tok=f'h{t}_{mt}_{extra}')]
    def E_first(u):
        L = []
        for mt in range(2): L += gelu_quad(ACC(u, 0, mt), ACC(u, 1, mt), ACC(u, 0, mt), mt)
        return L
    def E_second(u0, u1, t):
        L = []
        for mt in range(2):
            L += gelu_quad(ACC(u1, 0, mt), ACC(u1, 1, mt), ACC(u0, 0, mt) + 2, mt)
            if t == 3: L += [I(f'v_min_u32 v{ACC(u0, 0, mt) + r}, -2, v{ACC(u0, 0, mt) + r}') for r in range(4)]
            L += hstore(ACC(u0, 0, mt), 4, mt, t)
        return L
    def E_quarter(u):
        L = []
        for mt in range(2):
            L += gelu_quad(ACC(u, 0, mt), ACC(u, 1, mt), ACC(u, 0, 0) + 2 * mt, mt)
        a = ACC(u, 1, 0)
        L += [I(f's_add_u32 s{S_CNT}, s{S_W1K}, {slot_of(IT_PK) * SLOT}'), I(f'v_add_u32 v{a}, s{S_CNT}, v{V_L16}'),
              I(f'ds_write_b128 v{a}, {vr(ACC(u, 0, 0), 4)}')]
        return L
    def cswrite(c, e, t):
        L = [I(f'v_cvt_pk_bf16_f32 v{t}, v{c}, v{c}'), I(f'v_and_b32 v{t}, 0xffff0000, v{t}'), I(f'v_sub_f32 v{t}, v{c}, v{t}'),
             I(f'v_cvt_pk_bf16_f32 v{t}, v{c}, v{t}'), I(f'v_mov_b32 v{t+1}, 0')]
        if e < 2:
            L += [I(f'v_bfe_u32 v{t+2}, v{V_L16}, 1, 8'), I(f's_add_u32 s72, s{S_W1K}, {MISC + (768 if e == 0 else 0)}')]
            if e == 0: L += [I(f'v_bfe_i32 v{t+3}, v{V_L16}, 8, 1'), I(f'v_bfi_b32 v{t}, v{t+3}, 0, v{t}')]
        else:
            L += [I(f'v_bfe_u32 v{t+2}, v{V_L16}, 1, 7'), I(f's_and_b32 s72, s{S_W1K}, 0xc00'), I(f's_lshr_b32 s83, s{S_W1K}, 12'),
                  I('s_lshl_b32 s83, s83, 7'), I(f's_add_u32 s72, s72, s83'), I(f's_add_u32 s72, s72, {MISC + 768 + (e - 2) * 4096}')]
        L += [I(f'v_add_u32 v{t+2}, s72, v{t+2}'), I(f'ds_write_b64 v{t+2}, {vr(t,2)}', tok=f'cs{e}')]
        return L
    def phi_quad(q):
        t = t4; L = []
        for r in range(4): L.append(I(f'v_mul_f32 v{t[r]}, s{S_L2E}, v{q+r}'))
        for r in range(4): L.append(I(f'v_exp_f32 v{t[r]}, v{t[r]} clamp'))
        for r in range(4): L.append(I(f'v_max_f32 v{q+r}, s{S_EPS}, v{q+r}'))
        for r in range(4): L.append(I(f'v_add_f32 v{q+r}, v{q+r}, v{t[r]}'))
        return L
    def pack2(dst, q0, q1):
        return [I(f'v_cvt_pk_bf16_f32 v{dst}, v{q0}, v{q0+1}'), I(f'v_cvt_pk_bf16_f32 v{dst+1}, v{q0+2}, v{q0+3}'),
                I(f'v_cvt_pk_bf16_f32 v{dst+2}, v{q1}, v{q1+1}'), I(f'v_cvt_pk_bf16_f32 v{dst+3}, v{q1+2}, v{q1+3}')]
    def sgroups(txt):
        L = []
        lines = [l.strip() for l in txt.strip().split('\n') if l.strip()]
        k = 0
        while k < len(lines):
            if lines[k].startswith('s_cmp') or lines[k].startswith('s_bitcmp'):
                g = [I(lines[k])]; k += 1
                while k < len(lines) and lines[k].startswith('s_cselect'): g.append(I(lines[k])); k += 1
                L.append(g)
            else:
                L.append(I(lines[k])); k += 1
        return L
    def setflag(sreg, add, toks, VA, VB):
        t = ftmp()
        return [I(f'v_lshlrev_b32 v{VA}, 21, v{V_L16}'), I(f'v_and_b32 v{VA}, s{S_OOB}, v{VA}'),
                I(f'v_lshrrev_b32 v{VB}, 2, v{V_L16}'), I(f'v_or_b32 v{VA}, v{VA}, v{VB}'), I(f'v_mov_b32 v{VB}, s{S_NON}'),
                I(f's_add_u32 s{t}, s{sreg}, {add}'),
                I(f'buffer_store_dword v{VB}, v{VA}, {WS}, s{t} offen sc1', waits=toks)]
    def poll(spt, bits, ev, w0, bar, between, VA, VB, S_PT=S_PT):
        addr = [I(f'v_lshrrev_b32 v{VA}, {10 - bits}, v{V_L16}'), I(f'v_lshlrev_b32 v{VA}, 7, v{VA}')]
        loads = lambda: [I(f'buffer_load_dword v{VB}, v{VA}, {WS}, s{S_PT} offen sc1')]
        check = lambda: [I(f'v_cmp_ne_u32 vcc, s{S_NON}, v{VB}')]
        return addr + spt + loads() + between + retry_group(loads, check, w0) + [Ev(ev, bar)]
    def pollh(k, ev, between, VA, VB):
        return poll([I(f's_add_u32 s{S_PT}, s{S_FH}, {k*HS}')], 3, ev, False, False, between, VA, VB)
    def F_nonce(between):
        X0 = XF(17, 0); a = XF(16, 1); n_ = a + 1; q3 = XF(16, 0)
        loads = lambda: [I(f'buffer_load_dword v{n_}, off, s[{S_OUT}:{S_OUT+3}], 0 sc1')]
        check = lambda: [I(f'v_cmp_eq_u32 vcc, 0, v{n_}')]
        adr = lambda: [I(f'v_cmp_gt_u32 vcc, 0x80, v{V_L16}'), I(f'v_mov_b32 v{a}, s{S_OOB}'), Delay(1), I(f'v_cndmask_b32 v{a}, v{a}, v{V_L16}, vcc')]
        L = [I(f'buffer_load_dwordx4 {vr(X0,4)}, v{V_L16}, {XS}, s{S_RS} offen'),
             I(f'v_lshlrev_b32 v{a}, 21, v{V_L16}'), I(f'v_and_b32 v{a}, s{S_OOB}, v{a}'), I(f'v_lshrrev_b32 v{a+2}, 2, v{V_L16}'), I(f'v_or_b32 v{a}, v{a}, v{a+2}'),
             I(f'buffer_load_dword v{X0+4}, v{a}, {XS}, s{S_RS} offen offset:1024')] + loads() + adr()
        L += between + retry_group(loads, check) + [I(f'v_readfirstlane_b32 s{S_NON}, v{n_}'), Ev('non')] + [
              I(f's_mov_b32 s{S_OUT}, s{S_OP}'), I(f's_mov_b32 s{S_OUT+1}, s{S_OP+1}'), I(f's_mov_b32 s{S_OUT+2}, 2359296')]
        S_, Q_, t0, t1 = q3, q3 + 2, a + 2, a + 3
        for r in range(5):
            L += [I(f'v_lshlrev_b32 v{t0}, 16, v{X0+r}'), I(f'v_and_b32 v{t1}, 0xffff0000, v{X0+r}')]
            if r == 0: L += [I(f'v_add_f32 v{S_}, v{t0}, v{t1}'), I(f'v_mul_f32 v{Q_}, v{t0}, v{t0}'), I(f'v_fmac_f32 v{Q_}, v{t1}, v{t1}')]
            else: L += [I(f'v_add_f32 v{S_}, v{S_}, v{t0}'), I(f'v_fmac_f32 v{Q_}, v{t0}, v{t0}'), I(f'v_add_f32 v{S_}, v{S_}, v{t1}'), I(f'v_fmac_f32 v{Q_}, v{t1}, v{t1}')]
        L += [Ev('rowdone'), Delay(1)]
        for m_ in ['row_shr:1 row_mask:0xf bank_mask:0xf bound_ctrl:0', 'row_shr:2 row_mask:0xf bank_mask:0xf bound_ctrl:0',
                   'row_shr:4 row_mask:0xf bank_mask:0xf bound_ctrl:0', 'row_shr:8 row_mask:0xf bank_mask:0xf bound_ctrl:0',
                   'row_bcast:15 row_mask:0xa bank_mask:0xf', 'row_bcast:31 row_mask:0xc bank_mask:0xf']:
            L += [I(f'v_add_f32_dpp v{k}, v{k}, v{k} {m_}') for k in (S_, Q_)]
        L += IL(f"""
        v_readlane_b32 s30, v{S_}, 63
        v_readlane_b32 s31, v{Q_}, 63
        v_mov_b32 v{t0}, {f2u(1.0/576.0):#x}
        v_mov_b32 v{q3+1}, v{n_}
        v_mul_f32 v{S_}, s30, v{t0}
        v_mul_f32 v{Q_}, s31, v{t0}
        v_fma_f32 v{Q_}, -v{S_}, v{S_}, v{Q_}
        v_max_f32 v{Q_}, 0, v{Q_}
        v_cvt_pk_bf16_f32 v{t0}, -v{S_}, v{Q_}
        v_lshlrev_b32 v{S_}, 16, v{t0}
        v_and_b32 v{Q_}, 0xffff0000, v{t0}
        v_add_f32 v{Q_}, {f2u(1e-5):#x}, v{Q_}
        v_cvt_pk_bf16_f32 v{Q_}, v{Q_}, v{Q_}
        v_and_b32 v{Q_}, 0xffff0000, v{Q_}
        v_sqrt_f32 v{Q_}, v{Q_}
        v_cvt_pk_bf16_f32 v{Q_}, v{Q_}, v{Q_}
        v_and_b32 v{Q_}, 0xffff0000, v{Q_}
        v_rcp_f32 v{Q_}, v{Q_}
        v_mov_b32 v{q3+3}, v{n_}
        buffer_store_dwordx4 {vr(q3,4)}, v{a}, {WS}, s{S_PT} offen sc1
        """)
        return L + [Ev('nonce')]
    def F_setup2():
        C = 71
        L = sgroups(f"""
            s_lshr_b32 s74, s2, 3
            s_and_b32 s73, s74, 3
            s_lshr_b32 s74, s74, 2
            s_and_b32 s75, s2, 4
            s_lshl_b32 s75, s75, 1
            s_add_u32 s74, s74, s75
            s_and_b32 s75, s{S_WAVE}, 3
            s_lshr_b32 s76, s{S_WAVE}, 2
            s_and_b32 s78, s2, 3
            s_lshl_b32 s77, s74, 3
            s_lshl_b32 s79, s75, 1
            s_add_u32 s77, s77, s79
            s_add_u32 s77, s77, s76
            s_lshl_b32 s{S_STK}, s77, 11
            s_lshl_b32 s79, s78, 3
            s_lshl_b32 s{C}, s76, 2
            s_add_u32 s79, s79, s{C}
            s_mul_i32 s79, s79, 5120
            s_add_u32 s79, s79, {A2_OFF}
            s_mul_i32 s{S_A}, s77, {A2_MT}
            s_add_u32 s{S_A}, s{S_A}, s79
            s_xor_b32 s{C}, s77, 1
            s_mul_i32 s{S_A+1}, s{C}, {A2_MT}
            s_add_u32 s{S_A+1}, s{S_A+1}, s79
            s_lshl_b32 s79, s78, 2
            s_add_u32 s79, s79, s73
            s_lshl_b32 s79, s79, 1
            s_add_u32 s79, s79, s76
            s_mul_i32 s79, s79, {W2_S}
            s_lshl_b32 s{C}, s75, 10
            s_add_u32 s79, s79, s{C}
            s_add_u32 s{S_W2}, s79, {W2_OFF}
            s_mul_i32 s79, s76, {W2_S}
            s_sub_u32 s{S_W2K}, s{S_W2}, s79
            s_lshr_b32 s79, s77, 1
            s_lshl_b32 s79, s79, 2
            s_add_u32 s79, s79, s78
            s_lshl_b32 s79, s79, 10
            s_lshl_b32 s{C}, s76, 6
            s_add_u32 s79, s79, s{C}
            s_add_u32 s{S_AL}, s79, {A2L_OFF}
            s_mul_i32 s79, s77, 18432
            s_mul_i32 s{C}, s73, 288
            s_add_u32 s79, s79, s{C}
            s_lshl_b32 s{C}, s78, 6
            s_add_u32 s{S_O}, s79, s{C}
            s_add_u32 s{S_O8}, s79, 256
        """)
        for p in range(1, 4):
            L += sgroups(f"""
            s_add_u32 s79, s78, {p}
            s_and_b32 s79, s79, 3
            s_sub_u32 s79, s79, s78
            s_mul_i32 s79, s79, 24576
            s_add_u32 s79, s79, s{S_EX}
            s_add_u32 s{S_EXS+p-1}, s79, {(3-p)*1024}
            """)
        L += sgroups(f"""
            s_lshr_b32 s79, s2, 2
            s_lshl_b32 s79, s79, 3
            s_add_u32 s79, s79, s{S_WAVE}
            s_lshl_b32 s79, s79, 11
            s_add_u32 s79, s79, {EX8_OFF}
            s_sub_u32 s{C}, s78, s75
            s_sub_u32 s{C}, s{C}, 1
            s_and_b32 s{C}, s{C}, 3
            s_lshl_b32 s{C}, s{C}, 9
            s_add_u32 s79, s79, s{C}
            s_cmp_eq_u32 s78, s75
            s_cselect_b32 s{S_E8S}, s{S_OOB}, s79
            s_cselect_b32 s{S_O8}, s{S_O8}, s{S_OOB}
        """)
        return L + [Ev('setup2')]
    def F_wx(i):
        q = U(4)[3]; a = U(4)[2] + 2
        L = [I(f'v_bfe_u32 v{a}, v{V_L16}, 4, 2'), I(f'v_lshlrev_b32 v{a}, s{S_GP+3+i}, v{a}'),
             I(f'v_and_b32 v{a+1}, 0x3c0, v{V_L16}'), I(f'v_add3_u32 v{a}, v{a}, v{a+1}, s{S_W1K}'),
             I(f'v_add_u32 v{a+1}, {GL[i][1]}, v{a}'), I(f'v_add_u32 v{a}, {GL[i][0]}, v{a}')]
        for hh in range(2):
            L.append(I(f'ds_read_b64_tr_b16 {vr(q+2*hh,2)}, v{a+hh}', waits=[f'sg{i}_0', f'sg{i}_1']))
        L += [Delay(3),
              I(f'v_lshlrev_b32 v{a}, 21, v{V_L16}'), I(f'v_and_b32 v{a}, s{S_OOB}, v{a}'),
              I(f'v_lshrrev_b32 v{a+1}, 2, v{V_L16}'), I(f'v_or_b32 v{a}, v{a}, v{a+1}'),
              mf(V_T, ONES, q),
              I(f'buffer_store_dwordx4 {vr(q,4)}, v{V_L16}, {WS}, s{S_WXD+i} offen sc1', tok=f'wx{i}'),
              I(f's_lshr_b32 s{S_CNT}, s{S_WXD+i}, 3'), I(f's_add_u32 s{S_CNT}, s{S_CNT}, {CSP_OFF - WX_OFF // 8}'),
              I(f'buffer_store_dword v{V_T}, v{a}, {WS}, s{S_CNT} offen sc1', tok=f'wc{i}'), Ev(f'wxst{i}')]
        return L
    def F_csx():
        q = U(4)[0]; d = U(4)[1]
        L = sgroups(f"""
            s_add_u32 s30, s{S_WAVE}, 38
            s_cmp_lt_u32 s{S_WAVE}, 2
            s_cselect_b32 s30, s{S_WAVE}, s30
            s_cselect_b32 s31, 8, 9
            s_mul_i32 s{S_CNT}, s{S_J}, 112
            s_add_u32 s30, s30, s{S_CNT}
            s_lshl_b32 s30, s30, 7
            s_add_u32 s{S_CNT}, s30, {CSP_OFF}
        """)
        L += [I(f'v_lshrrev_b32 v{q}, 8, v{V_L16}'), I(f'v_cmp_gt_u32 vcc, 2, v{q}'), I(f'v_lshlrev_b32 v{q}, s31, v{q}'),
              I(f'v_bfe_u32 v{q+1}, v{V_L16}, 4, 4'), I(f'v_lshl_add_u32 v{q}, v{q+1}, 2, v{q}'), I(f'v_mov_b32 v{q+1}, s{S_OOB}'),
              I(f'v_cndmask_b32 v{q+1}, v{q+1}, v{q}, vcc'), I('s_lshl_b32 s31, 4, s31')]
        for i in range(5):
            L.append(I(f'buffer_load_dword v{d+i if i < 4 else q+2}, v{q if i < 4 else q+1}, {WS}, s{S_CNT} offen sc1'))
            if i < 4: L.append(I(f's_add_u32 s{S_CNT}, s{S_CNT}, s31'))
        return L
    def F_csx2():
        q = U(4)[0]; d = U(4)[1]
        L = [I(f'v_add_f32 v{d}, v{d}, v{d+1}'), I(f'v_add_f32 v{d+2}, v{d+2}, v{d+3}'), I(f'v_add_f32 v{d}, v{d}, v{q+2}'), I(f'v_add_f32 v{d}, v{d}, v{d+2}')]
        L += [I(f'v_mov_b32 v{d+1}, v{d}'), Delay(1), I(f'v_permlane32_swap_b32 v{d}, v{d+1}'), I(f'v_add_f32 v{d}, v{d}, v{d+1}')]
        return L + cswrite(d, 1, q)
    def F_stats(between):
        q = q2; a = V_T
        loads = lambda: [I(f'buffer_load_dwordx4 {vr(q,4)}, v{a}, {WS}, s{S_PT} offen sc1')]
        check = lambda: [I(f'v_xor_b32 v{q+1}, s{S_NON}, v{q+1}'), I(f'v_xor_b32 v{q+3}, s{S_NON}, v{q+3}'),
                         I(f'v_or_b32 v{q+1}, v{q+1}, v{q+3}'), I(f'v_cmp_ne_u32 vcc, 0, v{q+1}')]
        L = [I(f'v_lshrrev_b32 v{a}, 5, v{V_L16}'), I(f'v_lshlrev_b32 v{a}, 7, v{a}'),
             I(f's_lshl_b32 s{S_PT}, s{S_RB}, 3'), I(f's_add_u32 s{S_PT}, s{S_PT}, s{S_WAVE}'), I(f's_lshl_b32 s{S_PT}, s{S_PT}, 12')]
        L += loads() + between + retry_group(loads, check)
        L += [I(f'v_lshrrev_b32 v{a}, 5, v{a}'), I(f's_add_u32 s{S_CNT}, s{S_W1K}, {MISC}'), I(f'v_add_u32 v{a}, s{S_CNT}, v{a}'),
              I(f'v_bfe_u32 v{q+1}, v{V_L16}, 4, 4'), I(f'v_lshl_add_u32 v{q+1}, v{q+1}, 2, s{S_CNT}'),
              I(f'ds_write_b32 v{a}, v{q+2} offset:512'), I(f'ds_write_b32 v{a}, v{q} offset:640')]
        for mt in range(2):
            L += [I(f'ds_read_b32 v{q3+2*mt}, v{q+1} offset:{640 + 64*mt}'), I(f'ds_read_b32 v{q3+2*mt+1}, v{q+1} offset:{512 + 64*mt}')]
        return L
    def F_stats2():
        L = [Need('xdone'), I(f'v_cmp_gt_u32 vcc, 0x200, v{V_L16}')]
        for mt in range(2):
            L += [I(f'v_cvt_pk_bf16_f32 v{q3+2*mt}, v{q3+2*mt}, v{q3+2*mt}'), I(f'v_mul_f32 v{q3+2*mt+1}, {f2u(K0C):#x}, v{q3+2*mt+1}')]
        for mt in range(2):
            L += [I(f'v_cndmask_b32 v{BN[mt]}, 0, v{q3+2*mt}, vcc'), I(f'v_and_b32 v{C0[mt]}, 0xffffff7f, v{q3+2*mt+1}')]
        return L + [Ev('stats')]
    def F_c1():
        L = [I(f'v_mul_f32 v{C1[mt]}, v{C0[mt]}, v{C0[mt]}') for mt in range(2)]
        L += [I(f'v_mul_f32 v{C1[mt]}, {f2u(0.044715 / (K0C * K0C)):#x}, v{C1[mt]}') for mt in range(2)]
        L += [I(f'v_mul_f32 v{C1[mt]}, v{C1[mt]}, v{C0[mt]}') for mt in range(2)]
        return L
    def F_rpat():
        a, b = q2 + 1, q2 + 2
        return [I(f'v_lshrrev_b32 v{a}, 3, v{V_L16}'), I(f'v_xor_b32 v{a}, v{a}, v{V_L16}'), I(f'v_and_b32 v{a}, 0x60, v{a}'),
                I(f'v_and_or_b32 v{a}, v{V_L16}, 16, v{a}'), I(f'v_lshrrev_b32 v{b}, 8, v{V_L16}'), I(f'v_mad_u32_u24 v{a}, v{b}, s{S_LEFT}, v{a}'),
                I(f'v_lshrrev_b32 v{b}, 7, v{V_L16}'), I(f'v_mul_u32_u24 v{b}, 1152, v{b}'), I(f'v_add_u32 v{a}, v{a}, v{b}'), Ev('rpat')]
    NT = cfg.get('nt', 9)
    def F_tpat():
        a, b, c = 7, V_T, V_T + 1; n = 18 // NT
        return [[I('s_lshl_b32 s30, s2, 2'), I(f's_and_b32 s31, s{S_WAVE}, 3'), I('s_add_u32 s30, s30, s31'), I(f's_mul_i32 s30, s30, {n}')],
                I(f'v_lshrrev_b32 v{a}, 4, v{V_L16}'), I(f'v_min_u32 v{a}, {n - 1}, v{a}'), I(f'v_add_u32 v{a}, s30, v{a}'),
                I(f'v_and_b32 v{c}, 7, v{a}'), I(f'v_cmp_eq_u32 vcc, 2, v{c}'),
                I(f'v_lshrrev_b32 v{b}, 5, v{a}'), I(f'v_mul_u32_u24 v{b}, {9216 - 4096}, v{b}'), I(f'v_cndmask_b32 v{c}, 32, 1, vcc'),
                I(f'v_add_u32 v{a}, v{a}, v{c}'), I(f'v_lshl_add_u32 v{a}, v{a}, 7, v{b}'), Ev('tpat')]
    def touch(k):
        t = stmp()
        x = I(f'buffer_load_dword v7, s[{S_W}:{S_W+3}], s{t} offen lds')
        if k == NT - 1: events['tissued'] = st.gap
        st.tnext = st.gap + cfg.get('tsp_', 8)
        return [I(f's_add_u32 m0, s{S_W1K}, {6*SLOT}'), I(f's_mov_b32 s{t}, {k * (576 // NT) * 9216}'), x]
    def F_dmah(VA, VB):
        return [I(f'v_bfe_u32 v{VA}, v{V_L16}, 6, 2'), I(f'v_lshrrev_b32 v{VB}, 8, v{V_L16}'), I(f'v_lshl_add_u32 v{VA}, v{VB}, 3, v{VA}'),
                [I(f's_and_b32 s72, s{S_WAVE}, 1'), I(f's_lshl_b32 s72, s72, 2'), I(f's_and_b32 s71, s{S_WAVE}, 2'),
                 I('s_lshl_b32 s71, s71, 4'), I(f's_add_u32 s72, s72, s71')],
                I(f'v_add_u32 v{VA}, s72, v{VA}'), I(f'v_mul_u32_u24 v{VA}, 9216, v{VA}'),
                I(f'v_lshlrev_b32 v{VB}, 5, v{VB}'), I(f'v_xor_b32 v{VB}, v{VB}, v{V_L16}'), I(f'v_and_b32 v{VB}, 0x30, v{VB}'),
                [I(f's_and_b32 s72, s{S_J}, 7'), I('s_cmp_eq_u32 s72, 2'), I('s_cselect_b32 s72, 1, 32'), I(f's_add_u32 s72, s72, s{S_J}'), I('s_lshl_b32 s72, s72, 7')],
                I(f'v_add3_u32 v{V_DMA}, v{VA}, v{VB}, s72'), Ev('dmah')]
    def F_trh():
        return [I(f'v_and_b32 v{V_TH}, 0x3c0, v{V_L16}'), I(f'v_bfe_u32 v{V_TH+1}, v{V_L16}, 8, 1'), I(f'v_lshl_add_u32 v{V_TH}, v{V_TH+1}, 5, v{V_TH}'),
                I(f'v_bfe_u32 v{V_TH+1}, v{V_L16}, 4, 2'), I(f'v_lshl_add_u32 v{V_TH}, v{V_TH+1}, 3, v{V_TH}'), I(f'v_xor_b32 v{V_TH+1}, 32, v{V_TH}'), Ev('trh')]
    def F_relayout(qd, VA, VB):
        L = [I(f'v_bfe_u32 v{VA}, v{V_L16}, 6, 4'), I(f'v_lshlrev_b32 v{VA}, 7, v{VA}'), I(f'v_bfe_u32 v{VB}, v{V_L16}, 7, 2'),
             I(f'v_lshl_add_u32 v{VA}, v{VB}, 5, v{VA}'), I(f'v_bfe_u32 v{VB}, v{V_L16}, 4, 2'), I(f'v_lshl_add_u32 v{VA}, v{VB}, 3, v{VA}'),
             [I(f's_and_b32 s{S_CNT}, s{S_WAVE}, 3'), I(f's_lshl_b32 s{S_CNT}, s{S_CNT}, 5'), I(f's_and_b32 s30, s{S_W1K}, 0x1000'),
              I(f's_or_b32 s{S_CNT}, s{S_CNT}, s30')],
             I(f'v_xor_b32 v{VA}, s{S_CNT}, v{VA}'), I(f'v_add_u32 v{VA}, {6*SLOT}, v{VA}')]
        def rd(i):
            o = i * SLOT; q = qd[i % 2]
            assert slot_of(IT_R + i) == 6 + i
            return [I(f'ds_read_b64_tr_b16 {vr(q,2)}, v{VA} offset:{o}'), I(f'ds_read_b64_tr_b16 {vr(q+2,2)}, v{VA} offset:{o+2048}')]
        def sto(i): return I(f'buffer_store_dwordx4 {vr(qd[i % 2],4)}, v{V_L16}, {WS}, s{S_RDST+i if not cfg.get("fakeW") else S_OOB} offen sc1', tok=f'w2a{i}')
        return L + [Need('rland'), Need('rsetup')] + rd(0) + rd(1), [[sto(0)] + rd(2), [sto(1)], [sto(2), Ev('rdone')]]
    def F_poison(q):
        L = [I(f'v_mov_b32 v{q+r}, -1') for r in range(4)]
        S_ = [I(f'buffer_store_dwordx4 {vr(q,4)}, v{V_L16}, {WS}, s{S_EX} offen offset:{1024*p} sc1', tok=f'po{p}') for p in range(3)]
        L += [I(f'v_lshrrev_b32 v{q+4}, 1, v{V_L16}')]
        S_ += [I(f'buffer_store_dwordx2 {vr(q,2)}, v{q+4}, {WS}, s{S_E8P} offen sc1', tok='po3')]
        for mt in range(2):
            x = hstore(q, 4, mt, 3); x[1].tok = f'p3_{mt}'; S_.append(x)
        return L, S_ + [Ev('podone')]
    def E_qkv():
        qa, qb = U(4)[2], U(4)[3]
        VA, VB, VC, VD = qb, qb + 1, qb + 2, qb + 3
        L = []
        L += [I(f'v_lshrrev_b32 v{V_A}, 4, v{V_L16}'), I(f'v_and_b32 v{V_A}, 0x30, v{V_A}'), I(f's_add_u32 s{S_CNT}, s{S_W1K}, {MISC}'),
              I(f'v_add_u32 v{V_A}, s{S_CNT}, v{V_A}'),
              I(f'ds_read_b128 {vr(qa,4)}, v{V_A} offset:512'), I(f'ds_read_b128 {vr(qb,4)}, v{V_A} offset:576')]
        for mt in range(2): L.append(I(f'v_mul_f32 v{V_T+mt}, {f2u(1.0/K0C):#x}, v{C0[mt]}'))
        for mt in range(2): L += [I(f'v_mul_f32 v{T0[mt]+r}, v{T0[mt]+r}, v{V_T+mt}') for r in range(4)]
        for mt in range(2):
            for T in (T1, T2, T3):
                L += [I(f'v_mul_f32 v{T[mt]+r}, v{T[mt]+r}, v{(qa, qb)[mt]+r}') for r in range(4)]
        L += pack2(T2[0], T2[0], T2[1])
        L += pack2(T2[1], T3[0], T3[1])
        L.append(I(f'v_mov_b32 v{VB}, 0x3f803f80'))
        L.append(I(f'v_add_u32 v{VA}, s{S_W1K}, v{V_L16}'))
        for r in range(4): L.append(I(f'v_cndmask_b32 v{T2[1]+r}, v{T2[1]+r}, v{VB}, s[{S_M4}:{S_M4+1}]'))
        L += phi_quad(T1[0]) + phi_quad(T1[1]) + pack2(T1[0], T1[0], T1[1])
        L += phi_quad(T3[0]) + phi_quad(T3[1]) + pack2(T3[0], T3[0], T3[1])
        L.append(I(f'v_add_u32 v{VA}, {SCR}, v{VA}'))
        L.append(I(f'v_bfe_u32 v{VC}, v{V_L16}, 6, 2'))
        L.append(mf(T1[1], T1[0], T2[0]))
        L.append(mf(T3[1], T1[0], T2[1]))
        L.append(I(f'ds_write_b128 v{VA}, {vr(T3[0],4)}'))
        L.append(I(f'v_lshlrev_b32 v{VC}, 8, v{VC}'))
        L.append(I(f'v_bfe_u32 v{VB}, v{V_L16}, 4, 2'))
        L.append(mf(T1[0], T3[0], T2[0]))
        L.append(I(f'v_lshl_add_u32 v{VC}, v{VB}, 1, v{VC}'))
        L.append(I(f'v_add_u32 v{VC}, s{S_W1K}, v{VC}'))
        L.append(mf(T2[0], T3[0], T2[1]))
        L.append(I(f'v_add_u32 v{VC}, {SCR}, v{VC}'))
        L.append(I(f'v_bfe_u32 v{VD}, v{V_L16}, 8, 2'))
        for mt in range(2):
            L.append(I(f'ds_read_u16 v{qa+2*mt}, v{VC} offset:{4*16 + mt*8}'))
            L.append(I(f'ds_read_u16 v{qa+2*mt+1}, v{VC} offset:{5*16 + mt*8}'))
        L.append(I(f'ds_write_b128 v{VA}, {vr(T1[1],4)}', tok='kva0'))
        L.append(I(f'v_bfe_u32 v{VB}, v{V_L16}, 4, 4'))
        L.append(I(f'v_mad_u32_u24 v{VA}, v{VD}, 3, v{VB}'))
        L.append(I(f'v_lshlrev_b32 v{VA}, 4, v{VA}'))
        L.append(I(f'v_mov_b32 v{VC}, 0xc0'))
        L.append(I(f'v_cmp_gt_u32 vcc, 3, v{VB}'))
        L.append(I(f'v_lshlrev_b32 v{VB}, 4, v{VB}'))
        L.append(I(f'v_cndmask_b32 v{VA}, v{VC}, v{VA}, vcc'))
        L.append(I(f'v_add_u32 v{VB}, 0x100, v{VB}'))
        L.append(I(f's_add_u32 s{S_CNT}, s{S_W1K}, {MISC}'))
        L.append(I(f'v_cndmask_b32 v{VB}, v{VC}, v{VB}, s[{S_G2}:{S_G2+1}]'))
        L.append(I(f'v_add_u32 v{VA}, s{S_CNT}, v{VA}'))
        L.append(I(f'v_add_u32 v{VB}, s{S_CNT}, v{VB}'))
        L.append(I(f'ds_write_b128 v{VA}, {vr(T3[1],4)}', tok='kva1'))
        L.append(I(f'ds_write_b64 v{VB}, {vr(T1[0],2)}', tok='kva2'))
        L.append(I(f'ds_write_b64 v{VB}, {vr(T2[0],2)} offset:8', tok='kva3'))
        L.append(Ev('qkvdone'))
        return L
    def E_q():
        qa = U(4)[2]; L = []
        for mt in range(2):
            L += phi_quad(T0[mt])
            L += [I(f'v_cvt_pk_bf16_f32 v{T0[mt]}, v{T0[mt]}, v{T0[mt]+1}'), I(f'v_cvt_pk_bf16_f32 v{T0[mt]+1}, v{T0[mt]+2}, v{T0[mt]+3}'),
                  I(f'v_lshl_or_b32 v{T0[mt]+2}, v{qa+2*mt+1}, 16, v{qa+2*mt}'), I(f'v_mov_b32 v{T0[mt]+3}, 0')]
        return L + [Ev('qdone')]
    G = T1[0]
    def sum8(g, s):
        return [I(f'v_add_f32 v{g}, v{g}, v{g+s}'), I(f'v_add_f32 v{g+2*s}, v{g+2*s}, v{g+3*s}'), I(f'v_add_f32 v{g+4*s}, v{g+4*s}, v{g+5*s}'),
                I(f'v_add_f32 v{g+6*s}, v{g+6*s}, v{g+7*s}'), I(f'v_add_f32 v{g}, v{g}, v{g+2*s}'), I(f'v_add_f32 v{g+4*s}, v{g+4*s}, v{g+6*s}'),
                I(f'v_add_f32 v{g}, v{g}, v{g+4*s}')]
    def F_publish(between):
        VA = V_A
        L = [I(f'v_lshrrev_b32 v{VA}, 2, v{V_L16}'), I(f'v_add_u32 v{VA}, s{S_RED}, v{VA}')]
        for p in range(8): L.append(I(f'ds_read_b32 v{G+p}, v{VA} offset:{1024*p}'))
        L += between + sum8(G, 1)
        L += [I(f'v_min_u32 v{G}, -2, v{G}'), I(f'v_lshrrev_b32 v{VA}, 2, v{V_L16}'),
              I(f'buffer_store_dword v{G}, v{VA}, {WS}, s{S_KVST} offen sc1'), Ev('published')]
        L += [I(f'v_mov_b32 v{T1[0]+r}, 0x3f803f80') for r in range(4)] + [Ev('ones2')]
        return L
    G2 = XF(0, 0); VK = XF(1, 0)
    def kv_loads():
        L = []
        for p in range(8):
            if p % 3 == 0:
                t = ftmp(); L.append(I(f's_add_u32 s{t}, s{S_KVLD}, {1536*p}'))
            L.append(I(f'buffer_load_dword v{G2+p}, v{VK}, {WS}, s{t} offen offset:{1536*(p%3)} sc1'))
        return L
    def kv_check():
        return [I(f'v_max3_u32 v{VK+1}, v{G2}, v{G2+1}, v{G2+2}'), I(f'v_max3_u32 v{VK+2}, v{G2+3}, v{G2+4}, v{G2+5}'),
                I(f'v_max3_u32 v{VK+1}, v{VK+1}, v{G2+6}, v{G2+7}'), I(f'v_max_u32 v{VK+1}, v{VK+1}, v{VK+2}'), I(f'v_cmp_eq_u32 vcc, -1, v{VK+1}')]
    def F_kvload(): return [Need('w2ok'), I(f'v_lshrrev_b32 v{VK}, 2, v{V_L16}')] + kv_loads()
    def F_gather():
        g = retry_group(kv_loads, kv_check)
        L = g + sum8(G2, 1)
        L += [I(f's_lshr_b32 s{S_CNT}, s{S_W1K}, 2'), I(f's_add_u32 s{S_CNT}, s{S_CNT}, {KVS}'), I(f'v_add_u32 v{VK+1}, s{S_CNT}, v{VK}'),
              I(f'ds_write_b32 v{VK+1}, v{G2}', tok='kvb0'), Ev('gathered')]
        return L
    def F_o():
        E0, E1, P2, X_ = U(2)
        t = V_T
        L = [I(f'v_add_u32 v{t}, {KVS}, v{V_L16}'), I(f'v_bfe_u32 v{t+1}, v{V_L16}, 8, 2'),
             I(f'ds_read_b128 {vr(E0,4)}, v{t}'),
             I(f'v_bfe_u32 v{t+2}, v{V_L16}, 4, 2'), I(f'v_mad_u32_u24 v{t+1}, v{t+1}, 3, v{t+2}'),
             I(f'v_lshlrev_b32 v{t+1}, 4, v{t+1}'), I(f'v_add_u32 v{t+1}, {KVS}, v{t+1}'),
             I(f'ds_read_b128 {vr(E1,4)}, v{t+1} offset:1024'),
             I(f'v_and_b32 v{t+3}, 0xf0, v{V_L16}'), I(f'v_add_u32 v{t+3}, {KVS}, v{t+3}'),
             I(f'ds_read_b64 {vr(P2,2)}, v{t+3} offset:1280'),
             I(f'v_and_b32 v{t+2}, 0x30, v{V_L16}'), I(f'v_add_u32 v{t+2}, {KVS}, v{t+2}'),
             I(f'ds_read_b64 {vr(P2+2,2)}, v{t+2} offset:1288')]
        for mt in range(2): L.append(I(f'v_mul_f32 v{X_+mt}, {f2u(1.0/K0C):#x}, v{C0[mt]}'))
        for mt in range(2): L.append(I(f'v_mul_f32 v{X_+mt}, v{X_+mt}, v{X_+mt}'))
        L += [I(f's_add_u32 s{S_CNT}, s{S_W1K}, {slot_of(IT_PK) * SLOT}'), I(f'v_add_u32 v{X_+2}, s{S_CNT}, v{V_L16}'), I(f'v_lshrrev_b32 v{X_+3}, 2, v{V_L16}'), Delay(1)]
        for E, c in ((E0, 0), (E1, 2)):
            L.append(I(f'v_cvt_pk_bf16_f32 v{E}, v{E}, v{E+1}'))
            L.append(I(f'v_cvt_pk_bf16_f32 v{E+1}, v{E+2}, v{E+3}'))
            L.append(I(f'v_cvt_pk_bf16_f32 v{E+2}, v{P2+c}, v{P2+c+1}'))
            L.append(I(f'v_mov_b32 v{E+3}, 0'))
        for E in (E0, E1): L.append(I(f'v_cndmask_b32 v{E+2}, 0, v{E+2}, s[{S_G2}:{S_G2+1}]'))
        L.append(Ev('scrfree'))
        D0 = [ACC(3, 0, 0), ACC(3, 0, 1)]; D1 = [ACC(3, 1, 0), ACC(3, 1, 1)]
        L += [I(f'v_mov_b32 v{P2}, s{S_OOB}'), I(f'v_cmp_gt_u32 vcc, 0x80, v{X_+3}')]
        for mt in range(2):
            L.append(mf(D1[mt], E1, T0[mt])); L.append(mf(D0[mt], E0, T0[mt]))
        L += [I(f'v_cndmask_b32 v{X_+3}, v{P2}, v{X_+3}, vcc'), I(f'v_cmp_gt_u32 vcc, 0x100, v{V_L16}')]
        HQ = [E0, E1]
        L += [I(f'ds_read_b64 {vr(HQ[mt],2)}, v{X_+2} offset:{8*mt}') for mt in range(2)]
        for mt in range(2): L.append(I(f'v_add_f32 v{D1[mt]+2}, s{S_EPS}, v{D1[mt]+2}'))
        for mt in range(2): L.append(I(f'v_mul_f32 v{D1[mt]+2}, v{D1[mt]+2}, v{X_+mt}'))
        for mt in range(2): L.append(I(f'v_rcp_f32 v{D1[mt]+2}, v{D1[mt]+2}'))
        for mt in range(2):
            for r in range(4): L.append(I(f'v_mul_f32 v{D0[mt]+r}, v{D0[mt]+r}, v{D1[mt]+2}'))
            for r in (0, 1): L.append(I(f'v_mul_f32 v{D1[mt]+r}, v{D1[mt]+r}, v{D1[mt]+2}'))
            L.append(I(f'v_cvt_pk_bf16_f32 v{HQ[mt]+2}, v{D0[mt]}, v{D0[mt]+1}'))
            L.append(I(f'v_cvt_pk_bf16_f32 v{HQ[mt]+3}, v{D0[mt]+2}, v{D0[mt]+3}'))
            L += hstore(HQ[mt], 4, mt, 4)
            L.append(I(f'v_cvt_pk_bf16_f32 v{D1[mt]}, v{D1[mt]}, v{D1[mt]+1}'))
        L.append(I(f'v_cndmask_b32 v{D1[0]}, v{D1[1]}, v{D1[0]}, vcc'))
        L.append(I(f'buffer_store_dword v{D1[0]}, v{X_+3}, {WS}, s{S_A2L} offen {HST}', tok='ol'))
        L.append(Ev('odone'))
        return L
    def F_p2setup():
        return [I(f'v_lshrrev_b32 v{VSP+3}, 6, v{V_L16}'), I(f'v_mul_u32_u24 v{VSP+1}, 1152, v{VSP+3}'), I(f'v_bfe_u32 v{VSP+2}, v{V_L16}, 4, 2'),
                I(f'v_lshl_add_u32 v{VSP}, v{VSP+2}, 4, v{VSP+1}'), I(f'v_lshl_add_u32 v{VSP+1}, v{VSP+2}, 3, v{VSP+1}'),
                I(f'v_lshlrev_b32 v{VSP+3}, 7, v{VSP+3}'),
                I(f'v_bfe_u32 v{V_AL+2}, v{V_L16}, 4, 4'), I(f'v_and_b32 v{VSP+2}, 0x300, v{V_L16}'), I(f'v_lshl_add_u32 v{VSP+2}, v{V_AL+2}, 2, v{VSP+2}'),
                I(f'v_mov_b32 v{V_AL+2}, 0'), I(f'v_mov_b32 v{V_AL+3}, 0'), Ev('p2setup')]
    p2slots = {slot_of(IT_W2 + k) for k in range(37, 48)}
    free = [slot_of(IT_W2 + k) for k in range(29, 33)] + [19] + [slot_of(IT_W2 + k) for k in range(33, 37)]
    assert not (set(free) & p2slots) and len(set(free)) == 9
    def F_cwrite():
        L = [I(f'v_add_u32 v12, s{S_W1K}, v{V_L16}'), I(f'v_add_u32 v13, {12*SLOT}, v12'), I(f'v_add_u32 v14, {6*SLOT}, v12')]
        return L
    def cmb(k):
        s_ = free[k]
        return (12, s_ * SLOT) if s_ < 6 else ((14, (s_ - 6) * SLOT) if s_ < 12 else (13, (s_ - 12) * SLOT))
    def F_cw2(lts):
        L = []
        for lt in lts:
            r_, o_ = cmb(lt - 2)
            L.append(I(f'ds_write_b128 v{r_}, {vr(ACC2(lt,1),4)} offset:{o_}', tok=f'cw{lt}'))
        return L
    RB_ = [acc1[9], acc1[11], acc1[13]]
    def F_send():
        L = []
        def rd(lt, q):
            r_, o_ = cmb(lt - 2)
            return I(f'ds_read_b128 {vr(q,4)}, v{r_} offset:{o_}')
        def ad(lt, q): return [I(f'v_add_f32 v{ACC2(lt,0)+r}, v{ACC2(lt,0)+r}, v{q+r}') for r in range(4)]
        L += [rd(2, RB_[0]), rd(3, RB_[1]), rd(4, RB_[2]), Delay(2)]
        nxt = 5
        for p in range(1, 4):
            for lt in (2*p, 2*p+1):
                q = RB_[(lt - 2) % 3]
                L += ad(lt, q)
                if nxt <= 8: L.append(rd(nxt, q)); nxt += 1
            a, b = ACC2(2*p, 0), ACC2(2*p+1, 0)
            L += pack2(a, a, b)
            L += [I(f'v_min_u32 v{a+r}, -2, v{a+r}') for r in range(4)]
            L.append(I(f'buffer_store_dwordx4 {vr(a,4)}, v{V_L16}, {WS}, s{S_EXS+p-1} offen sc1'))
        L += ad(8, RB_[0])
        a = ACC2(8, 0); q = RB_[1]
        L += [I(f'v_cvt_pk_bf16_f32 v{q}, v{a}, v{a+1}'), I(f'v_cvt_pk_bf16_f32 v{q+1}, v{a+2}, v{a+3}'),
              I(f'v_min_u32 v{q}, -2, v{q}'), I(f'v_min_u32 v{q+1}, -2, v{q+1}'),
              I(f'buffer_store_dwordx2 {vr(q,2)}, v{V_L8}, {WS}, s{S_E8S} offen sc1'), Ev('sent')]
        return L

    memq = []
    def mq(step, evs, mk, item=None, by=None, ordr=None): memq.append(dict(step=step, ev=evs, mk=mk, item=item, by=by, ordr=ordr))
    def xstep(ks): return SO[('S1', ks) if ks < K1 else ('S1a', ks)]
    n0 = NPRE
    for k in range(PS, len(stg)):
        for h in range(2): mq(0, [f'srd{k-NR}'] if k >= NR else [], (lambda k=k, h=h: sdma(k, h)), ordr='s')
        if n0 < 18:
            mq(0, [], (lambda n=n0: dma(n)), n0, ordr='w'); n0 += 1
        if GPOS <= k < GPOS + 2 and GP < 0:
            for h in range(2): mq(cfg.get('gstep', 3), [], (lambda g=k-GPOS, h=h: gdma(g, h)), ordr='g')
    for n in range(n0, 18): mq(0, [], (lambda n=n: dma(n)), n, ordr='w')
    NXB = cfg.get('nxb', 8)
    for n in range(IT_Q, IT_Q + NXB): mq(0, ['wxok', 'rxinit'], (lambda n=n: dma(n)), n, ordr='s')
    if cfg.get('notouch'): events['tissued'] = -9
    for k in range(NT if not cfg.get('notouch') else 0): memq.insert(k, dict(step=cfg.get('tstep', 11), ev=['tpat', 'wxst0'], mk=(lambda k=k: touch(k)), item=None, by=None, ordr='t'))
    for n in range(IT_R, IT_Q): mq(0, ['rpat', 'tissued'], (lambda n=n: dma(n)), n, ordr='s')
    for n in range(IT_Q + NXB, IT_SCR): mq(SO[tuple(cfg.get('xr', ('S2', 9)))], ['wxok', 'rxinit'], (lambda n=n: dma(n)), n, ordr='s')
    LST = cfg.get('lst', [3])
    for n in range(IT_L1, IT_W2): mq(SO[tuple(cfg.get('l1at', ('S3', 0)))], ['dmah'], (lambda n=n: dma(n)), n, ordr='w')
    TORD = [0, 1, 2, 4, 3]
    def aload(sp, mt, half=None):
        t = stmp(); off = ((sp & 3) * 5 + TORD[sp >> 2]) * 1024
        if half is not None:
            off += half * 512
            return [I(f's_add_u32 s{t}, s{S_A + mt}, {off & ~4095}'),
                    I(f'buffer_load_dwordx2 {vr(AF(sp, mt) + 2 * half, 2)}, v{V_L8}, {WS}, s{t} offen offset:{off & 4095} sc1')]
        return [I(f's_add_u32 s{t}, s{S_A + mt}, {off & ~4095}'),
                I(f'buffer_load_dwordx4 {vr(AF(sp, mt), 4)}, v{V_L16}, {WS}, s{t} offen offset:{off & 4095} sc1')]
    def xfree_step(ks):
        return (SO[('S4c', ks)] if ks < K4 else SO[('S4e', ks)]) + 1
    w2n = IT_W2
    VX = 8
    for sp in range(21):
        while w2n <= IT_W2 + ((sp * 7 + 6) >> 2):
            mq(0, ['w2ok', 'setup2'], (lambda n=w2n: dma(n)), w2n); w2n += 1
        if sp < 20:
            ev = [['h4ok'], ['h4ok'], ['h5ok'], ['h6ok'], ['h5ok']][sp >> 2]
            if sp < 2: ev = ev + ['gathered']
            if sp >= 17: ev = ev + ['e3done']
            for mt in range(2):
                for half in [None]:
                    mq(xfree_step(sp) if sp < 16 else SO[('P1', sp - cfg.get('t3lead', 3))], ev + ['setup2'], (lambda sp=sp, mt=mt, half=half: aload(sp, mt, half)), by=SO[('P1', sp if sp < 16 else sp - 1)])
        if sp == 15:
            for k in range(2):
                mq(0, ['h6ok', 'p2setup'], (lambda k=k: [I(f'buffer_load_dword v{V_AL+k}, v{VSP+2}, {WS}, s{S_AL} offen offset:{128*k} sc1')]), by=SO[('P1', 20)])
    for n in list(range(w2n, w2n + 5)) + [NITEM - 1] + list(range(w2n + 5, NITEM - 1)): mq(0, [], (lambda n=n: dma(n)), n)
    R = AF(0, 0); R8 = R + 12
    rloads = lambda: ([I(f'buffer_load_dwordx4 {vr(R+4*p,4)}, v{V_L16}, {WS}, s{S_EX} offen offset:{1024*p} sc1') for p in range(3)]
                      + [I(f'buffer_load_dwordx2 {vr(R8+2*p,2)}, v{V_L8}, {WS}, s{S_E8R} offen offset:{512*p} sc1') for p in range(3)])
    for mk in (lambda: [I(f'buffer_load_dwordx4 {vr(8,4)}, v{VSP}, {XS}, s{S_O} offen')],
               lambda: [I(f'buffer_load_dwordx2 {vr(0,2)}, v{VSP+1}, {XS}, s{S_O8} offen')],
               lambda: [I(f'buffer_load_dword v15, v{VSP+3}, {WS}, s{S_STK} offen offset:8 sc1')]):
        mq(0, ['e3done', 'p2setup', 'pook'], mk, by=SO[('P2a', cfg.get('pb', 2))])

    KP = tuple(cfg.get('kp', ('S4a', K3 + 5))); KO = tuple(cfg.get('ko', ('S4d', K4 + 3)))
    PB = ('P2a', cfg.get('pb', 2))
    WXF = ('S1', cfg.get('wxf', 11)); RS = ('S3', 5); F3F = KP
    barspec = cfg.get('bars', None) or (
        [('S1', 1), WXF] + [('S1', k) for k in range(0, K1, cfg.get('s1b', 1))] + [('S1a', K1), ('S1b', K1), ('S1d', K1 + 2), ('S2', 0), ('S2', 9), ('S3', 0), ('S3', 5), ('S3', 10), ('S3', 17),
         ('S4', 0), ('S4', 5), KP, ('S4b', K3), ('S4c', 0), ('S4c', 4), KO, ('S4e', K4), ('S4e', K4 + 5)]
        + [('P1', k) for k in cfg.get('p1b', [0, 3, 6, 9, 12, 15, 17, 19])] + [('P2a', 0), PB, ('P2a', 14), ('P2b', 6)])
    bars = sorted(set(SO[tuple(b)] for b in barspec))
    if 'getbars' in cfg: cfg['getbars'] += [list(steps[b]) for b in bars]
    need = {}
    for bi, b in enumerate(bars):
        lo = first_frag[b] + (D if bi else 0)
        hi = first_frag[bars[bi + 1]] + D if bi + 1 < len(bars) else NF
        need[b] = sorted({frags[i]['item'] for i in range(lo, min(hi, NF))} - {None})
    last_use = {}
    for f in frags:
        if f['item'] is not None: last_use[f['item']] = f['step']
    need[SO[RS]] = sorted(set(need[SO[RS]]) | {IT_R, IT_R + 1, IT_R + 2})
    rel_ev = {IT_R: 'rdone', IT_R + 1: 'rdone', IT_R + 2: 'rdone', IT_SCR: 'scrfree', IT_PK: 'odone', 'stage': 'xdone', 'gst': 'wxst1'}
    released = set()
    issued = {n: -1 for n in range(NPRE)}
    events['srd0'] = events['srd1'] = -9
    def spread(main, items, start, step):
        o = {}
        for k, x in enumerate(items): o.setdefault(min(start + k * step, len(main) - 1), []).extend(x if isinstance(x, list) else [x])
        L = []
        for k, x in enumerate(main):
            if k in o: L += o[k]
            L.append(x)
        return L
    avail = {}
    def at(step, f): avail.setdefault(SO[step], []).append(f)
    xrd = {}
    for L_ in range(1, 9):
        xrd.setdefault(min(xstep(2 * L_) - 1, SO[('S1', K1 - 1)]), []).append(L_)
    DL = cfg.get('dl', 36); S_RSRC2 = S_RDST
    at(('S1', cfg.get('rowat', 0)), lambda: F_nonce((F_tpat() if not cfg.get('notouch') else [Delay(8)]) + [Delay(cfg.get('ndelay', 32))]))
    evfront = [('gl0', None, lambda: F_wx(0)), ('gl1', 'wxst0', lambda: F_wx(1))]
    at(WXF, lambda: [Need('setup0')] + setflag(S_F2S, 0, [], V_T + 1, V_T + 2))
    pw = poll([], 3, 'wxok', False, True, [], V_T + 1, V_T + 2, S_F2P)
    at(('S1', cfg.get('stat', 12)), lambda: F_stats([Delay(cfg.get('dl', 22))] + pw[:-4] + [Delay(cfg.get('dl2', 8))]) + [Delay(cfg.get('dl3', 4))] + pw[-4:] + F_stats2())
    at(('S1b', K1), lambda: [Need('setup1'), Need('wxok')] + F_csx() + F_rpat() + [Need('tissued')] + F_c1())
    at(('S1b', K1 + 2), lambda: E_first(0))
    po = F_poison(T2[0])
    at(('S1c', K1), lambda: E_second(0, 1, 0) + [Ev('u01free')])
    rl = F_relayout([ACC(2, 1, 0), ACC(2, 1, 1)], V_TH, V_T)
    at(('S2', 0), lambda: E_first(2) + rl[0] + spread(E_second(2, 3, 1) + [Ev('u23free')], rl[1], 6, 14))
    assert not cfg.get('map', 0)
    kvpo = [I(f'v_mov_b32 v{U(3)[0]}, -1'), I(f'v_lshrrev_b32 v{U(3)[0]+1}, 2, v{V_L16}'),
            I(f'buffer_store_dword v{U(3)[0]}, v{U(3)[0]+1}, {WS}, s{S_KVST} offen sc1', tok='kvpo')]
    at(('S3', 2), lambda: [Need('setup1b')] + kvpo + F_trh() + E_quarter(4) + [Ev('u4free')] + [I(f'v_mov_b32 v{ONES+r}, 0x3f803f80') for r in range(4)] + [Ev('ones1')])
    at(('S4', 0), lambda: setflag(S_FL, 0, ['h0_0_0', 'h0_1_0', 'h1_0_0', 'h1_1_0'], q3, q3 + 1) + setflag(S_F2S, 0x8000, [], q3, q3 + 1)[5:] + E_qkv())
    w2p = [I(f's_and_b32 s{S_RSRC2}, s2, 3'), I(f's_lshl_b32 s{S_RSRC2}, s{S_RSRC2}, 13'), I(f's_add_u32 s{S_RSRC2}, s{S_RSRC2}, s{S_W1K}'),
           I(f's_add_u32 s{S_RSRC2}, s{S_RSRC2}, {F2_OFF + 0x8000}')]
    at(KP, lambda: F_publish([Delay(3)]) + po[0] + spread(E_q(), po[1], 1, 7))
    at(('S4b', K3 + 2), lambda: pollh(0, 'h4ok', poll(w2p, 3, 'w2ok', False, True, E_first(2), q3 + 2, q3 + 3, S_RSRC2), q3, q3 + 1) + [Ev('u4free2'), Ev('e2b')])
    at(('S4c', 0), lambda: E_second(2, 3, 2)[:36])
    at(('S4c', cfg.get('kvl', 3)), lambda: F_kvload() + E_second(2, 3, 2)[36:] + [Ev('e2done')] + F_gather())
    at(KO, lambda: F_o())
    at(('S4e', K4 + 2), lambda: E_first(4) + [Ev('e4a')])
    e3 = E_second(4, 1, 3)
    at(('P1', 0), lambda: [I(f'v_lshrrev_b32 v{V_L8}, 1, v{V_L16}'), Ev('l8')] + e3 + [Ev('e3done')] + F_p2setup())
    def t3check(sp):
        a0, a1 = AF(sp, 0), AF(sp, 1)
        def ld():
            L = []
            for mt in range(2):
                off = ((sp & 3) * 5 + 3) * 1024
                L += [I(f's_add_u32 s{S_PT}, s{S_A + mt}, {off & ~4095}'),
                      I(f'buffer_load_dwordx4 {vr(AF(sp, mt), 4)}, v{V_L16}, {WS}, s{S_PT} offen offset:{off & 4095} sc1')]
            return L
        ck = lambda: [I(f'v_max3_u32 v3, v{a0}, v{a0+1}, v{a0+2}'), I(f'v_max3_u32 v6, v{a0+3}, v{a1}, v{a1+1}'),
                      I(f'v_max3_u32 v3, v3, v{a1+2}, v{a1+3}'), I('v_max_u32 v3, v3, v6'), I('v_cmp_eq_u32 vcc, -1, v3')]
        g = retry_group(ld, ck)
        return [Delay(cfg.get('t3d', 7))] + g + [Ev(f't3ok{sp}')]
    for sp in range(16, 20): at(('P1', sp - 1), lambda sp=sp: t3check(sp))
    at(('P1', cfg.get('pp', 10)), lambda: poll([I(f's_and_b32 s{S_PT}, s2, 0xfc'), I(f's_lshl_b32 s{S_PT}, s{S_PT}, 7'), I(f's_add_u32 s{S_PT}, s{S_PT}, {F4_OFF}')],
                                               2, 'pook', False, False, [Delay(28)], 3, 6) + [Need('e3done')] + F_cwrite() + [Ev('cwa')])
    at(('P1', 19), lambda: [Delay(5)] + [y for lt in range(2, 7) for y in F_cw2([lt]) + [Delay(3)]] + [Ev('cw6')])
    at(('P2a', 0), lambda: F_cw2(range(7, 9)) + [I(f'v_xor_b32 v{r_}, 0x1000, v{r_}') for r_ in (12, 13, 14)] + [Ev('cwb')])
    if not cfg.get('fastsend', 1): at(PB, lambda: F_send())
    TT = acc1[0]
    at(('P2b', 2), lambda: [Need('sent'), I(f'v_xor_b32 v{TT}, 0x1000, v{cmb(8)[0]}'), I(f'ds_write_b128 v{TT}, {vr(ACC2(0,1),4)} offset:{cmb(8)[1]}', tok='c0w'), Ev('c0w')])
    at(('P2b', 6), lambda: [I(f'ds_read_b128 {vr(ACC2(0,1),4)}, v{cmb(8)[0]} offset:{cmb(8)[1]}'), I('v_mul_f32 v15, v15, v15'), Delay(3)]
       + [I(f'v_add_f32 v{ACC2(0,0)+r}, v{ACC2(0,0)+r}, v{ACC2(0,1)+r}') for r in range(4)] + [Ev('c0done')])
    TW = acc1[2]
    TB0 = (0 if free[7] >= 4 else 4) * SLOT
    tadr = [I(f's_lshl_b32 s{S_CNT}, s{S_W1K}, 2'), I(f's_add_u32 s{S_CNT}, s{S_CNT}, {TB0}'),
            I(f'v_bfe_u32 v{TW}, v{V_L16}, 4, 4'), I(f'v_mul_u32_u24 v{TW}, 208, v{TW}'), I(f'v_bfe_u32 v{TW+3}, v{V_L16}, 8, 2'),
            I(f'v_lshl_add_u32 v{TW}, v{TW+3}, 4, v{TW}'), I(f'v_add_u32 v{TW}, s{S_CNT}, v{TW}'),
            I(f'v_lshrrev_b32 v{TW+2}, 6, v{V_L16}'), I(f'v_mul_u32_u24 v{TW+2}, 208, v{TW+2}'), I(f'v_add_u32 v{TW+2}, s{S_CNT}, v{TW+2}'),
            I(f'v_bfe_u32 v{TW+3}, v{V_L16}, 4, 2'), I(f'v_lshl_add_u32 v{TW+1}, v{TW+3}, 5, v{TW+2}'), I(f'v_lshl_add_u32 v{TW+2}, v{TW+3}, 4, v{TW+2}')]
    at(('P2b', cfg.get('rcv', 9)), lambda: rloads() + tadr + [Ev('rcv')])
    p5 = pollh(1, 'h5ok', [], 3, 6); p6 = pollh(2, 'h6ok', [], 3, 6)
    P5 = cfg.get('p5', 3); P6 = cfg.get('p6', 7); F6 = cfg.get('f6', 1)
    front2 = {SO[('S4e', K4)]: lambda: setflag(S_FL, HS, ['h2_0_0', 'h2_1_0', 'p3_0', 'p3_1'], V_A, V_DMA) + setflag(S_F3S, F4_OFF - F3_OFF, [], V_A, V_DMA)[5:] + [Ev('f5')],
              SO[('P1', F6)]: lambda: setflag(S_FL, 2*HS, ['h4_0_0', 'h4_1_0', 'ol'], 3, 6),
              SO[('P1', P5)]: lambda: p5[:-4], SO[('P1', P5 + 2)]: lambda: p5[-4:], SO[('P1', P6)]: lambda: p6[:-4], SO[('P1', P6 + 2)]: lambda: p6[-4:]}
    assert F6 < P5 and P5 + 2 < P6 and P6 + 2 <= cfg.get('pp', 10)
    front = {SO[('S1d', K1)]: lambda: F_csx2() + [Ev('csx')], SO[('S2', 0)]: lambda: [Need('l0issued')] + F_dmah(V_DMA, V_TH + 1)}
    front.update(front2)
    inline = {}
    front[SO[('S1a', K1 + 1)]] = lambda: [Need('setup1'), Delay(2)] + cswrite(CSA, 0, ONES) + [Ev('csw0')]
    front[SO[('S4a', CA_END + 1)]] = lambda: cswrite(CSA, 2, ONES) + [Ev('csw2')]
    front[SO[('S4d', CB_END + 1)]] = lambda: cswrite(T1[1], 3, T1[0]) + [Ev('csw3')]
    must = {('S1b', K1): ['stats', 'csw0'], ('S4b', K3): ['csw2'], ('S4e', K4): ['csw3'], ('S2', 0): ['csx'], WXF: ['wxst1'], ('S3', 0): ['u01free'], ('S3', 17): ['trh'],
            ('S4', 0): ['rdone', 'ones1'], KP: ['qkvdone'],
            ('S4c', 0): ['u4free2', 'published', 'ones2', 'e2b'], KO: ['gathered'], ('P1', 0): ['odone', 'e2done', 'f5'] + (['e4a'] if cfg.get('e4a', 0) else []), ('P2a', 0): ['cw6'], PB: ['cwb'], ('P2b', 6): ['c0w']}
    for sp in range(16, 20): must[('P1', sp)] = [f't3ok{sp}', 'cwa']
    must = {SO[k]: v for k, v in must.items()}
    b1 = sq_txt[-1].split('\n'); cut = [k for k, l in enumerate(b1) if f's_cselect_b32 s{S_F3S},' in l][0] + 1
    savail = {SO[('S1', 0)]: lambda: [Need('gissued')] + sgroups('\n'.join(b1[:cut] + sqa)) + [Ev('setup0')] + sgroups(sq_txt[0]) + [Ev('setup1')],
              SO[('S2', 0)]: lambda: sgroups('\n'.join(sq_txt[1:-1])) + [Ev('rsetup')] + sgroups('\n'.join(b1[cut:])) + [Ev('setup1b')],
              SO[('S4', 0)]: lambda: [Need('xissued'), Need('rdone')] + F_setup2()}
    bar_extra = {SO[WXF]: ['wx0', 'wx1', 'wc0', 'wc1'], SO[('S1b', K1)]: ['cs0'], SO[('S3', 0)]: ['cs1'],
                 SO[KP]: [f'kva{i}' for i in range(4)], SO[('S4', 0)]: ['w2a0', 'w2a1', 'w2a2', 'kvpo'],
                 SO[('S4b', K3)]: ['cs2'], SO[KO]: ['kvb0'], SO[('S4e', K4)]: ['cs3'] + [f'po{p}' for p in range(4)],
                 SO[PB]: [f'cw{lt}' for lt in range(2, 9)], SO[('P2b', 6)]: ['c0w']}
    for k in bar_extra: assert k in bars, steps[k]

    fill = []; sfill = []; xfill = []
    st.gap = 0; st.delay_until = 0; st.cur = -99; st.ta = 0.0; st.adv = None; st.armed = None; st.force = False
    MEMSP = cfg.get('memsp', {})
    def memsp(s):
        if s < cfg.get('fasts', 0): return cfg.get('fastsp', 2.0)
        return MEMSP.get(steps[s][0][:2], {'S1': 3.8, 'P1': 4.0, 'S4': 4.0}.get(steps[s][0][:2], 4.5))
    def isI(x, kinds): return isinstance(x, I) and x.kind in kinds
    def housekeeping(force=False):
        while fill:
            x = fill[0]
            if isinstance(x, Ev): (pending if x.bar else events)[x.name] = st.gap; fill.pop(0)
            elif isinstance(x, Need):
                if x.name in events and not (x.name.endswith('issued') and events[x.name] > st.gap - 4): fill.pop(0)
                else:
                    assert not force, ('blocked on', x.name)
                    return False
            elif isinstance(x, Delay):
                if x.n >= 0:
                    x.until = st.gap + x.n; x.n = -1
                if force or st.gap >= x.until: fill.pop(0)
                else: return False
            else: return True
        return False
    def slots(seq):
        t = 0; lastv = -10; first = True
        for x in seq:
            if isinstance(x, Wait): t += 1; continue
            if first: first = False; t = 1; continue
            if x.kind in ('valu', 'trans'):
                t = max(t, 2); t += x.cost; lastv = t - 1
            elif x.kind in ('ds_r', 'ds_w', 'vm_ld', 'vm_st', 'vm_dma'):
                t = max(t, 2, lastv + 3); t += 1
            else: t += x.states()
        return t
    st.tnext = 0
    def mem_ready(e, s):
        if e['ordr'] == 't' and st.gap < st.tnext: return False
        if e['step'] > s or any(v not in events or events[v] > st.gap - (4 if v.startswith('srd') else 0) for v in e['ev']): return False
        n = e['item']
        if n is not None and IT_L1 < n < IT_W2 and st.gap < issued.get(n - 1, -99) + cfg.get('l1sp', 12): return False
        if n is not None and prev_of(n) is not None and prev_of(n) not in released: return False
        return True
    leads = {}; sissue = {f's{k}_1': -30 for k in range(PS)}; st.nx = 2
    if GP >= 0:
        sissue.update({'sg0_1': -20, 'sg1_1': -20}); events['gissued'] = -9
    def flush_armed():
        g = st.armed or []; st.armed = None
        return g
    def pop_mem(s, win=None):
        if st.armed: return flush_armed()
        if sfill and sfill[0] is st.adv:
            if win is None: return None
            return sfill.pop(0)
        blocked = set()
        for k in range(min(win or cfg.get('ooo', 24), len(memq))):
            e = memq[k]
            if e['ordr'] not in blocked and mem_ready(e, s):
                memq.pop(k)
                if e['item'] is not None: issued[e['item']] = st.gap
                if e['by'] is not None: leads.setdefault(e['by'], []).append(st.gap)
                g = e['mk']()
                for x in g:
                    if x.tok and x.tok[0] == 's': sissue[x.tok] = st.gap
                if all(n in issued for n in range(IT_R, IT_Q)): events.setdefault('rissued', st.gap)
                if all(n in issued for n in range(IT_Q, IT_SCR)): events.setdefault('xissued', st.gap)
                if all(n in issued for n in range(18)): events.setdefault('l0issued', st.gap)
                if f's{len(stg)-1}_1' in sissue: events.setdefault('rxinit', st.gap)
                if 'sg1_1' in sissue: events.setdefault('gissued', st.gap)
                return g
            if e['ordr']: blocked.add(e['ordr'])
        return None
    def vcost(x, s):
        c = memsp(s)
        if x.op.endswith('x4'): return c
        if x.op.endswith('x2'): return c
        return c / 2
    VM = ('vm_ld', 'vm_st')
    def gap(m, shadow, rd, s, quiet=False):
        st.gap += 1
        budget = 2
        rds = [x for x in rd if x.kind == 'salu']; rdv = [x for x in rd if x.kind == 'valu']; rdm = [x for x in rd if x.kind == 'ds_r']
        head = shadow + rds; val = list(rdv); budget -= len(rdv)
        sal = []; mem = []; fre = []; post = []; later = None; first_mem = False
        if not quiet:
            hk = housekeeping()
            fvm = hk and (isI(fill[0], VM) or (isI(fill[0], ('salu',)) and len(fill) > 1 and isI(fill[1], VM)))
            if fvm and st.armed: fvm = False
            if fvm:
                x = fill[0] if isI(fill[0], VM) else fill[1]
                if st.gap >= st.ta - cfg.get('fslack', 6) or not x.op.endswith('x4'):
                    if fill[0] is not x: fre.append(fill.pop(0))
                    mem.append(fill.pop(0))
            while st.nx < 18 and not xfill:
                k = spos[('x', st.nx)]
                if f's{k}_1' in sissue and st.gap - sissue[f's{k}_1'] >= cfg.get('lag', 45) and (st.nx < 16 or 'nonce' in events):
                    if cfg.get('verbose'): print('   x pair', st.nx, 'early read at gap', st.gap)
                    xfill.extend([xread(st.nx, 0), xread(st.nx, 1), Ev(f'srd{k}')]); st.nx += 1
                else: break
            for i_ in range(2):
                if f'sg{i_}_1' in sissue and st.gap - sissue[f'sg{i_}_1'] >= cfg.get('glag', 50): events.setdefault(f'gl{i_}', st.gap)
            if evfront and evfront[0][0] in events and (evfront[0][1] is None or evfront[0][1] in events) and not mem:
                k = 0
                while k < len(fill) and (isI(fill[k], ('vm_st', 'vm_ld')) or isinstance(fill[k], list) or (isinstance(fill[k], Delay) and k + 1 < len(fill) and isinstance(fill[k+1], list))): k += 1
                fill[k:k] = evfront.pop(0)[2]()
            if not mem and xfill and len(rdm) < 2 and not st.armed:
                x = xfill.pop(0); mem.append(x)
                while xfill and isinstance(xfill[0], Ev): events[xfill.pop(0).name] = st.gap
            if st.armed and not mem and (st.force or (len(rdm) < 2 and not (cfg.get('rr', 1) and rdm))):
                mem.append(st.armed[0]); first_mem = True
                if st.armed[1:]: later = st.armed[1:]
                st.armed = None
            elif not st.armed and not mem and st.gap + 1 >= st.ta and not (hk and steps[s][0] != 'S1' and any(isI(x, VM) for x in fill[:3])):
                g = pop_mem(s)
                if g:
                    k = [q for q, x in enumerate(g) if x.kind.startswith('vm')][0]
                    fre += [x for x in g[:k] if x.kind != 'nop']; st.armed = g[k:]
            big = any(x.kind.startswith('vm') and (x.op.endswith('x4') or x.op.endswith('x2')) for x in mem)
            if not (big and cfg.get('vmq', 1)) and not (fvm and mem) and not (len(rdm) + len(mem) >= 2 and steps[s][0] == 'S1'):
                if not head and housekeeping() and isI(fill[0], ('salu',)): head.append(fill.pop(0))
                while housekeeping() and isI(fill[0], ('valu', 'trans')) and fill[0].cost <= budget:
                    x = fill.pop(0); budget -= x.cost; val.append(x)
                if budget == 1 and housekeeping() and isI(fill[0], ('trans',)):
                    for k in range(1, min(8, len(fill))):
                        x = fill[k]
                        if not isI(x, ('valu', 'trans')): break
                        if x.kind == 'valu' and not any((x.rd & y.wr) or (x.wr & (y.rd | y.wr)) for y in fill[:k]):
                            val.append(fill.pop(k)); budget -= 1; break
                if not mem:
                    while housekeeping() and isI(fill[0], ('salu',)) and len(sal) < 2 and not (len(fill) > 1 and isI(fill[1], VM)):
                        sal.append(fill.pop(0))
                    while housekeeping() and isI(fill[0], ('ds_r', 'ds_w')) and len(mem) < 2 - len(rdm): mem.append(fill.pop(0))
            for x in mem:
                if x.kind.startswith('vm'): st.ta = max(st.ta, st.gap - cfg.get('credit', 4)) + vcost(x, s)
            room = (0 if head else 1) + 2 - len(sal) - len(fre) - len(post)
            if big or len(rdm) + len(mem) >= 2: room = min(room, (0 if head or fre else 1) + (2 - len(sal) - len(fre) if val else 0))
            pre = []
            while sfill and room > 0:
                x = sfill[0]
                if isinstance(x, Ev): events[x.name] = st.gap; sfill.pop(0); continue
                if isinstance(x, Need):
                    if x.name in events and events[x.name] < st.gap - 4 and not st.armed and not first_mem: sfill.pop(0); continue
                    break
                n = len(x) if isinstance(x, list) else 1
                if n > room and (room < 2 or pre): break
                sfill.pop(0); room -= n
                pre.append(x)
            if not head and pre and not isinstance(pre[0], list): head.append(pre.pop(0))
            if not head and fre: head.append(fre.pop(0))
            for x in pre: sal += x if isinstance(x, list) else [x]
        seq = [m] + head + (val + sal + fre + rdm + mem) + post
        if later: sfill.insert(0, later); st.adv = later
        if not quiet and not mem and housekeeping() and isinstance(fill[0], list): seq += fill.pop(0)
        if len(val) > len(rdv): st.cur = st.gap
        if not quiet:
            mg = MINGAP if st.gap - st.cur < 6 else cfg.get('padq', 5)
            if seq[-1] in mem and seq[-1].kind.startswith('vm'): mg -= 2
            if mg > slots(seq):
                lw = cfg.get('latew', 1) and shadow and isinstance(seq[1], Wait)
                if lw: w_ = seq.pop(1)
                n_ = mg - slots(seq) - (1 if lw else 0)
                if n_ > 0: seq.append(I(f's_nop {n_ - 1}'))
                if lw: seq.append(w_)
        if not quiet:
            if housekeeping() and isI(fill[0], ('mfma',)): seq += gap(fill.pop(0), [], [], s)
        return seq
    def drain_until(evs):
        L = []
        while any(e not in events for e in evs):
            assert fill, evs
            if housekeeping(force=True):
                x = fill.pop(0)
                if isinstance(x, list): L += x
                else: L.append(x)
        if L and cfg.get('verbose'): print('  drained', len(L), 'instrs for', evs)
        return L
    M = []
    def barrier_pre(b):
        L = []
        for n in need[b]:
            while n not in issued:
                g = pop_mem(b - 1, 40)
                assert g, ('item not issuable', n, steps[b], [(e['item'], e['ev'], e['step']) for e in memq[:6]])
                if cfg.get('verbose'): print('  forced issue before', steps[b], 'for item', n)
                L += g
        if cfg.get('verbose'):
            print('bar', steps[b], 'gap', st.gap, 'need', need[b], 'lead', [st.gap - issued[n] for n in need[b]])
        L.append(Wait([f'it{n}' for n in need[b]] + bar_extra.get(b, [])))
        return L
    def barrier_post(b):
        events.update(pending); pending.clear()
        if b == SO[RS]: events['rland'] = st.gap
        for n in list(last_use) + list(rel_ev):
            if n in rel_ev:
                if rel_ev[n] in events: released.add(n)
            elif last_use[n] < b: released.add(n)
    tsph = cfg.get('tsph', ['S2', 'S4', 'S4c', 'P1'])
    for i in range(NF):
        s = frags[i]['step']
        if i == 0:
            M += barrier_pre(0) + [I('s_barrier')] + ts('s1start')
            for k in range(D):
                r0, r1 = reads(k); M += r0 + r1
        if first_frag[s] == i:
            if steps[s] == ('S2', 0): assert 'rissued' in events
            if steps[s] == ('S1c', K1): tr1_last = st.gap
            if steps[s] == PB and cfg.get('fastsend', 1):
                fill.extend(F_send()); M += drain_until(['sent'])
            if s in front:
                k = 0
                while k < len(fill) and (isI(fill[k], ('vm_st', 'vm_ld')) or isinstance(fill[k], (Delay, list))): k += 1
                fill[k:k] = front[s]()
            if s in savail: sfill.extend(savail[s]())
            for f in avail.get(s, []): fill.extend(f())
            for L_ in xrd.get(s, []):
                for p in (2 * L_, 2 * L_ + 1):
                    if p < st.nx: continue
                    assert p < 16 or 'nonce' in events
                    st.nx = p + 1
                    k = spos[('x', p)]
                    if st.armed and st.armed[0].tok in (f's{k}_0', f's{k}_1'): M += flush_armed()
                    while f's{k}_1' not in sissue:
                        while xfill:
                            x = xfill.pop(0)
                            if isinstance(x, Ev): events[x.name] = st.gap - 4
                            else: M.append(x)
                        g = pop_mem(s, 40)
                        assert g, ('staging not issuable', k, steps[s])
                        if cfg.get('verbose'): print('  forced staging issue', k, steps[s])
                        M += g
                    if cfg.get('verbose'): print('   x pair', p, 'read at', steps[s], 'lead', st.gap - sissue.get(f's{k}_1', -1))
                    xfill.extend([xread(p, 0), xread(p, 1), Ev(f'srd{k}')])
        if steps[s] == ('S1d', 17) and first_frag[s] == i - 0 and False: pass
        ms = mfmas(i)
        r0, r1 = reads(i + D) if i + D < NF else ([], [])
        ns = frags[i + 1]['step'] if i + 1 < NF else None
        nxt_first = ns is not None and first_frag[ns] == i + 1
        shadow = [Wait(rtoks(i + 1))] if i + 1 < NF else []
        if len(ms) == 2:
            if cfg.get('bb', 1) and nxt_first and ns in bars:
                st.force = True; M += gap(ms[0], [], r0 + r1, s); lastrd = []; st.force = False
            elif cfg.get('rr', 1) and st.armed and r1:
                st.force = True; M += gap(ms[0], [], r0 + r1, s); lastrd = []; st.force = False
            else:
                M += gap(ms[0], [], r0, s); lastrd = r1
        else: lastrd = r0 + r1
        if nxt_first and st.armed:
            x = st.armed[0]
            if (ns in bars and x.tok in [f'it{n}' for n in need[ns]]) or (x.kind == 'vm_ld' and ns in leads) or steps[ns] in (('S2', 0), ('S1a', K1)): M += flush_armed()
        if nxt_first:
            if steps[ns][0] in ('S1', 'S1a'):
                nd = set().union(*[{('v', XF(steps[ns][1], mt) + r) for r in range(4)} for mt in range(2)])
                while xfill and (steps[ns][0] == 'S1a' or any(isinstance(y, I) and (y.wr & nd) for y in xfill)):
                    x = xfill.pop(0)
                    if isinstance(x, Ev): events[x.name] = st.gap
                    else: M.append(x)
            if 'xdone' not in events and ns in bars and f'srd{len(stg)-1}' in events:
                M.append(Wait([f'sr{len(stg)-1}_1'])); events['xdone'] = st.gap
            if ns in must: M += drain_until(must[ns])
            if ns in inline: assert 'setup1' in events
            if ns in inline: M += [x for x in inline[ns]() if isinstance(x, I)]
            while any(e['by'] is not None and e['by'] <= ns for e in memq):
                g = pop_mem(s, 60)
                assert g, ('load not issuable', steps[ns], [(e['item'], e['ev'], e['step']) for e in memq[:8]])
                if cfg.get('verbose'): print('  forced load before', steps[ns])
                M += g
            if cfg.get('verbose') and ns in leads: print('   step', steps[ns], 'gap', st.gap, 'reg-load lead', [st.gap - x for x in leads[ns]])
        if nxt_first and ns in bars:
            M += barrier_pre(ns)
            M += gap(ms[-1], [I('s_barrier')] + shadow, lastrd, s, quiet=True)
            barrier_post(ns)
        else:
            M += gap(ms[-1], shadow, lastrd, s)
        if nxt_first and steps[ns][0] != steps[s][0] and steps[ns][0] in tsph: M += ts(steps[ns][0])
        if nxt_first and list(steps[ns]) == cfg.get('holdat'):
            M += IL(f"""
            s_mov_b32 s99, 20000
            L_hold:
            s_memrealtime s[88:89]
            s_waitcnt lgkmcnt(0)
            s_lshl_b32 s88, s88, 3
            s_sub_u32 s88, s88, s{S_NON}
            s_and_b32 s88, s88, 0x7fffffff
            s_sub_u32 s99, s99, 1
            s_cmp_eq_u32 s99, 0
            s_cbranch_scc1 L_holdx
            s_cmp_lt_u32 s88, {cfg['hold'] * 800}
            s_cbranch_scc1 L_hold
            L_holdx:
            """)
        if nxt_first and list(steps[ns]) in cfg.get('tsat', []): M += ts(f'@{steps[ns][0]}.{steps[ns][1]}')
    M += flush_armed()
    assert not memq, [(e['item'], e['ev']) for e in memq]
    M += drain_until(['rcv'])
    assert not fill and not sfill, (fill, sfill)
    M += ts('mainend')
    drop = cfg.get('drop', [])
    if drop:
        gone = set(); M2 = []
        for k, x in enumerate(M):
            if isinstance(x, I) and not x.raw and k > 3 and (x.kind in drop or ('xrd' in drop and x.tok and x.tok.startswith('sr')) or ('nop' in drop and x.kind == 'nop' and False)):
                if x.tok: gone.add(x.tok)
                continue
            M2.append(x)
        for x in M2:
            if isinstance(x, Wait): x.toks = [t for t in x.toks if t not in gone]
            else: x.waits = [t for t in x.waits if t not in gone]
        if 'vmwait' in drop:
            for x in M2:
                if isinstance(x, Wait): x.toks = [t for t in x.toks if not t.startswith('it')]
                else: x.waits = [t for t in x.waits if t.startswith('sr')]
        M = M2
    P.ext(M)
    TT = AF(3, 0)
    r7, o7 = cmb(7)
    P(f'v_xor_b32 v{TT+5}, 0x1000, v{r7}')
    P('s_mov_b32 s24, 0xffff0000')
    P(f'ds_write_b128 v{TT+5}, {vr(ACC2(1,1),4)} offset:{o7}', tok='c1w')
    def unpk(src):
        P(f'v_lshlrev_b32 v{TT}, 16, v{src}'); P(f'v_and_b32 v{TT+1}, s24, v{src}')
        P(f'v_lshlrev_b32 v{TT+2}, 16, v{src+1}'); P(f'v_and_b32 v{TT+3}, s24, v{src+1}')
    def addpk(dst, src):
        unpk(src)
        for r in range(4): P(f'v_add_f32 v{dst+r}, v{dst+r}, v{TT+r}')
    def rcheck():
        a, b = TT + 6, TT + 7
        L = [I(f'v_max3_u32 v{a}, v{R}, v{R+1}, v{R+2}'), I(f'v_max3_u32 v{b}, v{R+3}, v{R+4}, v{R+5}')]
        for k in range(6, 18, 4):
            L += [I(f'v_max3_u32 v{a}, v{a}, v{R+k}, v{R+k+1}'), I(f'v_max3_u32 v{b}, v{b}, v{R+k+2}, v{R+k+3}')]
        return L + [I(f'v_max_u32 v{a}, v{a}, v{b}'), I(f'v_cmp_eq_u32 vcc, -1, v{a}')]
    P.wait(['c1w'])
    P('s_barrier')
    P(f'ds_read_b128 {vr(ACC2(1,1),4)}, v{r7} offset:{o7}')
    g_ = retry_group(rloads, rcheck, sleep=1); P.ext(g_[:-2] + g_[-1])
    P.ext(ts('recv'))
    for k, (lt, rr) in enumerate(((0, lambda p: R+4*p), (8, lambda p: R8+2*p), (1, lambda p: R+4*p+2))):
        a = ACC2(lt, 0)
        if lt == 1:
            for r in range(4): P(f'v_add_f32 v{a+r}, v{a+r}, v{ACC2(1,1)+r}')
        for p in range(3): addpk(a, rr(p))
        P(f'ds_write_b128 v{TW}, {vr(a,4)} offset:{ {0: 0, 1: 64, 8: 128}[lt] }')
    Y = AF(5, 0)
    P(f'ds_read_b128 {vr(Y+8,4)}, v{TW+2} offset:128')
    P(f'ds_read_b128 {vr(Y,4)}, v{TW+1}')
    P(f'ds_read_b128 {vr(Y+4,4)}, v{TW+1} offset:16')
    for y, xr in ((Y + 8, 0), (Y, 8), (Y + 4, 10)):
        unpk(xr)
        for r in range(4): P(f'v_fma_f32 v{y+r}, v{y+r}, v15, v{TT+r}')
        d = {Y + 8: Y + 8, Y: Y, Y + 4: Y + 2}[y]
        P(f'v_cvt_pk_bf16_f32 v{d}, v{y}, v{y+1}'); P(f'v_cvt_pk_bf16_f32 v{d+1}, v{y+2}, v{y+3}')
        if y == Y + 8: P(f'buffer_store_dwordx2 {vr(Y+8,2)}, v{VSP+1}, s[{S_OUT}:{S_OUT+3}], s{S_O8} offen {cfg.get("ost", "")}')
    P(f'buffer_store_dwordx4 {vr(Y,4)}, v{VSP}, s[{S_OUT}:{S_OUT+3}], s{S_O} offen {cfg.get("ost", "")}')
    if TS:
        P('s_waitcnt vmcnt(0)')
        P.ext(ts('end'))
        P('s_memrealtime s[88:89]\ns_waitcnt lgkmcnt(0)')
        for k in range(st.nts if not cfg.get('cnt') else 11): P(f'v_writelane_b32 v8, s{S_TS + k}, {k}')
        P(f"""
        v_writelane_b32 v8, s101, 30
        v_writelane_b32 v8, s88, 31
        v_lshrrev_b32 v9, 2, v{V_L16}
        v_mov_b32 v10, s{S_OOB}
        v_cmp_gt_u32 vcc, 0x80, v9
        v_cndmask_b32 v9, v10, v9, vcc
        s_lshl_b32 s24, s2, 3
        s_add_u32 s24, s24, s{S_WAVE}
        s_lshl_b32 s24, s24, 7
        s_add_u32 s24, s24, {TS_OFF}
        buffer_store_dword v8, v9, {WS}, s24 offen
        """)
    if cfg.get('until'):
        P(f"""
        s_waitcnt vmcnt(0)
        s_mov_b32 s26, 20000
        L_spin:
        s_memrealtime s[24:25]
        s_waitcnt lgkmcnt(0)
        s_lshl_b32 s24, s24, 3
        s_sub_u32 s24, s24, s{S_NON}
        s_and_b32 s24, s24, 0x7fffffff
        s_sub_u32 s26, s26, 1
        s_cmp_eq_u32 s26, 0
        s_cbranch_scc1 L_done
        s_cmp_lt_u32 s24, {cfg['until'] * 800}
        s_cbranch_scc1 L_spin
        """)
    P('L_done:')
    P('s_endpgm')
    used = {x.text.split()[1] for x in P.p if isinstance(x, I) and x.op == 's_cbranch_vccnz'}
    for l, g in st.slowmap.items():
        if f'L_sl{l}' in used: P.ext(g)
    q, n = P.finish()
    if cfg.get('verbose'):
        from collections import Counter
        print('nops', n, Counter(x.kind for x in q))
        print('events', events)
    return kernel_text(name, q, 256, 102), st.tsn

HEADER = """; Fused kernel: [QKV | gate/up] GEMM on raw x with LayerNorm applied as a rank-1 correction, linear attention + GEGLU,
; down/out GEMM (split-K 4, exchanged between workgroups) + residual.
; Kernarg (80 bytes): 0 A_x, 8 A_wqkv, 16 A_wo, 24 B_x (unused), 32 w_gate, 40 w_up, 48 w_down, 56 out, 64 debug, 72 ws
; @launch grid=(256,1,1) block=(512,1,1) lds=163840
"""
if __name__ == '__main__':
    out = sys.argv[1]
    cfg = json.loads(sys.argv[2]) if len(sys.argv) > 2 else {}
    name = 'parallel_sum__linear_attn_block__geglu_ffn__prompt_kernel'
    (body, kd), tsn = gen(name, cfg)
    s = HEADER + (f'; ts: {" ".join(tsn)}\n' if tsn else '')
    s += '.amdgcn_target "amdgcn-amd-amdhsa--gfx950"\n.text\n' + body + '.section .rodata,"a"\n.p2align 6\n' + kd
    open(out, 'w').write(s)
```

```python
import sys, json
sys.path.insert(0, 'work')
from dsl import *

OOB = 0x40000000
ST_OFF = 0
CSP_OFF = 0x80000
WX_OFF = 0x240000; WX_J = 112 * 1024
A2_OFF = 0x600000; A2_MT = 160 * 1024
A2L_OFF = 0x1A00000
KVP_OFF = 0x1A40000
EX_OFF = 0x1B00000
EX8_OFF = 0x2200000
W2_OFF = 0x2300000; W2_S = 192 * 1024
F2_OFF = 0x2900000
F3_OFF = 0x2910000
F4_OFF = 0x2920000
TS_OFF = 0x2A00000
FL_OFF = 0x2B00000
WS_SIZE = 0x2C00000
HS = 262144

LDS_BYTES = 163840
NSLOT = 19; SLOT = 8192
MISC = NSLOT * SLOT
IT_L0 = 0; IT_R = 18; IT_Q = 21; IT_X = 26; IT_SCR = 35; IT_PK = 36; IT_L1 = 37; IT_W2 = 55; NW2 = 48
NITEM = IT_W2 + NW2

V_TR = 0; V_TH = 2; V_L16 = 4; V_LB = 5; V_DMA = 6; V_A = 1; V_T = 8; V_WF = 16; V_ACC = 32; V_XF = 112
V_XD = 12; V_XR = 14
BN = [12, 14]; C0 = [13, 15]; C1 = [0, 7]
def XF(ks, mt): return V_XF + (ks * 2 + mt) * 4
def ACC(u, nt, mt): return V_ACC + 16 * u + (nt * 2 + mt) * 4
def U(u): return [V_ACC + 16 * u + 4 * k for k in range(4)]

S_RED = 3
S_W = 4; S_WS = 8; S_R = 12; S_XS = 16; S_OUT = 20
S_T = 24
S_W1K = 32; S_A2 = 33; S_MW = 34; S_L2E = 35; S_EPS = 36; S_W256 = 37; S_OOB = 38; S_WAVE = 39
S_M4 = 40; S_G2 = 42; S_NMS = 44; S_RS = 45; S_KVST = 46; S_KVLD = 47; S_A2L = 48; S_EX = 49; S_E8R = 50
S_FH = 51; S_FL = 52; S_CNT = 53; S_NON = 54; S_F2S = 55; S_F2P = 56; S_F3S = 57; S_PT = 58
S_XN = 59; S_WX = 60; S_XST = 61; S_GP = 62; S_RSRC = 67; S_WXD = 68; S_OP = 70
S_A = 62; S_W2 = 64; S_W2K = 65; S_EXS = 66; S_E8S = 69; S_O = 59; S_O8 = 60; S_AL = 61; S_STK = 70
S_WO = 48; S_WD = 46; S_G1 = 72; S_G0 = 76
S_RDST = 80; S_LEFT = 83; S_RB = 84; S_J = 85; S_RX = 86; S_RW = 87
S_TS = 90

K0C = -2.0 * 0.7978845608028654 * 1.4426950408889634
K1C = K0C * 0.044715

class Ctx: pass
class Ev:
    def __init__(self, name, bar=False): self.name = name; self.bar = bar
class Delay:
    def __init__(self, n): self.n = n
class Need:
    def __init__(self, name): self.name = name

def gen(name, cfg):
    D = cfg.get('dist', 3)
    TS = cfg.get('ts', False)
    SPIN = cfg.get('spin', 100000)
    MINGAP = cfg.get('mingap', 6)
    ROT = cfg.get('rot', [0, 3, 6])
    RT = sum(ROT[k % len(ROT)] << (4 * k) for k in range(16))
    S_ROT = S_NMS
    NR = cfg.get('nr', 5)
    NL0 = NSLOT - 2 * NR
    XST = NL0 * SLOT
    WS = f's[{S_WS}:{S_WS+3}]'
    XS = f's[{S_XS}:{S_XS+3}]'
    P = Prog(); st = Ctx(); st.tmp = 0; st.ft = 0; st.nts = 0; st.lab = 0; st.tsn = []; st.slowmap = {}
    S_SPN = 1
    def stmp():
        st.tmp = (st.tmp + 1) % 6; return S_T + st.tmp
    def ftmp():
        st.ft = (st.ft + 1) % 2; return S_T + 6 + st.ft
    def ts(nm):
        if not TS or cfg.get('cnt'): return []
        if 'tsat' in cfg and nm not in ('start', 's1start', 'end') and not nm.startswith('@'): return []
        k = st.nts; st.nts += 1; st.tsn.append(nm)
        assert k < 11
        if cfg.get('both'):
            return [I('s_memrealtime s[88:89]'), I('s_waitcnt lgkmcnt(0)'), I(f's_and_b32 s{S_TS+k}, s88, 0xffff'), I('s_memtime s[88:89]'), I('s_waitcnt lgkmcnt(0)'),
                    I('s_lshl_b32 s88, s88, 14'), I('s_and_b32 s88, s88, 0xffff0000'), I(f's_or_b32 s{S_TS+k}, s{S_TS+k}, s88')]
        return [I(('s_memrealtime' if cfg.get('rt') else 's_memtime') + ' s[88:89]'), I('s_waitcnt lgkmcnt(0)'), I(f's_mov_b32 s{S_TS+k}, s88')]
    slow = []
    def retry_group(loads, check, w0only=False, sleep=1):
        st.lab += 1; l = st.lab
        g = [I(f'L_sl{l}:'), I('s_nop 7'), I(f's_mov_b32 s{S_SPN}, {SPIN}'), I(f'L_rt{l}:'), I(f's_sleep {sleep}')]
        if cfg.get('cnt'):
            c_ = S_TS + (l - 1) % 11; g += [I(f's_add_u32 s{c_}, s{c_}, {1 if l <= 11 else 1000}')]
        g += loads() + [I('s_waitcnt vmcnt(0)')] + check()
        g += [I(f's_sub_u32 s{S_SPN}, s{S_SPN}, 1'), I(f's_cmp_eq_u32 s{S_SPN}, 0'), I(f's_cbranch_scc1 L_bk{l}'), I('s_nop 4'),
              I(f's_cbranch_vccnz L_rt{l}'), I(f's_branch L_bk{l}')]
        st.slowmap[l] = raw(g)
        return check() + [Delay(1), [I(f's_cbranch_vccnz L_sl{l}'), I(f'L_bk{l}:')]]
    def IL(txt): return [I(l) for l in txt.strip().split('\n') if l.strip()]
    NLR = 6
    cyc = list(range(9, 19)) + [6, 7, 8] + list(range(4))
    stab = [n % NLR for n in range(18)] + [(NLR + k) % NSLOT for k in range(NSLOT)] + cyc + cyc[:13] + [4, 5]
    while len(stab) < NITEM: stab.append(stab[-NSLOT])
    PAIR = cfg.get('pair', 1)
    def L1it(h, k): return IT_L1 + (2 * k + h if PAIR else 9 * h + k)
    def L1hk(n): return (((n - IT_L1) & 1, (n - IT_L1) >> 1) if PAIR else divmod(n - IT_L1, 9))
    if PAIR:
        stab = stab[:IT_L1] + cyc + [cyc[0]]
        sa = [stab[L1it(0, k)] for k in range(1, 9)]; sb = [stab[L1it(1, k)] for k in range(9)]
        stab += sa + sb[:4] + [4, 5] + sb[4:]
        while len(stab) < NITEM: stab.append(stab[-NSLOT])
    def slot_of(n): return stab[n]
    def prev_of(n):
        for m in range(n - 1, -1, -1):
            if stab[m] == stab[n]: return m
        s = stab[n]
        return 'stage' if s >= NL0 else ('gst' if s >= NLR else None)
    SCR = slot_of(IT_SCR) * SLOT; KVS = SCR

    if TS: P('s_memrealtime s[88:89]\ns_waitcnt lgkmcnt(0)\ns_mov_b32 s101, s88')
    P.ext(ts('start'))
    if cfg.get('cnt'):
        for k in range(11): P(f's_mov_b32 s{S_TS+k}, 0')
    P('s_cmp_ge_u32 s2, 256')
    P('s_cbranch_scc1 L_done')
    P(f's_load_dwordx2 s[{S_XS}:{S_XS+1}], s[0:1], 0')
    P(f's_load_dwordx4 s[{S_G0}:{S_G0+3}], s[0:1], 32')
    B = V_ACC
    VL = B; VOOB = B + 1; VG = B + 2; VSR = B + 4
    CPRE = f"""
        s_getpc_b64 s[24:25]
        s_mov_b32 s26, L_done - L_cp
        L_cp:
        s_mov_b32 s27, 0x20000
        s_and_b32 s30, s2, 0xf8
        s_lshl_b32 s30, s30, 8
        v_lshlrev_b32 v{V_ACC+6}, 2, v0
        buffer_load_dword v{V_ACC+7}, v{V_ACC+6}, s[24:27], s30 offen
        """
    if cfg.get('cpre', 1) == 1: P(CPRE)
    P(f"""
    v_lshrrev_b32 v8, 6, v0
    v_bfe_u32 v{VG}, v0, 4, 2
    v_readfirstlane_b32 s{S_WAVE}, v8
    s_bfe_u32 s27, s2, 0x30003
    s_and_b32 s25, s2, 4
    s_lshr_b32 s26, s2, 6
    s_add_u32 s{S_RB}, s25, s26
    v_bfe_u32 v{VSR}, v0, 3, 3
    v_xor_b32 v9, v0, v{VG}
    v_and_b32 v9, 7, v9
    v_mul_u32_u24 v11, 72, v{VSR}
    v_add_lshl_u32 v{V_XD}, v9, v11, 4
    v_xor_b32 v{V_XD+1}, 64, v{V_XD}
    v_add_u32 v{V_XD+1}, {8*1152}, v{V_XD+1}
    s_lshl_b32 s24, s{S_RB}, 3
    s_add_u32 s24, s24, s{S_WAVE}
    s_mul_i32 s{S_XN}, s24, {32*1152}
    s_mul_i32 s{S_XST}, s{S_WAVE}, {NR*2048}
    s_add_u32 s{S_XST}, s{S_XST}, {XST}
    s_add_u32 s25, s27, s{S_RB}
    s_lshl_b32 s25, s25, 2
    s_mov_b32 s{S_RX}, {RT & 0xffffffff:#x}
    s_mov_b32 s{S_RW}, {RT >> 32:#x}
    s_lshr_b64 s[{S_RX}:{S_RW}], s[{S_RX}:{S_RW}], s25
    s_and_b32 s{S_ROT}, s{S_RX}, 15
    s_lshl_b32 s{S_RX}, s{S_ROT}, 7
    s_add_u32 s{S_XN}, s{S_XN}, s{S_RX}
    s_mov_b32 s{S_XS+2}, 2359296
    s_mov_b32 s{S_XS+3}, 0x20000
    """)
    PRO2 = f"""
    s_and_b32 s26, s2, 3
    s_lshl3_add_u32 s{S_J}, s26, s31
    s_mul_i32 s{S_RW}, s{S_ROT}, {64*9216}
    s_mov_b32 s{S_W+2}, 5308416
    s_mov_b32 s{S_W+3}, 0x20000
    s_lshl_b32 s{S_W1K}, s{S_WAVE}, 10
    v_lshrrev_b32 v8, 3, v0
    v_and_b32 v11, 0x13, v8
    v_lshrrev_b32 v9, 2, v0
    v_and_or_b32 v11, v9, 8, v11
    v_lshrrev_b32 v9, 4, v0
    v_and_or_b32 v11, v9, 4, v11
    v_mul_u32_u24 v11, 576, v11
    v_xor_b32 v8, v8, v0
    v_and_b32 v8, 6, v8
    v_and_or_b32 v8, v0, 1, v8
    s_cmp_eq_u32 s31, 3
    s_cselect_b32 s30, 31, 0
    s_add_u32 s30, s30, s{S_J}
    s_lshl_b32 s30, s30, 3
    v_add3_u32 v{V_DMA}, v11, v8, s30
    v_lshlrev_b32 v{V_DMA}, 4, v{V_DMA}
    s_cmp_ge_u32 s{S_WAVE}, 4
    s_cselect_b32 s{S_W}, s{S_G0+2}, s{S_G0}
    s_cselect_b32 s{S_W+1}, s{S_G0+3}, s{S_G0+1}
    """
    PRO3 = f"""
    s_load_dwordx2 s[{S_OUT}:{S_OUT+1}], s[0:1], 64
    s_load_dwordx2 s[{S_WS}:{S_WS+1}], s[0:1], 72
    s_load_dwordx2 s[{S_G1}:{S_G1+1}], s[0:1], 8
    s_load_dwordx2 s[{S_WO}:{S_WO+1}], s[0:1], 16
    s_load_dwordx2 s[{S_WD}:{S_WD+1}], s[0:1], 48
    s_load_dwordx2 s[{S_OP}:{S_OP+1}], s[0:1], 56
    s_memrealtime s[28:29]
    v_and_b32 v{VL}, 63, v0
    s_mov_b32 s{S_OOB}, {OOB}
    v_mov_b32 v{VOOB}, s{S_OOB}
    v_lshlrev_b32 v{V_L16}, 4, v{VL}
    s_lshl_b32 s26, s{S_RB}, 5
    s_add_u32 s26, s26, s{S_J}
    s_lshl3_add_u32 s31, s26, s{S_WAVE}
    s_mul_i32 s{S_RS}, s31, 1152
    s_lshl_b32 s{S_RX}, s{S_ROT}, 12
    s_add_u32 s{S_RX}, s{S_RX}, s{S_W1K}
    s_mov_b32 s{S_OUT+2}, 256
    s_mov_b32 s{S_OUT+3}, 0x20000
    v_cmp_eq_u32 vcc, 0, v0
    v_cndmask_b32 v10, v{VOOB}, 0, vcc
    s_waitcnt lgkmcnt(0)
    s_lshl_b32 s28, s28, 3
    s_or_b32 s28, s28, 0x80000000
    v_mov_b32 v11, s28
    """
    P('s_mov_b32 s31, s27\ns_waitcnt lgkmcnt(0)')
    def adv(reg, nextpair, total, unit):
        if nextpair == 9: return [I(f's_mul_i32 s{reg}, s{S_ROT}, {unit}')]
        if (9 - nextpair) in ROT:
            t = stmp()
            return [I(f's_cmp_eq_u32 s{S_ROT}, {9 - nextpair}'), I(f's_cselect_b32 s{t}, {total}, 0'), I(f's_sub_u32 s{reg}, s{reg}, s{t}')]
        return []
    def dma(n):
        L = [I(f's_add_u32 m0, s{S_W1K}, {slot_of(n) * SLOT}')]
        if n < 18:
            t = stmp()
            L += [I(f's_add_u32 s{t}, s{S_RW}, {n * 32 * 9216}'), I(f'buffer_load_dwordx4 v{V_DMA}, s[{S_W}:{S_W+3}], s{t} offen {cfg.get("wnt", "")} lds', tok=f'it{n}')]
            if n & 1: L += adv(S_RW, (n + 1) // 2, 576*9216, 64*9216)
        elif n < IT_Q:
            t = stmp()
            L += [I(f's_add_u32 s{t}, s{S_RSRC if not cfg.get("fakeR") else S_OOB}, {(n - IT_R) * 128}'),
                  I(f'buffer_load_dwordx4 v{U(4)[2]+1}, s[{S_R}:{S_R+3}], s{t} offen nt lds', tok=f'it{n}')]
        elif n < IT_SCR:
            t = stmp(); isq = n < IT_X
            L += [I(f's_add_u32 s{t}, s{S_WX}, s{S_RX}'),
                  I(f'buffer_load_dwordx4 v{V_L16}, {WS}, s{t} offen sc1 lds', tok=f'it{n}')]
            if n == IT_X - 1:
                L += [I(f's_add_u32 s{S_WX}, s{S_WX}, {40*1024}'), I(f's_lshl_b32 s{S_RX}, s{S_ROT}, 13'), I(f's_add_u32 s{S_RX}, s{S_RX}, s{S_W1K}')]
            else:
                wrap = (36 if isq else 72) * 1024
                L += [I(f's_add_u32 s{S_RX}, s{S_RX}, 8192'), I(f's_sub_u32 s{t}, s{S_RX}, {wrap}'), I(f's_cselect_b32 s{S_RX}, s{S_RX}, s{t}')]
        elif n < IT_W2:
            t = stmp()
            L += [I(f's_add_u32 s{t}, s{S_RW}, {L1hk(n)[0] * 64 + L1hk(n)[1] * 64 * 9216}'),
                  I(f'buffer_load_dwordx4 v{V_DMA}, s[{S_W}:{S_W+3}], s{t} offen {cfg.get("wnt", "")} lds', tok=f'it{n}')] + (adv(S_RW, L1hk(n)[1] + 1, 576*9216, 64*9216) if (not PAIR or L1hk(n)[0]) else [])
        else:
            t = stmp()
            L += [I(f's_add_u32 s{t}, s{S_W2K if n - IT_W2 in (35, 36, 47) else S_W2}, {(n - IT_W2) * 4096}'),
                  I(f'buffer_load_dwordx4 v{V_L16}, {WS}, s{t} offen sc1 lds', tok=f'it{n}')]
        return L
    GPOS = cfg.get('gpos', 8)
    stg = [('x', p) for p in range(18)]
    spos = {e: k for k, e in enumerate(stg)}
    VGA = U(4)[2]
    def sdma(k, h):
        kind, p = stg[k]
        w = [f'sr{k-NR}_0', f'sr{k-NR}_1'] if k >= NR else []
        t = stmp()
        L = [I(f's_add_u32 m0, s{S_XST}, {(k % NR) * 2048 + h * 1024}')]
        if kind == 'x':
            L += [I(f's_add_u32 s{t}, s{S_XN}, {(p >> 1) * 128 + (p & 1) * 18432}')]
            L += [I(f'buffer_load_dwordx4 v{V_XD+h}, {XS}, s{t} offen lds', tok=f's{k}_{h}', waits=w)]
            if (p & 1) and h and p < 17: L += adv(S_XN, (p + 1) // 2, 1152, 0)
        return L
    GL = [[6 * SLOT, 7 * SLOT], [8 * SLOT, MISC]]
    def gdma(p, h):
        t = stmp(); S = S_G0 if p == 0 else S_G1
        return [I(f's_add_u32 m0, s{S_W1K}, {GL[p][h]}'),
                I(f's_add_u32 s{t}, s{S_GP+p}, ' + (('0' if h == 0 else f's{S_GP+2}') if p == 0 else str(h * 4 * 3456))),
                I(f'buffer_load_dwordx4 v{VGA+p}, s[{S}:{S+3}], s{t} offen {cfg.get("gnt", "")} lds', tok=f'sg{p}_{h}')]
    def xread(p, d):
        k = spos[('x', p)]
        return I(f'ds_read_b128 {vr(XF(2*(p>>1)+d, p&1),4)}, v{V_XR+d} offset:{(k % NR) * 2048}', tok=f'sr{k}_{d}', waits=[f's{k}_0', f's{k}_1'])
    if cfg.get('tsp'): P.ext(ts('@karg'))
    P.ext(sdma(0, 0)); P.ext(sdma(0, 1))
    P(PRO2)
    P.ext(dma(0))
    P.ext(sdma(1, 0)); P.ext(sdma(1, 1))
    P.ext(dma(1))
    if cfg.get('cpre', 1) == 2: P(CPRE)
    P(PRO3)
    if cfg.get('tsp'): P.ext(ts('@b1'))
    PS = cfg.get('ps', 4)
    NPRE = cfg.get('npre', 4)
    PS0 = cfg.get('ps0', 2)
    for k in range(2, PS0):
        P.ext(sdma(k, 0)); P.ext(sdma(k, 1))
    P(f's_cmp_eq_u32 s2, 0\ns_cselect_b32 s29, 0, s{S_OOB}\nbuffer_store_dword v11, v10, s[{S_OUT}:{S_OUT+3}], s29 offen sc1')
    if cfg.get('dbgstart'):
        P(f's_lshl_b32 s29, s2, 2\ns_add_u32 s29, s29, 4\ns_cmp_lt_u32 s2, 15\ns_cselect_b32 s29, s29, s{S_OOB}\nbuffer_store_dword v11, v10, s[{S_OUT}:{S_OUT+3}], s29 offen sc1')
    VN2 = B + 16; VT3 = B + 17; VRW = B + 18
    P(f"""
    v_and_b32 v8, 3, v{VL}
    v_lshlrev_b32 v{VN2}, 4, v8
    v_cmp_gt_u32 vcc, 2, v8
    v_cndmask_b32 v{VN2}, v{VOOB}, v{VN2}, vcc
    v_mov_b32 v{VT3}, {2*(1152+16)}
    v_cmp_eq_u32 vcc, 1, v8
    v_cndmask_b32 v{VT3}, v{VT3}, 32, vcc
    v_mov_b32 v9, {2*(576+16)}
    v_cmp_eq_u32 vcc, 2, v8
    v_cndmask_b32 v{VT3}, v{VT3}, v9, vcc
    v_cmp_eq_u32 vcc, 3, v8
    v_cndmask_b32 v{VT3}, v{VT3}, v{VOOB}, vcc
    v_bfe_u32 v9, v{VL}, 2, 2
    v_lshl_add_u32 v{VRW}, v{VG}, 3, v9
    """)
    GSO = [S_GP, S_GP + 1]; GST = S_GP + 2
    P(f's_and_b32 s{S_NON}, s2, 3\ns_lshl_b32 s{S_NON}, s{S_NON}, 3\ns_add_u32 s{S_NON}, s{S_NON}, s{S_WAVE}')
    for i in range(2):
        P(f"""
        s_lshr_b32 s24, s2, 2
        s_add_u32 s24, s24, {64*i}
        s_sub_u32 s25, s24, 36
        s_lshr_b32 s26, s25, 2
        s_mul_i32 s26, s26, 110592
        s_and_b32 s25, s25, 3
        s_mul_i32 s27, s{S_NON}, 36
        s_add_u32 s26, s26, s27
        s_mul_i32 s27, s25, 1152
        s_cmp_eq_u32 s25, 3
        s_cselect_b32 s27, 0, s27
        s_cselect_b64 s[{S_G2}:{S_G2+1}], -1, 0
        s_add_u32 s{GSO[i]}, s26, s27
        """)
        if i == 0:
            P(f"""
            s_lshr_b32 s26, s24, 1
            s_mul_i32 s26, s26, 294912
            s_lshl_b32 s27, s{S_NON}, 5
            s_add_u32 s26, s26, s27
            s_add_u32 s26, s26, 8192
            s_bitcmp1_b32 s24, 0
            s_cselect_b32 s{S_G0}, s{S_G0+2}, s{S_G0}
            s_cselect_b32 s{S_G0+1}, s{S_G0+3}, s{S_G0+1}
            s_mov_b32 s28, 1990656
            s_mov_b32 s29, 3456
            s_cmp_lt_u32 s24, 36
            s_cselect_b32 s{S_G0}, s{S_G0}, s{S_G1}
            s_cselect_b32 s{S_G0+1}, s{S_G0+1}, s{S_G1+1}
            s_cselect_b32 s{S_G0+2}, 5308416, s28
            s_mov_b32 s{S_G0+3}, 0x20000
            s_cselect_b32 s{GSO[0]}, s26, s{GSO[0]}
            s_cselect_b32 s{GST}, 9216, s29
            s_cselect_b64 s[{S_G2}:{S_G2+1}], 0, s[{S_G2}:{S_G2+1}]
            s_cselect_b32 s30, 0, 4
            s_mov_b32 s27, s{GST}
            s_lshl_b32 s{GST}, s{GST}, 2
            """)
        else:
            P('s_mov_b32 s27, 3456\ns_mov_b32 s30, 4')
        P(f"""
        s_and_b32 s{S_GP+3+i}, s{S_G2}, 1
        s_add_u32 s{S_GP+3+i}, s{S_GP+3+i}, 3
        v_cndmask_b32 v8, v{VN2}, v{VT3}, s[{S_G2}:{S_G2+1}]
        v_mul_lo_u32 v11, v{VRW}, s27
        v_add_u32 v{VGA+i}, v8, v11
        s_mul_i32 s26, s{S_NON}, 112
        s_add_u32 s26, s26, s24
        s_add_u32 s26, s26, s30
        s_lshl_b32 s26, s26, 10
        s_add_u32 s26, s26, {WX_OFF}
        s_cmp_lt_u32 s24, 108
        s_cselect_b32 s{S_WXD+i}, s26, s{S_OOB}
        """)
        if i: P(f's_cselect_b32 s{S_G1+2}, 1990656, 0\ns_mov_b32 s{S_G1+3}, 0x20000')
    ONES = U(4)[0]; CSA = U(4)[1]
    P(f"""
    s_mov_b32 s{S_WS+2}, {WS_SIZE}
    s_mov_b32 s{S_WS+3}, 0x20000
    s_lshl_b32 s{S_PT}, s31, 7
    v_lshrrev_b32 v8, 5, v{VL}
    v_lshlrev_b32 v8, 11, v8
    v_bfe_u32 v11, v{VL}, 2, 3
    v_lshl_add_u32 v8, v11, 7, v8
    v_bfe_u32 v11, v{VL}, 3, 2
    v_lshl_add_u32 v8, v11, 5, v8
    v_and_b32 v11, 3, v{VL}
    v_lshl_add_u32 v{V_TR}, v11, 3, v8
    v_xor_b32 v{V_TR+1}, 32, v{V_TR}
    v_xor_b32 v{V_TR+2}, 64, v{V_TR}
    v_xor_b32 v{V_TR+3}, 96, v{V_TR}
    s_and_b32 s24, s{S_WAVE}, 3
    s_lshl_b32 s24, s24, 5
    s_and_b32 s25, s{S_W1K}, 0x1000
    s_or_b32 s24, s24, s25
    v_xor_b32 v{V_LB}, s24, v{V_TR}
    v_and_b32 v9, 15, v{VL}
    v_lshrrev_b32 v11, 1, v9
    v_xor_b32 v11, v11, v{VG}
    v_lshlrev_b32 v11, 4, v11
    v_lshl_add_u32 v11, v9, 7, v11
    v_add_u32 v{V_XR}, s{S_XST}, v11
    v_xor_b32 v{V_XR+1}, 64, v{V_XR}
    """)
    for r in range(4): P(f'v_mov_b32 v{ONES+r}, 0x3f803f80')
    sqa = [f's_lshl_b32 s73, s{S_RB}, 4', f's_lshl_b32 s74, s{S_WAVE}, 1', 's_add_u32 s73, s73, s74', f's_mul_i32 s{S_A2}, s73, {A2_MT}',
           f's_mul_i32 s74, s{S_J}, 5120', f's_add_u32 s{S_A2}, s{S_A2}, s74', f's_add_u32 s{S_A2}, s{S_A2}, {A2_OFF}']
    sq_txt = []
    SQ = sq_txt.append
    C = 72; TA = S_G2; TB_ = S_G2 + 1; S_E8P = S_W256
    SQ(f"""
            s_lshr_b32 s73, s2, 2
            s_lshl_b32 s73, s73, 1
            s_lshr_b32 s74, s{S_WAVE}, 2
            s_add_u32 s73, s73, s74
            s_mul_i32 s74, s73, 21846
            s_lshr_b32 s74, s74, 16
            s_mul_i32 s75, s74, 3
            s_sub_u32 s75, s73, s75
            s_mul_i32 s76, s74, 13108
            s_lshr_b32 s76, s76, 16
            s_mul_i32 s77, s76, 5
            s_sub_u32 s77, s74, s77
            s_and_b32 s78, s2, 3
            s_lshl_b32 s78, s78, 3
            s_add_u32 s78, s78, s76
            s_and_b32 s79, s{S_WAVE}, 3
            s_cmp_eq_u32 s76, 3
            s_cselect_b32 s73, 31, 0
            s_cmp_eq_u32 s76, 2
            s_cselect_b32 s{TA}, 1, 32
            s_cmp_lt_u32 s77, 2
            s_cselect_b32 s73, s73, s{TA}
            s_add_u32 s73, s73, s78
            s_lshl_b32 s73, s73, 6
            s_and_b32 s{TA}, s77, 1
            s_lshl_b32 s{TA}, s{TA}, 5
            s_add_u32 s73, s73, s{TA}
            s_lshl_b32 s{TA}, s79, 3
            s_add_u32 s73, s73, s{TA}
            s_lshl_b32 s{TB_}, s78, 4
            s_add_u32 s{TB_}, s{TB_}, 4096
            s_add_u32 s{TB_}, s{TB_}, s{TA}
            s_mul_i32 s{C}, s78, 18
            s_add_u32 s{C}, s{C}, s{TA}
            s_sub_u32 s{C}, s{C}, 16
            s_cmp_lt_u32 s79, 2
            s_cselect_b32 s{TB_}, s{TB_}, s{C}
            s_cselect_b32 s{C}, 0, 1
            s_cmp_eq_u32 s77, 4
            s_cselect_b32 s73, s{TB_}, s73
            s_cselect_b32 s{C}, s{C}, 0
            s_and_b32 s{TB_}, s2, 3
            s_lshl_b32 s{TB_}, s{TB_}, 1
            s_add_u32 s{TB_}, s{TB_}, s79
            s_mul_i32 s{TB_}, s{TB_}, 72
            s_add_u32 s{TB_}, s{TB_}, 16
            s_cmp_ge_u32 s74, 40
            s_cselect_b32 s73, s{TB_}, s73
            s_cselect_b32 s{C}, 1, s{C}
            s_cselect_b32 s{S_LEFT}, 18432, 0
            s_cselect_b32 s{TB_}, s79, 0
            s_mul_i32 s73, s73, 1152
            s_mul_i32 s78, s75, 384
            s_add_u32 s{S_RSRC}, s73, s78
            s_mov_b32 s73, 663552
            s_cmp_eq_u32 s{C}, 1
            s_cselect_b32 s{S_R}, s{S_WO}, s{S_WD}
            s_cselect_b32 s{S_R+1}, s{S_WO+1}, s{S_WD+1}
            s_cselect_b32 s{S_R+2}, s73, 5308416
            s_cmp_ge_u32 s{TB_}, 2
            s_cselect_b32 s{S_R+2}, 0, s{S_R+2}
        s_mov_b32 s{S_R+3}, 0x20000

            s_sub_u32 s73, 7, s77
            s_cmp_lt_u32 s77, 3
            s_cselect_b32 s73, s77, s73
            s_lshl_b32 s73, s73, 2
            s_and_b32 s77, s76, 3
            s_add_u32 s73, s73, s77
            s_lshr_b32 s76, s76, 2
            s_cmp_ge_u32 s74, 40
            s_cselect_b32 s73, 20, s73
            s_cselect_b32 s76, 0, s76
            s_mul_i32 s75, s75, 12
            s_add_u32 s75, s75, s79
        """)
    for i in range(3):
        SQ(f"""
            s_add_u32 s77, s75, {4*i}
            s_mul_i32 s78, s77, 7282
            s_lshr_b32 s78, s78, 16
            s_mul_i32 s79, s78, 9
            s_sub_u32 s79, s77, s79
            s_lshr_b32 s77, s79, 1
            s_sub_u32 s77, s77, s2
            s_and_b32 s77, s77, 3
            s_lshl_b32 s77, s77, 1
            s_and_b32 s{TA}, s79, 1
            s_add_u32 s77, s77, s{TA}
            s_cmp_eq_u32 s79, 8
            s_cselect_b32 s77, 8, s77
            s_mul_i32 s79, s73, 7
            s_add_u32 s79, s79, s77
            s_sub_u32 s79, s79, 2
            s_cmp_eq_u32 s73, 20
            s_cselect_b32 s{TA}, 1, 20
            s_cselect_b32 s{TB_}, 20, 0
            s_mul_i32 s{TA}, s{TA}, s77
            s_add_u32 s{TA}, s{TA}, s73
            s_add_u32 s{TA}, s{TA}, s{TB_}
            s_add_u32 s{TA}, s{TA}, 148
            s_cmp_ge_u32 s77, 2
            s_cselect_b32 s79, s79, s{TA}
            s_and_b32 s{TA}, s2, 3
            s_lshl_b32 s{TA}, s{TA}, 2
            s_add_u32 s{TA}, s{TA}, s78
            s_lshl_b32 s{TA}, s{TA}, 1
            s_add_u32 s{TA}, s{TA}, s76
            s_mul_i32 s{TA}, s{TA}, 192
            s_add_u32 s{TA}, s{TA}, s79
            s_lshl_b32 s{TA}, s{TA}, 10
            s_add_u32 s{TA}, s{TA}, {W2_OFF}
            s_cmp_lt_u32 s74, 41
            s_cselect_b32 s{S_RDST+i}, s{TA}, s{S_OOB}
            """)
    SQ(f's_mov_b32 s{S_G2}, 0\ns_mov_b32 s{S_G2+1}, 0x0000ffff')
    SQ(f"""
            s_mul_i32 s{S_WX}, s{S_J}, {WX_J}
            s_add_u32 s{S_WX}, s{S_WX}, {WX_OFF}
            s_lshr_b32 s73, s{S_J}, 3
            s_lshl_b32 s73, s73, 13
            s_add_u32 s73, s73, {F2_OFF}
            s_add_u32 s{S_F2P}, s73, s{S_W1K}
            s_and_b32 s73, s2, 3
            s_lshl_b32 s73, s73, 6
            s_lshr_b32 s74, s2, 2
            s_add_u32 s74, s74, s73
            s_lshl_b32 s74, s74, 7
            s_add_u32 s74, s74, {F2_OFF}
            s_lshl_b32 s75, s2, 7
            s_add_u32 s75, s75, {F3_OFF}
            s_cmp_eq_u32 s{S_WAVE}, 0
            s_cselect_b32 s{S_F2S}, s74, s{S_OOB}
            s_cselect_b32 s{S_F3S}, s75, s{S_OOB}
            s_lshl_b32 s73, s2, 3
            s_add_u32 s73, s73, s{S_WAVE}
            s_mul_i32 s73, s73, 3072
            s_add_u32 s{S_EX}, s73, {EX_OFF}
            s_lshr_b32 s73, s2, 2
            s_lshl_b32 s73, s73, 3
            s_add_u32 s73, s73, s{S_WAVE}
            s_lshl_b32 s73, s73, 11
            s_add_u32 s73, s73, {EX8_OFF}
            s_xor_b32 s74, s2, s{S_WAVE}
            s_and_b32 s74, s74, 3
            s_cmp_eq_u32 s74, 0
            s_cselect_b32 s{S_E8R}, s73, s{S_OOB}
            s_lshl_b32 s73, s{S_RB}, 4
            s_lshl_b32 s74, s{S_WAVE}, 1
            s_add_u32 s73, s73, s74
            s_lshl_b32 s{S_A2L}, s73, 11
            s_lshl_b32 s74, s{S_J}, 7
            s_add_u32 s{S_A2L}, s{S_A2L}, s74
            s_add_u32 s{S_A2L}, s{S_A2L}, {A2L_OFF}
            s_lshl_b32 s{S_W256}, s{S_WAVE}, 8
            s_lshl_b32 s73, s{S_J}, 3
            s_add_u32 s74, s73, s{S_RB}
            s_mul_i32 s74, s74, 1536
            s_lshl_b32 s75, s{S_WAVE}, 8
            s_add_u32 s75, s75, {KVP_OFF}
            s_add_u32 s74, s74, s75
            s_mul_i32 s73, s73, 1536
            s_add_u32 s73, s73, s75
            s_cmp_lt_u32 s{S_WAVE}, 6
            s_cselect_b32 s{S_KVST}, s74, s{S_OOB}
            s_cselect_b32 s{S_KVLD}, s73, s{S_OOB}
            s_add_u32 s73, s{S_W256}, {SCR}
            s_add_u32 s74, s{S_W256}, {MISC - 1024}
            s_cmp_lt_u32 s{S_WAVE}, 4
            s_cselect_b32 s{S_RED}, s73, s74
            s_lshl_b32 s73, s{S_RB}, 2
            s_lshr_b32 s74, s{S_J}, 3
            s_add_u32 s73, s73, s74
            s_lshl_b32 s73, s73, 13
            s_add_u32 s73, s73, {FL_OFF}
            s_add_u32 s{S_FL}, s73, s{S_W1K}
            s_and_b32 s74, s{S_J}, 7
            s_lshl_b32 s74, s74, 7
            s_add_u32 s{S_FL}, s{S_FL}, s74
            s_and_b32 s73, s2, 4
            s_lshr_b32 s74, s2, 6
            s_add_u32 s73, s73, s74
            s_lshl_b32 s73, s73, 2
            s_and_b32 s74, s2, 3
            s_add_u32 s73, s73, s74
            s_lshl_b32 s73, s73, 13
            s_add_u32 s73, s73, {FL_OFF}
            s_and_b32 s74, s2, 32
            s_lshl_b32 s74, s74, 7
            s_add_u32 s73, s73, s74
            s_and_b32 s74, s{S_WAVE}, 3
            s_lshl_b32 s74, s74, 10
            s_add_u32 s{S_FH}, s73, s74
            s_and_b32 s73, s{S_WAVE}, 1
            s_lshl_b32 s73, s73, 5
            s_and_b32 s74, s{S_WAVE}, 2
            s_lshl_b32 s74, s74, 11
            s_or_b32 s73, s73, s74
            s_and_b32 s74, s{S_WAVE}, 4
            s_lshl_b32 s74, s74, 9
            s_or_b32 s{S_MW}, s73, s74
            s_mul_i32 s73, s{S_WAVE}, 86
            s_lshr_b32 s73, s73, 8
            s_mul_i32 s74, s73, 3
            s_sub_u32 s74, s{S_WAVE}, s74
            s_lshl_b32 s74, s74, 9
            s_lshl_b32 s73, s73, 2
            s_and_b32 s75, s2, 3
            s_add_u32 s73, s73, s75
            s_lshr_b32 s75, s2, 2
            s_lshl_b32 s75, s75, 3
            s_add_u32 s73, s73, s75
            s_lshl_b32 s73, s73, 11
            s_add_u32 s73, s73, s74
            s_add_u32 s73, s73, {EX8_OFF}
            s_cmp_lt_u32 s{S_WAVE}, 6
            s_cselect_b32 s{S_E8P}, s73, s{S_OOB}
            s_mov_b32 s{S_L2E}, {f2u(1.4426950408889634):#x}
            s_mov_b32 s{S_EPS}, {f2u(1e-6):#x}
            s_mov_b32 s{S_M4}, 0x00040004
            s_mov_b32 s{S_M4+1}, 0x00040004
        """)
    P.ext(ts('setup' if not cfg.get('tsp') else '@setup'))
    GP = cfg.get('gpro', -1)
    for k in range(1, max(PS, NPRE) + 1):
        if k == GP:
            for g_ in range(4): P.ext(gdma(g_ >> 1, g_ & 1))
        if 2 <= k < NPRE: P.ext(dma(k))
        if PS0 <= k + 1 < PS:
            P.ext(sdma(k + 1, 0)); P.ext(sdma(k + 1, 1))
    P.ext(ts('issued' if not cfg.get('tsp') else '@issued'))
    for p in range(2):
        P.ext([xread(p, 0), xread(p, 1)])
    if cfg.get('tsp'): P.ext(ts('@x01'))

    base = {r: 0 for r in (V_TR, V_TR+1, V_TR+2, V_TR+3, V_LB)}
    def lds_addr(reg, addr, span):
        fx = []
        if not (0 <= addr - base[reg] and addr + span - base[reg] <= 65535):
            nb = min((addr // SLOT) * SLOT, LDS_BYTES - 65536)
            fx.append(I(f'v_add_u32 v{reg}, {(nb - base[reg]) & 0xffffffff:#x}, v{reg}'))
            base[reg] = nb
        return fx, addr - base[reg]
    xq = [V_XF + 4 * k for k in range(36)]
    acc1 = U(0) + U(2) + U(3) + [xq[34], xq[35]]
    def ACC2(lt, mt):
        if lt >= 2: return acc1[(lt - 2) * 2 + mt]
        return acc1[(lt * 2 + mt) * 2 + 1]
    aq = xq[:34] + U(1) + U(4)[:2]
    def AF(sp, mt): return aq[sp * 2 + mt]
    V_AL = U(4)[2]; VSP = U(4)[3]
    V_L8 = V_TH
    T0 = [ACC(0, 0, 0), ACC(0, 0, 1)]; T1 = [ACC(0, 1, 0), ACC(0, 1, 1)]
    T2 = [ACC(1, 0, 0), ACC(1, 0, 1)]; T3 = [ACC(1, 1, 0), ACC(1, 1, 1)]

    frags = []; steps = []
    def add_step(nm, fl):
        for f in fl:
            f['step'] = len(steps); frags.append(f)
        steps.append(nm)
    def Lf(line, ks, tiles):
        fl = []
        for (T, u) in tiles:
            for mat in range(2):
                mf_ = [(ACC(u, mat, mt), XF(ks, mt), False, ks == 0) for mt in range(2)]
                if line == 0: fl.append(dict(item=IT_L0 + ks, kind='tr', reg=V_TR + T, off=mat * 4096, mf=mf_))
                else: fl.append(dict(item=L1it(T >> 1, ks >> 1), kind='tr', reg=V_TH + (T & 1), off=mat * 4096 + (ks & 1) * 2048, mode='h', mf=mf_))
        return fl
    def Cf(item, acc, ones, first, mode):
        return [dict(item=item, kind='tr', reg=V_LB, off=0, mode=mode, mf=[(acc, ones, True, first)])]
    def Kf(u, nt, off, swap=False, zero=False):
        return [dict(item=None, kind='k', mode='k', off=off, mf=[(ACC(u, nt, mt), BN[mt], swap, zero) for mt in range(2)])]
    def Ku(u, kb0, kb1, o, zero=False): return Kf(u, 0, kb0 * 1024 + o, False, zero) + Kf(u, 1, kb1 * 1024 + o, False, zero)
    K1 = cfg.get('k1', 15); K3 = cfg.get('k3', 8); K4 = cfg.get('k4', 8)
    for ks in range(K1): add_step(('S1', ks), Cf(ks, CSA, ONES, ks == 0, 'c0') + Lf(0, ks, [(0, 0), (1, 1), (2, 2), (3, 3)]))
    for u in range(4):
        for ks in range(K1, 18):
            fl = Lf(0, ks, [(u, u)])
            if u == 0 and ks == K1:
                cl = [f for k2 in range(K1, 18) for f in Cf(k2, CSA, ONES, False, 'c0')]
                fl = cl[:1] + fl[:1] + cl[1:2] + fl[1:] + cl[2:]
            if u == 1 and ks == K1 + 1: fl += Ku(0, 0, 4, 768)
            if u >= 1 and ks == 17: fl += Ku(u, u, 4 + u, 768)
            add_step((f'S1{"abcd"[u]}', ks), fl)
    for ks in range(18):
        add_step(('S2', ks), [dict(item=IT_Q + ((2*ks+mat) >> 3), kind='b', mode='b', off=((2*ks+mat) & 7) * 1024,
                                   mf=[(ACC(4, mat, mt), XF(ks, mt), False, ks == 0) for mt in range(2)]) for mat in range(2)])
    for ks in range(18):
        add_step(('S3', ks), [dict(item=IT_X + ((4*ks+T) >> 3), kind='b', mode='b', off=((4*ks+T) & 7) * 1024,
                                   mf=[(ACC(T >> 1, T & 1, mt), XF(ks, mt), T != 0, ks == 0) for mt in range(2)]) for T in range(4)]
                 + (Ku(4, 0, 1, 0) if ks == 0 else [])
                 + ([f for T in range(4) for f in Kf(T >> 1, T & 1, (2 + T) * 1024, T != 0)] if ks == 17 else []))
    def csched(K):
        m = {ks: ks >> 1 for ks in range(1, K, 2)}; n = len(m); ks = K
        while n < 9: m[ks] = n; n += 1; ks += 1
        return m, ks
    cma, CA_END = csched(K3); cmb_, CB_END = csched(K4)
    ca = lambda ks: Cf(L1it(0, cma[ks]), CSA, ONES, ks == 1, 'ch') if ks in cma else []
    cb = lambda ks: Cf(L1it(1, cmb_[ks]), T1[1], T1[0], ks == 1, 'ch') if ks in cmb_ else []
    for ks in range(K3): add_step(('S4', ks), Lf(1, ks, [(0, 2), (1, 3)]) + ca(ks))
    for ks in range(K3, 18): add_step(('S4a', ks), ca(ks) + Lf(1, ks, [(0, 2)]))
    for ks in range(K3, 18): add_step(('S4b', ks), Lf(1, ks, [(1, 3)]) + (Ku(2, 0, 2, 768) + Ku(3, 1, 3, 768) if ks == K3 + 1 else []))
    for ks in range(K4): add_step(('S4c', ks), cb(ks) + Lf(1, ks, [(2, 4), (3, 1)]))
    for ks in range(K4, 18): add_step(('S4d', ks), cb(ks) + Lf(1, ks, [(2, 4)]))
    for ks in range(K4, 18): add_step(('S4e', ks), Lf(1, ks, [(3, 1)]) + (Ku(4, 4, 6, 768) + Ku(1, 5, 7, 768) if ks == K4 + 1 else []))
    def P2f(sp, lts, blk0):
        fl = []
        for k, lt in enumerate(lts):
            blk = blk0 + k
            mf_ = [(ACC2(lt, mt), AF(sp, mt), False, sp == 0) for mt in range(2)] if sp < 20 else [(ACC2(lt, 0), V_AL, False, False)]
            fl.append(dict(item=IT_W2 + (blk >> 2), kind='b', mode='b2', off=(blk & 3) * 1024, mf=mf_))
        return fl
    for sp in range(21): add_step(('P1', sp), P2f(sp, range(2, 9), sp * 7))
    for lt in range(2):
        for sp in range(21): add_step(('P2' + 'ab'[lt], sp), P2f(sp, [lt], 148 + lt * 20 + sp if sp < 20 else 188 + lt))
    NF = len(frags)
    SO = {s: i for i, s in enumerate(steps)}
    first_frag = {}
    for i, f in enumerate(frags): first_frag.setdefault(f['step'], i)
    events = {}; pending = {}
    st.lbmode = 'c0'; st.hinit = False
    def reads(i):
        f = frags[i]; w = V_WF + (i % 4) * 4
        slot = slot_of(f['item']) * SLOT if f['item'] is not None else MISC
        pre = []
        mode = f.get('mode')
        if mode == 'h' and not st.hinit:
            assert 'trh' in events
            st.hinit = True; base[V_TH] = 0; base[V_TH + 1] = 0
        if mode in ('b', 'b2', 'ch', 'k') and st.lbmode != mode:
            st.lbmode = mode
            if mode == 'b':
                pre = [I(f'v_mov_b32 v{V_LB}, v{V_L16}')]; base[V_LB] = 0
            elif mode == 'k':
                pre = [I(f'v_bfe_u32 v{V_LB}, v{V_L16}, 1, 8')]; base[V_LB] = 0
            elif mode == 'b2':
                pre = [I(f's_and_b32 s{S_RX}, s{S_W1K}, 0x1000'), I(f'v_or_b32 v{V_LB}, s{S_RX}, v{V_L16}')]; base[V_LB] = 0
            else:
                pre = [I(f'v_xor_b32 v{V_LB}, s{S_MW}, v{V_TH}')]; base[V_LB] = base[V_TH]
        if f['kind'] == 'tr':
            fx, off = lds_addr(f['reg'], slot + f['off'], 2048)
            return (pre + fx + [I(f'ds_read_b64_tr_b16 {vr(w, 2)}, v{f["reg"]} offset:{off}', tok=f'rd{i}a')],
                    [I(f'ds_read_b64_tr_b16 {vr(w + 2, 2)}, v{f["reg"]} offset:{off + 1024}', tok=f'rd{i}b')])
        fx, off = lds_addr(V_LB, slot + f['off'], 1024)
        if f['kind'] == 'k':
            return (pre + fx + [I(f'ds_read_b64 {vr(w, 2)}, v{V_LB} offset:{off}', tok=f'rd{i}a')], [])
        return (pre + fx + [I(f'ds_read_b128 {vr(w, 4)}, v{V_LB} offset:{off}', tok=f'rd{i}a')], [])
    def rtoks(i):
        return [f'rd{i}a', f'rd{i}b'] if frags[i]['kind'] == 'tr' else [f'rd{i}a']
    def mfmas(i):
        w = V_WF + (i % 4) * 4; L = []
        for (d, x, swap, zero) in frags[i]['mf']:
            a, b = (x, w) if swap else (w, x)
            if frags[i]['kind'] == 'k': L.append(I(f'v_mfma_f32_16x16x16_bf16 {vr(d,4)}, {vr(a,2)}, {vr(b,2)}, {"0" if zero else vr(d,4)}'))
            else: L.append(I(f'v_mfma_f32_16x16x32_bf16 {vr(d,4)}, {vr(a,4)}, {vr(b,4)}, {"0" if zero else vr(d,4)}'))
        return L
    def mf(d, a, b): return I(f'v_mfma_f32_16x16x32_bf16 {vr(d,4)}, {vr(a,4)}, {vr(b,4)}, 0')

    HST = cfg.get('hst', 'sc1')
    t4 = [V_T + r for r in range(4)]
    q2, q3 = U(4)[2], U(4)[3]
    def gelu_quad(g, u, dst, mt):
        t = t4; L = []
        for r in range(4): L.append(I(f'v_mul_f32 v{t[r]}, v{g+r}, v{g+r}'))
        for r in range(4): L.append(I(f'v_fma_f32 v{t[r]}, v{t[r]}, v{C1[mt]}, v{C0[mt]}'))
        for r in range(4): L.append(I(f'v_mul_f32 v{t[r]}, v{g+r}, v{t[r]}'))
        for r in range(4): L.append(I(f'v_exp_f32 v{t[r]}, v{t[r]}'))
        for r in range(4): L.append(I(f'v_mul_f32 v{u+r}, v{g+r}, v{u+r}'))
        for r in range(4): L.append(I(f'v_add_f32 v{t[r]}, 1.0, v{t[r]}'))
        for r in range(4): L.append(I(f'v_rcp_f32 v{t[r]}, v{t[r]}'))
        for r in range(4): L.append(I(f'v_mul_f32 v{u+r}, v{u+r}, v{t[r]}'))
        L.append(I(f'v_cvt_pk_bf16_f32 v{dst}, v{u}, v{u+1}'))
        L.append(I(f'v_cvt_pk_bf16_f32 v{dst+1}, v{u+2}, v{u+3}'))
        return L
    def hstore(reg, n, mt, t, extra=0, va=None):
        s = ftmp(); off = t * 1024 + extra
        op = 'buffer_store_dwordx4' if n == 4 else 'buffer_store_dwordx2'
        return [I(f's_add_u32 s{s}, s{S_A2 if not cfg.get("fakeH") else S_OOB}, {mt * A2_MT + (off & ~4095)}'),
                I(f'{op} {vr(reg, n)}, v{V_L16 if n == 4 else va}, {WS}, s{s} offen offset:{off & 4095} {HST}', tok=f'h{t}_{mt}_{extra}')]
    def E_first(u):
        L = []
        for mt in range(2): L += gelu_quad(ACC(u, 0, mt), ACC(u, 1, mt), ACC(u, 0, mt), mt)
        return L
    def E_second(u0, u1, t):
        L = []
        for mt in range(2):
            L += gelu_quad(ACC(u1, 0, mt), ACC(u1, 1, mt), ACC(u0, 0, mt) + 2, mt)
            if t == 3: L += [I(f'v_min_u32 v{ACC(u0, 0, mt) + r}, -2, v{ACC(u0, 0, mt) + r}') for r in range(4)]
            L += hstore(ACC(u0, 0, mt), 4, mt, t)
        return L
    def E_quarter(u):
        L = []
        for mt in range(2):
            L += gelu_quad(ACC(u, 0, mt), ACC(u, 1, mt), ACC(u, 0, 0) + 2 * mt, mt)
        a = ACC(u, 1, 0)
        L += [I(f's_add_u32 s{S_CNT}, s{S_W1K}, {slot_of(IT_PK) * SLOT}'), I(f'v_add_u32 v{a}, s{S_CNT}, v{V_L16}'),
              I(f'ds_write_b128 v{a}, {vr(ACC(u, 0, 0), 4)}')]
        return L
    def cswrite(c, e, t):
        L = [I(f'v_cvt_pk_bf16_f32 v{t}, v{c}, v{c}'), I(f'v_and_b32 v{t}, 0xffff0000, v{t}'), I(f'v_sub_f32 v{t}, v{c}, v{t}'),
             I(f'v_cvt_pk_bf16_f32 v{t}, v{c}, v{t}'), I(f'v_mov_b32 v{t+1}, 0')]
        if e < 2:
            L += [I(f'v_bfe_u32 v{t+2}, v{V_L16}, 1, 8'), I(f's_add_u32 s72, s{S_W1K}, {MISC + (768 if e == 0 else 0)}')]
            if e == 0: L += [I(f'v_bfe_i32 v{t+3}, v{V_L16}, 8, 1'), I(f'v_bfi_b32 v{t}, v{t+3}, 0, v{t}')]
        else:
            L += [I(f'v_bfe_u32 v{t+2}, v{V_L16}, 1, 7'), I(f's_and_b32 s72, s{S_W1K}, 0xc00'), I(f's_lshr_b32 s83, s{S_W1K}, 12'),
                  I('s_lshl_b32 s83, s83, 7'), I(f's_add_u32 s72, s72, s83'), I(f's_add_u32 s72, s72, {MISC + 768 + (e - 2) * 4096}')]
        L += [I(f'v_add_u32 v{t+2}, s72, v{t+2}'), I(f'ds_write_b64 v{t+2}, {vr(t,2)}', tok=f'cs{e}')]
        return L
    def phi_quad(q):
        t = t4; L = []
        for r in range(4): L.append(I(f'v_mul_f32 v{t[r]}, s{S_L2E}, v{q+r}'))
        for r in range(4): L.append(I(f'v_exp_f32 v{t[r]}, v{t[r]} clamp'))
        for r in range(4): L.append(I(f'v_max_f32 v{q+r}, s{S_EPS}, v{q+r}'))
        for r in range(4): L.append(I(f'v_add_f32 v{q+r}, v{q+r}, v{t[r]}'))
        return L
    def pack2(dst, q0, q1):
        return [I(f'v_cvt_pk_bf16_f32 v{dst}, v{q0}, v{q0+1}'), I(f'v_cvt_pk_bf16_f32 v{dst+1}, v{q0+2}, v{q0+3}'),
                I(f'v_cvt_pk_bf16_f32 v{dst+2}, v{q1}, v{q1+1}'), I(f'v_cvt_pk_bf16_f32 v{dst+3}, v{q1+2}, v{q1+3}')]
    def sgroups(txt):
        L = []
        lines = [l.strip() for l in txt.strip().split('\n') if l.strip()]
        k = 0
        while k < len(lines):
            if lines[k].startswith('s_cmp') or lines[k].startswith('s_bitcmp'):
                g = [I(lines[k])]; k += 1
                while k < len(lines) and lines[k].startswith('s_cselect'): g.append(I(lines[k])); k += 1
                L.append(g)
            else:
                L.append(I(lines[k])); k += 1
        return L
    def setflag(sreg, add, toks, VA, VB):
        t = ftmp()
        return [I(f'v_lshlrev_b32 v{VA}, 21, v{V_L16}'), I(f'v_and_b32 v{VA}, s{S_OOB}, v{VA}'),
                I(f'v_lshrrev_b32 v{VB}, 2, v{V_L16}'), I(f'v_or_b32 v{VA}, v{VA}, v{VB}'), I(f'v_mov_b32 v{VB}, s{S_NON}'),
                I(f's_add_u32 s{t}, s{sreg}, {add}'),
                I(f'buffer_store_dword v{VB}, v{VA}, {WS}, s{t} offen sc1', waits=toks)]
    def poll(spt, bits, ev, w0, bar, between, VA, VB, S_PT=S_PT):
        addr = [I(f'v_lshrrev_b32 v{VA}, {10 - bits}, v{V_L16}'), I(f'v_lshlrev_b32 v{VA}, 7, v{VA}')]
        loads = lambda: [I(f'buffer_load_dword v{VB}, v{VA}, {WS}, s{S_PT} offen sc1')]
        check = lambda: [I(f'v_cmp_ne_u32 vcc, s{S_NON}, v{VB}')]
        return addr + spt + loads() + between + retry_group(loads, check, w0) + [Ev(ev, bar)]
    def pollh(k, ev, between, VA, VB):
        return poll([I(f's_add_u32 s{S_PT}, s{S_FH}, {k*HS}')], 3, ev, False, False, between, VA, VB)
    def F_nonce(between):
        X0 = XF(17, 0); a = XF(16, 1); n_ = a + 1; q3 = XF(16, 0)
        loads = lambda: [I(f'buffer_load_dword v{n_}, off, s[{S_OUT}:{S_OUT+3}], 0 sc1')]
        check = lambda: [I(f'v_cmp_eq_u32 vcc, 0, v{n_}')]
        adr = lambda: [I(f'v_cmp_gt_u32 vcc, 0x80, v{V_L16}'), I(f'v_mov_b32 v{a}, s{S_OOB}'), Delay(1), I(f'v_cndmask_b32 v{a}, v{a}, v{V_L16}, vcc')]
        L = [I(f'buffer_load_dwordx4 {vr(X0,4)}, v{V_L16}, {XS}, s{S_RS} offen'),
             I(f'v_lshlrev_b32 v{a}, 21, v{V_L16}'), I(f'v_and_b32 v{a}, s{S_OOB}, v{a}'), I(f'v_lshrrev_b32 v{a+2}, 2, v{V_L16}'), I(f'v_or_b32 v{a}, v{a}, v{a+2}'),
             I(f'buffer_load_dword v{X0+4}, v{a}, {XS}, s{S_RS} offen offset:1024')] + loads() + adr()
        L += between + retry_group(loads, check) + [I(f'v_readfirstlane_b32 s{S_NON}, v{n_}'), Ev('non')] + [
              I(f's_mov_b32 s{S_OUT}, s{S_OP}'), I(f's_mov_b32 s{S_OUT+1}, s{S_OP+1}'), I(f's_mov_b32 s{S_OUT+2}, 2359296')]
        S_, Q_, t0, t1 = q3, q3 + 2, a + 2, a + 3
        for r in range(5):
            L += [I(f'v_lshlrev_b32 v{t0}, 16, v{X0+r}'), I(f'v_and_b32 v{t1}, 0xffff0000, v{X0+r}')]
            if r == 0: L += [I(f'v_add_f32 v{S_}, v{t0}, v{t1}'), I(f'v_mul_f32 v{Q_}, v{t0}, v{t0}'), I(f'v_fmac_f32 v{Q_}, v{t1}, v{t1}')]
            else: L += [I(f'v_add_f32 v{S_}, v{S_}, v{t0}'), I(f'v_fmac_f32 v{Q_}, v{t0}, v{t0}'), I(f'v_add_f32 v{S_}, v{S_}, v{t1}'), I(f'v_fmac_f32 v{Q_}, v{t1}, v{t1}')]
        L += [Ev('rowdone'), Delay(1)]
        for m_ in ['row_shr:1 row_mask:0xf bank_mask:0xf bound_ctrl:0', 'row_shr:2 row_mask:0xf bank_mask:0xf bound_ctrl:0',
                   'row_shr:4 row_mask:0xf bank_mask:0xf bound_ctrl:0', 'row_shr:8 row_mask:0xf bank_mask:0xf bound_ctrl:0',
                   'row_bcast:15 row_mask:0xa bank_mask:0xf', 'row_bcast:31 row_mask:0xc bank_mask:0xf']:
            L += [I(f'v_add_f32_dpp v{k}, v{k}, v{k} {m_}') for k in (S_, Q_)]
        L += IL(f"""
        v_readlane_b32 s30, v{S_}, 63
        v_readlane_b32 s31, v{Q_}, 63
        v_mov_b32 v{t0}, {f2u(1.0/576.0):#x}
        v_mov_b32 v{q3+1}, v{n_}
        v_mul_f32 v{S_}, s30, v{t0}
        v_mul_f32 v{Q_}, s31, v{t0}
        v_fma_f32 v{Q_}, -v{S_}, v{S_}, v{Q_}
        v_max_f32 v{Q_}, 0, v{Q_}
        v_cvt_pk_bf16_f32 v{t0}, -v{S_}, v{Q_}
        v_lshlrev_b32 v{S_}, 16, v{t0}
        v_and_b32 v{Q_}, 0xffff0000, v{t0}
        v_add_f32 v{Q_}, {f2u(1e-5):#x}, v{Q_}
        v_cvt_pk_bf16_f32 v{Q_}, v{Q_}, v{Q_}
        v_and_b32 v{Q_}, 0xffff0000, v{Q_}
        v_sqrt_f32 v{Q_}, v{Q_}
        v_cvt_pk_bf16_f32 v{Q_}, v{Q_}, v{Q_}
        v_and_b32 v{Q_}, 0xffff0000, v{Q_}
        v_rcp_f32 v{Q_}, v{Q_}
        v_mov_b32 v{q3+3}, v{n_}
        buffer_store_dwordx4 {vr(q3,4)}, v{a}, {WS}, s{S_PT} offen sc1
        """)
        return L + [Ev('nonce')]
    def F_setup2():
        C = 71
        L = sgroups(f"""
            s_lshr_b32 s74, s2, 3
            s_and_b32 s73, s74, 3
            s_lshr_b32 s74, s74, 2
            s_and_b32 s75, s2, 4
            s_lshl_b32 s75, s75, 1
            s_add_u32 s74, s74, s75
            s_and_b32 s75, s{S_WAVE}, 3
            s_lshr_b32 s76, s{S_WAVE}, 2
            s_and_b32 s78, s2, 3
            s_lshl_b32 s77, s74, 3
            s_lshl_b32 s79, s75, 1
            s_add_u32 s77, s77, s79
            s_add_u32 s77, s77, s76
            s_lshl_b32 s{S_STK}, s77, 11
            s_lshl_b32 s79, s78, 3
            s_lshl_b32 s{C}, s76, 2
            s_add_u32 s79, s79, s{C}
            s_mul_i32 s79, s79, 5120
            s_add_u32 s79, s79, {A2_OFF}
            s_mul_i32 s{S_A}, s77, {A2_MT}
            s_add_u32 s{S_A}, s{S_A}, s79
            s_xor_b32 s{C}, s77, 1
            s_mul_i32 s{S_A+1}, s{C}, {A2_MT}
            s_add_u32 s{S_A+1}, s{S_A+1}, s79
            s_lshl_b32 s79, s78, 2
            s_add_u32 s79, s79, s73
            s_lshl_b32 s79, s79, 1
            s_add_u32 s79, s79, s76
            s_mul_i32 s79, s79, {W2_S}
            s_lshl_b32 s{C}, s75, 10
            s_add_u32 s79, s79, s{C}
            s_add_u32 s{S_W2}, s79, {W2_OFF}
            s_mul_i32 s79, s76, {W2_S}
            s_sub_u32 s{S_W2K}, s{S_W2}, s79
            s_lshr_b32 s79, s77, 1
            s_lshl_b32 s79, s79, 2
            s_add_u32 s79, s79, s78
            s_lshl_b32 s79, s79, 10
            s_lshl_b32 s{C}, s76, 6
            s_add_u32 s79, s79, s{C}
            s_add_u32 s{S_AL}, s79, {A2L_OFF}
            s_mul_i32 s79, s77, 18432
            s_mul_i32 s{C}, s73, 288
            s_add_u32 s79, s79, s{C}
            s_lshl_b32 s{C}, s78, 6
            s_add_u32 s{S_O}, s79, s{C}
            s_add_u32 s{S_O8}, s79, 256
        """)
        for p in range(1, 4):
            L += sgroups(f"""
            s_add_u32 s79, s78, {p}
            s_and_b32 s79, s79, 3
            s_sub_u32 s79, s79, s78
            s_mul_i32 s79, s79, 24576
            s_add_u32 s79, s79, s{S_EX}
            s_add_u32 s{S_EXS+p-1}, s79, {(3-p)*1024}
            """)
        L += sgroups(f"""
            s_lshr_b32 s79, s2, 2
            s_lshl_b32 s79, s79, 3
            s_add_u32 s79, s79, s{S_WAVE}
            s_lshl_b32 s79, s79, 11
            s_add_u32 s79, s79, {EX8_OFF}
            s_sub_u32 s{C}, s78, s75
            s_sub_u32 s{C}, s{C}, 1
            s_and_b32 s{C}, s{C}, 3
            s_lshl_b32 s{C}, s{C}, 9
            s_add_u32 s79, s79, s{C}
            s_cmp_eq_u32 s78, s75
            s_cselect_b32 s{S_E8S}, s{S_OOB}, s79
            s_cselect_b32 s{S_O8}, s{S_O8}, s{S_OOB}
        """)
        return L + [Ev('setup2')]
    def F_wx(i):
        q = U(4)[3]; a = U(4)[2] + 2
        L = [I(f'v_bfe_u32 v{a}, v{V_L16}, 4, 2'), I(f'v_lshlrev_b32 v{a}, s{S_GP+3+i}, v{a}'),
             I(f'v_and_b32 v{a+1}, 0x3c0, v{V_L16}'), I(f'v_add3_u32 v{a}, v{a}, v{a+1}, s{S_W1K}'),
             I(f'v_add_u32 v{a+1}, {GL[i][1]}, v{a}'), I(f'v_add_u32 v{a}, {GL[i][0]}, v{a}')]
        for hh in range(2):
            L.append(I(f'ds_read_b64_tr_b16 {vr(q+2*hh,2)}, v{a+hh}', waits=[f'sg{i}_0', f'sg{i}_1']))
        L += [Delay(3),
              I(f'v_lshlrev_b32 v{a}, 21, v{V_L16}'), I(f'v_and_b32 v{a}, s{S_OOB}, v{a}'),
              I(f'v_lshrrev_b32 v{a+1}, 2, v{V_L16}'), I(f'v_or_b32 v{a}, v{a}, v{a+1}'),
              mf(V_T, ONES, q),
              I(f'buffer_store_dwordx4 {vr(q,4)}, v{V_L16}, {WS}, s{S_WXD+i} offen sc1', tok=f'wx{i}'),
              I(f's_lshr_b32 s{S_CNT}, s{S_WXD+i}, 3'), I(f's_add_u32 s{S_CNT}, s{S_CNT}, {CSP_OFF - WX_OFF // 8}'),
              I(f'buffer_store_dword v{V_T}, v{a}, {WS}, s{S_CNT} offen sc1', tok=f'wc{i}'), Ev(f'wxst{i}')]
        return L
    def F_csx():
        q = U(4)[0]; d = U(4)[1]
        L = sgroups(f"""
            s_add_u32 s30, s{S_WAVE}, 38
            s_cmp_lt_u32 s{S_WAVE}, 2
            s_cselect_b32 s30, s{S_WAVE}, s30
            s_cselect_b32 s31, 8, 9
            s_mul_i32 s{S_CNT}, s{S_J}, 112
            s_add_u32 s30, s30, s{S_CNT}
            s_lshl_b32 s30, s30, 7
            s_add_u32 s{S_CNT}, s30, {CSP_OFF}
        """)
        L += [I(f'v_lshrrev_b32 v{q}, 8, v{V_L16}'), I(f'v_cmp_gt_u32 vcc, 2, v{q}'), I(f'v_lshlrev_b32 v{q}, s31, v{q}'),
              I(f'v_bfe_u32 v{q+1}, v{V_L16}, 4, 4'), I(f'v_lshl_add_u32 v{q}, v{q+1}, 2, v{q}'), I(f'v_mov_b32 v{q+1}, s{S_OOB}'),
              I(f'v_cndmask_b32 v{q+1}, v{q+1}, v{q}, vcc'), I('s_lshl_b32 s31, 4, s31')]
        for i in range(5):
            L.append(I(f'buffer_load_dword v{d+i if i < 4 else q+2}, v{q if i < 4 else q+1}, {WS}, s{S_CNT} offen sc1'))
            if i < 4: L.append(I(f's_add_u32 s{S_CNT}, s{S_CNT}, s31'))
        return L
    def F_csx2():
        q = U(4)[0]; d = U(4)[1]
        L = [I(f'v_add_f32 v{d}, v{d}, v{d+1}'), I(f'v_add_f32 v{d+2}, v{d+2}, v{d+3}'), I(f'v_add_f32 v{d}, v{d}, v{q+2}'), I(f'v_add_f32 v{d}, v{d}, v{d+2}')]
        L += [I(f'v_mov_b32 v{d+1}, v{d}'), Delay(1), I(f'v_permlane32_swap_b32 v{d}, v{d+1}'), I(f'v_add_f32 v{d}, v{d}, v{d+1}')]
        return L + cswrite(d, 1, q)
    def F_stats(between):
        q = q2; a = V_T
        loads = lambda: [I(f'buffer_load_dwordx4 {vr(q,4)}, v{a}, {WS}, s{S_PT} offen sc1')]
        check = lambda: [I(f'v_xor_b32 v{q+1}, s{S_NON}, v{q+1}'), I(f'v_xor_b32 v{q+3}, s{S_NON}, v{q+3}'),
                         I(f'v_or_b32 v{q+1}, v{q+1}, v{q+3}'), I(f'v_cmp_ne_u32 vcc, 0, v{q+1}')]
        L = [I(f'v_lshrrev_b32 v{a}, 5, v{V_L16}'), I(f'v_lshlrev_b32 v{a}, 7, v{a}'),
             I(f's_lshl_b32 s{S_PT}, s{S_RB}, 3'), I(f's_add_u32 s{S_PT}, s{S_PT}, s{S_WAVE}'), I(f's_lshl_b32 s{S_PT}, s{S_PT}, 12')]
        L += loads() + between + retry_group(loads, check)
        L += [I(f'v_lshrrev_b32 v{a}, 5, v{a}'), I(f's_add_u32 s{S_CNT}, s{S_W1K}, {MISC}'), I(f'v_add_u32 v{a}, s{S_CNT}, v{a}'),
              I(f'v_bfe_u32 v{q+1}, v{V_L16}, 4, 4'), I(f'v_lshl_add_u32 v{q+1}, v{q+1}, 2, s{S_CNT}'),
              I(f'ds_write_b32 v{a}, v{q+2} offset:512'), I(f'ds_write_b32 v{a}, v{q} offset:640')]
        for mt in range(2):
            L += [I(f'ds_read_b32 v{q3+2*mt}, v{q+1} offset:{640 + 64*mt}'), I(f'ds_read_b32 v{q3+2*mt+1}, v{q+1} offset:{512 + 64*mt}')]
        return L
    def F_stats2():
        L = [Need('xdone'), I(f'v_cmp_gt_u32 vcc, 0x200, v{V_L16}')]
        for mt in range(2):
            L += [I(f'v_cvt_pk_bf16_f32 v{q3+2*mt}, v{q3+2*mt}, v{q3+2*mt}'), I(f'v_mul_f32 v{q3+2*mt+1}, {f2u(K0C):#x}, v{q3+2*mt+1}')]
        for mt in range(2):
            L += [I(f'v_cndmask_b32 v{BN[mt]}, 0, v{q3+2*mt}, vcc'), I(f'v_and_b32 v{C0[mt]}, 0xffffff7f, v{q3+2*mt+1}')]
        return L + [Ev('stats')]
    def F_c1():
        L = [I(f'v_mul_f32 v{C1[mt]}, v{C0[mt]}, v{C0[mt]}') for mt in range(2)]
        L += [I(f'v_mul_f32 v{C1[mt]}, {f2u(0.044715 / (K0C * K0C)):#x}, v{C1[mt]}') for mt in range(2)]
        L += [I(f'v_mul_f32 v{C1[mt]}, v{C1[mt]}, v{C0[mt]}') for mt in range(2)]
        return L
    def F_rpat():
        a, b = q2 + 1, q2 + 2
        return [I(f'v_lshrrev_b32 v{a}, 3, v{V_L16}'), I(f'v_xor_b32 v{a}, v{a}, v{V_L16}'), I(f'v_and_b32 v{a}, 0x60, v{a}'),
                I(f'v_and_or_b32 v{a}, v{V_L16}, 16, v{a}'), I(f'v_lshrrev_b32 v{b}, 8, v{V_L16}'), I(f'v_mad_u32_u24 v{a}, v{b}, s{S_LEFT}, v{a}'),
                I(f'v_lshrrev_b32 v{b}, 7, v{V_L16}'), I(f'v_mul_u32_u24 v{b}, 1152, v{b}'), I(f'v_add_u32 v{a}, v{a}, v{b}'), Ev('rpat')]
    NT = cfg.get('nt', 9)
    def F_tpat():
        a, b, c = 7, V_T, V_T + 1; n = 18 // NT
        return [[I('s_lshl_b32 s30, s2, 2'), I(f's_and_b32 s31, s{S_WAVE}, 3'), I('s_add_u32 s30, s30, s31'), I(f's_mul_i32 s30, s30, {n}')],
                I(f'v_lshrrev_b32 v{a}, 4, v{V_L16}'), I(f'v_min_u32 v{a}, {n - 1}, v{a}'), I(f'v_add_u32 v{a}, s30, v{a}'),
                I(f'v_and_b32 v{c}, 7, v{a}'), I(f'v_cmp_eq_u32 vcc, 2, v{c}'),
                I(f'v_lshrrev_b32 v{b}, 5, v{a}'), I(f'v_mul_u32_u24 v{b}, {9216 - 4096}, v{b}'), I(f'v_cndmask_b32 v{c}, 32, 1, vcc'),
                I(f'v_add_u32 v{a}, v{a}, v{c}'), I(f'v_lshl_add_u32 v{a}, v{a}, 7, v{b}'), Ev('tpat')]
    def touch(k):
        t = stmp()
        x = I(f'buffer_load_dword v7, s[{S_W}:{S_W+3}], s{t} offen lds')
        if k == NT - 1: events['tissued'] = st.gap
        st.tnext = st.gap + cfg.get('tsp_', 8)
        return [I(f's_add_u32 m0, s{S_W1K}, {6*SLOT}'), I(f's_mov_b32 s{t}, {k * (576 // NT) * 9216}'), x]
    def F_dmah(VA, VB):
        return [I(f'v_bfe_u32 v{VA}, v{V_L16}, 6, 2'), I(f'v_lshrrev_b32 v{VB}, 8, v{V_L16}'), I(f'v_lshl_add_u32 v{VA}, v{VB}, 3, v{VA}'),
                [I(f's_and_b32 s72, s{S_WAVE}, 1'), I(f's_lshl_b32 s72, s72, 2'), I(f's_and_b32 s71, s{S_WAVE}, 2'),
                 I('s_lshl_b32 s71, s71, 4'), I(f's_add_u32 s72, s72, s71')],
                I(f'v_add_u32 v{VA}, s72, v{VA}'), I(f'v_mul_u32_u24 v{VA}, 9216, v{VA}'),
                I(f'v_lshlrev_b32 v{VB}, 5, v{VB}'), I(f'v_xor_b32 v{VB}, v{VB}, v{V_L16}'), I(f'v_and_b32 v{VB}, 0x30, v{VB}'),
                [I(f's_and_b32 s72, s{S_J}, 7'), I('s_cmp_eq_u32 s72, 2'), I('s_cselect_b32 s72, 1, 32'), I(f's_add_u32 s72, s72, s{S_J}'), I('s_lshl_b32 s72, s72, 7')],
                I(f'v_add3_u32 v{V_DMA}, v{VA}, v{VB}, s72'), Ev('dmah')]
    def F_trh():
        return [I(f'v_and_b32 v{V_TH}, 0x3c0, v{V_L16}'), I(f'v_bfe_u32 v{V_TH+1}, v{V_L16}, 8, 1'), I(f'v_lshl_add_u32 v{V_TH}, v{V_TH+1}, 5, v{V_TH}'),
                I(f'v_bfe_u32 v{V_TH+1}, v{V_L16}, 4, 2'), I(f'v_lshl_add_u32 v{V_TH}, v{V_TH+1}, 3, v{V_TH}'), I(f'v_xor_b32 v{V_TH+1}, 32, v{V_TH}'), Ev('trh')]
    def F_relayout(qd, VA, VB):
        L = [I(f'v_bfe_u32 v{VA}, v{V_L16}, 6, 4'), I(f'v_lshlrev_b32 v{VA}, 7, v{VA}'), I(f'v_bfe_u32 v{VB}, v{V_L16}, 7, 2'),
             I(f'v_lshl_add_u32 v{VA}, v{VB}, 5, v{VA}'), I(f'v_bfe_u32 v{VB}, v{V_L16}, 4, 2'), I(f'v_lshl_add_u32 v{VA}, v{VB}, 3, v{VA}'),
             [I(f's_and_b32 s{S_CNT}, s{S_WAVE}, 3'), I(f's_lshl_b32 s{S_CNT}, s{S_CNT}, 5'), I(f's_and_b32 s30, s{S_W1K}, 0x1000'),
              I(f's_or_b32 s{S_CNT}, s{S_CNT}, s30')],
             I(f'v_xor_b32 v{VA}, s{S_CNT}, v{VA}'), I(f'v_add_u32 v{VA}, {6*SLOT}, v{VA}')]
        def rd(i):
            o = i * SLOT; q = qd[i % 2]
            assert slot_of(IT_R + i) == 6 + i
            return [I(f'ds_read_b64_tr_b16 {vr(q,2)}, v{VA} offset:{o}'), I(f'ds_read_b64_tr_b16 {vr(q+2,2)}, v{VA} offset:{o+2048}')]
        def sto(i): return I(f'buffer_store_dwordx4 {vr(qd[i % 2],4)}, v{V_L16}, {WS}, s{S_RDST+i if not cfg.get("fakeW") else S_OOB} offen sc1', tok=f'w2a{i}')
        return L + [Need('rland'), Need('rsetup')] + rd(0) + rd(1), [[sto(0)] + rd(2), [sto(1)], [sto(2), Ev('rdone')]]
    def F_poison(q):
        L = [I(f'v_mov_b32 v{q+r}, -1') for r in range(4)]
        S_ = [I(f'buffer_store_dwordx4 {vr(q,4)}, v{V_L16}, {WS}, s{S_EX} offen offset:{1024*p} sc1', tok=f'po{p}') for p in range(3)]
        L += [I(f'v_lshrrev_b32 v{q+4}, 1, v{V_L16}')]
        S_ += [I(f'buffer_store_dwordx2 {vr(q,2)}, v{q+4}, {WS}, s{S_E8P} offen sc1', tok='po3')]
        for mt in range(2):
            x = hstore(q, 4, mt, 3); x[1].tok = f'p3_{mt}'; S_.append(x)
        return L, S_ + [Ev('podone')]
    def E_qkv():
        qa, qb = U(4)[2], U(4)[3]
        VA, VB, VC, VD = qb, qb + 1, qb + 2, qb + 3
        L = []
        L += [I(f'v_lshrrev_b32 v{V_A}, 4, v{V_L16}'), I(f'v_and_b32 v{V_A}, 0x30, v{V_A}'), I(f's_add_u32 s{S_CNT}, s{S_W1K}, {MISC}'),
              I(f'v_add_u32 v{V_A}, s{S_CNT}, v{V_A}'),
              I(f'ds_read_b128 {vr(qa,4)}, v{V_A} offset:512'), I(f'ds_read_b128 {vr(qb,4)}, v{V_A} offset:576')]
        for mt in range(2): L.append(I(f'v_mul_f32 v{V_T+mt}, {f2u(1.0/K0C):#x}, v{C0[mt]}'))
        for mt in range(2): L += [I(f'v_mul_f32 v{T0[mt]+r}, v{T0[mt]+r}, v{V_T+mt}') for r in range(4)]
        for mt in range(2):
            for T in (T1, T2, T3):
                L += [I(f'v_mul_f32 v{T[mt]+r}, v{T[mt]+r}, v{(qa, qb)[mt]+r}') for r in range(4)]
        L += pack2(T2[0], T2[0], T2[1])
        L += pack2(T2[1], T3[0], T3[1])
        L.append(I(f'v_mov_b32 v{VB}, 0x3f803f80'))
        L.append(I(f'v_add_u32 v{VA}, s{S_W1K}, v{V_L16}'))
        for r in range(4): L.append(I(f'v_cndmask_b32 v{T2[1]+r}, v{T2[1]+r}, v{VB}, s[{S_M4}:{S_M4+1}]'))
        L += phi_quad(T1[0]) + phi_quad(T1[1]) + pack2(T1[0], T1[0], T1[1])
        L += phi_quad(T3[0]) + phi_quad(T3[1]) + pack2(T3[0], T3[0], T3[1])
        L.append(I(f'v_add_u32 v{VA}, {SCR}, v{VA}'))
        L.append(I(f'v_bfe_u32 v{VC}, v{V_L16}, 6, 2'))
        L.append(mf(T1[1], T1[0], T2[0]))
        L.append(mf(T3[1], T1[0], T2[1]))
        L.append(I(f'ds_write_b128 v{VA}, {vr(T3[0],4)}'))
        L.append(I(f'v_lshlrev_b32 v{VC}, 8, v{VC}'))
        L.append(I(f'v_bfe_u32 v{VB}, v{V_L16}, 4, 2'))
        L.append(mf(T1[0], T3[0], T2[0]))
        L.append(I(f'v_lshl_add_u32 v{VC}, v{VB}, 1, v{VC}'))
        L.append(I(f'v_add_u32 v{VC}, s{S_W1K}, v{VC}'))
        L.append(mf(T2[0], T3[0], T2[1]))
        L.append(I(f'v_add_u32 v{VC}, {SCR}, v{VC}'))
        L.append(I(f'v_bfe_u32 v{VD}, v{V_L16}, 8, 2'))
        for mt in range(2):
            L.append(I(f'ds_read_u16 v{qa+2*mt}, v{VC} offset:{4*16 + mt*8}'))
            L.append(I(f'ds_read_u16 v{qa+2*mt+1}, v{VC} offset:{5*16 + mt*8}'))
        L.append(I(f'ds_write_b128 v{VA}, {vr(T1[1],4)}', tok='kva0'))
        L.append(I(f'v_bfe_u32 v{VB}, v{V_L16}, 4, 4'))
        L.append(I(f'v_mad_u32_u24 v{VA}, v{VD}, 3, v{VB}'))
        L.append(I(f'v_lshlrev_b32 v{VA}, 4, v{VA}'))
        L.append(I(f'v_mov_b32 v{VC}, 0xc0'))
        L.append(I(f'v_cmp_gt_u32 vcc, 3, v{VB}'))
        L.append(I(f'v_lshlrev_b32 v{VB}, 4, v{VB}'))
        L.append(I(f'v_cndmask_b32 v{VA}, v{VC}, v{VA}, vcc'))
        L.append(I(f'v_add_u32 v{VB}, 0x100, v{VB}'))
        L.append(I(f's_add_u32 s{S_CNT}, s{S_W1K}, {MISC}'))
        L.append(I(f'v_cndmask_b32 v{VB}, v{VC}, v{VB}, s[{S_G2}:{S_G2+1}]'))
        L.append(I(f'v_add_u32 v{VA}, s{S_CNT}, v{VA}'))
        L.append(I(f'v_add_u32 v{VB}, s{S_CNT}, v{VB}'))
        L.append(I(f'ds_write_b128 v{VA}, {vr(T3[1],4)}', tok='kva1'))
        L.append(I(f'ds_write_b64 v{VB}, {vr(T1[0],2)}', tok='kva2'))
        L.append(I(f'ds_write_b64 v{VB}, {vr(T2[0],2)} offset:8', tok='kva3'))
        L.append(Ev('qkvdone'))
        return L
    def E_q():
        qa = U(4)[2]; L = []
        for mt in range(2):
            L += phi_quad(T0[mt])
            L += [I(f'v_cvt_pk_bf16_f32 v{T0[mt]}, v{T0[mt]}, v{T0[mt]+1}'), I(f'v_cvt_pk_bf16_f32 v{T0[mt]+1}, v{T0[mt]+2}, v{T0[mt]+3}'),
                  I(f'v_lshl_or_b32 v{T0[mt]+2}, v{qa+2*mt+1}, 16, v{qa+2*mt}'), I(f'v_mov_b32 v{T0[mt]+3}, 0')]
        return L + [Ev('qdone')]
    G = T1[0]
    def sum8(g, s):
        return [I(f'v_add_f32 v{g}, v{g}, v{g+s}'), I(f'v_add_f32 v{g+2*s}, v{g+2*s}, v{g+3*s}'), I(f'v_add_f32 v{g+4*s}, v{g+4*s}, v{g+5*s}'),
                I(f'v_add_f32 v{g+6*s}, v{g+6*s}, v{g+7*s}'), I(f'v_add_f32 v{g}, v{g}, v{g+2*s}'), I(f'v_add_f32 v{g+4*s}, v{g+4*s}, v{g+6*s}'),
                I(f'v_add_f32 v{g}, v{g}, v{g+4*s}')]
    def F_publish(between):
        VA = V_A
        L = [I(f'v_lshrrev_b32 v{VA}, 2, v{V_L16}'), I(f'v_add_u32 v{VA}, s{S_RED}, v{VA}')]
        for p in range(8): L.append(I(f'ds_read_b32 v{G+p}, v{VA} offset:{1024*p}'))
        L += between + sum8(G, 1)
        L += [I(f'v_min_u32 v{G}, -2, v{G}'), I(f'v_lshrrev_b32 v{VA}, 2, v{V_L16}'),
              I(f'buffer_store_dword v{G}, v{VA}, {WS}, s{S_KVST} offen sc1'), Ev('published')]
        L += [I(f'v_mov_b32 v{T1[0]+r}, 0x3f803f80') for r in range(4)] + [Ev('ones2')]
        return L
    G2 = XF(0, 0); VK = XF(1, 0)
    def kv_loads():
        L = []
        for p in range(8):
            if p % 3 == 0:
                t = ftmp(); L.append(I(f's_add_u32 s{t}, s{S_KVLD}, {1536*p}'))
            L.append(I(f'buffer_load_dword v{G2+p}, v{VK}, {WS}, s{t} offen offset:{1536*(p%3)} sc1'))
        return L
    def kv_check():
        return [I(f'v_max3_u32 v{VK+1}, v{G2}, v{G2+1}, v{G2+2}'), I(f'v_max3_u32 v{VK+2}, v{G2+3}, v{G2+4}, v{G2+5}'),
                I(f'v_max3_u32 v{VK+1}, v{VK+1}, v{G2+6}, v{G2+7}'), I(f'v_max_u32 v{VK+1}, v{VK+1}, v{VK+2}'), I(f'v_cmp_eq_u32 vcc, -1, v{VK+1}')]
    def F_kvload(): return [Need('w2ok'), I(f'v_lshrrev_b32 v{VK}, 2, v{V_L16}')] + kv_loads()
    def F_gather():
        g = retry_group(kv_loads, kv_check)
        L = g + sum8(G2, 1)
        L += [I(f's_lshr_b32 s{S_CNT}, s{S_W1K}, 2'), I(f's_add_u32 s{S_CNT}, s{S_CNT}, {KVS}'), I(f'v_add_u32 v{VK+1}, s{S_CNT}, v{VK}'),
              I(f'ds_write_b32 v{VK+1}, v{G2}', tok='kvb0'), Ev('gathered')]
        return L
    def F_o():
        E0, E1, P2, X_ = U(2)
        t = V_T
        L = [I(f'v_add_u32 v{t}, {KVS}, v{V_L16}'), I(f'v_bfe_u32 v{t+1}, v{V_L16}, 8, 2'),
             I(f'ds_read_b128 {vr(E0,4)}, v{t}'),
             I(f'v_bfe_u32 v{t+2}, v{V_L16}, 4, 2'), I(f'v_mad_u32_u24 v{t+1}, v{t+1}, 3, v{t+2}'),
             I(f'v_lshlrev_b32 v{t+1}, 4, v{t+1}'), I(f'v_add_u32 v{t+1}, {KVS}, v{t+1}'),
             I(f'ds_read_b128 {vr(E1,4)}, v{t+1} offset:1024'),
             I(f'v_and_b32 v{t+3}, 0xf0, v{V_L16}'), I(f'v_add_u32 v{t+3}, {KVS}, v{t+3}'),
             I(f'ds_read_b64 {vr(P2,2)}, v{t+3} offset:1280'),
             I(f'v_and_b32 v{t+2}, 0x30, v{V_L16}'), I(f'v_add_u32 v{t+2}, {KVS}, v{t+2}'),
             I(f'ds_read_b64 {vr(P2+2,2)}, v{t+2} offset:1288')]
        for mt in range(2): L.append(I(f'v_mul_f32 v{X_+mt}, {f2u(1.0/K0C):#x}, v{C0[mt]}'))
        for mt in range(2): L.append(I(f'v_mul_f32 v{X_+mt}, v{X_+mt}, v{X_+mt}'))
        L += [I(f's_add_u32 s{S_CNT}, s{S_W1K}, {slot_of(IT_PK) * SLOT}'), I(f'v_add_u32 v{X_+2}, s{S_CNT}, v{V_L16}'), I(f'v_lshrrev_b32 v{X_+3}, 2, v{V_L16}'), Delay(1)]
        for E, c in ((E0, 0), (E1, 2)):
            L.append(I(f'v_cvt_pk_bf16_f32 v{E}, v{E}, v{E+1}'))
            L.append(I(f'v_cvt_pk_bf16_f32 v{E+1}, v{E+2}, v{E+3}'))
            L.append(I(f'v_cvt_pk_bf16_f32 v{E+2}, v{P2+c}, v{P2+c+1}'))
            L.append(I(f'v_mov_b32 v{E+3}, 0'))
        for E in (E0, E1): L.append(I(f'v_cndmask_b32 v{E+2}, 0, v{E+2}, s[{S_G2}:{S_G2+1}]'))
        L.append(Ev('scrfree'))
        D0 = [ACC(3, 0, 0), ACC(3, 0, 1)]; D1 = [ACC(3, 1, 0), ACC(3, 1, 1)]
        L += [I(f'v_mov_b32 v{P2}, s{S_OOB}'), I(f'v_cmp_gt_u32 vcc, 0x80, v{X_+3}')]
        for mt in range(2):
            L.append(mf(D1[mt], E1, T0[mt])); L.append(mf(D0[mt], E0, T0[mt]))
        L += [I(f'v_cndmask_b32 v{X_+3}, v{P2}, v{X_+3}, vcc'), I(f'v_cmp_gt_u32 vcc, 0x100, v{V_L16}')]
        HQ = [E0, E1]
        L += [I(f'ds_read_b64 {vr(HQ[mt],2)}, v{X_+2} offset:{8*mt}') for mt in range(2)]
        for mt in range(2): L.append(I(f'v_add_f32 v{D1[mt]+2}, s{S_EPS}, v{D1[mt]+2}'))
        for mt in range(2): L.append(I(f'v_mul_f32 v{D1[mt]+2}, v{D1[mt]+2}, v{X_+mt}'))
        for mt in range(2): L.append(I(f'v_rcp_f32 v{D1[mt]+2}, v{D1[mt]+2}'))
        for mt in range(2):
            for r in range(4): L.append(I(f'v_mul_f32 v{D0[mt]+r}, v{D0[mt]+r}, v{D1[mt]+2}'))
            for r in (0, 1): L.append(I(f'v_mul_f32 v{D1[mt]+r}, v{D1[mt]+r}, v{D1[mt]+2}'))
            L.append(I(f'v_cvt_pk_bf16_f32 v{HQ[mt]+2}, v{D0[mt]}, v{D0[mt]+1}'))
            L.append(I(f'v_cvt_pk_bf16_f32 v{HQ[mt]+3}, v{D0[mt]+2}, v{D0[mt]+3}'))
            L += hstore(HQ[mt], 4, mt, 4)
            L.append(I(f'v_cvt_pk_bf16_f32 v{D1[mt]}, v{D1[mt]}, v{D1[mt]+1}'))
        L.append(I(f'v_cndmask_b32 v{D1[0]}, v{D1[1]}, v{D1[0]}, vcc'))
        L.append(I(f'buffer_store_dword v{D1[0]}, v{X_+3}, {WS}, s{S_A2L} offen {HST}', tok='ol'))
        L.append(Ev('odone'))
        return L
    def F_p2setup():
        return [I(f'v_lshrrev_b32 v{VSP+3}, 6, v{V_L16}'), I(f'v_mul_u32_u24 v{VSP+1}, 1152, v{VSP+3}'), I(f'v_bfe_u32 v{VSP+2}, v{V_L16}, 4, 2'),
                I(f'v_lshl_add_u32 v{VSP}, v{VSP+2}, 4, v{VSP+1}'), I(f'v_lshl_add_u32 v{VSP+1}, v{VSP+2}, 3, v{VSP+1}'),
                I(f'v_lshlrev_b32 v{VSP+3}, 7, v{VSP+3}'),
                I(f'v_bfe_u32 v{V_AL+2}, v{V_L16}, 4, 4'), I(f'v_and_b32 v{VSP+2}, 0x300, v{V_L16}'), I(f'v_lshl_add_u32 v{VSP+2}, v{V_AL+2}, 2, v{VSP+2}'),
                I(f'v_mov_b32 v{V_AL+2}, 0'), I(f'v_mov_b32 v{V_AL+3}, 0'), Ev('p2setup')]
    p2slots = {slot_of(IT_W2 + k) for k in range(37, 48)}
    free = [slot_of(IT_W2 + k) for k in range(29, 33)] + [19] + [slot_of(IT_W2 + k) for k in range(33, 37)]
    assert not (set(free) & p2slots) and len(set(free)) == 9
    def F_cwrite():
        L = [I(f'v_add_u32 v12, s{S_W1K}, v{V_L16}'), I(f'v_add_u32 v13, {12*SLOT}, v12'), I(f'v_add_u32 v14, {6*SLOT}, v12')]
        return L
    def cmb(k):
        s_ = free[k]
        return (12, s_ * SLOT) if s_ < 6 else ((14, (s_ - 6) * SLOT) if s_ < 12 else (13, (s_ - 12) * SLOT))
    def F_cw2(lts):
        L = []
        for lt in lts:
            r_, o_ = cmb(lt - 2)
            L.append(I(f'ds_write_b128 v{r_}, {vr(ACC2(lt,1),4)} offset:{o_}', tok=f'cw{lt}'))
        return L
    RB_ = [acc1[9], acc1[11], acc1[13]]
    def F_send():
        L = []
        def rd(lt, q):
            r_, o_ = cmb(lt - 2)
            return I(f'ds_read_b128 {vr(q,4)}, v{r_} offset:{o_}')
        def ad(lt, q): return [I(f'v_add_f32 v{ACC2(lt,0)+r}, v{ACC2(lt,0)+r}, v{q+r}') for r in range(4)]
        L += [rd(2, RB_[0]), rd(3, RB_[1]), rd(4, RB_[2]), Delay(2)]
        nxt = 5
        for p in range(1, 4):
            for lt in (2*p, 2*p+1):
                q = RB_[(lt - 2) % 3]
                L += ad(lt, q)
                if nxt <= 8: L.append(rd(nxt, q)); nxt += 1
            a, b = ACC2(2*p, 0), ACC2(2*p+1, 0)
            L += pack2(a, a, b)
            L += [I(f'v_min_u32 v{a+r}, -2, v{a+r}') for r in range(4)]
            L.append(I(f'buffer_store_dwordx4 {vr(a,4)}, v{V_L16}, {WS}, s{S_EXS+p-1} offen sc1'))
        L += ad(8, RB_[0])
        a = ACC2(8, 0); q = RB_[1]
        L += [I(f'v_cvt_pk_bf16_f32 v{q}, v{a}, v{a+1}'), I(f'v_cvt_pk_bf16_f32 v{q+1}, v{a+2}, v{a+3}'),
              I(f'v_min_u32 v{q}, -2, v{q}'), I(f'v_min_u32 v{q+1}, -2, v{q+1}'),
              I(f'buffer_store_dwordx2 {vr(q,2)}, v{V_L8}, {WS}, s{S_E8S} offen sc1'), Ev('sent')]
        return L

    memq = []
    def mq(step, evs, mk, item=None, by=None, ordr=None): memq.append(dict(step=step, ev=evs, mk=mk, item=item, by=by, ordr=ordr))
    def xstep(ks): return SO[('S1', ks) if ks < K1 else ('S1a', ks)]
    n0 = NPRE
    for k in range(PS, len(stg)):
        for h in range(2): mq(0, [f'srd{k-NR}'] if k >= NR else [], (lambda k=k, h=h: sdma(k, h)), ordr='s')
        if n0 < 18:
            mq(0, [], (lambda n=n0: dma(n)), n0, ordr='w'); n0 += 1
        if GPOS <= k < GPOS + 2 and GP < 0:
            for h in range(2): mq(cfg.get('gstep', 3), [], (lambda g=k-GPOS, h=h: gdma(g, h)), ordr='g')
    for n in range(n0, 18): mq(0, [], (lambda n=n: dma(n)), n, ordr='w')
    NXB = cfg.get('nxb', 8)
    for n in range(IT_Q, IT_Q + NXB): mq(0, ['wxok', 'rxinit'], (lambda n=n: dma(n)), n, ordr='s')
    if cfg.get('notouch'): events['tissued'] = -9
    for k in range(NT if not cfg.get('notouch') else 0): memq.insert(k, dict(step=cfg.get('tstep', 11), ev=['tpat', 'wxst0'], mk=(lambda k=k: touch(k)), item=None, by=None, ordr='t'))
    for n in range(IT_R, IT_Q): mq(0, ['rpat', 'tissued'], (lambda n=n: dma(n)), n, ordr='s')
    for n in range(IT_Q + NXB, IT_SCR): mq(SO[tuple(cfg.get('xr', ('S2', 9)))], ['wxok', 'rxinit'], (lambda n=n: dma(n)), n, ordr='s')
    LST = cfg.get('lst', [3])
    for n in range(IT_L1, IT_W2): mq(SO[tuple(cfg.get('l1at', ('S3', 0)))], ['dmah'], (lambda n=n: dma(n)), n, ordr='w')
    TORD = [0, 1, 2, 4, 3]
    def aload(sp, mt, half=None):
        t = stmp(); off = ((sp & 3) * 5 + TORD[sp >> 2]) * 1024
        if half is not None:
            off += half * 512
            return [I(f's_add_u32 s{t}, s{S_A + mt}, {off & ~4095}'),
                    I(f'buffer_load_dwordx2 {vr(AF(sp, mt) + 2 * half, 2)}, v{V_L8}, {WS}, s{t} offen offset:{off & 4095} sc1')]
        return [I(f's_add_u32 s{t}, s{S_A + mt}, {off & ~4095}'),
                I(f'buffer_load_dwordx4 {vr(AF(sp, mt), 4)}, v{V_L16}, {WS}, s{t} offen offset:{off & 4095} sc1')]
    def xfree_step(ks):
        return (SO[('S4c', ks)] if ks < K4 else SO[('S4e', ks)]) + 1
    w2n = IT_W2
    VX = 8
    for sp in range(21):
        while w2n <= IT_W2 + ((sp * 7 + 6) >> 2):
            mq(0, ['w2ok', 'setup2'], (lambda n=w2n: dma(n)), w2n); w2n += 1
        if sp < 20:
            ev = [['h4ok'], ['h4ok'], ['h5ok'], ['h6ok'], ['h5ok']][sp >> 2]
            if sp < 2: ev = ev + ['gathered']
            if sp >= 17: ev = ev + ['e3done']
            for mt in range(2):
                for half in [None]:
                    mq(xfree_step(sp) if sp < 16 else SO[('P1', sp - cfg.get('t3lead', 3))], ev + ['setup2'], (lambda sp=sp, mt=mt, half=half: aload(sp, mt, half)), by=SO[('P1', sp if sp < 16 else sp - 1)])
        if sp == 15:
            for k in range(2):
                mq(0, ['h6ok', 'p2setup'], (lambda k=k: [I(f'buffer_load_dword v{V_AL+k}, v{VSP+2}, {WS}, s{S_AL} offen offset:{128*k} sc1')]), by=SO[('P1', 20)])
    for n in list(range(w2n, w2n + 5)) + [NITEM - 1] + list(range(w2n + 5, NITEM - 1)): mq(0, [], (lambda n=n: dma(n)), n)
    R = AF(0, 0); R8 = R + 12
    rloads = lambda: ([I(f'buffer_load_dwordx4 {vr(R+4*p,4)}, v{V_L16}, {WS}, s{S_EX} offen offset:{1024*p} sc1') for p in range(3)]
                      + [I(f'buffer_load_dwordx2 {vr(R8+2*p,2)}, v{V_L8}, {WS}, s{S_E8R} offen offset:{512*p} sc1') for p in range(3)])
    for mk in (lambda: [I(f'buffer_load_dwordx4 {vr(8,4)}, v{VSP}, {XS}, s{S_O} offen')],
               lambda: [I(f'buffer_load_dwordx2 {vr(0,2)}, v{VSP+1}, {XS}, s{S_O8} offen')],
               lambda: [I(f'buffer_load_dword v15, v{VSP+3}, {WS}, s{S_STK} offen offset:8 sc1')]):
        mq(0, ['e3done', 'p2setup', 'pook'], mk, by=SO[('P2a', cfg.get('pb', 2))])

    KP = tuple(cfg.get('kp', ('S4a', K3 + 5))); KO = tuple(cfg.get('ko', ('S4d', K4 + 3)))
    PB = ('P2a', cfg.get('pb', 2))
    WXF = ('S1', cfg.get('wxf', 11)); RS = ('S3', 5); F3F = KP
    barspec = cfg.get('bars', None) or (
        [('S1', 1), WXF] + [('S1', k) for k in range(0, K1, cfg.get('s1b', 1))] + [('S1a', K1), ('S1b', K1), ('S1d', K1 + 2), ('S2', 0), ('S2', 9), ('S3', 0), ('S3', 5), ('S3', 10), ('S3', 14), ('S3', 17),
         ('S4', 0), ('S4', 4), ('S4a', K3), KP, ('S4b', K3), ('S4c', 0), ('S4c', 4), KO, ('S4e', K4), ('S4e', K4 + 5)]
        + [('P1', k) for k in cfg.get('p1b', [0, 3, 6, 9, 12, 15, 17, 19])] + [('P2a', 0), PB, ('P2a', 14), ('P2b', 6)])
    bars = sorted(set(SO[tuple(b)] for b in barspec))
    if 'getbars' in cfg: cfg['getbars'] += [list(steps[b]) for b in bars]
    need = {}
    for bi, b in enumerate(bars):
        lo = first_frag[b] + (D if bi else 0)
        hi = first_frag[bars[bi + 1]] + D if bi + 1 < len(bars) else NF
        need[b] = sorted({frags[i]['item'] for i in range(lo, min(hi, NF))} - {None})
    last_use = {}
    for f in frags:
        if f['item'] is not None: last_use[f['item']] = f['step']
    need[SO[RS]] = sorted(set(need[SO[RS]]) | {IT_R, IT_R + 1, IT_R + 2})
    rel_ev = {IT_R: 'rdone', IT_R + 1: 'rdone', IT_R + 2: 'rdone', IT_SCR: 'scrfree', IT_PK: 'odone', 'stage': 'xdone', 'gst': 'wxst1'}
    released = set()
    issued = {n: -1 for n in range(NPRE)}
    events['srd0'] = events['srd1'] = -9
    def spread(main, items, start, step):
        o = {}
        for k, x in enumerate(items): o.setdefault(min(start + k * step, len(main) - 1), []).extend(x if isinstance(x, list) else [x])
        L = []
        for k, x in enumerate(main):
            if k in o: L += o[k]
            L.append(x)
        return L
    avail = {}
    def at(step, f): avail.setdefault(SO[step], []).append(f)
    xrd = {}
    for L_ in range(1, 9):
        xrd.setdefault(min(xstep(2 * L_) - 1, SO[('S1', K1 - 1)]), []).append(L_)
    DL = cfg.get('dl', 36); S_RSRC2 = S_RDST
    at(('S1', cfg.get('rowat', 0)), lambda: F_nonce((F_tpat() if not cfg.get('notouch') else [Delay(8)]) + [Delay(cfg.get('ndelay', 32))]))
    evfront = [('gl0', None, lambda: F_wx(0)), ('gl1', 'wxst0', lambda: F_wx(1))]
    at(WXF, lambda: [Need('setup0')] + setflag(S_F2S, 0, [], V_T + 1, V_T + 2))
    pw = poll([], 3, 'wxok', False, True, [], V_T + 1, V_T + 2, S_F2P)
    at(('S1', cfg.get('stat', 12)), lambda: F_stats([Delay(cfg.get('dl', 22))] + pw[:-4] + [Delay(cfg.get('dl2', 8))]) + [Delay(cfg.get('dl3', 4))] + pw[-4:] + F_stats2())
    at(('S1b', K1), lambda: [Need('setup1'), Need('wxok')] + F_csx() + F_rpat() + [Need('tissued')] + F_c1())
    at(('S1b', K1 + 2), lambda: E_first(0))
    po = F_poison(T2[0])
    at(('S1c', K1), lambda: E_second(0, 1, 0) + [Ev('u01free')])
    rl = F_relayout([ACC(2, 1, 0), ACC(2, 1, 1)], V_TH, V_T)
    at(('S2', 0), lambda: E_first(2) + rl[0] + spread(E_second(2, 3, 1) + [Ev('u23free')], rl[1], 6, 14))
    assert not cfg.get('map', 0)
    kvpo = [I(f'v_mov_b32 v{U(3)[0]}, -1'), I(f'v_lshrrev_b32 v{U(3)[0]+1}, 2, v{V_L16}'),
            I(f'buffer_store_dword v{U(3)[0]}, v{U(3)[0]+1}, {WS}, s{S_KVST} offen sc1', tok='kvpo')]
    at(('S3', 2), lambda: [Need('setup1b')] + kvpo + F_trh() + E_quarter(4) + [Ev('u4free')] + [I(f'v_mov_b32 v{ONES+r}, 0x3f803f80') for r in range(4)] + [Ev('ones1')])
    at(('S4', 0), lambda: setflag(S_FL, 0, ['h0_0_0', 'h0_1_0', 'h1_0_0', 'h1_1_0'], q3, q3 + 1) + setflag(S_F2S, 0x8000, [], q3, q3 + 1)[5:] + E_qkv())
    w2p = [I(f's_and_b32 s{S_RSRC2}, s2, 3'), I(f's_lshl_b32 s{S_RSRC2}, s{S_RSRC2}, 13'), I(f's_add_u32 s{S_RSRC2}, s{S_RSRC2}, s{S_W1K}'),
           I(f's_add_u32 s{S_RSRC2}, s{S_RSRC2}, {F2_OFF + 0x8000}')]
    at(KP, lambda: F_publish([Delay(3)]) + po[0] + spread(E_q(), po[1], 1, 7))
    at(('S4b', K3 + 2), lambda: pollh(0, 'h4ok', poll(w2p, 3, 'w2ok', False, True, E_first(2), q3 + 2, q3 + 3, S_RSRC2), q3, q3 + 1) + [Ev('u4free2'), Ev('e2b')])
    at(('S4c', 0), lambda: E_second(2, 3, 2)[:36])
    at(('S4c', cfg.get('kvl', 3)), lambda: F_kvload() + E_second(2, 3, 2)[36:] + [Ev('e2done')] + F_gather())
    at(KO, lambda: F_o())
    at(('S4e', K4 + 2), lambda: E_first(4) + [Ev('e4a')])
    e3 = E_second(4, 1, 3)
    at(('P1', 0), lambda: [I(f'v_lshrrev_b32 v{V_L8}, 1, v{V_L16}'), Ev('l8')] + e3 + [Ev('e3done')] + F_p2setup())
    def t3check(sp):
        a0, a1 = AF(sp, 0), AF(sp, 1)
        def ld():
            L = []
            for mt in range(2):
                off = ((sp & 3) * 5 + 3) * 1024
                L += [I(f's_add_u32 s{S_PT}, s{S_A + mt}, {off & ~4095}'),
                      I(f'buffer_load_dwordx4 {vr(AF(sp, mt), 4)}, v{V_L16}, {WS}, s{S_PT} offen offset:{off & 4095} sc1')]
            return L
        ck = lambda: [I(f'v_max3_u32 v3, v{a0}, v{a0+1}, v{a0+2}'), I(f'v_max3_u32 v6, v{a0+3}, v{a1}, v{a1+1}'),
                      I(f'v_max3_u32 v3, v3, v{a1+2}, v{a1+3}'), I('v_max_u32 v3, v3, v6'), I('v_cmp_eq_u32 vcc, -1, v3')]
        g = retry_group(ld, ck)
        return [Delay(cfg.get('t3d', 7))] + g + [Ev(f't3ok{sp}')]
    for sp in range(16, 20): at(('P1', sp - 1), lambda sp=sp: t3check(sp))
    at(('P1', cfg.get('pp', 10)), lambda: poll([I(f's_and_b32 s{S_PT}, s2, 0xfc'), I(f's_lshl_b32 s{S_PT}, s{S_PT}, 7'), I(f's_add_u32 s{S_PT}, s{S_PT}, {F4_OFF}')],
                                               2, 'pook', False, False, [Delay(28)], 3, 6) + [Need('e3done')] + F_cwrite() + [Ev('cwa')])
    at(('P1', 19), lambda: [Delay(5)] + [y for lt in range(2, 7) for y in F_cw2([lt]) + [Delay(3)]] + [Ev('cw6')])
    at(('P2a', 0), lambda: F_cw2(range(7, 9)) + [I(f'v_xor_b32 v{r_}, 0x1000, v{r_}') for r_ in (12, 13, 14)] + [Ev('cwb')])
    if not cfg.get('fastsend', 1): at(PB, lambda: F_send())
    TT = acc1[0]
    at(('P2b', 2), lambda: [Need('sent'), I(f'v_xor_b32 v{TT}, 0x1000, v{cmb(8)[0]}'), I(f'ds_write_b128 v{TT}, {vr(ACC2(0,1),4)} offset:{cmb(8)[1]}', tok='c0w'), Ev('c0w')])
    at(('P2b', 6), lambda: [I(f'ds_read_b128 {vr(ACC2(0,1),4)}, v{cmb(8)[0]} offset:{cmb(8)[1]}'), I('v_mul_f32 v15, v15, v15'), Delay(3)]
       + [I(f'v_add_f32 v{ACC2(0,0)+r}, v{ACC2(0,0)+r}, v{ACC2(0,1)+r}') for r in range(4)] + [Ev('c0done')])
    TW = acc1[2]
    TB0 = (0 if free[7] >= 4 else 4) * SLOT
    tadr = [I(f's_lshl_b32 s{S_CNT}, s{S_W1K}, 2'), I(f's_add_u32 s{S_CNT}, s{S_CNT}, {TB0}'),
            I(f'v_bfe_u32 v{TW}, v{V_L16}, 4, 4'), I(f'v_mul_u32_u24 v{TW}, 208, v{TW}'), I(f'v_bfe_u32 v{TW+3}, v{V_L16}, 8, 2'),
            I(f'v_lshl_add_u32 v{TW}, v{TW+3}, 4, v{TW}'), I(f'v_add_u32 v{TW}, s{S_CNT}, v{TW}'),
            I(f'v_lshrrev_b32 v{TW+2}, 6, v{V_L16}'), I(f'v_mul_u32_u24 v{TW+2}, 208, v{TW+2}'), I(f'v_add_u32 v{TW+2}, s{S_CNT}, v{TW+2}'),
            I(f'v_bfe_u32 v{TW+3}, v{V_L16}, 4, 2'), I(f'v_lshl_add_u32 v{TW+1}, v{TW+3}, 5, v{TW+2}'), I(f'v_lshl_add_u32 v{TW+2}, v{TW+3}, 4, v{TW+2}')]
    at(('P2b', cfg.get('rcv', 9)), lambda: rloads() + tadr + [Ev('rcv')])
    p5 = pollh(1, 'h5ok', [], 3, 6); p6 = pollh(2, 'h6ok', [], 3, 6)
    P5 = cfg.get('p5', 3); P6 = cfg.get('p6', 7); F6 = cfg.get('f6', 1)
    front2 = {SO[('S4e', K4)]: lambda: setflag(S_FL, HS, ['h2_0_0', 'h2_1_0', 'p3_0', 'p3_1'], V_A, V_DMA) + setflag(S_F3S, F4_OFF - F3_OFF, [], V_A, V_DMA)[5:] + [Ev('f5')],
              SO[('P1', F6)]: lambda: setflag(S_FL, 2*HS, ['h4_0_0', 'h4_1_0', 'ol'], 3, 6),
              SO[('P1', P5)]: lambda: p5[:-4], SO[('P1', P5 + 2)]: lambda: p5[-4:], SO[('P1', P6)]: lambda: p6[:-4], SO[('P1', P6 + 2)]: lambda: p6[-4:]}
    assert F6 < P5 and P5 + 2 < P6 and P6 + 2 <= cfg.get('pp', 10)
    front = {SO[('S1d', K1)]: lambda: F_csx2() + [Ev('csx')], SO[('S2', 0)]: lambda: [Need('l0issued')] + F_dmah(V_DMA, V_TH + 1)}
    front.update(front2)
    inline = {}
    front[SO[('S1a', K1 + 1)]] = lambda: [Need('setup1'), Delay(2)] + cswrite(CSA, 0, ONES) + [Ev('csw0')]
    front[SO[('S4a', CA_END + 1)]] = lambda: cswrite(CSA, 2, ONES) + [Ev('csw2')]
    front[SO[('S4d', CB_END + 1)]] = lambda: cswrite(T1[1], 3, T1[0]) + [Ev('csw3')]
    must = {('S1b', K1): ['stats', 'csw0'], ('S4b', K3): ['csw2'], ('S4e', K4): ['csw3'], ('S2', 0): ['csx'], WXF: ['wxst1'], ('S3', 0): ['u01free'], ('S3', 17): ['trh'],
            ('S4', 0): ['rdone', 'ones1'], KP: ['qkvdone'],
            ('S4c', 0): ['u4free2', 'published', 'ones2', 'e2b'], KO: ['gathered'], ('P1', 0): ['odone', 'e2done', 'f5'] + (['e4a'] if cfg.get('e4a', 0) else []), ('P2a', 0): ['cw6'], PB: ['cwb'], ('P2b', 6): ['c0w']}
    for sp in range(16, 20): must[('P1', sp)] = [f't3ok{sp}', 'cwa']
    must = {SO[k]: v for k, v in must.items()}
    b1 = sq_txt[-1].split('\n'); cut = [k for k, l in enumerate(b1) if f's_cselect_b32 s{S_F3S},' in l][0] + 1
    savail = {SO[('S1', 0)]: lambda: [Need('gissued')] + sgroups('\n'.join(b1[:cut] + sqa)) + [Ev('setup0')] + sgroups(sq_txt[0]) + [Ev('setup1')],
              SO[('S2', 0)]: lambda: sgroups('\n'.join(sq_txt[1:-1])) + [Ev('rsetup')] + sgroups('\n'.join(b1[cut:])) + [Ev('setup1b')],
              SO[('S4', 0)]: lambda: [Need('xissued'), Need('rdone')] + F_setup2()}
    bar_extra = {SO[WXF]: ['wx0', 'wx1', 'wc0', 'wc1'], SO[('S1b', K1)]: ['cs0'], SO[('S3', 0)]: ['cs1'],
                 SO[KP]: [f'kva{i}' for i in range(4)], SO[('S4', 0)]: ['w2a0', 'w2a1', 'w2a2', 'kvpo'],
                 SO[('S4b', K3)]: ['cs2'], SO[KO]: ['kvb0'], SO[('S4e', K4)]: ['cs3'] + [f'po{p}' for p in range(4)],
                 SO[PB]: [f'cw{lt}' for lt in range(2, 9)], SO[('P2b', 6)]: ['c0w']}
    for k in bar_extra: assert k in bars, steps[k]

    fill = []; sfill = []; xfill = []
    st.gap = 0; st.delay_until = 0; st.cur = -99; st.ta = 0.0; st.adv = None; st.armed = None; st.force = False
    MEMSP = cfg.get('memsp', {})
    def memsp(s):
        if s < cfg.get('fasts', 0): return cfg.get('fastsp', 2.0)
        return MEMSP.get(steps[s][0][:2], {'S1': 3.8, 'P1': 4.0, 'S4': 4.0}.get(steps[s][0][:2], 4.5))
    def isI(x, kinds): return isinstance(x, I) and x.kind in kinds
    def housekeeping(force=False):
        while fill:
            x = fill[0]
            if isinstance(x, Ev): (pending if x.bar else events)[x.name] = st.gap; fill.pop(0)
            elif isinstance(x, Need):
                if x.name in events and not (x.name.endswith('issued') and events[x.name] > st.gap - 4): fill.pop(0)
                else:
                    assert not force, ('blocked on', x.name)
                    return False
            elif isinstance(x, Delay):
                if x.n >= 0:
                    x.until = st.gap + x.n; x.n = -1
                if force or st.gap >= x.until: fill.pop(0)
                else: return False
            else: return True
        return False
    def slots(seq):
        t = 0; lastv = -10; first = True
        for x in seq:
            if isinstance(x, Wait): t += 1; continue
            if first: first = False; t = 1; continue
            if x.kind in ('valu', 'trans'):
                t = max(t, 2); t += x.cost; lastv = t - 1
            elif x.kind in ('ds_r', 'ds_w', 'vm_ld', 'vm_st', 'vm_dma'):
                t = max(t, 2, lastv + 3); t += 1
            else: t += x.states()
        return t
    st.tnext = 0
    def mem_ready(e, s):
        if e['ordr'] == 't' and st.gap < st.tnext: return False
        if e['step'] > s or any(v not in events or events[v] > st.gap - (4 if v.startswith('srd') else 0) for v in e['ev']): return False
        n = e['item']
        if n is not None and IT_L1 <= n < IT_W2:
            if PAIR and L1hk(n)[0] == 0:
                if st.gap < issued.get(n - 1, -99) + cfg.get('l1sp', 8) or (prev_of(n + 1) not in released and n + 2 < IT_W2): return False
            elif not PAIR and st.gap < issued.get(n - 1, -99) + cfg.get('l1sp', 8): return False
        if n is not None and prev_of(n) is not None and prev_of(n) not in released: return False
        return True
    leads = {}; sissue = {f's{k}_1': -30 for k in range(PS)}; st.nx = 2
    if GP >= 0:
        sissue.update({'sg0_1': -20, 'sg1_1': -20}); events['gissued'] = -9
    def flush_armed():
        g = st.armed or []; st.armed = None
        return g
    def pop_mem(s, win=None):
        if st.armed: return flush_armed()
        if sfill and sfill[0] is st.adv:
            if win is None: return None
            return sfill.pop(0)
        blocked = set()
        for k in range(min(win or cfg.get('ooo', 24), len(memq))):
            e = memq[k]
            if e['ordr'] not in blocked and mem_ready(e, s):
                memq.pop(k)
                if e['item'] is not None: issued[e['item']] = st.gap
                if e['by'] is not None: leads.setdefault(e['by'], []).append(st.gap)
                g = e['mk']()
                for x in g:
                    if x.tok and x.tok[0] == 's': sissue[x.tok] = st.gap
                if all(n in issued for n in range(IT_R, IT_Q)): events.setdefault('rissued', st.gap)
                if all(n in issued for n in range(IT_Q, IT_SCR)): events.setdefault('xissued', st.gap)
                if all(n in issued for n in range(18)): events.setdefault('l0issued', st.gap)
                if f's{len(stg)-1}_1' in sissue: events.setdefault('rxinit', st.gap)
                if 'sg1_1' in sissue: events.setdefault('gissued', st.gap)
                return g
            if e['ordr']: blocked.add(e['ordr'])
        return None
    def vcost(x, s):
        c = memsp(s)
        if x.op.endswith('x4'): return c
        if x.op.endswith('x2'): return c
        return c / 2
    VM = ('vm_ld', 'vm_st')
    def gap(m, shadow, rd, s, quiet=False):
        st.gap += 1
        budget = 2
        rds = [x for x in rd if x.kind == 'salu']; rdv = [x for x in rd if x.kind == 'valu']; rdm = [x for x in rd if x.kind == 'ds_r']
        head = shadow + rds; val = list(rdv); budget -= len(rdv)
        sal = []; mem = []; fre = []; post = []; later = None; first_mem = False
        if not quiet:
            hk = housekeeping()
            fvm = hk and (isI(fill[0], VM) or (isI(fill[0], ('salu',)) and len(fill) > 1 and isI(fill[1], VM)))
            if fvm and st.armed: fvm = False
            if fvm:
                x = fill[0] if isI(fill[0], VM) else fill[1]
                if st.gap >= st.ta - cfg.get('fslack', 6) or not x.op.endswith('x4'):
                    if fill[0] is not x: fre.append(fill.pop(0))
                    mem.append(fill.pop(0))
            while st.nx < 18 and not xfill:
                k = spos[('x', st.nx)]
                if f's{k}_1' in sissue and st.gap - sissue[f's{k}_1'] >= cfg.get('lag', 45) and (st.nx < 16 or 'nonce' in events):
                    if cfg.get('verbose'): print('   x pair', st.nx, 'early read at gap', st.gap)
                    xfill.extend([xread(st.nx, 0), xread(st.nx, 1), Ev(f'srd{k}')]); st.nx += 1
                else: break
            for i_ in range(2):
                if f'sg{i_}_1' in sissue and st.gap - sissue[f'sg{i_}_1'] >= cfg.get('glag', 50): events.setdefault(f'gl{i_}', st.gap)
            if evfront and evfront[0][0] in events and (evfront[0][1] is None or evfront[0][1] in events) and not mem:
                k = 0
                while k < len(fill) and (isI(fill[k], ('vm_st', 'vm_ld')) or isinstance(fill[k], list) or (isinstance(fill[k], Delay) and k + 1 < len(fill) and isinstance(fill[k+1], list))): k += 1
                fill[k:k] = evfront.pop(0)[2]()
            if not mem and xfill and len(rdm) < 2 and not st.armed:
                x = xfill.pop(0); mem.append(x)
                while xfill and isinstance(xfill[0], Ev): events[xfill.pop(0).name] = st.gap
            if st.armed and not mem and (st.force or (len(rdm) < 2 and not (cfg.get('rr', 1) and rdm))):
                mem.append(st.armed[0]); first_mem = True
                if st.armed[1:]: later = st.armed[1:]
                st.armed = None
            elif not st.armed and not mem and st.gap + 1 >= st.ta and not (hk and steps[s][0] != 'S1' and any(isI(x, VM) for x in fill[:3])):
                g = pop_mem(s)
                if g:
                    k = [q for q, x in enumerate(g) if x.kind.startswith('vm')][0]
                    fre += [x for x in g[:k] if x.kind != 'nop']; st.armed = g[k:]
            big = any(x.kind.startswith('vm') and (x.op.endswith('x4') or x.op.endswith('x2')) for x in mem)
            if not (big and cfg.get('vmq', 1)) and not (fvm and mem) and not (len(rdm) + len(mem) >= 2 and steps[s][0] == 'S1'):
                if not head and housekeeping() and isI(fill[0], ('salu',)): head.append(fill.pop(0))
                while housekeeping() and isI(fill[0], ('valu', 'trans')) and fill[0].cost <= budget:
                    x = fill.pop(0); budget -= x.cost; val.append(x)
                if budget == 1 and housekeeping() and isI(fill[0], ('trans',)):
                    for k in range(1, min(8, len(fill))):
                        x = fill[k]
                        if not isI(x, ('valu', 'trans')): break
                        if x.kind == 'valu' and not any((x.rd & y.wr) or (x.wr & (y.rd | y.wr)) for y in fill[:k]):
                            val.append(fill.pop(k)); budget -= 1; break
                if not mem:
                    while housekeeping() and isI(fill[0], ('salu',)) and len(sal) < 2 and not (len(fill) > 1 and isI(fill[1], VM)):
                        sal.append(fill.pop(0))
                    while housekeeping() and isI(fill[0], ('ds_r', 'ds_w')) and len(mem) < 2 - len(rdm): mem.append(fill.pop(0))
            for x in mem:
                if x.kind.startswith('vm'): st.ta = max(st.ta, st.gap - cfg.get('credit', 4)) + vcost(x, s)
            room = (0 if head else 1) + 2 - len(sal) - len(fre) - len(post)
            if big or len(rdm) + len(mem) >= 2: room = min(room, (0 if head or fre else 1) + (2 - len(sal) - len(fre) if val else 0))
            pre = []
            while sfill and room > 0:
                x = sfill[0]
                if isinstance(x, Ev): events[x.name] = st.gap; sfill.pop(0); continue
                if isinstance(x, Need):
                    if x.name in events and events[x.name] < st.gap - 4 and not st.armed and not first_mem: sfill.pop(0); continue
                    break
                n = len(x) if isinstance(x, list) else 1
                if n > room and (room < 2 or pre): break
                sfill.pop(0); room -= n
                pre.append(x)
            if not head and pre and not isinstance(pre[0], list): head.append(pre.pop(0))
            if not head and fre: head.append(fre.pop(0))
            for x in pre: sal += x if isinstance(x, list) else [x]
        seq = [m] + head + (val + sal + fre + rdm + mem) + post
        if later: sfill.insert(0, later); st.adv = later
        if not quiet and not mem and housekeeping() and isinstance(fill[0], list): seq += fill.pop(0)
        if len(val) > len(rdv): st.cur = st.gap
        if not quiet:
            mg = MINGAP if st.gap - st.cur < 6 else cfg.get('padq', 5)
            if seq[-1] in mem and seq[-1].kind.startswith('vm'): mg -= 2
            if mg > slots(seq):
                lw = cfg.get('latew', 1) and shadow and isinstance(seq[1], Wait)
                if lw: w_ = seq.pop(1)
                n_ = mg - slots(seq) - (1 if lw else 0)
                if n_ > 0: seq.append(I(f's_nop {n_ - 1}'))
                if lw: seq.append(w_)
        if not quiet:
            if housekeeping() and isI(fill[0], ('mfma',)): seq += gap(fill.pop(0), [], [], s)
        return seq
    def drain_until(evs):
        L = []
        while any(e not in events for e in evs):
            assert fill, evs
            if housekeeping(force=True):
                x = fill.pop(0)
                if isinstance(x, list): L += x
                else: L.append(x)
        if L and cfg.get('verbose'): print('  drained', len(L), 'instrs for', evs)
        return L
    M = []
    def barrier_pre(b):
        L = []
        for n in need[b]:
            while n not in issued:
                g = pop_mem(b - 1, 40)
                assert g, ('item not issuable', n, steps[b], [(e['item'], e['ev'], e['step']) for e in memq[:6]])
                if cfg.get('verbose'): print('  forced issue before', steps[b], 'for item', n)
                L += g
        if cfg.get('verbose'):
            print('bar', steps[b], 'gap', st.gap, 'need', need[b], 'lead', [st.gap - issued[n] for n in need[b]])
        L.append(Wait([f'it{n}' for n in need[b]] + bar_extra.get(b, [])))
        return L
    def barrier_post(b):
        events.update(pending); pending.clear()
        if b == SO[RS]: events['rland'] = st.gap
        for n in list(last_use) + list(rel_ev):
            if n in rel_ev:
                if rel_ev[n] in events: released.add(n)
            elif last_use[n] < b: released.add(n)
    tsph = cfg.get('tsph', ['S2', 'S4', 'S4c', 'P1'])
    for i in range(NF):
        s = frags[i]['step']
        if i == 0:
            M += barrier_pre(0) + [I('s_barrier')] + ts('s1start')
            for k in range(D):
                r0, r1 = reads(k); M += r0 + r1
        if first_frag[s] == i:
            if steps[s] == ('S2', 0): assert 'rissued' in events
            if steps[s] == ('S1c', K1): tr1_last = st.gap
            if steps[s] == PB and cfg.get('fastsend', 1):
                fill.extend(F_send()); M += drain_until(['sent'])
            if s in front:
                k = 0
                while k < len(fill) and (isI(fill[k], ('vm_st', 'vm_ld')) or isinstance(fill[k], (Delay, list))): k += 1
                fill[k:k] = front[s]()
            if s in savail: sfill.extend(savail[s]())
            for f in avail.get(s, []): fill.extend(f())
            for L_ in xrd.get(s, []):
                for p in (2 * L_, 2 * L_ + 1):
                    if p < st.nx: continue
                    assert p < 16 or 'nonce' in events
                    st.nx = p + 1
                    k = spos[('x', p)]
                    if st.armed and st.armed[0].tok in (f's{k}_0', f's{k}_1'): M += flush_armed()
                    while f's{k}_1' not in sissue:
                        while xfill:
                            x = xfill.pop(0)
                            if isinstance(x, Ev): events[x.name] = st.gap - 4
                            else: M.append(x)
                        g = pop_mem(s, 40)
                        assert g, ('staging not issuable', k, steps[s])
                        if cfg.get('verbose'): print('  forced staging issue', k, steps[s])
                        M += g
                    if cfg.get('verbose'): print('   x pair', p, 'read at', steps[s], 'lead', st.gap - sissue.get(f's{k}_1', -1))
                    xfill.extend([xread(p, 0), xread(p, 1), Ev(f'srd{k}')])
        if steps[s] == ('S1d', 17) and first_frag[s] == i - 0 and False: pass
        ms = mfmas(i)
        r0, r1 = reads(i + D) if i + D < NF else ([], [])
        ns = frags[i + 1]['step'] if i + 1 < NF else None
        nxt_first = ns is not None and first_frag[ns] == i + 1
        shadow = [Wait(rtoks(i + 1))] if i + 1 < NF else []
        if len(ms) == 2:
            if cfg.get('bb', 1) and nxt_first and ns in bars:
                st.force = True; M += gap(ms[0], [], r0 + r1, s); lastrd = []; st.force = False
            elif cfg.get('rr', 1) and st.armed and r1:
                st.force = True; M += gap(ms[0], [], r0 + r1, s); lastrd = []; st.force = False
            else:
                M += gap(ms[0], [], r0, s); lastrd = r1
        else: lastrd = r0 + r1
        if nxt_first and st.armed:
            x = st.armed[0]
            if (ns in bars and x.tok in [f'it{n}' for n in need[ns]]) or (x.kind == 'vm_ld' and ns in leads) or steps[ns] in (('S2', 0), ('S1a', K1)): M += flush_armed()
        if nxt_first:
            if steps[ns][0] in ('S1', 'S1a'):
                nd = set().union(*[{('v', XF(steps[ns][1], mt) + r) for r in range(4)} for mt in range(2)])
                while xfill and (steps[ns][0] == 'S1a' or any(isinstance(y, I) and (y.wr & nd) for y in xfill)):
                    x = xfill.pop(0)
                    if isinstance(x, Ev): events[x.name] = st.gap
                    else: M.append(x)
            if 'xdone' not in events and ns in bars and f'srd{len(stg)-1}' in events:
                M.append(Wait([f'sr{len(stg)-1}_1'])); events['xdone'] = st.gap
            if ns in must: M += drain_until(must[ns])
            if ns in inline: assert 'setup1' in events
            if ns in inline: M += [x for x in inline[ns]() if isinstance(x, I)]
            while any(e['by'] is not None and e['by'] <= ns for e in memq):
                g = pop_mem(s, 60)
                assert g, ('load not issuable', steps[ns], [(e['item'], e['ev'], e['step']) for e in memq[:8]])
                if cfg.get('verbose'): print('  forced load before', steps[ns])
                M += g
            if cfg.get('verbose') and ns in leads: print('   step', steps[ns], 'gap', st.gap, 'reg-load lead', [st.gap - x for x in leads[ns]])
        if nxt_first and ns in bars:
            M += barrier_pre(ns)
            M += gap(ms[-1], [I('s_barrier')] + shadow, lastrd, s, quiet=True)
            barrier_post(ns)
        else:
            M += gap(ms[-1], shadow, lastrd, s)
        if nxt_first and steps[ns][0] != steps[s][0] and steps[ns][0] in tsph: M += ts(steps[ns][0])
        if nxt_first and list(steps[ns]) == cfg.get('holdat'):
            M += IL(f"""
            s_mov_b32 s99, 20000
            L_hold:
            s_memrealtime s[88:89]
            s_waitcnt lgkmcnt(0)
            s_lshl_b32 s88, s88, 3
            s_sub_u32 s88, s88, s{S_NON}
            s_and_b32 s88, s88, 0x7fffffff
            s_sub_u32 s99, s99, 1
            s_cmp_eq_u32 s99, 0
            s_cbranch_scc1 L_holdx
            s_cmp_lt_u32 s88, {cfg['hold'] * 800}
            s_cbranch_scc1 L_hold
            L_holdx:
            """)
        if nxt_first and list(steps[ns]) in cfg.get('tsat', []): M += ts(f'@{steps[ns][0]}.{steps[ns][1]}')
    M += flush_armed()
    assert not memq, [(e['item'], e['ev']) for e in memq]
    M += drain_until(['rcv'])
    assert not fill and not sfill, (fill, sfill)
    M += ts('mainend')
    drop = cfg.get('drop', [])
    if drop:
        gone = set(); M2 = []
        for k, x in enumerate(M):
            if isinstance(x, I) and not x.raw and k > 3 and (x.kind in drop or ('xrd' in drop and x.tok and x.tok.startswith('sr')) or ('nop' in drop and x.kind == 'nop' and False)):
                if x.tok: gone.add(x.tok)
                continue
            M2.append(x)
        for x in M2:
            if isinstance(x, Wait): x.toks = [t for t in x.toks if t not in gone]
            else: x.waits = [t for t in x.waits if t not in gone]
        if 'vmwait' in drop:
            for x in M2:
                if isinstance(x, Wait): x.toks = [t for t in x.toks if not t.startswith('it')]
                else: x.waits = [t for t in x.waits if t.startswith('sr')]
        M = M2
    P.ext(M)
    TT = AF(3, 0)
    r7, o7 = cmb(7)
    P(f'v_xor_b32 v{TT+5}, 0x1000, v{r7}')
    P('s_mov_b32 s24, 0xffff0000')
    P(f'ds_write_b128 v{TT+5}, {vr(ACC2(1,1),4)} offset:{o7}', tok='c1w')
    def unpk(src):
        P(f'v_lshlrev_b32 v{TT}, 16, v{src}'); P(f'v_and_b32 v{TT+1}, s24, v{src}')
        P(f'v_lshlrev_b32 v{TT+2}, 16, v{src+1}'); P(f'v_and_b32 v{TT+3}, s24, v{src+1}')
    def addpk(dst, src):
        unpk(src)
        for r in range(4): P(f'v_add_f32 v{dst+r}, v{dst+r}, v{TT+r}')
    def rcheck():
        a, b = TT + 6, TT + 7
        L = [I(f'v_max3_u32 v{a}, v{R}, v{R+1}, v{R+2}'), I(f'v_max3_u32 v{b}, v{R+3}, v{R+4}, v{R+5}')]
        for k in range(6, 18, 4):
            L += [I(f'v_max3_u32 v{a}, v{a}, v{R+k}, v{R+k+1}'), I(f'v_max3_u32 v{b}, v{b}, v{R+k+2}, v{R+k+3}')]
        return L + [I(f'v_max_u32 v{a}, v{a}, v{b}'), I(f'v_cmp_eq_u32 vcc, -1, v{a}')]
    P.wait(['c1w'])
    P('s_barrier')
    P(f'ds_read_b128 {vr(ACC2(1,1),4)}, v{r7} offset:{o7}')
    g_ = retry_group(rloads, rcheck, sleep=1); P.ext(g_[:-2] + g_[-1])
    P.ext(ts('recv'))
    for k, (lt, rr) in enumerate(((0, lambda p: R+4*p), (8, lambda p: R8+2*p), (1, lambda p: R+4*p+2))):
        a = ACC2(lt, 0)
        if lt == 1:
            for r in range(4): P(f'v_add_f32 v{a+r}, v{a+r}, v{ACC2(1,1)+r}')
        for p in range(3): addpk(a, rr(p))
        P(f'ds_write_b128 v{TW}, {vr(a,4)} offset:{ {0: 0, 1: 64, 8: 128}[lt] }')
    Y = AF(5, 0)
    P(f'ds_read_b128 {vr(Y+8,4)}, v{TW+2} offset:128')
    P(f'ds_read_b128 {vr(Y,4)}, v{TW+1}')
    P(f'ds_read_b128 {vr(Y+4,4)}, v{TW+1} offset:16')
    for y, xr in ((Y + 8, 0), (Y, 8), (Y + 4, 10)):
        unpk(xr)
        for r in range(4): P(f'v_fma_f32 v{y+r}, v{y+r}, v15, v{TT+r}')
        d = {Y + 8: Y + 8, Y: Y, Y + 4: Y + 2}[y]
        P(f'v_cvt_pk_bf16_f32 v{d}, v{y}, v{y+1}'); P(f'v_cvt_pk_bf16_f32 v{d+1}, v{y+2}, v{y+3}')
        if y == Y + 8: P(f'buffer_store_dwordx2 {vr(Y+8,2)}, v{VSP+1}, s[{S_OUT}:{S_OUT+3}], s{S_O8} offen {cfg.get("ost", "")}')
    P(f'buffer_store_dwordx4 {vr(Y,4)}, v{VSP}, s[{S_OUT}:{S_OUT+3}], s{S_O} offen {cfg.get("ost", "")}')
    if TS:
        P('s_waitcnt vmcnt(0)')
        P.ext(ts('end'))
        P('s_memrealtime s[88:89]\ns_waitcnt lgkmcnt(0)')
        for k in range(st.nts if not cfg.get('cnt') else 11): P(f'v_writelane_b32 v8, s{S_TS + k}, {k}')
        P(f"""
        v_writelane_b32 v8, s101, 30
        v_writelane_b32 v8, s88, 31
        v_lshrrev_b32 v9, 2, v{V_L16}
        v_mov_b32 v10, s{S_OOB}
        v_cmp_gt_u32 vcc, 0x80, v9
        v_cndmask_b32 v9, v10, v9, vcc
        s_lshl_b32 s24, s2, 3
        s_add_u32 s24, s24, s{S_WAVE}
        s_lshl_b32 s24, s24, 7
        s_add_u32 s24, s24, {TS_OFF}
        buffer_store_dword v8, v9, {WS}, s24 offen
        """)
    if cfg.get('until'):
        P(f"""
        s_waitcnt vmcnt(0)
        s_mov_b32 s26, 20000
        L_spin:
        s_memrealtime s[24:25]
        s_waitcnt lgkmcnt(0)
        s_lshl_b32 s24, s24, 3
        s_sub_u32 s24, s24, s{S_NON}
        s_and_b32 s24, s24, 0x7fffffff
        s_sub_u32 s26, s26, 1
        s_cmp_eq_u32 s26, 0
        s_cbranch_scc1 L_done
        s_cmp_lt_u32 s24, {cfg['until'] * 800}
        s_cbranch_scc1 L_spin
        """)
    P('L_done:')
    P('s_endpgm')
    used = {x.text.split()[1] for x in P.p if isinstance(x, I) and x.op == 's_cbranch_vccnz'}
    for l, g in st.slowmap.items():
        if f'L_sl{l}' in used: P.ext(g)
    q, n = P.finish()
    if cfg.get('verbose'):
        from collections import Counter
        print('nops', n, Counter(x.kind for x in q))
        print('events', events)
    return kernel_text(name, q, 256, 102), st.tsn

HEADER = """; Fused kernel: [QKV | gate/up] GEMM on raw x with LayerNorm applied as a rank-1 correction, linear attention + GEGLU,
; down/out GEMM (split-K 4, exchanged between workgroups) + residual.
; Kernarg (80 bytes): 0 A_x, 8 A_wqkv, 16 A_wo, 24 B_x (unused), 32 w_gate, 40 w_up, 48 w_down, 56 out, 64 debug, 72 ws
; @launch grid=(256,1,1) block=(512,1,1) lds=163840
"""
if __name__ == '__main__':
    out = sys.argv[1]
    cfg = json.loads(sys.argv[2]) if len(sys.argv) > 2 else {}
    name = 'parallel_sum__linear_attn_block__geglu_ffn__prompt_kernel'
    (body, kd), tsn = gen(name, cfg)
    s = HEADER + (f'; ts: {" ".join(tsn)}\n' if tsn else '')
    s += '.amdgcn_target "amdgcn-amd-amdhsa--gfx950"\n.text\n' + body + '.section .rodata,"a"\n.p2align 6\n' + kd
    open(out, 'w').write(s)
```

```python
import sys, json
sys.path.insert(0, 'work')
from dsl import *

OOB = 0x40000000
ST_OFF = 0
CSP_OFF = 0x80000
WX_OFF = 0x240000; WX_J = 112 * 1024
A2_OFF = 0x600000; A2_MT = 160 * 1024
A2L_OFF = 0x1A00000
KVP_OFF = 0x1A40000
EX_OFF = 0x1B00000
EX8_OFF = 0x2200000
W2_OFF = 0x2300000; W2_S = 192 * 1024
F2_OFF = 0x2900000
F3_OFF = 0x2910000
F4_OFF = 0x2920000
TS_OFF = 0x2A00000
FL_OFF = 0x2B00000
WS_SIZE = 0x2C00000
HS = 262144

LDS_BYTES = 163840
NSLOT = 19; SLOT = 8192
MISC = NSLOT * SLOT
IT_L0 = 0; IT_R = 18; IT_Q = 21; IT_X = 26; IT_SCR = 35; IT_PK = 36; IT_L1 = 37; IT_W2 = 55; NW2 = 48
NITEM = IT_W2 + NW2

V_TR = 0; V_TH = 2; V_L16 = 4; V_LB = 5; V_DMA = 6; V_A = 1; V_T = 8; V_WF = 16; V_ACC = 32; V_XF = 112
V_XD = 12; V_XR = 14
BN = [12, 14]; C0 = [13, 15]; C1 = [0, 7]
def XF(ks, mt): return V_XF + (ks * 2 + mt) * 4
def ACC(u, nt, mt): return V_ACC + 16 * u + (nt * 2 + mt) * 4
def U(u): return [V_ACC + 16 * u + 4 * k for k in range(4)]

S_RED = 3
S_W = 4; S_WS = 8; S_R = 12; S_XS = 16; S_OUT = 20
S_T = 24
S_W1K = 32; S_A2 = 33; S_MW = 34; S_L2E = 35; S_EPS = 36; S_W256 = 37; S_OOB = 38; S_WAVE = 39
S_M4 = 40; S_G2 = 42; S_NMS = 44; S_RS = 45; S_KVST = 46; S_KVLD = 47; S_A2L = 48; S_EX = 49; S_E8R = 50
S_FH = 51; S_FL = 52; S_CNT = 53; S_NON = 54; S_F2S = 55; S_F2P = 56; S_F3S = 57; S_PT = 58
S_XN = 59; S_WX = 60; S_XST = 61; S_GP = 62; S_RSRC = 67; S_WXD = 68; S_OP = 70
S_A = 62; S_W2 = 64; S_W2K = 65; S_EXS = 66; S_E8S = 69; S_O = 59; S_O8 = 60; S_AL = 61; S_STK = 70
S_WO = 48; S_WD = 46; S_G1 = 72; S_G0 = 76
S_RDST = 80; S_LEFT = 83; S_RB = 84; S_J = 85; S_RX = 86; S_RW = 87
S_TS = 90

K0C = -2.0 * 0.7978845608028654 * 1.4426950408889634
K1C = K0C * 0.044715

class Ctx: pass
class Ev:
    def __init__(self, name, bar=False): self.name = name; self.bar = bar
class Delay:
    def __init__(self, n): self.n = n
class Need:
    def __init__(self, name): self.name = name

def gen(name, cfg):
    D = cfg.get('dist', 3)
    TS = cfg.get('ts', False)
    SPIN = cfg.get('spin', 100000)
    MINGAP = cfg.get('mingap', 6)
    ROT = cfg.get('rot', [0, 3, 6])
    RT = sum(ROT[k % len(ROT)] << (4 * k) for k in range(16))
    S_ROT = S_NMS
    NR = cfg.get('nr', 5)
    NL0 = NSLOT - 2 * NR
    XST = NL0 * SLOT
    WS = f's[{S_WS}:{S_WS+3}]'
    XS = f's[{S_XS}:{S_XS+3}]'
    P = Prog(); st = Ctx(); st.tmp = 0; st.ft = 0; st.nts = 0; st.lab = 0; st.tsn = []; st.slowmap = {}
    S_SPN = 1
    def stmp():
        st.tmp = (st.tmp + 1) % 6; return S_T + st.tmp
    def ftmp():
        st.ft = (st.ft + 1) % 2; return S_T + 6 + st.ft
    def ts(nm):
        if not TS or cfg.get('cnt'): return []
        if 'tsat' in cfg and nm not in ('start', 's1start', 'end') and not nm.startswith('@'): return []
        k = st.nts; st.nts += 1; st.tsn.append(nm)
        assert k < 11
        if cfg.get('both'):
            return [I('s_memrealtime s[88:89]'), I('s_waitcnt lgkmcnt(0)'), I(f's_and_b32 s{S_TS+k}, s88, 0xffff'), I('s_memtime s[88:89]'), I('s_waitcnt lgkmcnt(0)'),
                    I('s_lshl_b32 s88, s88, 14'), I('s_and_b32 s88, s88, 0xffff0000'), I(f's_or_b32 s{S_TS+k}, s{S_TS+k}, s88')]
        return [I(('s_memrealtime' if cfg.get('rt') else 's_memtime') + ' s[88:89]'), I('s_waitcnt lgkmcnt(0)'), I(f's_mov_b32 s{S_TS+k}, s88')]
    slow = []
    def retry_group(loads, check, w0only=False, sleep=1):
        st.lab += 1; l = st.lab
        g = [I(f'L_sl{l}:'), I('s_nop 7'), I(f's_mov_b32 s{S_SPN}, {SPIN}'), I(f'L_rt{l}:'), I(f's_sleep {sleep}')]
        if cfg.get('cnt'):
            c_ = S_TS + (l - 1) % 11; g += [I(f's_add_u32 s{c_}, s{c_}, {1 if l <= 11 else 1000}')]
        g += loads() + [I('s_waitcnt vmcnt(0)')] + check()
        g += [I(f's_sub_u32 s{S_SPN}, s{S_SPN}, 1'), I(f's_cmp_eq_u32 s{S_SPN}, 0'), I(f's_cbranch_scc1 L_bk{l}'), I('s_nop 4'),
              I(f's_cbranch_vccnz L_rt{l}'), I(f's_branch L_bk{l}')]
        st.slowmap[l] = raw(g)
        return check() + [Delay(1), [I(f's_cbranch_vccnz L_sl{l}'), I(f'L_bk{l}:')]]
    def IL(txt): return [I(l) for l in txt.strip().split('\n') if l.strip()]
    NLR = 6
    cyc = list(range(9, 19)) + [6, 7, 8] + list(range(4))
    stab = [n % NLR for n in range(18)] + [(NLR + k) % NSLOT for k in range(NSLOT)] + cyc + cyc[:13] + [4, 5]
    while len(stab) < NITEM: stab.append(stab[-NSLOT])
    PAIR = cfg.get('pair', 1)
    def L1it(h, k): return IT_L1 + (2 * k + h if PAIR else 9 * h + k)
    def L1hk(n): return (((n - IT_L1) & 1, (n - IT_L1) >> 1) if PAIR else divmod(n - IT_L1, 9))
    if PAIR:
        stab = stab[:IT_L1] + cyc + [cyc[0]]
        sa = [stab[L1it(0, k)] for k in range(1, 9)]; sb = [stab[L1it(1, k)] for k in range(9)]
        stab += sa + sb[:4] + [4, 5] + sb[4:]
        while len(stab) < NITEM: stab.append(stab[-NSLOT])
    def slot_of(n): return stab[n]
    def prev_of(n):
        for m in range(n - 1, -1, -1):
            if stab[m] == stab[n]: return m
        s = stab[n]
        return 'stage' if s >= NL0 else ('gst' if s >= NLR else None)
    SCR = slot_of(IT_SCR) * SLOT; KVS = SCR

    if TS: P('s_memrealtime s[88:89]\ns_waitcnt lgkmcnt(0)\ns_mov_b32 s101, s88')
    P.ext(ts('start'))
    if cfg.get('cnt'):
        for k in range(11): P(f's_mov_b32 s{S_TS+k}, 0')
    P('s_cmp_ge_u32 s2, 256')
    P('s_cbranch_scc1 L_done')
    P(f's_load_dwordx2 s[{S_XS}:{S_XS+1}], s[0:1], 0')
    P(f's_load_dwordx4 s[{S_G0}:{S_G0+3}], s[0:1], 32')
    B = V_ACC
    VL = B; VOOB = B + 1; VG = B + 2; VSR = B + 4
    CPRE = f"""
        s_getpc_b64 s[24:25]
        s_mov_b32 s26, L_done - L_cp
        L_cp:
        s_mov_b32 s27, 0x20000
        s_and_b32 s30, s2, 0xf8
        s_lshl_b32 s30, s30, 8
        v_lshlrev_b32 v{V_ACC+6}, 2, v0
        buffer_load_dword v{V_ACC+7}, v{V_ACC+6}, s[24:27], s30 offen
        """
    if cfg.get('cpre', 1) == 1: P(CPRE)
    P(f"""
    v_lshrrev_b32 v8, 6, v0
    v_bfe_u32 v{VG}, v0, 4, 2
    v_readfirstlane_b32 s{S_WAVE}, v8
    s_bfe_u32 s27, s2, 0x30003
    s_and_b32 s25, s2, 4
    s_lshr_b32 s26, s2, 6
    s_add_u32 s{S_RB}, s25, s26
    v_bfe_u32 v{VSR}, v0, 3, 3
    v_xor_b32 v9, v0, v{VG}
    v_and_b32 v9, 7, v9
    v_mul_u32_u24 v11, 72, v{VSR}
    v_add_lshl_u32 v{V_XD}, v9, v11, 4
    v_xor_b32 v{V_XD+1}, 64, v{V_XD}
    v_add_u32 v{V_XD+1}, {8*1152}, v{V_XD+1}
    s_lshl_b32 s24, s{S_RB}, 3
    s_add_u32 s24, s24, s{S_WAVE}
    s_mul_i32 s{S_XN}, s24, {32*1152}
    s_mul_i32 s{S_XST}, s{S_WAVE}, {NR*2048}
    s_add_u32 s{S_XST}, s{S_XST}, {XST}
    s_add_u32 s25, s27, s{S_RB}
    s_lshl_b32 s25, s25, 2
    s_mov_b32 s{S_RX}, {RT & 0xffffffff:#x}
    s_mov_b32 s{S_RW}, {RT >> 32:#x}
    s_lshr_b64 s[{S_RX}:{S_RW}], s[{S_RX}:{S_RW}], s25
    s_and_b32 s{S_ROT}, s{S_RX}, 15
    s_lshl_b32 s{S_RX}, s{S_ROT}, 7
    s_add_u32 s{S_XN}, s{S_XN}, s{S_RX}
    s_mov_b32 s{S_XS+2}, 2359296
    s_mov_b32 s{S_XS+3}, 0x20000
    """)
    PRO2 = f"""
    s_and_b32 s26, s2, 3
    s_lshl3_add_u32 s{S_J}, s26, s31
    s_mul_i32 s{S_RW}, s{S_ROT}, {64*9216}
    s_mov_b32 s{S_W+2}, 5308416
    s_mov_b32 s{S_W+3}, 0x20000
    s_lshl_b32 s{S_W1K}, s{S_WAVE}, 10
    v_lshrrev_b32 v8, 3, v0
    v_and_b32 v11, 0x13, v8
    v_lshrrev_b32 v9, 2, v0
    v_and_or_b32 v11, v9, 8, v11
    v_lshrrev_b32 v9, 4, v0
    v_and_or_b32 v11, v9, 4, v11
    v_mul_u32_u24 v11, 576, v11
    v_xor_b32 v8, v8, v0
    v_and_b32 v8, 6, v8
    v_and_or_b32 v8, v0, 1, v8
    s_cmp_eq_u32 s31, 3
    s_cselect_b32 s30, 31, 0
    s_add_u32 s30, s30, s{S_J}
    s_lshl_b32 s30, s30, 3
    v_add3_u32 v{V_DMA}, v11, v8, s30
    v_lshlrev_b32 v{V_DMA}, 4, v{V_DMA}
    s_cmp_ge_u32 s{S_WAVE}, 4
    s_cselect_b32 s{S_W}, s{S_G0+2}, s{S_G0}
    s_cselect_b32 s{S_W+1}, s{S_G0+3}, s{S_G0+1}
    """
    PRO3 = f"""
    s_load_dwordx2 s[{S_OUT}:{S_OUT+1}], s[0:1], 64
    s_load_dwordx2 s[{S_WS}:{S_WS+1}], s[0:1], 72
    s_load_dwordx2 s[{S_G1}:{S_G1+1}], s[0:1], 8
    s_load_dwordx2 s[{S_WO}:{S_WO+1}], s[0:1], 16
    s_load_dwordx2 s[{S_WD}:{S_WD+1}], s[0:1], 48
    s_load_dwordx2 s[{S_OP}:{S_OP+1}], s[0:1], 56
    s_memrealtime s[28:29]
    v_and_b32 v{VL}, 63, v0
    s_mov_b32 s{S_OOB}, {OOB}
    v_mov_b32 v{VOOB}, s{S_OOB}
    v_lshlrev_b32 v{V_L16}, 4, v{VL}
    s_lshl_b32 s26, s{S_RB}, 5
    s_add_u32 s26, s26, s{S_J}
    s_lshl3_add_u32 s31, s26, s{S_WAVE}
    s_mul_i32 s{S_RS}, s31, 1152
    s_lshl_b32 s{S_RX}, s{S_ROT}, 12
    s_add_u32 s{S_RX}, s{S_RX}, s{S_W1K}
    s_mov_b32 s{S_OUT+2}, 256
    s_mov_b32 s{S_OUT+3}, 0x20000
    v_cmp_eq_u32 vcc, 0, v0
    v_cndmask_b32 v10, v{VOOB}, 0, vcc
    s_waitcnt lgkmcnt(0)
    s_lshl_b32 s28, s28, 3
    s_or_b32 s28, s28, 0x80000000
    v_mov_b32 v11, s28
    """
    P('s_mov_b32 s31, s27\ns_waitcnt lgkmcnt(0)')
    def adv(reg, nextpair, total, unit):
        if nextpair == 9: return [I(f's_mul_i32 s{reg}, s{S_ROT}, {unit}')]
        if (9 - nextpair) in ROT:
            t = stmp()
            return [I(f's_cmp_eq_u32 s{S_ROT}, {9 - nextpair}'), I(f's_cselect_b32 s{t}, {total}, 0'), I(f's_sub_u32 s{reg}, s{reg}, s{t}')]
        return []
    def dma(n):
        L = [I(f's_add_u32 m0, s{S_W1K}, {slot_of(n) * SLOT}')]
        if n < 18:
            t = stmp()
            L += [I(f's_add_u32 s{t}, s{S_RW}, {n * 32 * 9216}'), I(f'buffer_load_dwordx4 v{V_DMA}, s[{S_W}:{S_W+3}], s{t} offen {cfg.get("wnt", "")} lds', tok=f'it{n}')]
            if n & 1: L += adv(S_RW, (n + 1) // 2, 576*9216, 64*9216)
        elif n < IT_Q:
            t = stmp()
            L += [I(f's_add_u32 s{t}, s{S_RSRC if not cfg.get("fakeR") else S_OOB}, {(n - IT_R) * 128}'),
                  I(f'buffer_load_dwordx4 v{U(4)[2]+1}, s[{S_R}:{S_R+3}], s{t} offen nt lds', tok=f'it{n}')]
        elif n < IT_SCR:
            t = stmp(); isq = n < IT_X
            L += [I(f's_add_u32 s{t}, s{S_WX}, s{S_RX}'),
                  I(f'buffer_load_dwordx4 v{V_L16}, {WS}, s{t} offen sc1 lds', tok=f'it{n}')]
            if n == IT_X - 1:
                L += [I(f's_add_u32 s{S_WX}, s{S_WX}, {40*1024}'), I(f's_lshl_b32 s{S_RX}, s{S_ROT}, 13'), I(f's_add_u32 s{S_RX}, s{S_RX}, s{S_W1K}')]
            else:
                wrap = (36 if isq else 72) * 1024
                L += [I(f's_add_u32 s{S_RX}, s{S_RX}, 8192'), I(f's_sub_u32 s{t}, s{S_RX}, {wrap}'), I(f's_cselect_b32 s{S_RX}, s{S_RX}, s{t}')]
        elif n < IT_W2:
            t = stmp()
            L += [I(f's_add_u32 s{t}, s{S_RW}, {L1hk(n)[0] * 64 + L1hk(n)[1] * 64 * 9216}'),
                  I(f'buffer_load_dwordx4 v{V_DMA}, s[{S_W}:{S_W+3}], s{t} offen {cfg.get("wnt", "")} lds', tok=f'it{n}')] + (adv(S_RW, L1hk(n)[1] + 1, 576*9216, 64*9216) if (not PAIR or L1hk(n)[0]) else [])
        else:
            t = stmp()
            L += [I(f's_add_u32 s{t}, s{S_W2K if n - IT_W2 in (35, 36, 47) else S_W2}, {(n - IT_W2) * 4096}'),
                  I(f'buffer_load_dwordx4 v{V_L16}, {WS}, s{t} offen sc1 lds', tok=f'it{n}')]
        return L
    GPOS = cfg.get('gpos', 8)
    stg = [('x', p) for p in range(18)]
    spos = {e: k for k, e in enumerate(stg)}
    VGA = U(4)[2]
    def sdma(k, h):
        kind, p = stg[k]
        w = [f'sr{k-NR}_0', f'sr{k-NR}_1'] if k >= NR else []
        t = stmp()
        L = [I(f's_add_u32 m0, s{S_XST}, {(k % NR) * 2048 + h * 1024}')]
        if kind == 'x':
            L += [I(f's_add_u32 s{t}, s{S_XN}, {(p >> 1) * 128 + (p & 1) * 18432}')]
            L += [I(f'buffer_load_dwordx4 v{V_XD+h}, {XS}, s{t} offen lds', tok=f's{k}_{h}', waits=w)]
            if (p & 1) and h and p < 17: L += adv(S_XN, (p + 1) // 2, 1152, 0)
        return L
    GL = [[6 * SLOT, 7 * SLOT], [8 * SLOT, MISC]]
    def gdma(p, h):
        t = stmp(); S = S_G0 if p == 0 else S_G1
        return [I(f's_add_u32 m0, s{S_W1K}, {GL[p][h]}'),
                I(f's_add_u32 s{t}, s{S_GP+p}, ' + (('0' if h == 0 else f's{S_GP+2}') if p == 0 else str(h * 4 * 3456))),
                I(f'buffer_load_dwordx4 v{VGA+p}, s[{S}:{S+3}], s{t} offen {cfg.get("gnt", "")} lds', tok=f'sg{p}_{h}')]
    def xread(p, d):
        k = spos[('x', p)]
        return I(f'ds_read_b128 {vr(XF(2*(p>>1)+d, p&1),4)}, v{V_XR+d} offset:{(k % NR) * 2048}', tok=f'sr{k}_{d}', waits=[f's{k}_0', f's{k}_1'])
    if cfg.get('tsp'): P.ext(ts('@karg'))
    P.ext(sdma(0, 0)); P.ext(sdma(0, 1))
    P(PRO2)
    P.ext(dma(0))
    P.ext(sdma(1, 0)); P.ext(sdma(1, 1))
    P.ext(dma(1))
    if cfg.get('cpre', 1) == 2: P(CPRE)
    P(PRO3)
    if cfg.get('tsp'): P.ext(ts('@b1'))
    PS = cfg.get('ps', 4)
    NPRE = cfg.get('npre', 4)
    PS0 = cfg.get('ps0', 2)
    for k in range(2, PS0):
        P.ext(sdma(k, 0)); P.ext(sdma(k, 1))
    P(f's_cmp_eq_u32 s2, 0\ns_cselect_b32 s29, 0, s{S_OOB}\nbuffer_store_dword v11, v10, s[{S_OUT}:{S_OUT+3}], s29 offen sc1')
    if cfg.get('dbgstart'):
        P(f's_lshl_b32 s29, s2, 2\ns_add_u32 s29, s29, 4\ns_cmp_lt_u32 s2, 15\ns_cselect_b32 s29, s29, s{S_OOB}\nbuffer_store_dword v11, v10, s[{S_OUT}:{S_OUT+3}], s29 offen sc1')
    VN2 = B + 16; VT3 = B + 17; VRW = B + 18
    P(f"""
    v_and_b32 v8, 3, v{VL}
    v_lshlrev_b32 v{VN2}, 4, v8
    v_cmp_gt_u32 vcc, 2, v8
    v_cndmask_b32 v{VN2}, v{VOOB}, v{VN2}, vcc
    v_mov_b32 v{VT3}, {2*(1152+16)}
    v_cmp_eq_u32 vcc, 1, v8
    v_cndmask_b32 v{VT3}, v{VT3}, 32, vcc
    v_mov_b32 v9, {2*(576+16)}
    v_cmp_eq_u32 vcc, 2, v8
    v_cndmask_b32 v{VT3}, v{VT3}, v9, vcc
    v_cmp_eq_u32 vcc, 3, v8
    v_cndmask_b32 v{VT3}, v{VT3}, v{VOOB}, vcc
    v_bfe_u32 v9, v{VL}, 2, 2
    v_lshl_add_u32 v{VRW}, v{VG}, 3, v9
    """)
    GSO = [S_GP, S_GP + 1]; GST = S_GP + 2
    P(f's_and_b32 s{S_NON}, s2, 3\ns_lshl_b32 s{S_NON}, s{S_NON}, 3\ns_add_u32 s{S_NON}, s{S_NON}, s{S_WAVE}')
    for i in range(2):
        P(f"""
        s_lshr_b32 s24, s2, 2
        s_add_u32 s24, s24, {64*i}
        s_sub_u32 s25, s24, 36
        s_lshr_b32 s26, s25, 2
        s_mul_i32 s26, s26, 110592
        s_and_b32 s25, s25, 3
        s_mul_i32 s27, s{S_NON}, 36
        s_add_u32 s26, s26, s27
        s_mul_i32 s27, s25, 1152
        s_cmp_eq_u32 s25, 3
        s_cselect_b32 s27, 0, s27
        s_cselect_b64 s[{S_G2}:{S_G2+1}], -1, 0
        s_add_u32 s{GSO[i]}, s26, s27
        """)
        if i == 0:
            P(f"""
            s_lshr_b32 s26, s24, 1
            s_mul_i32 s26, s26, 294912
            s_lshl_b32 s27, s{S_NON}, 5
            s_add_u32 s26, s26, s27
            s_add_u32 s26, s26, 8192
            s_bitcmp1_b32 s24, 0
            s_cselect_b32 s{S_G0}, s{S_G0+2}, s{S_G0}
            s_cselect_b32 s{S_G0+1}, s{S_G0+3}, s{S_G0+1}
            s_mov_b32 s28, 1990656
            s_mov_b32 s29, 3456
            s_cmp_lt_u32 s24, 36
            s_cselect_b32 s{S_G0}, s{S_G0}, s{S_G1}
            s_cselect_b32 s{S_G0+1}, s{S_G0+1}, s{S_G1+1}
            s_cselect_b32 s{S_G0+2}, 5308416, s28
            s_mov_b32 s{S_G0+3}, 0x20000
            s_cselect_b32 s{GSO[0]}, s26, s{GSO[0]}
            s_cselect_b32 s{GST}, 9216, s29
            s_cselect_b64 s[{S_G2}:{S_G2+1}], 0, s[{S_G2}:{S_G2+1}]
            s_cselect_b32 s30, 0, 4
            s_mov_b32 s27, s{GST}
            s_lshl_b32 s{GST}, s{GST}, 2
            """)
        else:
            P('s_mov_b32 s27, 3456\ns_mov_b32 s30, 4')
        P(f"""
        s_and_b32 s{S_GP+3+i}, s{S_G2}, 1
        s_add_u32 s{S_GP+3+i}, s{S_GP+3+i}, 3
        v_cndmask_b32 v8, v{VN2}, v{VT3}, s[{S_G2}:{S_G2+1}]
        v_mul_lo_u32 v11, v{VRW}, s27
        v_add_u32 v{VGA+i}, v8, v11
        s_mul_i32 s26, s{S_NON}, 112
        s_add_u32 s26, s26, s24
        s_add_u32 s26, s26, s30
        s_lshl_b32 s26, s26, 10
        s_add_u32 s26, s26, {WX_OFF}
        s_cmp_lt_u32 s24, 108
        s_cselect_b32 s{S_WXD+i}, s26, s{S_OOB}
        """)
        if i: P(f's_cselect_b32 s{S_G1+2}, 1990656, 0\ns_mov_b32 s{S_G1+3}, 0x20000')
    ONES = U(4)[0]; CSA = U(4)[1]
    P(f"""
    s_mov_b32 s{S_WS+2}, {WS_SIZE}
    s_mov_b32 s{S_WS+3}, 0x20000
    s_lshl_b32 s{S_PT}, s31, 7
    v_lshrrev_b32 v8, 5, v{VL}
    v_lshlrev_b32 v8, 11, v8
    v_bfe_u32 v11, v{VL}, 2, 3
    v_lshl_add_u32 v8, v11, 7, v8
    v_bfe_u32 v11, v{VL}, 3, 2
    v_lshl_add_u32 v8, v11, 5, v8
    v_and_b32 v11, 3, v{VL}
    v_lshl_add_u32 v{V_TR}, v11, 3, v8
    v_xor_b32 v{V_TR+1}, 32, v{V_TR}
    v_xor_b32 v{V_TR+2}, 64, v{V_TR}
    v_xor_b32 v{V_TR+3}, 96, v{V_TR}
    s_and_b32 s24, s{S_WAVE}, 3
    s_lshl_b32 s24, s24, 5
    s_and_b32 s25, s{S_W1K}, 0x1000
    s_or_b32 s24, s24, s25
    v_xor_b32 v{V_LB}, s24, v{V_TR}
    v_and_b32 v9, 15, v{VL}
    v_lshrrev_b32 v11, 1, v9
    v_xor_b32 v11, v11, v{VG}
    v_lshlrev_b32 v11, 4, v11
    v_lshl_add_u32 v11, v9, 7, v11
    v_add_u32 v{V_XR}, s{S_XST}, v11
    v_xor_b32 v{V_XR+1}, 64, v{V_XR}
    """)
    for r in range(4): P(f'v_mov_b32 v{ONES+r}, 0x3f803f80')
    sqa = [f's_lshl_b32 s73, s{S_RB}, 4', f's_lshl_b32 s74, s{S_WAVE}, 1', 's_add_u32 s73, s73, s74', f's_mul_i32 s{S_A2}, s73, {A2_MT}',
           f's_mul_i32 s74, s{S_J}, 5120', f's_add_u32 s{S_A2}, s{S_A2}, s74', f's_add_u32 s{S_A2}, s{S_A2}, {A2_OFF}']
    sq_txt = []
    SQ = sq_txt.append
    C = 72; TA = S_G2; TB_ = S_G2 + 1; S_E8P = S_W256
    SQ(f"""
            s_lshr_b32 s73, s2, 2
            s_lshl_b32 s73, s73, 1
            s_lshr_b32 s74, s{S_WAVE}, 2
            s_add_u32 s73, s73, s74
            s_mul_i32 s74, s73, 21846
            s_lshr_b32 s74, s74, 16
            s_mul_i32 s75, s74, 3
            s_sub_u32 s75, s73, s75
            s_mul_i32 s76, s74, 13108
            s_lshr_b32 s76, s76, 16
            s_mul_i32 s77, s76, 5
            s_sub_u32 s77, s74, s77
            s_and_b32 s78, s2, 3
            s_lshl_b32 s78, s78, 3
            s_add_u32 s78, s78, s76
            s_and_b32 s79, s{S_WAVE}, 3
            s_cmp_eq_u32 s76, 3
            s_cselect_b32 s73, 31, 0
            s_cmp_eq_u32 s76, 2
            s_cselect_b32 s{TA}, 1, 32
            s_cmp_lt_u32 s77, 2
            s_cselect_b32 s73, s73, s{TA}
            s_add_u32 s73, s73, s78
            s_lshl_b32 s73, s73, 6
            s_and_b32 s{TA}, s77, 1
            s_lshl_b32 s{TA}, s{TA}, 5
            s_add_u32 s73, s73, s{TA}
            s_lshl_b32 s{TA}, s79, 3
            s_add_u32 s73, s73, s{TA}
            s_lshl_b32 s{TB_}, s78, 4
            s_add_u32 s{TB_}, s{TB_}, 4096
            s_add_u32 s{TB_}, s{TB_}, s{TA}
            s_mul_i32 s{C}, s78, 18
            s_add_u32 s{C}, s{C}, s{TA}
            s_sub_u32 s{C}, s{C}, 16
            s_cmp_lt_u32 s79, 2
            s_cselect_b32 s{TB_}, s{TB_}, s{C}
            s_cselect_b32 s{C}, 0, 1
            s_cmp_eq_u32 s77, 4
            s_cselect_b32 s73, s{TB_}, s73
            s_cselect_b32 s{C}, s{C}, 0
            s_and_b32 s{TB_}, s2, 3
            s_lshl_b32 s{TB_}, s{TB_}, 1
            s_add_u32 s{TB_}, s{TB_}, s79
            s_mul_i32 s{TB_}, s{TB_}, 72
            s_add_u32 s{TB_}, s{TB_}, 16
            s_cmp_ge_u32 s74, 40
            s_cselect_b32 s73, s{TB_}, s73
            s_cselect_b32 s{C}, 1, s{C}
            s_cselect_b32 s{S_LEFT}, 18432, 0
            s_cselect_b32 s{TB_}, s79, 0
            s_mul_i32 s73, s73, 1152
            s_mul_i32 s78, s75, 384
            s_add_u32 s{S_RSRC}, s73, s78
            s_mov_b32 s73, 663552
            s_cmp_eq_u32 s{C}, 1
            s_cselect_b32 s{S_R}, s{S_WO}, s{S_WD}
            s_cselect_b32 s{S_R+1}, s{S_WO+1}, s{S_WD+1}
            s_cselect_b32 s{S_R+2}, s73, 5308416
            s_cmp_ge_u32 s{TB_}, 2
            s_cselect_b32 s{S_R+2}, 0, s{S_R+2}
        s_mov_b32 s{S_R+3}, 0x20000

            s_sub_u32 s73, 7, s77
            s_cmp_lt_u32 s77, 3
            s_cselect_b32 s73, s77, s73
            s_lshl_b32 s73, s73, 2
            s_and_b32 s77, s76, 3
            s_add_u32 s73, s73, s77
            s_lshr_b32 s76, s76, 2
            s_cmp_ge_u32 s74, 40
            s_cselect_b32 s73, 20, s73
            s_cselect_b32 s76, 0, s76
            s_mul_i32 s75, s75, 12
            s_add_u32 s75, s75, s79
        """)
    for i in range(3):
        SQ(f"""
            s_add_u32 s77, s75, {4*i}
            s_mul_i32 s78, s77, 7282
            s_lshr_b32 s78, s78, 16
            s_mul_i32 s79, s78, 9
            s_sub_u32 s79, s77, s79
            s_lshr_b32 s77, s79, 1
            s_sub_u32 s77, s77, s2
            s_and_b32 s77, s77, 3
            s_lshl_b32 s77, s77, 1
            s_and_b32 s{TA}, s79, 1
            s_add_u32 s77, s77, s{TA}
            s_cmp_eq_u32 s79, 8
            s_cselect_b32 s77, 8, s77
            s_mul_i32 s79, s73, 7
            s_add_u32 s79, s79, s77
            s_sub_u32 s79, s79, 2
            s_cmp_eq_u32 s73, 20
            s_cselect_b32 s{TA}, 1, 20
            s_cselect_b32 s{TB_}, 20, 0
            s_mul_i32 s{TA}, s{TA}, s77
            s_add_u32 s{TA}, s{TA}, s73
            s_add_u32 s{TA}, s{TA}, s{TB_}
            s_add_u32 s{TA}, s{TA}, 148
            s_cmp_ge_u32 s77, 2
            s_cselect_b32 s79, s79, s{TA}
            s_and_b32 s{TA}, s2, 3
            s_lshl_b32 s{TA}, s{TA}, 2
            s_add_u32 s{TA}, s{TA}, s78
            s_lshl_b32 s{TA}, s{TA}, 1
            s_add_u32 s{TA}, s{TA}, s76
            s_mul_i32 s{TA}, s{TA}, 192
            s_add_u32 s{TA}, s{TA}, s79
            s_lshl_b32 s{TA}, s{TA}, 10
            s_add_u32 s{TA}, s{TA}, {W2_OFF}
            s_cmp_lt_u32 s74, 41
            s_cselect_b32 s{S_RDST+i}, s{TA}, s{S_OOB}
            """)
    SQ(f's_mov_b32 s{S_G2}, 0\ns_mov_b32 s{S_G2+1}, 0x0000ffff')
    SQ(f"""
            s_mul_i32 s{S_WX}, s{S_J}, {WX_J}
            s_add_u32 s{S_WX}, s{S_WX}, {WX_OFF}
            s_lshr_b32 s73, s{S_J}, 3
            s_lshl_b32 s73, s73, 13
            s_add_u32 s73, s73, {F2_OFF}
            s_add_u32 s{S_F2P}, s73, s{S_W1K}
            s_and_b32 s73, s2, 3
            s_lshl_b32 s73, s73, 6
            s_lshr_b32 s74, s2, 2
            s_add_u32 s74, s74, s73
            s_lshl_b32 s74, s74, 7
            s_add_u32 s74, s74, {F2_OFF}
            s_lshl_b32 s75, s2, 7
            s_add_u32 s75, s75, {F3_OFF}
            s_cmp_eq_u32 s{S_WAVE}, 0
            s_cselect_b32 s{S_F2S}, s74, s{S_OOB}
            s_cselect_b32 s{S_F3S}, s75, s{S_OOB}
            s_lshl_b32 s73, s2, 3
            s_add_u32 s73, s73, s{S_WAVE}
            s_mul_i32 s73, s73, 3072
            s_add_u32 s{S_EX}, s73, {EX_OFF}
            s_lshr_b32 s73, s2, 2
            s_lshl_b32 s73, s73, 3
            s_add_u32 s73, s73, s{S_WAVE}
            s_lshl_b32 s73, s73, 11
            s_add_u32 s73, s73, {EX8_OFF}
            s_xor_b32 s74, s2, s{S_WAVE}
            s_and_b32 s74, s74, 3
            s_cmp_eq_u32 s74, 0
            s_cselect_b32 s{S_E8R}, s73, s{S_OOB}
            s_lshl_b32 s73, s{S_RB}, 4
            s_lshl_b32 s74, s{S_WAVE}, 1
            s_add_u32 s73, s73, s74
            s_lshl_b32 s{S_A2L}, s73, 11
            s_lshl_b32 s74, s{S_J}, 7
            s_add_u32 s{S_A2L}, s{S_A2L}, s74
            s_add_u32 s{S_A2L}, s{S_A2L}, {A2L_OFF}
            s_lshl_b32 s{S_W256}, s{S_WAVE}, 8
            s_lshl_b32 s73, s{S_J}, 3
            s_add_u32 s74, s73, s{S_RB}
            s_mul_i32 s74, s74, 1536
            s_lshl_b32 s75, s{S_WAVE}, 8
            s_add_u32 s75, s75, {KVP_OFF}
            s_add_u32 s74, s74, s75
            s_mul_i32 s73, s73, 1536
            s_add_u32 s73, s73, s75
            s_cmp_lt_u32 s{S_WAVE}, 6
            s_cselect_b32 s{S_KVST}, s74, s{S_OOB}
            s_cselect_b32 s{S_KVLD}, s73, s{S_OOB}
            s_add_u32 s73, s{S_W256}, {SCR}
            s_add_u32 s74, s{S_W256}, {MISC - 1024}
            s_cmp_lt_u32 s{S_WAVE}, 4
            s_cselect_b32 s{S_RED}, s73, s74
            s_lshl_b32 s73, s{S_RB}, 2
            s_lshr_b32 s74, s{S_J}, 3
            s_add_u32 s73, s73, s74
            s_lshl_b32 s73, s73, 13
            s_add_u32 s73, s73, {FL_OFF}
            s_add_u32 s{S_FL}, s73, s{S_W1K}
            s_and_b32 s74, s{S_J}, 7
            s_lshl_b32 s74, s74, 7
            s_add_u32 s{S_FL}, s{S_FL}, s74
            s_and_b32 s73, s2, 4
            s_lshr_b32 s74, s2, 6
            s_add_u32 s73, s73, s74
            s_lshl_b32 s73, s73, 2
            s_and_b32 s74, s2, 3
            s_add_u32 s73, s73, s74
            s_lshl_b32 s73, s73, 13
            s_add_u32 s73, s73, {FL_OFF}
            s_and_b32 s74, s2, 32
            s_lshl_b32 s74, s74, 7
            s_add_u32 s73, s73, s74
            s_and_b32 s74, s{S_WAVE}, 3
            s_lshl_b32 s74, s74, 10
            s_add_u32 s{S_FH}, s73, s74
            s_and_b32 s73, s{S_WAVE}, 1
            s_lshl_b32 s73, s73, 5
            s_and_b32 s74, s{S_WAVE}, 2
            s_lshl_b32 s74, s74, 11
            s_or_b32 s73, s73, s74
            s_and_b32 s74, s{S_WAVE}, 4
            s_lshl_b32 s74, s74, 9
            s_or_b32 s{S_MW}, s73, s74
            s_mul_i32 s73, s{S_WAVE}, 86
            s_lshr_b32 s73, s73, 8
            s_mul_i32 s74, s73, 3
            s_sub_u32 s74, s{S_WAVE}, s74
            s_lshl_b32 s74, s74, 9
            s_lshl_b32 s73, s73, 2
            s_and_b32 s75, s2, 3
            s_add_u32 s73, s73, s75
            s_lshr_b32 s75, s2, 2
            s_lshl_b32 s75, s75, 3
            s_add_u32 s73, s73, s75
            s_lshl_b32 s73, s73, 11
            s_add_u32 s73, s73, s74
            s_add_u32 s73, s73, {EX8_OFF}
            s_cmp_lt_u32 s{S_WAVE}, 6
            s_cselect_b32 s{S_E8P}, s73, s{S_OOB}
            s_mov_b32 s{S_L2E}, {f2u(1.4426950408889634):#x}
            s_mov_b32 s{S_EPS}, {f2u(1e-6):#x}
            s_mov_b32 s{S_M4}, 0x00040004
            s_mov_b32 s{S_M4+1}, 0x00040004
        """)
    P.ext(ts('setup' if not cfg.get('tsp') else '@setup'))
    GP = cfg.get('gpro', -1)
    for k in range(1, max(PS, NPRE) + 1):
        if k == GP:
            for g_ in range(4): P.ext(gdma(g_ >> 1, g_ & 1))
        if 2 <= k < NPRE: P.ext(dma(k))
        if PS0 <= k + 1 < PS:
            P.ext(sdma(k + 1, 0)); P.ext(sdma(k + 1, 1))
    P.ext(ts('issued' if not cfg.get('tsp') else '@issued'))
    for p in range(2):
        P.ext([xread(p, 0), xread(p, 1)])
    if cfg.get('tsp'): P.ext(ts('@x01'))

    base = {r: 0 for r in (V_TR, V_TR+1, V_TR+2, V_TR+3, V_LB)}
    def lds_addr(reg, addr, span):
        fx = []
        if not (0 <= addr - base[reg] and addr + span - base[reg] <= 65535):
            nb = min((addr // SLOT) * SLOT, LDS_BYTES - 65536)
            fx.append(I(f'v_add_u32 v{reg}, {(nb - base[reg]) & 0xffffffff:#x}, v{reg}'))
            base[reg] = nb
        return fx, addr - base[reg]
    xq = [V_XF + 4 * k for k in range(36)]
    acc1 = U(0) + U(2) + U(3) + [xq[34], xq[35]]
    def ACC2(lt, mt):
        if lt >= 2: return acc1[(lt - 2) * 2 + mt]
        return acc1[(lt * 2 + mt) * 2 + 1]
    aq = xq[:34] + U(1) + U(4)[:2]
    def AF(sp, mt): return aq[sp * 2 + mt]
    V_AL = U(4)[2]; VSP = U(4)[3]
    V_L8 = V_TH
    T0 = [ACC(0, 0, 0), ACC(0, 0, 1)]; T1 = [ACC(0, 1, 0), ACC(0, 1, 1)]
    T2 = [ACC(1, 0, 0), ACC(1, 0, 1)]; T3 = [ACC(1, 1, 0), ACC(1, 1, 1)]

    frags = []; steps = []
    def add_step(nm, fl):
        for f in fl:
            f['step'] = len(steps); frags.append(f)
        steps.append(nm)
    def Lf(line, ks, tiles):
        fl = []
        for (T, u) in tiles:
            for mat in range(2):
                mf_ = [(ACC(u, mat, mt), XF(ks, mt), False, ks == 0) for mt in range(2)]
                if line == 0: fl.append(dict(item=IT_L0 + ks, kind='tr', reg=V_TR + T, off=mat * 4096, mf=mf_))
                else: fl.append(dict(item=L1it(T >> 1, ks >> 1), kind='tr', reg=V_TH + (T & 1), off=mat * 4096 + (ks & 1) * 2048, mode='h', mf=mf_))
        return fl
    def Cf(item, acc, ones, first, mode):
        return [dict(item=item, kind='tr', reg=V_LB, off=0, mode=mode, mf=[(acc, ones, True, first)])]
    def Kf(u, nt, off, swap=False, zero=False):
        return [dict(item=None, kind='k', mode='k', off=off, mf=[(ACC(u, nt, mt), BN[mt], swap, zero) for mt in range(2)])]
    def Ku(u, kb0, kb1, o, zero=False): return Kf(u, 0, kb0 * 1024 + o, False, zero) + Kf(u, 1, kb1 * 1024 + o, False, zero)
    K1 = cfg.get('k1', 15); K3 = cfg.get('k3', 8); K4 = cfg.get('k4', 8)
    for ks in range(K1): add_step(('S1', ks), Cf(ks, CSA, ONES, ks == 0, 'c0') + Lf(0, ks, [(0, 0), (1, 1), (2, 2), (3, 3)]))
    for u in range(4):
        for ks in range(K1, 18):
            fl = Lf(0, ks, [(u, u)])
            if u == 0 and ks == K1:
                cl = [f for k2 in range(K1, 18) for f in Cf(k2, CSA, ONES, False, 'c0')]
                fl = cl[:1] + fl[:1] + cl[1:2] + fl[1:] + cl[2:]
            if u == 1 and ks == K1 + 1: fl += Ku(0, 0, 4, 768)
            if u >= 1 and ks == 17: fl += Ku(u, u, 4 + u, 768)
            add_step((f'S1{"abcd"[u]}', ks), fl)
    for ks in range(18):
        add_step(('S2', ks), [dict(item=IT_Q + ((2*ks+mat) >> 3), kind='b', mode='b', off=((2*ks+mat) & 7) * 1024,
                                   mf=[(ACC(4, mat, mt), XF(ks, mt), False, ks == 0) for mt in range(2)]) for mat in range(2)])
    for ks in range(18):
        add_step(('S3', ks), [dict(item=IT_X + ((4*ks+T) >> 3), kind='b', mode='b', off=((4*ks+T) & 7) * 1024,
                                   mf=[(ACC(T >> 1, T & 1, mt), XF(ks, mt), T != 0, ks == 0) for mt in range(2)]) for T in range(4)]
                 + (Ku(4, 0, 1, 0) if ks == 0 else [])
                 + ([f for T in range(4) for f in Kf(T >> 1, T & 1, (2 + T) * 1024, T != 0)] if ks == 17 else []))
    def csched(K):
        m = {ks: ks >> 1 for ks in range(1, K, 2)}; n = len(m); ks = K
        while n < 9: m[ks] = n; n += 1; ks += 1
        return m, ks
    cma, CA_END = csched(K3); cmb_, CB_END = csched(K4)
    ca = lambda ks: Cf(L1it(0, cma[ks]), CSA, ONES, ks == 1, 'ch') if ks in cma else []
    cb = lambda ks: Cf(L1it(1, cmb_[ks]), T1[1], T1[0], ks == 1, 'ch') if ks in cmb_ else []
    for ks in range(K3): add_step(('S4', ks), Lf(1, ks, [(0, 2), (1, 3)]) + ca(ks))
    for ks in range(K3, 18): add_step(('S4a', ks), ca(ks) + Lf(1, ks, [(0, 2)]))
    for ks in range(K3, 18): add_step(('S4b', ks), Lf(1, ks, [(1, 3)]) + (Ku(2, 0, 2, 768) + Ku(3, 1, 3, 768) if ks == K3 + 1 else []))
    for ks in range(K4): add_step(('S4c', ks), cb(ks) + Lf(1, ks, [(2, 4), (3, 1)]))
    for ks in range(K4, 18): add_step(('S4d', ks), cb(ks) + Lf(1, ks, [(2, 4)]))
    for ks in range(K4, 18): add_step(('S4e', ks), Lf(1, ks, [(3, 1)]) + (Ku(4, 4, 6, 768) + Ku(1, 5, 7, 768) if ks == K4 + 1 else []))
    def P2f(sp, lts, blk0):
        fl = []
        for k, lt in enumerate(lts):
            blk = blk0 + k
            mf_ = [(ACC2(lt, mt), AF(sp, mt), False, sp == 0) for mt in range(2)] if sp < 20 else [(ACC2(lt, 0), V_AL, False, False)]
            fl.append(dict(item=IT_W2 + (blk >> 2), kind='b', mode='b2', off=(blk & 3) * 1024, mf=mf_))
        return fl
    for sp in range(21): add_step(('P1', sp), P2f(sp, range(2, 9), sp * 7))
    for lt in range(2):
        for sp in range(21): add_step(('P2' + 'ab'[lt], sp), P2f(sp, [lt], 148 + lt * 20 + sp if sp < 20 else 188 + lt))
    NF = len(frags)
    SO = {s: i for i, s in enumerate(steps)}
    first_frag = {}
    for i, f in enumerate(frags): first_frag.setdefault(f['step'], i)
    events = {}; pending = {}
    st.lbmode = 'c0'; st.hinit = False
    def reads(i):
        f = frags[i]; w = V_WF + (i % 4) * 4
        slot = slot_of(f['item']) * SLOT if f['item'] is not None else MISC
        pre = []
        mode = f.get('mode')
        if mode == 'h' and not st.hinit:
            assert 'trh' in events
            st.hinit = True; base[V_TH] = 0; base[V_TH + 1] = 0
        if mode in ('b', 'b2', 'ch', 'k') and st.lbmode != mode:
            st.lbmode = mode
            if mode == 'b':
                pre = [I(f'v_mov_b32 v{V_LB}, v{V_L16}')]; base[V_LB] = 0
            elif mode == 'k':
                pre = [I(f'v_bfe_u32 v{V_LB}, v{V_L16}, 1, 8')]; base[V_LB] = 0
            elif mode == 'b2':
                pre = [I(f's_and_b32 s{S_RX}, s{S_W1K}, 0x1000'), I(f'v_or_b32 v{V_LB}, s{S_RX}, v{V_L16}')]; base[V_LB] = 0
            else:
                pre = [I(f'v_xor_b32 v{V_LB}, s{S_MW}, v{V_TH}')]; base[V_LB] = base[V_TH]
        if f['kind'] == 'tr':
            fx, off = lds_addr(f['reg'], slot + f['off'], 2048)
            return (pre + fx + [I(f'ds_read_b64_tr_b16 {vr(w, 2)}, v{f["reg"]} offset:{off}', tok=f'rd{i}a')],
                    [I(f'ds_read_b64_tr_b16 {vr(w + 2, 2)}, v{f["reg"]} offset:{off + 1024}', tok=f'rd{i}b')])
        fx, off = lds_addr(V_LB, slot + f['off'], 1024)
        if f['kind'] == 'k':
            return (pre + fx + [I(f'ds_read_b64 {vr(w, 2)}, v{V_LB} offset:{off}', tok=f'rd{i}a')], [])
        return (pre + fx + [I(f'ds_read_b128 {vr(w, 4)}, v{V_LB} offset:{off}', tok=f'rd{i}a')], [])
    def rtoks(i):
        return [f'rd{i}a', f'rd{i}b'] if frags[i]['kind'] == 'tr' else [f'rd{i}a']
    def mfmas(i):
        w = V_WF + (i % 4) * 4; L = []
        for (d, x, swap, zero) in frags[i]['mf']:
            a, b = (x, w) if swap else (w, x)
            if frags[i]['kind'] == 'k': L.append(I(f'v_mfma_f32_16x16x16_bf16 {vr(d,4)}, {vr(a,2)}, {vr(b,2)}, {"0" if zero else vr(d,4)}'))
            else: L.append(I(f'v_mfma_f32_16x16x32_bf16 {vr(d,4)}, {vr(a,4)}, {vr(b,4)}, {"0" if zero else vr(d,4)}'))
        return L
    def mf(d, a, b): return I(f'v_mfma_f32_16x16x32_bf16 {vr(d,4)}, {vr(a,4)}, {vr(b,4)}, 0')

    HST = cfg.get('hst', 'sc1')
    t4 = [V_T + r for r in range(4)]
    q2, q3 = U(4)[2], U(4)[3]
    def gelu_quad(g, u, dst, mt):
        t = t4; L = []
        for r in range(4): L.append(I(f'v_mul_f32 v{t[r]}, v{g+r}, v{g+r}'))
        for r in range(4): L.append(I(f'v_fma_f32 v{t[r]}, v{t[r]}, v{C1[mt]}, v{C0[mt]}'))
        for r in range(4): L.append(I(f'v_mul_f32 v{t[r]}, v{g+r}, v{t[r]}'))
        for r in range(4): L.append(I(f'v_exp_f32 v{t[r]}, v{t[r]}'))
        for r in range(4): L.append(I(f'v_mul_f32 v{u+r}, v{g+r}, v{u+r}'))
        for r in range(4): L.append(I(f'v_add_f32 v{t[r]}, 1.0, v{t[r]}'))
        for r in range(4): L.append(I(f'v_rcp_f32 v{t[r]}, v{t[r]}'))
        for r in range(4): L.append(I(f'v_mul_f32 v{u+r}, v{u+r}, v{t[r]}'))
        L.append(I(f'v_cvt_pk_bf16_f32 v{dst}, v{u}, v{u+1}'))
        L.append(I(f'v_cvt_pk_bf16_f32 v{dst+1}, v{u+2}, v{u+3}'))
        return L
    def hstore(reg, n, mt, t, extra=0, va=None):
        s = ftmp(); off = t * 1024 + extra
        op = 'buffer_store_dwordx4' if n == 4 else 'buffer_store_dwordx2'
        return [I(f's_add_u32 s{s}, s{S_A2 if not cfg.get("fakeH") else S_OOB}, {mt * A2_MT + (off & ~4095)}'),
                I(f'{op} {vr(reg, n)}, v{V_L16 if n == 4 else va}, {WS}, s{s} offen offset:{off & 4095} {HST}', tok=f'h{t}_{mt}_{extra}')]
    def E_first(u):
        L = []
        for mt in range(2): L += gelu_quad(ACC(u, 0, mt), ACC(u, 1, mt), ACC(u, 0, mt), mt)
        return L
    def E_second(u0, u1, t):
        L = []
        for mt in range(2):
            L += gelu_quad(ACC(u1, 0, mt), ACC(u1, 1, mt), ACC(u0, 0, mt) + 2, mt)
            if t == 3: L += [I(f'v_min_u32 v{ACC(u0, 0, mt) + r}, -2, v{ACC(u0, 0, mt) + r}') for r in range(4)]
            L += hstore(ACC(u0, 0, mt), 4, mt, t)
        return L
    def E_quarter(u):
        L = []
        for mt in range(2):
            L += gelu_quad(ACC(u, 0, mt), ACC(u, 1, mt), ACC(u, 0, 0) + 2 * mt, mt)
        a = ACC(u, 1, 0)
        L += [I(f's_add_u32 s{S_CNT}, s{S_W1K}, {slot_of(IT_PK) * SLOT}'), I(f'v_add_u32 v{a}, s{S_CNT}, v{V_L16}'),
              I(f'ds_write_b128 v{a}, {vr(ACC(u, 0, 0), 4)}')]
        return L
    def cswrite(c, e, t):
        L = [I(f'v_cvt_pk_bf16_f32 v{t}, v{c}, v{c}'), I(f'v_and_b32 v{t}, 0xffff0000, v{t}'), I(f'v_sub_f32 v{t}, v{c}, v{t}'),
             I(f'v_cvt_pk_bf16_f32 v{t}, v{c}, v{t}'), I(f'v_mov_b32 v{t+1}, 0')]
        if e < 2:
            L += [I(f'v_bfe_u32 v{t+2}, v{V_L16}, 1, 8'), I(f's_add_u32 s72, s{S_W1K}, {MISC + (768 if e == 0 else 0)}')]
            if e == 0: L += [I(f'v_bfe_i32 v{t+3}, v{V_L16}, 8, 1'), I(f'v_bfi_b32 v{t}, v{t+3}, 0, v{t}')]
        else:
            L += [I(f'v_bfe_u32 v{t+2}, v{V_L16}, 1, 7'), I(f's_and_b32 s72, s{S_W1K}, 0xc00'), I(f's_lshr_b32 s83, s{S_W1K}, 12'),
                  I('s_lshl_b32 s83, s83, 7'), I(f's_add_u32 s72, s72, s83'), I(f's_add_u32 s72, s72, {MISC + 768 + (e - 2) * 4096}')]
        L += [I(f'v_add_u32 v{t+2}, s72, v{t+2}'), I(f'ds_write_b64 v{t+2}, {vr(t,2)}', tok=f'cs{e}')]
        return L
    def phi_quad(q):
        t = t4; L = []
        for r in range(4): L.append(I(f'v_mul_f32 v{t[r]}, s{S_L2E}, v{q+r}'))
        for r in range(4): L.append(I(f'v_exp_f32 v{t[r]}, v{t[r]} clamp'))
        for r in range(4): L.append(I(f'v_max_f32 v{q+r}, s{S_EPS}, v{q+r}'))
        for r in range(4): L.append(I(f'v_add_f32 v{q+r}, v{q+r}, v{t[r]}'))
        return L
    def pack2(dst, q0, q1):
        return [I(f'v_cvt_pk_bf16_f32 v{dst}, v{q0}, v{q0+1}'), I(f'v_cvt_pk_bf16_f32 v{dst+1}, v{q0+2}, v{q0+3}'),
                I(f'v_cvt_pk_bf16_f32 v{dst+2}, v{q1}, v{q1+1}'), I(f'v_cvt_pk_bf16_f32 v{dst+3}, v{q1+2}, v{q1+3}')]
    def sgroups(txt):
        L = []
        lines = [l.strip() for l in txt.strip().split('\n') if l.strip()]
        k = 0
        while k < len(lines):
            if lines[k].startswith('s_cmp') or lines[k].startswith('s_bitcmp'):
                g = [I(lines[k])]; k += 1
                while k < len(lines) and lines[k].startswith('s_cselect'): g.append(I(lines[k])); k += 1
                L.append(g)
            else:
                L.append(I(lines[k])); k += 1
        return L
    def setflag(sreg, add, toks, VA, VB):
        t = ftmp()
        return [I(f'v_lshlrev_b32 v{VA}, 21, v{V_L16}'), I(f'v_and_b32 v{VA}, s{S_OOB}, v{VA}'),
                I(f'v_lshrrev_b32 v{VB}, 2, v{V_L16}'), I(f'v_or_b32 v{VA}, v{VA}, v{VB}'), I(f'v_mov_b32 v{VB}, s{S_NON}'),
                I(f's_add_u32 s{t}, s{sreg}, {add}'),
                I(f'buffer_store_dword v{VB}, v{VA}, {WS}, s{t} offen sc1', waits=toks)]
    def poll(spt, bits, ev, w0, bar, between, VA, VB, S_PT=S_PT):
        addr = [I(f'v_lshrrev_b32 v{VA}, {10 - bits}, v{V_L16}'), I(f'v_lshlrev_b32 v{VA}, 7, v{VA}')]
        loads = lambda: [I(f'buffer_load_dword v{VB}, v{VA}, {WS}, s{S_PT} offen sc1')]
        check = lambda: [I(f'v_cmp_ne_u32 vcc, s{S_NON}, v{VB}')]
        return addr + spt + loads() + between + retry_group(loads, check, w0) + [Ev(ev, bar)]
    def htouch(t, nt, toks, VA, VB):
        if not cfg.get('ht', 0): return []
        s_ = ftmp()
        sh = 5 if nt == 2 else 6
        x = I(f'buffer_load_dword v{VB}, v{VA}, {WS}, s{s_} offen sc1', waits=toks)
        return [I(f'v_bfe_u32 v{VA}, v{V_L16}, {sh}, {9 - sh}'), I(f'v_lshrrev_b32 v{VB}, 9, v{V_L16}'), I(f'v_mul_u32_u24 v{VB}, {A2_MT}, v{VB}'),
                I(f'v_lshl_add_u32 v{VA}, v{VA}, 7, v{VB}'), I(f's_add_u32 s{s_}, s{S_A2}, {t * 1024}'), x]
    def w2touch(VA, VB):
        if not cfg.get('wt', 0): return []
        return [Need('w2ok'), Need('setup2'), [I('s_lshr_b32 s73, s2, 5'), I(f's_lshl3_add_u32 s73, s73, s{S_WAVE}'), I(f's_mul_i32 s73, s73, {48*128}')],
                [I(f's_and_b32 s74, s{S_W2K}, 0xfffff000'), I('s_add_u32 s73, s73, s74')],
                I(f'v_min_u32 v{VA}, {47*16}, v{V_L16}'), I(f'v_lshlrev_b32 v{VA}, 3, v{VA}'),
                I(f'buffer_load_dword v{VB}, v{VA}, {WS}, s73 offen sc1')]
    def pollh(k, ev, between, VA, VB):
        return poll([I(f's_add_u32 s{S_PT}, s{S_FH}, {k*HS}')], 3, ev, False, False, between, VA, VB)
    def F_nonce(between):
        X0 = XF(17, 0); a = XF(16, 1); n_ = a + 1; q3 = XF(16, 0)
        loads = lambda: [I(f'buffer_load_dword v{n_}, off, s[{S_OUT}:{S_OUT+3}], 0 sc1')]
        check = lambda: [I(f'v_cmp_eq_u32 vcc, 0, v{n_}')]
        adr = lambda: [I(f'v_cmp_gt_u32 vcc, 0x80, v{V_L16}'), I(f'v_mov_b32 v{a}, s{S_OOB}'), Delay(1), I(f'v_cndmask_b32 v{a}, v{a}, v{V_L16}, vcc')]
        L = [I(f'buffer_load_dwordx4 {vr(X0,4)}, v{V_L16}, {XS}, s{S_RS} offen'),
             I(f'v_lshlrev_b32 v{a}, 21, v{V_L16}'), I(f'v_and_b32 v{a}, s{S_OOB}, v{a}'), I(f'v_lshrrev_b32 v{a+2}, 2, v{V_L16}'), I(f'v_or_b32 v{a}, v{a}, v{a+2}'),
             I(f'buffer_load_dword v{X0+4}, v{a}, {XS}, s{S_RS} offen offset:1024')] + loads() + adr()
        L += between + retry_group(loads, check) + [I(f'v_readfirstlane_b32 s{S_NON}, v{n_}'), Ev('non')] + [
              I(f's_mov_b32 s{S_OUT}, s{S_OP}'), I(f's_mov_b32 s{S_OUT+1}, s{S_OP+1}'), I(f's_mov_b32 s{S_OUT+2}, 2359296')]
        S_, Q_, t0, t1 = q3, q3 + 2, a + 2, a + 3
        for r in range(5):
            L += [I(f'v_lshlrev_b32 v{t0}, 16, v{X0+r}'), I(f'v_and_b32 v{t1}, 0xffff0000, v{X0+r}')]
            if r == 0: L += [I(f'v_add_f32 v{S_}, v{t0}, v{t1}'), I(f'v_mul_f32 v{Q_}, v{t0}, v{t0}'), I(f'v_fmac_f32 v{Q_}, v{t1}, v{t1}')]
            else: L += [I(f'v_add_f32 v{S_}, v{S_}, v{t0}'), I(f'v_fmac_f32 v{Q_}, v{t0}, v{t0}'), I(f'v_add_f32 v{S_}, v{S_}, v{t1}'), I(f'v_fmac_f32 v{Q_}, v{t1}, v{t1}')]
        L += [Ev('rowdone'), Delay(1)]
        for m_ in ['row_shr:1 row_mask:0xf bank_mask:0xf bound_ctrl:0', 'row_shr:2 row_mask:0xf bank_mask:0xf bound_ctrl:0',
                   'row_shr:4 row_mask:0xf bank_mask:0xf bound_ctrl:0', 'row_shr:8 row_mask:0xf bank_mask:0xf bound_ctrl:0',
                   'row_bcast:15 row_mask:0xa bank_mask:0xf', 'row_bcast:31 row_mask:0xc bank_mask:0xf']:
            L += [I(f'v_add_f32_dpp v{k}, v{k}, v{k} {m_}') for k in (S_, Q_)]
        L += IL(f"""
        v_readlane_b32 s30, v{S_}, 63
        v_readlane_b32 s31, v{Q_}, 63
        v_mov_b32 v{t0}, {f2u(1.0/576.0):#x}
        v_mov_b32 v{q3+1}, v{n_}
        v_mul_f32 v{S_}, s30, v{t0}
        v_mul_f32 v{Q_}, s31, v{t0}
        v_fma_f32 v{Q_}, -v{S_}, v{S_}, v{Q_}
        v_max_f32 v{Q_}, 0, v{Q_}
        v_cvt_pk_bf16_f32 v{t0}, -v{S_}, v{Q_}
        v_lshlrev_b32 v{S_}, 16, v{t0}
        v_and_b32 v{Q_}, 0xffff0000, v{t0}
        v_add_f32 v{Q_}, {f2u(1e-5):#x}, v{Q_}
        v_cvt_pk_bf16_f32 v{Q_}, v{Q_}, v{Q_}
        v_and_b32 v{Q_}, 0xffff0000, v{Q_}
        v_sqrt_f32 v{Q_}, v{Q_}
        v_cvt_pk_bf16_f32 v{Q_}, v{Q_}, v{Q_}
        v_and_b32 v{Q_}, 0xffff0000, v{Q_}
        v_rcp_f32 v{Q_}, v{Q_}
        v_mov_b32 v{q3+3}, v{n_}
        buffer_store_dwordx4 {vr(q3,4)}, v{a}, {WS}, s{S_PT} offen sc1
        """)
        return L + [Ev('nonce')]
    def F_setup2():
        C = 71
        L = sgroups(f"""
            s_lshr_b32 s74, s2, 3
            s_and_b32 s73, s74, 3
            s_lshr_b32 s74, s74, 2
            s_and_b32 s75, s2, 4
            s_lshl_b32 s75, s75, 1
            s_add_u32 s74, s74, s75
            s_and_b32 s75, s{S_WAVE}, 3
            s_lshr_b32 s76, s{S_WAVE}, 2
            s_and_b32 s78, s2, 3
            s_lshl_b32 s77, s74, 3
            s_lshl_b32 s79, s75, 1
            s_add_u32 s77, s77, s79
            s_add_u32 s77, s77, s76
            s_lshl_b32 s{S_STK}, s77, 11
            s_lshl_b32 s79, s78, 3
            s_lshl_b32 s{C}, s76, 2
            s_add_u32 s79, s79, s{C}
            s_mul_i32 s79, s79, 5120
            s_add_u32 s79, s79, {A2_OFF}
            s_mul_i32 s{S_A}, s77, {A2_MT}
            s_add_u32 s{S_A}, s{S_A}, s79
            s_xor_b32 s{C}, s77, 1
            s_mul_i32 s{S_A+1}, s{C}, {A2_MT}
            s_add_u32 s{S_A+1}, s{S_A+1}, s79
            s_lshl_b32 s79, s78, 2
            s_add_u32 s79, s79, s73
            s_lshl_b32 s79, s79, 1
            s_add_u32 s79, s79, s76
            s_mul_i32 s79, s79, {W2_S}
            s_lshl_b32 s{C}, s75, 10
            s_add_u32 s79, s79, s{C}
            s_add_u32 s{S_W2}, s79, {W2_OFF}
            s_mul_i32 s79, s76, {W2_S}
            s_sub_u32 s{S_W2K}, s{S_W2}, s79
            s_lshr_b32 s79, s77, 1
            s_lshl_b32 s79, s79, 2
            s_add_u32 s79, s79, s78
            s_lshl_b32 s79, s79, 10
            s_lshl_b32 s{C}, s76, 6
            s_add_u32 s79, s79, s{C}
            s_add_u32 s{S_AL}, s79, {A2L_OFF}
            s_mul_i32 s79, s77, 18432
            s_mul_i32 s{C}, s73, 288
            s_add_u32 s79, s79, s{C}
            s_lshl_b32 s{C}, s78, 6
            s_add_u32 s{S_O}, s79, s{C}
            s_add_u32 s{S_O8}, s79, 256
        """)
        for p in range(1, 4):
            L += sgroups(f"""
            s_add_u32 s79, s78, {p}
            s_and_b32 s79, s79, 3
            s_sub_u32 s79, s79, s78
            s_mul_i32 s79, s79, 24576
            s_add_u32 s79, s79, s{S_EX}
            s_add_u32 s{S_EXS+p-1}, s79, {(3-p)*1024}
            """)
        L += sgroups(f"""
            s_lshr_b32 s79, s2, 2
            s_lshl_b32 s79, s79, 3
            s_add_u32 s79, s79, s{S_WAVE}
            s_lshl_b32 s79, s79, 11
            s_add_u32 s79, s79, {EX8_OFF}
            s_sub_u32 s{C}, s78, s75
            s_sub_u32 s{C}, s{C}, 1
            s_and_b32 s{C}, s{C}, 3
            s_lshl_b32 s{C}, s{C}, 9
            s_add_u32 s79, s79, s{C}
            s_cmp_eq_u32 s78, s75
            s_cselect_b32 s{S_E8S}, s{S_OOB}, s79
            s_cselect_b32 s{S_O8}, s{S_O8}, s{S_OOB}
        """)
        return L + [Ev('setup2')]
    def F_wx(i):
        q = U(4)[3]; a = U(4)[2] + 2
        L = [I(f'v_bfe_u32 v{a}, v{V_L16}, 4, 2'), I(f'v_lshlrev_b32 v{a}, s{S_GP+3+i}, v{a}'),
             I(f'v_and_b32 v{a+1}, 0x3c0, v{V_L16}'), I(f'v_add3_u32 v{a}, v{a}, v{a+1}, s{S_W1K}'),
             I(f'v_add_u32 v{a+1}, {GL[i][1]}, v{a}'), I(f'v_add_u32 v{a}, {GL[i][0]}, v{a}')]
        for hh in range(2):
            L.append(I(f'ds_read_b64_tr_b16 {vr(q+2*hh,2)}, v{a+hh}', waits=[f'sg{i}_0', f'sg{i}_1']))
        L += [Delay(3),
              I(f'v_lshlrev_b32 v{a}, 21, v{V_L16}'), I(f'v_and_b32 v{a}, s{S_OOB}, v{a}'),
              I(f'v_lshrrev_b32 v{a+1}, 2, v{V_L16}'), I(f'v_or_b32 v{a}, v{a}, v{a+1}'),
              mf(V_T, ONES, q),
              I(f'buffer_store_dwordx4 {vr(q,4)}, v{V_L16}, {WS}, s{S_WXD+i} offen sc1', tok=f'wx{i}'),
              I(f's_lshr_b32 s{S_CNT}, s{S_WXD+i}, 3'), I(f's_add_u32 s{S_CNT}, s{S_CNT}, {CSP_OFF - WX_OFF // 8}'),
              I(f'buffer_store_dword v{V_T}, v{a}, {WS}, s{S_CNT} offen sc1', tok=f'wc{i}'), Ev(f'wxst{i}')]
        return L
    def F_csx():
        q = U(4)[0]; d = U(4)[1]
        L = sgroups(f"""
            s_add_u32 s30, s{S_WAVE}, 38
            s_cmp_lt_u32 s{S_WAVE}, 2
            s_cselect_b32 s30, s{S_WAVE}, s30
            s_cselect_b32 s31, 8, 9
            s_mul_i32 s{S_CNT}, s{S_J}, 112
            s_add_u32 s30, s30, s{S_CNT}
            s_lshl_b32 s30, s30, 7
            s_add_u32 s{S_CNT}, s30, {CSP_OFF}
        """)
        L += [I(f'v_lshrrev_b32 v{q}, 8, v{V_L16}'), I(f'v_cmp_gt_u32 vcc, 2, v{q}'), I(f'v_lshlrev_b32 v{q}, s31, v{q}'),
              I(f'v_bfe_u32 v{q+1}, v{V_L16}, 4, 4'), I(f'v_lshl_add_u32 v{q}, v{q+1}, 2, v{q}'), I(f'v_mov_b32 v{q+1}, s{S_OOB}'),
              I(f'v_cndmask_b32 v{q+1}, v{q+1}, v{q}, vcc'), I('s_lshl_b32 s31, 4, s31')]
        for i in range(5):
            L.append(I(f'buffer_load_dword v{d+i if i < 4 else q+2}, v{q if i < 4 else q+1}, {WS}, s{S_CNT} offen sc1'))
            if i < 4: L.append(I(f's_add_u32 s{S_CNT}, s{S_CNT}, s31'))
        return L
    def F_csx2():
        q = U(4)[0]; d = U(4)[1]
        L = [I(f'v_add_f32 v{d}, v{d}, v{d+1}'), I(f'v_add_f32 v{d+2}, v{d+2}, v{d+3}'), I(f'v_add_f32 v{d}, v{d}, v{q+2}'), I(f'v_add_f32 v{d}, v{d}, v{d+2}')]
        L += [I(f'v_mov_b32 v{d+1}, v{d}'), Delay(1), I(f'v_permlane32_swap_b32 v{d}, v{d+1}'), I(f'v_add_f32 v{d}, v{d}, v{d+1}')]
        return L + cswrite(d, 1, q)
    def F_stats(between):
        q = q2; a = V_T
        loads = lambda: [I(f'buffer_load_dwordx4 {vr(q,4)}, v{a}, {WS}, s{S_PT} offen sc1')]
        check = lambda: [I(f'v_xor_b32 v{q+1}, s{S_NON}, v{q+1}'), I(f'v_xor_b32 v{q+3}, s{S_NON}, v{q+3}'),
                         I(f'v_or_b32 v{q+1}, v{q+1}, v{q+3}'), I(f'v_cmp_ne_u32 vcc, 0, v{q+1}')]
        L = [I(f'v_lshrrev_b32 v{a}, 5, v{V_L16}'), I(f'v_lshlrev_b32 v{a}, 7, v{a}'),
             I(f's_lshl_b32 s{S_PT}, s{S_RB}, 3'), I(f's_add_u32 s{S_PT}, s{S_PT}, s{S_WAVE}'), I(f's_lshl_b32 s{S_PT}, s{S_PT}, 12')]
        L += loads() + between + retry_group(loads, check)
        L += [I(f'v_lshrrev_b32 v{a}, 5, v{a}'), I(f's_add_u32 s{S_CNT}, s{S_W1K}, {MISC}'), I(f'v_add_u32 v{a}, s{S_CNT}, v{a}'),
              I(f'v_bfe_u32 v{q+1}, v{V_L16}, 4, 4'), I(f'v_lshl_add_u32 v{q+1}, v{q+1}, 2, s{S_CNT}'),
              I(f'ds_write_b32 v{a}, v{q+2} offset:512'), I(f'ds_write_b32 v{a}, v{q} offset:640')]
        for mt in range(2):
            L += [I(f'ds_read_b32 v{q3+2*mt}, v{q+1} offset:{640 + 64*mt}'), I(f'ds_read_b32 v{q3+2*mt+1}, v{q+1} offset:{512 + 64*mt}')]
        return L
    def F_stats2():
        L = [Need('xdone'), I(f'v_cmp_gt_u32 vcc, 0x200, v{V_L16}')]
        for mt in range(2):
            L += [I(f'v_cvt_pk_bf16_f32 v{q3+2*mt}, v{q3+2*mt}, v{q3+2*mt}'), I(f'v_mul_f32 v{q3+2*mt+1}, {f2u(K0C):#x}, v{q3+2*mt+1}')]
        for mt in range(2):
            L += [I(f'v_cndmask_b32 v{BN[mt]}, 0, v{q3+2*mt}, vcc'), I(f'v_and_b32 v{C0[mt]}, 0xffffff7f, v{q3+2*mt+1}')]
        return L + [Ev('stats')]
    def F_c1():
        L = [I(f'v_mul_f32 v{C1[mt]}, v{C0[mt]}, v{C0[mt]}') for mt in range(2)]
        L += [I(f'v_mul_f32 v{C1[mt]}, {f2u(0.044715 / (K0C * K0C)):#x}, v{C1[mt]}') for mt in range(2)]
        L += [I(f'v_mul_f32 v{C1[mt]}, v{C1[mt]}, v{C0[mt]}') for mt in range(2)]
        return L
    def F_rpat():
        a, b = q2 + 1, q2 + 2
        return [I(f'v_lshrrev_b32 v{a}, 3, v{V_L16}'), I(f'v_xor_b32 v{a}, v{a}, v{V_L16}'), I(f'v_and_b32 v{a}, 0x60, v{a}'),
                I(f'v_and_or_b32 v{a}, v{V_L16}, 16, v{a}'), I(f'v_lshrrev_b32 v{b}, 8, v{V_L16}'), I(f'v_mad_u32_u24 v{a}, v{b}, s{S_LEFT}, v{a}'),
                I(f'v_lshrrev_b32 v{b}, 7, v{V_L16}'), I(f'v_mul_u32_u24 v{b}, 1152, v{b}'), I(f'v_add_u32 v{a}, v{a}, v{b}'), Ev('rpat')]
    NT = cfg.get('nt', 9)
    def F_tpat():
        a, b, c = 7, V_T, V_T + 1; n = 18 // NT
        return [[I('s_lshl_b32 s30, s2, 2'), I(f's_and_b32 s31, s{S_WAVE}, 3'), I('s_add_u32 s30, s30, s31'), I(f's_mul_i32 s30, s30, {n}')],
                I(f'v_lshrrev_b32 v{a}, 4, v{V_L16}'), I(f'v_min_u32 v{a}, {n - 1}, v{a}'), I(f'v_add_u32 v{a}, s30, v{a}'),
                I(f'v_and_b32 v{c}, 7, v{a}'), I(f'v_cmp_eq_u32 vcc, 2, v{c}'),
                I(f'v_lshrrev_b32 v{b}, 5, v{a}'), I(f'v_mul_u32_u24 v{b}, {9216 - 4096}, v{b}'), I(f'v_cndmask_b32 v{c}, 32, 1, vcc'),
                I(f'v_add_u32 v{a}, v{a}, v{c}'), I(f'v_lshl_add_u32 v{a}, v{a}, 7, v{b}'), Ev('tpat')]
    def touch(k):
        t = stmp()
        x = I(f'buffer_load_dword v7, s[{S_W}:{S_W+3}], s{t} offen lds')
        if k == NT - 1: events['tissued'] = st.gap
        st.tnext = st.gap + cfg.get('tsp_', 8)
        return [I(f's_add_u32 m0, s{S_W1K}, {6*SLOT}'), I(f's_mov_b32 s{t}, {k * (576 // NT) * 9216}'), x]
    def F_dmah(VA, VB):
        return [I(f'v_bfe_u32 v{VA}, v{V_L16}, 6, 2'), I(f'v_lshrrev_b32 v{VB}, 8, v{V_L16}'), I(f'v_lshl_add_u32 v{VA}, v{VB}, 3, v{VA}'),
                [I(f's_and_b32 s72, s{S_WAVE}, 1'), I(f's_lshl_b32 s72, s72, 2'), I(f's_and_b32 s71, s{S_WAVE}, 2'),
                 I('s_lshl_b32 s71, s71, 4'), I(f's_add_u32 s72, s72, s71')],
                I(f'v_add_u32 v{VA}, s72, v{VA}'), I(f'v_mul_u32_u24 v{VA}, 9216, v{VA}'),
                I(f'v_lshlrev_b32 v{VB}, 5, v{VB}'), I(f'v_xor_b32 v{VB}, v{VB}, v{V_L16}'), I(f'v_and_b32 v{VB}, 0x30, v{VB}'),
                [I(f's_and_b32 s72, s{S_J}, 7'), I('s_cmp_eq_u32 s72, 2'), I('s_cselect_b32 s72, 1, 32'), I(f's_add_u32 s72, s72, s{S_J}'), I('s_lshl_b32 s72, s72, 7')],
                I(f'v_add3_u32 v{V_DMA}, v{VA}, v{VB}, s72'), Ev('dmah')]
    def F_trh():
        return [I(f'v_and_b32 v{V_TH}, 0x3c0, v{V_L16}'), I(f'v_bfe_u32 v{V_TH+1}, v{V_L16}, 8, 1'), I(f'v_lshl_add_u32 v{V_TH}, v{V_TH+1}, 5, v{V_TH}'),
                I(f'v_bfe_u32 v{V_TH+1}, v{V_L16}, 4, 2'), I(f'v_lshl_add_u32 v{V_TH}, v{V_TH+1}, 3, v{V_TH}'), I(f'v_xor_b32 v{V_TH+1}, 32, v{V_TH}'), Ev('trh')]
    def F_relayout(qd, VA, VB):
        L = [I(f'v_bfe_u32 v{VA}, v{V_L16}, 6, 4'), I(f'v_lshlrev_b32 v{VA}, 7, v{VA}'), I(f'v_bfe_u32 v{VB}, v{V_L16}, 7, 2'),
             I(f'v_lshl_add_u32 v{VA}, v{VB}, 5, v{VA}'), I(f'v_bfe_u32 v{VB}, v{V_L16}, 4, 2'), I(f'v_lshl_add_u32 v{VA}, v{VB}, 3, v{VA}'),
             [I(f's_and_b32 s{S_CNT}, s{S_WAVE}, 3'), I(f's_lshl_b32 s{S_CNT}, s{S_CNT}, 5'), I(f's_and_b32 s30, s{S_W1K}, 0x1000'),
              I(f's_or_b32 s{S_CNT}, s{S_CNT}, s30')],
             I(f'v_xor_b32 v{VA}, s{S_CNT}, v{VA}'), I(f'v_add_u32 v{VA}, {6*SLOT}, v{VA}')]
        def rd(i):
            o = i * SLOT; q = qd[i % 2]
            assert slot_of(IT_R + i) == 6 + i
            return [I(f'ds_read_b64_tr_b16 {vr(q,2)}, v{VA} offset:{o}'), I(f'ds_read_b64_tr_b16 {vr(q+2,2)}, v{VA} offset:{o+2048}')]
        def sto(i): return I(f'buffer_store_dwordx4 {vr(qd[i % 2],4)}, v{V_L16}, {WS}, s{S_RDST+i if not cfg.get("fakeW") else S_OOB} offen sc1', tok=f'w2a{i}')
        return L + [Need('rland'), Need('rsetup')] + rd(0) + rd(1), [[sto(0)] + rd(2), [sto(1)], [sto(2), Ev('rdone')]]
    def F_poison(q):
        L = [I(f'v_mov_b32 v{q+r}, -1') for r in range(4)]
        S_ = [I(f'buffer_store_dwordx4 {vr(q,4)}, v{V_L16}, {WS}, s{S_EX} offen offset:{1024*p} sc1', tok=f'po{p}') for p in range(3)]
        L += [I(f'v_lshrrev_b32 v{q+4}, 1, v{V_L16}')]
        S_ += [I(f'buffer_store_dwordx2 {vr(q,2)}, v{q+4}, {WS}, s{S_E8P} offen sc1', tok='po3')]
        for mt in range(2):
            x = hstore(q, 4, mt, 3); x[1].tok = f'p3_{mt}'; S_.append(x)
        return L, S_ + [Ev('podone')]
    def E_qkv():
        qa, qb = U(4)[2], U(4)[3]
        VA, VB, VC, VD = qb, qb + 1, qb + 2, qb + 3
        L = []
        L += [I(f'v_lshrrev_b32 v{V_A}, 4, v{V_L16}'), I(f'v_and_b32 v{V_A}, 0x30, v{V_A}'), I(f's_add_u32 s{S_CNT}, s{S_W1K}, {MISC}'),
              I(f'v_add_u32 v{V_A}, s{S_CNT}, v{V_A}'),
              I(f'ds_read_b128 {vr(qa,4)}, v{V_A} offset:512'), I(f'ds_read_b128 {vr(qb,4)}, v{V_A} offset:576')]
        for mt in range(2): L.append(I(f'v_mul_f32 v{V_T+mt}, {f2u(1.0/K0C):#x}, v{C0[mt]}'))
        for mt in range(2): L += [I(f'v_mul_f32 v{T0[mt]+r}, v{T0[mt]+r}, v{V_T+mt}') for r in range(4)]
        for mt in range(2):
            for T in (T1, T2, T3):
                L += [I(f'v_mul_f32 v{T[mt]+r}, v{T[mt]+r}, v{(qa, qb)[mt]+r}') for r in range(4)]
        L += pack2(T2[0], T2[0], T2[1])
        L += pack2(T2[1], T3[0], T3[1])
        L.append(I(f'v_mov_b32 v{VB}, 0x3f803f80'))
        L.append(I(f'v_add_u32 v{VA}, s{S_W1K}, v{V_L16}'))
        for r in range(4): L.append(I(f'v_cndmask_b32 v{T2[1]+r}, v{T2[1]+r}, v{VB}, s[{S_M4}:{S_M4+1}]'))
        L += phi_quad(T1[0]) + phi_quad(T1[1]) + pack2(T1[0], T1[0], T1[1])
        L += phi_quad(T3[0]) + phi_quad(T3[1]) + pack2(T3[0], T3[0], T3[1])
        L.append(I(f'v_add_u32 v{VA}, {SCR}, v{VA}'))
        L.append(I(f'v_bfe_u32 v{VC}, v{V_L16}, 6, 2'))
        L.append(mf(T1[1], T1[0], T2[0]))
        L.append(mf(T3[1], T1[0], T2[1]))
        L.append(I(f'ds_write_b128 v{VA}, {vr(T3[0],4)}'))
        L.append(I(f'v_lshlrev_b32 v{VC}, 8, v{VC}'))
        L.append(I(f'v_bfe_u32 v{VB}, v{V_L16}, 4, 2'))
        L.append(mf(T1[0], T3[0], T2[0]))
        L.append(I(f'v_lshl_add_u32 v{VC}, v{VB}, 1, v{VC}'))
        L.append(I(f'v_add_u32 v{VC}, s{S_W1K}, v{VC}'))
        L.append(mf(T2[0], T3[0], T2[1]))
        L.append(I(f'v_add_u32 v{VC}, {SCR}, v{VC}'))
        L.append(I(f'v_bfe_u32 v{VD}, v{V_L16}, 8, 2'))
        for mt in range(2):
            L.append(I(f'ds_read_u16 v{qa+2*mt}, v{VC} offset:{4*16 + mt*8}'))
            L.append(I(f'ds_read_u16 v{qa+2*mt+1}, v{VC} offset:{5*16 + mt*8}'))
        L.append(I(f'ds_write_b128 v{VA}, {vr(T1[1],4)}', tok='kva0'))
        L.append(I(f'v_bfe_u32 v{VB}, v{V_L16}, 4, 4'))
        L.append(I(f'v_mad_u32_u24 v{VA}, v{VD}, 3, v{VB}'))
        L.append(I(f'v_lshlrev_b32 v{VA}, 4, v{VA}'))
        L.append(I(f'v_mov_b32 v{VC}, 0xc0'))
        L.append(I(f'v_cmp_gt_u32 vcc, 3, v{VB}'))
        L.append(I(f'v_lshlrev_b32 v{VB}, 4, v{VB}'))
        L.append(I(f'v_cndmask_b32 v{VA}, v{VC}, v{VA}, vcc'))
        L.append(I(f'v_add_u32 v{VB}, 0x100, v{VB}'))
        L.append(I(f's_add_u32 s{S_CNT}, s{S_W1K}, {MISC}'))
        L.append(I(f'v_cndmask_b32 v{VB}, v{VC}, v{VB}, s[{S_G2}:{S_G2+1}]'))
        L.append(I(f'v_add_u32 v{VA}, s{S_CNT}, v{VA}'))
        L.append(I(f'v_add_u32 v{VB}, s{S_CNT}, v{VB}'))
        L.append(I(f'ds_write_b128 v{VA}, {vr(T3[1],4)}', tok='kva1'))
        L.append(I(f'ds_write_b64 v{VB}, {vr(T1[0],2)}', tok='kva2'))
        L.append(I(f'ds_write_b64 v{VB}, {vr(T2[0],2)} offset:8', tok='kva3'))
        L.append(Ev('qkvdone'))
        return L
    def E_q():
        qa = U(4)[2]; L = []
        for mt in range(2):
            L += phi_quad(T0[mt])
            L += [I(f'v_cvt_pk_bf16_f32 v{T0[mt]}, v{T0[mt]}, v{T0[mt]+1}'), I(f'v_cvt_pk_bf16_f32 v{T0[mt]+1}, v{T0[mt]+2}, v{T0[mt]+3}'),
                  I(f'v_lshl_or_b32 v{T0[mt]+2}, v{qa+2*mt+1}, 16, v{qa+2*mt}'), I(f'v_mov_b32 v{T0[mt]+3}, 0')]
        return L + [Ev('qdone')]
    G = T1[0]
    def sum8(g, s):
        return [I(f'v_add_f32 v{g}, v{g}, v{g+s}'), I(f'v_add_f32 v{g+2*s}, v{g+2*s}, v{g+3*s}'), I(f'v_add_f32 v{g+4*s}, v{g+4*s}, v{g+5*s}'),
                I(f'v_add_f32 v{g+6*s}, v{g+6*s}, v{g+7*s}'), I(f'v_add_f32 v{g}, v{g}, v{g+2*s}'), I(f'v_add_f32 v{g+4*s}, v{g+4*s}, v{g+6*s}'),
                I(f'v_add_f32 v{g}, v{g}, v{g+4*s}')]
    def F_publish(between):
        VA = V_A
        L = [I(f'v_lshrrev_b32 v{VA}, 2, v{V_L16}'), I(f'v_add_u32 v{VA}, s{S_RED}, v{VA}')]
        for p in range(8): L.append(I(f'ds_read_b32 v{G+p}, v{VA} offset:{1024*p}'))
        L += between + sum8(G, 1)
        L += [I(f'v_min_u32 v{G}, -2, v{G}'), I(f'v_lshrrev_b32 v{VA}, 2, v{V_L16}'),
              I(f'buffer_store_dword v{G}, v{VA}, {WS}, s{S_KVST} offen sc1'), Ev('published')]
        L += [I(f'v_mov_b32 v{T1[0]+r}, 0x3f803f80') for r in range(4)] + [Ev('ones2')]
        return L
    G2 = XF(0, 0); VK = XF(1, 0)
    def kv_loads():
        L = []
        for p in range(8):
            if p % 3 == 0:
                t = ftmp(); L.append(I(f's_add_u32 s{t}, s{S_KVLD}, {1536*p}'))
            L.append(I(f'buffer_load_dword v{G2+p}, v{VK}, {WS}, s{t} offen offset:{1536*(p%3)} sc1'))
        return L
    def kv_check():
        return [I(f'v_max3_u32 v{VK+1}, v{G2}, v{G2+1}, v{G2+2}'), I(f'v_max3_u32 v{VK+2}, v{G2+3}, v{G2+4}, v{G2+5}'),
                I(f'v_max3_u32 v{VK+1}, v{VK+1}, v{G2+6}, v{G2+7}'), I(f'v_max_u32 v{VK+1}, v{VK+1}, v{VK+2}'), I(f'v_cmp_eq_u32 vcc, -1, v{VK+1}')]
    def F_kvload(): return [Need('w2ok'), I(f'v_lshrrev_b32 v{VK}, 2, v{V_L16}')] + kv_loads()
    def F_gather():
        g = retry_group(kv_loads, kv_check)
        L = g + sum8(G2, 1)
        L += [I(f's_lshr_b32 s{S_CNT}, s{S_W1K}, 2'), I(f's_add_u32 s{S_CNT}, s{S_CNT}, {KVS}'), I(f'v_add_u32 v{VK+1}, s{S_CNT}, v{VK}'),
              I(f'ds_write_b32 v{VK+1}, v{G2}', tok='kvb0'), Ev('gathered')]
        return L
    def F_o():
        E0, E1, P2, X_ = U(2)
        t = V_T
        L = [I(f'v_add_u32 v{t}, {KVS}, v{V_L16}'), I(f'v_bfe_u32 v{t+1}, v{V_L16}, 8, 2'),
             I(f'ds_read_b128 {vr(E0,4)}, v{t}'),
             I(f'v_bfe_u32 v{t+2}, v{V_L16}, 4, 2'), I(f'v_mad_u32_u24 v{t+1}, v{t+1}, 3, v{t+2}'),
             I(f'v_lshlrev_b32 v{t+1}, 4, v{t+1}'), I(f'v_add_u32 v{t+1}, {KVS}, v{t+1}'),
             I(f'ds_read_b128 {vr(E1,4)}, v{t+1} offset:1024'),
             I(f'v_and_b32 v{t+3}, 0xf0, v{V_L16}'), I(f'v_add_u32 v{t+3}, {KVS}, v{t+3}'),
             I(f'ds_read_b64 {vr(P2,2)}, v{t+3} offset:1280'),
             I(f'v_and_b32 v{t+2}, 0x30, v{V_L16}'), I(f'v_add_u32 v{t+2}, {KVS}, v{t+2}'),
             I(f'ds_read_b64 {vr(P2+2,2)}, v{t+2} offset:1288')]
        for mt in range(2): L.append(I(f'v_mul_f32 v{X_+mt}, {f2u(1.0/K0C):#x}, v{C0[mt]}'))
        for mt in range(2): L.append(I(f'v_mul_f32 v{X_+mt}, v{X_+mt}, v{X_+mt}'))
        L += [I(f's_add_u32 s{S_CNT}, s{S_W1K}, {slot_of(IT_PK) * SLOT}'), I(f'v_add_u32 v{X_+2}, s{S_CNT}, v{V_L16}'), I(f'v_lshrrev_b32 v{X_+3}, 2, v{V_L16}'), Delay(1)]
        for E, c in ((E0, 0), (E1, 2)):
            L.append(I(f'v_cvt_pk_bf16_f32 v{E}, v{E}, v{E+1}'))
            L.append(I(f'v_cvt_pk_bf16_f32 v{E+1}, v{E+2}, v{E+3}'))
            L.append(I(f'v_cvt_pk_bf16_f32 v{E+2}, v{P2+c}, v{P2+c+1}'))
            L.append(I(f'v_mov_b32 v{E+3}, 0'))
        for E in (E0, E1): L.append(I(f'v_cndmask_b32 v{E+2}, 0, v{E+2}, s[{S_G2}:{S_G2+1}]'))
        L.append(Ev('scrfree'))
        D0 = [ACC(3, 0, 0), ACC(3, 0, 1)]; D1 = [ACC(3, 1, 0), ACC(3, 1, 1)]
        L += [I(f'v_mov_b32 v{P2}, s{S_OOB}'), I(f'v_cmp_gt_u32 vcc, 0x80, v{X_+3}')]
        for mt in range(2):
            L.append(mf(D1[mt], E1, T0[mt])); L.append(mf(D0[mt], E0, T0[mt]))
        L += [I(f'v_cndmask_b32 v{X_+3}, v{P2}, v{X_+3}, vcc'), I(f'v_cmp_gt_u32 vcc, 0x100, v{V_L16}')]
        HQ = [E0, E1]
        L += [I(f'ds_read_b64 {vr(HQ[mt],2)}, v{X_+2} offset:{8*mt}') for mt in range(2)]
        for mt in range(2): L.append(I(f'v_add_f32 v{D1[mt]+2}, s{S_EPS}, v{D1[mt]+2}'))
        for mt in range(2): L.append(I(f'v_mul_f32 v{D1[mt]+2}, v{D1[mt]+2}, v{X_+mt}'))
        for mt in range(2): L.append(I(f'v_rcp_f32 v{D1[mt]+2}, v{D1[mt]+2}'))
        for mt in range(2):
            for r in range(4): L.append(I(f'v_mul_f32 v{D0[mt]+r}, v{D0[mt]+r}, v{D1[mt]+2}'))
            for r in (0, 1): L.append(I(f'v_mul_f32 v{D1[mt]+r}, v{D1[mt]+r}, v{D1[mt]+2}'))
            L.append(I(f'v_cvt_pk_bf16_f32 v{HQ[mt]+2}, v{D0[mt]}, v{D0[mt]+1}'))
            L.append(I(f'v_cvt_pk_bf16_f32 v{HQ[mt]+3}, v{D0[mt]+2}, v{D0[mt]+3}'))
            L += hstore(HQ[mt], 4, mt, 4)
            L.append(I(f'v_cvt_pk_bf16_f32 v{D1[mt]}, v{D1[mt]}, v{D1[mt]+1}'))
        L.append(I(f'v_cndmask_b32 v{D1[0]}, v{D1[1]}, v{D1[0]}, vcc'))
        L.append(I(f'buffer_store_dword v{D1[0]}, v{X_+3}, {WS}, s{S_A2L} offen {HST}', tok='ol'))
        L.append(Ev('odone'))
        return L
    def F_p2setup():
        return [I(f'v_lshrrev_b32 v{VSP+3}, 6, v{V_L16}'), I(f'v_mul_u32_u24 v{VSP+1}, 1152, v{VSP+3}'), I(f'v_bfe_u32 v{VSP+2}, v{V_L16}, 4, 2'),
                I(f'v_lshl_add_u32 v{VSP}, v{VSP+2}, 4, v{VSP+1}'), I(f'v_lshl_add_u32 v{VSP+1}, v{VSP+2}, 3, v{VSP+1}'),
                I(f'v_lshlrev_b32 v{VSP+3}, 7, v{VSP+3}'),
                I(f'v_bfe_u32 v{V_AL+2}, v{V_L16}, 4, 4'), I(f'v_and_b32 v{VSP+2}, 0x300, v{V_L16}'), I(f'v_lshl_add_u32 v{VSP+2}, v{V_AL+2}, 2, v{VSP+2}'),
                I(f'v_mov_b32 v{V_AL+2}, 0'), I(f'v_mov_b32 v{V_AL+3}, 0'), Ev('p2setup')]
    p2slots = {slot_of(IT_W2 + k) for k in range(37, 48)}
    free = [slot_of(IT_W2 + k) for k in range(29, 33)] + [19] + [slot_of(IT_W2 + k) for k in range(33, 37)]
    assert not (set(free) & p2slots) and len(set(free)) == 9
    def F_cwrite():
        L = [I(f'v_add_u32 v12, s{S_W1K}, v{V_L16}'), I(f'v_add_u32 v13, {12*SLOT}, v12'), I(f'v_add_u32 v14, {6*SLOT}, v12')]
        return L
    def cmb(k):
        s_ = free[k]
        return (12, s_ * SLOT) if s_ < 6 else ((14, (s_ - 6) * SLOT) if s_ < 12 else (13, (s_ - 12) * SLOT))
    def F_cw2(lts):
        L = []
        for lt in lts:
            r_, o_ = cmb(lt - 2)
            L.append(I(f'ds_write_b128 v{r_}, {vr(ACC2(lt,1),4)} offset:{o_}', tok=f'cw{lt}'))
        return L
    RB_ = [acc1[9], acc1[11], acc1[13]]
    def F_send():
        L = []
        def rd(lt, q):
            r_, o_ = cmb(lt - 2)
            return I(f'ds_read_b128 {vr(q,4)}, v{r_} offset:{o_}')
        def ad(lt, q): return [I(f'v_add_f32 v{ACC2(lt,0)+r}, v{ACC2(lt,0)+r}, v{q+r}') for r in range(4)]
        L += [rd(2, RB_[0]), rd(3, RB_[1]), rd(4, RB_[2]), Delay(2)]
        nxt = 5
        for p in range(1, 4):
            for lt in (2*p, 2*p+1):
                q = RB_[(lt - 2) % 3]
                L += ad(lt, q)
                if nxt <= 8: L.append(rd(nxt, q)); nxt += 1
            a, b = ACC2(2*p, 0), ACC2(2*p+1, 0)
            L += pack2(a, a, b)
            L += [I(f'v_min_u32 v{a+r}, -2, v{a+r}') for r in range(4)]
            L.append(I(f'buffer_store_dwordx4 {vr(a,4)}, v{V_L16}, {WS}, s{S_EXS+p-1} offen sc1'))
        L += ad(8, RB_[0])
        a = ACC2(8, 0); q = RB_[1]
        L += [I(f'v_cvt_pk_bf16_f32 v{q}, v{a}, v{a+1}'), I(f'v_cvt_pk_bf16_f32 v{q+1}, v{a+2}, v{a+3}'),
              I(f'v_min_u32 v{q}, -2, v{q}'), I(f'v_min_u32 v{q+1}, -2, v{q+1}'),
              I(f'buffer_store_dwordx2 {vr(q,2)}, v{V_L8}, {WS}, s{S_E8S} offen sc1'), Ev('sent')]
        return L

    memq = []
    def mq(step, evs, mk, item=None, by=None, ordr=None): memq.append(dict(step=step, ev=evs, mk=mk, item=item, by=by, ordr=ordr))
    def xstep(ks): return SO[('S1', ks) if ks < K1 else ('S1a', ks)]
    n0 = NPRE
    for k in range(PS, len(stg)):
        for h in range(2): mq(0, [f'srd{k-NR}'] if k >= NR else [], (lambda k=k, h=h: sdma(k, h)), ordr='s')
        if n0 < 18:
            mq(0, [], (lambda n=n0: dma(n)), n0, ordr='w'); n0 += 1
        if GPOS <= k < GPOS + 2 and GP < 0:
            for h in range(2): mq(cfg.get('gstep', 3), [], (lambda g=k-GPOS, h=h: gdma(g, h)), ordr='g')
    for n in range(n0, 18): mq(0, [], (lambda n=n: dma(n)), n, ordr='w')
    NXB = cfg.get('nxb', 8)
    for n in range(IT_Q, IT_Q + NXB): mq(0, ['wxok', 'rxinit'], (lambda n=n: dma(n)), n, ordr='s')
    if cfg.get('notouch'): events['tissued'] = -9
    for k in range(NT if not cfg.get('notouch') else 0): memq.insert(k, dict(step=cfg.get('tstep', 11), ev=['tpat', 'wxst0'], mk=(lambda k=k: touch(k)), item=None, by=None, ordr='t'))
    for n in range(IT_R, IT_Q): mq(0, ['rpat', 'tissued'], (lambda n=n: dma(n)), n, ordr='s')
    for n in range(IT_Q + NXB, IT_SCR): mq(SO[tuple(cfg.get('xr', ('S2', 9)))], ['wxok', 'rxinit'], (lambda n=n: dma(n)), n, ordr='s')
    LST = cfg.get('lst', [3])
    for n in range(IT_L1, IT_W2): mq(SO[tuple(cfg.get('l1at', ('S3', 0)))], ['dmah'], (lambda n=n: dma(n)), n, ordr='w')
    TORD = [0, 1, 2, 4, 3]
    def aload(sp, mt, half=None):
        t = stmp(); off = ((sp & 3) * 5 + TORD[sp >> 2]) * 1024
        if half is not None:
            off += half * 512
            return [I(f's_add_u32 s{t}, s{S_A + mt}, {off & ~4095}'),
                    I(f'buffer_load_dwordx2 {vr(AF(sp, mt) + 2 * half, 2)}, v{V_L8}, {WS}, s{t} offen offset:{off & 4095} sc1')]
        return [I(f's_add_u32 s{t}, s{S_A + mt}, {off & ~4095}'),
                I(f'buffer_load_dwordx4 {vr(AF(sp, mt), 4)}, v{V_L16}, {WS}, s{t} offen offset:{off & 4095} sc1')]
    def xfree_step(ks):
        return (SO[('S4c', ks)] if ks < K4 else SO[('S4e', ks)]) + 1
    w2n = IT_W2
    VX = 8
    for sp in range(21):
        while w2n <= IT_W2 + ((sp * 7 + 6) >> 2):
            mq(0, ['w2ok', 'setup2'], (lambda n=w2n: dma(n)), w2n); w2n += 1
        if sp < 20:
            ev = [['h4ok'], ['h4ok'], ['h5ok'], ['h6ok'], ['h5ok']][sp >> 2]
            if sp < 2: ev = ev + ['gathered']
            if sp >= 17: ev = ev + ['e3done']
            for mt in range(2):
                for half in [None]:
                    mq(xfree_step(sp) if sp < 16 else SO[('P1', sp - cfg.get('t3lead', 3))], ev + ['setup2'], (lambda sp=sp, mt=mt, half=half: aload(sp, mt, half)), by=SO[('P1', sp if sp < 16 else sp - 1)])
        if sp == 15:
            for k in range(2):
                mq(0, ['h6ok', 'p2setup'], (lambda k=k: [I(f'buffer_load_dword v{V_AL+k}, v{VSP+2}, {WS}, s{S_AL} offen offset:{128*k} sc1')]), by=SO[('P1', 20)])
    for n in list(range(w2n, w2n + 5)) + [NITEM - 1] + list(range(w2n + 5, NITEM - 1)): mq(0, [], (lambda n=n: dma(n)), n)
    R = AF(0, 0); R8 = R + 12
    rloads = lambda: ([I(f'buffer_load_dwordx4 {vr(R+4*p,4)}, v{V_L16}, {WS}, s{S_EX} offen offset:{1024*p} sc1') for p in range(3)]
                      + [I(f'buffer_load_dwordx2 {vr(R8+2*p,2)}, v{V_L8}, {WS}, s{S_E8R} offen offset:{512*p} sc1') for p in range(3)])
    for mk in (lambda: [I(f'buffer_load_dwordx4 {vr(8,4)}, v{VSP}, {XS}, s{S_O} offen')],
               lambda: [I(f'buffer_load_dwordx2 {vr(0,2)}, v{VSP+1}, {XS}, s{S_O8} offen')],
               lambda: [I(f'buffer_load_dword v15, v{VSP+3}, {WS}, s{S_STK} offen offset:8 sc1')]):
        mq(0, ['e3done', 'p2setup', 'pook'], mk, by=SO[('P2a', cfg.get('pb', 2))])

    KP = tuple(cfg.get('kp', ('S4a', K3 + 5))); KO = tuple(cfg.get('ko', ('S4d', K4 + 3)))
    PB = ('P2a', cfg.get('pb', 2))
    WXF = ('S1', cfg.get('wxf', 11)); RS = ('S3', 5); F3F = KP
    barspec = cfg.get('bars', None) or (
        [('S1', 1), WXF] + [('S1', k) for k in range(0, K1, cfg.get('s1b', 1))] + [('S1a', K1), ('S1b', K1), ('S1d', K1 + 2), ('S2', 0), ('S2', 9), ('S3', 0), ('S3', 5), ('S3', 10), ('S3', 14), ('S3', 17),
         ('S4', 0), ('S4', 4), ('S4a', K3), KP, ('S4b', K3), ('S4c', 0), ('S4c', 4), KO, ('S4e', K4), ('S4e', K4 + 5)]
        + [('P1', k) for k in cfg.get('p1b', [0, 3, 6, 9, 12, 15, 17, 19])] + [('P2a', 0), PB, ('P2a', 14), ('P2b', 6)])
    bars = sorted(set(SO[tuple(b)] for b in barspec))
    if 'getbars' in cfg: cfg['getbars'] += [list(steps[b]) for b in bars]
    need = {}
    for bi, b in enumerate(bars):
        lo = first_frag[b] + (D if bi else 0)
        hi = first_frag[bars[bi + 1]] + D if bi + 1 < len(bars) else NF
        need[b] = sorted({frags[i]['item'] for i in range(lo, min(hi, NF))} - {None})
    last_use = {}
    for f in frags:
        if f['item'] is not None: last_use[f['item']] = f['step']
    need[SO[RS]] = sorted(set(need[SO[RS]]) | {IT_R, IT_R + 1, IT_R + 2})
    rel_ev = {IT_R: 'rdone', IT_R + 1: 'rdone', IT_R + 2: 'rdone', IT_SCR: 'scrfree', IT_PK: 'odone', 'stage': 'xdone', 'gst': 'wxst1'}
    released = set()
    issued = {n: -1 for n in range(NPRE)}
    events['srd0'] = events['srd1'] = -9
    def spread(main, items, start, step):
        o = {}
        for k, x in enumerate(items): o.setdefault(min(start + k * step, len(main) - 1), []).extend(x if isinstance(x, list) else [x])
        L = []
        for k, x in enumerate(main):
            if k in o: L += o[k]
            L.append(x)
        return L
    avail = {}
    def at(step, f): avail.setdefault(SO[step], []).append(f)
    xrd = {}
    for L_ in range(1, 9):
        xrd.setdefault(min(xstep(2 * L_) - 1, SO[('S1', K1 - 1)]), []).append(L_)
    DL = cfg.get('dl', 36); S_RSRC2 = S_RDST
    at(('S1', cfg.get('rowat', 0)), lambda: F_nonce((F_tpat() if not cfg.get('notouch') else [Delay(8)]) + [Delay(cfg.get('ndelay', 32))]))
    evfront = [('gl0', None, lambda: F_wx(0)), ('gl1', 'wxst0', lambda: F_wx(1))]
    at(WXF, lambda: [Need('setup0')] + setflag(S_F2S, 0, [], V_T + 1, V_T + 2))
    pw = poll([], 3, 'wxok', False, True, [], V_T + 1, V_T + 2, S_F2P)
    at(('S1', cfg.get('stat', 12)), lambda: F_stats([Delay(cfg.get('dl', 22))] + pw[:-4] + [Delay(cfg.get('dl2', 8))]) + [Delay(cfg.get('dl3', 4))] + pw[-4:] + F_stats2())
    at(('S1b', K1), lambda: [Need('setup1'), Need('wxok')] + F_csx() + F_rpat() + [Need('tissued')] + F_c1())
    at(('S1b', K1 + 2), lambda: E_first(0))
    po = F_poison(T2[0])
    at(('S1c', K1), lambda: E_second(0, 1, 0) + [Ev('u01free')])
    rl = F_relayout([ACC(2, 1, 0), ACC(2, 1, 1)], V_TH, V_T)
    at(('S2', 0), lambda: E_first(2) + rl[0] + spread(E_second(2, 3, 1) + [Ev('u23free')], rl[1], 6, 14))
    assert not cfg.get('map', 0)
    pa = F_poison(U(3)[0]); NPA = cfg.get('npa', 3)
    kvpo = [I(f'v_lshrrev_b32 v{U(3)[1]+1}, 2, v{V_L16}'),
            I(f'buffer_store_dword v{U(3)[0]}, v{U(3)[1]+1}, {WS}, s{S_KVST} offen sc1', tok='kvpo')]
    at(('S3', 2), lambda: [Need('setup1b')] + pa[0] + kvpo + F_trh() + spread(E_quarter(4) + [Ev('u4free')], pa[1][6 - NPA:6], 4, 60 // NPA)
       + [I(f'v_mov_b32 v{ONES+r}, 0x3f803f80') for r in range(4)] + [Ev('ones1')])
    at(('S4', 0), lambda: setflag(S_FL, 0, ['h0_0_0', 'h0_1_0', 'h1_0_0', 'h1_1_0'], q3, q3 + 1) + setflag(S_F2S, 0x8000, [], q3, q3 + 1)[5:] + E_qkv())
    w2p = [I(f's_and_b32 s{S_RSRC2}, s2, 3'), I(f's_lshl_b32 s{S_RSRC2}, s{S_RSRC2}, 13'), I(f's_add_u32 s{S_RSRC2}, s{S_RSRC2}, s{S_W1K}'),
           I(f's_add_u32 s{S_RSRC2}, s{S_RSRC2}, {F2_OFF + 0x8000}')]
    pq = pollh(0, 'h4ok', poll(w2p, 3, 'w2ok', False, True, ['X'], q3 + 2, q3 + 3, S_RSRC2), q3, q3 + 1); kx = pq.index('X')
    at(KP, lambda: F_publish([Delay(3)]) + E_q()[:cfg.get('pqat', 20)] + pq[:kx] + E_q()[cfg.get('pqat', 20):])
    at(('S4b', K3 + 2), lambda: (po[0][:4] if NPA < 6 else []) + spread(E_first(2), po[1][:6 - NPA], 2, 22) + pq[kx+1:] + [Ev('u4free2'), Ev('e2b')])
    u2d = ACC(2, 1, 0)
    at(('S4c', 0), lambda: w2touch(u2d, u2d + 1) + E_second(2, 3, 2)[:36])
    at(('S4c', cfg.get('kvl', 3)), lambda: F_kvload() + E_second(2, 3, 2)[36:] + [Ev('e2done')] + F_gather())
    at(KO, lambda: F_o())
    at(('S4e', K4 + 2), lambda: E_first(4) + [Ev('e4a')])
    e3 = E_second(4, 1, 3)
    at(('P1', 0), lambda: [I(f'v_lshrrev_b32 v{V_L8}, 1, v{V_L16}'), Ev('l8')] + e3 + [Ev('e3done')] + F_p2setup())
    def t3check(sp):
        a0, a1 = AF(sp, 0), AF(sp, 1)
        def ld():
            L = []
            for mt in range(2):
                off = ((sp & 3) * 5 + 3) * 1024
                L += [I(f's_add_u32 s{S_PT}, s{S_A + mt}, {off & ~4095}'),
                      I(f'buffer_load_dwordx4 {vr(AF(sp, mt), 4)}, v{V_L16}, {WS}, s{S_PT} offen offset:{off & 4095} sc1')]
            return L
        ck = lambda: [I(f'v_max3_u32 v3, v{a0}, v{a0+1}, v{a0+2}'), I(f'v_max3_u32 v6, v{a0+3}, v{a1}, v{a1+1}'),
                      I(f'v_max3_u32 v3, v3, v{a1+2}, v{a1+3}'), I('v_max_u32 v3, v3, v6'), I('v_cmp_eq_u32 vcc, -1, v3')]
        g = retry_group(ld, ck)
        return [Delay(cfg.get('t3d', 7))] + g + [Ev(f't3ok{sp}')]
    for sp in range(16, 20): at(('P1', sp - 1), lambda sp=sp: t3check(sp))
    at(('P1', cfg.get('pp', 10)), lambda: poll([I(f's_and_b32 s{S_PT}, s2, 0xfc'), I(f's_lshl_b32 s{S_PT}, s{S_PT}, 7'), I(f's_add_u32 s{S_PT}, s{S_PT}, {F4_OFF}')],
                                               2, 'pook', False, False, [Delay(28)], 3, 6) + [Need('e3done')] + htouch(3, 1, ['h3_0_0', 'h3_1_0'], 3, 7) + F_cwrite() + [Ev('cwa')])
    at(('P1', 19), lambda: [Delay(5)] + [y for lt in range(2, 7) for y in F_cw2([lt]) + [Delay(3)]] + [Ev('cw6')])
    at(('P2a', 0), lambda: F_cw2(range(7, 9)) + [I(f'v_xor_b32 v{r_}, 0x1000, v{r_}') for r_ in (12, 13, 14)] + [Ev('cwb')])
    if not cfg.get('fastsend', 1): at(PB, lambda: F_send())
    TT = acc1[0]
    at(('P2b', 2), lambda: [Need('sent'), I(f'v_xor_b32 v{TT}, 0x1000, v{cmb(8)[0]}'), I(f'ds_write_b128 v{TT}, {vr(ACC2(0,1),4)} offset:{cmb(8)[1]}', tok='c0w'), Ev('c0w')])
    at(('P2b', 6), lambda: [I(f'ds_read_b128 {vr(ACC2(0,1),4)}, v{cmb(8)[0]} offset:{cmb(8)[1]}'), I('v_mul_f32 v15, v15, v15'), Delay(3)]
       + [I(f'v_add_f32 v{ACC2(0,0)+r}, v{ACC2(0,0)+r}, v{ACC2(0,1)+r}') for r in range(4)] + [Ev('c0done')])
    TW = acc1[2]
    TB0 = (0 if free[7] >= 4 else 4) * SLOT
    tadr = [I(f's_lshl_b32 s{S_CNT}, s{S_W1K}, 2'), I(f's_add_u32 s{S_CNT}, s{S_CNT}, {TB0}'),
            I(f'v_bfe_u32 v{TW}, v{V_L16}, 4, 4'), I(f'v_mul_u32_u24 v{TW}, 208, v{TW}'), I(f'v_bfe_u32 v{TW+3}, v{V_L16}, 8, 2'),
            I(f'v_lshl_add_u32 v{TW}, v{TW+3}, 4, v{TW}'), I(f'v_add_u32 v{TW}, s{S_CNT}, v{TW}'),
            I(f'v_lshrrev_b32 v{TW+2}, 6, v{V_L16}'), I(f'v_mul_u32_u24 v{TW+2}, 208, v{TW+2}'), I(f'v_add_u32 v{TW+2}, s{S_CNT}, v{TW+2}'),
            I(f'v_bfe_u32 v{TW+3}, v{V_L16}, 4, 2'), I(f'v_lshl_add_u32 v{TW+1}, v{TW+3}, 5, v{TW+2}'), I(f'v_lshl_add_u32 v{TW+2}, v{TW+3}, 4, v{TW+2}')]
    at(('P2b', cfg.get('rcv', 9)), lambda: rloads() + tadr + [Ev('rcv')])
    p5 = pollh(1, 'h5ok', [], 3, 6); p6 = pollh(2, 'h6ok', [], 3, 6)
    P5 = cfg.get('p5', 3); P6 = cfg.get('p6', 7); F6 = cfg.get('f6', 1)
    front2 = {SO[('S4e', K4)]: lambda: setflag(S_FL, HS, ['h2_0_0', 'h2_1_0', 'p3_0', 'p3_1'], V_A, V_DMA) + setflag(S_F3S, F4_OFF - F3_OFF, [], V_A, V_DMA)[5:] + [Ev('f5')] + htouch(2, 1, [], V_A, V_DMA),
              SO[('P1', F6)]: lambda: setflag(S_FL, 2*HS, ['h4_0_0', 'h4_1_0', 'ol'], 3, 6) + htouch(4, 1, [], 3, V_A),
              SO[('P1', P5)]: lambda: p5[:-4], SO[('P1', P5 + 2)]: lambda: p5[-4:], SO[('P1', P6)]: lambda: p6[:-4], SO[('P1', P6 + 2)]: lambda: p6[-4:]}
    assert F6 < P5 and P5 + 2 < P6 and P6 + 2 <= cfg.get('pp', 10)
    front = {SO[('S1d', K1)]: lambda: F_csx2() + [Ev('csx')], SO[('S2', 0)]: lambda: [Need('l0issued')] + F_dmah(V_DMA, V_TH + 1)}
    front.update(front2)
    inline = {}
    front[SO[('S1a', K1 + 1)]] = lambda: [Need('setup1'), Delay(2)] + cswrite(CSA, 0, ONES) + [Ev('csw0')]
    front[SO[('S4a', CA_END + 1)]] = lambda: cswrite(CSA, 2, ONES) + [Ev('csw2')]
    front[SO[('S4d', CB_END + 1)]] = lambda: cswrite(T1[1], 3, T1[0]) + [Ev('csw3')]
    must = {('S1b', K1): ['stats', 'csw0'], ('S4b', K3): ['csw2'], ('S4e', K4): ['csw3'], ('S2', 0): ['csx'], WXF: ['wxst1'], ('S3', 0): ['u01free'], ('S3', 17): ['trh'],
            ('S4', 0): ['rdone', 'ones1'], KP: ['qkvdone'],
            ('S4c', 0): ['u4free2', 'published', 'ones2', 'e2b'], KO: ['gathered'], ('P1', 0): ['odone', 'e2done', 'f5'] + (['e4a'] if cfg.get('e4a', 0) else []), ('P2a', 0): ['cw6'], PB: ['cwb'], ('P2b', 6): ['c0w']}
    for sp in range(16, 20): must[('P1', sp)] = [f't3ok{sp}', 'cwa']
    must = {SO[k]: v for k, v in must.items()}
    b1 = sq_txt[-1].split('\n'); cut = [k for k, l in enumerate(b1) if f's_cselect_b32 s{S_F3S},' in l][0] + 1
    savail = {SO[('S1', 0)]: lambda: [Need('gissued')] + sgroups('\n'.join(b1[:cut] + sqa)) + [Ev('setup0')] + sgroups(sq_txt[0]) + [Ev('setup1')],
              SO[('S2', 0)]: lambda: sgroups('\n'.join(sq_txt[1:-1])) + [Ev('rsetup')] + sgroups('\n'.join(b1[cut:])) + [Ev('setup1b')],
              SO[('S4', 0)]: lambda: [Need('xissued'), Need('rdone')] + F_setup2()}
    bar_extra = {SO[WXF]: ['wx0', 'wx1', 'wc0', 'wc1'], SO[('S1b', K1)]: ['cs0'], SO[('S3', 0)]: ['cs1'],
                 SO[KP]: [f'kva{i}' for i in range(4)], SO[('S4', 0)]: ['w2a0', 'w2a1', 'w2a2', 'kvpo'],
                 SO[('S4b', K3)]: ['cs2'], SO[KO]: ['kvb0'], SO[('S4e', K4)]: ['cs3'] + [f'po{p}' for p in range(4)],
                 SO[PB]: [f'cw{lt}' for lt in range(2, 9)], SO[('P2b', 6)]: ['c0w']}
    for k in bar_extra: assert k in bars, steps[k]

    fill = []; sfill = []; xfill = []
    st.gap = 0; st.delay_until = 0; st.cur = -99; st.ta = 0.0; st.adv = None; st.armed = None; st.force = False
    MEMSP = cfg.get('memsp', {})
    def memsp(s):
        if s < cfg.get('fasts', 0): return cfg.get('fastsp', 2.0)
        return MEMSP.get(steps[s][0][:2], {'S1': 3.8, 'P1': 4.0, 'S4': 4.0}.get(steps[s][0][:2], 4.5))
    def isI(x, kinds): return isinstance(x, I) and x.kind in kinds
    def housekeeping(force=False):
        while fill:
            x = fill[0]
            if isinstance(x, Ev): (pending if x.bar else events)[x.name] = st.gap; fill.pop(0)
            elif isinstance(x, Need):
                if x.name in events and not (x.name.endswith('issued') and events[x.name] > st.gap - 4): fill.pop(0)
                else:
                    assert not force, ('blocked on', x.name)
                    return False
            elif isinstance(x, Delay):
                if x.n >= 0:
                    x.until = st.gap + x.n; x.n = -1
                if force or st.gap >= x.until: fill.pop(0)
                else: return False
            else: return True
        return False
    def slots(seq):
        t = 0; lastv = -10; first = True
        for x in seq:
            if isinstance(x, Wait): t += 1; continue
            if first: first = False; t = 1; continue
            if x.kind in ('valu', 'trans'):
                t = max(t, 2); t += x.cost; lastv = t - 1
            elif x.kind in ('ds_r', 'ds_w', 'vm_ld', 'vm_st', 'vm_dma'):
                t = max(t, 2, lastv + 3); t += 1
            else: t += x.states()
        return t
    st.tnext = 0
    def mem_ready(e, s):
        if e['ordr'] == 't' and st.gap < st.tnext: return False
        if e['step'] > s or any(v not in events or events[v] > st.gap - (4 if v.startswith('srd') else 0) for v in e['ev']): return False
        n = e['item']
        if n is not None and IT_L1 <= n < IT_W2:
            if PAIR and L1hk(n)[0] == 0:
                if st.gap < issued.get(n - 1, -99) + cfg.get('l1sp', 16) or (prev_of(n + 1) not in released and n + 2 < IT_W2): return False
            elif not PAIR and st.gap < issued.get(n - 1, -99) + cfg.get('l1sp', 16): return False
        if n is not None and prev_of(n) is not None and prev_of(n) not in released: return False
        return True
    leads = {}; sissue = {f's{k}_1': -30 for k in range(PS)}; st.nx = 2
    if GP >= 0:
        sissue.update({'sg0_1': -20, 'sg1_1': -20}); events['gissued'] = -9
    def flush_armed():
        g = st.armed or []; st.armed = None
        return g
    def pop_mem(s, win=None):
        if st.armed: return flush_armed()
        if sfill and sfill[0] is st.adv:
            if win is None: return None
            return sfill.pop(0)
        blocked = set()
        for k in range(min(win or cfg.get('ooo', 24), len(memq))):
            e = memq[k]
            if e['ordr'] not in blocked and mem_ready(e, s):
                memq.pop(k)
                if e['item'] is not None: issued[e['item']] = st.gap
                if e['by'] is not None: leads.setdefault(e['by'], []).append(st.gap)
                g = e['mk']()
                for x in g:
                    if x.tok and x.tok[0] == 's': sissue[x.tok] = st.gap
                if all(n in issued for n in range(IT_R, IT_Q)): events.setdefault('rissued', st.gap)
                if all(n in issued for n in range(IT_Q, IT_SCR)): events.setdefault('xissued', st.gap)
                if all(n in issued for n in range(18)): events.setdefault('l0issued', st.gap)
                if f's{len(stg)-1}_1' in sissue: events.setdefault('rxinit', st.gap)
                if 'sg1_1' in sissue: events.setdefault('gissued', st.gap)
                return g
            if e['ordr']: blocked.add(e['ordr'])
        return None
    def vcost(x, s):
        c = memsp(s)
        if x.op.endswith('x4'): return c
        if x.op.endswith('x2'): return c
        return c / 2
    VM = ('vm_ld', 'vm_st')
    def gap(m, shadow, rd, s, quiet=False):
        st.gap += 1
        budget = 2
        rds = [x for x in rd if x.kind == 'salu']; rdv = [x for x in rd if x.kind == 'valu']; rdm = [x for x in rd if x.kind == 'ds_r']
        head = shadow + rds; val = list(rdv); budget -= len(rdv)
        sal = []; mem = []; fre = []; post = []; later = None; first_mem = False
        if not quiet:
            hk = housekeeping()
            fvm = hk and (isI(fill[0], VM) or (isI(fill[0], ('salu',)) and len(fill) > 1 and isI(fill[1], VM)))
            if fvm and st.armed: fvm = False
            if fvm:
                x = fill[0] if isI(fill[0], VM) else fill[1]
                if st.gap >= st.ta - cfg.get('fslack', 6) or not x.op.endswith('x4'):
                    if fill[0] is not x: fre.append(fill.pop(0))
                    mem.append(fill.pop(0))
            while st.nx < 18 and not xfill:
                k = spos[('x', st.nx)]
                if f's{k}_1' in sissue and st.gap - sissue[f's{k}_1'] >= cfg.get('lag', 45) and (st.nx < 16 or 'nonce' in events):
                    if cfg.get('verbose'): print('   x pair', st.nx, 'early read at gap', st.gap)
                    xfill.extend([xread(st.nx, 0), xread(st.nx, 1), Ev(f'srd{k}')]); st.nx += 1
                else: break
            for i_ in range(2):
                if f'sg{i_}_1' in sissue and st.gap - sissue[f'sg{i_}_1'] >= cfg.get('glag', 50): events.setdefault(f'gl{i_}', st.gap)
            if evfront and evfront[0][0] in events and (evfront[0][1] is None or evfront[0][1] in events) and not mem:
                k = 0
                while k < len(fill) and (isI(fill[k], ('vm_st', 'vm_ld')) or isinstance(fill[k], list) or (isinstance(fill[k], Delay) and k + 1 < len(fill) and isinstance(fill[k+1], list))): k += 1
                fill[k:k] = evfront.pop(0)[2]()
            if not mem and xfill and len(rdm) < 2 and not st.armed:
                x = xfill.pop(0); mem.append(x)
                while xfill and isinstance(xfill[0], Ev): events[xfill.pop(0).name] = st.gap
            if st.armed and not mem and (st.force or (len(rdm) < 2 and not (cfg.get('rr', 1) and rdm))):
                mem.append(st.armed[0]); first_mem = True
                if st.armed[1:]: later = st.armed[1:]
                st.armed = None
            elif not st.armed and not mem and st.gap + 1 >= st.ta and not (hk and steps[s][0] != 'S1' and any(isI(x, VM) for x in fill[:3])):
                g = pop_mem(s)
                if g:
                    k = [q for q, x in enumerate(g) if x.kind.startswith('vm')][0]
                    fre += [x for x in g[:k] if x.kind != 'nop']; st.armed = g[k:]
            big = any(x.kind.startswith('vm') and (x.op.endswith('x4') or x.op.endswith('x2')) for x in mem)
            if not (big and cfg.get('vmq', 1)) and not (fvm and mem) and not (len(rdm) + len(mem) >= 2 and steps[s][0] == 'S1'):
                if not head and housekeeping() and isI(fill[0], ('salu',)): head.append(fill.pop(0))
                while housekeeping() and isI(fill[0], ('valu', 'trans')) and fill[0].cost <= budget:
                    x = fill.pop(0); budget -= x.cost; val.append(x)
                if budget == 1 and housekeeping() and isI(fill[0], ('trans',)):
                    for k in range(1, min(8, len(fill))):
                        x = fill[k]
                        if not isI(x, ('valu', 'trans')): break
                        if x.kind == 'valu' and not any((x.rd & y.wr) or (x.wr & (y.rd | y.wr)) for y in fill[:k]):
                            val.append(fill.pop(k)); budget -= 1; break
                if not mem:
                    while housekeeping() and isI(fill[0], ('salu',)) and len(sal) < 2 and not (len(fill) > 1 and isI(fill[1], VM)):
                        sal.append(fill.pop(0))
                    while housekeeping() and isI(fill[0], ('ds_r', 'ds_w')) and len(mem) < 2 - len(rdm): mem.append(fill.pop(0))
            for x in mem:
                if x.kind.startswith('vm'): st.ta = max(st.ta, st.gap - cfg.get('credit', 4)) + vcost(x, s)
            room = (0 if head else 1) + 2 - len(sal) - len(fre) - len(post)
            if big or len(rdm) + len(mem) >= 2: room = min(room, (0 if head or fre else 1) + (2 - len(sal) - len(fre) if val else 0))
            pre = []
            while sfill and room > 0:
                x = sfill[0]
                if isinstance(x, Ev): events[x.name] = st.gap; sfill.pop(0); continue
                if isinstance(x, Need):
                    if x.name in events and events[x.name] < st.gap - 4 and not st.armed and not first_mem: sfill.pop(0); continue
                    break
                n = len(x) if isinstance(x, list) else 1
                if n > room and (room < 2 or pre): break
                sfill.pop(0); room -= n
                pre.append(x)
            if not head and pre and not isinstance(pre[0], list): head.append(pre.pop(0))
            if not head and fre: head.append(fre.pop(0))
            for x in pre: sal += x if isinstance(x, list) else [x]
        seq = [m] + head + (val + sal + fre + rdm + mem) + post
        if later: sfill.insert(0, later); st.adv = later
        if not quiet and not mem and housekeeping() and isinstance(fill[0], list): seq += fill.pop(0)
        if len(val) > len(rdv): st.cur = st.gap
        if not quiet:
            mg = MINGAP if st.gap - st.cur < 6 else cfg.get('padq', 5)
            if seq[-1] in mem and seq[-1].kind.startswith('vm'): mg -= 2
            if mg > slots(seq):
                lw = cfg.get('latew', 1) and shadow and isinstance(seq[1], Wait)
                if lw: w_ = seq.pop(1)
                n_ = mg - slots(seq) - (1 if lw else 0)
                if n_ > 0: seq.append(I(f's_nop {n_ - 1}'))
                if lw: seq.append(w_)
        if not quiet:
            if housekeeping() and isI(fill[0], ('mfma',)): seq += gap(fill.pop(0), [], [], s)
        return seq
    def drain_until(evs):
        L = []
        while any(e not in events for e in evs):
            assert fill, evs
            if housekeeping(force=True):
                x = fill.pop(0)
                if isinstance(x, list): L += x
                else: L.append(x)
        if L and cfg.get('verbose'): print('  drained', len(L), 'instrs for', evs)
        return L
    M = []
    def barrier_pre(b):
        L = []
        for n in need[b]:
            while n not in issued:
                g = pop_mem(b - 1, 40)
                assert g, ('item not issuable', n, steps[b], [(e['item'], e['ev'], e['step']) for e in memq[:6]])
                if cfg.get('verbose'): print('  forced issue before', steps[b], 'for item', n)
                L += g
        if cfg.get('verbose'):
            print('bar', steps[b], 'gap', st.gap, 'need', need[b], 'lead', [st.gap - issued[n] for n in need[b]])
        L.append(Wait([f'it{n}' for n in need[b]] + bar_extra.get(b, [])))
        return L
    def barrier_post(b):
        events.update(pending); pending.clear()
        if b == SO[RS]: events['rland'] = st.gap
        for n in list(last_use) + list(rel_ev):
            if n in rel_ev:
                if rel_ev[n] in events: released.add(n)
            elif last_use[n] < b: released.add(n)
    tsph = cfg.get('tsph', ['S2', 'S4', 'S4c', 'P1'])
    for i in range(NF):
        s = frags[i]['step']
        if i == 0:
            M += barrier_pre(0) + [I('s_barrier')] + ts('s1start')
            for k in range(D):
                r0, r1 = reads(k); M += r0 + r1
        if first_frag[s] == i:
            if steps[s] == ('S2', 0): assert 'rissued' in events
            if steps[s] == ('S1c', K1): tr1_last = st.gap
            if steps[s] == PB and cfg.get('fastsend', 1):
                fill.extend(F_send()); M += drain_until(['sent'])
            if s in front:
                k = 0
                while k < len(fill) and (isI(fill[k], ('vm_st', 'vm_ld')) or isinstance(fill[k], (Delay, list))): k += 1
                fill[k:k] = front[s]()
            if s in savail: sfill.extend(savail[s]())
            for f in avail.get(s, []): fill.extend(f())
            for L_ in xrd.get(s, []):
                for p in (2 * L_, 2 * L_ + 1):
                    if p < st.nx: continue
                    assert p < 16 or 'nonce' in events
                    st.nx = p + 1
                    k = spos[('x', p)]
                    if st.armed and st.armed[0].tok in (f's{k}_0', f's{k}_1'): M += flush_armed()
                    while f's{k}_1' not in sissue:
                        while xfill:
                            x = xfill.pop(0)
                            if isinstance(x, Ev): events[x.name] = st.gap - 4
                            else: M.append(x)
                        g = pop_mem(s, 40)
                        assert g, ('staging not issuable', k, steps[s])
                        if cfg.get('verbose'): print('  forced staging issue', k, steps[s])
                        M += g
                    if cfg.get('verbose'): print('   x pair', p, 'read at', steps[s], 'lead', st.gap - sissue.get(f's{k}_1', -1))
                    xfill.extend([xread(p, 0), xread(p, 1), Ev(f'srd{k}')])
        if steps[s] == ('S1d', 17) and first_frag[s] == i - 0 and False: pass
        ms = mfmas(i)
        r0, r1 = reads(i + D) if i + D < NF else ([], [])
        ns = frags[i + 1]['step'] if i + 1 < NF else None
        nxt_first = ns is not None and first_frag[ns] == i + 1
        shadow = [Wait(rtoks(i + 1))] if i + 1 < NF else []
        if len(ms) == 2:
            if cfg.get('bb', 1) and nxt_first and ns in bars:
                st.force = True; M += gap(ms[0], [], r0 + r1, s); lastrd = []; st.force = False
            elif cfg.get('rr', 1) and st.armed and r1:
                st.force = True; M += gap(ms[0], [], r0 + r1, s); lastrd = []; st.force = False
            else:
                M += gap(ms[0], [], r0, s); lastrd = r1
        else: lastrd = r0 + r1
        if nxt_first and st.armed:
            x = st.armed[0]
            if (ns in bars and x.tok in [f'it{n}' for n in need[ns]]) or (x.kind == 'vm_ld' and ns in leads) or steps[ns] in (('S2', 0), ('S1a', K1)): M += flush_armed()
        if nxt_first:
            if steps[ns][0] in ('S1', 'S1a'):
                nd = set().union(*[{('v', XF(steps[ns][1], mt) + r) for r in range(4)} for mt in range(2)])
                while xfill and (steps[ns][0] == 'S1a' or any(isinstance(y, I) and (y.wr & nd) for y in xfill)):
                    x = xfill.pop(0)
                    if isinstance(x, Ev): events[x.name] = st.gap
                    else: M.append(x)
            if 'xdone' not in events and ns in bars and f'srd{len(stg)-1}' in events:
                M.append(Wait([f'sr{len(stg)-1}_1'])); events['xdone'] = st.gap
            if ns in must: M += drain_until(must[ns])
            if ns in inline: assert 'setup1' in events
            if ns in inline: M += [x for x in inline[ns]() if isinstance(x, I)]
            while any(e['by'] is not None and e['by'] <= ns for e in memq):
                g = pop_mem(s, 60)
                assert g, ('load not issuable', steps[ns], [(e['item'], e['ev'], e['step']) for e in memq[:8]])
                if cfg.get('verbose'): print('  forced load before', steps[ns])
                M += g
            if cfg.get('verbose') and ns in leads: print('   step', steps[ns], 'gap', st.gap, 'reg-load lead', [st.gap - x for x in leads[ns]])
        if nxt_first and ns in bars:
            M += barrier_pre(ns)
            M += gap(ms[-1], [I('s_barrier')] + shadow, lastrd, s, quiet=True)
            barrier_post(ns)
        else:
            M += gap(ms[-1], shadow, lastrd, s)
        if nxt_first and steps[ns][0] != steps[s][0] and steps[ns][0] in tsph: M += ts(steps[ns][0])
        if nxt_first and list(steps[ns]) == cfg.get('holdat'):
            M += IL(f"""
            s_mov_b32 s99, 20000
            L_hold:
            s_memrealtime s[88:89]
            s_waitcnt lgkmcnt(0)
            s_lshl_b32 s88, s88, 3
            s_sub_u32 s88, s88, s{S_NON}
            s_and_b32 s88, s88, 0x7fffffff
            s_sub_u32 s99, s99, 1
            s_cmp_eq_u32 s99, 0
            s_cbranch_scc1 L_holdx
            s_cmp_lt_u32 s88, {cfg['hold'] * 800}
            s_cbranch_scc1 L_hold
            L_holdx:
            """)
        if nxt_first and list(steps[ns]) in cfg.get('tsat', []): M += ts(f'@{steps[ns][0]}.{steps[ns][1]}')
    M += flush_armed()
    assert not memq, [(e['item'], e['ev']) for e in memq]
    M += drain_until(['rcv'])
    assert not fill and not sfill, (fill, sfill)
    M += ts('mainend')
    drop = cfg.get('drop', [])
    if drop:
        gone = set(); M2 = []
        for k, x in enumerate(M):
            if isinstance(x, I) and not x.raw and k > 3 and (x.kind in drop or ('xrd' in drop and x.tok and x.tok.startswith('sr')) or ('nop' in drop and x.kind == 'nop' and False)):
                if x.tok: gone.add(x.tok)
                continue
            M2.append(x)
        for x in M2:
            if isinstance(x, Wait): x.toks = [t for t in x.toks if t not in gone]
            else: x.waits = [t for t in x.waits if t not in gone]
        if 'vmwait' in drop:
            for x in M2:
                if isinstance(x, Wait): x.toks = [t for t in x.toks if not t.startswith('it')]
                else: x.waits = [t for t in x.waits if t.startswith('sr')]
        M = M2
    P.ext(M)
    TT = AF(3, 0)
    r7, o7 = cmb(7)
    P(f'v_xor_b32 v{TT+5}, 0x1000, v{r7}')
    P('s_mov_b32 s24, 0xffff0000')
    P(f'ds_write_b128 v{TT+5}, {vr(ACC2(1,1),4)} offset:{o7}', tok='c1w')
    def unpk(src):
        P(f'v_lshlrev_b32 v{TT}, 16, v{src}'); P(f'v_and_b32 v{TT+1}, s24, v{src}')
        P(f'v_lshlrev_b32 v{TT+2}, 16, v{src+1}'); P(f'v_and_b32 v{TT+3}, s24, v{src+1}')
    def addpk(dst, src):
        unpk(src)
        for r in range(4): P(f'v_add_f32 v{dst+r}, v{dst+r}, v{TT+r}')
    def rcheck():
        a, b = TT + 6, TT + 7
        L = [I(f'v_max3_u32 v{a}, v{R}, v{R+1}, v{R+2}'), I(f'v_max3_u32 v{b}, v{R+3}, v{R+4}, v{R+5}')]
        for k in range(6, 18, 4):
            L += [I(f'v_max3_u32 v{a}, v{a}, v{R+k}, v{R+k+1}'), I(f'v_max3_u32 v{b}, v{b}, v{R+k+2}, v{R+k+3}')]
        return L + [I(f'v_max_u32 v{a}, v{a}, v{b}'), I(f'v_cmp_eq_u32 vcc, -1, v{a}')]
    P.wait(['c1w'])
    P('s_barrier')
    P(f'ds_read_b128 {vr(ACC2(1,1),4)}, v{r7} offset:{o7}')
    g_ = retry_group(rloads, rcheck, sleep=1); P.ext(g_[:-2] + g_[-1])
    P.ext(ts('recv'))
    for k, (lt, rr) in enumerate(((0, lambda p: R+4*p), (8, lambda p: R8+2*p), (1, lambda p: R+4*p+2))):
        a = ACC2(lt, 0)
        if lt == 1:
            for r in range(4): P(f'v_add_f32 v{a+r}, v{a+r}, v{ACC2(1,1)+r}')
        for p in range(3): addpk(a, rr(p))
        P(f'ds_write_b128 v{TW}, {vr(a,4)} offset:{ {0: 0, 1: 64, 8: 128}[lt] }')
    Y = AF(5, 0)
    P(f'ds_read_b128 {vr(Y+8,4)}, v{TW+2} offset:128')
    P(f'ds_read_b128 {vr(Y,4)}, v{TW+1}')
    P(f'ds_read_b128 {vr(Y+4,4)}, v{TW+1} offset:16')
    for y, xr in ((Y + 8, 0), (Y, 8), (Y + 4, 10)):
        unpk(xr)
        for r in range(4): P(f'v_fma_f32 v{y+r}, v{y+r}, v15, v{TT+r}')
        d = {Y + 8: Y + 8, Y: Y, Y + 4: Y + 2}[y]
        P(f'v_cvt_pk_bf16_f32 v{d}, v{y}, v{y+1}'); P(f'v_cvt_pk_bf16_f32 v{d+1}, v{y+2}, v{y+3}')
        if y == Y + 8: P(f'buffer_store_dwordx2 {vr(Y+8,2)}, v{VSP+1}, s[{S_OUT}:{S_OUT+3}], s{S_O8} offen {cfg.get("ost", "")}')
    P(f'buffer_store_dwordx4 {vr(Y,4)}, v{VSP}, s[{S_OUT}:{S_OUT+3}], s{S_O} offen {cfg.get("ost", "")}')
    if TS:
        P('s_waitcnt vmcnt(0)')
        P.ext(ts('end'))
        P('s_memrealtime s[88:89]\ns_waitcnt lgkmcnt(0)')
        for k in range(st.nts if not cfg.get('cnt') else 11): P(f'v_writelane_b32 v8, s{S_TS + k}, {k}')
        P(f"""
        v_writelane_b32 v8, s101, 30
        v_writelane_b32 v8, s88, 31
        v_lshrrev_b32 v9, 2, v{V_L16}
        v_mov_b32 v10, s{S_OOB}
        v_cmp_gt_u32 vcc, 0x80, v9
        v_cndmask_b32 v9, v10, v9, vcc
        s_lshl_b32 s24, s2, 3
        s_add_u32 s24, s24, s{S_WAVE}
        s_lshl_b32 s24, s24, 7
        s_add_u32 s24, s24, {TS_OFF}
        buffer_store_dword v8, v9, {WS}, s24 offen
        """)
    if cfg.get('until'):
        P(f"""
        s_waitcnt vmcnt(0)
        s_mov_b32 s26, 20000
        L_spin:
        s_memrealtime s[24:25]
        s_waitcnt lgkmcnt(0)
        s_lshl_b32 s24, s24, 3
        s_sub_u32 s24, s24, s{S_NON}
        s_and_b32 s24, s24, 0x7fffffff
        s_sub_u32 s26, s26, 1
        s_cmp_eq_u32 s26, 0
        s_cbranch_scc1 L_done
        s_cmp_lt_u32 s24, {cfg['until'] * 800}
        s_cbranch_scc1 L_spin
        """)
    P('L_done:')
    P('s_endpgm')
    used = {x.text.split()[1] for x in P.p if isinstance(x, I) and x.op == 's_cbranch_vccnz'}
    for l, g in st.slowmap.items():
        if f'L_sl{l}' in used: P.ext(g)
    q, n = P.finish()
    if cfg.get('verbose'):
        from collections import Counter
        print('nops', n, Counter(x.kind for x in q))
        print('events', events)
    return kernel_text(name, q, 256, 102), st.tsn

HEADER = """; Fused kernel: [QKV | gate/up] GEMM on raw x with LayerNorm applied as a rank-1 correction, linear attention + GEGLU,
; down/out GEMM (split-K 4, exchanged between workgroups) + residual.
; Kernarg (80 bytes): 0 A_x, 8 A_wqkv, 16 A_wo, 24 B_x (unused), 32 w_gate, 40 w_up, 48 w_down, 56 out, 64 debug, 72 ws
; @launch grid=(256,1,1) block=(512,1,1) lds=163840
"""
if __name__ == '__main__':
    out = sys.argv[1]
    cfg = json.loads(sys.argv[2]) if len(sys.argv) > 2 else {}
    name = 'parallel_sum__linear_attn_block__geglu_ffn__prompt_kernel'
    (body, kd), tsn = gen(name, cfg)
    s = HEADER + (f'; ts: {" ".join(tsn)}\n' if tsn else '')
    s += '.amdgcn_target "amdgcn-amd-amdhsa--gfx950"\n.text\n' + body + '.section .rodata,"a"\n.p2align 6\n' + kd
    open(out, 'w').write(s)
```

```python
import sys, json
sys.path.insert(0, 'work')
from dsl import *

OOB = 0x40000000
ST_OFF = 0
CSP_OFF = 0x80000
WX_OFF = 0x240000; WX_J = 112 * 1024
A2_OFF = 0x600000; A2_MT = 160 * 1024
A2L_OFF = 0x1A00000
KVP_OFF = 0x1A40000
EX_OFF = 0x1B00000
EX8_OFF = 0x2200000
W2_OFF = 0x2300000; W2_S = 192 * 1024
F2_OFF = 0x2900000
F3_OFF = 0x2910000
F4_OFF = 0x2920000
TS_OFF = 0x2A00000
FL_OFF = 0x2B00000
WS_SIZE = 0x2C00000
HS = 262144

LDS_BYTES = 163840
NSLOT = 19; SLOT = 8192
MISC = NSLOT * SLOT
IT_L0 = 0; IT_R = 18; IT_Q = 21; IT_X = 26; IT_SCR = 35; IT_PK = 36; IT_L1 = 37; IT_W2 = 55; NW2 = 48
NITEM = IT_W2 + NW2

V_TR = 0; V_TH = 2; V_L16 = 4; V_LB = 5; V_DMA = 6; V_A = 1; V_T = 8; V_WF = 16; V_ACC = 32; V_XF = 112
V_XD = 12; V_XR = 14
BN = [12, 14]; C0 = [13, 15]; C1 = [0, 7]
def XF(ks, mt): return V_XF + (ks * 2 + mt) * 4
def ACC(u, nt, mt): return V_ACC + 16 * u + (nt * 2 + mt) * 4
def U(u): return [V_ACC + 16 * u + 4 * k for k in range(4)]

S_RED = 3
S_W = 4; S_WS = 8; S_R = 12; S_XS = 16; S_OUT = 20
S_T = 24
S_W1K = 32; S_A2 = 33; S_MW = 34; S_L2E = 35; S_EPS = 36; S_W256 = 37; S_OOB = 38; S_WAVE = 39
S_M4 = 40; S_G2 = 42; S_NMS = 44; S_RS = 45; S_KVST = 46; S_KVLD = 47; S_A2L = 48; S_EX = 49; S_E8R = 50
S_FH = 51; S_FL = 52; S_CNT = 53; S_NON = 54; S_F2S = 55; S_F2P = 56; S_F3S = 57; S_PT = 58
S_XN = 59; S_WX = 60; S_XST = 61; S_GP = 62; S_RSRC = 67; S_WXD = 68; S_OP = 70
S_A = 62; S_W2 = 64; S_W2K = 65; S_EXS = 66; S_E8S = 69; S_O = 59; S_O8 = 60; S_AL = 61; S_STK = 70
S_WO = 48; S_WD = 46; S_G1 = 72; S_G0 = 76
S_RDST = 80; S_LEFT = 83; S_RB = 84; S_J = 85; S_RX = 86; S_RW = 87
S_TS = 90

K0C = -2.0 * 0.7978845608028654 * 1.4426950408889634
K1C = K0C * 0.044715

class Ctx: pass
class Ev:
    def __init__(self, name, bar=False): self.name = name; self.bar = bar
class Delay:
    def __init__(self, n): self.n = n
class Need:
    def __init__(self, name): self.name = name

def gen(name, cfg):
    D = cfg.get('dist', 3)
    TS = cfg.get('ts', False)
    SPIN = cfg.get('spin', 100000)
    MINGAP = cfg.get('mingap', 6)
    ROT = cfg.get('rot', [0, 3, 6])
    RT = sum(ROT[k % len(ROT)] << (4 * k) for k in range(16))
    S_ROT = S_NMS
    NR = cfg.get('nr', 5)
    NL0 = NSLOT - 2 * NR
    XST = NL0 * SLOT
    WS = f's[{S_WS}:{S_WS+3}]'
    XS = f's[{S_XS}:{S_XS+3}]'
    P = Prog(); st = Ctx(); st.tmp = 0; st.ft = 0; st.nts = 0; st.lab = 0; st.tsn = []; st.slowmap = {}
    S_SPN = 1
    def stmp():
        st.tmp = (st.tmp + 1) % 6; return S_T + st.tmp
    def ftmp():
        st.ft = (st.ft + 1) % 2; return S_T + 6 + st.ft
    def ts(nm):
        if not TS or cfg.get('cnt'): return []
        if 'tsat' in cfg and nm not in ('start', 's1start', 'end') and not nm.startswith('@'): return []
        k = st.nts; st.nts += 1; st.tsn.append(nm)
        assert k < 11
        if cfg.get('both'):
            return [I('s_memrealtime s[88:89]'), I('s_waitcnt lgkmcnt(0)'), I(f's_and_b32 s{S_TS+k}, s88, 0xffff'), I('s_memtime s[88:89]'), I('s_waitcnt lgkmcnt(0)'),
                    I('s_lshl_b32 s88, s88, 14'), I('s_and_b32 s88, s88, 0xffff0000'), I(f's_or_b32 s{S_TS+k}, s{S_TS+k}, s88')]
        return [I(('s_memrealtime' if cfg.get('rt') else 's_memtime') + ' s[88:89]'), I('s_waitcnt lgkmcnt(0)'), I(f's_mov_b32 s{S_TS+k}, s88')]
    slow = []
    def retry_group(loads, check, w0only=False, sleep=1):
        st.lab += 1; l = st.lab
        g = [I(f'L_sl{l}:'), I('s_nop 7'), I(f's_mov_b32 s{S_SPN}, {SPIN}'), I(f'L_rt{l}:'), I(f's_sleep {sleep}')]
        if cfg.get('cnt'):
            c_ = S_TS + (l - 1) % 11; g += [I(f's_add_u32 s{c_}, s{c_}, {1 if l <= 11 else 1000}')]
        g += loads() + [I('s_waitcnt vmcnt(0)')] + check()
        g += [I(f's_sub_u32 s{S_SPN}, s{S_SPN}, 1'), I(f's_cmp_eq_u32 s{S_SPN}, 0'), I(f's_cbranch_scc1 L_bk{l}'), I('s_nop 4'),
              I(f's_cbranch_vccnz L_rt{l}'), I(f's_branch L_bk{l}')]
        st.slowmap[l] = raw(g)
        return check() + [Delay(1), [I(f's_cbranch_vccnz L_sl{l}'), I(f'L_bk{l}:')]]
    def IL(txt): return [I(l) for l in txt.strip().split('\n') if l.strip()]
    l0s = list(range(6)) + list(range(9, NL0)); NLR = len(l0s)
    stab = [l0s[n % NLR] for n in range(18)] + [6, 7, 8] + list(range(NL0, NSLOT)) + [l0s[n % NLR] for n in range(18 - NLR, 18)]
    cyc = stab[21:31] + [6, 7, 8] + stab[31:35]; RSV = stab[35:37]
    stab += cyc + cyc[:13] + RSV
    while len(stab) < NITEM: stab.append(stab[-NSLOT])
    PAIR = cfg.get('pair', 1)
    def L1it(h, k): return IT_L1 + (2 * k + h if PAIR else 9 * h + k)
    def L1hk(n): return (((n - IT_L1) & 1, (n - IT_L1) >> 1) if PAIR else divmod(n - IT_L1, 9))
    if PAIR:
        stab = stab[:IT_L1] + cyc + [cyc[0]]
        sa = [stab[L1it(0, k)] for k in range(1, 9)]; sb = [stab[L1it(1, k)] for k in range(9)]
        stab += sa + sb[:4] + RSV + sb[4:]
        while len(stab) < NITEM: stab.append(stab[-NSLOT])
    def slot_of(n): return stab[n]
    def prev_of(n):
        for m in range(n - 1, -1, -1):
            if stab[m] == stab[n]: return m
        s = stab[n]
        return 'stage' if s >= NL0 else ('gst' if 6 <= s < 9 else None)
    SCR = slot_of(IT_SCR) * SLOT; KVS = SCR

    if TS: P('s_memrealtime s[88:89]\ns_waitcnt lgkmcnt(0)\ns_mov_b32 s101, s88')
    P.ext(ts('start'))
    if cfg.get('cnt'):
        for k in range(11): P(f's_mov_b32 s{S_TS+k}, 0')
    P('s_cmp_ge_u32 s2, 256')
    P('s_cbranch_scc1 L_done')
    P(f's_load_dwordx2 s[{S_XS}:{S_XS+1}], s[0:1], 0')
    P(f's_load_dwordx4 s[{S_G0}:{S_G0+3}], s[0:1], 32')
    B = V_ACC
    VL = B; VOOB = B + 1; VG = B + 2; VSR = B + 4
    CPRE = f"""
        s_getpc_b64 s[24:25]
        s_mov_b32 s26, L_done - L_cp
        L_cp:
        s_mov_b32 s27, 0x20000
        s_and_b32 s30, s2, 0xf8
        s_lshl_b32 s30, s30, 8
        v_lshlrev_b32 v{V_ACC+6}, 2, v0
        buffer_load_dword v{V_ACC+7}, v{V_ACC+6}, s[24:27], s30 offen
        """
    if cfg.get('cpre', 1) == 1: P(CPRE)
    P(f"""
    v_lshrrev_b32 v8, 6, v0
    v_bfe_u32 v{VG}, v0, 4, 2
    v_readfirstlane_b32 s{S_WAVE}, v8
    s_bfe_u32 s27, s2, 0x30003
    s_and_b32 s25, s2, 4
    s_lshr_b32 s26, s2, 6
    s_add_u32 s{S_RB}, s25, s26
    v_bfe_u32 v{VSR}, v0, 3, 3
    v_xor_b32 v9, v0, v{VG}
    v_and_b32 v9, 7, v9
    v_mul_u32_u24 v11, 72, v{VSR}
    v_add_lshl_u32 v{V_XD}, v9, v11, 4
    v_xor_b32 v{V_XD+1}, 64, v{V_XD}
    v_add_u32 v{V_XD+1}, {8*1152}, v{V_XD+1}
    s_lshl_b32 s24, s{S_RB}, 3
    s_add_u32 s24, s24, s{S_WAVE}
    s_mul_i32 s{S_XN}, s24, {32*1152}
    s_mul_i32 s{S_XST}, s{S_WAVE}, {NR*2048}
    s_add_u32 s{S_XST}, s{S_XST}, {XST}
    s_add_u32 s25, s27, s{S_RB}
    s_lshl_b32 s25, s25, 2
    s_mov_b32 s{S_RX}, {RT & 0xffffffff:#x}
    s_mov_b32 s{S_RW}, {RT >> 32:#x}
    s_lshr_b64 s[{S_RX}:{S_RW}], s[{S_RX}:{S_RW}], s25
    s_and_b32 s{S_ROT}, s{S_RX}, 15
    s_lshl_b32 s{S_RX}, s{S_ROT}, 7
    s_add_u32 s{S_XN}, s{S_XN}, s{S_RX}
    s_mov_b32 s{S_XS+2}, 2359296
    s_mov_b32 s{S_XS+3}, 0x20000
    """)
    PRO2 = f"""
    s_and_b32 s26, s2, 3
    s_lshl3_add_u32 s{S_J}, s26, s31
    s_mul_i32 s{S_RW}, s{S_ROT}, {64*9216}
    s_mov_b32 s{S_W+2}, 5308416
    s_mov_b32 s{S_W+3}, 0x20000
    s_lshl_b32 s{S_W1K}, s{S_WAVE}, 10
    v_lshrrev_b32 v8, 3, v0
    v_and_b32 v11, 0x13, v8
    v_lshrrev_b32 v9, 2, v0
    v_and_or_b32 v11, v9, 8, v11
    v_lshrrev_b32 v9, 4, v0
    v_and_or_b32 v11, v9, 4, v11
    v_mul_u32_u24 v11, 576, v11
    v_xor_b32 v8, v8, v0
    v_and_b32 v8, 6, v8
    v_and_or_b32 v8, v0, 1, v8
    s_cmp_eq_u32 s31, 3
    s_cselect_b32 s30, 31, 0
    s_add_u32 s30, s30, s{S_J}
    s_lshl_b32 s30, s30, 3
    v_add3_u32 v{V_DMA}, v11, v8, s30
    v_lshlrev_b32 v{V_DMA}, 4, v{V_DMA}
    s_cmp_ge_u32 s{S_WAVE}, 4
    s_cselect_b32 s{S_W}, s{S_G0+2}, s{S_G0}
    s_cselect_b32 s{S_W+1}, s{S_G0+3}, s{S_G0+1}
    """
    PRO3 = f"""
    s_load_dwordx2 s[{S_OUT}:{S_OUT+1}], s[0:1], 64
    s_load_dwordx2 s[{S_WS}:{S_WS+1}], s[0:1], 72
    s_load_dwordx2 s[{S_G1}:{S_G1+1}], s[0:1], 8
    s_load_dwordx2 s[{S_WO}:{S_WO+1}], s[0:1], 16
    s_load_dwordx2 s[{S_WD}:{S_WD+1}], s[0:1], 48
    s_load_dwordx2 s[{S_OP}:{S_OP+1}], s[0:1], 56
    s_memrealtime s[28:29]
    v_and_b32 v{VL}, 63, v0
    s_mov_b32 s{S_OOB}, {OOB}
    v_mov_b32 v{VOOB}, s{S_OOB}
    v_lshlrev_b32 v{V_L16}, 4, v{VL}
    s_lshl_b32 s26, s{S_RB}, 5
    s_add_u32 s26, s26, s{S_J}
    s_lshl3_add_u32 s31, s26, s{S_WAVE}
    s_mul_i32 s{S_RS}, s31, 1152
    s_lshl_b32 s{S_RX}, s{S_ROT}, 12
    s_add_u32 s{S_RX}, s{S_RX}, s{S_W1K}
    s_mov_b32 s{S_OUT+2}, 256
    s_mov_b32 s{S_OUT+3}, 0x20000
    v_cmp_eq_u32 vcc, 0, v0
    v_cndmask_b32 v10, v{VOOB}, 0, vcc
    s_waitcnt lgkmcnt(0)
    s_lshl_b32 s28, s28, 3
    s_or_b32 s28, s28, 0x80000000
    v_mov_b32 v11, s28
    """
    P('s_mov_b32 s31, s27\ns_waitcnt lgkmcnt(0)')
    def adv(reg, nextpair, total, unit):
        if nextpair == 9: return [I(f's_mul_i32 s{reg}, s{S_ROT}, {unit}')]
        if (9 - nextpair) in ROT:
            t = stmp()
            return [I(f's_cmp_eq_u32 s{S_ROT}, {9 - nextpair}'), I(f's_cselect_b32 s{t}, {total}, 0'), I(f's_sub_u32 s{reg}, s{reg}, s{t}')]
        return []
    def dma(n):
        L = [I(f's_add_u32 m0, s{S_W1K}, {slot_of(n) * SLOT}')]
        if n < 18:
            t = stmp()
            L += [I(f's_add_u32 s{t}, s{S_RW}, {n * 32 * 9216}'), I(f'buffer_load_dwordx4 v{V_DMA}, s[{S_W}:{S_W+3}], s{t} offen {cfg.get("wnt", "")} lds', tok=f'it{n}')]
            if n & 1: L += adv(S_RW, (n + 1) // 2, 576*9216, 64*9216)
        elif n < IT_Q:
            t = stmp()
            L += [I(f's_add_u32 s{t}, s{S_RSRC if not cfg.get("fakeR") else S_OOB}, {(n - IT_R) * 128}'),
                  I(f'buffer_load_dwordx4 v{U(4)[2]+1}, s[{S_R}:{S_R+3}], s{t} offen nt lds', tok=f'it{n}')]
        elif n < IT_SCR:
            t = stmp(); isq = n < IT_X
            L += [I(f's_add_u32 s{t}, s{S_WX}, s{S_RX}'),
                  I(f'buffer_load_dwordx4 v{V_L16}, {WS}, s{t} offen sc1 lds', tok=f'it{n}')]
            if n == IT_X - 1:
                L += [I(f's_add_u32 s{S_WX}, s{S_WX}, {40*1024}'), I(f's_lshl_b32 s{S_RX}, s{S_ROT}, 13'), I(f's_add_u32 s{S_RX}, s{S_RX}, s{S_W1K}')]
            else:
                wrap = (36 if isq else 72) * 1024
                L += [I(f's_add_u32 s{S_RX}, s{S_RX}, 8192'), I(f's_sub_u32 s{t}, s{S_RX}, {wrap}'), I(f's_cselect_b32 s{S_RX}, s{S_RX}, s{t}')]
        elif n < IT_W2:
            t = stmp()
            L += [I(f's_add_u32 s{t}, s{S_RW}, {L1hk(n)[0] * 64 + L1hk(n)[1] * 64 * 9216}'),
                  I(f'buffer_load_dwordx4 v{V_DMA}, s[{S_W}:{S_W+3}], s{t} offen {cfg.get("wnt", "")} lds', tok=f'it{n}')] + (adv(S_RW, L1hk(n)[1] + 1, 576*9216, 64*9216) if (not PAIR or L1hk(n)[0]) else [])
        else:
            t = stmp()
            L += [I(f's_add_u32 s{t}, s{S_W2K if n - IT_W2 in (35, 36, 47) else S_W2}, {(n - IT_W2) * 4096}'),
                  I(f'buffer_load_dwordx4 v{V_L16}, {WS}, s{t} offen sc1 lds', tok=f'it{n}')]
        return L
    GPOS = cfg.get('gpos', 8)
    stg = [('x', p) for p in range(18)]
    spos = {e: k for k, e in enumerate(stg)}
    VGA = U(4)[2]
    def sdma(k, h):
        kind, p = stg[k]
        w = [f'sr{k-NR}_0', f'sr{k-NR}_1'] if k >= NR else []
        t = stmp()
        L = [I(f's_add_u32 m0, s{S_XST}, {(k % NR) * 2048 + h * 1024}')]
        if kind == 'x':
            L += [I(f's_add_u32 s{t}, s{S_XN}, {(p >> 1) * 128 + (p & 1) * 18432}')]
            L += [I(f'buffer_load_dwordx4 v{V_XD+h}, {XS}, s{t} offen lds', tok=f's{k}_{h}', waits=w)]
            if (p & 1) and h and p < 17: L += adv(S_XN, (p + 1) // 2, 1152, 0)
        return L
    GL = [[6 * SLOT, 7 * SLOT], [8 * SLOT, MISC]]
    def gdma(p, h):
        t = stmp(); S = S_G0 if p == 0 else S_G1
        return [I(f's_add_u32 m0, s{S_W1K}, {GL[p][h]}'),
                I(f's_add_u32 s{t}, s{S_GP+p}, ' + (('0' if h == 0 else f's{S_GP+2}') if p == 0 else str(h * 4 * 3456))),
                I(f'buffer_load_dwordx4 v{VGA+p}, s[{S}:{S+3}], s{t} offen {cfg.get("gnt", "")} lds', tok=f'sg{p}_{h}')]
    def xread(p, d):
        k = spos[('x', p)]
        return I(f'ds_read_b128 {vr(XF(2*(p>>1)+d, p&1),4)}, v{V_XR+d} offset:{(k % NR) * 2048}', tok=f'sr{k}_{d}', waits=[f's{k}_0', f's{k}_1'])
    if cfg.get('tsp'): P.ext(ts('@karg'))
    P.ext(sdma(0, 0)); P.ext(sdma(0, 1))
    P(PRO2)
    P.ext(dma(0))
    P.ext(sdma(1, 0)); P.ext(sdma(1, 1))
    P.ext(dma(1))
    if cfg.get('cpre', 1) == 2: P(CPRE)
    PS = cfg.get('ps', 4)
    NPRE = cfg.get('npre', 4)
    PS0 = cfg.get('ps0', 2); NP0 = cfg.get('np0', 2)
    for k in range(2, max(PS0, NP0)):
        if k < PS0: P.ext(sdma(k, 0)); P.ext(sdma(k, 1))
        if k < NP0: P.ext(dma(k))
    P(PRO3)
    if cfg.get('tsp'): P.ext(ts('@b1'))
    P(f's_cmp_eq_u32 s2, 0\ns_cselect_b32 s29, 0, s{S_OOB}\nbuffer_store_dword v11, v10, s[{S_OUT}:{S_OUT+3}], s29 offen sc1')
    if cfg.get('dbgstart'):
        P(f's_lshl_b32 s29, s2, 2\ns_add_u32 s29, s29, 4\ns_cmp_lt_u32 s2, 15\ns_cselect_b32 s29, s29, s{S_OOB}\nbuffer_store_dword v11, v10, s[{S_OUT}:{S_OUT+3}], s29 offen sc1')
    VN2 = B + 16; VT3 = B + 17; VRW = B + 18
    P(f"""
    v_and_b32 v8, 3, v{VL}
    v_lshlrev_b32 v{VN2}, 4, v8
    v_cmp_gt_u32 vcc, 2, v8
    v_cndmask_b32 v{VN2}, v{VOOB}, v{VN2}, vcc
    v_mov_b32 v{VT3}, {2*(1152+16)}
    v_cmp_eq_u32 vcc, 1, v8
    v_cndmask_b32 v{VT3}, v{VT3}, 32, vcc
    v_mov_b32 v9, {2*(576+16)}
    v_cmp_eq_u32 vcc, 2, v8
    v_cndmask_b32 v{VT3}, v{VT3}, v9, vcc
    v_cmp_eq_u32 vcc, 3, v8
    v_cndmask_b32 v{VT3}, v{VT3}, v{VOOB}, vcc
    v_bfe_u32 v9, v{VL}, 2, 2
    v_lshl_add_u32 v{VRW}, v{VG}, 3, v9
    """)
    GSO = [S_GP, S_GP + 1]; GST = S_GP + 2
    P(f's_and_b32 s{S_NON}, s2, 3\ns_lshl_b32 s{S_NON}, s{S_NON}, 3\ns_add_u32 s{S_NON}, s{S_NON}, s{S_WAVE}')
    for i in range(2):
        P(f"""
        s_lshr_b32 s24, s2, 2
        s_add_u32 s24, s24, {64*i}
        s_sub_u32 s25, s24, 36
        s_lshr_b32 s26, s25, 2
        s_mul_i32 s26, s26, 110592
        s_and_b32 s25, s25, 3
        s_mul_i32 s27, s{S_NON}, 36
        s_add_u32 s26, s26, s27
        s_mul_i32 s27, s25, 1152
        s_cmp_eq_u32 s25, 3
        s_cselect_b32 s27, 0, s27
        s_cselect_b64 s[{S_G2}:{S_G2+1}], -1, 0
        s_add_u32 s{GSO[i]}, s26, s27
        """)
        if i == 0:
            P(f"""
            s_lshr_b32 s26, s24, 1
            s_mul_i32 s26, s26, 294912
            s_lshl_b32 s27, s{S_NON}, 5
            s_add_u32 s26, s26, s27
            s_add_u32 s26, s26, 8192
            s_bitcmp1_b32 s24, 0
            s_cselect_b32 s{S_G0}, s{S_G0+2}, s{S_G0}
            s_cselect_b32 s{S_G0+1}, s{S_G0+3}, s{S_G0+1}
            s_mov_b32 s28, 1990656
            s_mov_b32 s29, 3456
            s_cmp_lt_u32 s24, 36
            s_cselect_b32 s{S_G0}, s{S_G0}, s{S_G1}
            s_cselect_b32 s{S_G0+1}, s{S_G0+1}, s{S_G1+1}
            s_cselect_b32 s{S_G0+2}, 5308416, s28
            s_mov_b32 s{S_G0+3}, 0x20000
            s_cselect_b32 s{GSO[0]}, s26, s{GSO[0]}
            s_cselect_b32 s{GST}, 9216, s29
            s_cselect_b64 s[{S_G2}:{S_G2+1}], 0, s[{S_G2}:{S_G2+1}]
            s_cselect_b32 s30, 0, 4
            s_mov_b32 s27, s{GST}
            s_lshl_b32 s{GST}, s{GST}, 2
            """)
        else:
            P('s_mov_b32 s27, 3456\ns_mov_b32 s30, 4')
        P(f"""
        s_and_b32 s{S_GP+3+i}, s{S_G2}, 1
        s_add_u32 s{S_GP+3+i}, s{S_GP+3+i}, 3
        v_cndmask_b32 v8, v{VN2}, v{VT3}, s[{S_G2}:{S_G2+1}]
        v_mul_lo_u32 v11, v{VRW}, s27
        v_add_u32 v{VGA+i}, v8, v11
        s_mul_i32 s26, s{S_NON}, 112
        s_add_u32 s26, s26, s24
        s_add_u32 s26, s26, s30
        s_lshl_b32 s26, s26, 10
        s_add_u32 s26, s26, {WX_OFF}
        s_cmp_lt_u32 s24, 108
        s_cselect_b32 s{S_WXD+i}, s26, s{S_OOB}
        """)
        if i: P(f's_cselect_b32 s{S_G1+2}, 1990656, 0\ns_mov_b32 s{S_G1+3}, 0x20000')
    ONES = U(4)[0]; CSA = U(4)[1]
    P(f"""
    s_mov_b32 s{S_WS+2}, {WS_SIZE}
    s_mov_b32 s{S_WS+3}, 0x20000
    s_lshl_b32 s{S_PT}, s31, 7
    v_lshrrev_b32 v8, 5, v{VL}
    v_lshlrev_b32 v8, 11, v8
    v_bfe_u32 v11, v{VL}, 2, 3
    v_lshl_add_u32 v8, v11, 7, v8
    v_bfe_u32 v11, v{VL}, 3, 2
    v_lshl_add_u32 v8, v11, 5, v8
    v_and_b32 v11, 3, v{VL}
    v_lshl_add_u32 v{V_TR}, v11, 3, v8
    v_xor_b32 v{V_TR+1}, 32, v{V_TR}
    v_xor_b32 v{V_TR+2}, 64, v{V_TR}
    v_xor_b32 v{V_TR+3}, 96, v{V_TR}
    s_and_b32 s24, s{S_WAVE}, 3
    s_lshl_b32 s24, s24, 5
    s_and_b32 s25, s{S_W1K}, 0x1000
    s_or_b32 s24, s24, s25
    v_xor_b32 v{V_LB}, s24, v{V_TR}
    v_and_b32 v9, 15, v{VL}
    v_lshrrev_b32 v11, 1, v9
    v_xor_b32 v11, v11, v{VG}
    v_lshlrev_b32 v11, 4, v11
    v_lshl_add_u32 v11, v9, 7, v11
    v_add_u32 v{V_XR}, s{S_XST}, v11
    v_xor_b32 v{V_XR+1}, 64, v{V_XR}
    """)
    for r in range(4): P(f'v_mov_b32 v{ONES+r}, 0x3f803f80')
    sqa = [f's_lshl_b32 s73, s{S_RB}, 4', f's_lshl_b32 s74, s{S_WAVE}, 1', 's_add_u32 s73, s73, s74', f's_mul_i32 s{S_A2}, s73, {A2_MT}',
           f's_mul_i32 s74, s{S_J}, 5120', f's_add_u32 s{S_A2}, s{S_A2}, s74', f's_add_u32 s{S_A2}, s{S_A2}, {A2_OFF}']
    sq_txt = []
    SQ = sq_txt.append
    C = 72; TA = S_G2; TB_ = S_G2 + 1; S_E8P = S_W256
    SQ(f"""
            s_lshr_b32 s73, s2, 2
            s_lshl_b32 s73, s73, 1
            s_lshr_b32 s74, s{S_WAVE}, 2
            s_add_u32 s73, s73, s74
            s_mul_i32 s74, s73, 21846
            s_lshr_b32 s74, s74, 16
            s_mul_i32 s75, s74, 3
            s_sub_u32 s75, s73, s75
            s_mul_i32 s76, s74, 13108
            s_lshr_b32 s76, s76, 16
            s_mul_i32 s77, s76, 5
            s_sub_u32 s77, s74, s77
            s_and_b32 s78, s2, 3
            s_lshl_b32 s78, s78, 3
            s_add_u32 s78, s78, s76
            s_and_b32 s79, s{S_WAVE}, 3
            s_cmp_eq_u32 s76, 3
            s_cselect_b32 s73, 31, 0
            s_cmp_eq_u32 s76, 2
            s_cselect_b32 s{TA}, 1, 32
            s_cmp_lt_u32 s77, 2
            s_cselect_b32 s73, s73, s{TA}
            s_add_u32 s73, s73, s78
            s_lshl_b32 s73, s73, 6
            s_and_b32 s{TA}, s77, 1
            s_lshl_b32 s{TA}, s{TA}, 5
            s_add_u32 s73, s73, s{TA}
            s_lshl_b32 s{TA}, s79, 3
            s_add_u32 s73, s73, s{TA}
            s_lshl_b32 s{TB_}, s78, 4
            s_add_u32 s{TB_}, s{TB_}, 4096
            s_add_u32 s{TB_}, s{TB_}, s{TA}
            s_mul_i32 s{C}, s78, 18
            s_add_u32 s{C}, s{C}, s{TA}
            s_sub_u32 s{C}, s{C}, 16
            s_cmp_lt_u32 s79, 2
            s_cselect_b32 s{TB_}, s{TB_}, s{C}
            s_cselect_b32 s{C}, 0, 1
            s_cmp_eq_u32 s77, 4
            s_cselect_b32 s73, s{TB_}, s73
            s_cselect_b32 s{C}, s{C}, 0
            s_and_b32 s{TB_}, s2, 3
            s_lshl_b32 s{TB_}, s{TB_}, 1
            s_add_u32 s{TB_}, s{TB_}, s79
            s_mul_i32 s{TB_}, s{TB_}, 72
            s_add_u32 s{TB_}, s{TB_}, 16
            s_cmp_ge_u32 s74, 40
            s_cselect_b32 s73, s{TB_}, s73
            s_cselect_b32 s{C}, 1, s{C}
            s_cselect_b32 s{S_LEFT}, 18432, 0
            s_cselect_b32 s{TB_}, s79, 0
            s_mul_i32 s73, s73, 1152
            s_mul_i32 s78, s75, 384
            s_add_u32 s{S_RSRC}, s73, s78
            s_mov_b32 s73, 663552
            s_cmp_eq_u32 s{C}, 1
            s_cselect_b32 s{S_R}, s{S_WO}, s{S_WD}
            s_cselect_b32 s{S_R+1}, s{S_WO+1}, s{S_WD+1}
            s_cselect_b32 s{S_R+2}, s73, 5308416
            s_cmp_ge_u32 s{TB_}, 2
            s_cselect_b32 s{S_R+2}, 0, s{S_R+2}
        s_mov_b32 s{S_R+3}, 0x20000

            s_sub_u32 s73, 7, s77
            s_cmp_lt_u32 s77, 3
            s_cselect_b32 s73, s77, s73
            s_lshl_b32 s73, s73, 2
            s_and_b32 s77, s76, 3
            s_add_u32 s73, s73, s77
            s_lshr_b32 s76, s76, 2
            s_cmp_ge_u32 s74, 40
            s_cselect_b32 s73, 20, s73
            s_cselect_b32 s76, 0, s76
            s_mul_i32 s75, s75, 12
            s_add_u32 s75, s75, s79
        """)
    for i in range(3):
        SQ(f"""
            s_add_u32 s77, s75, {4*i}
            s_mul_i32 s78, s77, 7282
            s_lshr_b32 s78, s78, 16
            s_mul_i32 s79, s78, 9
            s_sub_u32 s79, s77, s79
            s_lshr_b32 s77, s79, 1
            s_sub_u32 s77, s77, s2
            s_and_b32 s77, s77, 3
            s_lshl_b32 s77, s77, 1
            s_and_b32 s{TA}, s79, 1
            s_add_u32 s77, s77, s{TA}
            s_cmp_eq_u32 s79, 8
            s_cselect_b32 s77, 8, s77
            s_mul_i32 s79, s73, 7
            s_add_u32 s79, s79, s77
            s_sub_u32 s79, s79, 2
            s_cmp_eq_u32 s73, 20
            s_cselect_b32 s{TA}, 1, 20
            s_cselect_b32 s{TB_}, 20, 0
            s_mul_i32 s{TA}, s{TA}, s77
            s_add_u32 s{TA}, s{TA}, s73
            s_add_u32 s{TA}, s{TA}, s{TB_}
            s_add_u32 s{TA}, s{TA}, 148
            s_cmp_ge_u32 s77, 2
            s_cselect_b32 s79, s79, s{TA}
            s_and_b32 s{TA}, s2, 3
            s_lshl_b32 s{TA}, s{TA}, 2
            s_add_u32 s{TA}, s{TA}, s78
            s_lshl_b32 s{TA}, s{TA}, 1
            s_add_u32 s{TA}, s{TA}, s76
            s_mul_i32 s{TA}, s{TA}, 192
            s_add_u32 s{TA}, s{TA}, s79
            s_lshl_b32 s{TA}, s{TA}, 10
            s_add_u32 s{TA}, s{TA}, {W2_OFF}
            s_cmp_lt_u32 s74, 41
            s_cselect_b32 s{S_RDST+i}, s{TA}, s{S_OOB}
            """)
    SQ(f's_mov_b32 s{S_G2}, 0\ns_mov_b32 s{S_G2+1}, 0x0000ffff')
    SQ(f"""
            s_mul_i32 s{S_WX}, s{S_J}, {WX_J}
            s_add_u32 s{S_WX}, s{S_WX}, {WX_OFF}
            s_lshr_b32 s73, s{S_J}, 3
            s_lshl_b32 s73, s73, 13
            s_add_u32 s73, s73, {F2_OFF}
            s_add_u32 s{S_F2P}, s73, s{S_W1K}
            s_and_b32 s73, s2, 3
            s_lshl_b32 s73, s73, 6
            s_lshr_b32 s74, s2, 2
            s_add_u32 s74, s74, s73
            s_lshl_b32 s74, s74, 7
            s_add_u32 s74, s74, {F2_OFF}
            s_lshl_b32 s75, s2, 7
            s_add_u32 s75, s75, {F3_OFF}
            s_cmp_eq_u32 s{S_WAVE}, 0
            s_cselect_b32 s{S_F2S}, s74, s{S_OOB}
            s_cselect_b32 s{S_F3S}, s75, s{S_OOB}
            s_lshl_b32 s73, s2, 3
            s_add_u32 s73, s73, s{S_WAVE}
            s_mul_i32 s73, s73, 3072
            s_add_u32 s{S_EX}, s73, {EX_OFF}
            s_lshr_b32 s73, s2, 2
            s_lshl_b32 s73, s73, 3
            s_add_u32 s73, s73, s{S_WAVE}
            s_lshl_b32 s73, s73, 11
            s_add_u32 s73, s73, {EX8_OFF}
            s_xor_b32 s74, s2, s{S_WAVE}
            s_and_b32 s74, s74, 3
            s_cmp_eq_u32 s74, 0
            s_cselect_b32 s{S_E8R}, s73, s{S_OOB}
            s_lshl_b32 s73, s{S_RB}, 4
            s_lshl_b32 s74, s{S_WAVE}, 1
            s_add_u32 s73, s73, s74
            s_lshl_b32 s{S_A2L}, s73, 11
            s_lshl_b32 s74, s{S_J}, 7
            s_add_u32 s{S_A2L}, s{S_A2L}, s74
            s_add_u32 s{S_A2L}, s{S_A2L}, {A2L_OFF}
            s_lshl_b32 s{S_W256}, s{S_WAVE}, 8
            s_lshl_b32 s73, s{S_J}, 3
            s_add_u32 s74, s73, s{S_RB}
            s_mul_i32 s74, s74, 1536
            s_lshl_b32 s75, s{S_WAVE}, 8
            s_add_u32 s75, s75, {KVP_OFF}
            s_add_u32 s74, s74, s75
            s_mul_i32 s73, s73, 1536
            s_add_u32 s73, s73, s75
            s_cmp_lt_u32 s{S_WAVE}, 6
            s_cselect_b32 s{S_KVST}, s74, s{S_OOB}
            s_cselect_b32 s{S_KVLD}, s73, s{S_OOB}
            s_add_u32 s73, s{S_W256}, {SCR}
            s_add_u32 s74, s{S_W256}, {MISC - 1024}
            s_cmp_lt_u32 s{S_WAVE}, 4
            s_cselect_b32 s{S_RED}, s73, s74
            s_lshl_b32 s73, s{S_RB}, 2
            s_lshr_b32 s74, s{S_J}, 3
            s_add_u32 s73, s73, s74
            s_lshl_b32 s73, s73, 13
            s_add_u32 s73, s73, {FL_OFF}
            s_add_u32 s{S_FL}, s73, s{S_W1K}
            s_and_b32 s74, s{S_J}, 7
            s_lshl_b32 s74, s74, 7
            s_add_u32 s{S_FL}, s{S_FL}, s74
            s_and_b32 s73, s2, 4
            s_lshr_b32 s74, s2, 6
            s_add_u32 s73, s73, s74
            s_lshl_b32 s73, s73, 2
            s_and_b32 s74, s2, 3
            s_add_u32 s73, s73, s74
            s_lshl_b32 s73, s73, 13
            s_add_u32 s73, s73, {FL_OFF}
            s_and_b32 s74, s2, 32
            s_lshl_b32 s74, s74, 7
            s_add_u32 s73, s73, s74
            s_and_b32 s74, s{S_WAVE}, 3
            s_lshl_b32 s74, s74, 10
            s_add_u32 s{S_FH}, s73, s74
            s_and_b32 s73, s{S_WAVE}, 1
            s_lshl_b32 s73, s73, 5
            s_and_b32 s74, s{S_WAVE}, 2
            s_lshl_b32 s74, s74, 11
            s_or_b32 s73, s73, s74
            s_and_b32 s74, s{S_WAVE}, 4
            s_lshl_b32 s74, s74, 9
            s_or_b32 s{S_MW}, s73, s74
            s_mul_i32 s73, s{S_WAVE}, 86
            s_lshr_b32 s73, s73, 8
            s_mul_i32 s74, s73, 3
            s_sub_u32 s74, s{S_WAVE}, s74
            s_lshl_b32 s74, s74, 9
            s_lshl_b32 s73, s73, 2
            s_and_b32 s75, s2, 3
            s_add_u32 s73, s73, s75
            s_lshr_b32 s75, s2, 2
            s_lshl_b32 s75, s75, 3
            s_add_u32 s73, s73, s75
            s_lshl_b32 s73, s73, 11
            s_add_u32 s73, s73, s74
            s_add_u32 s73, s73, {EX8_OFF}
            s_cmp_lt_u32 s{S_WAVE}, 6
            s_cselect_b32 s{S_E8P}, s73, s{S_OOB}
            s_mov_b32 s{S_L2E}, {f2u(1.4426950408889634):#x}
            s_mov_b32 s{S_EPS}, {f2u(1e-6):#x}
            s_mov_b32 s{S_M4}, 0x00040004
            s_mov_b32 s{S_M4+1}, 0x00040004
        """)
    P.ext(ts('setup' if not cfg.get('tsp') else '@setup'))
    GP = cfg.get('gpro', -1)
    for k in range(1, max(PS, NPRE) + 1):
        if k == GP:
            for g_ in range(4): P.ext(gdma(g_ >> 1, g_ & 1))
        if NP0 <= k < NPRE: P.ext(dma(k))
        if PS0 <= k + 1 < PS:
            P.ext(sdma(k + 1, 0)); P.ext(sdma(k + 1, 1))
    P.ext(ts('issued' if not cfg.get('tsp') else '@issued'))
    for p in range(2):
        P.ext([xread(p, 0), xread(p, 1)])
    if cfg.get('tsp'): P.ext(ts('@x01'))

    base = {r: 0 for r in (V_TR, V_TR+1, V_TR+2, V_TR+3, V_LB)}
    def lds_addr(reg, addr, span):
        fx = []
        if not (0 <= addr - base[reg] and addr + span - base[reg] <= 65535):
            nb = min((addr // SLOT) * SLOT, LDS_BYTES - 65536)
            fx.append(I(f'v_add_u32 v{reg}, {(nb - base[reg]) & 0xffffffff:#x}, v{reg}'))
            base[reg] = nb
        return fx, addr - base[reg]
    xq = [V_XF + 4 * k for k in range(36)]
    acc1 = U(0) + U(2) + U(3) + [xq[34], xq[35]]
    def ACC2(lt, mt):
        if lt >= 2: return acc1[(lt - 2) * 2 + mt]
        return acc1[(lt * 2 + mt) * 2 + 1]
    aq = xq[:34] + U(1) + U(4)[:2]
    def AF(sp, mt): return aq[sp * 2 + mt]
    V_AL = U(4)[2]; VSP = U(4)[3]
    V_L8 = V_TH
    T0 = [ACC(0, 0, 0), ACC(0, 0, 1)]; T1 = [ACC(0, 1, 0), ACC(0, 1, 1)]
    T2 = [ACC(1, 0, 0), ACC(1, 0, 1)]; T3 = [ACC(1, 1, 0), ACC(1, 1, 1)]

    frags = []; steps = []
    def add_step(nm, fl):
        for f in fl:
            f['step'] = len(steps); frags.append(f)
        steps.append(nm)
    def Lf(line, ks, tiles):
        fl = []
        for (T, u) in tiles:
            for mat in range(2):
                mf_ = [(ACC(u, mat, mt), XF(ks, mt), False, ks == 0) for mt in range(2)]
                if line == 0: fl.append(dict(item=IT_L0 + ks, kind='tr', reg=V_TR + T, off=mat * 4096, mf=mf_))
                else: fl.append(dict(item=L1it(T >> 1, ks >> 1), kind='tr', reg=V_TH + (T & 1), off=mat * 4096 + (ks & 1) * 2048, mode='h', mf=mf_))
        return fl
    def Cf(item, acc, ones, first, mode):
        return [dict(item=item, kind='tr', reg=V_LB, off=0, mode=mode, mf=[(acc, ones, True, first)])]
    def Kf(u, nt, off, swap=False, zero=False):
        return [dict(item=None, kind='k', mode='k', off=off, mf=[(ACC(u, nt, mt), BN[mt], swap, zero) for mt in range(2)])]
    def Ku(u, kb0, kb1, o, zero=False): return Kf(u, 0, kb0 * 1024 + o, False, zero) + Kf(u, 1, kb1 * 1024 + o, False, zero)
    K1 = cfg.get('k1', 15); K3 = cfg.get('k3', 8); K4 = cfg.get('k4', 8)
    for ks in range(K1): add_step(('S1', ks), Cf(ks, CSA, ONES, ks == 0, 'c0') + Lf(0, ks, [(0, 0), (1, 1), (2, 2), (3, 3)]))
    for u in range(4):
        for ks in range(K1, 18):
            fl = Lf(0, ks, [(u, u)])
            if u == 0 and ks == K1:
                cl = [f for k2 in range(K1, 18) for f in Cf(k2, CSA, ONES, False, 'c0')]
                fl = cl[:1] + fl[:1] + cl[1:2] + fl[1:] + cl[2:]
            if u == 1 and ks == K1 + 1: fl += Ku(0, 0, 4, 768)
            if u >= 1 and ks == 17: fl += Ku(u, u, 4 + u, 768)
            add_step((f'S1{"abcd"[u]}', ks), fl)
    for ks in range(18):
        add_step(('S2', ks), [dict(item=IT_Q + ((2*ks+mat) >> 3), kind='b', mode='b', off=((2*ks+mat) & 7) * 1024,
                                   mf=[(ACC(4, mat, mt), XF(ks, mt), False, ks == 0) for mt in range(2)]) for mat in range(2)])
    for ks in range(18):
        add_step(('S3', ks), [dict(item=IT_X + ((4*ks+T) >> 3), kind='b', mode='b', off=((4*ks+T) & 7) * 1024,
                                   mf=[(ACC(T >> 1, T & 1, mt), XF(ks, mt), T != 0, ks == 0) for mt in range(2)]) for T in range(4)]
                 + (Ku(4, 0, 1, 0) if ks == 0 else [])
                 + ([f for T in range(4) for f in Kf(T >> 1, T & 1, (2 + T) * 1024, T != 0)] if ks == 17 else []))
    def csched(K):
        return {1 + n: n for n in range(9)}, 10
    cma, CA_END = csched(K3); cmb_, CB_END = csched(K4)
    ca = lambda ks: Cf(L1it(0, cma[ks]), CSA, ONES, ks == 1, 'ch') if ks in cma else []
    cb = lambda ks: Cf(L1it(1, cmb_[ks]), T1[1], T1[0], ks == 1, 'ch') if ks in cmb_ else []
    for ks in range(K3): add_step(('S4', ks), Lf(1, ks, [(0, 2), (1, 3)]) + ca(ks))
    KPS = cfg.get('kp', 14); KOS = cfg.get('ko', 12)
    for ks in range(K3, 18): add_step(('S4a', ks), ca(ks) + Lf(1, ks, [(0, 2)]) + (Ku(2, 0, 2, 768) + Ku(3, 1, 3, 768) if ks == KPS + 1 else []))
    for ks in range(K3, 18): add_step(('S4b', ks), Lf(1, ks, [(1, 3)]))
    for ks in range(K4): add_step(('S4c', ks), cb(ks) + Lf(1, ks, [(2, 4), (3, 1)]))
    for ks in range(K4, 18): add_step(('S4d', ks), cb(ks) + Lf(1, ks, [(2, 4)]) + (Ku(4, 4, 6, 768) + Ku(1, 5, 7, 768) if ks == KOS + 1 else []))
    for ks in range(K4, 18): add_step(('S4e', ks), Lf(1, ks, [(3, 1)]))
    def P2f(sp, lts, blk0):
        fl = []
        for k, lt in enumerate(lts):
            blk = blk0 + k
            mf_ = [(ACC2(lt, mt), AF(sp, mt), False, sp == 0) for mt in range(2)] if sp < 20 else [(ACC2(lt, 0), V_AL, False, False)]
            fl.append(dict(item=IT_W2 + (blk >> 2), kind='b', mode='b2', off=(blk & 3) * 1024, mf=mf_))
        return fl
    for sp in range(21): add_step(('P1', sp), P2f(sp, range(2, 9), sp * 7))
    for lt in range(2):
        for sp in range(21): add_step(('P2' + 'ab'[lt], sp), P2f(sp, [lt], 148 + lt * 20 + sp if sp < 20 else 188 + lt))
    NF = len(frags)
    SO = {s: i for i, s in enumerate(steps)}
    first_frag = {}
    for i, f in enumerate(frags): first_frag.setdefault(f['step'], i)
    events = {}; pending = {}
    st.lbmode = 'c0'; st.hinit = False
    def reads(i):
        f = frags[i]; w = V_WF + (i % 4) * 4
        slot = slot_of(f['item']) * SLOT if f['item'] is not None else MISC
        pre = []
        mode = f.get('mode')
        if mode == 'h' and not st.hinit:
            assert 'trh' in events
            st.hinit = True; base[V_TH] = 0; base[V_TH + 1] = 0
        if mode in ('b', 'b2', 'ch', 'k') and st.lbmode != mode:
            st.lbmode = mode
            if mode == 'b':
                pre = [I(f'v_mov_b32 v{V_LB}, v{V_L16}')]; base[V_LB] = 0
            elif mode == 'k':
                pre = [I(f'v_bfe_u32 v{V_LB}, v{V_L16}, 1, 8')]; base[V_LB] = 0
            elif mode == 'b2':
                pre = [I(f's_and_b32 s{S_RX}, s{S_W1K}, 0x1000'), I(f'v_or_b32 v{V_LB}, s{S_RX}, v{V_L16}')]; base[V_LB] = 0
            else:
                pre = [I(f'v_xor_b32 v{V_LB}, s{S_MW}, v{V_TH}')]; base[V_LB] = base[V_TH]
        if f['kind'] == 'tr':
            fx, off = lds_addr(f['reg'], slot + f['off'], 2048)
            return (pre + fx + [I(f'ds_read_b64_tr_b16 {vr(w, 2)}, v{f["reg"]} offset:{off}', tok=f'rd{i}a')],
                    [I(f'ds_read_b64_tr_b16 {vr(w + 2, 2)}, v{f["reg"]} offset:{off + 1024}', tok=f'rd{i}b')])
        fx, off = lds_addr(V_LB, slot + f['off'], 1024)
        if f['kind'] == 'k':
            return (pre + fx + [I(f'ds_read_b64 {vr(w, 2)}, v{V_LB} offset:{off}', tok=f'rd{i}a')], [])
        return (pre + fx + [I(f'ds_read_b128 {vr(w, 4)}, v{V_LB} offset:{off}', tok=f'rd{i}a')], [])
    def rtoks(i):
        return [f'rd{i}a', f'rd{i}b'] if frags[i]['kind'] == 'tr' else [f'rd{i}a']
    def mfmas(i):
        w = V_WF + (i % 4) * 4; L = []
        for (d, x, swap, zero) in frags[i]['mf']:
            a, b = (x, w) if swap else (w, x)
            if frags[i]['kind'] == 'k': L.append(I(f'v_mfma_f32_16x16x16_bf16 {vr(d,4)}, {vr(a,2)}, {vr(b,2)}, {"0" if zero else vr(d,4)}'))
            else: L.append(I(f'v_mfma_f32_16x16x32_bf16 {vr(d,4)}, {vr(a,4)}, {vr(b,4)}, {"0" if zero else vr(d,4)}'))
        return L
    def mf(d, a, b): return I(f'v_mfma_f32_16x16x32_bf16 {vr(d,4)}, {vr(a,4)}, {vr(b,4)}, 0')

    HST = cfg.get('hst', 'sc1')
    t4 = [V_T + r for r in range(4)]
    q2, q3 = U(4)[2], U(4)[3]
    def gelu_quad(g, u, dst, mt):
        t = t4; L = []
        for r in range(4): L.append(I(f'v_mul_f32 v{t[r]}, v{g+r}, v{g+r}'))
        for r in range(4): L.append(I(f'v_fma_f32 v{t[r]}, v{t[r]}, v{C1[mt]}, v{C0[mt]}'))
        for r in range(4): L.append(I(f'v_mul_f32 v{t[r]}, v{g+r}, v{t[r]}'))
        for r in range(4): L.append(I(f'v_exp_f32 v{t[r]}, v{t[r]}'))
        for r in range(4): L.append(I(f'v_mul_f32 v{u+r}, v{g+r}, v{u+r}'))
        for r in range(4): L.append(I(f'v_add_f32 v{t[r]}, 1.0, v{t[r]}'))
        for r in range(4): L.append(I(f'v_rcp_f32 v{t[r]}, v{t[r]}'))
        for r in range(4): L.append(I(f'v_mul_f32 v{u+r}, v{u+r}, v{t[r]}'))
        L.append(I(f'v_cvt_pk_bf16_f32 v{dst}, v{u}, v{u+1}'))
        L.append(I(f'v_cvt_pk_bf16_f32 v{dst+1}, v{u+2}, v{u+3}'))
        return L
    def hstore(reg, n, mt, t, extra=0, va=None):
        s = ftmp(); off = t * 1024 + extra
        op = 'buffer_store_dwordx4' if n == 4 else 'buffer_store_dwordx2'
        return [I(f's_add_u32 s{s}, s{S_A2 if not cfg.get("fakeH") else S_OOB}, {mt * A2_MT + (off & ~4095)}'),
                I(f'{op} {vr(reg, n)}, v{V_L16 if n == 4 else va}, {WS}, s{s} offen offset:{off & 4095} {HST}', tok=f'h{t}_{mt}_{extra}')]
    def E_first(u):
        L = []
        for mt in range(2): L += gelu_quad(ACC(u, 0, mt), ACC(u, 1, mt), ACC(u, 0, mt), mt)
        return L
    def E_second(u0, u1, t):
        L = []
        for mt in range(2):
            L += gelu_quad(ACC(u1, 0, mt), ACC(u1, 1, mt), ACC(u0, 0, mt) + 2, mt)
            if t == 3: L += [I(f'v_min_u32 v{ACC(u0, 0, mt) + r}, -2, v{ACC(u0, 0, mt) + r}') for r in range(4)]
            L += hstore(ACC(u0, 0, mt), 4, mt, t)
        return L
    def E_quarter(u):
        L = []
        for mt in range(2):
            L += gelu_quad(ACC(u, 0, mt), ACC(u, 1, mt), ACC(u, 0, 0) + 2 * mt, mt)
        a = ACC(u, 1, 0)
        L += [I(f's_add_u32 s{S_CNT}, s{S_W1K}, {slot_of(IT_PK) * SLOT}'), I(f'v_add_u32 v{a}, s{S_CNT}, v{V_L16}'),
              I(f'ds_write_b128 v{a}, {vr(ACC(u, 0, 0), 4)}')]
        return L
    def cswrite(c, e, t):
        L = [I(f'v_cvt_pk_bf16_f32 v{t}, v{c}, v{c}'), I(f'v_and_b32 v{t}, 0xffff0000, v{t}'), I(f'v_sub_f32 v{t}, v{c}, v{t}'),
             I(f'v_cvt_pk_bf16_f32 v{t}, v{c}, v{t}'), I(f'v_mov_b32 v{t+1}, 0')]
        if e < 2:
            L += [I(f'v_bfe_u32 v{t+2}, v{V_L16}, 1, 8'), I(f's_add_u32 s72, s{S_W1K}, {MISC + (768 if e == 0 else 0)}')]
            if e == 0: L += [I(f'v_bfe_i32 v{t+3}, v{V_L16}, 8, 1'), I(f'v_bfi_b32 v{t}, v{t+3}, 0, v{t}')]
        else:
            L += [I(f'v_bfe_u32 v{t+2}, v{V_L16}, 1, 7'), I(f's_and_b32 s72, s{S_W1K}, 0xc00'), I(f's_lshr_b32 s83, s{S_W1K}, 12'),
                  I('s_lshl_b32 s83, s83, 7'), I(f's_add_u32 s72, s72, s83'), I(f's_add_u32 s72, s72, {MISC + 768 + (e - 2) * 4096}')]
        L += [I(f'v_add_u32 v{t+2}, s72, v{t+2}'), I(f'ds_write_b64 v{t+2}, {vr(t,2)}', tok=f'cs{e}')]
        return L
    def phi_quad(q):
        t = t4; L = []
        for r in range(4): L.append(I(f'v_mul_f32 v{t[r]}, s{S_L2E}, v{q+r}'))
        for r in range(4): L.append(I(f'v_exp_f32 v{t[r]}, v{t[r]} clamp'))
        for r in range(4): L.append(I(f'v_max_f32 v{q+r}, s{S_EPS}, v{q+r}'))
        for r in range(4): L.append(I(f'v_add_f32 v{q+r}, v{q+r}, v{t[r]}'))
        return L
    def pack2(dst, q0, q1):
        return [I(f'v_cvt_pk_bf16_f32 v{dst}, v{q0}, v{q0+1}'), I(f'v_cvt_pk_bf16_f32 v{dst+1}, v{q0+2}, v{q0+3}'),
                I(f'v_cvt_pk_bf16_f32 v{dst+2}, v{q1}, v{q1+1}'), I(f'v_cvt_pk_bf16_f32 v{dst+3}, v{q1+2}, v{q1+3}')]
    def sgroups(txt):
        L = []
        lines = [l.strip() for l in txt.strip().split('\n') if l.strip()]
        k = 0
        while k < len(lines):
            if lines[k].startswith('s_cmp') or lines[k].startswith('s_bitcmp'):
                g = [I(lines[k])]; k += 1
                while k < len(lines) and lines[k].startswith('s_cselect'): g.append(I(lines[k])); k += 1
                L.append(g)
            else:
                L.append(I(lines[k])); k += 1
        return L
    def setflag(sreg, add, toks, VA, VB):
        t = ftmp()
        return [I(f'v_lshlrev_b32 v{VA}, 21, v{V_L16}'), I(f'v_and_b32 v{VA}, s{S_OOB}, v{VA}'),
                I(f'v_lshrrev_b32 v{VB}, 2, v{V_L16}'), I(f'v_or_b32 v{VA}, v{VA}, v{VB}'), I(f'v_mov_b32 v{VB}, s{S_NON}'),
                I(f's_add_u32 s{t}, s{sreg}, {add}'),
                I(f'buffer_store_dword v{VB}, v{VA}, {WS}, s{t} offen sc1', waits=toks)]
    def poll(spt, bits, ev, w0, bar, between, VA, VB, S_PT=S_PT):
        addr = [I(f'v_lshrrev_b32 v{VA}, {10 - bits}, v{V_L16}'), I(f'v_lshlrev_b32 v{VA}, 7, v{VA}')]
        loads = lambda: [I(f'buffer_load_dword v{VB}, v{VA}, {WS}, s{S_PT} offen sc1')]
        check = lambda: [I(f'v_cmp_ne_u32 vcc, s{S_NON}, v{VB}')]
        return addr + spt + loads() + between + retry_group(loads, check, w0) + [Ev(ev, bar)]
    def htouch(t, nt, toks, VA, VB):
        if not cfg.get('ht', 0): return []
        s_ = ftmp()
        sh = 5 if nt == 2 else 6
        x = I(f'buffer_load_dword v{VB}, v{VA}, {WS}, s{s_} offen sc1', waits=toks)
        return [I(f'v_bfe_u32 v{VA}, v{V_L16}, {sh}, {9 - sh}'), I(f'v_lshrrev_b32 v{VB}, 9, v{V_L16}'), I(f'v_mul_u32_u24 v{VB}, {A2_MT}, v{VB}'),
                I(f'v_lshl_add_u32 v{VA}, v{VA}, 7, v{VB}'), I(f's_add_u32 s{s_}, s{S_A2}, {t * 1024}'), x]
    def w2touch(VA, VB):
        if not cfg.get('wt', 0): return []
        return [Need('w2ok'), Need('setup2'), [I('s_lshr_b32 s73, s2, 5'), I(f's_lshl3_add_u32 s73, s73, s{S_WAVE}'), I(f's_mul_i32 s73, s73, {48*128}')],
                [I(f's_and_b32 s74, s{S_W2K}, 0xfffff000'), I('s_add_u32 s73, s73, s74')],
                I(f'v_min_u32 v{VA}, {47*16}, v{V_L16}'), I(f'v_lshlrev_b32 v{VA}, 3, v{VA}'),
                I(f'buffer_load_dword v{VB}, v{VA}, {WS}, s73 offen sc1')]
    def pollh(k, ev, between, VA, VB):
        return poll([I(f's_add_u32 s{S_PT}, s{S_FH}, {k*HS}')], 3, ev, False, False, between, VA, VB)
    def F_nonce(between):
        X0 = XF(17, 0); a = XF(16, 1); n_ = a + 1; q3 = XF(16, 0)
        loads = lambda: [I(f'buffer_load_dword v{n_}, off, s[{S_OUT}:{S_OUT+3}], 0 sc1')]
        check = lambda: [I(f'v_cmp_eq_u32 vcc, 0, v{n_}')]
        adr = lambda: [I(f'v_cmp_gt_u32 vcc, 0x80, v{V_L16}'), I(f'v_mov_b32 v{a}, s{S_OOB}'), Delay(1), I(f'v_cndmask_b32 v{a}, v{a}, v{V_L16}, vcc')]
        L = [I(f'buffer_load_dwordx4 {vr(X0,4)}, v{V_L16}, {XS}, s{S_RS} offen'),
             I(f'v_lshlrev_b32 v{a}, 21, v{V_L16}'), I(f'v_and_b32 v{a}, s{S_OOB}, v{a}'), I(f'v_lshrrev_b32 v{a+2}, 2, v{V_L16}'), I(f'v_or_b32 v{a}, v{a}, v{a+2}'),
             I(f'buffer_load_dword v{X0+4}, v{a}, {XS}, s{S_RS} offen offset:1024')] + loads() + adr()
        L += between + retry_group(loads, check) + [I(f'v_readfirstlane_b32 s{S_NON}, v{n_}'), Ev('non')] + [
              I(f's_mov_b32 s{S_OUT}, s{S_OP}'), I(f's_mov_b32 s{S_OUT+1}, s{S_OP+1}'), I(f's_mov_b32 s{S_OUT+2}, 2359296')]
        S_, Q_, t0, t1 = q3, q3 + 2, a + 2, a + 3
        for r in range(5):
            L += [I(f'v_lshlrev_b32 v{t0}, 16, v{X0+r}'), I(f'v_and_b32 v{t1}, 0xffff0000, v{X0+r}')]
            if r == 0: L += [I(f'v_add_f32 v{S_}, v{t0}, v{t1}'), I(f'v_mul_f32 v{Q_}, v{t0}, v{t0}'), I(f'v_fmac_f32 v{Q_}, v{t1}, v{t1}')]
            else: L += [I(f'v_add_f32 v{S_}, v{S_}, v{t0}'), I(f'v_fmac_f32 v{Q_}, v{t0}, v{t0}'), I(f'v_add_f32 v{S_}, v{S_}, v{t1}'), I(f'v_fmac_f32 v{Q_}, v{t1}, v{t1}')]
        L += [Ev('rowdone'), Delay(1)]
        for m_ in ['row_shr:1 row_mask:0xf bank_mask:0xf bound_ctrl:0', 'row_shr:2 row_mask:0xf bank_mask:0xf bound_ctrl:0',
                   'row_shr:4 row_mask:0xf bank_mask:0xf bound_ctrl:0', 'row_shr:8 row_mask:0xf bank_mask:0xf bound_ctrl:0',
                   'row_bcast:15 row_mask:0xa bank_mask:0xf', 'row_bcast:31 row_mask:0xc bank_mask:0xf']:
            L += [I(f'v_add_f32_dpp v{k}, v{k}, v{k} {m_}') for k in (S_, Q_)]
        L += IL(f"""
        v_readlane_b32 s30, v{S_}, 63
        v_readlane_b32 s31, v{Q_}, 63
        v_mov_b32 v{t0}, {f2u(1.0/576.0):#x}
        v_mov_b32 v{q3+1}, v{n_}
        v_mul_f32 v{S_}, s30, v{t0}
        v_mul_f32 v{Q_}, s31, v{t0}
        v_fma_f32 v{Q_}, -v{S_}, v{S_}, v{Q_}
        v_max_f32 v{Q_}, 0, v{Q_}
        v_cvt_pk_bf16_f32 v{t0}, -v{S_}, v{Q_}
        v_lshlrev_b32 v{S_}, 16, v{t0}
        v_and_b32 v{Q_}, 0xffff0000, v{t0}
        v_add_f32 v{Q_}, {f2u(1e-5):#x}, v{Q_}
        v_cvt_pk_bf16_f32 v{Q_}, v{Q_}, v{Q_}
        v_and_b32 v{Q_}, 0xffff0000, v{Q_}
        v_sqrt_f32 v{Q_}, v{Q_}
        v_cvt_pk_bf16_f32 v{Q_}, v{Q_}, v{Q_}
        v_and_b32 v{Q_}, 0xffff0000, v{Q_}
        v_rcp_f32 v{Q_}, v{Q_}
        v_mov_b32 v{q3+3}, v{n_}
        buffer_store_dwordx4 {vr(q3,4)}, v{a}, {WS}, s{S_PT} offen sc1
        """)
        return L + [Ev('nonce')]
    def F_setup2():
        C = 71
        L = sgroups(f"""
            s_lshr_b32 s74, s2, 3
            s_and_b32 s73, s74, 3
            s_lshr_b32 s74, s74, 2
            s_and_b32 s75, s2, 4
            s_lshl_b32 s75, s75, 1
            s_add_u32 s74, s74, s75
            s_and_b32 s75, s{S_WAVE}, 3
            s_lshr_b32 s76, s{S_WAVE}, 2
            s_and_b32 s78, s2, 3
            s_lshl_b32 s77, s74, 3
            s_lshl_b32 s79, s75, 1
            s_add_u32 s77, s77, s79
            s_add_u32 s77, s77, s76
            s_lshl_b32 s{S_STK}, s77, 11
            s_lshl_b32 s79, s78, 3
            s_lshl_b32 s{C}, s76, 2
            s_add_u32 s79, s79, s{C}
            s_mul_i32 s79, s79, 5120
            s_add_u32 s79, s79, {A2_OFF}
            s_mul_i32 s{S_A}, s77, {A2_MT}
            s_add_u32 s{S_A}, s{S_A}, s79
            s_xor_b32 s{C}, s77, 1
            s_mul_i32 s{S_A+1}, s{C}, {A2_MT}
            s_add_u32 s{S_A+1}, s{S_A+1}, s79
            s_lshl_b32 s79, s78, 2
            s_add_u32 s79, s79, s73
            s_lshl_b32 s79, s79, 1
            s_add_u32 s79, s79, s76
            s_mul_i32 s79, s79, {W2_S}
            s_lshl_b32 s{C}, s75, 10
            s_add_u32 s79, s79, s{C}
            s_add_u32 s{S_W2}, s79, {W2_OFF}
            s_mul_i32 s79, s76, {W2_S}
            s_sub_u32 s{S_W2K}, s{S_W2}, s79
            s_lshr_b32 s79, s77, 1
            s_lshl_b32 s79, s79, 2
            s_add_u32 s79, s79, s78
            s_lshl_b32 s79, s79, 10
            s_lshl_b32 s{C}, s76, 6
            s_add_u32 s79, s79, s{C}
            s_add_u32 s{S_AL}, s79, {A2L_OFF}
            s_mul_i32 s79, s77, 18432
            s_mul_i32 s{C}, s73, 288
            s_add_u32 s79, s79, s{C}
            s_lshl_b32 s{C}, s78, 6
            s_add_u32 s{S_O}, s79, s{C}
            s_add_u32 s{S_O8}, s79, 256
        """)
        for p in range(1, 4):
            L += sgroups(f"""
            s_add_u32 s79, s78, {p}
            s_and_b32 s79, s79, 3
            s_sub_u32 s79, s79, s78
            s_mul_i32 s79, s79, 24576
            s_add_u32 s79, s79, s{S_EX}
            s_add_u32 s{S_EXS+p-1}, s79, {(3-p)*1024}
            """)
        L += sgroups(f"""
            s_lshr_b32 s79, s2, 2
            s_lshl_b32 s79, s79, 3
            s_add_u32 s79, s79, s{S_WAVE}
            s_lshl_b32 s79, s79, 11
            s_add_u32 s79, s79, {EX8_OFF}
            s_sub_u32 s{C}, s78, s75
            s_sub_u32 s{C}, s{C}, 1
            s_and_b32 s{C}, s{C}, 3
            s_lshl_b32 s{C}, s{C}, 9
            s_add_u32 s79, s79, s{C}
            s_cmp_eq_u32 s78, s75
            s_cselect_b32 s{S_E8S}, s{S_OOB}, s79
            s_cselect_b32 s{S_O8}, s{S_O8}, s{S_OOB}
        """)
        return L + [Ev('setup2')]
    def F_wx(i):
        q = U(4)[3]; a = U(4)[2] + 2
        L = [I(f'v_bfe_u32 v{a}, v{V_L16}, 4, 2'), I(f'v_lshlrev_b32 v{a}, s{S_GP+3+i}, v{a}'),
             I(f'v_and_b32 v{a+1}, 0x3c0, v{V_L16}'), I(f'v_add3_u32 v{a}, v{a}, v{a+1}, s{S_W1K}'),
             I(f'v_add_u32 v{a+1}, {GL[i][1]}, v{a}'), I(f'v_add_u32 v{a}, {GL[i][0]}, v{a}')]
        for hh in range(2):
            L.append(I(f'ds_read_b64_tr_b16 {vr(q+2*hh,2)}, v{a+hh}', waits=[f'sg{i}_0', f'sg{i}_1']))
        L += [Delay(3),
              I(f'v_lshlrev_b32 v{a}, 21, v{V_L16}'), I(f'v_and_b32 v{a}, s{S_OOB}, v{a}'),
              I(f'v_lshrrev_b32 v{a+1}, 2, v{V_L16}'), I(f'v_or_b32 v{a}, v{a}, v{a+1}'),
              mf(V_T, ONES, q),
              I(f'buffer_store_dwordx4 {vr(q,4)}, v{V_L16}, {WS}, s{S_WXD+i} offen sc1', tok=f'wx{i}'),
              I(f's_lshr_b32 s{S_CNT}, s{S_WXD+i}, 3'), I(f's_add_u32 s{S_CNT}, s{S_CNT}, {CSP_OFF - WX_OFF // 8}'),
              I(f'buffer_store_dword v{V_T}, v{a}, {WS}, s{S_CNT} offen sc1', tok=f'wc{i}'), Ev(f'wxst{i}')]
        return L
    def F_csx():
        q = U(4)[0]; d = U(4)[1]
        L = sgroups(f"""
            s_add_u32 s30, s{S_WAVE}, 38
            s_cmp_lt_u32 s{S_WAVE}, 2
            s_cselect_b32 s30, s{S_WAVE}, s30
            s_cselect_b32 s31, 8, 9
            s_mul_i32 s{S_CNT}, s{S_J}, 112
            s_add_u32 s30, s30, s{S_CNT}
            s_lshl_b32 s30, s30, 7
            s_add_u32 s{S_CNT}, s30, {CSP_OFF}
        """)
        L += [I(f'v_lshrrev_b32 v{q}, 8, v{V_L16}'), I(f'v_cmp_gt_u32 vcc, 2, v{q}'), I(f'v_lshlrev_b32 v{q}, s31, v{q}'),
              I(f'v_bfe_u32 v{q+1}, v{V_L16}, 4, 4'), I(f'v_lshl_add_u32 v{q}, v{q+1}, 2, v{q}'), I(f'v_mov_b32 v{q+1}, s{S_OOB}'),
              I(f'v_cndmask_b32 v{q+1}, v{q+1}, v{q}, vcc'), I('s_lshl_b32 s31, 4, s31')]
        for i in range(5):
            L.append(I(f'buffer_load_dword v{d+i if i < 4 else q+2}, v{q if i < 4 else q+1}, {WS}, s{S_CNT} offen sc1'))
            if i < 4: L.append(I(f's_add_u32 s{S_CNT}, s{S_CNT}, s31'))
        return L
    def F_csx2():
        q = U(4)[0]; d = U(4)[1]
        L = [I(f'v_add_f32 v{d}, v{d}, v{d+1}'), I(f'v_add_f32 v{d+2}, v{d+2}, v{d+3}'), I(f'v_add_f32 v{d}, v{d}, v{q+2}'), I(f'v_add_f32 v{d}, v{d}, v{d+2}')]
        L += [I(f'v_mov_b32 v{d+1}, v{d}'), Delay(1), I(f'v_permlane32_swap_b32 v{d}, v{d+1}'), I(f'v_add_f32 v{d}, v{d}, v{d+1}')]
        return L + cswrite(d, 1, q)
    def F_stats(between):
        q = q2; a = V_T
        loads = lambda: [I(f'buffer_load_dwordx4 {vr(q,4)}, v{a}, {WS}, s{S_PT} offen sc1')]
        check = lambda: [I(f'v_xor_b32 v{q+1}, s{S_NON}, v{q+1}'), I(f'v_xor_b32 v{q+3}, s{S_NON}, v{q+3}'),
                         I(f'v_or_b32 v{q+1}, v{q+1}, v{q+3}'), I(f'v_cmp_ne_u32 vcc, 0, v{q+1}')]
        L = [I(f'v_lshrrev_b32 v{a}, 5, v{V_L16}'), I(f'v_lshlrev_b32 v{a}, 7, v{a}'),
             I(f's_lshl_b32 s{S_PT}, s{S_RB}, 3'), I(f's_add_u32 s{S_PT}, s{S_PT}, s{S_WAVE}'), I(f's_lshl_b32 s{S_PT}, s{S_PT}, 12')]
        L += loads() + between + retry_group(loads, check)
        L += [I(f'v_lshrrev_b32 v{a}, 5, v{a}'), I(f's_add_u32 s{S_CNT}, s{S_W1K}, {MISC}'), I(f'v_add_u32 v{a}, s{S_CNT}, v{a}'),
              I(f'v_bfe_u32 v{q+1}, v{V_L16}, 4, 4'), I(f'v_lshl_add_u32 v{q+1}, v{q+1}, 2, s{S_CNT}'),
              I(f'ds_write_b32 v{a}, v{q+2} offset:512'), I(f'ds_write_b32 v{a}, v{q} offset:640')]
        for mt in range(2):
            L += [I(f'ds_read_b32 v{q3+2*mt}, v{q+1} offset:{640 + 64*mt}'), I(f'ds_read_b32 v{q3+2*mt+1}, v{q+1} offset:{512 + 64*mt}')]
        return L
    def F_stats2():
        L = [Need('xdone'), I(f'v_cmp_gt_u32 vcc, 0x200, v{V_L16}')]
        for mt in range(2):
            L += [I(f'v_cvt_pk_bf16_f32 v{q3+2*mt}, v{q3+2*mt}, v{q3+2*mt}'), I(f'v_mul_f32 v{q3+2*mt+1}, {f2u(K0C):#x}, v{q3+2*mt+1}')]
        for mt in range(2):
            L += [I(f'v_cndmask_b32 v{BN[mt]}, 0, v{q3+2*mt}, vcc'), I(f'v_and_b32 v{C0[mt]}, 0xffffff7f, v{q3+2*mt+1}')]
        return L + [Ev('stats')]
    def F_c1():
        L = [I(f'v_mul_f32 v{C1[mt]}, v{C0[mt]}, v{C0[mt]}') for mt in range(2)]
        L += [I(f'v_mul_f32 v{C1[mt]}, {f2u(0.044715 / (K0C * K0C)):#x}, v{C1[mt]}') for mt in range(2)]
        L += [I(f'v_mul_f32 v{C1[mt]}, v{C1[mt]}, v{C0[mt]}') for mt in range(2)]
        return L
    def F_rpat():
        a, b = q2 + 1, q2 + 2
        return [I(f'v_lshrrev_b32 v{a}, 3, v{V_L16}'), I(f'v_xor_b32 v{a}, v{a}, v{V_L16}'), I(f'v_and_b32 v{a}, 0x60, v{a}'),
                I(f'v_and_or_b32 v{a}, v{V_L16}, 16, v{a}'), I(f'v_lshrrev_b32 v{b}, 8, v{V_L16}'), I(f'v_mad_u32_u24 v{a}, v{b}, s{S_LEFT}, v{a}'),
                I(f'v_lshrrev_b32 v{b}, 7, v{V_L16}'), I(f'v_mul_u32_u24 v{b}, 1152, v{b}'), I(f'v_add_u32 v{a}, v{a}, v{b}'), Ev('rpat')]
    NT = cfg.get('nt', 9)
    def F_tpat():
        a, b, c = 7, V_T, V_T + 1; n = 18 // NT
        return [[I('s_lshl_b32 s30, s2, 2'), I(f's_and_b32 s31, s{S_WAVE}, 3'), I('s_add_u32 s30, s30, s31'), I(f's_mul_i32 s30, s30, {n}')],
                I(f'v_lshrrev_b32 v{a}, 4, v{V_L16}'), I(f'v_min_u32 v{a}, {n - 1}, v{a}'), I(f'v_add_u32 v{a}, s30, v{a}'),
                I(f'v_and_b32 v{c}, 7, v{a}'), I(f'v_cmp_eq_u32 vcc, 2, v{c}'),
                I(f'v_lshrrev_b32 v{b}, 5, v{a}'), I(f'v_mul_u32_u24 v{b}, {9216 - 4096}, v{b}'), I(f'v_cndmask_b32 v{c}, 32, 1, vcc'),
                I(f'v_add_u32 v{a}, v{a}, v{c}'), I(f'v_lshl_add_u32 v{a}, v{a}, 7, v{b}'), Ev('tpat')]
    def touch(k):
        t = stmp()
        x = I(f'buffer_load_dword v7, s[{S_W}:{S_W+3}], s{t} offen lds')
        if k == NT - 1: events['tissued'] = st.gap
        st.tnext = st.gap + cfg.get('tsp_', 8)
        return [I(f's_add_u32 m0, s{S_W1K}, {6*SLOT}'), I(f's_mov_b32 s{t}, {k * (576 // NT) * 9216}'), x]
    def F_dmah(VA, VB):
        return [I(f'v_bfe_u32 v{VA}, v{V_L16}, 6, 2'), I(f'v_lshrrev_b32 v{VB}, 8, v{V_L16}'), I(f'v_lshl_add_u32 v{VA}, v{VB}, 3, v{VA}'),
                [I(f's_and_b32 s70, s{S_WAVE}, 1'), I(f's_lshl_b32 s70, s70, 2'), I(f's_and_b32 s71, s{S_WAVE}, 2'),
                 I('s_lshl_b32 s71, s71, 4'), I(f's_add_u32 s70, s70, s71')],
                I(f'v_add_u32 v{VA}, s70, v{VA}'), I(f'v_mul_u32_u24 v{VA}, 9216, v{VA}'),
                I(f'v_lshlrev_b32 v{VB}, 5, v{VB}'), I(f'v_xor_b32 v{VB}, v{VB}, v{V_L16}'), I(f'v_and_b32 v{VB}, 0x30, v{VB}'),
                [I(f's_and_b32 s70, s{S_J}, 7'), I('s_cmp_eq_u32 s70, 2'), I('s_cselect_b32 s70, 1, 32'), I(f's_add_u32 s70, s70, s{S_J}'), I('s_lshl_b32 s70, s70, 7')],
                I(f'v_add3_u32 v{V_DMA}, v{VA}, v{VB}, s70'), Ev('dmah')]
    def F_trh():
        return [I(f'v_and_b32 v{V_TH}, 0x3c0, v{V_L16}'), I(f'v_bfe_u32 v{V_TH+1}, v{V_L16}, 8, 1'), I(f'v_lshl_add_u32 v{V_TH}, v{V_TH+1}, 5, v{V_TH}'),
                I(f'v_bfe_u32 v{V_TH+1}, v{V_L16}, 4, 2'), I(f'v_lshl_add_u32 v{V_TH}, v{V_TH+1}, 3, v{V_TH}'), I(f'v_xor_b32 v{V_TH+1}, 32, v{V_TH}'), Ev('trh')]
    def F_relayout(qd, VA, VB):
        L = [I(f'v_bfe_u32 v{VA}, v{V_L16}, 6, 4'), I(f'v_lshlrev_b32 v{VA}, 7, v{VA}'), I(f'v_bfe_u32 v{VB}, v{V_L16}, 7, 2'),
             I(f'v_lshl_add_u32 v{VA}, v{VB}, 5, v{VA}'), I(f'v_bfe_u32 v{VB}, v{V_L16}, 4, 2'), I(f'v_lshl_add_u32 v{VA}, v{VB}, 3, v{VA}'),
             [I(f's_and_b32 s{S_CNT}, s{S_WAVE}, 3'), I(f's_lshl_b32 s{S_CNT}, s{S_CNT}, 5'), I(f's_and_b32 s30, s{S_W1K}, 0x1000'),
              I(f's_or_b32 s{S_CNT}, s{S_CNT}, s30')],
             I(f'v_xor_b32 v{VA}, s{S_CNT}, v{VA}'), I(f'v_add_u32 v{VA}, {6*SLOT}, v{VA}')]
        def rd(i):
            o = i * SLOT; q = qd[i % 2]
            assert slot_of(IT_R + i) == 6 + i
            return [I(f'ds_read_b64_tr_b16 {vr(q,2)}, v{VA} offset:{o}'), I(f'ds_read_b64_tr_b16 {vr(q+2,2)}, v{VA} offset:{o+2048}')]
        def sto(i): return I(f'buffer_store_dwordx4 {vr(qd[i % 2],4)}, v{V_L16}, {WS}, s{S_RDST+i if not cfg.get("fakeW") else S_OOB} offen sc1', tok=f'w2a{i}')
        return L + [Need('rland'), Need('rsetup')] + rd(0) + rd(1), [[sto(0)] + rd(2), [sto(1)], [sto(2), Ev('rdone')]]
    def F_poison(q):
        L = [I(f'v_mov_b32 v{q+r}, -1') for r in range(4)]
        S_ = [I(f'buffer_store_dwordx4 {vr(q,4)}, v{V_L16}, {WS}, s{S_EX} offen offset:{1024*p} sc1', tok=f'po{p}') for p in range(3)]
        L += [I(f'v_lshrrev_b32 v{q+4}, 1, v{V_L16}')]
        S_ += [I(f'buffer_store_dwordx2 {vr(q,2)}, v{q+4}, {WS}, s{S_E8P} offen sc1', tok='po3')]
        for mt in range(2):
            x = hstore(q, 4, mt, 3); x[1].tok = f'p3_{mt}'; S_.append(x)
        return L, S_ + [Ev('podone')]
    def E_qkv():
        qa, qb = U(4)[2], U(4)[3]
        VA, VB, VC, VD = qb, qb + 1, qb + 2, qb + 3
        L = []
        L += [I(f'v_lshrrev_b32 v{V_A}, 4, v{V_L16}'), I(f'v_and_b32 v{V_A}, 0x30, v{V_A}'), I(f's_add_u32 s{S_CNT}, s{S_W1K}, {MISC}'),
              I(f'v_add_u32 v{V_A}, s{S_CNT}, v{V_A}'),
              I(f'ds_read_b128 {vr(qa,4)}, v{V_A} offset:512'), I(f'ds_read_b128 {vr(qb,4)}, v{V_A} offset:576')]
        for mt in range(2): L.append(I(f'v_mul_f32 v{V_T+mt}, {f2u(1.0/K0C):#x}, v{C0[mt]}'))
        for mt in range(2): L += [I(f'v_mul_f32 v{T0[mt]+r}, v{T0[mt]+r}, v{V_T+mt}') for r in range(4)]
        for mt in range(2):
            for T in (T1, T2, T3):
                L += [I(f'v_mul_f32 v{T[mt]+r}, v{T[mt]+r}, v{(qa, qb)[mt]+r}') for r in range(4)]
        L += pack2(T2[0], T2[0], T2[1])
        L += pack2(T2[1], T3[0], T3[1])
        L.append(I(f'v_mov_b32 v{VB}, 0x3f803f80'))
        L.append(I(f'v_add_u32 v{VA}, s{S_W1K}, v{V_L16}'))
        for r in range(4): L.append(I(f'v_cndmask_b32 v{T2[1]+r}, v{T2[1]+r}, v{VB}, s[{S_M4}:{S_M4+1}]'))
        L += phi_quad(T1[0]) + phi_quad(T1[1]) + pack2(T1[0], T1[0], T1[1])
        L += phi_quad(T3[0]) + phi_quad(T3[1]) + pack2(T3[0], T3[0], T3[1])
        L.append(I(f'v_add_u32 v{VA}, {SCR}, v{VA}'))
        L.append(I(f'v_bfe_u32 v{VC}, v{V_L16}, 6, 2'))
        L.append(mf(T1[1], T1[0], T2[0]))
        L.append(mf(T3[1], T1[0], T2[1]))
        L.append(I(f'ds_write_b128 v{VA}, {vr(T3[0],4)}'))
        L.append(I(f'v_lshlrev_b32 v{VC}, 8, v{VC}'))
        L.append(I(f'v_bfe_u32 v{VB}, v{V_L16}, 4, 2'))
        L.append(mf(T1[0], T3[0], T2[0]))
        L.append(I(f'v_lshl_add_u32 v{VC}, v{VB}, 1, v{VC}'))
        L.append(I(f'v_add_u32 v{VC}, s{S_W1K}, v{VC}'))
        L.append(mf(T2[0], T3[0], T2[1]))
        L.append(I(f'v_add_u32 v{VC}, {SCR}, v{VC}'))
        L.append(I(f'v_bfe_u32 v{VD}, v{V_L16}, 8, 2'))
        for mt in range(2):
            L.append(I(f'ds_read_u16 v{qa+2*mt}, v{VC} offset:{4*16 + mt*8}'))
            L.append(I(f'ds_read_u16 v{qa+2*mt+1}, v{VC} offset:{5*16 + mt*8}'))
        L.append(I(f'ds_write_b128 v{VA}, {vr(T1[1],4)}', tok='kva0'))
        L.append(I(f'v_bfe_u32 v{VB}, v{V_L16}, 4, 4'))
        L.append(I(f'v_mad_u32_u24 v{VA}, v{VD}, 3, v{VB}'))
        L.append(I(f'v_lshlrev_b32 v{VA}, 4, v{VA}'))
        L.append(I(f'v_mov_b32 v{VC}, 0xc0'))
        L.append(I(f'v_cmp_gt_u32 vcc, 3, v{VB}'))
        L.append(I(f'v_lshlrev_b32 v{VB}, 4, v{VB}'))
        L.append(I(f'v_cndmask_b32 v{VA}, v{VC}, v{VA}, vcc'))
        L.append(I(f'v_add_u32 v{VB}, 0x100, v{VB}'))
        L.append(I(f's_add_u32 s{S_CNT}, s{S_W1K}, {MISC}'))
        L.append(I(f'v_cndmask_b32 v{VB}, v{VC}, v{VB}, s[{S_G2}:{S_G2+1}]'))
        L.append(I(f'v_add_u32 v{VA}, s{S_CNT}, v{VA}'))
        L.append(I(f'v_add_u32 v{VB}, s{S_CNT}, v{VB}'))
        L.append(I(f'ds_write_b128 v{VA}, {vr(T3[1],4)}', tok='kva1'))
        L.append(I(f'ds_write_b64 v{VB}, {vr(T1[0],2)}', tok='kva2'))
        L.append(I(f'ds_write_b64 v{VB}, {vr(T2[0],2)} offset:8', tok='kva3'))
        L.append(Ev('qkvdone'))
        return L
    def E_q():
        qa = U(4)[2]; L = []
        for mt in range(2):
            L += phi_quad(T0[mt])
            L += [I(f'v_cvt_pk_bf16_f32 v{T0[mt]}, v{T0[mt]}, v{T0[mt]+1}'), I(f'v_cvt_pk_bf16_f32 v{T0[mt]+1}, v{T0[mt]+2}, v{T0[mt]+3}'),
                  I(f'v_lshl_or_b32 v{T0[mt]+2}, v{qa+2*mt+1}, 16, v{qa+2*mt}'), I(f'v_mov_b32 v{T0[mt]+3}, 0')]
        return L + [Ev('qdone')]
    G = T1[0]
    def sum8(g, s):
        return [I(f'v_add_f32 v{g}, v{g}, v{g+s}'), I(f'v_add_f32 v{g+2*s}, v{g+2*s}, v{g+3*s}'), I(f'v_add_f32 v{g+4*s}, v{g+4*s}, v{g+5*s}'),
                I(f'v_add_f32 v{g+6*s}, v{g+6*s}, v{g+7*s}'), I(f'v_add_f32 v{g}, v{g}, v{g+2*s}'), I(f'v_add_f32 v{g+4*s}, v{g+4*s}, v{g+6*s}'),
                I(f'v_add_f32 v{g}, v{g}, v{g+4*s}')]
    def F_publish(between):
        VA = V_A
        L = [I(f'v_lshrrev_b32 v{VA}, 2, v{V_L16}'), I(f'v_add_u32 v{VA}, s{S_RED}, v{VA}')]
        for p in range(8): L.append(I(f'ds_read_b32 v{G+p}, v{VA} offset:{1024*p}'))
        L += between + sum8(G, 1)
        L += [I(f'v_min_u32 v{G}, -2, v{G}'), I(f'v_lshrrev_b32 v{VA}, 2, v{V_L16}'),
              I(f'buffer_store_dword v{G}, v{VA}, {WS}, s{S_KVST} offen sc1'), Ev('published')]
        L += [I(f'v_mov_b32 v{T1[0]+r}, 0x3f803f80') for r in range(4)] + [Ev('ones2')]
        return L
    G2 = XF(0, 0); VK = XF(1, 0)
    def kv_loads():
        L = []
        for p in range(8):
            if p % 3 == 0:
                t = ftmp(); L.append(I(f's_add_u32 s{t}, s{S_KVLD}, {1536*p}'))
            L.append(I(f'buffer_load_dword v{G2+p}, v{VK}, {WS}, s{t} offen offset:{1536*(p%3)} sc1'))
        return L
    def kv_check():
        return [I(f'v_max3_u32 v{VK+1}, v{G2}, v{G2+1}, v{G2+2}'), I(f'v_max3_u32 v{VK+2}, v{G2+3}, v{G2+4}, v{G2+5}'),
                I(f'v_max3_u32 v{VK+1}, v{VK+1}, v{G2+6}, v{G2+7}'), I(f'v_max_u32 v{VK+1}, v{VK+1}, v{VK+2}'), I(f'v_cmp_eq_u32 vcc, -1, v{VK+1}')]
    def F_kvload(): return [Need('w2ok'), I(f'v_lshrrev_b32 v{VK}, 2, v{V_L16}')] + kv_loads()
    def F_gather():
        g = retry_group(kv_loads, kv_check)
        L = g + sum8(G2, 1)
        L += [I(f's_lshr_b32 s{S_CNT}, s{S_W1K}, 2'), I(f's_add_u32 s{S_CNT}, s{S_CNT}, {KVS}'), I(f'v_add_u32 v{VK+1}, s{S_CNT}, v{VK}'),
              I(f'ds_write_b32 v{VK+1}, v{G2}', tok='kvb0'), Ev('gathered')]
        return L
    def F_o():
        E0, E1, P2, X_ = U(2)
        t = V_T
        L = [I(f'v_add_u32 v{t}, {KVS}, v{V_L16}'), I(f'v_bfe_u32 v{t+1}, v{V_L16}, 8, 2'),
             I(f'ds_read_b128 {vr(E0,4)}, v{t}'),
             I(f'v_bfe_u32 v{t+2}, v{V_L16}, 4, 2'), I(f'v_mad_u32_u24 v{t+1}, v{t+1}, 3, v{t+2}'),
             I(f'v_lshlrev_b32 v{t+1}, 4, v{t+1}'), I(f'v_add_u32 v{t+1}, {KVS}, v{t+1}'),
             I(f'ds_read_b128 {vr(E1,4)}, v{t+1} offset:1024'),
             I(f'v_and_b32 v{t+3}, 0xf0, v{V_L16}'), I(f'v_add_u32 v{t+3}, {KVS}, v{t+3}'),
             I(f'ds_read_b64 {vr(P2,2)}, v{t+3} offset:1280'),
             I(f'v_and_b32 v{t+2}, 0x30, v{V_L16}'), I(f'v_add_u32 v{t+2}, {KVS}, v{t+2}'),
             I(f'ds_read_b64 {vr(P2+2,2)}, v{t+2} offset:1288')]
        for mt in range(2): L.append(I(f'v_mul_f32 v{X_+mt}, {f2u(1.0/K0C):#x}, v{C0[mt]}'))
        for mt in range(2): L.append(I(f'v_mul_f32 v{X_+mt}, v{X_+mt}, v{X_+mt}'))
        L += [I(f's_add_u32 s{S_CNT}, s{S_W1K}, {slot_of(IT_PK) * SLOT}'), I(f'v_add_u32 v{X_+2}, s{S_CNT}, v{V_L16}'), I(f'v_lshrrev_b32 v{X_+3}, 2, v{V_L16}'), Delay(1)]
        for E, c in ((E0, 0), (E1, 2)):
            L.append(I(f'v_cvt_pk_bf16_f32 v{E}, v{E}, v{E+1}'))
            L.append(I(f'v_cvt_pk_bf16_f32 v{E+1}, v{E+2}, v{E+3}'))
            L.append(I(f'v_cvt_pk_bf16_f32 v{E+2}, v{P2+c}, v{P2+c+1}'))
            L.append(I(f'v_mov_b32 v{E+3}, 0'))
        for E in (E0, E1): L.append(I(f'v_cndmask_b32 v{E+2}, 0, v{E+2}, s[{S_G2}:{S_G2+1}]'))
        L.append(Ev('scrfree'))
        D0 = [ACC(3, 0, 0), ACC(3, 0, 1)]; D1 = [ACC(3, 1, 0), ACC(3, 1, 1)]
        L += [I(f'v_mov_b32 v{P2}, s{S_OOB}'), I(f'v_cmp_gt_u32 vcc, 0x80, v{X_+3}')]
        for mt in range(2):
            L.append(mf(D1[mt], E1, T0[mt])); L.append(mf(D0[mt], E0, T0[mt]))
        L += [I(f'v_cndmask_b32 v{X_+3}, v{P2}, v{X_+3}, vcc'), I(f'v_cmp_gt_u32 vcc, 0x100, v{V_L16}')]
        HQ = [E0, E1]
        L += [I(f'ds_read_b64 {vr(HQ[mt],2)}, v{X_+2} offset:{8*mt}') for mt in range(2)]
        for mt in range(2): L.append(I(f'v_add_f32 v{D1[mt]+2}, s{S_EPS}, v{D1[mt]+2}'))
        for mt in range(2): L.append(I(f'v_mul_f32 v{D1[mt]+2}, v{D1[mt]+2}, v{X_+mt}'))
        for mt in range(2): L.append(I(f'v_rcp_f32 v{D1[mt]+2}, v{D1[mt]+2}'))
        for mt in range(2):
            for r in range(4): L.append(I(f'v_mul_f32 v{D0[mt]+r}, v{D0[mt]+r}, v{D1[mt]+2}'))
            for r in (0, 1): L.append(I(f'v_mul_f32 v{D1[mt]+r}, v{D1[mt]+r}, v{D1[mt]+2}'))
            L.append(I(f'v_cvt_pk_bf16_f32 v{HQ[mt]+2}, v{D0[mt]}, v{D0[mt]+1}'))
            L.append(I(f'v_cvt_pk_bf16_f32 v{HQ[mt]+3}, v{D0[mt]+2}, v{D0[mt]+3}'))
            L += hstore(HQ[mt], 4, mt, 4)
            L.append(I(f'v_cvt_pk_bf16_f32 v{D1[mt]}, v{D1[mt]}, v{D1[mt]+1}'))
        L.append(I(f'v_cndmask_b32 v{D1[0]}, v{D1[1]}, v{D1[0]}, vcc'))
        L.append(I(f'buffer_store_dword v{D1[0]}, v{X_+3}, {WS}, s{S_A2L} offen {HST}', tok='ol'))
        L.append(Ev('odone'))
        return L
    def F_p2setup():
        return [I(f'v_lshrrev_b32 v{VSP+3}, 6, v{V_L16}'), I(f'v_mul_u32_u24 v{VSP+1}, 1152, v{VSP+3}'), I(f'v_bfe_u32 v{VSP+2}, v{V_L16}, 4, 2'),
                I(f'v_lshl_add_u32 v{VSP}, v{VSP+2}, 4, v{VSP+1}'), I(f'v_lshl_add_u32 v{VSP+1}, v{VSP+2}, 3, v{VSP+1}'),
                I(f'v_lshlrev_b32 v{VSP+3}, 7, v{VSP+3}'),
                I(f'v_bfe_u32 v{V_AL+2}, v{V_L16}, 4, 4'), I(f'v_and_b32 v{VSP+2}, 0x300, v{V_L16}'), I(f'v_lshl_add_u32 v{VSP+2}, v{V_AL+2}, 2, v{VSP+2}'),
                I(f'v_mov_b32 v{V_AL+2}, 0'), I(f'v_mov_b32 v{V_AL+3}, 0'), Ev('p2setup')]
    p2slots = {slot_of(IT_W2 + k) for k in range(37, 48)}
    free = [slot_of(IT_W2 + k) for k in range(29, 33)] + [19] + [slot_of(IT_W2 + k) for k in range(33, 37)]
    assert not (set(free) & p2slots) and len(set(free)) == 9
    def F_cwrite():
        L = [I(f'v_add_u32 v12, s{S_W1K}, v{V_L16}'), I(f'v_add_u32 v13, {12*SLOT}, v12'), I(f'v_add_u32 v14, {6*SLOT}, v12')]
        return L
    def cmb(k):
        s_ = free[k]
        return (12, s_ * SLOT) if s_ < 6 else ((14, (s_ - 6) * SLOT) if s_ < 12 else (13, (s_ - 12) * SLOT))
    def F_cw2(lts):
        L = []
        for lt in lts:
            r_, o_ = cmb(lt - 2)
            L.append(I(f'ds_write_b128 v{r_}, {vr(ACC2(lt,1),4)} offset:{o_}', tok=f'cw{lt}'))
        return L
    RB_ = [acc1[9], acc1[11], acc1[13]]
    def F_send():
        L = []
        def rd(lt, q):
            r_, o_ = cmb(lt - 2)
            return I(f'ds_read_b128 {vr(q,4)}, v{r_} offset:{o_}')
        def ad(lt, q): return [I(f'v_add_f32 v{ACC2(lt,0)+r}, v{ACC2(lt,0)+r}, v{q+r}') for r in range(4)]
        L += [rd(2, RB_[0]), rd(3, RB_[1]), rd(4, RB_[2]), Delay(2)]
        nxt = 5
        for p in range(1, 4):
            for lt in (2*p, 2*p+1):
                q = RB_[(lt - 2) % 3]
                L += ad(lt, q)
                if nxt <= 8: L.append(rd(nxt, q)); nxt += 1
            a, b = ACC2(2*p, 0), ACC2(2*p+1, 0)
            L += pack2(a, a, b)
            L += [I(f'v_min_u32 v{a+r}, -2, v{a+r}') for r in range(4)]
            L.append(I(f'buffer_store_dwordx4 {vr(a,4)}, v{V_L16}, {WS}, s{S_EXS+p-1} offen sc1'))
        L += ad(8, RB_[0])
        a = ACC2(8, 0); q = RB_[1]
        L += [I(f'v_cvt_pk_bf16_f32 v{q}, v{a}, v{a+1}'), I(f'v_cvt_pk_bf16_f32 v{q+1}, v{a+2}, v{a+3}'),
              I(f'v_min_u32 v{q}, -2, v{q}'), I(f'v_min_u32 v{q+1}, -2, v{q+1}'),
              I(f'buffer_store_dwordx2 {vr(q,2)}, v{V_L8}, {WS}, s{S_E8S} offen sc1'), Ev('sent')]
        return L

    memq = []
    def mq(step, evs, mk, item=None, by=None, ordr=None): memq.append(dict(step=step, ev=evs, mk=mk, item=item, by=by, ordr=ordr))
    def xstep(ks): return SO[('S1', ks) if ks < K1 else ('S1a', ks)]
    n0 = NPRE
    for k in range(PS, len(stg)):
        for h in range(2): mq(0, [f'srd{k-NR}'] if k >= NR else [], (lambda k=k, h=h: sdma(k, h)), ordr='s')
        for _ in range(2 if k < PS + cfg.get('wah', 0) else 1):
            if n0 < 18:
                mq(0, [], (lambda n=n0: dma(n)), n0, ordr='w'); n0 += 1
        if GPOS <= k < GPOS + 2 and GP < 0:
            for h in range(2): mq(cfg.get('gstep', 3), [], (lambda g=k-GPOS, h=h: gdma(g, h)), ordr='g')
    for n in range(n0, 18): mq(0, [], (lambda n=n: dma(n)), n, ordr='w')
    NXB = cfg.get('nxb', 8)
    for n in range(IT_Q, IT_Q + NXB): mq(0, ['wxok', 'rxinit'], (lambda n=n: dma(n)), n, ordr='s')
    if cfg.get('notouch'): events['tissued'] = -9
    for k in range(NT if not cfg.get('notouch') else 0): memq.insert(k, dict(step=cfg.get('tstep', 11), ev=['tpat', 'wxst0'], mk=(lambda k=k: touch(k)), item=None, by=None, ordr='t'))
    for n in range(IT_R, IT_Q): mq(0, ['rpat', 'tissued'], (lambda n=n: dma(n)), n, ordr='s')
    for n in range(IT_Q + NXB, IT_SCR): mq(SO[tuple(cfg.get('xr', ('S2', 5)))], ['wxok', 'rxinit'], (lambda n=n: dma(n)), n, ordr='s')
    LST = cfg.get('lst', [3])
    for n in range(IT_L1, IT_W2): mq(SO[tuple(cfg.get('l1at', ('S3', 0)))], ['dmah'], (lambda n=n: dma(n)), n, ordr='w')
    TORD = [0, 1, 2, 4, 3]
    def aload(sp, mt, half=None):
        t = stmp(); off = ((sp & 3) * 5 + TORD[sp >> 2]) * 1024
        if half is not None:
            off += half * 512
            return [I(f's_add_u32 s{t}, s{S_A + mt}, {off & ~4095}'),
                    I(f'buffer_load_dwordx2 {vr(AF(sp, mt) + 2 * half, 2)}, v{V_L8}, {WS}, s{t} offen offset:{off & 4095} sc1')]
        return [I(f's_add_u32 s{t}, s{S_A + mt}, {off & ~4095}'),
                I(f'buffer_load_dwordx4 {vr(AF(sp, mt), 4)}, v{V_L16}, {WS}, s{t} offen offset:{off & 4095} sc1')]
    def xfree_step(ks):
        return (SO[('S4c', ks)] if ks < K4 else SO[('S4e', ks)]) + 1
    w2n = IT_W2
    VX = 8
    for sp in range(21):
        while w2n <= IT_W2 + ((sp * 7 + 6) >> 2):
            mq(0, ['w2ok', 'setup2'], (lambda n=w2n: dma(n)), w2n); w2n += 1
        if sp < 20:
            ev = [['h4ok'], ['h4ok'], ['h5ok'], ['h6ok'], ['h5ok']][sp >> 2]
            if sp < 2: ev = ev + ['gathered']
            if sp >= 17: ev = ev + ['e3done']
            for mt in range(2):
                for half in [None]:
                    mq(xfree_step(sp) if sp < 16 else SO[('P1', sp - cfg.get('t3lead', 3))], ev + ['setup2'], (lambda sp=sp, mt=mt, half=half: aload(sp, mt, half)), by=SO[('P1', sp if sp < 16 else sp - 1)])
        if sp == 15:
            for k in range(2):
                mq(0, ['h6ok', 'p2setup'], (lambda k=k: [I(f'buffer_load_dword v{V_AL+k}, v{VSP+2}, {WS}, s{S_AL} offen offset:{128*k} sc1')]), by=SO[('P1', 20)])
    for n in list(range(w2n, w2n + 5)) + [NITEM - 1] + list(range(w2n + 5, NITEM - 1)): mq(0, [], (lambda n=n: dma(n)), n)
    R = AF(0, 0); R8 = R + 12
    rloads = lambda: ([I(f'buffer_load_dwordx4 {vr(R+4*p,4)}, v{V_L16}, {WS}, s{S_EX} offen offset:{1024*p} sc1') for p in range(3)]
                      + [I(f'buffer_load_dwordx2 {vr(R8+2*p,2)}, v{V_L8}, {WS}, s{S_E8R} offen offset:{512*p} sc1') for p in range(3)])
    for mk in (lambda: [I(f'buffer_load_dwordx4 {vr(8,4)}, v{VSP}, {XS}, s{S_O} offen')],
               lambda: [I(f'buffer_load_dwordx2 {vr(0,2)}, v{VSP+1}, {XS}, s{S_O8} offen')],
               lambda: [I(f'buffer_load_dword v15, v{VSP+3}, {WS}, s{S_STK} offen offset:8 sc1')]):
        mq(0, ['e3done', 'p2setup', 'pook'], mk, by=SO[('P2a', cfg.get('pb', 2))])

    KP = ('S4a', KPS); KO = ('S4d', KOS)
    PB = ('P2a', cfg.get('pb', 2))
    WXF = ('S1', cfg.get('wxf', 11)); RS = ('S3', cfg.get('rs', 6)); F3F = KP
    barspec = ([WXF] + [('S1', k) for k in cfg.get('s1l', range(0, K1))] + [('S1b', K1), RS, ('S4', 0), KP, ('S4c', 0), KO]
               + [tuple(x) for x in cfg.get('xb', [('S1d', K1 + 2), ('S2', 5), ('S3', 0), ('S3', 10), ('S3', 15), ('S4', 4), ('S4a', K3), ('S4c', 5), ('S4e', K4 + 4), ('P2a', 14)])]
               + [('P1', k) for k in cfg.get('p1b', [0, 3, 6, 9, 12, 15, 17, 19])] + [('P2a', 0), PB, ('P2b', 6)])
    bars = sorted(set(SO[tuple(b)] for b in barspec))
    if 'getbars' in cfg: cfg['getbars'] += [list(steps[b]) for b in bars]
    need = {}
    for bi, b in enumerate(bars):
        lo = first_frag[b] + (D if bi else 0)
        hi = first_frag[bars[bi + 1]] + D if bi + 1 < len(bars) else NF
        need[b] = sorted({frags[i]['item'] for i in range(lo, min(hi, NF))} - {None})
    last_use = {}
    for f in frags:
        if f['item'] is not None: last_use[f['item']] = f['step']
    need[SO[RS]] = sorted(set(need[SO[RS]]) | {IT_R, IT_R + 1, IT_R + 2})
    rel_ev = {IT_R: 'rdone', IT_R + 1: 'rdone', IT_R + 2: 'rdone', IT_SCR: 'scrfree', IT_PK: 'odone', 'stage': 'xdone', 'gst': 'wxst1'}
    released = set()
    issued = {n: -1 for n in range(NPRE)}
    events['srd0'] = events['srd1'] = -9
    def spread(main, items, start, step):
        o = {}
        for k, x in enumerate(items): o.setdefault(min(start + k * step, len(main) - 1), []).extend(x if isinstance(x, list) else [x])
        L = []
        for k, x in enumerate(main):
            if k in o: L += o[k]
            L.append(x)
        return L
    avail = {}
    def at(step, f): avail.setdefault(SO[step], []).append(f)
    xrd = {}
    for L_ in range(1, 9):
        xrd.setdefault(min(xstep(2 * L_) - 1, SO[('S1', K1 - 1)]), []).append(L_)
    DL = cfg.get('dl', 36); S_RSRC2 = S_RDST
    at(('S1', cfg.get('rowat', 0)), lambda: F_nonce((F_tpat() if not cfg.get('notouch') else [Delay(8)]) + [Delay(cfg.get('ndelay', 32))]))
    evfront = [('gl0', None, lambda: F_wx(0)), ('gl1', 'wxst0', lambda: F_wx(1))]
    at(WXF, lambda: [Need('setup0')] + setflag(S_F2S, 0, [], V_T + 1, V_T + 2))
    pw = poll([], 3, 'wxok', False, True, [], V_T + 1, V_T + 2, S_F2P)
    at(('S1', cfg.get('stat', 12)), lambda: F_stats([Delay(cfg.get('dl', 22))] + pw[:-4] + [Delay(cfg.get('dl2', 8))]) + [Need('l0issued'), Need('setup1')] + F_dmah(V_DMA, V_T + 3) + pw[-4:] + F_stats2())
    at(('S1b', K1), lambda: [Need('setup1'), Need('wxok')] + F_csx() + F_rpat() + [Need('tissued')] + F_c1())
    at(('S1b', K1 + 2), lambda: E_first(0))
    po = F_poison(T2[0])
    at(('S1c', K1), lambda: E_second(0, 1, 0) + [Ev('u01free')])
    rl = F_relayout([ACC(2, 1, 0), ACC(2, 1, 1)], V_TH, V_T)
    at(('S2', 0), lambda: E_first(2) + rl[0] + spread(E_second(2, 3, 1) + [Ev('u23free')], rl[1], 6, 14))
    assert not cfg.get('map', 0)
    pa = F_poison(U(3)[0]); NPA = cfg.get('npa', 3)
    kvpo = [I(f'v_lshrrev_b32 v{U(3)[1]+1}, 2, v{V_L16}'),
            I(f'buffer_store_dword v{U(3)[0]}, v{U(3)[1]+1}, {WS}, s{S_KVST} offen sc1', tok='kvpo')]
    at(('S3', 2), lambda: [Need('setup1b')] + pa[0] + kvpo + F_trh() + spread(E_quarter(4) + [Ev('u4free')], pa[1][6 - NPA:6], 4, 60 // NPA)
       + [I(f'v_mov_b32 v{ONES+r}, 0x3f803f80') for r in range(4)] + [Ev('ones1')])
    at(('S4', 0), lambda: setflag(S_FL, 0, ['h0_0_0', 'h0_1_0', 'h1_0_0', 'h1_1_0'], q3, q3 + 1) + setflag(S_F2S, 0x8000, [], q3, q3 + 1)[5:] + E_qkv())
    w2p = [I(f's_and_b32 s{S_RSRC2}, s2, 3'), I(f's_lshl_b32 s{S_RSRC2}, s{S_RSRC2}, 13'), I(f's_add_u32 s{S_RSRC2}, s{S_RSRC2}, s{S_W1K}'),
           I(f's_add_u32 s{S_RSRC2}, s{S_RSRC2}, {F2_OFF + 0x8000}')]
    pq = pollh(0, 'h4ok', poll(w2p, 3, 'w2ok', False, True, ['X'], q3 + 2, q3 + 3, S_RSRC2), q3, q3 + 1); kx = pq.index('X')
    at(KP, lambda: F_publish([Delay(3)]) + E_q()[:cfg.get('pqat', 20)] + pq[:kx] + E_q()[cfg.get('pqat', 20):])
    at(('S4b', K3), lambda: (po[0][:4] if NPA < 6 else []) + spread(E_first(2), po[1][:6 - NPA], 2, 22) + pq[kx+1:] + [Ev('u4free2'), Ev('e2b')])
    u2d = ACC(2, 1, 0)
    at(('S4c', 0), lambda: w2touch(u2d, u2d + 1) + E_second(2, 3, 2)[:36])
    at(('S4c', cfg.get('kvl', 3)), lambda: F_kvload() + E_second(2, 3, 2)[36:] + [Ev('e2done')] + F_gather())
    at(KO, lambda: F_o())
    at(('S4e', K4), lambda: E_first(4) + [Ev('e4a')])
    e3 = E_second(4, 1, 3)
    at(('P1', 0), lambda: [I(f'v_lshrrev_b32 v{V_L8}, 1, v{V_L16}'), Ev('l8')] + e3 + [Ev('e3done')] + F_p2setup())
    def t3check(sp):
        a0, a1 = AF(sp, 0), AF(sp, 1)
        def ld():
            L = []
            for mt in range(2):
                off = ((sp & 3) * 5 + 3) * 1024
                L += [I(f's_add_u32 s{S_PT}, s{S_A + mt}, {off & ~4095}'),
                      I(f'buffer_load_dwordx4 {vr(AF(sp, mt), 4)}, v{V_L16}, {WS}, s{S_PT} offen offset:{off & 4095} sc1')]
            return L
        ck = lambda: [I(f'v_max3_u32 v3, v{a0}, v{a0+1}, v{a0+2}'), I(f'v_max3_u32 v6, v{a0+3}, v{a1}, v{a1+1}'),
                      I(f'v_max3_u32 v3, v3, v{a1+2}, v{a1+3}'), I('v_max_u32 v3, v3, v6'), I('v_cmp_eq_u32 vcc, -1, v3')]
        g = retry_group(ld, ck)
        return [Delay(cfg.get('t3d', 7))] + g + [Ev(f't3ok{sp}')]
    for sp in range(16, 20): at(('P1', sp - 1), lambda sp=sp: t3check(sp))
    at(('P1', cfg.get('pp', 10)), lambda: poll([I(f's_and_b32 s{S_PT}, s2, 0xfc'), I(f's_lshl_b32 s{S_PT}, s{S_PT}, 7'), I(f's_add_u32 s{S_PT}, s{S_PT}, {F4_OFF}')],
                                               2, 'pook', False, False, [Delay(28)], 3, 6) + [Need('e3done')] + htouch(3, 1, ['h3_0_0', 'h3_1_0'], 3, 7) + F_cwrite() + [Ev('cwa')])
    at(('P1', 19), lambda: [Delay(5)] + [y for lt in range(2, 7) for y in F_cw2([lt]) + [Delay(3)]] + [Ev('cw6')])
    at(('P2a', 0), lambda: F_cw2(range(7, 9)) + [I(f'v_xor_b32 v{r_}, 0x1000, v{r_}') for r_ in (12, 13, 14)] + [Ev('cwb')])
    if not cfg.get('fastsend', 1): at(PB, lambda: F_send())
    TT = acc1[0]
    at(('P2b', 2), lambda: [Need('sent'), I(f'v_xor_b32 v{TT}, 0x1000, v{cmb(8)[0]}'), I(f'ds_write_b128 v{TT}, {vr(ACC2(0,1),4)} offset:{cmb(8)[1]}', tok='c0w'), Ev('c0w')])
    at(('P2b', 6), lambda: [I(f'ds_read_b128 {vr(ACC2(0,1),4)}, v{cmb(8)[0]} offset:{cmb(8)[1]}'), I('v_mul_f32 v15, v15, v15'), Delay(3)]
       + [I(f'v_add_f32 v{ACC2(0,0)+r}, v{ACC2(0,0)+r}, v{ACC2(0,1)+r}') for r in range(4)] + [Ev('c0done')])
    TW = acc1[2]
    TB0 = (0 if free[7] >= 4 else 4) * SLOT
    tadr = [I(f's_lshl_b32 s{S_CNT}, s{S_W1K}, 2'), I(f's_add_u32 s{S_CNT}, s{S_CNT}, {TB0}'),
            I(f'v_bfe_u32 v{TW}, v{V_L16}, 4, 4'), I(f'v_mul_u32_u24 v{TW}, 208, v{TW}'), I(f'v_bfe_u32 v{TW+3}, v{V_L16}, 8, 2'),
            I(f'v_lshl_add_u32 v{TW}, v{TW+3}, 4, v{TW}'), I(f'v_add_u32 v{TW}, s{S_CNT}, v{TW}'),
            I(f'v_lshrrev_b32 v{TW+2}, 6, v{V_L16}'), I(f'v_mul_u32_u24 v{TW+2}, 208, v{TW+2}'), I(f'v_add_u32 v{TW+2}, s{S_CNT}, v{TW+2}'),
            I(f'v_bfe_u32 v{TW+3}, v{V_L16}, 4, 2'), I(f'v_lshl_add_u32 v{TW+1}, v{TW+3}, 5, v{TW+2}'), I(f'v_lshl_add_u32 v{TW+2}, v{TW+3}, 4, v{TW+2}')]
    at(('P2b', cfg.get('rcv', 9)), lambda: rloads() + tadr + [Ev('rcv')])
    p5 = pollh(1, 'h5ok', [], 3, 6); p6 = pollh(2, 'h6ok', [], 3, 6)
    P5 = cfg.get('p5', 3); P6 = cfg.get('p6', 7); F6 = cfg.get('f6', 1)
    front2 = {SO[('S4e', K4)]: lambda: setflag(S_FL, HS, ['h2_0_0', 'h2_1_0', 'p3_0', 'p3_1'], V_A, V_DMA) + setflag(S_F3S, F4_OFF - F3_OFF, [], V_A, V_DMA)[5:] + [Ev('f5')] + htouch(2, 1, [], V_A, V_DMA),
              SO[('P1', F6)]: lambda: setflag(S_FL, 2*HS, ['h4_0_0', 'h4_1_0', 'ol'], 3, 6) + htouch(4, 1, [], 3, V_A),
              SO[('P1', P5)]: lambda: p5[:-4], SO[('P1', P5 + 2)]: lambda: p5[-4:], SO[('P1', P6)]: lambda: p6[:-4], SO[('P1', P6 + 2)]: lambda: p6[-4:]}
    assert F6 < P5 and P5 + 2 < P6 and P6 + 2 <= cfg.get('pp', 10)
    front = {SO[('S1d', K1)]: lambda: F_csx2() + [Ev('csx')]}
    front.update(front2)
    inline = {}
    front[SO[('S1a', K1 + 1)]] = lambda: [Need('setup1'), Delay(2)] + cswrite(CSA, 0, ONES) + [Ev('csw0')]
    front[SO[('S4a', CA_END)]] = lambda: cswrite(CSA, 2, ONES) + [Ev('csw2')]
    front[SO[('S4d', CB_END)]] = lambda: cswrite(T1[1], 3, T1[0]) + [Ev('csw3')]
    must = {('S1b', K1): ['stats', 'csw0'],  ('S2', 0): ['csx'], WXF: ['wxst1'], ('S3', 0): ['u01free'], ('S3', 17): ['trh'],
            ('S4', 0): ['rdone', 'ones1'], KP: ['qkvdone', 'csw2'],
            ('S4c', 0): ['u4free2', 'published', 'ones2', 'e2b'], KO: ['gathered', 'csw3'], ('P1', 0): ['odone', 'e2done', 'f5'] + (['e4a'] if cfg.get('e4a', 0) else []), ('P2a', 0): ['cw6'], PB: ['cwb'], ('P2b', 6): ['c0w']}
    for sp in range(16, 20): must[('P1', sp)] = [f't3ok{sp}', 'cwa']
    must = {SO[k]: v for k, v in must.items()}
    b1 = sq_txt[-1].split('\n'); cut = [k for k, l in enumerate(b1) if f's_cselect_b32 s{S_F3S},' in l][0] + 1
    savail = {SO[('S1', 0)]: lambda: [Need('gissued')] + sgroups('\n'.join(b1[:cut] + sqa)) + [Ev('setup0')] + sgroups(sq_txt[0]) + [Ev('setup1')],
              SO[('S2', 0)]: lambda: sgroups('\n'.join(sq_txt[1:-1])) + [Ev('rsetup')] + sgroups('\n'.join(b1[cut:])) + [Ev('setup1b')],
              SO[('S4', 0)]: lambda: [Need('xissued'), Need('rdone')] + F_setup2()}
    bar_extra = {SO[WXF]: ['wx0', 'wx1', 'wc0', 'wc1'], SO[('S1b', K1)]: ['cs0'], SO[('S3', 0)]: ['cs1'],
                 SO[KP]: [f'kva{i}' for i in range(4)] + ['cs2'], SO[('S4', 0)]: ['w2a0', 'w2a1', 'w2a2', 'kvpo'],
                 SO[KO]: ['kvb0', 'cs3'] + [f'po{p}' for p in range(4)],
                 SO[PB]: [f'cw{lt}' for lt in range(2, 9)], SO[('P2b', 6)]: ['c0w']}
    for k in bar_extra: assert k in bars, steps[k]

    fill = []; sfill = []; xfill = []
    st.gap = 0; st.delay_until = 0; st.cur = -99; st.ta = 0.0; st.adv = None; st.armed = None; st.force = False
    MEMSP = cfg.get('memsp', {})
    def memsp(s):
        if s < cfg.get('fasts', 0): return cfg.get('fastsp', 2.0)
        return MEMSP.get(steps[s][0][:2], {'S1': 3.8, 'P1': 4.0, 'S4': 4.0}.get(steps[s][0][:2], 4.5))
    def isI(x, kinds): return isinstance(x, I) and x.kind in kinds
    def housekeeping(force=False):
        while fill:
            x = fill[0]
            if isinstance(x, Ev): (pending if x.bar else events)[x.name] = st.gap; fill.pop(0)
            elif isinstance(x, Need):
                if x.name in events and not (x.name.endswith('issued') and events[x.name] > st.gap - 4): fill.pop(0)
                else:
                    assert not force, ('blocked on', x.name)
                    return False
            elif isinstance(x, Delay):
                if x.n >= 0:
                    x.until = st.gap + x.n; x.n = -1
                if force or st.gap >= x.until: fill.pop(0)
                else: return False
            else: return True
        return False
    def slots(seq):
        t = 0; lastv = -10; first = True
        for x in seq:
            if isinstance(x, Wait): t += 1; continue
            if first: first = False; t = 1; continue
            if x.kind in ('valu', 'trans'):
                t = max(t, 2); t += x.cost; lastv = t - 1
            elif x.kind in ('ds_r', 'ds_w', 'vm_ld', 'vm_st', 'vm_dma'):
                t = max(t, 2, lastv + 3); t += 1
            else: t += x.states()
        return t
    st.tnext = 0
    def mem_ready(e, s):
        if e['ordr'] == 't' and st.gap < st.tnext: return False
        if e['step'] > s or any(v not in events or events[v] > st.gap - (4 if v.startswith('srd') else 0) for v in e['ev']): return False
        n = e['item']
        if n is not None and IT_L1 <= n < IT_W2:
            if PAIR and L1hk(n)[0] == 0:
                if st.gap < issued.get(n - 1, -99) + cfg.get('l1sp', 16) or (prev_of(n + 1) not in released and n + 2 < IT_W2): return False
            elif not PAIR and st.gap < issued.get(n - 1, -99) + cfg.get('l1sp', 16): return False
        if n is not None and prev_of(n) is not None and prev_of(n) not in released: return False
        return True
    leads = {}; sissue = {f's{k}_1': -30 for k in range(PS)}; st.nx = 2
    if GP >= 0:
        sissue.update({'sg0_1': -20, 'sg1_1': -20}); events['gissued'] = -9
    def flush_armed():
        g = st.armed or []; st.armed = None
        return g
    def pop_mem(s, win=None):
        if st.armed: return flush_armed()
        if sfill and sfill[0] is st.adv:
            if win is None: return None
            return sfill.pop(0)
        blocked = set()
        for k in range(min(win or cfg.get('ooo', 24), len(memq))):
            e = memq[k]
            if e['ordr'] not in blocked and mem_ready(e, s):
                memq.pop(k)
                if e['item'] is not None: issued[e['item']] = st.gap
                if e['by'] is not None: leads.setdefault(e['by'], []).append(st.gap)
                g = e['mk']()
                for x in g:
                    if x.tok and x.tok[0] == 's': sissue[x.tok] = st.gap
                if all(n in issued for n in range(IT_R, IT_Q)): events.setdefault('rissued', st.gap)
                if all(n in issued for n in range(IT_Q, IT_SCR)): events.setdefault('xissued', st.gap)
                if all(n in issued for n in range(18)): events.setdefault('l0issued', st.gap)
                if f's{len(stg)-1}_1' in sissue: events.setdefault('rxinit', st.gap)
                if 'sg1_1' in sissue: events.setdefault('gissued', st.gap)
                return g
            if e['ordr']: blocked.add(e['ordr'])
        return None
    def vcost(x, s):
        c = memsp(s)
        if x.op.endswith('x4'): return c
        if x.op.endswith('x2'): return c
        return c / 2
    VM = ('vm_ld', 'vm_st')
    def gap(m, shadow, rd, s, quiet=False):
        st.gap += 1
        budget = 2
        rds = [x for x in rd if x.kind == 'salu']; rdv = [x for x in rd if x.kind == 'valu']; rdm = [x for x in rd if x.kind == 'ds_r']
        head = shadow + rds; val = list(rdv); budget -= len(rdv)
        sal = []; mem = []; fre = []; post = []; later = None; first_mem = False; fvm = False
        if not quiet:
            hk = housekeeping()
            fvm = hk and (isI(fill[0], VM) or (isI(fill[0], ('salu',)) and len(fill) > 1 and isI(fill[1], VM)))
            if fvm and st.armed: fvm = False
            if fvm:
                x = fill[0] if isI(fill[0], VM) else fill[1]
                if st.gap >= st.ta - cfg.get('fslack', 6) or not x.op.endswith('x4'):
                    if fill[0] is not x: fre.append(fill.pop(0))
                    mem.append(fill.pop(0))
            while st.nx < 18 and not xfill:
                k = spos[('x', st.nx)]
                if f's{k}_1' in sissue and st.gap - sissue[f's{k}_1'] >= cfg.get('lag', 45) and (st.nx < 16 or 'nonce' in events):
                    if cfg.get('verbose'): print('   x pair', st.nx, 'early read at gap', st.gap)
                    xfill.extend([xread(st.nx, 0), xread(st.nx, 1), Ev(f'srd{k}')]); st.nx += 1
                else: break
            for i_ in range(2):
                if f'sg{i_}_1' in sissue and st.gap - sissue[f'sg{i_}_1'] >= cfg.get('glag', 50): events.setdefault(f'gl{i_}', st.gap)
            if evfront and evfront[0][0] in events and (evfront[0][1] is None or evfront[0][1] in events) and not mem:
                k = 0
                while k < len(fill) and (isI(fill[k], ('vm_st', 'vm_ld')) or isinstance(fill[k], list) or (isinstance(fill[k], Delay) and k + 1 < len(fill) and isinstance(fill[k+1], list))): k += 1
                fill[k:k] = evfront.pop(0)[2]()
            if not mem and xfill and len(rdm) < 2 and not st.armed:
                x = xfill.pop(0); mem.append(x)
                while xfill and isinstance(xfill[0], Ev): events[xfill.pop(0).name] = st.gap
            if st.armed and not mem and (st.force or (len(rdm) < 2 and not (cfg.get('rr', 0) and rdm) and not (cfg.get('vfree', 1) and rdm and 'b128' in rdm[0].op))):
                mem.append(st.armed[0]); first_mem = True
                if st.armed[1:]: later = st.armed[1:]
                st.armed = None
            elif not st.armed and not mem and st.gap + 1 >= st.ta and not (hk and steps[s][0] != 'S1' and any(isI(x, VM) for x in fill[:3])):
                g = pop_mem(s)
                if g:
                    k = [q for q, x in enumerate(g) if x.kind.startswith('vm')][0]
                    fre += [x for x in g[:k] if x.kind != 'nop']; st.armed = g[k:]
            big = any(x.kind.startswith('vm') and (x.op.endswith('x4') or x.op.endswith('x2')) for x in mem)
            if not (big and cfg.get('vmq', 1)) and not (fvm and mem) and not (len(rdm) + len(mem) >= 2 and steps[s][0] == 'S1'):
                if not head and housekeeping() and isI(fill[0], ('salu',)): head.append(fill.pop(0))
                while housekeeping() and isI(fill[0], ('valu', 'trans')) and fill[0].cost <= budget:
                    x = fill.pop(0); budget -= x.cost; val.append(x)
                if budget == 1 and housekeeping() and isI(fill[0], ('trans',)):
                    for k in range(1, min(8, len(fill))):
                        x = fill[k]
                        if not isI(x, ('valu', 'trans')): break
                        if x.kind == 'valu' and not any((x.rd & y.wr) or (x.wr & (y.rd | y.wr)) for y in fill[:k]):
                            val.append(fill.pop(k)); budget -= 1; break
                if not mem:
                    while housekeeping() and isI(fill[0], ('salu',)) and len(sal) < 2 and not (len(fill) > 1 and isI(fill[1], VM)):
                        sal.append(fill.pop(0))
                    while housekeeping() and isI(fill[0], ('ds_r', 'ds_w')) and len(mem) < 2 - len(rdm): mem.append(fill.pop(0))
            if fvm and mem and not big and cfg.get('smallv', 1):
                k = 0; skipped = list(mem) + list(fre)
                while k < len(fill) and k < 24 and budget > 0:
                    x = fill[k]
                    if isI(x, ('valu', 'trans')):
                        if x.cost <= budget and not any((x.rd & y.wr) or (x.wr & (y.rd | y.wr)) for y in skipped):
                            val.append(fill.pop(k)); budget -= x.cost; continue
                        break
                    if not isI(x, ('salu', 'vm_ld')): break
                    skipped.append(x); k += 1
            for x in mem:
                if x.kind.startswith('vm'): st.ta = max(st.ta, st.gap - cfg.get('credit', 4)) + vcost(x, s)
            room = (0 if head else 1) + 2 - len(sal) - len(fre) - len(post)
            if big or len(rdm) + len(mem) >= 2: room = min(room, (0 if head or fre else 1) + (2 - len(sal) - len(fre) if val else 0))
            pre = []
            while sfill and room > 0:
                x = sfill[0]
                if isinstance(x, Ev): events[x.name] = st.gap; sfill.pop(0); continue
                if isinstance(x, Need):
                    if x.name in events and events[x.name] < st.gap - 4 and not st.armed and not first_mem: sfill.pop(0); continue
                    break
                n = len(x) if isinstance(x, list) else 1
                if n > room and (room < 2 or pre): break
                sfill.pop(0); room -= n
                pre.append(x)
            if not head and pre and not isinstance(pre[0], list): head.append(pre.pop(0))
            if not head and fre: head.append(fre.pop(0))
            for x in pre: sal += x if isinstance(x, list) else [x]
        vmode = st.gap - st.cur < 6 or len(val) > len(rdv)
        early = cfg.get('early', 1) and not rdv and (steps[s][0] in cfg.get('eph', ['S1', 'S1a']) or not vmode) and not any(x.kind == 'trans' for x in val)
        if early:
            if val or (fvm and mem): seq = [m] + head + rdm + val + sal + fre + mem + post
            elif sal and mem and not first_mem: seq = [m] + head + rdm + sal + fre + mem + post
            else: seq = [m] + head + rdm + mem + sal + fre + post
        else:
            seq = [m] + head + val + sal + fre
            if cfg.get('later', 1) and vmode and rdm and not val and not mem and not quiet and slots(seq) < 5: seq.append(I(f's_nop {5 - slots(seq) - 1}'))
            seq += rdm + mem + post
        if later: sfill.insert(0, later); st.adv = later
        if not quiet and not mem and housekeeping() and isinstance(fill[0], list): seq += fill.pop(0)
        if len(val) > len(rdv): st.cur = st.gap
        if not quiet:
            mg = MINGAP if st.gap - st.cur < 6 else cfg.get('padq', 5)
            if early: mg = cfg.get('padq', 5)
            if any(x.kind.startswith('vm') for x in mem) or len(rdm) + len(mem) >= 2: mg = (4 if early else mg - 1)
            if mg > slots(seq):
                lw = cfg.get('latew', 1) and shadow and isinstance(seq[1], Wait)
                if lw: w_ = seq.pop(1)
                n_ = mg - slots(seq) - (1 if lw else 0)
                if n_ > 0: seq.append(I(f's_nop {n_ - 1}'))
                if lw: seq.append(w_)
        if not quiet:
            if housekeeping() and isI(fill[0], ('mfma',)): seq += gap(fill.pop(0), [], [], s)
        return seq
    def drain_until(evs):
        L = []
        while any(e not in events for e in evs):
            assert fill, evs
            if housekeeping(force=True):
                x = fill.pop(0)
                if isinstance(x, list): L += x
                else: L.append(x)
        if L and cfg.get('verbose'): print('  drained', len(L), 'instrs for', evs)
        return L
    M = []
    def barrier_pre(b):
        L = []
        for n in need[b]:
            while n not in issued:
                g = pop_mem(b - 1, 40)
                assert g, ('item not issuable', n, steps[b], [(e['item'], e['ev'], e['step']) for e in memq[:6]])
                if cfg.get('verbose'): print('  forced issue before', steps[b], 'for item', n)
                L += g
        if cfg.get('verbose'):
            print('bar', steps[b], 'gap', st.gap, 'need', need[b], 'lead', [st.gap - issued[n] for n in need[b]])
        L.append(Wait([f'it{n}' for n in need[b]] + bar_extra.get(b, [])))
        return L
    def barrier_post(b):
        events.update(pending); pending.clear()
        if b == SO[RS]: events['rland'] = st.gap
        for n in list(last_use) + list(rel_ev):
            if n in rel_ev:
                if rel_ev[n] in events: released.add(n)
            elif last_use[n] < b: released.add(n)
    tsph = cfg.get('tsph', ['S2', 'S4', 'S4c', 'P1'])
    for i in range(NF):
        s = frags[i]['step']
        if i == 0:
            M += barrier_pre(0) + [I('s_barrier')] + ts('s1start')
            for k in range(D):
                r0, r1 = reads(k); M += r0 + r1
        if first_frag[s] == i:
            if steps[s] == ('S2', 0): assert 'rissued' in events
            if steps[s] == ('S1c', K1): tr1_last = st.gap
            if steps[s] == PB and cfg.get('fastsend', 1):
                fill.extend(F_send()); M += drain_until(['sent'])
            if s in front:
                k = 0
                while k < len(fill) and (isI(fill[k], ('vm_st', 'vm_ld')) or isinstance(fill[k], (Delay, list))): k += 1
                fill[k:k] = front[s]()
            if s in savail: sfill.extend(savail[s]())
            for f in avail.get(s, []): fill.extend(f())
            for L_ in xrd.get(s, []):
                for p in (2 * L_, 2 * L_ + 1):
                    if p < st.nx: continue
                    assert p < 16 or 'nonce' in events
                    st.nx = p + 1
                    k = spos[('x', p)]
                    if st.armed and st.armed[0].tok in (f's{k}_0', f's{k}_1'): M += flush_armed()
                    while f's{k}_1' not in sissue:
                        while xfill:
                            x = xfill.pop(0)
                            if isinstance(x, Ev): events[x.name] = st.gap - 4
                            else: M.append(x)
                        g = pop_mem(s, 40)
                        assert g, ('staging not issuable', k, steps[s])
                        if cfg.get('verbose'): print('  forced staging issue', k, steps[s])
                        M += g
                    if cfg.get('verbose'): print('   x pair', p, 'read at', steps[s], 'lead', st.gap - sissue.get(f's{k}_1', -1))
                    xfill.extend([xread(p, 0), xread(p, 1), Ev(f'srd{k}')])
        if steps[s] == ('S1d', 17) and first_frag[s] == i - 0 and False: pass
        ms = mfmas(i)
        r0, r1 = reads(i + D) if i + D < NF else ([], [])
        ns = frags[i + 1]['step'] if i + 1 < NF else None
        nxt_first = ns is not None and first_frag[ns] == i + 1
        shadow = [Wait(rtoks(i + 1))] if i + 1 < NF else []
        if len(ms) == 2:
            if cfg.get('bb', 0) and nxt_first and ns in bars:
                st.force = True; M += gap(ms[0], [], r0 + r1, s); lastrd = []; st.force = False
            elif cfg.get('rr', 0) and st.armed and r1:
                st.force = True; M += gap(ms[0], [], r0 + r1, s); lastrd = []; st.force = False
            else:
                M += gap(ms[0], [], r0, s); lastrd = r1
        else: lastrd = r0 + r1
        if nxt_first and st.armed:
            x = st.armed[0]
            if (ns in bars and x.tok in [f'it{n}' for n in need[ns]]) or (x.kind == 'vm_ld' and ns in leads) or steps[ns] in (('S2', 0), ('S1a', K1)): M += flush_armed()
        if nxt_first:
            if steps[ns][0] in ('S1', 'S1a'):
                nd = set().union(*[{('v', XF(steps[ns][1], mt) + r) for r in range(4)} for mt in range(2)])
                while xfill and (steps[ns][0] == 'S1a' or any(isinstance(y, I) and (y.wr & nd) for y in xfill)):
                    x = xfill.pop(0)
                    if isinstance(x, Ev): events[x.name] = st.gap
                    else: M.append(x)
            if 'xdone' not in events and ns in bars and f'srd{len(stg)-1}' in events:
                M.append(Wait([f'sr{len(stg)-1}_1'])); events['xdone'] = st.gap
            if ns in must: M += drain_until(must[ns])
            if ns in inline: assert 'setup1' in events
            if ns in inline: M += [x for x in inline[ns]() if isinstance(x, I)]
            while any(e['by'] is not None and e['by'] <= ns for e in memq):
                g = pop_mem(s, 60)
                assert g, ('load not issuable', steps[ns], [(e['item'], e['ev'], e['step']) for e in memq[:8]])
                if cfg.get('verbose'): print('  forced load before', steps[ns])
                M += g
            if cfg.get('verbose') and ns in leads: print('   step', steps[ns], 'gap', st.gap, 'reg-load lead', [st.gap - x for x in leads[ns]])
        if nxt_first and ns in bars:
            M += barrier_pre(ns)
            M += gap(ms[-1], [I('s_barrier')] + shadow, lastrd, s, quiet=True)
            barrier_post(ns)
        else:
            M += gap(ms[-1], shadow, lastrd, s)
        if nxt_first and steps[ns][0] != steps[s][0] and steps[ns][0] in tsph: M += ts(steps[ns][0])
        if nxt_first and list(steps[ns]) == cfg.get('holdat'):
            M += IL(f"""
            s_mov_b32 s99, 20000
            L_hold:
            s_memrealtime s[88:89]
            s_waitcnt lgkmcnt(0)
            s_lshl_b32 s88, s88, 3
            s_sub_u32 s88, s88, s{S_NON}
            s_and_b32 s88, s88, 0x7fffffff
            s_sub_u32 s99, s99, 1
            s_cmp_eq_u32 s99, 0
            s_cbranch_scc1 L_holdx
            s_cmp_lt_u32 s88, {cfg['hold'] * 800}
            s_cbranch_scc1 L_hold
            L_holdx:
            """)
        if nxt_first and list(steps[ns]) in cfg.get('tsat', []): M += ts(f'@{steps[ns][0]}.{steps[ns][1]}')
    M += flush_armed()
    assert not memq, [(e['item'], e['ev']) for e in memq]
    M += drain_until(['rcv'])
    assert not fill and not sfill, (fill, sfill)
    M += ts('mainend')
    drop = cfg.get('drop', [])
    if drop:
        gone = set(); M2 = []
        for k, x in enumerate(M):
            if isinstance(x, I) and not x.raw and k > 3 and (x.kind in drop or ('xrd' in drop and x.tok and x.tok.startswith('sr')) or ('nop' in drop and x.kind == 'nop' and False)):
                if x.tok: gone.add(x.tok)
                continue
            M2.append(x)
        for x in M2:
            if isinstance(x, Wait): x.toks = [t for t in x.toks if t not in gone]
            else: x.waits = [t for t in x.waits if t not in gone]
        if 'vmwait' in drop:
            for x in M2:
                if isinstance(x, Wait): x.toks = [t for t in x.toks if not t.startswith('it')]
                else: x.waits = [t for t in x.waits if t.startswith('sr')]
        M = M2
    P.ext(M)
    TT = AF(3, 0)
    r7, o7 = cmb(7)
    P(f'v_xor_b32 v{TT+5}, 0x1000, v{r7}')
    P('s_mov_b32 s24, 0xffff0000')
    P(f'ds_write_b128 v{TT+5}, {vr(ACC2(1,1),4)} offset:{o7}', tok='c1w')
    def unpk(src):
        P(f'v_lshlrev_b32 v{TT}, 16, v{src}'); P(f'v_and_b32 v{TT+1}, s24, v{src}')
        P(f'v_lshlrev_b32 v{TT+2}, 16, v{src+1}'); P(f'v_and_b32 v{TT+3}, s24, v{src+1}')
    def addpk(dst, src):
        unpk(src)
        for r in range(4): P(f'v_add_f32 v{dst+r}, v{dst+r}, v{TT+r}')
    def rcheck():
        a, b = TT + 6, TT + 7
        L = [I(f'v_max3_u32 v{a}, v{R}, v{R+1}, v{R+2}'), I(f'v_max3_u32 v{b}, v{R+3}, v{R+4}, v{R+5}')]
        for k in range(6, 18, 4):
            L += [I(f'v_max3_u32 v{a}, v{a}, v{R+k}, v{R+k+1}'), I(f'v_max3_u32 v{b}, v{b}, v{R+k+2}, v{R+k+3}')]
        return L + [I(f'v_max_u32 v{a}, v{a}, v{b}'), I(f'v_cmp_eq_u32 vcc, -1, v{a}')]
    P.wait(['c1w'])
    P('s_barrier')
    P(f'ds_read_b128 {vr(ACC2(1,1),4)}, v{r7} offset:{o7}')
    g_ = retry_group(rloads, rcheck, sleep=1); P.ext(g_[:-2] + g_[-1])
    P.ext(ts('recv'))
    for k, (lt, rr) in enumerate(((0, lambda p: R+4*p), (8, lambda p: R8+2*p), (1, lambda p: R+4*p+2))):
        a = ACC2(lt, 0)
        if lt == 1:
            for r in range(4): P(f'v_add_f32 v{a+r}, v{a+r}, v{ACC2(1,1)+r}')
        for p in range(3): addpk(a, rr(p))
        P(f'ds_write_b128 v{TW}, {vr(a,4)} offset:{ {0: 0, 1: 64, 8: 128}[lt] }')
    Y = AF(5, 0)
    P(f'ds_read_b128 {vr(Y+8,4)}, v{TW+2} offset:128')
    P(f'ds_read_b128 {vr(Y,4)}, v{TW+1}')
    P(f'ds_read_b128 {vr(Y+4,4)}, v{TW+1} offset:16')
    for y, xr in ((Y + 8, 0), (Y, 8), (Y + 4, 10)):
        unpk(xr)
        for r in range(4): P(f'v_fma_f32 v{y+r}, v{y+r}, v15, v{TT+r}')
        d = {Y + 8: Y + 8, Y: Y, Y + 4: Y + 2}[y]
        P(f'v_cvt_pk_bf16_f32 v{d}, v{y}, v{y+1}'); P(f'v_cvt_pk_bf16_f32 v{d+1}, v{y+2}, v{y+3}')
        if y == Y + 8: P(f'buffer_store_dwordx2 {vr(Y+8,2)}, v{VSP+1}, s[{S_OUT}:{S_OUT+3}], s{S_O8} offen {cfg.get("ost", "sc1")}')
    P(f'buffer_store_dwordx4 {vr(Y,4)}, v{VSP}, s[{S_OUT}:{S_OUT+3}], s{S_O} offen {cfg.get("ost", "sc1")}')
    if TS:
        P('s_waitcnt vmcnt(0)')
        P.ext(ts('end'))
        P('s_memrealtime s[88:89]\ns_waitcnt lgkmcnt(0)')
        for k in range(st.nts if not cfg.get('cnt') else 11): P(f'v_writelane_b32 v8, s{S_TS + k}, {k}')
        P(f"""
        v_writelane_b32 v8, s101, 30
        v_writelane_b32 v8, s88, 31
        v_lshrrev_b32 v9, 2, v{V_L16}
        v_mov_b32 v10, s{S_OOB}
        v_cmp_gt_u32 vcc, 0x80, v9
        v_cndmask_b32 v9, v10, v9, vcc
        s_lshl_b32 s24, s2, 3
        s_add_u32 s24, s24, s{S_WAVE}
        s_lshl_b32 s24, s24, 7
        s_add_u32 s24, s24, {TS_OFF}
        buffer_store_dword v8, v9, {WS}, s24 offen
        """)
    if cfg.get('until'):
        P(f"""
        s_waitcnt vmcnt(0)
        s_mov_b32 s26, 20000
        L_spin:
        s_memrealtime s[24:25]
        s_waitcnt lgkmcnt(0)
        s_lshl_b32 s24, s24, 3
        s_sub_u32 s24, s24, s{S_NON}
        s_and_b32 s24, s24, 0x7fffffff
        s_sub_u32 s26, s26, 1
        s_cmp_eq_u32 s26, 0
        s_cbranch_scc1 L_done
        s_cmp_lt_u32 s24, {cfg['until'] * 800}
        s_cbranch_scc1 L_spin
        """)
    P('L_done:')
    P('s_endpgm')
    used = {x.text.split()[1] for x in P.p if isinstance(x, I) and x.op == 's_cbranch_vccnz'}
    for l, g in st.slowmap.items():
        if f'L_sl{l}' in used: P.ext(g)
    q, n = P.finish()
    if cfg.get('verbose'):
        from collections import Counter
        print('nops', n, Counter(x.kind for x in q))
        print('events', events)
    return kernel_text(name, q, 256, 102), st.tsn

HEADER = """; Fused kernel: [QKV | gate/up] GEMM on raw x with LayerNorm applied as a rank-1 correction, linear attention + GEGLU,
; down/out GEMM (split-K 4, exchanged between workgroups) + residual.
; Kernarg (80 bytes): 0 A_x, 8 A_wqkv, 16 A_wo, 24 B_x (unused), 32 w_gate, 40 w_up, 48 w_down, 56 out, 64 debug, 72 ws
; @launch grid=(256,1,1) block=(512,1,1) lds=163840
"""
if __name__ == '__main__':
    out = sys.argv[1]
    cfg = json.loads(sys.argv[2]) if len(sys.argv) > 2 else {}
    name = 'parallel_sum__linear_attn_block__geglu_ffn__prompt_kernel'
    (body, kd), tsn = gen(name, cfg)
    s = HEADER + (f'; ts: {" ".join(tsn)}\n' if tsn else '')
    s += '.amdgcn_target "amdgcn-amd-amdhsa--gfx950"\n.text\n' + body + '.section .rodata,"a"\n.p2align 6\n' + kd
    open(out, 'w').write(s)
```

```python
import sys, json
sys.path.insert(0, 'work')
from dsl import *

OOB = 0x40000000
ST_OFF = 0
CSP_OFF = 0x80000
WX_OFF = 0x240000; WX_J = 112 * 1024
A2_OFF = 0x600000; A2_MT = 160 * 1024
A2L_OFF = 0x1A00000
KVP_OFF = 0x1A40000
EX_OFF = 0x1B00000
EX8_OFF = 0x2200000
W2_OFF = 0x2300000; W2_S = 192 * 1024
F2_OFF = 0x2900000
F3_OFF = 0x2910000
F4_OFF = 0x2920000
TS_OFF = 0x2A00000
FL_OFF = 0x2B00000
WS_SIZE = 0x2C00000
HS = 262144

LDS_BYTES = 163840
NSLOT = 19; SLOT = 8192
MISC = NSLOT * SLOT
IT_L0 = 0; IT_R = 18; IT_Q = 21; IT_X = 26; IT_SCR = 35; IT_PK = 36; IT_L1 = 37; IT_W2 = 55; NW2 = 48
NITEM = IT_W2 + NW2

V_TR = 0; V_TH = 2; V_L16 = 4; V_LB = 5; V_DMA = 6; V_A = 1; V_T = 8; V_WF = 16; V_ACC = 32; V_XF = 112
V_XD = 12; V_XR = 14
BN = [12, 14]; C0 = [13, 15]; C1 = [0, 7]
def XF(ks, mt): return V_XF + (ks * 2 + mt) * 4
def ACC(u, nt, mt): return V_ACC + 16 * u + (nt * 2 + mt) * 4
def U(u): return [V_ACC + 16 * u + 4 * k for k in range(4)]

S_RED = 3
S_W = 4; S_WS = 8; S_R = 12; S_XS = 16; S_OUT = 20
S_T = 24
S_W1K = 32; S_A2 = 33; S_MW = 34; S_L2E = 35; S_EPS = 36; S_W256 = 37; S_OOB = 38; S_WAVE = 39
S_M4 = 40; S_G2 = 42; S_NMS = 44; S_RS = 45; S_KVST = 46; S_KVLD = 47; S_A2L = 48; S_EX = 49; S_E8R = 50
S_FH = 51; S_FL = 52; S_CNT = 53; S_NON = 54; S_F2S = 55; S_F2P = 56; S_F3S = 57; S_PT = 58
S_XN = 59; S_WX = 60; S_XST = 61; S_GP = 62; S_RSRC = 67; S_WXD = 68; S_OP = 70
S_A = 62; S_W2 = 64; S_W2K = 65; S_EXS = 66; S_E8S = 69; S_O = 59; S_O8 = 60; S_AL = 61; S_STK = 70
S_WO = 48; S_WD = 46; S_G1 = 72; S_G0 = 76
S_RDST = 80; S_LEFT = 83; S_RB = 84; S_J = 85; S_RX = 86; S_RW = 87
S_JO = [81, 82, 44, 45]; S_W2P = 55
S_TS = 90

K0C = -2.0 * 0.7978845608028654 * 1.4426950408889634
K1C = K0C * 0.044715

class Ctx: pass
class Ev:
    def __init__(self, name, bar=False): self.name = name; self.bar = bar
class Delay:
    def __init__(self, n): self.n = n
class Need:
    def __init__(self, name): self.name = name

def gen(name, cfg):
    D = cfg.get('dist', 3)
    TS = cfg.get('ts', False)
    SPIN = cfg.get('spin', 100000)
    MINGAP = cfg.get('mingap', 6)
    ROT = cfg.get('rot', [0, 3, 6])
    RT = sum(ROT[k % len(ROT)] << (4 * k) for k in range(16))
    S_ROT = S_NMS
    NR = cfg.get('nr', 5)
    NL0 = NSLOT - 2 * NR
    XST = NL0 * SLOT
    WS = f's[{S_WS}:{S_WS+3}]'
    XS = f's[{S_XS}:{S_XS+3}]'
    P = Prog(); st = Ctx(); st.tmp = 0; st.ft = 0; st.nts = 0; st.lab = 0; st.tsn = []; st.slowmap = {}
    S_SPN = 1
    def stmp():
        st.tmp = (st.tmp + 1) % 6; return S_T + st.tmp
    def ftmp():
        st.ft = (st.ft + 1) % 2; return S_T + 6 + st.ft
    def ts(nm):
        if not TS or cfg.get('cnt'): return []
        if 'tsat' in cfg and nm not in ('start', 's1start', 'end') and not nm.startswith('@'): return []
        k = st.nts; st.nts += 1; st.tsn.append(nm)
        assert k < 11
        if cfg.get('both'):
            return [I('s_memrealtime s[88:89]'), I('s_waitcnt lgkmcnt(0)'), I(f's_and_b32 s{S_TS+k}, s88, 0xffff'), I('s_memtime s[88:89]'), I('s_waitcnt lgkmcnt(0)'),
                    I('s_lshl_b32 s88, s88, 14'), I('s_and_b32 s88, s88, 0xffff0000'), I(f's_or_b32 s{S_TS+k}, s{S_TS+k}, s88')]
        return [I(('s_memrealtime' if cfg.get('rt') else 's_memtime') + ' s[88:89]'), I('s_waitcnt lgkmcnt(0)'), I(f's_mov_b32 s{S_TS+k}, s88')]
    slow = []
    def retry_group(loads, check, w0only=False, sleep=1):
        st.lab += 1; l = st.lab
        g = [I(f'L_sl{l}:'), I('s_nop 7'), I(f's_mov_b32 s{S_SPN}, {SPIN}'), I(f'L_rt{l}:'), I(f's_sleep {sleep}')]
        if cfg.get('cnt'):
            c_ = S_TS + (l - 1) % 11; g += [I(f's_add_u32 s{c_}, s{c_}, {1 if l <= 11 else 1000}')]
        g += loads() + [I('s_waitcnt vmcnt(0)')] + check()
        g += [I(f's_sub_u32 s{S_SPN}, s{S_SPN}, 1'), I(f's_cmp_eq_u32 s{S_SPN}, 0'), I(f's_cbranch_scc1 L_bk{l}'), I('s_nop 4'),
              I(f's_cbranch_vccnz L_rt{l}'), I(f's_branch L_bk{l}')]
        st.slowmap[l] = raw(g)
        return check() + [Delay(1), [I(f's_cbranch_vccnz L_sl{l}'), I(f'L_bk{l}:')]]
    def IL(txt): return [I(l) for l in txt.strip().split('\n') if l.strip()]
    l0s = list(range(6)) + list(range(9, NL0)); NLR = len(l0s)
    stab = [l0s[n % NLR] for n in range(18)] + [6, 7, 8] + list(range(NL0, NSLOT)) + [l0s[n % NLR] for n in range(18 - NLR, 18)]
    QF = cfg.get('qf', 0)
    if QF:
        seq = stab[18:35]
        stab[18:35] = seq[14:17] + seq[:14]
        cyc = stab[21:32] + stab[18:21] + stab[32:35]
    else: cyc = stab[21:31] + [6, 7, 8] + stab[31:35]
    RSV = stab[35:37]
    stab += cyc + cyc[:13] + RSV
    while len(stab) < NITEM: stab.append(stab[-NSLOT])
    PAIR = cfg.get('pair', 1)
    def L1it(h, k): return IT_L1 + (2 * k + h if PAIR else 9 * h + k)
    def L1hk(n): return (((n - IT_L1) & 1, (n - IT_L1) >> 1) if PAIR else divmod(n - IT_L1, 9))
    if PAIR:
        stab = stab[:IT_L1] + cyc + [cyc[0]]
        sa = [stab[L1it(0, k)] for k in range(1, 9)]; sb = [stab[L1it(1, k)] for k in range(9)]
        stab += sa + sb[:4] + RSV + sb[4:]
        while len(stab) < NITEM: stab.append(stab[-NSLOT])
    def slot_of(n): return stab[n]
    def prev_of(n):
        for m in range(n - 1, -1, -1):
            if stab[m] == stab[n]: return m
        s = stab[n]
        return 'stage' if s >= NL0 else ('gst' if 6 <= s < 9 else None)
    SCR = slot_of(IT_SCR) * SLOT; KVS = SCR

    if TS: P('s_memrealtime s[88:89]\ns_waitcnt lgkmcnt(0)\ns_mov_b32 s101, s88')
    P.ext(ts('start'))
    if cfg.get('cnt'):
        for k in range(11): P(f's_mov_b32 s{S_TS+k}, 0')
    P('s_cmp_ge_u32 s2, 256')
    P('s_cbranch_scc1 L_done')
    P(f's_load_dwordx2 s[{S_XS}:{S_XS+1}], s[0:1], 0')
    P(f's_load_dwordx4 s[{S_G0}:{S_G0+3}], s[0:1], 32')
    B = V_ACC
    VL = B; VOOB = B + 1; VG = B + 2; VSR = B + 4
    CPRE = f"""
        s_getpc_b64 s[24:25]
        s_mov_b32 s26, L_done - L_cp
        L_cp:
        s_mov_b32 s27, 0x20000
        s_and_b32 s30, s2, 0xf8
        s_lshl_b32 s30, s30, 8
        v_lshlrev_b32 v{V_ACC+6}, 2, v0
        buffer_load_dword v{V_ACC+7}, v{V_ACC+6}, s[24:27], s30 offen
        """
    if cfg.get('cpre', 1) == 1: P(CPRE)
    MAP = cfg.get('map', 0)
    if MAP: ROLE = f"s_bfe_u32 s27, s2, 0x20003\ns_and_b32 s25, s2, 1\ns_lshl2_add_u32 s27, s25, s27\ns_lshr_b32 s{S_RB}, s2, 5"
    else: ROLE = f"s_bfe_u32 s27, s2, 0x30003\ns_and_b32 s25, s2, 4\ns_lshr_b32 s26, s2, 6\ns_add_u32 s{S_RB}, s25, s26"
    P(f"""
    v_lshrrev_b32 v8, 6, v0
    v_bfe_u32 v{VG}, v0, 4, 2
    v_readfirstlane_b32 s{S_WAVE}, v8
    {ROLE}
    v_bfe_u32 v{VSR}, v0, 3, 3
    v_xor_b32 v9, v0, v{VG}
    v_and_b32 v9, 7, v9
    v_mul_u32_u24 v11, 72, v{VSR}
    v_add_lshl_u32 v{V_XD}, v9, v11, 4
    v_xor_b32 v{V_XD+1}, 64, v{V_XD}
    v_add_u32 v{V_XD+1}, {8*1152}, v{V_XD+1}
    s_lshl_b32 s24, s{S_RB}, 3
    s_add_u32 s24, s24, s{S_WAVE}
    s_mul_i32 s{S_XN}, s24, {32*1152}
    s_mul_i32 s{S_XST}, s{S_WAVE}, {NR*2048}
    s_add_u32 s{S_XST}, s{S_XST}, {XST}
    s_add_u32 s25, s27, s{S_RB}
    s_lshl_b32 s25, s25, 2
    s_mov_b32 s{S_RX}, {RT & 0xffffffff:#x}
    s_mov_b32 s{S_RW}, {RT >> 32:#x}
    s_lshr_b64 s[{S_RX}:{S_RW}], s[{S_RX}:{S_RW}], s25
    s_and_b32 s{S_ROT}, s{S_RX}, 15
    s_lshl_b32 s{S_RX}, s{S_ROT}, 7
    s_add_u32 s{S_XN}, s{S_XN}, s{S_RX}
    s_mov_b32 s{S_XS+2}, 2359296
    s_mov_b32 s{S_XS+3}, 0x20000
    """)
    PRO2 = f"""
    s_bfe_u32 s26, s2, {0x20001 if MAP else 0x20000:#x}
    s_lshl3_add_u32 s{S_J}, s26, s31
    s_mul_i32 s{S_RW}, s{S_ROT}, {64*9216}
    s_mov_b32 s{S_W+2}, 5308416
    s_mov_b32 s{S_W+3}, 0x20000
    s_lshl_b32 s{S_W1K}, s{S_WAVE}, 10
    v_lshrrev_b32 v8, 3, v0
    v_and_b32 v11, 0x13, v8
    v_lshrrev_b32 v9, 2, v0
    v_and_or_b32 v11, v9, 8, v11
    v_lshrrev_b32 v9, 4, v0
    v_and_or_b32 v11, v9, 4, v11
    v_mul_u32_u24 v11, 576, v11
    v_xor_b32 v8, v8, v0
    v_and_b32 v8, 6, v8
    v_and_or_b32 v8, v0, 1, v8
    s_cmp_eq_u32 s31, 3
    s_cselect_b32 s30, 31, 0
    s_add_u32 s30, s30, s{S_J}
    s_lshl_b32 s30, s30, 3
    v_add3_u32 v{V_DMA}, v11, v8, s30
    v_lshlrev_b32 v{V_DMA}, 4, v{V_DMA}
    s_cmp_ge_u32 s{S_WAVE}, 4
    s_cselect_b32 s{S_W}, s{S_G0+2}, s{S_G0}
    s_cselect_b32 s{S_W+1}, s{S_G0+3}, s{S_G0+1}
    """
    PRO3 = f"""
    s_load_dwordx2 s[{S_OUT}:{S_OUT+1}], s[0:1], 64
    s_load_dwordx2 s[{S_WS}:{S_WS+1}], s[0:1], 72
    s_load_dwordx2 s[{S_G1}:{S_G1+1}], s[0:1], 8
    s_load_dwordx2 s[{S_WO}:{S_WO+1}], s[0:1], 16
    s_load_dwordx2 s[{S_WD}:{S_WD+1}], s[0:1], 48
    s_load_dwordx2 s[{S_OP}:{S_OP+1}], s[0:1], 56
    s_memrealtime s[28:29]
    v_and_b32 v{VL}, 63, v0
    s_mov_b32 s{S_OOB}, {OOB}
    v_mov_b32 v{VOOB}, s{S_OOB}
    v_lshlrev_b32 v{V_L16}, 4, v{VL}
    s_lshl_b32 s26, s{S_RB}, 5
    s_add_u32 s26, s26, s{S_J}
    s_lshl3_add_u32 s31, s26, s{S_WAVE}
    s_mul_i32 s{S_RS}, s31, 1152
    s_lshl_b32 s{S_RX}, s{S_ROT}, 12
    s_add_u32 s{S_RX}, s{S_RX}, s{S_W1K}
    s_mov_b32 s{S_OUT+2}, 256
    s_mov_b32 s{S_OUT+3}, 0x20000
    v_cmp_eq_u32 vcc, 0, v0
    v_cndmask_b32 v10, v{VOOB}, 0, vcc
    s_waitcnt lgkmcnt(0)
    s_lshl_b32 s28, s28, 3
    s_or_b32 s28, s28, 0x80000000
    v_mov_b32 v11, s28
    """
    P('s_mov_b32 s31, s27\ns_waitcnt lgkmcnt(0)')
    def adv(reg, nextpair, total, unit):
        if nextpair == 9: return [I(f's_mul_i32 s{reg}, s{S_ROT}, {unit}')]
        if (9 - nextpair) in ROT:
            t = stmp()
            return [I(f's_cmp_eq_u32 s{S_ROT}, {9 - nextpair}'), I(f's_cselect_b32 s{t}, {total}, 0'), I(f's_sub_u32 s{reg}, s{reg}, s{t}')]
        return []
    def dma(n):
        L = [I(f's_add_u32 m0, s{S_W1K}, {slot_of(n) * SLOT}')]
        if n < 18:
            t = stmp()
            L += [I(f's_add_u32 s{t}, s{S_RW}, {n * 32 * 9216}'), I(f'buffer_load_dwordx4 v{V_DMA}, s[{S_W}:{S_W+3}], s{t} offen {cfg.get("wnt", "")} lds', tok=f'it{n}')]
            if n & 1: L += adv(S_RW, (n + 1) // 2, 576*9216, 64*9216)
        elif n < IT_Q:
            t = stmp()
            L += [I(f's_add_u32 s{t}, s{S_RSRC if not cfg.get("fakeR") else S_OOB}, {(n - IT_R) * 128}'),
                  I(f'buffer_load_dwordx4 v{V_A if QF else U(4)[2]+1}, s[{S_R}:{S_R+3}], s{t} offen {cfg.get("rnt", "nt")} lds', tok=f'it{n}')]
        elif n < IT_SCR:
            t = stmp(); isq = n < IT_X
            L += [I(f's_add_u32 s{t}, s{S_WX}, s{S_RX}'),
                  I(f'buffer_load_dwordx4 v{V_L16}, {WS}, s{t} offen sc1 lds', tok=f'it{n}')]
            if n == IT_X - 1:
                L += [I(f's_add_u32 s{S_WX}, s{S_WX}, {40*1024}'), I(f's_lshl_b32 s{S_RX}, s{S_ROT}, 13'), I(f's_add_u32 s{S_RX}, s{S_RX}, s{S_W1K}')]
            else:
                wrap = (36 if isq else 72) * 1024
                L += [I(f's_add_u32 s{S_RX}, s{S_RX}, 8192'), I(f's_sub_u32 s{t}, s{S_RX}, {wrap}'), I(f's_cselect_b32 s{S_RX}, s{S_RX}, s{t}')]
        elif n < IT_W2:
            t = stmp()
            L += [I(f's_add_u32 s{t}, s{S_RW}, {L1hk(n)[0] * 64 + L1hk(n)[1] * 64 * 9216}'),
                  I(f'buffer_load_dwordx4 v{V_DMA}, s[{S_W}:{S_W+3}], s{t} offen {cfg.get("wnt", "")} lds', tok=f'it{n}')] + (adv(S_RW, L1hk(n)[1] + 1, 576*9216, 64*9216) if (not PAIR or L1hk(n)[0]) else [])
        else:
            t = stmp()
            k = n - IT_W2
            if k < 35 and cfg.get('r2', 0):
                L += [I(f's_add_u32 s{t}, s{S_RX}, {(k // 7) * 28672}'),
                      I(f'buffer_load_dwordx4 v{V_L16}, {WS}, s{t} offen sc1 lds', tok=f'it{n}'),
                      I(f's_add_u32 s{S_RX}, s{S_RX}, 4096'), I(f's_cmp_ge_u32 s{S_RX}, s{S_W2}'), I(f's_cselect_b32 s{t}, 28672, 0'), I(f's_sub_u32 s{S_RX}, s{S_RX}, s{t}')]
            else:
                L += [I(f's_add_u32 s{t}, s{S_W2K if k in (35, 36, 47) else (S_W2P if cfg.get("r2", 0) else S_W2)}, {k * 4096}'),
                      I(f'buffer_load_dwordx4 v{V_L16}, {WS}, s{t} offen sc1 lds', tok=f'it{n}')]
        return L
    GPOS = cfg.get('gpos', 8)
    stg = [('x', p) for p in range(18)]
    spos = {e: k for k, e in enumerate(stg)}
    VGA = U(4)[2]
    def sdma(k, h):
        kind, p = stg[k]
        w = [f'sr{k-NR}_0', f'sr{k-NR}_1'] if k >= NR else []
        t = stmp()
        L = [I(f's_add_u32 m0, s{S_XST}, {(k % NR) * 2048 + h * 1024}')]
        if kind == 'x':
            L += [I(f's_add_u32 s{t}, s{S_XN}, {(p >> 1) * 128 + (p & 1) * 18432}')]
            L += [I(f'buffer_load_dwordx4 v{V_XD+h}, {XS}, s{t} offen lds', tok=f's{k}_{h}', waits=w)]
            if (p & 1) and h and p < 17: L += adv(S_XN, (p + 1) // 2, 1152, 0)
        return L
    GL = [[6 * SLOT, 7 * SLOT], [8 * SLOT, MISC]]
    def gdma(p, h):
        t = stmp(); S = S_G0 if p == 0 else S_G1
        return [I(f's_add_u32 m0, s{S_W1K}, {GL[p][h]}'),
                I(f's_add_u32 s{t}, s{S_GP+p}, ' + (('0' if h == 0 else f's{S_GP+2}') if p == 0 else str(h * 4 * 3456))),
                I(f'buffer_load_dwordx4 v{VGA+p}, s[{S}:{S+3}], s{t} offen {cfg.get("gnt", "")} lds', tok=f'sg{p}_{h}')]
    def xread(p, d):
        k = spos[('x', p)]
        return I(f'ds_read_b128 {vr(XF(2*(p>>1)+d, p&1),4)}, v{V_XR+d} offset:{(k % NR) * 2048}', tok=f'sr{k}_{d}', waits=[f's{k}_0', f's{k}_1'])
    if cfg.get('tsp'): P.ext(ts('@karg'))
    P.ext(sdma(0, 0)); P.ext(sdma(0, 1))
    P(PRO2)
    P.ext(dma(0))
    P.ext(sdma(1, 0)); P.ext(sdma(1, 1))
    P.ext(dma(1))
    if cfg.get('cpre', 1) == 2: P(CPRE)
    PS = cfg.get('ps', 4)
    NPRE = cfg.get('npre', 4)
    PS0 = cfg.get('ps0', 2); NP0 = cfg.get('np0', 2)
    for k in range(2, max(PS0, NP0)):
        if k < PS0: P.ext(sdma(k, 0)); P.ext(sdma(k, 1))
        if k < NP0: P.ext(dma(k))
    P(PRO3)
    if cfg.get('tsp'): P.ext(ts('@b1'))
    P(f's_cmp_eq_u32 s2, 0\ns_cselect_b32 s29, 0, s{S_OOB}\nbuffer_store_dword v11, v10, s[{S_OUT}:{S_OUT+3}], s29 offen sc1')
    if cfg.get('dbgstart'):
        P(f's_lshl_b32 s29, s2, 2\ns_add_u32 s29, s29, 4\ns_cmp_lt_u32 s2, 15\ns_cselect_b32 s29, s29, s{S_OOB}\nbuffer_store_dword v11, v10, s[{S_OUT}:{S_OUT+3}], s29 offen sc1')
    VN2 = B + 16; VT3 = B + 17; VRW = B + 18
    P(f"""
    v_and_b32 v8, 3, v{VL}
    v_lshlrev_b32 v{VN2}, 4, v8
    v_cmp_gt_u32 vcc, 2, v8
    v_cndmask_b32 v{VN2}, v{VOOB}, v{VN2}, vcc
    v_mov_b32 v{VT3}, {2*(1152+16)}
    v_cmp_eq_u32 vcc, 1, v8
    v_cndmask_b32 v{VT3}, v{VT3}, 32, vcc
    v_mov_b32 v9, {2*(576+16)}
    v_cmp_eq_u32 vcc, 2, v8
    v_cndmask_b32 v{VT3}, v{VT3}, v9, vcc
    v_cmp_eq_u32 vcc, 3, v8
    v_cndmask_b32 v{VT3}, v{VT3}, v{VOOB}, vcc
    v_bfe_u32 v9, v{VL}, 2, 2
    v_lshl_add_u32 v{VRW}, v{VG}, 3, v9
    """)
    GSO = [S_GP, S_GP + 1]; GST = S_GP + 2
    P(f's_and_b32 s{S_NON}, s2, 3\ns_lshl_b32 s{S_NON}, s{S_NON}, 3\ns_add_u32 s{S_NON}, s{S_NON}, s{S_WAVE}')
    for i in range(2):
        P(f"""
        s_lshr_b32 s24, s2, 2
        s_add_u32 s24, s24, {64*i}
        s_sub_u32 s25, s24, 36
        s_lshr_b32 s26, s25, 2
        s_mul_i32 s26, s26, 110592
        s_and_b32 s25, s25, 3
        s_mul_i32 s27, s{S_NON}, 36
        s_add_u32 s26, s26, s27
        s_mul_i32 s27, s25, 1152
        s_cmp_eq_u32 s25, 3
        s_cselect_b32 s27, 0, s27
        s_cselect_b64 s[{S_G2}:{S_G2+1}], -1, 0
        s_add_u32 s{GSO[i]}, s26, s27
        """)
        if i == 0:
            P(f"""
            s_lshr_b32 s26, s24, 1
            s_mul_i32 s26, s26, 294912
            s_lshl_b32 s27, s{S_NON}, 5
            s_add_u32 s26, s26, s27
            s_add_u32 s26, s26, 8192
            s_bitcmp1_b32 s24, 0
            s_cselect_b32 s{S_G0}, s{S_G0+2}, s{S_G0}
            s_cselect_b32 s{S_G0+1}, s{S_G0+3}, s{S_G0+1}
            s_mov_b32 s28, 1990656
            s_mov_b32 s29, 3456
            s_cmp_lt_u32 s24, 36
            s_cselect_b32 s{S_G0}, s{S_G0}, s{S_G1}
            s_cselect_b32 s{S_G0+1}, s{S_G0+1}, s{S_G1+1}
            s_cselect_b32 s{S_G0+2}, 5308416, s28
            s_mov_b32 s{S_G0+3}, 0x20000
            s_cselect_b32 s{GSO[0]}, s26, s{GSO[0]}
            s_cselect_b32 s{GST}, 9216, s29
            s_cselect_b64 s[{S_G2}:{S_G2+1}], 0, s[{S_G2}:{S_G2+1}]
            s_cselect_b32 s30, 0, 4
            s_mov_b32 s27, s{GST}
            s_lshl_b32 s{GST}, s{GST}, 2
            """)
        else:
            P('s_mov_b32 s27, 3456\ns_mov_b32 s30, 4')
        P(f"""
        s_and_b32 s{S_GP+3+i}, s{S_G2}, 1
        s_add_u32 s{S_GP+3+i}, s{S_GP+3+i}, 3
        v_cndmask_b32 v8, v{VN2}, v{VT3}, s[{S_G2}:{S_G2+1}]
        v_mul_lo_u32 v11, v{VRW}, s27
        v_add_u32 v{VGA+i}, v8, v11
        s_mul_i32 s26, s{S_NON}, 112
        s_add_u32 s26, s26, s24
        s_add_u32 s26, s26, s30
        s_lshl_b32 s26, s26, 10
        s_add_u32 s26, s26, {WX_OFF}
        s_cmp_lt_u32 s24, 108
        s_cselect_b32 s{S_WXD+i}, s26, s{S_OOB}
        """)
        if i: P(f's_cselect_b32 s{S_G1+2}, 1990656, 0\ns_mov_b32 s{S_G1+3}, 0x20000')
    ONES = U(4)[0]; CSA = U(4)[1]
    P(f"""
    s_mov_b32 s{S_WS+2}, {WS_SIZE}
    s_mov_b32 s{S_WS+3}, 0x20000
    s_lshl_b32 s{S_PT}, s31, 7
    v_lshrrev_b32 v8, 5, v{VL}
    v_lshlrev_b32 v8, 11, v8
    v_bfe_u32 v11, v{VL}, 2, 3
    v_lshl_add_u32 v8, v11, 7, v8
    v_bfe_u32 v11, v{VL}, 3, 2
    v_lshl_add_u32 v8, v11, 5, v8
    v_and_b32 v11, 3, v{VL}
    v_lshl_add_u32 v{V_TR}, v11, 3, v8
    v_xor_b32 v{V_TR+1}, 32, v{V_TR}
    v_xor_b32 v{V_TR+2}, 64, v{V_TR}
    v_xor_b32 v{V_TR+3}, 96, v{V_TR}
    s_and_b32 s24, s{S_WAVE}, 3
    s_lshl_b32 s24, s24, 5
    s_and_b32 s25, s{S_W1K}, 0x1000
    s_or_b32 s24, s24, s25
    v_xor_b32 v{V_LB}, s24, v{V_TR}
    v_and_b32 v9, 15, v{VL}
    v_lshrrev_b32 v11, 1, v9
    v_xor_b32 v11, v11, v{VG}
    v_lshlrev_b32 v11, 4, v11
    v_lshl_add_u32 v11, v9, 7, v11
    v_add_u32 v{V_XR}, s{S_XST}, v11
    v_xor_b32 v{V_XR+1}, 64, v{V_XR}
    """)
    for r in range(4): P(f'v_mov_b32 v{ONES+r}, 0x3f803f80')
    sqa = [f's_lshl_b32 s73, s{S_RB}, 4', f's_lshl_b32 s74, s{S_WAVE}, 1', 's_add_u32 s73, s73, s74', f's_mul_i32 s{S_A2}, s73, {A2_MT}',
           f's_mul_i32 s74, s{S_J}, 5120', f's_add_u32 s{S_A2}, s{S_A2}, s74', f's_add_u32 s{S_A2}, s{S_A2}, {A2_OFF}']
    sq_txt = []
    SQ = sq_txt.append
    C = 72; TA = S_G2; TB_ = S_G2 + 1; S_E8P = S_W256
    SQ(f"""
            s_lshr_b32 s73, s2, 2
            s_lshl_b32 s73, s73, 1
            s_lshr_b32 s74, s{S_WAVE}, 2
            s_add_u32 s73, s73, s74
            s_mul_i32 s74, s73, 21846
            s_lshr_b32 s74, s74, 16
            s_mul_i32 s75, s74, 3
            s_sub_u32 s75, s73, s75
            s_mul_i32 s76, s74, 13108
            s_lshr_b32 s76, s76, 16
            s_mul_i32 s77, s76, 5
            s_sub_u32 s77, s74, s77
            s_and_b32 s78, s2, 3
            s_lshl_b32 s78, s78, 3
            s_add_u32 s78, s78, s76
            s_and_b32 s79, s{S_WAVE}, 3
            s_cmp_eq_u32 s76, 3
            s_cselect_b32 s73, 31, 0
            s_cmp_eq_u32 s76, 2
            s_cselect_b32 s{TA}, 1, 32
            s_cmp_lt_u32 s77, 2
            s_cselect_b32 s73, s73, s{TA}
            s_add_u32 s73, s73, s78
            s_lshl_b32 s73, s73, 6
            s_and_b32 s{TA}, s77, 1
            s_lshl_b32 s{TA}, s{TA}, 5
            s_add_u32 s73, s73, s{TA}
            s_lshl_b32 s{TA}, s79, 3
            s_add_u32 s73, s73, s{TA}
            s_lshl_b32 s{TB_}, s78, 4
            s_add_u32 s{TB_}, s{TB_}, 4096
            s_add_u32 s{TB_}, s{TB_}, s{TA}
            s_mul_i32 s{C}, s78, 18
            s_add_u32 s{C}, s{C}, s{TA}
            s_sub_u32 s{C}, s{C}, 16
            s_cmp_lt_u32 s79, 2
            s_cselect_b32 s{TB_}, s{TB_}, s{C}
            s_cselect_b32 s{C}, 0, 1
            s_cmp_eq_u32 s77, 4
            s_cselect_b32 s73, s{TB_}, s73
            s_cselect_b32 s{C}, s{C}, 0
            s_and_b32 s{TB_}, s2, 3
            s_lshl_b32 s{TB_}, s{TB_}, 1
            s_add_u32 s{TB_}, s{TB_}, s79
            s_mul_i32 s{TB_}, s{TB_}, 72
            s_add_u32 s{TB_}, s{TB_}, 16
            s_cmp_ge_u32 s74, 40
            s_cselect_b32 s73, s{TB_}, s73
            s_cselect_b32 s{C}, 1, s{C}
            s_cselect_b32 s{S_LEFT}, 18432, 0
            s_cselect_b32 s{TB_}, s79, 0
            s_mul_i32 s73, s73, 1152
            s_mul_i32 s78, s75, 384
            s_add_u32 s{S_RSRC}, s73, s78
            s_mov_b32 s73, 663552
            s_cmp_eq_u32 s{C}, 1
            s_cselect_b32 s{S_R}, s{S_WO}, s{S_WD}
            s_cselect_b32 s{S_R+1}, s{S_WO+1}, s{S_WD+1}
            s_cselect_b32 s{S_R+2}, s73, 5308416
            s_cmp_ge_u32 s{TB_}, 2
            s_cselect_b32 s{S_R+2}, 0, s{S_R+2}
        s_mov_b32 s{S_R+3}, 0x20000

            s_sub_u32 s73, 7, s77
            s_cmp_lt_u32 s77, 3
            s_cselect_b32 s73, s77, s73
            s_lshl_b32 s73, s73, 2
            s_and_b32 s77, s76, 3
            s_add_u32 s73, s73, s77
            s_lshr_b32 s76, s76, 2
            s_cmp_ge_u32 s74, 40
            s_cselect_b32 s73, 20, s73
            s_cselect_b32 s76, 0, s76
            s_mul_i32 s75, s75, 12
            s_add_u32 s75, s75, s79
        """)
    for i in range(3):
        SQ(f"""
            s_add_u32 s77, s75, {4*i}
            s_mul_i32 s78, s77, 7282
            s_lshr_b32 s78, s78, 16
            s_mul_i32 s79, s78, 9
            s_sub_u32 s79, s77, s79
            s_lshr_b32 s77, s79, 1
            s_sub_u32 s77, s77, s2
            s_and_b32 s77, s77, 3
            s_lshl_b32 s77, s77, 1
            s_and_b32 s{TA}, s79, 1
            s_add_u32 s77, s77, s{TA}
            s_cmp_eq_u32 s79, 8
            s_cselect_b32 s77, 8, s77
            s_mul_i32 s79, s73, 7
            s_add_u32 s79, s79, s77
            s_sub_u32 s79, s79, 2
            s_cmp_eq_u32 s73, 20
            s_cselect_b32 s{TA}, 1, 20
            s_cselect_b32 s{TB_}, 20, 0
            s_mul_i32 s{TA}, s{TA}, s77
            s_add_u32 s{TA}, s{TA}, s73
            s_add_u32 s{TA}, s{TA}, s{TB_}
            s_add_u32 s{TA}, s{TA}, 148
            s_cmp_ge_u32 s77, 2
            s_cselect_b32 s79, s79, s{TA}
            s_and_b32 s{TA}, s2, 3
            s_lshl_b32 s{TA}, s{TA}, 2
            s_add_u32 s{TA}, s{TA}, s78
            s_lshl_b32 s{TA}, s{TA}, 1
            s_add_u32 s{TA}, s{TA}, s76
            s_mul_i32 s{TA}, s{TA}, 192
            s_add_u32 s{TA}, s{TA}, s79
            s_lshl_b32 s{TA}, s{TA}, 10
            s_add_u32 s{TA}, s{TA}, {W2_OFF}
            s_cmp_lt_u32 s74, 41
            s_cselect_b32 s{S_RDST+i}, s{TA}, s{S_OOB}
            """)
    SQ(f's_mov_b32 s{S_G2}, 0\ns_mov_b32 s{S_G2+1}, 0x0000ffff')
    SQ(f"""
            s_mul_i32 s{S_WX}, s{S_J}, {WX_J}
            s_add_u32 s{S_WX}, s{S_WX}, {WX_OFF}
            s_lshr_b32 s73, s{S_J}, 3
            s_lshl_b32 s73, s73, 13
            s_add_u32 s73, s73, {F2_OFF}
            s_add_u32 s{S_F2P}, s73, s{S_W1K}
            s_and_b32 s73, s2, 3
            s_lshl_b32 s73, s73, 6
            s_lshr_b32 s74, s2, 2
            s_add_u32 s74, s74, s73
            s_lshl_b32 s74, s74, 7
            s_add_u32 s74, s74, {F2_OFF}
            s_lshl_b32 s75, s2, 7
            s_add_u32 s75, s75, {F3_OFF}
            s_cmp_eq_u32 s{S_WAVE}, 0
            s_cselect_b32 s{S_F2S}, s74, s{S_OOB}
            s_cselect_b32 s{S_F3S}, s75, s{S_OOB}
            s_lshl_b32 s73, s2, 3
            s_add_u32 s73, s73, s{S_WAVE}
            s_mul_i32 s73, s73, 3072
            s_add_u32 s{S_EX}, s73, {EX_OFF}
            s_lshr_b32 s73, s2, 2
            s_lshl_b32 s73, s73, 3
            s_add_u32 s73, s73, s{S_WAVE}
            s_lshl_b32 s73, s73, 11
            s_add_u32 s73, s73, {EX8_OFF}
            s_xor_b32 s74, s2, s{S_WAVE}
            s_and_b32 s74, s74, 3
            s_cmp_eq_u32 s74, 0
            s_cselect_b32 s{S_E8R}, s73, s{S_OOB}
            s_lshl_b32 s73, s{S_RB}, 4
            s_lshl_b32 s74, s{S_WAVE}, 1
            s_add_u32 s73, s73, s74
            s_lshl_b32 s{S_A2L}, s73, 11
            s_lshl_b32 s74, s{S_J}, 7
            s_add_u32 s{S_A2L}, s{S_A2L}, s74
            s_add_u32 s{S_A2L}, s{S_A2L}, {A2L_OFF}
            s_lshl_b32 s{S_W256}, s{S_WAVE}, 8
            s_lshl_b32 s73, s{S_J}, 3
            s_add_u32 s74, s73, s{S_RB}
            s_mul_i32 s74, s74, 1536
            s_lshl_b32 s75, s{S_WAVE}, 8
            s_add_u32 s75, s75, {KVP_OFF}
            s_add_u32 s74, s74, s75
            s_mul_i32 s73, s73, 1536
            s_add_u32 s73, s73, s75
            s_cmp_lt_u32 s{S_WAVE}, 6
            s_cselect_b32 s{S_KVST}, s74, s{S_OOB}
            s_cselect_b32 s{S_KVLD}, s73, s{S_OOB}
            s_add_u32 s73, s{S_W256}, {SCR}
            s_add_u32 s74, s{S_W256}, {MISC - 1024}
            s_cmp_lt_u32 s{S_WAVE}, 4
            s_cselect_b32 s{S_RED}, s73, s74
            s_lshl_b32 s73, s{S_RB}, 2
            s_lshr_b32 s74, s{S_J}, 3
            s_add_u32 s73, s73, s74
            s_lshl_b32 s73, s73, 13
            s_add_u32 s73, s73, {FL_OFF}
            s_add_u32 s{S_FL}, s73, s{S_W1K}
            s_and_b32 s74, s{S_J}, 7
            s_lshl_b32 s74, s74, 7
            s_add_u32 s{S_FL}, s{S_FL}, s74
            s_and_b32 s73, s2, 4
            s_lshr_b32 s74, s2, 6
            s_add_u32 s73, s73, s74
            s_lshl_b32 s73, s73, 2
            s_and_b32 s74, s2, 3
            s_add_u32 s73, s73, s74
            s_lshl_b32 s73, s73, 13
            s_add_u32 s73, s73, {FL_OFF}
            s_and_b32 s74, s2, 32
            s_lshl_b32 s74, s74, 7
            s_add_u32 s73, s73, s74
            s_and_b32 s74, s{S_WAVE}, 3
            s_lshl_b32 s74, s74, 10
            s_add_u32 s{S_FH}, s73, s74
            s_and_b32 s73, s{S_WAVE}, 1
            s_lshl_b32 s73, s73, 5
            s_and_b32 s74, s{S_WAVE}, 2
            s_lshl_b32 s74, s74, 11
            s_or_b32 s73, s73, s74
            s_and_b32 s74, s{S_WAVE}, 4
            s_lshl_b32 s74, s74, 9
            s_or_b32 s{S_MW}, s73, s74
            s_mul_i32 s73, s{S_WAVE}, 86
            s_lshr_b32 s73, s73, 8
            s_mul_i32 s74, s73, 3
            s_sub_u32 s74, s{S_WAVE}, s74
            s_lshl_b32 s74, s74, 9
            s_lshl_b32 s73, s73, 2
            s_and_b32 s75, s2, 3
            s_add_u32 s73, s73, s75
            s_lshr_b32 s75, s2, 2
            s_lshl_b32 s75, s75, 3
            s_add_u32 s73, s73, s75
            s_lshl_b32 s73, s73, 11
            s_add_u32 s73, s73, s74
            s_add_u32 s73, s73, {EX8_OFF}
            s_cmp_lt_u32 s{S_WAVE}, 6
            s_cselect_b32 s{S_E8P}, s73, s{S_OOB}
            s_mov_b32 s{S_L2E}, {f2u(1.4426950408889634):#x}
            s_mov_b32 s{S_EPS}, {f2u(1e-6):#x}
            s_mov_b32 s{S_M4}, 0x00040004
            s_mov_b32 s{S_M4+1}, 0x00040004
        """)
    P.ext(ts('setup' if not cfg.get('tsp') else '@setup'))
    GP = cfg.get('gpro', -1)
    for k in range(1, max(PS, NPRE) + 1):
        if k == GP:
            for g_ in range(4): P.ext(gdma(g_ >> 1, g_ & 1))
        if NP0 <= k < NPRE: P.ext(dma(k))
        if PS0 <= k + 1 < PS:
            P.ext(sdma(k + 1, 0)); P.ext(sdma(k + 1, 1))
    P.ext(ts('issued' if not cfg.get('tsp') else '@issued'))
    for p in range(2):
        P.ext([xread(p, 0), xread(p, 1)])
    if cfg.get('tsp'): P.ext(ts('@x01'))

    base = {r: 0 for r in (V_TR, V_TR+1, V_TR+2, V_TR+3, V_LB)}
    def lds_addr(reg, addr, span):
        fx = []
        if not (0 <= addr - base[reg] and addr + span - base[reg] <= 65535):
            nb = min((addr // SLOT) * SLOT, LDS_BYTES - 65536)
            fx.append(I(f'v_add_u32 v{reg}, {(nb - base[reg]) & 0xffffffff:#x}, v{reg}'))
            base[reg] = nb
        return fx, addr - base[reg]
    xq = [V_XF + 4 * k for k in range(36)]
    acc1 = U(0) + U(2) + U(3) + [xq[34], xq[35]]
    def ACC2(lt, mt):
        if lt >= 2: return acc1[(lt - 2) * 2 + mt]
        return acc1[(lt * 2 + mt) * 2 + 1]
    aq = xq[:34] + U(1) + U(4)[:2]
    def AF(sp, mt): return aq[sp * 2 + mt]
    V_AL = U(4)[2]; VSP = U(4)[3]
    V_L8 = V_TH
    T0 = [ACC(0, 0, 0), ACC(0, 0, 1)]; T1 = [ACC(0, 1, 0), ACC(0, 1, 1)]
    T2 = [ACC(1, 0, 0), ACC(1, 0, 1)]; T3 = [ACC(1, 1, 0), ACC(1, 1, 1)]

    frags = []; steps = []
    def add_step(nm, fl):
        for f in fl:
            f['step'] = len(steps); frags.append(f)
        steps.append(nm)
    def Lf(line, ks, tiles):
        fl = []
        for (T, u) in tiles:
            for mat in range(2):
                mf_ = [(ACC(u, mat, mt), XF(ks, mt), False, ks == 0) for mt in range(2)]
                if line == 0: fl.append(dict(item=IT_L0 + ks, kind='tr', reg=V_TR + T, off=mat * 4096, mf=mf_))
                else: fl.append(dict(item=L1it(T >> 1, ks >> 1), kind='tr', reg=V_TH + (T & 1), off=mat * 4096 + (ks & 1) * 2048, mode='h', mf=mf_))
        return fl
    def Cf(item, acc, ones, first, mode):
        return [dict(item=item, kind='tr', reg=V_LB, off=0, mode=mode, mf=[(acc, ones, True, first)])]
    def Kf(u, nt, off, swap=False, zero=False):
        return [dict(item=None, kind='k', mode='k', off=off, mf=[(ACC(u, nt, mt), BN[mt], swap, zero) for mt in range(2)])]
    def Ku(u, kb0, kb1, o, zero=False): return Kf(u, 0, kb0 * 1024 + o, False, zero) + Kf(u, 1, kb1 * 1024 + o, False, zero)
    K1 = cfg.get('k1', 15); K3 = cfg.get('k3', 8); K4 = cfg.get('k4', 8)
    for ks in range(K1): add_step(('S1', ks), Cf(ks, CSA, ONES, ks == 0, 'c0') + Lf(0, ks, [(0, 0), (1, 1), (2, 2), (3, 3)]))
    for u in range(4):
        for ks in range(K1, 18):
            fl = Lf(0, ks, [(u, u)])
            if u == 0 and ks == K1:
                cl = [f for k2 in range(K1, 18) for f in Cf(k2, CSA, ONES, False, 'c0')]
                fl = cl[:1] + fl[:1] + cl[1:2] + fl[1:] + cl[2:]
            if u == 1 and ks == K1 + 1: fl += Ku(0, 0, 4, 768)
            if u >= 1 and ks == 17: fl += Ku(u, u, 4 + u, 768)
            add_step((f'S1{"abcd"[u]}', ks), fl)
    for ks in range(18):
        add_step(('S2', ks), [dict(item=IT_Q + ((2*ks+mat) >> 3), kind='b', mode='b', off=((2*ks+mat) & 7) * 1024,
                                   mf=[(ACC(4, mat, mt), XF(ks, mt), False, ks == 0) for mt in range(2)]) for mat in range(2)])
    for ks in range(18):
        add_step(('S3', ks), [dict(item=IT_X + ((4*ks+T) >> 3), kind='b', mode='b', off=((4*ks+T) & 7) * 1024,
                                   mf=[(ACC(T >> 1, T & 1, mt), XF(ks, mt), T != 0, ks == 0) for mt in range(2)]) for T in range(4)]
                 + (Ku(4, 0, 1, 0) if ks == 0 else [])
                 + ([f for T in range(4) for f in Kf(T >> 1, T & 1, (2 + T) * 1024, T != 0)] if ks == 17 else []))
    def csched(K):
        return {1 + n: n for n in range(9)}, 10
    cma, CA_END = csched(K3); cmb_, CB_END = csched(K4)
    ca = lambda ks: Cf(L1it(0, cma[ks]), CSA, ONES, ks == 1, 'ch') if ks in cma else []
    cb = lambda ks: Cf(L1it(1, cmb_[ks]), T1[1], T1[0], ks == 1, 'ch') if ks in cmb_ else []
    for ks in range(K3): add_step(('S4', ks), Lf(1, ks, [(0, 2), (1, 3)]) + ca(ks))
    KPS = cfg.get('kp', 14); KOS = cfg.get('ko', 12)
    for ks in range(K3, 18): add_step(('S4a', ks), ca(ks) + Lf(1, ks, [(0, 2)]) + (Ku(2, 0, 2, 768) + Ku(3, 1, 3, 768) if ks == KPS + 1 else []))
    for ks in range(K3, 18): add_step(('S4b', ks), Lf(1, ks, [(1, 3)]))
    for ks in range(K4): add_step(('S4c', ks), cb(ks) + Lf(1, ks, [(2, 4), (3, 1)]))
    for ks in range(K4, 18): add_step(('S4d', ks), cb(ks) + Lf(1, ks, [(2, 4)]) + (Ku(4, 4, 6, 768) + Ku(1, 5, 7, 768) if ks == KOS + 1 else []))
    for ks in range(K4, 18): add_step(('S4e', ks), Lf(1, ks, [(3, 1)]))
    def P2f(sp, lts, blk0):
        fl = []
        for k, lt in enumerate(lts):
            blk = blk0 + k
            mf_ = [(ACC2(lt, mt), AF(sp, mt), False, sp == 0) for mt in range(2)] if sp < 20 else [(ACC2(lt, 0), V_AL, False, False)]
            fl.append(dict(item=IT_W2 + (blk >> 2), kind='b', mode='b2', off=(blk & 3) * 1024, mf=mf_))
        return fl
    for sp in range(21): add_step(('P1', sp), P2f(sp, range(2, 9), sp * 7))
    for lt in range(2):
        for sp in range(21): add_step(('P2' + 'ab'[lt], sp), P2f(sp, [lt], 148 + lt * 20 + sp if sp < 20 else 188 + lt))
    NF = len(frags)
    SO = {s: i for i, s in enumerate(steps)}
    first_frag = {}
    for i, f in enumerate(frags): first_frag.setdefault(f['step'], i)
    events = {}; pending = {}
    st.lbmode = 'c0'; st.hinit = False
    def reads(i):
        f = frags[i]; w = V_WF + (i % 4) * 4
        slot = slot_of(f['item']) * SLOT if f['item'] is not None else MISC
        pre = []
        mode = f.get('mode')
        if mode == 'h' and not st.hinit:
            assert 'trh' in events
            st.hinit = True; base[V_TH] = 0; base[V_TH + 1] = 0
        if mode in ('b', 'b2', 'ch', 'k') and st.lbmode != mode:
            st.lbmode = mode
            if mode == 'b':
                pre = [I(f'v_mov_b32 v{V_LB}, v{V_L16}')]; base[V_LB] = 0
            elif mode == 'k':
                pre = [I(f'v_bfe_u32 v{V_LB}, v{V_L16}, 1, 8')]; base[V_LB] = 0
            elif mode == 'b2':
                pre = [I(f's_and_b32 s{S_RW}, s{S_W1K}, 0x1000'), I(f'v_or_b32 v{V_LB}, s{S_RW}, v{V_L16}')]; base[V_LB] = 0
            else:
                pre = [I(f'v_xor_b32 v{V_LB}, s{S_MW}, v{V_TH}')]; base[V_LB] = base[V_TH]
        if f['kind'] == 'tr':
            fx, off = lds_addr(f['reg'], slot + f['off'], 2048)
            return (pre + fx + [I(f'ds_read_b64_tr_b16 {vr(w, 2)}, v{f["reg"]} offset:{off}', tok=f'rd{i}a')],
                    [I(f'ds_read_b64_tr_b16 {vr(w + 2, 2)}, v{f["reg"]} offset:{off + 1024}', tok=f'rd{i}b')])
        fx, off = lds_addr(V_LB, slot + f['off'], 1024)
        if f['kind'] == 'k':
            return (pre + fx + [I(f'ds_read_b64 {vr(w, 2)}, v{V_LB} offset:{off}', tok=f'rd{i}a')], [])
        return (pre + fx + [I(f'ds_read_b128 {vr(w, 4)}, v{V_LB} offset:{off}', tok=f'rd{i}a')], [])
    def rtoks(i):
        return [f'rd{i}a', f'rd{i}b'] if frags[i]['kind'] == 'tr' else [f'rd{i}a']
    def mfmas(i):
        w = V_WF + (i % 4) * 4; L = []
        for (d, x, swap, zero) in frags[i]['mf']:
            a, b = (x, w) if swap else (w, x)
            if frags[i]['kind'] == 'k': L.append(I(f'v_mfma_f32_16x16x16_bf16 {vr(d,4)}, {vr(a,2)}, {vr(b,2)}, {"0" if zero else vr(d,4)}'))
            else: L.append(I(f'v_mfma_f32_16x16x32_bf16 {vr(d,4)}, {vr(a,4)}, {vr(b,4)}, {"0" if zero else vr(d,4)}'))
        return L
    def mf(d, a, b): return I(f'v_mfma_f32_16x16x32_bf16 {vr(d,4)}, {vr(a,4)}, {vr(b,4)}, 0')

    HST = cfg.get('hst', 'sc1')
    t4 = [V_T + r for r in range(4)]
    q2, q3 = U(4)[2], U(4)[3]
    def gelu_quad(g, u, dst, mt):
        t = t4; L = []
        for r in range(4): L.append(I(f'v_mul_f32 v{t[r]}, v{g+r}, v{g+r}'))
        for r in range(4): L.append(I(f'v_fma_f32 v{t[r]}, v{t[r]}, v{C1[mt]}, v{C0[mt]}'))
        for r in range(4): L.append(I(f'v_mul_f32 v{t[r]}, v{g+r}, v{t[r]}'))
        for r in range(4): L.append(I(f'v_exp_f32 v{t[r]}, v{t[r]}'))
        for r in range(4): L.append(I(f'v_mul_f32 v{u+r}, v{g+r}, v{u+r}'))
        for r in range(4): L.append(I(f'v_add_f32 v{t[r]}, 1.0, v{t[r]}'))
        for r in range(4): L.append(I(f'v_rcp_f32 v{t[r]}, v{t[r]}'))
        for r in range(4): L.append(I(f'v_mul_f32 v{u+r}, v{u+r}, v{t[r]}'))
        L.append(I(f'v_cvt_pk_bf16_f32 v{dst}, v{u}, v{u+1}'))
        L.append(I(f'v_cvt_pk_bf16_f32 v{dst+1}, v{u+2}, v{u+3}'))
        return L
    def hstore(reg, n, mt, t, extra=0, va=None):
        s = ftmp(); off = t * 1024 + extra
        op = 'buffer_store_dwordx4' if n == 4 else 'buffer_store_dwordx2'
        return [I(f's_add_u32 s{s}, s{S_A2 if not cfg.get("fakeH") else S_OOB}, {mt * A2_MT + (off & ~4095)}'),
                I(f'{op} {vr(reg, n)}, v{V_L16 if n == 4 else va}, {WS}, s{s} offen offset:{off & 4095} {HST}', tok=f'h{t}_{mt}_{extra}')]
    def E_first(u):
        L = []
        for mt in range(2): L += gelu_quad(ACC(u, 0, mt), ACC(u, 1, mt), ACC(u, 0, mt), mt)
        return L
    def E_second(u0, u1, t):
        L = []
        for mt in range(2):
            L += gelu_quad(ACC(u1, 0, mt), ACC(u1, 1, mt), ACC(u0, 0, mt) + 2, mt)
            if t == 3: L += [I(f'v_min_u32 v{ACC(u0, 0, mt) + r}, -2, v{ACC(u0, 0, mt) + r}') for r in range(4)]
            L += hstore(ACC(u0, 0, mt), 4, mt, t)
        return L
    def E_quarter(u):
        L = []
        for mt in range(2):
            L += gelu_quad(ACC(u, 0, mt), ACC(u, 1, mt), ACC(u, 0, 0) + 2 * mt, mt)
        a = ACC(u, 1, 0)
        L += [I(f's_add_u32 s{S_CNT}, s{S_W1K}, {slot_of(IT_PK) * SLOT}'), I(f'v_add_u32 v{a}, s{S_CNT}, v{V_L16}'),
              I(f'ds_write_b128 v{a}, {vr(ACC(u, 0, 0), 4)}')]
        return L
    def cswrite(c, e, t):
        L = [I(f'v_cvt_pk_bf16_f32 v{t}, v{c}, v{c}'), I(f'v_and_b32 v{t}, 0xffff0000, v{t}'), I(f'v_sub_f32 v{t}, v{c}, v{t}'),
             I(f'v_cvt_pk_bf16_f32 v{t}, v{c}, v{t}'), I(f'v_mov_b32 v{t+1}, 0')]
        if e < 2:
            L += [I(f'v_bfe_u32 v{t+2}, v{V_L16}, 1, 8'), I(f's_add_u32 s72, s{S_W1K}, {MISC + (768 if e == 0 else 0)}')]
            if e == 0: L += [I(f'v_bfe_i32 v{t+3}, v{V_L16}, 8, 1'), I(f'v_bfi_b32 v{t}, v{t+3}, 0, v{t}')]
        else:
            L += [I(f'v_bfe_u32 v{t+2}, v{V_L16}, 1, 7'), I(f's_and_b32 s72, s{S_W1K}, 0xc00'), I(f's_lshr_b32 s83, s{S_W1K}, 12'),
                  I('s_lshl_b32 s83, s83, 7'), I(f's_add_u32 s72, s72, s83'), I(f's_add_u32 s72, s72, {MISC + 768 + (e - 2) * 4096}')]
        L += [I(f'v_add_u32 v{t+2}, s72, v{t+2}'), I(f'ds_write_b64 v{t+2}, {vr(t,2)}', tok=f'cs{e}')]
        return L
    def phi_quad(q):
        t = t4; L = []
        for r in range(4): L.append(I(f'v_mul_f32 v{t[r]}, s{S_L2E}, v{q+r}'))
        for r in range(4): L.append(I(f'v_exp_f32 v{t[r]}, v{t[r]} clamp'))
        for r in range(4): L.append(I(f'v_max_f32 v{q+r}, s{S_EPS}, v{q+r}'))
        for r in range(4): L.append(I(f'v_add_f32 v{q+r}, v{q+r}, v{t[r]}'))
        return L
    def pack2(dst, q0, q1):
        return [I(f'v_cvt_pk_bf16_f32 v{dst}, v{q0}, v{q0+1}'), I(f'v_cvt_pk_bf16_f32 v{dst+1}, v{q0+2}, v{q0+3}'),
                I(f'v_cvt_pk_bf16_f32 v{dst+2}, v{q1}, v{q1+1}'), I(f'v_cvt_pk_bf16_f32 v{dst+3}, v{q1+2}, v{q1+3}')]
    def sgroups(txt):
        L = []
        lines = [l.strip() for l in txt.strip().split('\n') if l.strip()]
        k = 0
        while k < len(lines):
            if lines[k].startswith('s_cmp') or lines[k].startswith('s_bitcmp'):
                g = [I(lines[k])]; k += 1
                while k < len(lines) and lines[k].startswith('s_cselect'): g.append(I(lines[k])); k += 1
                L.append(g)
            else:
                L.append(I(lines[k])); k += 1
        return L
    def setflag(sreg, add, toks, VA, VB):
        t = ftmp()
        return [I(f'v_lshlrev_b32 v{VA}, 21, v{V_L16}'), I(f'v_and_b32 v{VA}, s{S_OOB}, v{VA}'),
                I(f'v_lshrrev_b32 v{VB}, 2, v{V_L16}'), I(f'v_or_b32 v{VA}, v{VA}, v{VB}'), I(f'v_mov_b32 v{VB}, s{S_NON}'),
                I(f's_add_u32 s{t}, s{sreg}, {add}'),
                I(f'buffer_store_dword v{VB}, v{VA}, {WS}, s{t} offen sc1', waits=toks)]
    def poll(spt, bits, ev, w0, bar, between, VA, VB, S_PT=S_PT):
        addr = [I(f'v_lshrrev_b32 v{VA}, {10 - bits}, v{V_L16}'), I(f'v_lshlrev_b32 v{VA}, 7, v{VA}')]
        loads = lambda: [I(f'buffer_load_dword v{VB}, v{VA}, {WS}, s{S_PT} offen sc1')]
        check = lambda: [I(f'v_cmp_ne_u32 vcc, s{S_NON}, v{VB}')]
        return addr + spt + loads() + between + retry_group(loads, check, w0) + [Ev(ev, bar)]
    def htouch(t, nt, toks, VA, VB):
        if not cfg.get('ht', 0): return []
        s_ = ftmp()
        sh = 5 if nt == 2 else 6
        x = I(f'buffer_load_dword v{VB}, v{VA}, {WS}, s{s_} offen sc1', waits=toks)
        return [I(f'v_bfe_u32 v{VA}, v{V_L16}, {sh}, {9 - sh}'), I(f'v_lshrrev_b32 v{VB}, 9, v{V_L16}'), I(f'v_mul_u32_u24 v{VB}, {A2_MT}, v{VB}'),
                I(f'v_lshl_add_u32 v{VA}, v{VA}, 7, v{VB}'), I(f's_add_u32 s{s_}, s{S_A2}, {t * 1024}'), x]
    def w2touch(VA, VB):
        if not cfg.get('wt', 0): return []
        return [Need('w2ok'), Need('setup2'), [I('s_lshr_b32 s73, s2, 5'), I(f's_lshl3_add_u32 s73, s73, s{S_WAVE}'), I(f's_mul_i32 s73, s73, {48*128}')],
                [I(f's_and_b32 s74, s{S_W2K}, 0xfffff000'), I('s_add_u32 s73, s73, s74')],
                I(f'v_min_u32 v{VA}, {47*16}, v{V_L16}'), I(f'v_lshlrev_b32 v{VA}, 3, v{VA}'),
                I(f'buffer_load_dword v{VB}, v{VA}, {WS}, s73 offen sc1')]
    def pollh(k, ev, between, VA, VB):
        return poll([I(f's_add_u32 s{S_PT}, s{S_FH}, {k*HS}')], 3, ev, False, False, between, VA, VB)
    def F_nonce(between):
        X0 = XF(17, 0); a = XF(16, 1); n_ = a + 1; q3 = XF(16, 0)
        loads = lambda: [I(f'buffer_load_dword v{n_}, off, s[{S_OUT}:{S_OUT+3}], 0 sc1')]
        check = lambda: [I(f'v_cmp_eq_u32 vcc, 0, v{n_}')]
        adr = lambda: [I(f'v_cmp_gt_u32 vcc, 0x80, v{V_L16}'), I(f'v_mov_b32 v{a}, s{S_OOB}'), Delay(1), I(f'v_cndmask_b32 v{a}, v{a}, v{V_L16}, vcc')]
        L = [I(f'buffer_load_dwordx4 {vr(X0,4)}, v{V_L16}, {XS}, s{S_RS} offen'),
             I(f'v_lshlrev_b32 v{a}, 21, v{V_L16}'), I(f'v_and_b32 v{a}, s{S_OOB}, v{a}'), I(f'v_lshrrev_b32 v{a+2}, 2, v{V_L16}'), I(f'v_or_b32 v{a}, v{a}, v{a+2}'),
             I(f'buffer_load_dword v{X0+4}, v{a}, {XS}, s{S_RS} offen offset:1024')] + loads() + adr()
        L += between + retry_group(loads, check) + [I(f'v_readfirstlane_b32 s{S_NON}, v{n_}'), Ev('non')] + [
              I(f's_mov_b32 s{S_OUT}, s{S_OP}'), I(f's_mov_b32 s{S_OUT+1}, s{S_OP+1}'), I(f's_mov_b32 s{S_OUT+2}, 2359296')]
        S_, Q_, t0, t1 = q3, q3 + 2, a + 2, a + 3
        for r in range(5):
            L += [I(f'v_lshlrev_b32 v{t0}, 16, v{X0+r}'), I(f'v_and_b32 v{t1}, 0xffff0000, v{X0+r}')]
            if r == 0: L += [I(f'v_add_f32 v{S_}, v{t0}, v{t1}'), I(f'v_mul_f32 v{Q_}, v{t0}, v{t0}'), I(f'v_fmac_f32 v{Q_}, v{t1}, v{t1}')]
            else: L += [I(f'v_add_f32 v{S_}, v{S_}, v{t0}'), I(f'v_fmac_f32 v{Q_}, v{t0}, v{t0}'), I(f'v_add_f32 v{S_}, v{S_}, v{t1}'), I(f'v_fmac_f32 v{Q_}, v{t1}, v{t1}')]
        L += [Ev('rowdone'), Delay(1)]
        for m_ in ['row_shr:1 row_mask:0xf bank_mask:0xf bound_ctrl:0', 'row_shr:2 row_mask:0xf bank_mask:0xf bound_ctrl:0',
                   'row_shr:4 row_mask:0xf bank_mask:0xf bound_ctrl:0', 'row_shr:8 row_mask:0xf bank_mask:0xf bound_ctrl:0',
                   'row_bcast:15 row_mask:0xa bank_mask:0xf', 'row_bcast:31 row_mask:0xc bank_mask:0xf']:
            L += [I(f'v_add_f32_dpp v{k}, v{k}, v{k} {m_}') for k in (S_, Q_)]
        L += IL(f"""
        v_readlane_b32 s30, v{S_}, 63
        v_readlane_b32 s31, v{Q_}, 63
        v_mov_b32 v{t0}, {f2u(1.0/576.0):#x}
        v_mov_b32 v{q3+1}, v{n_}
        v_mul_f32 v{S_}, s30, v{t0}
        v_mul_f32 v{Q_}, s31, v{t0}
        v_fma_f32 v{Q_}, -v{S_}, v{S_}, v{Q_}
        v_max_f32 v{Q_}, 0, v{Q_}
        v_cvt_pk_bf16_f32 v{t0}, -v{S_}, v{Q_}
        v_lshlrev_b32 v{S_}, 16, v{t0}
        v_and_b32 v{Q_}, 0xffff0000, v{t0}
        v_add_f32 v{Q_}, {f2u(1e-5):#x}, v{Q_}
        v_cvt_pk_bf16_f32 v{Q_}, v{Q_}, v{Q_}
        v_and_b32 v{Q_}, 0xffff0000, v{Q_}
        v_sqrt_f32 v{Q_}, v{Q_}
        v_cvt_pk_bf16_f32 v{Q_}, v{Q_}, v{Q_}
        v_and_b32 v{Q_}, 0xffff0000, v{Q_}
        v_rcp_f32 v{Q_}, v{Q_}
        v_mov_b32 v{q3+3}, v{n_}
        buffer_store_dwordx4 {vr(q3,4)}, v{a}, {WS}, s{S_PT} offen sc1
        """)
        return L + [Ev('nonce')]
    def F_setup2():
        C = 71
        L = sgroups(f"""
            s_lshr_b32 s74, s2, 3
            s_and_b32 s73, s74, 3
            s_lshr_b32 s74, s74, 2
            s_and_b32 s75, s2, 4
            s_lshl_b32 s75, s75, 1
            s_add_u32 s74, s74, s75
            s_and_b32 s75, s{S_WAVE}, 3
            s_lshr_b32 s76, s{S_WAVE}, 2
            s_and_b32 s78, s2, 3
            s_lshl_b32 s77, s74, 3
            s_lshl_b32 s79, s75, 1
            s_add_u32 s77, s77, s79
            s_add_u32 s77, s77, s76
            s_lshl_b32 s{S_STK}, s77, 11
            s_lshl_b32 s79, s78, 3
            s_lshl_b32 s{C}, s76, 2
            s_add_u32 s79, s79, s{C}
            s_mul_i32 s79, s79, 5120
            s_add_u32 s79, s79, {A2_OFF}
            s_mul_i32 s{S_A}, s77, {A2_MT}
            s_add_u32 s{S_A}, s{S_A}, s79
            s_xor_b32 s{C}, s77, 1
            s_mul_i32 s{S_A+1}, s{C}, {A2_MT}
            s_add_u32 s{S_A+1}, s{S_A+1}, s79
            s_lshl_b32 s79, s78, 2
            s_add_u32 s79, s79, s73
            s_lshl_b32 s79, s79, 1
            s_add_u32 s79, s79, s76
            s_mul_i32 s79, s79, {W2_S}
            s_lshl_b32 s{C}, s75, 10
            s_add_u32 s79, s79, s{C}
            s_add_u32 s{S_W2}, s79, {W2_OFF}
            s_mul_i32 s79, s76, {W2_S}
            s_sub_u32 s{S_W2K}, s{S_W2}, s79
            s_lshr_b32 s79, s77, 1
            s_lshl_b32 s79, s79, 2
            s_add_u32 s79, s79, s78
            s_lshl_b32 s79, s79, 10
            s_lshl_b32 s{C}, s76, 6
            s_add_u32 s79, s79, s{C}
            s_add_u32 s{S_AL}, s79, {A2L_OFF}
            s_mul_i32 s79, s77, 18432
            s_mul_i32 s{C}, s73, 288
            s_add_u32 s79, s79, s{C}
            s_lshl_b32 s{C}, s78, 6
            s_add_u32 s{S_O}, s79, s{C}
            s_add_u32 s{S_O8}, s79, 256
        """)
        for p in range(1, 4):
            L += sgroups(f"""
            s_add_u32 s79, s78, {p}
            s_and_b32 s79, s79, 3
            s_sub_u32 s79, s79, s78
            s_mul_i32 s79, s79, 24576
            s_add_u32 s79, s79, s{S_EX}
            s_add_u32 s{S_EXS+p-1}, s79, {(3-p)*1024}
            """)
        L += sgroups(f"""
            s_lshr_b32 s79, s2, 2
            s_lshl_b32 s79, s79, 3
            s_add_u32 s79, s79, s{S_WAVE}
            s_lshl_b32 s79, s79, 11
            s_add_u32 s79, s79, {EX8_OFF}
            s_sub_u32 s{C}, s78, s75
            s_sub_u32 s{C}, s{C}, 1
            s_and_b32 s{C}, s{C}, 3
            s_lshl_b32 s{C}, s{C}, 9
            s_add_u32 s79, s79, s{C}
            s_cmp_eq_u32 s78, s75
            s_cselect_b32 s{S_E8S}, s{S_OOB}, s79
            s_cselect_b32 s{S_O8}, s{S_O8}, s{S_OOB}
        """)
        if cfg.get('r2', 0):
            L += [Need('l1issued'), Need('f2done')] + sgroups(f"""
            s_add_u32 s79, s73, s74
            s_and_b32 s79, s79, 3
            s_mul_i32 s{C}, s79, 7168
            s_add_u32 s{S_RX}, s{S_W2}, s{C}
            s_and_b32 s{S_W2}, s{S_W2}, 0xfffff000
            s_add_u32 s{C}, s79, s75
            s_and_b32 s{C}, s{C}, 3
            s_lshl_b32 s{C}, s{C}, 10
            s_add_u32 s{S_W2P}, s{S_W2}, s{C}
            s_add_u32 s{S_W2}, s{S_W2}, 28672
            """)
            for k in range(4):
                L += sgroups(f"s_add_u32 s{C}, s79, {k}\ns_and_b32 s{C}, s{C}, 3\ns_mul_i32 s{S_JO[k]}, s{C}, 5120")
        return L + [Ev('setup2')]
    def F_wx(i):
        q = U(4)[3]; a = U(4)[2] + 2
        L = [I(f'v_bfe_u32 v{a}, v{V_L16}, 4, 2'), I(f'v_lshlrev_b32 v{a}, s{S_GP+3+i}, v{a}'),
             I(f'v_and_b32 v{a+1}, 0x3c0, v{V_L16}'), I(f'v_add3_u32 v{a}, v{a}, v{a+1}, s{S_W1K}'),
             I(f'v_add_u32 v{a+1}, {GL[i][1]}, v{a}'), I(f'v_add_u32 v{a}, {GL[i][0]}, v{a}')]
        for hh in range(2):
            L.append(I(f'ds_read_b64_tr_b16 {vr(q+2*hh,2)}, v{a+hh}', waits=[f'sg{i}_0', f'sg{i}_1']))
        L += [Delay(3),
              I(f'v_lshlrev_b32 v{a}, 21, v{V_L16}'), I(f'v_and_b32 v{a}, s{S_OOB}, v{a}'),
              I(f'v_lshrrev_b32 v{a+1}, 2, v{V_L16}'), I(f'v_or_b32 v{a}, v{a}, v{a+1}'),
              mf(V_T, ONES, q),
              I(f'buffer_store_dwordx4 {vr(q,4)}, v{V_L16}, {WS}, s{S_WXD+i} offen sc1', tok=f'wx{i}'),
              I(f's_lshr_b32 s{S_CNT}, s{S_WXD+i}, 3'), I(f's_add_u32 s{S_CNT}, s{S_CNT}, {CSP_OFF - WX_OFF // 8}'),
              I(f'buffer_store_dword v{V_T}, v{a}, {WS}, s{S_CNT} offen sc1', tok=f'wc{i}'), Ev(f'wxst{i}')]
        return L
    def F_csx():
        q = U(4)[0]; d = U(4)[1]
        L = sgroups(f"""
            s_add_u32 s30, s{S_WAVE}, 38
            s_cmp_lt_u32 s{S_WAVE}, 2
            s_cselect_b32 s30, s{S_WAVE}, s30
            s_cselect_b32 s31, 8, 9
            s_mul_i32 s{S_CNT}, s{S_J}, 112
            s_add_u32 s30, s30, s{S_CNT}
            s_lshl_b32 s30, s30, 7
            s_add_u32 s{S_CNT}, s30, {CSP_OFF}
        """)
        L += [I(f'v_lshrrev_b32 v{q}, 8, v{V_L16}'), I(f'v_cmp_gt_u32 vcc, 2, v{q}'), I(f'v_lshlrev_b32 v{q}, s31, v{q}'),
              I(f'v_bfe_u32 v{q+1}, v{V_L16}, 4, 4'), I(f'v_lshl_add_u32 v{q}, v{q+1}, 2, v{q}'), I(f'v_mov_b32 v{q+1}, s{S_OOB}'),
              I(f'v_cndmask_b32 v{q+1}, v{q+1}, v{q}, vcc'), I('s_lshl_b32 s31, 4, s31')]
        for i in range(5):
            L.append(I(f'buffer_load_dword v{d+i if i < 4 else q+2}, v{q if i < 4 else q+1}, {WS}, s{S_CNT} offen sc1'))
            if i < 4: L.append(I(f's_add_u32 s{S_CNT}, s{S_CNT}, s31'))
        return L
    def F_csx2():
        q = U(4)[0]; d = U(4)[1]
        L = [I(f'v_add_f32 v{d}, v{d}, v{d+1}'), I(f'v_add_f32 v{d+2}, v{d+2}, v{d+3}'), I(f'v_add_f32 v{d}, v{d}, v{q+2}'), I(f'v_add_f32 v{d}, v{d}, v{d+2}')]
        L += [I(f'v_mov_b32 v{d+1}, v{d}'), Delay(1), I(f'v_permlane32_swap_b32 v{d}, v{d+1}'), I(f'v_add_f32 v{d}, v{d}, v{d+1}')]
        return L + cswrite(d, 1, q)
    def F_stats(between):
        q = q2; a = V_T
        loads = lambda: [I(f'buffer_load_dwordx4 {vr(q,4)}, v{a}, {WS}, s{S_PT} offen sc1')]
        check = lambda: [I(f'v_xor_b32 v{q+1}, s{S_NON}, v{q+1}'), I(f'v_xor_b32 v{q+3}, s{S_NON}, v{q+3}'),
                         I(f'v_or_b32 v{q+1}, v{q+1}, v{q+3}'), I(f'v_cmp_ne_u32 vcc, 0, v{q+1}')]
        L = [I(f'v_lshrrev_b32 v{a}, 5, v{V_L16}'), I(f'v_lshlrev_b32 v{a}, 7, v{a}'),
             I(f's_lshl_b32 s{S_PT}, s{S_RB}, 3'), I(f's_add_u32 s{S_PT}, s{S_PT}, s{S_WAVE}'), I(f's_lshl_b32 s{S_PT}, s{S_PT}, 12')]
        L += loads() + between + retry_group(loads, check)
        L += [I(f'v_lshrrev_b32 v{a}, 5, v{a}'), I(f's_add_u32 s{S_CNT}, s{S_W1K}, {MISC}'), I(f'v_add_u32 v{a}, s{S_CNT}, v{a}'),
              I(f'v_bfe_u32 v{q+1}, v{V_L16}, 4, 4'), I(f'v_lshl_add_u32 v{q+1}, v{q+1}, 2, s{S_CNT}'),
              I(f'ds_write_b32 v{a}, v{q+2} offset:512'), I(f'ds_write_b32 v{a}, v{q} offset:640')]
        for mt in range(2):
            L += [I(f'ds_read_b32 v{q3+2*mt}, v{q+1} offset:{640 + 64*mt}'), I(f'ds_read_b32 v{q3+2*mt+1}, v{q+1} offset:{512 + 64*mt}')]
        return L
    def F_stats2():
        L = [Need('xdone'), I(f'v_cmp_gt_u32 vcc, 0x200, v{V_L16}')]
        for mt in range(2):
            L += [I(f'v_cvt_pk_bf16_f32 v{q3+2*mt}, v{q3+2*mt}, v{q3+2*mt}'), I(f'v_mul_f32 v{q3+2*mt+1}, {f2u(K0C):#x}, v{q3+2*mt+1}')]
        for mt in range(2):
            L += [I(f'v_cndmask_b32 v{BN[mt]}, 0, v{q3+2*mt}, vcc'), I(f'v_and_b32 v{C0[mt]}, 0xffffff7f, v{q3+2*mt+1}')]
        return L + [Ev('stats')]
    def F_c1():
        L = [I(f'v_mul_f32 v{C1[mt]}, v{C0[mt]}, v{C0[mt]}') for mt in range(2)]
        L += [I(f'v_mul_f32 v{C1[mt]}, {f2u(0.044715 / (K0C * K0C)):#x}, v{C1[mt]}') for mt in range(2)]
        L += [I(f'v_mul_f32 v{C1[mt]}, v{C1[mt]}, v{C0[mt]}') for mt in range(2)]
        return L
    def F_rpat():
        a, b = (V_A, V_TH) if QF else (q2 + 1, q2 + 2)
        return [I(f'v_lshrrev_b32 v{a}, 3, v{V_L16}'), I(f'v_xor_b32 v{a}, v{a}, v{V_L16}'), I(f'v_and_b32 v{a}, 0x60, v{a}'),
                I(f'v_and_or_b32 v{a}, v{V_L16}, 16, v{a}'), I(f'v_lshrrev_b32 v{b}, 8, v{V_L16}'), I(f'v_mad_u32_u24 v{a}, v{b}, s{S_LEFT}, v{a}'),
                I(f'v_lshrrev_b32 v{b}, 7, v{V_L16}'), I(f'v_mul_u32_u24 v{b}, 1152, v{b}'), I(f'v_add_u32 v{a}, v{a}, v{b}'), Ev('rpat')]
    NT = cfg.get('nt', 9)
    def F_tpat():
        a, b, c = 7, V_T, V_T + 1; n = 18 // NT
        return [[I('s_lshl_b32 s30, s2, 2'), I(f's_and_b32 s31, s{S_WAVE}, 3'), I('s_add_u32 s30, s30, s31'), I(f's_mul_i32 s30, s30, {n}')],
                I(f'v_lshrrev_b32 v{a}, 4, v{V_L16}'), I(f'v_min_u32 v{a}, {n - 1}, v{a}'), I(f'v_add_u32 v{a}, s30, v{a}'),
                I(f'v_and_b32 v{c}, 7, v{a}'), I(f'v_cmp_eq_u32 vcc, 2, v{c}'),
                I(f'v_lshrrev_b32 v{b}, 5, v{a}'), I(f'v_mul_u32_u24 v{b}, {9216 - 4096}, v{b}'), I(f'v_cndmask_b32 v{c}, 32, 1, vcc'),
                I(f'v_add_u32 v{a}, v{a}, v{c}'), I(f'v_lshl_add_u32 v{a}, v{a}, 7, v{b}'), Ev('tpat')]
    def touch(k):
        t = stmp()
        x = I(f'buffer_load_dword v7, s[{S_W}:{S_W+3}], s{t} offen lds')
        if k == NT - 1: events['tissued'] = st.gap
        st.tnext = st.gap + cfg.get('tsp_', 8)
        return [I(f's_add_u32 m0, s{S_W1K}, {MISC + 256}'), I(f's_mov_b32 s{t}, {k * (576 // NT) * 9216}'), x]
    def F_dmah(VA, VB):
        return [I(f'v_bfe_u32 v{VA}, v{V_L16}, 6, 2'), I(f'v_lshrrev_b32 v{VB}, 8, v{V_L16}'), I(f'v_lshl_add_u32 v{VA}, v{VB}, 3, v{VA}'),
                [I(f's_and_b32 s70, s{S_WAVE}, 1'), I(f's_lshl_b32 s70, s70, 2'), I(f's_and_b32 s71, s{S_WAVE}, 2'),
                 I('s_lshl_b32 s71, s71, 4'), I(f's_add_u32 s70, s70, s71')],
                I(f'v_add_u32 v{VA}, s70, v{VA}'), I(f'v_mul_u32_u24 v{VA}, 9216, v{VA}'),
                I(f'v_lshlrev_b32 v{VB}, 5, v{VB}'), I(f'v_xor_b32 v{VB}, v{VB}, v{V_L16}'), I(f'v_and_b32 v{VB}, 0x30, v{VB}'),
                [I(f's_and_b32 s70, s{S_J}, 7'), I('s_cmp_eq_u32 s70, 2'), I('s_cselect_b32 s70, 1, 32'), I(f's_add_u32 s70, s70, s{S_J}'), I('s_lshl_b32 s70, s70, 7')],
                I(f'v_add3_u32 v{V_DMA}, v{VA}, v{VB}, s70'), Ev('dmah')]
    def F_trh():
        return [I(f'v_and_b32 v{V_TH}, 0x3c0, v{V_L16}'), I(f'v_bfe_u32 v{V_TH+1}, v{V_L16}, 8, 1'), I(f'v_lshl_add_u32 v{V_TH}, v{V_TH+1}, 5, v{V_TH}'),
                I(f'v_bfe_u32 v{V_TH+1}, v{V_L16}, 4, 2'), I(f'v_lshl_add_u32 v{V_TH}, v{V_TH+1}, 3, v{V_TH}'), I(f'v_xor_b32 v{V_TH+1}, 32, v{V_TH}'), Ev('trh')]
    def F_relayout(qd, VA, VB):
        L = [I(f'v_bfe_u32 v{VA}, v{V_L16}, 6, 4'), I(f'v_lshlrev_b32 v{VA}, 7, v{VA}'), I(f'v_bfe_u32 v{VB}, v{V_L16}, 7, 2'),
             I(f'v_lshl_add_u32 v{VA}, v{VB}, 5, v{VA}'), I(f'v_bfe_u32 v{VB}, v{V_L16}, 4, 2'), I(f'v_lshl_add_u32 v{VA}, v{VB}, 3, v{VA}'),
             [I(f's_and_b32 s{S_CNT}, s{S_WAVE}, 3'), I(f's_lshl_b32 s{S_CNT}, s{S_CNT}, 5'), I(f's_and_b32 s30, s{S_W1K}, 0x1000'),
              I(f's_or_b32 s{S_CNT}, s{S_CNT}, s30')],
             I(f'v_xor_b32 v{VA}, s{S_CNT}, v{VA}'), I(f'v_add_u32 v{VA}, {slot_of(IT_R)*SLOT}, v{VA}')]
        def rd(i):
            o = i * SLOT; q = qd[i % 2]
            assert slot_of(IT_R + i) == slot_of(IT_R) + i
            return [I(f'ds_read_b64_tr_b16 {vr(q,2)}, v{VA} offset:{o}'), I(f'ds_read_b64_tr_b16 {vr(q+2,2)}, v{VA} offset:{o+2048}')]
        def sto(i): return I(f'buffer_store_dwordx4 {vr(qd[i % 2],4)}, v{V_L16}, {WS}, s{S_RDST+i if not cfg.get("fakeW") else S_OOB} offen sc1', tok=f'w2a{i}')
        return L + [Need('rland'), Need('rsetup')] + rd(0) + rd(1), [[sto(0)] + rd(2), [sto(1)], [sto(2), Ev('rdone')]]
    def F_poison(q):
        L = [I(f'v_mov_b32 v{q+r}, -1') for r in range(4)]
        S_ = [I(f'buffer_store_dwordx4 {vr(q,4)}, v{V_L16}, {WS}, s{S_EX} offen offset:{1024*p} sc1', tok=f'po{p}') for p in range(3)]
        L += [I(f'v_lshrrev_b32 v{q+4}, 1, v{V_L16}')]
        S_ += [I(f'buffer_store_dwordx2 {vr(q,2)}, v{q+4}, {WS}, s{S_E8P} offen sc1', tok='po3')]
        for mt in range(2):
            x = hstore(q, 4, mt, 3); x[1].tok = f'p3_{mt}'; S_.append(x)
        return L, S_ + [Ev('podone')]
    def E_qkv():
        qa, qb = U(4)[2], U(4)[3]
        VA, VB, VC, VD = qb, qb + 1, qb + 2, qb + 3
        L = []
        L += [I(f'v_lshrrev_b32 v{V_A}, 4, v{V_L16}'), I(f'v_and_b32 v{V_A}, 0x30, v{V_A}'), I(f's_add_u32 s{S_CNT}, s{S_W1K}, {MISC}'),
              I(f'v_add_u32 v{V_A}, s{S_CNT}, v{V_A}'),
              I(f'ds_read_b128 {vr(qa,4)}, v{V_A} offset:512'), I(f'ds_read_b128 {vr(qb,4)}, v{V_A} offset:576')]
        for mt in range(2): L.append(I(f'v_mul_f32 v{V_T+mt}, {f2u(1.0/K0C):#x}, v{C0[mt]}'))
        for mt in range(2): L += [I(f'v_mul_f32 v{T0[mt]+r}, v{T0[mt]+r}, v{V_T+mt}') for r in range(4)]
        for mt in range(2):
            for T in (T1, T2, T3):
                L += [I(f'v_mul_f32 v{T[mt]+r}, v{T[mt]+r}, v{(qa, qb)[mt]+r}') for r in range(4)]
        L += pack2(T2[0], T2[0], T2[1])
        L += pack2(T2[1], T3[0], T3[1])
        L.append(I(f'v_mov_b32 v{VB}, 0x3f803f80'))
        L.append(I(f'v_add_u32 v{VA}, s{S_W1K}, v{V_L16}'))
        for r in range(4): L.append(I(f'v_cndmask_b32 v{T2[1]+r}, v{T2[1]+r}, v{VB}, s[{S_M4}:{S_M4+1}]'))
        L += phi_quad(T1[0]) + phi_quad(T1[1]) + pack2(T1[0], T1[0], T1[1])
        L += phi_quad(T3[0]) + phi_quad(T3[1]) + pack2(T3[0], T3[0], T3[1])
        L.append(I(f'v_add_u32 v{VA}, {SCR}, v{VA}'))
        L.append(I(f'v_bfe_u32 v{VC}, v{V_L16}, 6, 2'))
        L.append(mf(T1[1], T1[0], T2[0]))
        L.append(mf(T3[1], T1[0], T2[1]))
        L.append(I(f'ds_write_b128 v{VA}, {vr(T3[0],4)}'))
        L.append(I(f'v_lshlrev_b32 v{VC}, 8, v{VC}'))
        L.append(I(f'v_bfe_u32 v{VB}, v{V_L16}, 4, 2'))
        L.append(mf(T1[0], T3[0], T2[0]))
        L.append(I(f'v_lshl_add_u32 v{VC}, v{VB}, 1, v{VC}'))
        L.append(I(f'v_add_u32 v{VC}, s{S_W1K}, v{VC}'))
        L.append(mf(T2[0], T3[0], T2[1]))
        L.append(I(f'v_add_u32 v{VC}, {SCR}, v{VC}'))
        L.append(I(f'v_bfe_u32 v{VD}, v{V_L16}, 8, 2'))
        for mt in range(2):
            L.append(I(f'ds_read_u16 v{qa+2*mt}, v{VC} offset:{4*16 + mt*8}'))
            L.append(I(f'ds_read_u16 v{qa+2*mt+1}, v{VC} offset:{5*16 + mt*8}'))
        L.append(I(f'ds_write_b128 v{VA}, {vr(T1[1],4)}', tok='kva0'))
        L.append(I(f'v_bfe_u32 v{VB}, v{V_L16}, 4, 4'))
        L.append(I(f'v_mad_u32_u24 v{VA}, v{VD}, 3, v{VB}'))
        L.append(I(f'v_lshlrev_b32 v{VA}, 4, v{VA}'))
        L.append(I(f'v_mov_b32 v{VC}, 0xc0'))
        L.append(I(f'v_cmp_gt_u32 vcc, 3, v{VB}'))
        L.append(I(f'v_lshlrev_b32 v{VB}, 4, v{VB}'))
        L.append(I(f'v_cndmask_b32 v{VA}, v{VC}, v{VA}, vcc'))
        L.append(I(f'v_add_u32 v{VB}, 0x100, v{VB}'))
        L.append(I(f's_add_u32 s{S_CNT}, s{S_W1K}, {MISC}'))
        L.append(I(f'v_cndmask_b32 v{VB}, v{VC}, v{VB}, s[{S_G2}:{S_G2+1}]'))
        L.append(I(f'v_add_u32 v{VA}, s{S_CNT}, v{VA}'))
        L.append(I(f'v_add_u32 v{VB}, s{S_CNT}, v{VB}'))
        L.append(I(f'ds_write_b128 v{VA}, {vr(T3[1],4)}', tok='kva1'))
        L.append(I(f'ds_write_b64 v{VB}, {vr(T1[0],2)}', tok='kva2'))
        L.append(I(f'ds_write_b64 v{VB}, {vr(T2[0],2)} offset:8', tok='kva3'))
        L.append(Ev('qkvdone'))
        return L
    def E_q():
        qa = U(4)[2]; L = []
        for mt in range(2):
            L += phi_quad(T0[mt])
            L += [I(f'v_cvt_pk_bf16_f32 v{T0[mt]}, v{T0[mt]}, v{T0[mt]+1}'), I(f'v_cvt_pk_bf16_f32 v{T0[mt]+1}, v{T0[mt]+2}, v{T0[mt]+3}'),
                  I(f'v_lshl_or_b32 v{T0[mt]+2}, v{qa+2*mt+1}, 16, v{qa+2*mt}'), I(f'v_mov_b32 v{T0[mt]+3}, 0')]
        return L + [Ev('qdone')]
    G = T1[0]
    def sum8(g, s):
        return [I(f'v_add_f32 v{g}, v{g}, v{g+s}'), I(f'v_add_f32 v{g+2*s}, v{g+2*s}, v{g+3*s}'), I(f'v_add_f32 v{g+4*s}, v{g+4*s}, v{g+5*s}'),
                I(f'v_add_f32 v{g+6*s}, v{g+6*s}, v{g+7*s}'), I(f'v_add_f32 v{g}, v{g}, v{g+2*s}'), I(f'v_add_f32 v{g+4*s}, v{g+4*s}, v{g+6*s}'),
                I(f'v_add_f32 v{g}, v{g}, v{g+4*s}')]
    def F_publish(between):
        VA = V_A
        L = [I(f'v_lshrrev_b32 v{VA}, 2, v{V_L16}'), I(f'v_add_u32 v{VA}, s{S_RED}, v{VA}')]
        for p in range(8): L.append(I(f'ds_read_b32 v{G+p}, v{VA} offset:{1024*p}'))
        L += between + sum8(G, 1)
        L += [I(f'v_min_u32 v{G}, -2, v{G}'), I(f'v_lshrrev_b32 v{VA}, 2, v{V_L16}'),
              I(f'buffer_store_dword v{G}, v{VA}, {WS}, s{S_KVST} offen sc1'), Ev('published')]
        L += [I(f'v_mov_b32 v{T1[0]+r}, 0x3f803f80') for r in range(4)] + [Ev('ones2')]
        return L
    G2 = XF(0, 0); VK = XF(1, 0)
    def kv_loads():
        L = []
        for p in range(8):
            if p % 3 == 0:
                t = ftmp(); L.append(I(f's_add_u32 s{t}, s{S_KVLD}, {1536*p}'))
            L.append(I(f'buffer_load_dword v{G2+p}, v{VK}, {WS}, s{t} offen offset:{1536*(p%3)} sc1'))
        return L
    def kv_check():
        return [I(f'v_max3_u32 v{VK+1}, v{G2}, v{G2+1}, v{G2+2}'), I(f'v_max3_u32 v{VK+2}, v{G2+3}, v{G2+4}, v{G2+5}'),
                I(f'v_max3_u32 v{VK+1}, v{VK+1}, v{G2+6}, v{G2+7}'), I(f'v_max_u32 v{VK+1}, v{VK+1}, v{VK+2}'), I(f'v_cmp_eq_u32 vcc, -1, v{VK+1}')]
    def F_kvload(): return [Need('w2ok'), I(f'v_lshrrev_b32 v{VK}, 2, v{V_L16}')] + kv_loads()
    def F_gather():
        g = retry_group(kv_loads, kv_check)
        L = g + sum8(G2, 1)
        L += [I(f's_lshr_b32 s{S_CNT}, s{S_W1K}, 2'), I(f's_add_u32 s{S_CNT}, s{S_CNT}, {KVS}'), I(f'v_add_u32 v{VK+1}, s{S_CNT}, v{VK}'),
              I(f'ds_write_b32 v{VK+1}, v{G2}', tok='kvb0'), Ev('gathered')]
        return L
    def F_o():
        E0, E1, P2, X_ = U(2)
        t = V_T
        L = [I(f'v_add_u32 v{t}, {KVS}, v{V_L16}'), I(f'v_bfe_u32 v{t+1}, v{V_L16}, 8, 2'),
             I(f'ds_read_b128 {vr(E0,4)}, v{t}'),
             I(f'v_bfe_u32 v{t+2}, v{V_L16}, 4, 2'), I(f'v_mad_u32_u24 v{t+1}, v{t+1}, 3, v{t+2}'),
             I(f'v_lshlrev_b32 v{t+1}, 4, v{t+1}'), I(f'v_add_u32 v{t+1}, {KVS}, v{t+1}'),
             I(f'ds_read_b128 {vr(E1,4)}, v{t+1} offset:1024'),
             I(f'v_and_b32 v{t+3}, 0xf0, v{V_L16}'), I(f'v_add_u32 v{t+3}, {KVS}, v{t+3}'),
             I(f'ds_read_b64 {vr(P2,2)}, v{t+3} offset:1280'),
             I(f'v_and_b32 v{t+2}, 0x30, v{V_L16}'), I(f'v_add_u32 v{t+2}, {KVS}, v{t+2}'),
             I(f'ds_read_b64 {vr(P2+2,2)}, v{t+2} offset:1288')]
        for mt in range(2): L.append(I(f'v_mul_f32 v{X_+mt}, {f2u(1.0/K0C):#x}, v{C0[mt]}'))
        for mt in range(2): L.append(I(f'v_mul_f32 v{X_+mt}, v{X_+mt}, v{X_+mt}'))
        L += [I(f's_add_u32 s{S_CNT}, s{S_W1K}, {slot_of(IT_PK) * SLOT}'), I(f'v_add_u32 v{X_+2}, s{S_CNT}, v{V_L16}'), I(f'v_lshrrev_b32 v{X_+3}, 2, v{V_L16}'), Delay(1)]
        for E, c in ((E0, 0), (E1, 2)):
            L.append(I(f'v_cvt_pk_bf16_f32 v{E}, v{E}, v{E+1}'))
            L.append(I(f'v_cvt_pk_bf16_f32 v{E+1}, v{E+2}, v{E+3}'))
            L.append(I(f'v_cvt_pk_bf16_f32 v{E+2}, v{P2+c}, v{P2+c+1}'))
            L.append(I(f'v_mov_b32 v{E+3}, 0'))
        for E in (E0, E1): L.append(I(f'v_cndmask_b32 v{E+2}, 0, v{E+2}, s[{S_G2}:{S_G2+1}]'))
        L.append(Ev('scrfree'))
        D0 = [ACC(3, 0, 0), ACC(3, 0, 1)]; D1 = [ACC(3, 1, 0), ACC(3, 1, 1)]
        L += [I(f'v_mov_b32 v{P2}, s{S_OOB}'), I(f'v_cmp_gt_u32 vcc, 0x80, v{X_+3}')]
        for mt in range(2):
            L.append(mf(D1[mt], E1, T0[mt])); L.append(mf(D0[mt], E0, T0[mt]))
        L += [I(f'v_cndmask_b32 v{X_+3}, v{P2}, v{X_+3}, vcc'), I(f'v_cmp_gt_u32 vcc, 0x100, v{V_L16}')]
        HQ = [E0, E1]
        L += [I(f'ds_read_b64 {vr(HQ[mt],2)}, v{X_+2} offset:{8*mt}') for mt in range(2)]
        for mt in range(2): L.append(I(f'v_add_f32 v{D1[mt]+2}, s{S_EPS}, v{D1[mt]+2}'))
        for mt in range(2): L.append(I(f'v_mul_f32 v{D1[mt]+2}, v{D1[mt]+2}, v{X_+mt}'))
        for mt in range(2): L.append(I(f'v_rcp_f32 v{D1[mt]+2}, v{D1[mt]+2}'))
        for mt in range(2):
            for r in range(4): L.append(I(f'v_mul_f32 v{D0[mt]+r}, v{D0[mt]+r}, v{D1[mt]+2}'))
            for r in (0, 1): L.append(I(f'v_mul_f32 v{D1[mt]+r}, v{D1[mt]+r}, v{D1[mt]+2}'))
            L.append(I(f'v_cvt_pk_bf16_f32 v{HQ[mt]+2}, v{D0[mt]}, v{D0[mt]+1}'))
            L.append(I(f'v_cvt_pk_bf16_f32 v{HQ[mt]+3}, v{D0[mt]+2}, v{D0[mt]+3}'))
            L += hstore(HQ[mt], 4, mt, 4)
            L.append(I(f'v_cvt_pk_bf16_f32 v{D1[mt]}, v{D1[mt]}, v{D1[mt]+1}'))
        L.append(I(f'v_cndmask_b32 v{D1[0]}, v{D1[1]}, v{D1[0]}, vcc'))
        L.append(I(f'buffer_store_dword v{D1[0]}, v{X_+3}, {WS}, s{S_A2L} offen {HST}', tok='ol'))
        L.append(Ev('odone'))
        return L
    def F_p2setup():
        return [I(f'v_lshrrev_b32 v{VSP+3}, 6, v{V_L16}'), I(f'v_mul_u32_u24 v{VSP+1}, 1152, v{VSP+3}'), I(f'v_bfe_u32 v{VSP+2}, v{V_L16}, 4, 2'),
                I(f'v_lshl_add_u32 v{VSP}, v{VSP+2}, 4, v{VSP+1}'), I(f'v_lshl_add_u32 v{VSP+1}, v{VSP+2}, 3, v{VSP+1}'),
                I(f'v_lshlrev_b32 v{VSP+3}, 7, v{VSP+3}'),
                I(f'v_bfe_u32 v{V_AL+2}, v{V_L16}, 4, 4'), I(f'v_and_b32 v{VSP+2}, 0x300, v{V_L16}'), I(f'v_lshl_add_u32 v{VSP+2}, v{V_AL+2}, 2, v{VSP+2}'),
                I(f'v_mov_b32 v{V_AL+2}, 0'), I(f'v_mov_b32 v{V_AL+3}, 0'), Ev('p2setup')]
    p2slots = {slot_of(IT_W2 + k) for k in range(37, 48)}
    free = [slot_of(IT_W2 + k) for k in range(29, 33)] + [19] + [slot_of(IT_W2 + k) for k in range(33, 37)]
    assert not (set(free) & p2slots) and len(set(free)) == 9
    def F_cwrite():
        L = [I(f'v_add_u32 v12, s{S_W1K}, v{V_L16}'), I(f'v_add_u32 v13, {12*SLOT}, v12'), I(f'v_add_u32 v14, {6*SLOT}, v12')]
        return L
    def cmb(k):
        s_ = free[k]
        return (12, s_ * SLOT) if s_ < 6 else ((14, (s_ - 6) * SLOT) if s_ < 12 else (13, (s_ - 12) * SLOT))
    def F_cw2(lts):
        L = []
        for lt in lts:
            r_, o_ = cmb(lt - 2)
            L.append(I(f'ds_write_b128 v{r_}, {vr(ACC2(lt,1),4)} offset:{o_}', tok=f'cw{lt}'))
        return L
    RB_ = [acc1[9], acc1[11], acc1[13]]
    def F_send():
        L = []
        def rd(lt, q):
            r_, o_ = cmb(lt - 2)
            return I(f'ds_read_b128 {vr(q,4)}, v{r_} offset:{o_}')
        def ad(lt, q): return [I(f'v_add_f32 v{ACC2(lt,0)+r}, v{ACC2(lt,0)+r}, v{q+r}') for r in range(4)]
        L += [rd(2, RB_[0]), rd(3, RB_[1]), rd(4, RB_[2]), Delay(2)]
        nxt = 5
        for p in range(1, 4):
            for lt in (2*p, 2*p+1):
                q = RB_[(lt - 2) % 3]
                L += ad(lt, q)
                if nxt <= 8: L.append(rd(nxt, q)); nxt += 1
            a, b = ACC2(2*p, 0), ACC2(2*p+1, 0)
            L += pack2(a, a, b)
            L += [I(f'v_min_u32 v{a+r}, -2, v{a+r}') for r in range(4)]
            L.append(I(f'buffer_store_dwordx4 {vr(a,4)}, v{V_L16}, {WS}, s{S_EXS+p-1} offen sc1'))
        L += ad(8, RB_[0])
        a = ACC2(8, 0); q = RB_[1]
        L += [I(f'v_cvt_pk_bf16_f32 v{q}, v{a}, v{a+1}'), I(f'v_cvt_pk_bf16_f32 v{q+1}, v{a+2}, v{a+3}'),
              I(f'v_min_u32 v{q}, -2, v{q}'), I(f'v_min_u32 v{q+1}, -2, v{q+1}'),
              I(f'buffer_store_dwordx2 {vr(q,2)}, v{V_L8}, {WS}, s{S_E8S} offen sc1'), Ev('sent')]
        return L

    memq = []
    def mq(step, evs, mk, item=None, by=None, ordr=None): memq.append(dict(step=step, ev=evs, mk=mk, item=item, by=by, ordr=ordr))
    def xstep(ks): return SO[('S1', ks) if ks < K1 else ('S1a', ks)]
    n0 = NPRE
    for k in range(PS, len(stg)):
        for h in range(2): mq(0, [f'srd{k-NR}'] if k >= NR else [], (lambda k=k, h=h: sdma(k, h)), ordr='s')
        for _ in range(2 if k < PS + cfg.get('wah', 0) else 1):
            if n0 < 18:
                mq(0, [], (lambda n=n0: dma(n)), n0, ordr='w'); n0 += 1
        if GPOS <= k < GPOS + 2 and GP < 0:
            for h in range(2): mq(cfg.get('gstep', 3), [], (lambda g=k-GPOS, h=h: gdma(g, h)), ordr='g')
    for n in range(n0, 18): mq(0, [], (lambda n=n: dma(n)), n, ordr='w')
    NXB = cfg.get('nxb', 14 if QF else 8)
    for n in range(IT_Q, IT_Q + NXB): mq(0, ['wxok', 'rxinit'], (lambda n=n: dma(n)), n, ordr='s')
    if cfg.get('notouch'): events['tissued'] = -9
    for k in range(NT if not cfg.get('notouch') else 0): memq.insert(k, dict(step=cfg.get('tstep', 11), ev=['tpat', 'wxst1'], mk=(lambda k=k: touch(k)), item=None, by=None, ordr='t'))
    for n in range(IT_R, IT_Q): mq(0, ['rpat', 'tissued'], (lambda n=n: dma(n)), n, ordr='s')
    for n in range(IT_Q + NXB, IT_SCR): mq(SO[tuple(cfg.get('xr', ('S2', 5)))], ['wxok', 'rxinit'], (lambda n=n: dma(n)), n, ordr='s')
    LST = cfg.get('lst', [3])
    for n in range(IT_L1, IT_W2): mq(SO[tuple(cfg.get('l1at', ('S3', 0)))], ['dmah'], (lambda n=n: dma(n)), n, ordr='w')
    TORD = [0, 1, 2, 4, 3]
    def aload(sp, mt, half=None, t=None):
        t = t or stmp(); tt = TORD[sp >> 2]
        if cfg.get('r2', 0):
            L = [I(f's_add_u32 s{t}, s{S_A + mt}, s{S_JO[sp & 3]}')] + ([I(f's_add_u32 s{t}, s{t}, 4096')] if tt == 4 else [])
            off = (tt & 3) * 1024
        else:
            off = ((sp & 3) * 5 + tt) * 1024
            L = [I(f's_add_u32 s{t}, s{S_A + mt}, {off & ~4095}')]
        return L + [I(f'buffer_load_dwordx4 {vr(AF(sp, mt), 4)}, v{V_L16}, {WS}, s{t} offen offset:{off & 4095} sc1')]
    def xfree_step(ks):
        return (SO[('S4c', ks)] if ks < K4 else SO[('S4e', ks)]) + 1
    w2n = IT_W2
    VX = 8
    for sp in range(21):
        while w2n <= IT_W2 + ((sp * 7 + 6) >> 2):
            mq(0, ['w2ok', 'setup2'], (lambda n=w2n: dma(n)), w2n, ordr='v' if cfg.get('r2', 0) else None); w2n += 1
        if sp < 20:
            ev = [['h4ok'], ['h4ok'], ['h5ok'], ['h6ok'], ['h5ok']][sp >> 2]
            if sp < 2: ev = ev + ['gathered']
            if sp >= 17: ev = ev + ['e3done']
            for mt in range(2):
                for half in [None]:
                    mq(xfree_step(sp) if sp < 16 else SO[('P1', sp - cfg.get('t3lead', 3))], ev + ['setup2'], (lambda sp=sp, mt=mt, half=half: aload(sp, mt, half)), by=SO[('P1', sp if sp < 16 else sp - 1)])
        if sp == 15:
            for k in range(2):
                mq(0, ['h6ok', 'p2setup'], (lambda k=k: [I(f'buffer_load_dword v{V_AL+k}, v{VSP+2}, {WS}, s{S_AL} offen offset:{128*k} sc1')]), by=SO[('P1', 20)])
    for n in list(range(w2n, w2n + 5)) + [NITEM - 1] + list(range(w2n + 5, NITEM - 1)): mq(0, [], (lambda n=n: dma(n)), n)
    R = AF(0, 0); R8 = R + 12
    rloads = lambda: ([I(f'buffer_load_dwordx4 {vr(R+4*p,4)}, v{V_L16}, {WS}, s{S_EX} offen offset:{1024*p} sc1') for p in range(3)]
                      + [I(f'buffer_load_dwordx2 {vr(R8+2*p,2)}, v{V_L8}, {WS}, s{S_E8R} offen offset:{512*p} sc1') for p in range(3)])
    for mk in (lambda: [I(f'buffer_load_dwordx4 {vr(8,4)}, v{VSP}, {XS}, s{S_O} offen')],
               lambda: [I(f'buffer_load_dwordx2 {vr(0,2)}, v{VSP+1}, {XS}, s{S_O8} offen')],
               lambda: [I(f'buffer_load_dword v15, v{VSP+3}, {WS}, s{S_STK} offen offset:8 sc1')]):
        mq(0, ['e3done', 'p2setup', 'pook'], mk, by=SO[('P2a', cfg.get('pb', 2))])

    KP = ('S4a', KPS); KO = ('S4d', KOS)
    PB = ('P2a', cfg.get('pb', 2))
    WXF = ('S1', cfg.get('wxf', 11)); RS = ('S3', cfg.get('rs', 6)); F3F = KP
    barspec = ([WXF] + [('S1', k) for k in cfg.get('s1l', range(0, K1))] + [('S1b', K1), RS, ('S4', 0), KP, ('S4c', 0), KO]
               + [tuple(x) for x in cfg.get('xb', [('S1d', K1 + 2), ('S2', 5), ('S3', 0), ('S3', 10), ('S3', 15), ('S4', 4), ('S4a', K3), ('S4c', 5), ('S4e', K4 + 4), ('P2a', 14)])]
               + [('P1', k) for k in cfg.get('p1b', [0, 3, 6, 9, 12, 15, 17, 19])] + [('P2a', 0), PB, ('P2b', 6)])
    bars = sorted(set(SO[tuple(b)] for b in barspec))
    if 'getbars' in cfg: cfg['getbars'] += [list(steps[b]) for b in bars]
    need = {}
    for bi, b in enumerate(bars):
        lo = first_frag[b] + (D if bi else 0)
        hi = first_frag[bars[bi + 1]] + D if bi + 1 < len(bars) else NF
        need[b] = sorted({frags[i]['item'] for i in range(lo, min(hi, NF))} - {None})
    last_use = {}
    for f in frags:
        if f['item'] is not None: last_use[f['item']] = f['step']
    need[SO[RS]] = sorted(set(need[SO[RS]]) | {IT_R, IT_R + 1, IT_R + 2})
    rel_ev = {IT_R: 'rdone', IT_R + 1: 'rdone', IT_R + 2: 'rdone', IT_SCR: 'scrfree', IT_PK: 'odone', 'stage': 'xdone', 'gst': 'wxst1'}
    released = set()
    issued = {n: -1 for n in range(NPRE)}
    events['srd0'] = events['srd1'] = -9
    def spread(main, items, start, step):
        o = {}
        for k, x in enumerate(items): o.setdefault(min(start + k * step, len(main) - 1), []).extend(x if isinstance(x, list) else [x])
        L = []
        for k, x in enumerate(main):
            if k in o: L += o[k]
            L.append(x)
        return L
    avail = {}
    def at(step, f): avail.setdefault(SO[step], []).append(f)
    xrd = {}
    for L_ in range(1, 9):
        xrd.setdefault(min(xstep(2 * L_) - 1, SO[('S1', K1 - 1)]), []).append(L_)
    DL = cfg.get('dl', 36); S_RSRC2 = S_RDST
    at(('S1', cfg.get('rowat', 0)), lambda: F_nonce((F_tpat() if not cfg.get('notouch') else [Delay(8)]) + [Delay(cfg.get('ndelay', 32))]))
    evfront = [('gl0', None, lambda: F_wx(0)), ('gl1', 'wxst0', lambda: F_wx(1))]
    at(WXF, lambda: [Need('setup0')] + setflag(S_F2S, 0, [], V_T + 1, V_T + 2))
    pw = poll([], 3, 'wxok', False, True, [], V_T + 1, V_T + 2, S_F2P)
    if 'wxp' in cfg:
        at(('S1', cfg['wxp']), lambda: pw[:-4] + F_stats([Delay(cfg.get('dl', 24))] + pw[-4:] + [Delay(4)]) + [Need('l0issued'), Need('setup1')] + F_dmah(V_DMA, V_T + 3) + F_stats2())
    else:
        at(('S1', cfg.get('stat', 12)), lambda: F_stats([Delay(cfg.get('dl', 22))] + pw[:-4] + [Delay(cfg.get('dl2', 8))]) + [Need('l0issued'), Need('setup1')] + F_dmah(V_DMA, V_T + 3) + pw[-4:] + F_stats2())
    at(('S1b', K1), lambda: [Need('setup1'), Need('wxok')] + F_csx() + ([] if QF else F_rpat()) + [Need('tissued')] + F_c1())
    at(('S1b', K1 + 2), lambda: E_first(0))
    po = F_poison(T2[0])
    at(('S1c', K1), lambda: E_second(0, 1, 0) + [Ev('u01free')])
    rl = F_relayout([ACC(2, 1, 0), ACC(2, 1, 1)], V_TH, V_T)
    at(('S2', 0), lambda: E_first(2) + rl[0] + spread(E_second(2, 3, 1) + [Ev('u23free')], rl[1], 6, 14))
    pa = F_poison(U(3)[0]); NPA = cfg.get('npa', 3)
    kvpo = [I(f'v_lshrrev_b32 v{U(3)[1]+1}, 2, v{V_L16}'),
            I(f'buffer_store_dword v{U(3)[0]}, v{U(3)[1]+1}, {WS}, s{S_KVST} offen sc1', tok='kvpo')]
    at(('S3', 2), lambda: [Need('setup1b')] + pa[0] + kvpo + F_trh() + spread(E_quarter(4) + [Ev('u4free')], pa[1][6 - NPA:6], 4, 60 // max(NPA, 1))
       + [I(f'v_mov_b32 v{ONES+r}, 0x3f803f80') for r in range(4)] + [Ev('ones1')])
    at(('S4', 0), lambda: setflag(S_FL, 0, ['h0_0_0', 'h0_1_0', 'h1_0_0', 'h1_1_0'], q3, q3 + 1) + setflag(S_F2S, 0x8000, [], q3, q3 + 1)[5:] + [Ev('f2done')] + E_qkv())
    w2p = [I(f's_and_b32 s{S_RSRC2}, s2, 3'), I(f's_lshl_b32 s{S_RSRC2}, s{S_RSRC2}, 13'), I(f's_add_u32 s{S_RSRC2}, s{S_RSRC2}, s{S_W1K}'),
           I(f's_add_u32 s{S_RSRC2}, s{S_RSRC2}, {F2_OFF + 0x8000}')]
    if MAP: w2p = [I(f's_lshl_b32 s{S_RSRC2}, s{S_W1K}, 2'), I(f's_add_u32 s{S_RSRC2}, s{S_RSRC2}, {F2_OFF + 0x8000}')]
    pq = pollh(0, 'h4ok', poll(w2p, 5 if MAP else 3, 'w2ok', False, True, ['X'], q3 + 2, q3 + 3, S_RSRC2), q3, q3 + 1); kx = pq.index('X')
    at(KP, lambda: F_publish([Delay(3)]) + E_q()[:cfg.get('pqat', 20)] + pq[:kx] + E_q()[cfg.get('pqat', 20):])
    at(('S4b', K3), lambda: (po[0] if NPA < 6 else []) + spread(E_first(2), po[1][:6 - NPA], 2, 66 // max(6 - NPA, 1)) + pq[kx+1:] + [Ev('u4free2'), Ev('e2b')])
    u2d = ACC(2, 1, 0)
    at(('S4c', 0), lambda: w2touch(u2d, u2d + 1) + E_second(2, 3, 2)[:36])
    at(('S4c', cfg.get('kvl', 3)), lambda: F_kvload() + E_second(2, 3, 2)[36:] + [Ev('e2done')] + F_gather())
    at(KO, lambda: F_o())
    at(('S4e', K4), lambda: E_first(4) + [Ev('e4a')])
    e3 = E_second(4, 1, 3)
    at(('P1', 0), lambda: [I(f'v_lshrrev_b32 v{V_L8}, 1, v{V_L16}'), Ev('l8')] + e3 + [Ev('e3done')] + F_p2setup())
    def t3check(sp):
        a0, a1 = AF(sp, 0), AF(sp, 1)
        ld = lambda: aload(sp, 0, None, S_PT) + aload(sp, 1, None, S_PT)
        ck = lambda: [I(f'v_max3_u32 v3, v{a0}, v{a0+1}, v{a0+2}'), I(f'v_max3_u32 v6, v{a0+3}, v{a1}, v{a1+1}'),
                      I(f'v_max3_u32 v3, v3, v{a1+2}, v{a1+3}'), I('v_max_u32 v3, v3, v6'), I('v_cmp_eq_u32 vcc, -1, v3')]
        g = retry_group(ld, ck)
        return [Delay(cfg.get('t3d', 7))] + g + [Ev(f't3ok{sp}')]
    for sp in range(16, 20): at(('P1', sp - 1), lambda sp=sp: t3check(sp))
    at(('P1', cfg.get('pp', 10)), lambda: poll([I(f's_and_b32 s{S_PT}, s2, 0xfc'), I(f's_lshl_b32 s{S_PT}, s{S_PT}, 7'), I(f's_add_u32 s{S_PT}, s{S_PT}, {F4_OFF}')],
                                               2, 'pook', False, False, [Delay(28)], 3, 6) + [Need('e3done')] + htouch(3, 1, ['h3_0_0', 'h3_1_0'], 3, 7) + F_cwrite() + [Ev('cwa')])
    at(('P1', 19), lambda: [Delay(5)] + [y for lt in range(2, 7) for y in F_cw2([lt]) + [Delay(3)]] + [Ev('cw6')])
    at(('P2a', 0), lambda: F_cw2(range(7, 9)) + [I(f'v_xor_b32 v{r_}, 0x1000, v{r_}') for r_ in (12, 13, 14)] + [Ev('cwb')])
    if not cfg.get('fastsend', 1): at(PB, lambda: F_send())
    TT = acc1[0]
    at(('P2b', 2), lambda: [Need('sent'), I(f'v_xor_b32 v{TT}, 0x1000, v{cmb(8)[0]}'), I(f'ds_write_b128 v{TT}, {vr(ACC2(0,1),4)} offset:{cmb(8)[1]}', tok='c0w'), Ev('c0w')])
    at(('P2b', 6), lambda: [I(f'ds_read_b128 {vr(ACC2(0,1),4)}, v{cmb(8)[0]} offset:{cmb(8)[1]}'), I('v_mul_f32 v15, v15, v15'), Delay(3)]
       + [I(f'v_add_f32 v{ACC2(0,0)+r}, v{ACC2(0,0)+r}, v{ACC2(0,1)+r}') for r in range(4)] + [Ev('c0done')])
    TW = acc1[2]
    TB0 = (0 if free[7] >= 4 else 4) * SLOT
    tadr = [I(f's_lshl_b32 s{S_CNT}, s{S_W1K}, 2'), I(f's_add_u32 s{S_CNT}, s{S_CNT}, {TB0}'),
            I(f'v_bfe_u32 v{TW}, v{V_L16}, 4, 4'), I(f'v_mul_u32_u24 v{TW}, 208, v{TW}'), I(f'v_bfe_u32 v{TW+3}, v{V_L16}, 8, 2'),
            I(f'v_lshl_add_u32 v{TW}, v{TW+3}, 4, v{TW}'), I(f'v_add_u32 v{TW}, s{S_CNT}, v{TW}'),
            I(f'v_lshrrev_b32 v{TW+2}, 6, v{V_L16}'), I(f'v_mul_u32_u24 v{TW+2}, 208, v{TW+2}'), I(f'v_add_u32 v{TW+2}, s{S_CNT}, v{TW+2}'),
            I(f'v_bfe_u32 v{TW+3}, v{V_L16}, 4, 2'), I(f'v_lshl_add_u32 v{TW+1}, v{TW+3}, 5, v{TW+2}'), I(f'v_lshl_add_u32 v{TW+2}, v{TW+3}, 4, v{TW+2}')]
    at(('P2b', cfg.get('rcv', 9)), lambda: rloads() + tadr + [Ev('rcv')])
    p5 = pollh(1, 'h5ok', [], 3, 6); p6 = pollh(2, 'h6ok', [], 3, 6)
    P5 = cfg.get('p5', 3); P6 = cfg.get('p6', 7); F6 = cfg.get('f6', 1)
    front2 = {SO[('S4e', K4)]: lambda: setflag(S_FL, HS, ['h2_0_0', 'h2_1_0', 'p3_0', 'p3_1'], V_A, V_DMA) + setflag(S_F3S, F4_OFF - F3_OFF, [], V_A, V_DMA)[5:] + [Ev('f5')] + htouch(2, 1, [], V_A, V_DMA),
              SO[('P1', F6)]: lambda: setflag(S_FL, 2*HS, ['h4_0_0', 'h4_1_0', 'ol'], 3, 6) + htouch(4, 1, [], 3, V_A),
              SO[('P1', P5)]: lambda: p5[:-4], SO[('P1', P5 + 2)]: lambda: p5[-4:], SO[('P1', P6)]: lambda: p6[:-4], SO[('P1', P6 + 2)]: lambda: p6[-4:]}
    assert F6 < P5 and P5 + 2 < P6 and P6 + 2 <= cfg.get('pp', 10)
    front = {SO[('S1d', K1)]: lambda: F_csx2() + [Ev('csx')]}
    front.update(front2)
    if QF: front[SO[('S2', 1)]] = F_rpat
    inline = {}
    front[SO[('S1a', K1 + 1)]] = lambda: [Need('setup1'), Delay(2)] + cswrite(CSA, 0, ONES) + [Ev('csw0')]
    front[SO[('S4a', CA_END)]] = lambda: cswrite(CSA, 2, ONES) + [Ev('csw2')]
    front[SO[('S4d', CB_END)]] = lambda: cswrite(T1[1], 3, T1[0]) + [Ev('csw3')]
    must = {('S1b', K1): ['stats', 'csw0'],  ('S2', 0): ['csx'], WXF: ['wxst1'], ('S3', 0): ['u01free'], ('S3', 17): ['trh'],
            ('S4', 0): ['rdone', 'ones1'], KP: ['qkvdone', 'csw2'],
            ('S4c', 0): ['u4free2', 'published', 'ones2', 'e2b'], KO: ['gathered', 'csw3'], ('P1', 0): ['odone', 'e2done', 'f5'] + (['e4a'] if cfg.get('e4a', 0) else []), ('P2a', 0): ['cw6'], PB: ['cwb'], ('P2b', 6): ['c0w']}
    for sp in range(16, 20): must[('P1', sp)] = [f't3ok{sp}', 'cwa']
    must = {SO[k]: v for k, v in must.items()}
    b1 = sq_txt[-1].split('\n'); cut = [k for k, l in enumerate(b1) if f's_cselect_b32 s{S_F3S},' in l][0] + 1
    savail = {SO[('S1', 0)]: lambda: [Need('gissued')] + sgroups('\n'.join(b1[:cut] + sqa)) + [Ev('setup0')] + sgroups(sq_txt[0]) + [Ev('setup1')],
              SO[('S2', 0)]: lambda: sgroups('\n'.join(sq_txt[1:-1])) + [Ev('rsetup')] + sgroups('\n'.join(b1[cut:])) + [Ev('setup1b')],
              SO[('S4', 0)]: lambda: [Need('xissued'), Need('rdone')] + F_setup2()}
    bar_extra = {SO[WXF]: ['wx0', 'wx1', 'wc0', 'wc1'], SO[('S1b', K1)]: ['cs0'], SO[('S3', 0)]: ['cs1'],
                 SO[KP]: [f'kva{i}' for i in range(4)] + ['cs2'], SO[('S4', 0)]: ['w2a0', 'w2a1', 'w2a2', 'kvpo'],
                 SO[KO]: ['kvb0', 'cs3'] + [f'po{p}' for p in range(4)],
                 SO[PB]: [f'cw{lt}' for lt in range(2, 9)], SO[('P2b', 6)]: ['c0w']}
    for k in bar_extra: assert k in bars, steps[k]

    fill = []; sfill = []; xfill = []
    st.gap = 0; st.delay_until = 0; st.cur = -99; st.ta = 0.0; st.adv = None; st.armed = None; st.force = False
    MEMSP = cfg.get('memsp', {})
    def memsp(s):
        if s < cfg.get('fasts', 0): return cfg.get('fastsp', 2.0)
        return MEMSP.get(steps[s][0][:2], {'S1': 3.8, 'P1': 4.0, 'S4': 4.0}.get(steps[s][0][:2], 4.5))
    def isI(x, kinds): return isinstance(x, I) and x.kind in kinds
    def housekeeping(force=False):
        while fill:
            x = fill[0]
            if isinstance(x, Ev): (pending if x.bar else events)[x.name] = st.gap; fill.pop(0)
            elif isinstance(x, Need):
                if x.name in events and not (x.name.endswith('issued') and events[x.name] > st.gap - 4): fill.pop(0)
                else:
                    assert not force, ('blocked on', x.name)
                    return False
            elif isinstance(x, Delay):
                if x.n >= 0:
                    x.until = st.gap + x.n; x.n = -1
                if force or st.gap >= x.until: fill.pop(0)
                else: return False
            else: return True
        return False
    def slots(seq):
        t = 0; lastv = -10; first = True
        for x in seq:
            if isinstance(x, Wait): t += 1; continue
            if first: first = False; t = 1; continue
            if x.kind in ('valu', 'trans'):
                t = max(t, 2); t += x.cost; lastv = t - 1
            elif x.kind in ('ds_r', 'ds_w', 'vm_ld', 'vm_st', 'vm_dma'):
                t = max(t, 2, lastv + 3); t += 1
            else: t += x.states()
        return t
    st.tnext = 0
    def mem_ready(e, s):
        if e['ordr'] == 't' and st.gap < st.tnext: return False
        if e['step'] > s or any(v not in events or events[v] > st.gap - (4 if v.startswith('srd') else 0) for v in e['ev']): return False
        n = e['item']
        if n is not None and IT_Q < n < IT_SCR and st.gap < issued.get(n - 1, -99) + cfg.get('xsp', 0): return False
        if n is not None and IT_L1 <= n < IT_W2:
            if PAIR and L1hk(n)[0] == 0:
                if st.gap < issued.get(n - 1, -99) + cfg.get('l1sp', 16) or (prev_of(n + 1) not in released and n + 2 < IT_W2): return False
            elif not PAIR and st.gap < issued.get(n - 1, -99) + cfg.get('l1sp', 16): return False
        if n is not None and prev_of(n) is not None and prev_of(n) not in released: return False
        return True
    leads = {}; sissue = {f's{k}_1': -30 for k in range(PS)}; st.nx = 2
    if GP >= 0:
        sissue.update({'sg0_1': -20, 'sg1_1': -20}); events['gissued'] = -9
    def flush_armed():
        g = st.armed or []; st.armed = None
        return g
    def pop_mem(s, win=None):
        if st.armed: return flush_armed()
        if sfill and sfill[0] is st.adv:
            if win is None: return None
            return sfill.pop(0)
        blocked = set()
        for k in range(min(win or cfg.get('ooo', 24), len(memq))):
            e = memq[k]
            if e['ordr'] not in blocked and mem_ready(e, s):
                memq.pop(k)
                if e['item'] is not None: issued[e['item']] = st.gap
                if e['by'] is not None: leads.setdefault(e['by'], []).append(st.gap)
                g = e['mk']()
                for x in g:
                    if x.tok and x.tok[0] == 's': sissue[x.tok] = st.gap
                if all(n in issued for n in range(IT_R, IT_Q)): events.setdefault('rissued', st.gap)
                if all(n in issued for n in range(IT_Q, IT_SCR)): events.setdefault('xissued', st.gap)
                if all(n in issued for n in range(18)): events.setdefault('l0issued', st.gap)
                if all(n in issued for n in range(IT_L1, IT_W2)): events.setdefault('l1issued', st.gap)
                if f's{len(stg)-1}_1' in sissue: events.setdefault('rxinit', st.gap)
                if 'sg1_1' in sissue: events.setdefault('gissued', st.gap)
                return g
            if e['ordr']: blocked.add(e['ordr'])
        return None
    def vcost(x, s):
        c = memsp(s)
        if x.op.endswith('x4'): return c
        if x.op.endswith('x2'): return c
        return c / 2
    VM = ('vm_ld', 'vm_st')
    def gap(m, shadow, rd, s, quiet=False):
        st.gap += 1
        budget = 2
        rds = [x for x in rd if x.kind == 'salu']; rdv = [x for x in rd if x.kind == 'valu']; rdm = [x for x in rd if x.kind == 'ds_r']
        head = shadow + rds; val = list(rdv); budget -= len(rdv)
        sal = []; mem = []; fre = []; post = []; later = None; first_mem = False; fvm = False
        if not quiet:
            hk = housekeeping()
            fvm = hk and (isI(fill[0], VM) or (isI(fill[0], ('salu',)) and len(fill) > 1 and isI(fill[1], VM)))
            if fvm and st.armed: fvm = False
            if fvm:
                x = fill[0] if isI(fill[0], VM) else fill[1]
                if st.gap >= st.ta - cfg.get('fslack', 6) or not x.op.endswith('x4'):
                    if fill[0] is not x: fre.append(fill.pop(0))
                    mem.append(fill.pop(0))
            while st.nx < 18 and not xfill:
                k = spos[('x', st.nx)]
                if f's{k}_1' in sissue and st.gap - sissue[f's{k}_1'] >= cfg.get('lag', 45) and (st.nx < 16 or 'nonce' in events):
                    if cfg.get('verbose'): print('   x pair', st.nx, 'early read at gap', st.gap)
                    xfill.extend([xread(st.nx, 0), xread(st.nx, 1), Ev(f'srd{k}')]); st.nx += 1
                else: break
            for i_ in range(2):
                if f'sg{i_}_1' in sissue and st.gap - sissue[f'sg{i_}_1'] >= cfg.get('glag', 50): events.setdefault(f'gl{i_}', st.gap)
            if evfront and evfront[0][0] in events and (evfront[0][1] is None or evfront[0][1] in events) and not mem:
                k = 0
                while k < len(fill) and (isI(fill[k], ('vm_st', 'vm_ld')) or isinstance(fill[k], list) or (isinstance(fill[k], Delay) and k + 1 < len(fill) and isinstance(fill[k+1], list))): k += 1
                fill[k:k] = evfront.pop(0)[2]()
            if not mem and xfill and len(rdm) < 2 and not st.armed:
                x = xfill.pop(0); mem.append(x)
                while xfill and isinstance(xfill[0], Ev): events[xfill.pop(0).name] = st.gap
            if st.armed and not mem and (st.force or (len(rdm) < 2 and not (cfg.get('rr', 0) and rdm) and not (cfg.get('vfree', 1) and rdm and 'b128' in rdm[0].op))):
                mem.append(st.armed[0]); first_mem = True
                if st.armed[1:]: later = st.armed[1:]
                st.armed = None
            elif not st.armed and not mem and st.gap + 1 >= st.ta and not (hk and steps[s][0] != 'S1' and any(isI(x, VM) for x in fill[:3])):
                g = pop_mem(s)
                if g:
                    k = [q for q, x in enumerate(g) if x.kind.startswith('vm')][0]
                    fre += [x for x in g[:k] if x.kind != 'nop']; st.armed = g[k:]
            big = any(x.kind.startswith('vm') and (x.op.endswith('x4') or x.op.endswith('x2')) for x in mem)
            if not (big and cfg.get('vmq', 1)) and not (fvm and mem) and not (len(rdm) + len(mem) >= 2 and steps[s][0] == 'S1'):
                if not head and housekeeping() and isI(fill[0], ('salu',)): head.append(fill.pop(0))
                while housekeeping() and isI(fill[0], ('valu', 'trans')) and fill[0].cost <= budget:
                    x = fill.pop(0); budget -= x.cost; val.append(x)
                if budget == 1 and housekeeping() and isI(fill[0], ('trans',)):
                    for k in range(1, min(8, len(fill))):
                        x = fill[k]
                        if not isI(x, ('valu', 'trans')): break
                        if x.kind == 'valu' and not any((x.rd & y.wr) or (x.wr & (y.rd | y.wr)) for y in fill[:k]):
                            val.append(fill.pop(k)); budget -= 1; break
                if not mem:
                    while housekeeping() and isI(fill[0], ('salu',)) and len(sal) < 2 and not (len(fill) > 1 and isI(fill[1], VM)):
                        sal.append(fill.pop(0))
                    while housekeeping() and isI(fill[0], ('ds_r', 'ds_w')) and len(mem) < 2 - len(rdm): mem.append(fill.pop(0))
            if fvm and mem and not big and cfg.get('smallv', 1):
                k = 0; skipped = list(mem) + list(fre)
                while k < len(fill) and k < 24 and budget > 0:
                    x = fill[k]
                    if isI(x, ('valu', 'trans')):
                        if x.cost <= budget and not any((x.rd & y.wr) or (x.wr & (y.rd | y.wr)) for y in skipped):
                            val.append(fill.pop(k)); budget -= x.cost; continue
                        break
                    if not isI(x, ('salu', 'vm_ld')): break
                    skipped.append(x); k += 1
            for x in mem:
                if x.kind.startswith('vm'): st.ta = max(st.ta, st.gap - cfg.get('credit', 4)) + vcost(x, s)
            room = (0 if head else 1) + 2 - len(sal) - len(fre) - len(post)
            if big or len(rdm) + len(mem) >= 2: room = min(room, (0 if head or fre else 1) + (2 - len(sal) - len(fre) if val else 0))
            pre = []
            while sfill and room > 0:
                x = sfill[0]
                if isinstance(x, Ev): events[x.name] = st.gap; sfill.pop(0); continue
                if isinstance(x, Need):
                    if x.name in events and events[x.name] < st.gap - 4 and not st.armed and not first_mem: sfill.pop(0); continue
                    break
                n = len(x) if isinstance(x, list) else 1
                if n > room and (room < 2 or pre): break
                sfill.pop(0); room -= n
                pre.append(x)
            if not head and pre and not isinstance(pre[0], list): head.append(pre.pop(0))
            if not head and fre: head.append(fre.pop(0))
            for x in pre: sal += x if isinstance(x, list) else [x]
        vmode = st.gap - st.cur < 6 or len(val) > len(rdv)
        early = cfg.get('early', 1) and not rdv and (steps[s][0] in cfg.get('eph', ['S1', 'S1a']) or not vmode) and not any(x.kind == 'trans' for x in val)
        if early:
            if val or (fvm and mem): seq = [m] + head + rdm + val + sal + fre + mem + post
            elif sal and mem and not first_mem: seq = [m] + head + rdm + sal + fre + mem + post
            else: seq = [m] + head + rdm + mem + sal + fre + post
        else:
            seq = [m] + head + val + sal + fre
            if cfg.get('later', 1) and vmode and rdm and not val and not mem and not quiet and slots(seq) < 5: seq.append(I(f's_nop {5 - slots(seq) - 1}'))
            seq += rdm + mem + post
        if later: sfill.insert(0, later); st.adv = later
        if not quiet and not mem and housekeeping() and isinstance(fill[0], list): seq += fill.pop(0)
        if len(val) > len(rdv): st.cur = st.gap
        if not quiet:
            mg = MINGAP if st.gap - st.cur < 6 else cfg.get('padq', 5)
            if early: mg = cfg.get('padq', 5)
            if s < cfg.get('slows', 0): mg = cfg.get('slowg', 9)
            if any(x.kind.startswith('vm') for x in mem) or len(rdm) + len(mem) >= 2: mg = (4 if early and s >= cfg.get('slows', 0) else mg - 1)
            if mg > slots(seq):
                lw = cfg.get('latew', 1) and shadow and isinstance(seq[1], Wait)
                if lw: w_ = seq.pop(1)
                n_ = mg - slots(seq) - (1 if lw else 0)
                if n_ > 0: seq.append(I(f's_nop {n_ - 1}'))
                if lw: seq.append(w_)
        if not quiet:
            if housekeeping() and isI(fill[0], ('mfma',)): seq += gap(fill.pop(0), [], [], s)
        return seq
    def drain_until(evs):
        L = []
        while any(e not in events for e in evs):
            assert fill, evs
            if housekeeping(force=True):
                x = fill.pop(0)
                if isinstance(x, list): L += x
                else: L.append(x)
        if L and cfg.get('verbose'): print('  drained', len(L), 'instrs for', evs)
        return L
    M = []
    def barrier_pre(b):
        L = []
        for n in need[b]:
            while n not in issued:
                g = pop_mem(b - 1, 40)
                assert g, ('item not issuable', n, steps[b], [(e['item'], e['ev'], e['step']) for e in memq[:6]])
                if cfg.get('verbose'): print('  forced issue before', steps[b], 'for item', n)
                L += g
        if cfg.get('verbose'):
            print('bar', steps[b], 'gap', st.gap, 'need', need[b], 'lead', [st.gap - issued[n] for n in need[b]])
        L.append(Wait([f'it{n}' for n in need[b]] + bar_extra.get(b, [])))
        return L
    def barrier_post(b):
        events.update(pending); pending.clear()
        if b == SO[RS]: events['rland'] = st.gap
        for n in list(last_use) + list(rel_ev):
            if n in rel_ev:
                if rel_ev[n] in events: released.add(n)
            elif last_use[n] < b: released.add(n)
    tsph = cfg.get('tsph', ['S2', 'S4', 'S4c', 'P1'])
    for i in range(NF):
        s = frags[i]['step']
        if i == 0:
            M += barrier_pre(0) + [I('s_barrier')] + ts('s1start')
            for k in range(D):
                r0, r1 = reads(k); M += r0 + r1
        if first_frag[s] == i:
            if steps[s] == ('S2', 0): assert QF or 'rissued' in events
            if steps[s] == ('S1c', K1): tr1_last = st.gap
            if steps[s] == PB and cfg.get('fastsend', 1):
                fill.extend(F_send()); M += drain_until(['sent'])
            if s in front:
                k = 0
                while k < len(fill) and (isI(fill[k], ('vm_st', 'vm_ld')) or isinstance(fill[k], (Delay, list))): k += 1
                fill[k:k] = front[s]()
            if s in savail: sfill.extend(savail[s]())
            for f in avail.get(s, []): fill.extend(f())
            for L_ in xrd.get(s, []):
                for p in (2 * L_, 2 * L_ + 1):
                    if p < st.nx: continue
                    assert p < 16 or 'nonce' in events
                    st.nx = p + 1
                    k = spos[('x', p)]
                    if st.armed and st.armed[0].tok in (f's{k}_0', f's{k}_1'): M += flush_armed()
                    while f's{k}_1' not in sissue:
                        while xfill:
                            x = xfill.pop(0)
                            if isinstance(x, Ev): events[x.name] = st.gap - 4
                            else: M.append(x)
                        g = pop_mem(s, 40)
                        assert g, ('staging not issuable', k, steps[s])
                        if cfg.get('verbose'): print('  forced staging issue', k, steps[s])
                        M += g
                    if cfg.get('verbose'): print('   x pair', p, 'read at', steps[s], 'lead', st.gap - sissue.get(f's{k}_1', -1))
                    xfill.extend([xread(p, 0), xread(p, 1), Ev(f'srd{k}')])
        if steps[s] == ('S1d', 17) and first_frag[s] == i - 0 and False: pass
        ms = mfmas(i)
        r0, r1 = reads(i + D) if i + D < NF else ([], [])
        ns = frags[i + 1]['step'] if i + 1 < NF else None
        nxt_first = ns is not None and first_frag[ns] == i + 1
        shadow = [Wait(rtoks(i + 1))] if i + 1 < NF else []
        if len(ms) == 2:
            if cfg.get('bb', 0) and nxt_first and ns in bars:
                st.force = True; M += gap(ms[0], [], r0 + r1, s); lastrd = []; st.force = False
            elif cfg.get('rr', 0) and st.armed and r1:
                st.force = True; M += gap(ms[0], [], r0 + r1, s); lastrd = []; st.force = False
            else:
                M += gap(ms[0], [], r0, s); lastrd = r1
        else: lastrd = r0 + r1
        if nxt_first and st.armed:
            x = st.armed[0]
            if (ns in bars and x.tok in [f'it{n}' for n in need[ns]]) or (x.kind == 'vm_ld' and ns in leads) or steps[ns] in (('S2', 0), ('S1a', K1)): M += flush_armed()
        if nxt_first:
            if steps[ns][0] in ('S1', 'S1a'):
                nd = set().union(*[{('v', XF(steps[ns][1], mt) + r) for r in range(4)} for mt in range(2)])
                while xfill and (steps[ns][0] == 'S1a' or any(isinstance(y, I) and (y.wr & nd) for y in xfill)):
                    x = xfill.pop(0)
                    if isinstance(x, Ev): events[x.name] = st.gap
                    else: M.append(x)
            if 'xdone' not in events and ns in bars and f'srd{len(stg)-1}' in events:
                M.append(Wait([f'sr{len(stg)-1}_1'])); events['xdone'] = st.gap
            if ns in must: M += drain_until(must[ns])
            if ns in inline: assert 'setup1' in events
            if ns in inline: M += [x for x in inline[ns]() if isinstance(x, I)]
            while any(e['by'] is not None and e['by'] <= ns for e in memq):
                g = pop_mem(s, 60)
                assert g, ('load not issuable', steps[ns], [(e['item'], e['ev'], e['step']) for e in memq[:8]])
                if cfg.get('verbose'): print('  forced load before', steps[ns])
                M += g
            if cfg.get('verbose') and ns in leads: print('   step', steps[ns], 'gap', st.gap, 'reg-load lead', [st.gap - x for x in leads[ns]])
        if nxt_first and ns in bars:
            M += barrier_pre(ns)
            M += gap(ms[-1], [I('s_barrier')] + shadow, lastrd, s, quiet=True)
            barrier_post(ns)
        else:
            M += gap(ms[-1], shadow, lastrd, s)
        if nxt_first and steps[ns][0] != steps[s][0] and steps[ns][0] in tsph: M += ts(steps[ns][0])
        if nxt_first and list(steps[ns]) == cfg.get('holdat'):
            M += IL(f"""
            s_mov_b32 s99, 20000
            L_hold:
            s_memrealtime s[88:89]
            s_waitcnt lgkmcnt(0)
            s_lshl_b32 s88, s88, 3
            s_sub_u32 s88, s88, s{S_NON}
            s_and_b32 s88, s88, 0x7fffffff
            s_sub_u32 s99, s99, 1
            s_cmp_eq_u32 s99, 0
            s_cbranch_scc1 L_holdx
            s_cmp_lt_u32 s88, {cfg['hold'] * 800}
            s_cbranch_scc1 L_hold
            L_holdx:
            """)
        if nxt_first and list(steps[ns]) in cfg.get('tsat', []): M += ts(f'@{steps[ns][0]}.{steps[ns][1]}')
    M += flush_armed()
    assert not memq, [(e['item'], e['ev']) for e in memq]
    M += drain_until(['rcv'])
    assert not fill and not sfill, (fill, sfill)
    M += ts('mainend')
    drop = cfg.get('drop', [])
    if drop:
        gone = set(); M2 = []
        for k, x in enumerate(M):
            if isinstance(x, I) and not x.raw and k > 3 and (x.kind in drop or ('xrd' in drop and x.tok and x.tok.startswith('sr')) or ('nop' in drop and x.kind == 'nop' and False)):
                if x.tok: gone.add(x.tok)
                continue
            M2.append(x)
        for x in M2:
            if isinstance(x, Wait): x.toks = [t for t in x.toks if t not in gone]
            else: x.waits = [t for t in x.waits if t not in gone]
        if 'vmwait' in drop:
            for x in M2:
                if isinstance(x, Wait): x.toks = [t for t in x.toks if not t.startswith('it')]
                else: x.waits = [t for t in x.waits if t.startswith('sr')]
        M = M2
    P.ext(M)
    TT = AF(3, 0)
    r7, o7 = cmb(7)
    P(f'v_xor_b32 v{TT+5}, 0x1000, v{r7}')
    P('s_mov_b32 s24, 0xffff0000')
    P(f'ds_write_b128 v{TT+5}, {vr(ACC2(1,1),4)} offset:{o7}', tok='c1w')
    def unpk(src):
        P(f'v_lshlrev_b32 v{TT}, 16, v{src}'); P(f'v_and_b32 v{TT+1}, s24, v{src}')
        P(f'v_lshlrev_b32 v{TT+2}, 16, v{src+1}'); P(f'v_and_b32 v{TT+3}, s24, v{src+1}')
    def addpk(dst, src):
        unpk(src)
        for r in range(4): P(f'v_add_f32 v{dst+r}, v{dst+r}, v{TT+r}')
    def rcheck():
        a, b = TT + 6, TT + 7
        L = [I(f'v_max3_u32 v{a}, v{R}, v{R+1}, v{R+2}'), I(f'v_max3_u32 v{b}, v{R+3}, v{R+4}, v{R+5}')]
        for k in range(6, 18, 4):
            L += [I(f'v_max3_u32 v{a}, v{a}, v{R+k}, v{R+k+1}'), I(f'v_max3_u32 v{b}, v{b}, v{R+k+2}, v{R+k+3}')]
        return L + [I(f'v_max_u32 v{a}, v{a}, v{b}'), I(f'v_cmp_eq_u32 vcc, -1, v{a}')]
    P.wait(['c1w'])
    P('s_barrier')
    P(f'ds_read_b128 {vr(ACC2(1,1),4)}, v{r7} offset:{o7}')
    g_ = retry_group(rloads, rcheck, sleep=1); P.ext(g_[:-2] + g_[-1])
    P.ext(ts('recv'))
    for k, (lt, rr) in enumerate(((0, lambda p: R+4*p), (8, lambda p: R8+2*p), (1, lambda p: R+4*p+2))):
        a = ACC2(lt, 0)
        if lt == 1:
            for r in range(4): P(f'v_add_f32 v{a+r}, v{a+r}, v{ACC2(1,1)+r}')
        for p in range(3): addpk(a, rr(p))
        P(f'ds_write_b128 v{TW}, {vr(a,4)} offset:{ {0: 0, 1: 64, 8: 128}[lt] }')
    Y = AF(5, 0)
    P(f'ds_read_b128 {vr(Y+8,4)}, v{TW+2} offset:128')
    P(f'ds_read_b128 {vr(Y,4)}, v{TW+1}')
    P(f'ds_read_b128 {vr(Y+4,4)}, v{TW+1} offset:16')
    for y, xr in ((Y + 8, 0), (Y, 8), (Y + 4, 10)):
        unpk(xr)
        for r in range(4): P(f'v_fma_f32 v{y+r}, v{y+r}, v15, v{TT+r}')
        d = {Y + 8: Y + 8, Y: Y, Y + 4: Y + 2}[y]
        P(f'v_cvt_pk_bf16_f32 v{d}, v{y}, v{y+1}'); P(f'v_cvt_pk_bf16_f32 v{d+1}, v{y+2}, v{y+3}')
        if y == Y + 8: P(f'buffer_store_dwordx2 {vr(Y+8,2)}, v{VSP+1}, s[{S_OUT}:{S_OUT+3}], s{S_O8} offen {cfg.get("ost", "sc1")}')
    P(f'buffer_store_dwordx4 {vr(Y,4)}, v{VSP}, s[{S_OUT}:{S_OUT+3}], s{S_O} offen {cfg.get("ost", "sc1")}')
    if TS:
        P('s_waitcnt vmcnt(0)')
        P.ext(ts('end'))
        P('s_memrealtime s[88:89]\ns_waitcnt lgkmcnt(0)')
        for k in range(st.nts if not cfg.get('cnt') else 11): P(f'v_writelane_b32 v8, s{S_TS + k}, {k}')
        P(f"""
        v_writelane_b32 v8, s101, 30
        v_writelane_b32 v8, s88, 31
        v_lshrrev_b32 v9, 2, v{V_L16}
        v_mov_b32 v10, s{S_OOB}
        v_cmp_gt_u32 vcc, 0x80, v9
        v_cndmask_b32 v9, v10, v9, vcc
        s_lshl_b32 s24, s2, 3
        s_add_u32 s24, s24, s{S_WAVE}
        s_lshl_b32 s24, s24, 7
        s_add_u32 s24, s24, {TS_OFF}
        buffer_store_dword v8, v9, {WS}, s24 offen
        """)
    if cfg.get('until'):
        P(f"""
        s_waitcnt vmcnt(0)
        s_mov_b32 s26, 20000
        L_spin:
        s_memrealtime s[24:25]
        s_waitcnt lgkmcnt(0)
        s_lshl_b32 s24, s24, 3
        s_sub_u32 s24, s24, s{S_NON}
        s_and_b32 s24, s24, 0x7fffffff
        s_sub_u32 s26, s26, 1
        s_cmp_eq_u32 s26, 0
        s_cbranch_scc1 L_done
        s_cmp_lt_u32 s24, {cfg['until'] * 800}
        s_cbranch_scc1 L_spin
        """)
    P('L_done:')
    P('s_endpgm')
    used = {x.text.split()[1] for x in P.p if isinstance(x, I) and x.op == 's_cbranch_vccnz'}
    for l, g in st.slowmap.items():
        if f'L_sl{l}' in used: P.ext(g)
    q, n = P.finish()
    if cfg.get('verbose'):
        from collections import Counter
        print('nops', n, Counter(x.kind for x in q))
        print('events', events)
    return kernel_text(name, q, 256, 102), st.tsn

HEADER = """; Fused kernel: [QKV | gate/up] GEMM on raw x with LayerNorm applied as a rank-1 correction, linear attention + GEGLU,
; down/out GEMM (split-K 4, exchanged between workgroups) + residual.
; Kernarg (80 bytes): 0 A_x, 8 A_wqkv, 16 A_wo, 24 B_x (unused), 32 w_gate, 40 w_up, 48 w_down, 56 out, 64 debug, 72 ws
; @launch grid=(256,1,1) block=(512,1,1) lds=163840
"""
if __name__ == '__main__':
    out = sys.argv[1]
    cfg = json.loads(sys.argv[2]) if len(sys.argv) > 2 else {}
    name = 'parallel_sum__linear_attn_block__geglu_ffn__prompt_kernel'
    (body, kd), tsn = gen(name, cfg)
    s = HEADER + (f'; ts: {" ".join(tsn)}\n' if tsn else '')
    s += '.amdgcn_target "amdgcn-amd-amdhsa--gfx950"\n.text\n' + body + '.section .rodata,"a"\n.p2align 6\n' + kd
    open(out, 'w').write(s)
```
